```python
import torch

def _softmax(x, axis=-1):
    return torch.softmax(x, dim=axis)
def _gelu(x):
    return torch.nn.functional.gelu(x, approximate="tanh")
def _silu(x):
    return torch.nn.functional.silu(x)
def _sigmoid(x):
    return torch.sigmoid(x)
def _layernorm(x, axis=-1, eps=1e-5):
    m = x.mean(dim=axis, keepdim=True)
    v = x.var(dim=axis, keepdim=True, unbiased=False)
    return (x - m) / torch.sqrt(v + eps)
def _scatter_add(tgt, idx, src, axis=0):
    return tgt.clone().index_add_(axis, idx, src)
def _segment_sum(src, seg, n):
    out = torch.zeros((n,) + src.shape[1:], dtype=src.dtype)
    return out.index_add_(0, seg, src)
def _pad(x, pw):
    flat = tuple(v for pair in reversed(pw) for v in pair)
    return torch.nn.functional.pad(x, flat)

kernel_name = 'interleave_layers__sliding_block__mixer_token_mlp__prompt'

def setup_inputs():

    _w = (lambda a: (lambda t: t.to(torch.bfloat16) if t.is_floating_point() else t)(torch.as_tensor(a)))
    def _A_setup():
        B, S, D = 1, 2048, 512
        return {
            "x": _w((lambda *s: torch.randn(*s, dtype=torch.bfloat16) * 0.05)(B, S, D)),
            "wqkv": _w((lambda *s: torch.randn(*s, dtype=torch.bfloat16) * 0.05)(D, 3 * D)),
            "wo": _w((lambda *s: torch.randn(*s, dtype=torch.bfloat16) * 0.05)(D, D)),
        }
    _A_in = _A_setup()

    def _B_setup():
        B, S, D, F = 1, 2048, 512, 1376
        return {
            "x": _w((lambda *s: torch.randn(*s, dtype=torch.bfloat16) * 0.05)(B, S, D)),
            "w1": _w((lambda *s: torch.randn(*s, dtype=torch.bfloat16) * 0.8)(S, F) * (S ** -0.5)),
            "b1": _w((lambda *s: torch.randn(*s, dtype=torch.bfloat16) * 0.8)(F) * 0.02),
            "w2": _w((lambda *s: torch.randn(*s, dtype=torch.bfloat16) * 0.8)(F, S) * (F ** -0.5)),
            "b2": _w((lambda *s: torch.randn(*s, dtype=torch.bfloat16) * 0.8)(S) * 0.02),
        }
    _B_in = _B_setup()

    return {
        "A_x": _A_in["x"],
        "A_wqkv": _A_in["wqkv"],
        "A_wo": _A_in["wo"],
        "B_x": _B_in["x"],
        "B_w1": _B_in["w1"],
        "B_b1": _B_in["b1"],
        "B_w2": _B_in["w2"],
        "B_b2": _B_in["b2"],
    }

def reference(A_x, A_wqkv, A_wo, B_x, B_w1, B_b1, B_w2, B_b2):
    def _A_ref(x, wqkv, wo):
        B, S, D = x.shape
        H = 32; Dh = D // H; W = 256
        qkv = (lambda x, *d: x.permute(*d))((x @ wqkv).reshape(B, S, 3, H, Dh), 2, 0, 3, 1, 4)
        q, k, v = qkv[0], qkv[1], qkv[2]
        scores = torch.einsum("bhqd,bhkd->bhqk", q, k) * (Dh ** -0.5)
        idx = torch.arange(S)
        mask = (idx[:, None] - idx[None, :] >= 0) & (idx[:, None] - idx[None, :] < W)
        scores = torch.where(mask[None, None], scores, -1e9)
        p = _softmax(scores, axis=-1)
        o = torch.einsum("bhqk,bhkd->bhqd", p, v)
        return (lambda x, *d: x.permute(*d))(o, 0, 2, 1, 3).reshape(B, S, D) @ wo

    def _B_ref(x, w1, b1, w2, b2):
        B, S, D = x.shape
        h = _layernorm(x, axis=-1)
        u = torch.einsum("bsd,sf->bdf", h, w1) + b1
        u = _gelu(u)
        y = torch.einsum("bdf,fs->bds", u, w2) + b2
        return (lambda x, *d: x.permute(*d))(y, 0, 2, 1)

    x = A_x
    x = x + _A_ref(_layernorm(x, axis=-1), A_wqkv, A_wo)
    x = x + _B_ref(_layernorm(x, axis=-1), B_w1, B_b1, B_w2, B_b2)
    x = x + _A_ref(_layernorm(x, axis=-1), A_wqkv, A_wo)
    x = x + _B_ref(_layernorm(x, axis=-1), B_w1, B_b1, B_w2, B_b2)
    return x
```

```python
import re

REG_RE = re.compile(r"^(-|\|)?(abs\()?([vas])(\d+)\)?\|?$")
RANGE_RE = re.compile(r"^(-)?([vas])\[(\d+):(\d+)\]$")


def parse_regs(tok):
    tok = tok.strip()
    m = RANGE_RE.match(tok)
    if m:
        return [(m.group(2), i) for i in range(int(m.group(3)), int(m.group(4)) + 1)]
    m = REG_RE.match(tok)
    if m:
        return [(m.group(3), int(m.group(4)))]
    if tok == "vcc":
        return [("s", "vcc_lo"), ("s", "vcc_hi")]
    if tok in ("vcc_lo", "vcc_hi"):
        return [("s", tok)]
    if tok == "exec":
        return [("s", "exec_lo"), ("s", "exec_hi")]
    if tok in ("exec_lo", "exec_hi"):
        return [("s", tok)]
    if tok == "m0":
        return [("s", "m0")]
    return []


def split_ops(rest):
    toks, depth, cur = [], 0, ""
    for ch in rest:
        if ch in "[(":
            depth += 1
        elif ch in "])":
            depth -= 1
        if ch == "," and depth == 0:
            toks.append(cur.strip()); cur = ""
        else:
            cur += ch
    toks.append(cur.strip())
    return toks


TRANS = ("v_exp_f32", "v_log_f32", "v_rcp_f32", "v_rsq_f32", "v_sqrt_f32", "v_sin_f32", "v_cos_f32",
         "v_rcp_iflag_f32")
RMW = ("v_fmac_f32", "v_dot2c_f32_bf16", "v_pk_fmac_f16", "v_fmac_f16")


class Ins:
    __slots__ = ("text", "op", "ops", "mods", "kind", "rd", "wr", "passes", "srcc", "srcab", "cnt", "lds_dma",
                 "wide_store", "dpp", "comment")

    def __init__(self, text):
        self.text = text
        body = text.split(";")[0].strip()
        parts = body.split(None, 1)
        self.op = parts[0]
        rest = parts[1] if len(parts) > 1 else ""
        toks = split_ops(rest) if rest else []
        self.mods = []
        if toks:
            last = toks[-1].split()
            toks[-1] = last[0] if last else ""
            self.mods = last[1:]
        self.ops = toks
        self.rd, self.wr = set(), set()
        self.kind = "other"
        self.passes = 0
        self.srcc, self.srcab = set(), set()
        self.cnt = None
        self.lds_dma = False
        self.wide_store = False
        self.dpp = False
        self._classify()

    def R(self, i):
        return set(parse_regs(self.ops[i])) if i < len(self.ops) else set()

    def _classify(self):
        op, n = self.op, len(self.ops)
        op = re.sub(r"_(e32|e64|dpp|sdwa)$", "", op)
        if self.op.endswith("_dpp") or any(m.startswith(("quad_perm", "row_", "wave_")) for m in self.mods):
            self.dpp = True
        if op.startswith("v_mfma"):
            self.kind = "mfma"
            self.passes = 8 if "32x32" in op else 4
            self.wr = self.R(0)
            self.srcab = self.R(1) | self.R(2)
            self.srcc = self.R(3)
            self.rd = self.srcab | self.srcc
        elif op.startswith("v_"):
            self.kind = "valu"
            if op.startswith("v_cmp"):
                self.wr = self.R(0)
                for i in range(1, n):
                    self.rd |= self.R(i)
            elif op.startswith("v_permlane") and "swap" in op:
                self.wr = self.R(0) | self.R(1)
                self.rd = set(self.wr)
            elif op in ("v_add_co_u32", "v_sub_co_u32", "v_subrev_co_u32"):
                self.wr = self.R(0) | self.R(1)
                for i in range(2, n):
                    self.rd |= self.R(i)
            elif op in ("v_addc_co_u32", "v_subb_co_u32"):
                self.wr = self.R(0) | self.R(1)
                for i in range(2, n):
                    self.rd |= self.R(i)
            else:
                self.wr = self.R(0)
                for i in range(1, n):
                    self.rd |= self.R(i)
                if op in RMW or op == "v_writelane_b32":
                    self.rd |= self.R(0)
                if op == "v_cndmask_b32" and n == 3:
                    self.rd |= set(parse_regs("vcc"))
            if self.dpp:
                self.rd |= self.R(0)
        elif op.startswith("ds_"):
            self.kind = "ds"
            self.cnt = "lgkm"
            if op.startswith(("ds_read", "ds_bpermute", "ds_permute", "ds_swizzle")):
                self.wr = self.R(0)
                for i in range(1, n):
                    self.rd |= self.R(i)
            else:
                for i in range(n):
                    self.rd |= self.R(i)
        elif op.startswith("buffer_"):
            self.kind = "vmem"
            self.cnt = "vm"
            if "lds" in self.mods:
                self.lds_dma = True
                for i in range(n):
                    self.rd |= self.R(i)
                self.rd.add(("s", "m0"))
            elif op.startswith("buffer_load"):
                self.wr = self.R(0)
                for i in range(1, n):
                    self.rd |= self.R(i)
            else:
                for i in range(n):
                    self.rd |= self.R(i)
                if op.startswith("buffer_atomic") and "sc0" in self.mods:
                    self.wr = self.R(0)
                self.wide_store = op.endswith(("x3", "x4"))
        elif op.startswith("s_"):
            self.kind = "salu"
            if op.startswith(("s_load", "s_memtime", "s_memrealtime")):
                self.kind = "smem"
                self.cnt = "smem"
                self.wr = self.R(0)
                for i in range(1, n):
                    self.rd |= self.R(i)
            elif op.startswith(("s_cmp", "s_bitcmp")):
                for i in range(n):
                    self.rd |= self.R(i)
            elif op.startswith(("s_cbranch", "s_branch", "s_waitcnt", "s_barrier", "s_nop", "s_endpgm", "s_sleep",
                                "s_setprio")):
                self.kind = "ctl"
                if op == "s_cbranch_vccz" or op == "s_cbranch_vccnz":
                    self.rd = set(parse_regs("vcc"))
                if op.startswith("s_cbranch_exec"):
                    self.rd = set(parse_regs("exec"))
            elif "saveexec" in op:
                self.wr = self.R(0) | set(parse_regs("exec"))
                self.rd = self.R(1) | set(parse_regs("exec"))
            else:
                self.wr = self.R(0)
                for i in range(1, n):
                    self.rd |= self.R(i)
                if op in ("s_addk_i32", "s_mulk_i32"):
                    self.rd |= self.R(0)
        else:
            raise ValueError("unknown instruction: " + self.text)


def vreg(s):
    return {r for r in s if r[0] in "va"}


def sreg(s):
    return {r for r in s if r[0] == "s"}


class Asm:
    def __init__(self):
        self.items = []
        self.ctx = ()

    def __call__(self, text, tag=None):
        for line in text.split("\n"):
            line = line.strip()
            if not line:
                continue
            if line.startswith(";"):
                self.items.append(("c", line))
            else:
                self.items.append(("i", line, tag, self.ctx))

    def cond(self, name):
        outer = self

        class _C:
            def __enter__(s_):
                s_.old = outer.ctx
                outer.ctx = outer.ctx + (name,)

            def __exit__(s_, *e):
                outer.ctx = s_.old
        return _C()

    def wait_tag(self, *tags):
        self.items.append(("w", tags, self.ctx))

    def c(self, text):
        self.items.append(("c", "; " + text))

    def label(self, name, reset=True):
        self.items.append(("l", name, reset))

    def raw(self, text):
        self.items.append(("raw", text))

    def assume_clean(self):
        self.items.append(("reset",))

    def finalize(self, check_only=False):
        out = []
        hist = []
        pos = 0
        vm, lg = [], []
        smem = set()
        nnop = nwait = 0

        def emit(text):
            out.append("  " + text)

        def last_gap(pred):
            for (p, ins) in reversed(hist):
                if pos - p > 24:
                    break
                if pred(ins):
                    return pos - p - 1
            return None

        def trim(lst, nkeep, ctx):
            if nkeep == 0:
                return []
            seen = 0
            for i in range(len(lst) - 1, -1, -1):
                if set(lst[i][2]) <= set(ctx):
                    seen += 1
                    if seen > nkeep:
                        return lst[i + 1:]
            return lst

        def younger(lst, i, ctx):
            return sum(1 for e in lst[i + 1:] if set(e[2]) <= set(ctx))

        for it in self.items:
            if it[0] == "w":
                idx = [i for i, e in enumerate(vm) if e[1] in it[1]]
                if idx:
                    i = idx[-1]
                    n = min(younger(vm, i, it[2]), 63)
                    t = f"s_waitcnt vmcnt({n})"
                    emit(t); hist.append((pos, Ins(t))); pos += 1
                    vm = vm[i + 1:]
                continue
            if it[0] == "c":
                out.append(it[1]); continue
            if it[0] == "raw":
                out.append(it[1]); continue
            if it[0] == "reset":
                vm, lg, smem = [], [], set(); continue
            if it[0] == "l":
                out.append(it[1] + ":")
                if it[2]:
                    pend = [e[0] for e in vm if e[0]] + [e[0] for e in lg if e[0]]
                    if pend or smem:
                        raise RuntimeError(f"label {it[1]}: register loads still outstanding: {pend} {smem}")
                    vm = []
                    lg = []
                continue
            ins = Ins(it[1])
            op = ins.op
            ctx = it[3]
            if op == "s_waitcnt":
                t = ins.text
                m = re.search(r"vmcnt\((\d+)\)", t)
                if m:
                    vm = trim(vm, int(m.group(1)), ctx)
                m = re.search(r"lgkmcnt\((\d+)\)", t)
                if m:
                    nkeep = int(m.group(1))
                    if nkeep == 0:
                        lg = []; smem = set()
                    elif not smem:
                        lg = trim(lg, nkeep, ctx)
                emit(t); hist.append((pos, ins)); pos += 1
                continue
            touched = ins.rd | ins.wr
            iv = [i for i, e in enumerate(vm) if e[0] & touched]
            il = [i for i, e in enumerate(lg) if e[0] & touched]
            w = []
            if iv:
                n = min(younger(vm, iv[-1], ctx), 63)
                w.append(f"vmcnt({n})")
                vm = vm[iv[-1] + 1:]
            if (smem & touched) or (il and smem):
                w.append("lgkmcnt(0)")
                lg = []; smem = set()
            elif il:
                n = min(younger(lg, il[-1], ctx), 15)
                w.append(f"lgkmcnt({n})")
                lg = lg[il[-1] + 1:]
            if w:
                t = "s_waitcnt " + " ".join(w)
                emit(t); hist.append((pos, Ins(t))); pos += 1; nwait += 1
            need = 0

            def req(n, pred):
                nonlocal need
                g = last_gap(pred)
                if g is not None and g < n:
                    need = max(need, n - g)

            rv, wv = vreg(ins.rd), vreg(ins.wr)
            rs = sreg(ins.rd)
            if ins.kind == "mfma":
                req(2, lambda p: p.kind == "valu" and vreg(p.wr) & rv)
                req(8, lambda p: p.kind == "mfma" and p.passes == 4 and p.wr & ins.srcab)
                req(12, lambda p: p.kind == "mfma" and p.passes == 8 and p.wr & ins.srcab)
                for ps, n in ((4, 6), (8, 10)):
                    req(n, lambda p, ps=ps: p.kind == "mfma" and p.passes == ps and (p.wr & ins.srcc)
                        and not (p.wr == ins.srcc and p.passes == ins.passes))
                for ps, n in ((4, 6), (8, 10)):
                    req(n, lambda p, ps=ps: p.kind == "mfma" and p.passes == ps and (p.wr & ins.wr)
                        and not (p.wr == ins.wr and p.wr == ins.srcc and p.passes == ins.passes))
            if ins.kind in ("valu", "ds", "vmem"):
                tv = rv | wv
                req(8, lambda p: p.kind == "mfma" and p.passes == 4 and p.wr & tv)
                req(12, lambda p: p.kind == "mfma" and p.passes == 8 and p.wr & tv)
            if ins.kind == "valu":
                req(3, lambda p: p.kind == "mfma" and p.passes == 4 and p.srcc & wv)
                req(7, lambda p: p.kind == "mfma" and p.passes == 8 and p.srcc & wv)
                base = re.sub(r"_(e32|e64)$", "", op)
                if base not in TRANS:
                    req(1, lambda p: p.kind == "valu" and re.sub(r"_(e32|e64)$", "", p.op) in TRANS and p.wr & (rv | wv))
                if "permlane" in op:
                    req(2, lambda p: p.kind == "valu" and vreg(p.wr) & rv)
                if op.startswith(("v_readfirstlane", "v_readlane")):
                    req(1, lambda p: p.kind == "valu" and vreg(p.wr) & rv)
                if op.startswith(("v_readlane", "v_writelane")):
                    req(4, lambda p: p.kind == "valu" and sreg(p.wr) & rs)
                req(2, lambda p: p.kind == "valu" and sreg(p.wr) & rs)
                if ins.dpp:
                    req(2, lambda p: p.kind == "valu" and vreg(p.wr) & rv)
                req(2, lambda p: p.kind == "vmem" and p.wide_store and vreg(p.R(0)) & wv)
            if ins.kind in ("ds", "vmem") and wv:
                req(1, lambda p: p.kind == "vmem" and p.wide_store and vreg(p.R(0)) & wv)
            if ins.kind == "vmem":
                req(5, lambda p: p.kind == "valu" and sreg(p.wr) & rs)
                if ins.lds_dma:
                    req(1, lambda p: p.kind == "salu" and ("s", "m0") in p.wr)
            if ins.kind == "ctl" and op in ("s_cbranch_vccz", "s_cbranch_vccnz"):
                req(1, lambda p: p.kind == "valu" and sreg(p.wr) & set(parse_regs("vcc")))
            while need > 0:
                k = min(need, 16)
                t = f"s_nop {k - 1}"
                emit(t); hist.append((pos, Ins("s_nop 0"))); pos += k; need -= k; nnop += 1
            emit(ins.text)
            hist.append((pos, ins))
            pos += 1
            if op == "s_nop":
                pos += int(ins.ops[0])
            if len(hist) > 64:
                hist = hist[-48:]
            if ins.cnt == "vm":
                vm.append((set(ins.wr), it[2], ctx))
            elif ins.cnt == "lgkm":
                lg.append((set(ins.wr), it[2], ctx))
            elif ins.cnt == "smem":
                smem |= ins.wr
        self.stats = dict(nops=nnop, waits=nwait, lines=len(out))
        return "\n".join(out) + "\n"
```

```python
import math
from gen import *

NEG = f32(-1e30)


def ar(b, n=4):
    return f"a[{b}:{b+n-1}]"


def vr(b, n=4):
    return f"v[{b}:{b+n-1}]"


QA, QB = 224, 228
SBUF = {("A", 0): 64, ("A", 1): 80, ("B", 0): 96, ("B", 1): 112}
NEGM = {"A": 128, "B": 144}
OACC = {"A": 160, "B": 176}
PBUF = {"A": 192, "B": 200}
CDIAG, CFAR, ANDD, ANDF = 208, 232, 32, 40
AK0, AV0 = 0, 72


def kfrag(t, h):
    return AK0 + (t * 2 + h) * 4


def vfrag(t, h, half):
    return AV0 + ((t * 2 + h) * 2 + half) * 4


def attn_setup(g):
    a = g.a
    a.c("======== attention constants")
    a("v_and_b32 v3, 31, v1\nv_lshrrev_b32 v4, 5, v1\nv_lshlrev_b32 v4, 2, v4\nv_sub_u32 v3, v3, v4")
    a(f"v_mov_b32 v48, 0\nv_mov_b32 v49, {NEG}\nv_mov_b32 v50, 0xffff\nv_mov_b32 v51, 0xffff0000")
    for i in range(16):
        ci = (i & 3) + 8 * (i >> 2)
        sp = f"s[{72 + 2*(i % 4)}:{73 + 2*(i % 4)}]"
        a(f"v_cmp_le_i32 {sp}, {ci}, v3")
        a(f"v_mov_b32 v{OACC['A']+i}, 0\nv_mov_b32 v{OACC['B']+i}, 0")
        a(f"v_cndmask_b32 v{CDIAG+i}, v49, v48, {sp}\nv_cndmask_b32 v{CFAR+i}, v48, v49, {sp}")
        a(f"v_cndmask_b32 v{52 + (i & 1)}, v48, v{50 + (i & 1)}, {sp}")
        if i & 1:
            a(f"v_or_b32 v{ANDD + i//2}, v52, v53\nv_not_b32 v{ANDF + i//2}, v{ANDD + i//2}")
    a("v_mov_b32 v54, 0x3f803f80\ns_mov_b32 exec_lo, 0x00110000\ns_mov_b32 exec_hi, 0x00110000")
    for k in range(AV0, AV0 + 144):
        a(f"v_accvgpr_write_b32 a{k}, v54")
    a("s_mov_b64 exec, -1")


def attn(g):
    a = g.a
    a.c("======== attention")
    a(f"s_sub_u32 s72, {sR}, 4\nv_add_u32 v8, s72, v1\nv_cmp_le_i32 s[74:75], 0, v8")
    g.wg_of("v9", "v8", sCQ)
    g.vflag("v9", PH_KV)
    a("s_and_b64 s[74:75], s[74:75], 0xf")
    g.poll("v9", "s[74:75]")
    g.stamp(6)
    a(f"s_lshl_b32 s76, {sR}, 1\ns_add_u32 s76, s76, {sTB}\ns_sub_u32 s77, 8, s76\ns_max_i32 s77, s77, 0")
    a(f"s_lshl_b32 s78, {sCQ}, 1\ns_add_u32 s78, s78, {sP}\ns_lshl_b32 s78, s78, 18\ns_lshl_b32 s79, {sL}, 22")
    a(f"s_add_u32 s78, s78, s79\ns_add_u32 s78, s78, {WS_KV}")
    a("v_and_b32 v8, 15, v1\nv_lshlrev_b32 v8, 4, v8\nv_lshrrev_b32 v9, 5, v1\nv_lshl_add_u32 v8, v9, 8, v8")

    def tile_off(t):
        a(f"s_add_i32 s79, s76, {t-8}\ns_max_i32 s79, s79, 0\ns_lshl_b32 s79, s79, 12\ns_add_u32 s79, s79, s78")
    for t in range(9):
        tile_off(t)
        for h in range(2):
            a(f"buffer_load_dwordx4 {ar(kfrag(t,h))}, v2, {SRD_WS}, s79 offen offset:{h*2048} sc1")
    a("s_mov_b32 exec_lo, 0xffff\ns_mov_b32 exec_hi, 0xffff")
    for t in range(9):
        tile_off(t)
        for h in range(2):
            for half in range(2):
                a(f"buffer_load_dwordx4 {ar(vfrag(t,h,half))}, v8, {SRD_WS}, s79 offen offset:{h*2048+1024+half*512} sc1")
    a("s_mov_b64 exec, -1")

    def skippable(t, body):
        if t == 8:
            body(); return
        stub, back = g.lab("sk"), g.lab("bk")
        a(f"s_cmp_gt_u32 s77, {t}\ns_cbranch_scc1 {stub}")
        with a.cond(stub):
            body()
        a.label(back, reset=False)
        g.stubs.append((stub, back))

    heads = ("A", "B")
    q = {"A": QA, "B": QB}
    mx = {"A": (48, 49), "B": (50, 51)}
    a(f"v_mov_b32 v48, {NEG}\nv_mov_b32 v49, {NEG}\nv_mov_b32 v50, {NEG}\nv_mov_b32 v51, {NEG}")

    def qk(h, t, c):
        s = SBUF[(h, t & 1)]
        a(f"v_mfma_f32_32x32x16_bf16 {vr(s,16)}, {ar(kfrag(t, heads.index(h)))}, {vr(q[h])}, {c}")

    def cmask(t):
        return vr(CFAR, 16) if t == 0 else vr(CDIAG, 16) if t == 8 else "0"

    def maxblk(h, t):
        s = SBUF[(h, t & 1)]
        for i in range(8):
            m = mx[h][i & 1]
            a(f"v_max3_f32 v{m}, v{m}, v{s+2*i}, v{s+2*i+1}")
    a.c("pass 1: true row maximum over the masked window")
    for t in range(10):
        for h in heads:
            if t < 9:
                qk(h, t, cmask(t))
            if t >= 1:
                skippable(t - 1, lambda h=h, t=t: maxblk(h, t - 1))
    for h in heads:
        m0, m1 = mx[h]
        a(f"v_max_f32 v{m0}, v{m0}, v{m1}\nv_mov_b32 v{m1}, v{m0}")
    for h in heads:
        m0, m1 = mx[h]
        a(f"v_permlane32_swap_b32 v{m0}, v{m1}")
    for h in heads:
        m0, m1 = mx[h]
        a(f"v_max_f32 v{m0}, v{m0}, v{m1}\nv_xor_b32 v{m0}, 0x80000000, v{m0}")
    for h in heads:
        for i in range(16):
            a(f"v_mov_b32 v{NEGM[h]+i}, v{mx[h][0]}")
    g.stamp(7)
    a.c("pass 2: P = exp2(S - m), O += V^T P")

    def expblk(h, t):
        s, p = SBUF[(h, t & 1)], PBUF[h]
        for i in range(16):
            a(f"v_exp_f32 v{s+i}, v{s+i}")
            if i >= 2 and i % 2 == 0:
                k = i // 2 - 1
                a(f"v_cvt_pk_bf16_f32 v{p+k}, v{s+2*k}, v{s+2*k+1}")
        a(f"s_nop 0\nv_cvt_pk_bf16_f32 v{p+7}, v{s+14}, v{s+15}")
        if t in (0, 8):
            msk = ANDF if t == 0 else ANDD
            for k in range(8):
                a(f"v_and_b32 v{p+k}, v{msk+k}, v{p+k}")
        o = OACC[h]
        for half in range(2):
            a(f"v_mfma_f32_32x32x16_bf16 {vr(o,16)}, {ar(vfrag(t, heads.index(h), half))}, {vr(p+4*half)}, {vr(o,16)}")
    for t in range(10):
        for h in heads:
            if t < 9:
                qk(h, t, vr(NEGM[h], 16))
            if t >= 1:
                skippable(t - 1, lambda h=h, t=t: expblk(h, t - 1))
    g.stamp(8)
    a("v_bfe_u32 v8, v1, 4, 1\nv_lshlrev_b32 v8, 14, v8\nv_and_b32 v9, 15, v1\nv_lshl_add_u32 v8, v9, 4, v8")
    a("v_lshrrev_b32 v9, 5, v1\nv_lshl_add_u32 v8, v9, 8, v8")
    a(f"s_lshl_b32 s72, {sR}, 2\ns_lshl_b32 s73, {sTB}, 1\ns_add_u32 s72, s72, s73\ns_lshl_b32 s72, s72, 4")
    a(f"s_lshl_b32 s73, {sCQ}, 1\ns_add_u32 s72, s72, s73\ns_add_u32 s72, s72, {sP}\ns_lshl_b32 s72, s72, 10")
    a(f"s_lshl_b32 s73, {sL}, 21\ns_add_u32 s72, s72, s73\ns_add_u32 s72, s72, {WS_OF}")
    for hi, h in enumerate(heads):
        o = OACC[h]
        a(f"v_rcp_f32 v52, v{o+8}")
        for i in range(8):
            a(f"v_mul_f32 v{o+i}, v52, v{o+i}")
        for k in range(4):
            a(f"v_cvt_pk_bf16_f32 v{o+k}, v{o+2*k}, v{o+2*k+1}")
        a(f"buffer_store_dwordx4 {vr(o)}, v8, {SRD_WS}, s72 offen offset:{hi*512} sc1", tag="Ost")


def relayout(g):
    a = g.a
    a.c("======== weight re-layout (layer 0 only)")
    skip = g.lab("nop")
    a(f"s_cmp_eq_u32 {sL}, 0\ns_cbranch_scc0 {skip}")
    with a.cond(skip):
        L1 = L_RING
        L2 = L_RING + 28672
        g.srd(32, P_W1, 2048 * 1376 * 2)
        a("s_lshr_b32 s72, s2, 2\ns_and_b32 s73, s2, 3")
        a("s_mul_i32 s74, s73, 7\ns_min_u32 s75, s73, 1\ns_add_u32 s74, s74, s75")
        a("s_cmp_eq_u32 s73, 0\ns_cselect_b32 s75, 8, 7")
        a(f"s_mul_i32 s76, s72, {32*2752}\ns_mul_i32 s77, s74, 96\ns_add_u32 s76, s76, s77\ns_mul_i32 s77, s75, 6")
        a("s_mov_b32 s78, 1311\ns_mov_b32 s79, 2752")
        for n in range(7):
            a(f"s_lshl_b32 s80, {sWV}, 6\ns_add_u32 s80, s80, {256*n}\nv_add_u32 v64, s80, v1")
            a("v_mul_lo_u32 v65, v64, s78\nv_lshrrev_b32 v65, 16, v65\nv_mul_u32_u24 v66, 50, v65\nv_sub_u32 v66, v64, v66")
            a("v_mul_lo_u32 v67, v65, s79\nv_lshl_add_u32 v67, v66, 4, v67")
            a("v_cmp_gt_u32 vcc, s77, v66\nv_cmp_gt_u32 s[82:83], 32, v65\ns_and_b64 vcc, vcc, s[82:83]")
            a("v_mov_b32 v68, 0x7ff00000\nv_cndmask_b32 v67, v68, v67, vcc")
            a(f"s_lshl_b32 s80, {sWV}, 10\ns_add_u32 m0, s80, {L1 + n*4096}")
            a(f"buffer_load_dwordx4 v67, {SRD_T}, s76 offen lds", tag="P1")
        g.srd(32, P_W2, 1376 * 4096)
        a("v_lshrrev_b32 v64, 3, v1\nv_lshlrev_b32 v64, 12, v64\nv_and_b32 v65, 7, v1\nv_lshl_add_u32 v64, v65, 4, v64")
        a(f"s_lshl_b32 s84, s2, 2\ns_add_u32 s84, s84, {sWV}")
        for n in range(2):
            a(f"s_add_u32 s80, s84, {1024*n}\ns_lshr_b32 s81, s80, 5\ns_and_b32 s82, s80, 31")
            a("s_lshl_b32 s81, s81, 17\ns_lshl_b32 s82, s82, 7\ns_add_u32 s81, s81, s82")
            for m in range(4):
                a(f"s_lshl_b32 s83, {sWV}, 13\ns_add_u32 m0, s83, {L2 + n*4096 + m*1024}")
                a(f"buffer_load_dwordx4 v64, {SRD_T}, s81 offen lds", tag="P2")
                if m < 3:
                    a("s_add_u32 s81, s81, 32768")
        a("v_lshrrev_b32 v65, 4, v1\nv_lshlrev_b32 v65, 3, v65\nv_bfe_u32 v66, v1, 2, 2\nv_add_u32 v65, v65, v66\nv_and_b32 v66, 3, v1")
        a(f"v_mul_u32_u24 v67, 800, v65\nv_lshl_add_u32 v67, v66, 3, v67\ns_lshl_b32 s80, {sWV}, 5\ns_add_u32 s80, s80, {L1}\nv_add_u32 v67, s80, v67")
        a(f"v_lshlrev_b32 v68, 7, v65\nv_lshl_add_u32 v68, v66, 3, v68\ns_lshl_b32 s80, {sWV}, 13\ns_add_u32 s80, s80, {L2}\nv_add_u32 v68, s80, v68")
        a.wait_tag("P1")
        a("s_barrier")
        for n in range(6):
            for rd in range(2):
                a(f"ds_read_b64_tr_b16 v[{72+4*n+2*rd}:{73+4*n+2*rd}], v67 offset:{128*n + rd*3200}")
        for n in range(6):
            a(f"s_add_u32 s80, {sWV}, {4*n}\ns_mul_i32 s81, s80, 43\ns_lshr_b32 s81, s81, 7\ns_mul_i32 s82, s81, 3\ns_sub_u32 s82, s80, s82")
            a("s_cmp_lt_u32 s81, s75\ns_cselect_b32 s85, 0, 0x70000000")
            a("s_add_u32 s81, s81, s74\ns_lshl_b32 s81, s81, 6\ns_add_u32 s81, s81, s72\ns_mul_i32 s81, s81, 3\ns_add_u32 s81, s81, s82")
            a(f"s_lshl_b32 s81, s81, 10\ns_add_u32 s81, s81, {WS_W1P}\ns_or_b32 s81, s81, s85")
            a(f"buffer_store_dwordx4 {vr(72+4*n)}, v2, {SRD_WS}, s81 offen sc1")
        a.wait_tag("P2")
        for n in range(2):
            for st in range(4):
                for rd in range(2):
                    b = 96 + 16*n + 4*st + 2*rd
                    a(f"ds_read_b64_tr_b16 v[{b}:{b+1}], v68 offset:{n*4096 + 32*st + rd*512}")
        for n in range(2):
            a(f"s_add_u32 s80, s84, {1024*n}\ns_lshr_b32 s81, s80, 5\ns_and_b32 s82, s80, 31")
            a("s_cmp_lt_u32 s80, 1376\ns_cselect_b32 s85, 0, 0x70000000")
            a(f"s_mul_i32 s82, s82, 43\ns_add_u32 s81, s81, s82\ns_lshl_b32 s81, s81, 12\ns_add_u32 s81, s81, {WS_W2P}\ns_or_b32 s81, s81, s85")
            for st in range(4):
                a(f"buffer_store_dwordx4 {vr(96+16*n+4*st)}, v2, {SRD_WS}, s81 offen offset:{st*1024} sc1")
        a("s_waitcnt vmcnt(0)")
        g.publish(PH_P)
    a.label(skip, reset=False)


def w1_prefetch(g, s0, s1, check):
    a = g.a
    skip = g.lab("w1p")
    a(f"s_cmp_eq_u32 {sM1}, 0\ns_cbranch_scc1 {skip}")
    with a.cond("m1"):
        if check:
            sk2 = g.lab("w1c")
            a(f"s_cmp_eq_u32 {sL}, 0\ns_cbranch_scc0 {sk2}")
            with a.cond(sk2):
                a(f"s_cmp_ge_u32 {sJ1}, 8\ns_cselect_b32 s72, 1, 0\ns_cmp_ge_u32 {sJ1}, 15\ns_addc_u32 s72, s72, 0")
                a(f"s_cmp_ge_u32 {sJ1}, 22\ns_addc_u32 s72, s72, 0")
                a(f"s_lshl_b32 s73, {sWV}, 4\nv_add_u32 v9, s73, v1\nv_lshl_add_u32 v9, v9, 2, s72")
                g.vflag("v9", PH_P)
                g.poll("v9", "0xffff")
            a.label(sk2, reset=False)
        a(f"s_lshl_b32 s72, {sJ1}, 6\ns_lshl_b32 s73, {sWV}, 4\ns_add_u32 s72, s72, s73\ns_add_u32 s72, s72, {s0}")
        a(f"s_mul_i32 s72, s72, 3072\ns_add_u32 s72, s72, {WS_W1P}")
        for st in range(s0, s1):
            for ft in range(3):
                a(f"buffer_load_dwordx4 {ar((st*3+ft)*4)}, v2, {SRD_WS}, s72 offen offset:{ft*1024} sc1")
            if st < s1 - 1:
                a("s_add_u32 s72, s72, 3072")
    a.label(skip, reset=False)


def w2_prefetch(g):
    a = g.a
    sk2 = g.lab("w2c")
    a(f"s_cmp_eq_u32 {sL}, 0\ns_cbranch_scc0 {sk2}")
    with a.cond(sk2):
        a(f"s_mul_i32 s73, {sWV}, 11\nv_add_u32 v9, s73, v1\nv_min_u32 v9, 42, v9\nv_lshlrev_b32 v9, 5, v9")
        a(f"v_add_u32 v9, {sR}, v9\nv_and_b32 v9, 1023, v9\nv_lshrrev_b32 v9, 2, v9")
        g.vflag("v9", PH_P)
        g.poll("v9", "0x7ff")
    a.label(sk2, reset=False)
    a(f"s_mul_i32 s72, {sWV}, {11*4096}")
    for st in range(11):
        for k in range(4):
            a(f"buffer_load_dwordx4 {ar((st*4+k)*4)}, v2, {SRD_W2P}, s72 offen offset:{k*1024} sc1")
        if st < 10:
            a("s_add_u32 s72, s72, 4096")


def oproj(g):
    a = g.a
    a.c("======== output projection, residual, double LayerNorm")
    a(f"v_mov_b32 v8, {sR}\nv_and_b32 v9, 3, v8\nv_lshlrev_b32 v9, 3, v9\nv_add_u32 v9, v1, v9\nv_lshlrev_b32 v9, 3, v9")
    a("v_lshrrev_b32 v7, 2, v8\nv_add_u32 v9, v9, v7")
    g.vflag("v9", PH_O)
    g.poll("v9", "0xff")
    g.stamp(10)
    OFR, WFR, ACC = 64, 128, 160
    a(f"s_lshl_b32 s72, {sR}, 2\ns_add_u32 s72, s72, {sWV}\ns_lshl_b32 s72, s72, 14\ns_lshl_b32 s73, {sL}, 21")
    a(f"s_add_u32 s72, s72, s73\ns_add_u32 s72, s72, {WS_OF}")
    for ks in range(16):
        a(f"buffer_load_dwordx4 {vr(OFR+4*ks)}, v2, {SRD_WS}, s72 offen offset:{(ks & 3)*1024} sc1")
        if ks & 3 == 3 and ks < 15:
            a("s_add_u32 s72, s72, 4096")
    a("v_lshrrev_b32 v3, 5, v1\nv_lshlrev_b32 v3, 4, v3\nv_bfe_u32 v4, v1, 4, 1\nv_lshl_add_u32 v3, v4, 2, v3")
    a("v_bfe_u32 v5, v1, 2, 2\nv_add_u32 v3, v3, v5\nv_bfe_u32 v5, v3, 1, 2\nv_and_b32 v6, 3, v1\nv_lshlrev_b32 v6, 3, v6")
    a("v_lshl_add_u32 v6, v3, 7, v6")
    for nt in range(4):
        a(f"v_xor_b32 v7, {nt}, v5\nv_lshl_add_u32 v{10+nt}, v7, 5, v6")

    def wreads(ks):
        for nt in range(4):
            b = WFR + (ks & 1) * 16 + nt * 4
            for rd in range(2):
                a(f"ds_read_b64_tr_b16 v[{b+2*rd}:{b+2*rd+1}], v{10+nt} offset:{L_X + ks*4096 + rd*1024}")
    wreads(0)
    for ks in range(16):
        if ks < 15:
            wreads(ks + 1)
        for nt in range(4):
            b = WFR + (ks & 1) * 16 + nt * 4
            c = "0" if ks == 0 else vr(ACC + 4*nt)
            a(f"v_mfma_f32_16x16x32_bf16 {vr(ACC+4*nt)}, {vr(b)}, {vr(OFR+4*ks)}, {c}")
    g.stamp(11)
    a(f"v_and_b32 v3, 15, v1\ns_lshl_b32 s72, {sWV}, 4\nv_add_u32 v14, s72, v3\nv_lshrrev_b32 v4, 4, v1")
    a(f"v_mul_u32_u24 v5, 144, v14\nv_lshl_add_u32 v5, v4, 3, v5\nv_add_u32 v15, {L_R}, v5")
    for nt in range(4):
        a(f"ds_read_b64 v[{176+2*nt}:{177+2*nt}], v15 offset:{32*nt}")
    X1 = 192
    for nt in range(4):
        for k in range(2):
            a(f"v_lshlrev_b32 v{X1+4*nt+2*k}, 16, v{176+2*nt+k}\nv_and_b32 v{X1+4*nt+2*k+1}, 0xffff0000, v{176+2*nt+k}")
    for i in range(16):
        a(f"v_add_f32 v{X1+i}, v{X1+i}, v{ACC+i}")
    for k in range(8):
        a(f"v_cvt_pk_bf16_f32 v{176+k}, v{X1+2*k}, v{X1+2*k+1}")
    for nt in range(4):
        a(f"ds_write_b64 v15, v[{176+2*nt}:{177+2*nt}] offset:{32*nt}")
    a(f"v_add_f32 v16, v{X1}, v{X1+1}\nv_mul_f32 v17, v{X1}, v{X1}\nv_fmac_f32 v17, v{X1+1}, v{X1+1}")
    for i in range(2, 16):
        a(f"v_add_f32 v16, v16, v{X1+i}\nv_fmac_f32 v17, v{X1+i}, v{X1+i}")

    def fold_groups(r0, r1):
        for sw in ("16", "32"):
            a(f"v_mov_b32 v20, v{r0}\nv_mov_b32 v21, v{r1}")
            a(f"v_permlane{sw}_swap_b32 v{r0}, v20\nv_permlane{sw}_swap_b32 v{r1}, v21")
            a(f"v_add_f32 v{r0}, v{r0}, v20\nv_add_f32 v{r1}, v{r1}, v21")
    fold_groups(16, 17)
    a(f"v_mov_b32 v18, {sN}\nv_mov_b32 v19, {sNN}")
    a(f"s_lshl_b32 s72, {sL}, 5\ns_add_u32 s72, s72, {sR}\ns_lshl_b32 s72, s72, 13\ns_add_u32 s72, s72, {WS_ST}")
    a(f"s_lshl_b32 s73, {sCQ}, 10\ns_add_u32 s73, s73, s72\nv_lshlrev_b32 v22, 4, v14")
    a("s_mov_b64 exec, 0xffff")
    a(f"buffer_store_dwordx4 v[16:19], v22, {SRD_WS}, s73 offen sc1")
    a("s_mov_b64 exec, -1")
    a("v_lshl_add_u32 v23, v4, 11, v22\ns_mov_b32 s98, 0")
    top, ok = g.lab("stp"), g.lab("sto")
    a.label(top, reset=False)
    a(f"buffer_load_dwordx4 v[24:27], v23, {SRD_WS}, s72 offen sc1")
    a(f"buffer_load_dwordx4 v[28:31], v23, {SRD_WS}, s72 offen offset:1024 sc1")
    a("s_waitcnt vmcnt(0)")
    a(f"v_cmp_ne_u64 vcc, {sNP}, v[26:27]\nv_cmp_ne_u64 s[74:75], {sNP}, v[30:31]\ns_or_b64 vcc, vcc, s[74:75]")
    a(f"s_cbranch_vccz {ok}")
    a(f"s_add_u32 s98, s98, 1\ns_cmp_lt_u32 s98, {POLL_LIMIT}\ns_cbranch_scc1 {top}\ns_branch L_fail")
    a.label(ok, reset=False)
    g.stamp(12)
    a("v_add_f32 v16, v24, v28\nv_add_f32 v17, v25, v29")
    fold_groups(16, 17)
    a(f"v_mul_f32 v16, {f32(1/512)}, v16\nv_mul_f32 v17, {f32(1/512)}, v17\nv_fma_f32 v17, -v16, v16, v17\nv_max_f32 v17, 0, v17")
    a(f"v_add_f32 v18, {f32(1e-5)}, v17\nv_rsq_f32 v18, v18")
    a(f"v_mul_f32 v19, v18, v18\nv_mul_f32 v19, v19, v17\nv_add_f32 v19, {f32(1e-5)}, v19\nv_rsq_f32 v19, v19\nv_mul_f32 v18, v18, v19")
    for i in range(16):
        a(f"v_sub_f32 v{X1+i}, v{X1+i}, v16")
    for i in range(16):
        a(f"v_mul_f32 v{X1+i}, v18, v{X1+i}")
    for k in range(8):
        a(f"v_cvt_pk_bf16_f32 v{176+k}, v{X1+2*k}, v{X1+2*k+1}")
    HT = L_RING
    a(f"v_mul_u32_u24 v5, 160, v14\nv_lshl_add_u32 v5, v4, 3, v5\nv_add_u32 v5, {HT}, v5")
    for nt in range(4):
        a(f"ds_write_b64 v5, v[{176+2*nt}:{177+2*nt}] offset:{32*nt}")
    a("v_lshrrev_b32 v3, 4, v1\nv_lshlrev_b32 v3, 3, v3\nv_bfe_u32 v6, v1, 2, 2\nv_add_u32 v3, v3, v6")
    a(f"s_lshl_b32 s72, {sTB}, 5\nv_add_u32 v3, s72, v3\nv_mul_u32_u24 v3, 160, v3\nv_and_b32 v6, 3, v1\nv_lshl_add_u32 v3, v6, 3, v3")
    a(f"s_lshl_b32 s72, {sP}, 6\ns_add_u32 s72, s72, {HT}\nv_add_u32 v3, s72, v3")
    a("s_waitcnt lgkmcnt(0)\ns_barrier")
    for e in range(2):
        for rd in range(2):
            a(f"ds_read_b64_tr_b16 v[{184+4*e+2*rd}:{185+4*e+2*rd}], v3 offset:{32*e + rd*640}")
    a(f"s_lshl_b32 s72, {sCQ}, 6\ns_lshl_b32 s73, {sR}, 1\ns_add_u32 s72, s72, s73\ns_add_u32 s72, s72, {sTB}\ns_lshl_b32 s72, s72, 2")
    a(f"s_lshl_b32 s73, {sP}, 1\ns_add_u32 s72, s72, s73\ns_lshl_b32 s72, s72, 10\ns_lshl_b32 s73, {sL}, 21\ns_add_u32 s72, s72, s73\ns_add_u32 s72, s72, {WS_H}")
    for e in range(2):
        a(f"buffer_store_dwordx4 {vr(184+4*e)}, v2, {SRD_WS}, s72 offen offset:{e*1024} sc1", tag="Hst")


def mix1(g):
    a = g.a
    a.c("======== token mixing 1: u = gelu(h^T W1 + b1)")
    skip = g.lab("m1")
    a(f"s_cmp_eq_u32 {sM1}, 0\ns_cbranch_scc1 {skip}")
    with a.cond("m1"):
        a(f"s_mul_i32 s72, {sJ1}, 96\ns_lshl_b32 s73, {sWV}, 4\ns_add_u32 s72, s72, s73")
        a(f"s_add_u32 s74, s{P_B1}, s72\ns_addc_u32 s75, s{P_B1+1}, 0\ns_load_dwordx4 s[76:79], s[74:75], 0")
        a(f"s_cmp_lt_u32 {sWV}, 2\ns_cselect_b32 s73, 64, 0\ns_cmp_eq_u32 {sJ1}, 28\ns_cselect_b32 s73, 0, s73")
        a("s_add_u32 s74, s74, s73\ns_addc_u32 s75, s75, 0\ns_load_dwordx4 s[80:83], s[74:75], 0")
        a(f"s_lshl_b32 s73, {sWV}, 3\nv_add_u32 v8, s73, v1")
        g.wg_of("v9", "v8", sC1)
        g.vflag("v9", PH_H)
        g.poll("v9", "0xff")
        g.stamp(14)
        HB, NS, ACC = 64, 48, 192
        a(f"s_lshl_b32 s72, {sC1}, 6\ns_lshl_b32 s73, {sWV}, 4\ns_add_u32 s72, s72, s73\ns_lshl_b32 s72, s72, 12")
        a(f"s_lshl_b32 s73, {sL}, 21\ns_add_u32 s72, s72, s73\ns_add_u32 s72, s72, {WS_H}")
        nload = [0]

        def hload():
            n = nload[0]
            a(f"buffer_load_dwordx4 {vr(HB + 4*(n % NS))}, v2, {SRD_WS}, s72 offen offset:{(n & 3)*1024} sc1")
            if n & 3 == 3:
                a("s_add_u32 s72, s72, 4096")
            nload[0] += 1
        for _ in range(NS):
            hload()
        for st in range(16):
            for dt in range(4):
                hb = HB + 4 * ((st*4 + dt) % NS)
                for ft in range(3):
                    acc = ACC + (ft*4 + dt) * 4
                    c = "0" if st == 0 else ar(acc)
                    a(f"v_mfma_f32_16x16x32_bf16 {ar(acc)}, {ar((st*3+ft)*4)}, {vr(hb)}, {c}")
                if nload[0] < 64:
                    hload()
        g.stamp(15)
        a(f"v_and_b32 v3, 15, v1\nv_mul_u32_u24 v3, 208, v3\nv_lshrrev_b32 v4, 4, v1\nv_lshl_add_u32 v3, v4, 4, v3")
        a(f"s_mul_i32 s72, {sWV}, 13312\nv_add_u32 v3, s72, v3")
        for dt in range(4):
            for ft in range(3):
                a(f"ds_write_b128 v3, {ar(ACC + (ft*4+dt)*4)} offset:{L_X + dt*16*208 + ft*64}")
        a("s_waitcnt lgkmcnt(0)\ns_barrier")
        sk3 = g.lab("ep")
        a(f"s_or_b32 s72, s2, {sL}\ns_or_b32 s72, s72, {sWV}\ns_cmp_eq_u32 s72, 0\ns_cbranch_scc0 {sk3}")
        with a.cond(sk3):
            a(f"v_mov_b32 v4, {sN}\nv_mov_b32 v5, {WS_EPOCH}\ns_mov_b64 exec, 1")
            a(f"buffer_store_dword v4, v5, {SRD_WS}, 0 offen sc1")
            a("s_mov_b64 exec, -1")
        a.label(sk3, reset=False)
        c0 = -2 * math.log2(math.e) * math.sqrt(2 / math.pi)
        c1 = c0 * 0.044715

        def chunk(qoff, sb):
            a(f"v_mul_u32_u24 v3, 208, v1\ns_lshl_b32 s72, {sWV}, 5\ns_add_u32 s72, s72, {L_X + qoff*32}\nv_add_u32 v3, s72, v3")
            for k in range(4):
                for e in range(2):
                    a(f"ds_read_b128 {vr(64 + k*8 + e*4)}, v3 offset:{k*13312 + e*16}")
            for i in range(8):
                src = f"s{sb + i//2}"
                a(f"s_lshl_b32 s84, {src}, 16" if i % 2 == 0 else f"s_and_b32 s84, {src}, 0xffff0000")
                a(f"v_add_f32 v{64+i}, v{64+i}, v{72+i}\nv_add_f32 v{80+i}, v{80+i}, v{88+i}\nv_add_f32 v{64+i}, s84, v{64+i}")
                a(f"v_add_f32 v{64+i}, v{64+i}, v{80+i}")
            a(f"s_mov_b32 s84, {f32(c1)}\ns_mov_b32 s85, {f32(c0)}")
            for i in range(8):
                a(f"v_mul_f32 v{72+i}, v{64+i}, v{64+i}\nv_mov_b32 v{80+i}, s85\nv_fmac_f32 v{80+i}, s84, v{72+i}\nv_mul_f32 v{80+i}, v{80+i}, v{64+i}")
            for i in range(8):
                a(f"v_exp_f32 v{80+i}, v{80+i}")
            for i in range(8):
                a(f"v_add_f32 v{80+i}, 1.0, v{80+i}")
            for i in range(8):
                a(f"v_rcp_f32 v{80+i}, v{80+i}")
            for i in range(8):
                a(f"v_mul_f32 v{64+i}, v{64+i}, v{80+i}")
            for k in range(4):
                a(f"v_cvt_pk_bf16_f32 v{96+k}, v{64+2*k}, v{64+2*k+1}")
            a(f"s_mul_i32 s72, {sJ1}, 6\ns_add_u32 s72, s72, {sWV}\ns_add_u32 s72, s72, {qoff}\ns_lshr_b32 s73, s72, 2\ns_and_b32 s72, s72, 3")
            a(f"s_lshl_b32 s73, s73, 12\ns_lshl_b32 s72, s72, 8\ns_add_u32 s72, s72, s73\ns_mul_i32 s73, {sC1}, {UC}\ns_add_u32 s72, s72, s73")
            a(f"s_lshl_b32 s73, {sL}, 21\ns_add_u32 s72, s72, s73\ns_add_u32 s72, s72, {WS_U}")
            a("v_lshrrev_b32 v4, 4, v1\nv_lshlrev_b32 v4, 10, v4\nv_and_b32 v5, 15, v1\nv_lshl_add_u32 v4, v5, 4, v4")
            a(f"buffer_store_dwordx4 {vr(96)}, v4, {SRD_WS}, s72 offen sc1", tag="Ust")
        chunk(0, 76)
        sk4 = g.lab("c2")
        a(f"s_cmp_lt_u32 {sWV}, 2\ns_cselect_b32 s72, 1, 0\ns_cmp_eq_u32 {sJ1}, 28\ns_cselect_b32 s72, 0, s72")
        a(f"s_cmp_eq_u32 s72, 0\ns_cbranch_scc1 {sk4}")
        with a.cond(sk4):
            chunk(4, 80)
        a.label(sk4, reset=False)
        a("s_waitcnt vmcnt(0)")
        g.publish(PH_U)
    a.label(skip, reset=False)


def mix2(g):
    a = g.a
    a.c("======== token mixing 2: x += (u W2 + b2)^T")
    g.srd(32, P_B2, 4096)
    a(f"v_lshrrev_b32 v10, 3, v0\ns_lshl_b32 s72, {sR}, 7\nv_lshl_add_u32 v11, v10, 1, s72")
    a(f"buffer_load_ushort v12, v11, {SRD_T}, 0 offen\nbuffer_load_ushort v13, v11, {SRD_T}, 0 offen offset:64")
    a(f"s_mul_i32 s72, {sCQ}, {UC}\ns_lshl_b32 s73, {sL}, 21\ns_add_u32 s72, s72, s73\ns_add_u32 s72, s72, {WS_U}")
    g.srd(24, P_WS, UC, "s72")
    a(f"s_mul_i32 s72, {sWV}, 352\ns_mul_hi_u32 s72, s72, {(1 << 32)//48 + 1}\nv_add_u32 v8, s72, v1\nv_min_u32 v8, 28, v8")
    a("v_cmp_le_u32 vcc, 8, v8\nv_cndmask_b32 v6, 0, 1, vcc\nv_cmp_le_u32 vcc, 15, v8\nv_addc_co_u32 v6, vcc, 0, v6, vcc")
    a("v_cmp_le_u32 vcc, 22, v8\nv_addc_co_u32 v6, vcc, 0, v6, vcc")
    a("v_mul_u32_u24 v7, 7, v6\nv_min_u32 v9, 1, v6\nv_add_u32 v7, v7, v9\nv_sub_u32 v7, v8, v7")
    a(f"s_and_b32 s72, {sCQ}, 3\ns_lshr_b32 s73, {sCQ}, 2\nv_lshl_add_u32 v7, v7, 2, s72\nv_lshlrev_b32 v7, 3, v7")
    a("v_lshl_add_u32 v9, v6, 1, v7\nv_add_u32 v9, s73, v9")
    g.vflag("v9", PH_U)
    g.poll("v9", "0xff")
    g.stamp(17)
    UB, ACC = 64, 192
    a(f"s_mul_i32 s72, {sWV}, {11*4096}")
    for st in range(11):
        for dt in range(4):
            a(f"buffer_load_dwordx4 {vr(UB + (st*4+dt)*4)}, v2, {SRD_U}, s72 offen offset:{dt*1024} sc1")
        if st < 10:
            a("s_add_u32 s72, s72, 4096")
    for st in range(11):
        for dt in range(4):
            for k in range(4):
                acc = ACC + (dt*4 + k) * 4
                c = "0" if st == 0 else ar(acc)
                a(f"v_mfma_f32_16x16x32_bf16 {ar(acc)}, {vr(UB + (st*4+dt)*4)}, {ar((st*4+k)*4)}, {c}")
    g.stamp(18)
    a("v_and_b32 v3, 15, v1\nv_lshrrev_b32 v4, 4, v1\nv_and_b32 v5, 7, v1")
    a(f"s_lshl_b32 s72, {sWV}, 14")
    for dt in range(4):
        a(f"v_add_u32 v6, {4*dt}, v4\nv_xor_b32 v6, v6, v5\nv_lshlrev_b32 v6, 4, v6\nv_lshl_add_u32 v6, v3, 8, v6\nv_add_u32 v{14+dt}, s72, v6")
    for dt in range(4):
        for k in range(4):
            a(f"ds_write_b128 v{14+dt}, {ar(ACC + (dt*4+k)*4)} offset:{L_X + k*4096}")
    a("s_waitcnt lgkmcnt(0)\ns_barrier")
    a("v_and_b32 v3, 7, v0\nv_and_b32 v4, 7, v10\nv_lshlrev_b32 v5, 1, v3")
    for e in range(2):
        a(f"v_add_u32 v6, {e}, v5\nv_xor_b32 v6, v6, v4\nv_lshlrev_b32 v6, 4, v6\nv_lshl_add_u32 v{18+e}, v10, 8, v6")
    a(f"v_mul_u32_u24 v20, 144, v10\nv_lshl_add_u32 v20, v3, 4, v20\nv_add_u32 v20, {L_R}, v20")
    a(f"v_lshlrev_b32 v21, 10, v10\nv_lshl_add_u32 v21, v3, 4, v21")
    a(f"s_lshl_b32 s72, {sR}, 16\ns_lshl_b32 s73, {sCQ}, 7\ns_add_u32 s72, s72, s73")
    for half in range(2):
        B = 64 + half * 48
        for k in range(4):
            for e in range(2):
                a(f"ds_read_b128 {vr(B + k*8 + e*4)}, v{18+e} offset:{L_X + k*16384 + half*8192}")
        a(f"ds_read_b128 {vr(B+32)}, v20 offset:{half*4608}")
    for half in range(2):
        B = 64 + half * 48
        a(f"v_lshlrev_b32 v22, 16, v{12+half}")
        for i in range(8):
            a(f"v_add_f32 v{B+i}, v{B+i}, v{B+8+i}\nv_add_f32 v{B+16+i}, v{B+16+i}, v{B+24+i}")
        for i in range(8):
            a(f"v_add_f32 v{B+i}, v{B+i}, v{B+16+i}")
        for i in range(8):
            a(f"v_add_f32 v{B+i}, v{B+i}, v22")
        for k in range(4):
            a(f"v_lshlrev_b32 v{B+8+2*k}, 16, v{B+32+k}\nv_and_b32 v{B+9+2*k}, 0xffff0000, v{B+32+k}")
        for i in range(8):
            a(f"v_add_f32 v{B+i}, v{B+i}, v{B+8+i}")
        for k in range(4):
            a(f"v_cvt_pk_bf16_f32 v{B+36+k}, v{B+2*k}, v{B+2*k+1}")
        a(f"ds_write_b128 v20, {vr(B+36)} offset:{half*4608}")
        a(f"buffer_store_dwordx4 {vr(B+36)}, v21, {SRD_DST}, s72 offen sc1", tag="Xst")
        if half == 0:
            a("s_add_u32 s72, s72, 32768")


def rest(g):
    a = g.a
    attn_setup(g)
    relayout(g)
    g.stamp(5)
    attn(g)
    a.wait_tag("Ost")
    g.publish(PH_O)
    g.stamp(9)
    if g.stop("a"):
        return finish(g)
    w1_prefetch(g, 0, 8, True)
    oproj(g)
    a.wait_tag("Hst")
    g.publish(PH_H)
    g.stamp(13)
    if g.stop("o"):
        return finish(g)
    w1_prefetch(g, 8, 16, False)
    mix1(g)
    g.stamp(16)
    if g.stop("m1"):
        return finish(g)
    w2_prefetch(g)
    mix2(g)
    g.stamp(19)
    if g.stop("m2"):
        return finish(g)
    a(f"s_cmp_eq_u32 {sL}, 1\ns_cbranch_scc1 L_done")
    g.srd(4, P_WS, 2 << 20, WS_X2)
    g.srd(20, P_OUT, 2 << 20)
    a(f"s_mov_b32 {sL}, 1")
    a("s_waitcnt lgkmcnt(0)")
    a("s_branch L_layer")
    a.label("L_done", reset=False)
    a("s_waitcnt vmcnt(0)\ns_branch L_end")
    finish(g)


def finish(g):
    a = g.a
    for stub, back in g.stubs:
        a.label(stub, reset=False)
        a(f"s_nop 15\ns_nop 3\ns_branch {back}")
```

```python
import sys
sys.path.insert(0, "tools")
from asmfw import Asm

KNAME = "interleave_layers__sliding_block__mixer_token_mlp__prompt_kernel"

WS_EPOCH = 0x0
WS_FLAG = 0x1000
WS_ST = 0x80000
WS_KV = 0x100000
WS_OF = 0x900000
WS_H = 0xD00000
WS_U = 0x1100000
WS_X2 = 0x1500000
WS_W1P = 0x1700000
WS_W2P = 0x1D00000
WS_DIAG = 0x2400000
WS_SIZE = 0x4000000
UC = 43 * 4096
PH_KV, PH_O, PH_H, PH_U, PH_X, PH_P = range(6)

L_X = 0
L_RING = 65536
L_R = 147456
L_MISC = 156672
L_SP = L_MISC
L_CP = L_MISC + 1024
L_MR = L_MISC + 2560
LDS_SIZE = 163840

SRD_X, SRD_WQ, SRD_WO, SRD_WS = "s[4:7]", "s[8:11]", "s[12:15]", "s[16:19]"
SRD_DST, SRD_U, SRD_W2P, SRD_T = "s[20:23]", "s[24:27]", "s[28:31]", "s[32:35]"
P_X, P_WQ, P_WO, P_W1, P_B1, P_W2, P_B2, P_OUT, P_DBG, P_WS = 36, 38, 40, 44, 46, 48, 50, 52, 54, 56
sR, sCQ, sWV, sL = "s58", "s59", "s60", "s61"
sN, sNN, sNP = "s62", "s63", "s[62:63]"
sC1, sJ1, sM1 = "s64", "s65", "s66"
sP, sTB, sB = "s67", "s68", "s69"
sCNT = "s98"
POLL_LIMIT = 400000

LOG2E = 1.4426950408889634


def f32(x):
    import struct
    return "0x%08x" % struct.unpack("<I", struct.pack("<f", x))[0]


class Gen:
    def __init__(self, stop_after=None, diag=False):
        self.a = Asm()
        self.stop_after = stop_after
        self.diag = diag
        self.uid = 0
        self.stubs = []
        self.nstamp = 0

    def lab(self, base):
        self.uid += 1
        return f"L_{base}_{self.uid}"

    def srd(self, name, ptr, size, off=None):
        a = self.a
        if off is None:
            a(f"s_mov_b32 s{name}, s{ptr}\ns_mov_b32 s{name+1}, s{ptr+1}")
        else:
            a(f"s_add_u32 s{name}, s{ptr}, {off}\ns_addc_u32 s{name+1}, s{ptr+1}, 0")
        a(f"s_mov_b32 s{name+2}, {size}\ns_mov_b32 s{name+3}, 0x20000")

    def stamp(self, idx):
        if not self.diag:
            return
        a = self.a
        skip = self.lab("st")
        a(f"s_memtime s[92:93]\ns_waitcnt lgkmcnt(0)")
        a(f"s_cmp_eq_u32 {sWV}, 0\ns_cbranch_scc0 {skip}")
        with a.cond(skip):
            a(f"s_lshl_b32 s94, s2, 8\ns_lshl_b32 s95, {sL}, 7\ns_add_u32 s94, s94, s95\ns_add_u32 s94, s94, {WS_DIAG + idx*4}")
            a("v_mov_b32 v62, s92\nv_mov_b32 v63, s94\ns_mov_b64 exec, 1")
            a(f"buffer_store_dword v62, v63, {SRD_WS}, 0 offen")
            a("s_mov_b64 exec, -1")
        a.label(skip, reset=False)

    def flag_addr(self, dst, phase, wg):
        a = self.a
        a(f"s_lshl_b32 {dst}, {sL}, 8\ns_add_u32 {dst}, {dst}, {wg}\ns_lshl_b32 {dst}, {dst}, 7")
        a(f"s_add_u32 {dst}, {dst}, {WS_FLAG + phase*2*256*128}")

    def publish(self, phase, wg="s2"):
        a = self.a
        skip = self.lab("pub")
        a("s_barrier")
        a(f"s_cmp_eq_u32 {sWV}, 0\ns_cbranch_scc0 {skip}")
        with a.cond(skip):
            self.flag_addr("s70", phase, wg)
            a(f"v_mov_b32 v4, {sN}\nv_mov_b32 v5, {sNN}\nv_mov_b32 v6, s70\ns_mov_b64 exec, 1")
            a(f"buffer_store_dwordx2 v[4:5], v6, {SRD_WS}, 0 offen sc1")
            a("s_mov_b64 exec, -1")
        a.label(skip, reset=False)

    def poll(self, vaddr, mask):
        a = self.a
        top, ok = self.lab("poll"), self.lab("pok")
        a(f"s_mov_b64 exec, {mask}\ns_mov_b32 {sCNT}, 0")
        a(f"s_cbranch_execz {ok}")
        a.label(top, reset=False)
        with a.cond(top):
            a(f"buffer_load_dwordx2 v[4:5], {vaddr}, {SRD_WS}, 0 offen sc1")
            a("s_waitcnt vmcnt(0)")
            a(f"v_cmp_ne_u64 vcc, {sNP}, v[4:5]")
            a(f"s_cbranch_vccz {ok}")
            a(f"s_add_u32 {sCNT}, {sCNT}, 1\ns_cmp_lt_u32 {sCNT}, {POLL_LIMIT}\ns_cbranch_scc1 {top}")
            a("s_branch L_fail")
        a.label(ok, reset=False)
        a("s_mov_b64 exec, -1")

    def wg_of(self, dst, r, cq):
        a = self.a
        a(f"v_and_b32 {dst}, 3, {r}\nv_lshlrev_b32 {dst}, 3, {dst}\nv_add_u32 {dst}, {cq}, {dst}\nv_lshlrev_b32 {dst}, 3, {dst}")
        a(f"v_lshrrev_b32 v7, 2, {r}\nv_add_u32 {dst}, {dst}, v7")

    def vflag(self, dst, phase):
        a = self.a
        a(f"s_lshl_b32 s70, {sL}, 15\ns_add_u32 s70, s70, {WS_FLAG + phase*2*256*128}")
        a(f"v_lshlrev_b32 {dst}, 7, {dst}\nv_add_u32 {dst}, s70, {dst}")

    def stop(self, name):
        if self.stop_after == name:
            self.a("s_waitcnt vmcnt(0) lgkmcnt(0)\ns_branch L_end")
            self.a.assume_clean()
            return True
        return False

    def prologue(self):
        a = self.a
        a("s_cmp_ge_u32 s2, 256\ns_cbranch_scc1 L_end")
        a("s_load_dwordx16 s[36:51], s[0:1], 0\ns_load_dwordx4 s[52:55], s[0:1], 64\ns_load_dwordx2 s[56:57], s[0:1], 80")
        a("v_and_b32 v1, 63, v0\nv_lshlrev_b32 v2, 4, v1\nv_lshrrev_b32 v3, 6, v0")
        a(f"v_readfirstlane_b32 {sWV}, v3")
        a(f"s_and_b32 s70, s2, 7\ns_lshr_b32 s71, s2, 3")
        a(f"s_lshr_b32 s72, s71, 3\ns_lshl_b32 {sR}, s70, 2\ns_add_u32 {sR}, {sR}, s72\ns_and_b32 {sCQ}, s71, 7")
        a(f"s_and_b32 s72, s70, 1\ns_lshl_b32 s72, s72, 2\ns_and_b32 s73, s71, 3\ns_add_u32 {sC1}, s72, s73")
        a("s_lshr_b32 s72, s70, 1\ns_lshr_b32 s73, s71, 2")
        a("s_mul_i32 s74, s72, 7\ns_min_u32 s75, s72, 1\ns_add_u32 s74, s74, s75")
        a(f"s_add_u32 {sJ1}, s74, s73")
        a("s_cmp_eq_u32 s72, 0\ns_cselect_b32 s75, 8, 7")
        a(f"s_cmp_lt_u32 s73, s75\ns_cselect_b32 {sM1}, 1, 0")
        a(f"s_and_b32 {sP}, {sWV}, 1\ns_lshr_b32 {sTB}, {sWV}, 1\ns_xor_b32 {sB}, {sP}, {sTB}")
        a(f"s_mov_b32 {sL}, 0")
        a("s_waitcnt lgkmcnt(0)")
        self.srd(4, P_X, 2 << 20)
        self.srd(8, P_WQ, 512 * 1536 * 2)
        self.srd(12, P_WO, 512 * 512 * 2)
        self.srd(16, P_WS, WS_SIZE)
        a(f"s_mul_i32 s70, {sR}, {UC}\ns_add_u32 s70, s70, {WS_W2P}")
        self.srd(28, P_WS, UC, "s70")
        self.srd(20, P_WS, 2 << 20, WS_X2)
        a(f"v_mov_b32 v3, {WS_EPOCH}")
        a(f"buffer_load_dword v250, v3, {SRD_WS}, 0 offen sc1")
        a("v_lshrrev_b32 v3, 3, v0\nv_and_b32 v4, 7, v0")
        a(f"s_lshl_b32 s70, {sR}, 16\ns_lshl_b32 s71, {sCQ}, 7\ns_add_u32 s70, s70, s71")
        a("v_lshlrev_b32 v5, 10, v3\nv_lshl_add_u32 v5, v4, 4, v5")
        a(f"buffer_load_dwordx4 v[240:243], v5, {SRD_X}, s70 offen")
        a("s_add_u32 s70, s70, 32768")
        a(f"buffer_load_dwordx4 v[244:247], v5, {SRD_X}, s70 offen")
        a("v_mul_u32_u24 v6, 144, v3\nv_lshl_add_u32 v6, v4, 4, v6")
        a(f"v_add_u32 v6, {L_R}, v6")
        a(f"v_readfirstlane_b32 {sN}, v250")
        a(f"s_add_u32 {sN}, {sN}, 1\ns_not_b32 {sNN}, {sN}")
        a("ds_write_b128 v6, v[240:243]\nds_write_b128 v6, v[244:247] offset:4608")

    def w_dma(self, s):
        a = self.a
        slot = L_RING + (s % 5) * 16384
        for n in range(4):
            if s < 8:
                part = n >> 1
                krow = 64 * s + (n & 1) * 32
                col = 1024 * (1 + part)
                lds = slot + part * 8192 + (n & 1) * 4096
            else:
                krow = 128 * (s - 8) + 32 * n
                col = 0
                lds = slot + n * 4096
            a(f"s_add_u32 s72, s70, {krow*3072 + col}\ns_add_u32 m0, s71, {lds}")
            a(f"buffer_load_dwordx4 v12, {SRD_WQ}, s72 offen lds", tag=f"W{s}")

    def w_dma_setup(self):
        a = self.a
        a(f"s_mul_i32 s70, {sWV}, {8*3072}\ns_lshl_b32 s72, {sCQ}, 7\ns_add_u32 s70, s70, s72\ns_lshl_b32 s71, {sWV}, 10")

    def q_phase(self):
        a = self.a
        a.c("======== QKV phase")
        a("v_lshrrev_b32 v3, 3, v1\nv_mul_u32_u24 v12, 3072, v3\nv_bfe_u32 v4, v1, 4, 1\nv_lshlrev_b32 v4, 2, v4")
        a("v_and_b32 v5, 7, v1\nv_xor_b32 v5, v5, v4\nv_lshl_add_u32 v12, v5, 4, v12")
        for e in range(2):
            a(f"s_lshl_b32 s72, {sWV}, 4\ns_add_u32 s72, s72, {8*e}\nv_add_u32 v6, s72, v3")
            a(f"v_bfe_u32 v7, v6, 1, 3\nv_and_b32 v5, 7, v1\nv_xor_b32 v5, v5, v7\nv_lshlrev_b32 v6, 10, v6\nv_lshl_add_u32 v{10+e}, v5, 4, v6")
        self.w_dma_setup()
        for s in range(5):
            self.w_dma(s)
        self.stamp(0)
        skip = self.lab("q_l0")
        a(f"s_cmp_eq_u32 {sL}, 0\ns_cbranch_scc1 {skip}")
        with a.cond(skip):
            a("s_waitcnt vmcnt(20)")
            a(f"s_mov_b32 {sL}, 0")
            self.publish(PH_X)
            a(f"v_mov_b32 v8, {sR}")
            a(f"v_and_b32 v9, 3, v8\nv_lshlrev_b32 v9, 3, v9\nv_add_u32 v9, v1, v9\nv_lshlrev_b32 v9, 3, v9")
            a(f"v_lshrrev_b32 v7, 2, v8\nv_add_u32 v9, v9, v7")
            self.vflag("v9", PH_X)
            self.poll("v9", "0xff")
            a(f"s_mov_b32 {sL}, 1")
        a.label(skip, reset=False)
        self.stamp(1)
        for kc in range(8):
            for e in range(2):
                a(f"s_lshl_b32 s72, {sR}, 16\ns_add_u32 s72, s72, {kc*128}")
                a(f"s_lshl_b32 s73, {sWV}, 11\ns_add_u32 m0, s73, {L_X + kc*8192 + e*1024}")
                a(f"buffer_load_dwordx4 v{10+e}, {SRD_X}, s72 offen sc1 lds", tag=f"X{kc}")
        a(f"v_and_b32 v3, 31, v1\ns_lshl_b32 s72, {sTB}, 5\nv_add_u32 v3, s72, v3\nv_bfe_u32 v4, v3, 1, 3\nv_lshrrev_b32 v5, 5, v1")
        for k in range(4):
            a(f"s_xor_b32 s72, {sB}, {k}\ns_lshl_b32 s72, s72, 1\nv_add_u32 v6, s72, v5\nv_xor_b32 v6, v6, v4")
            a(f"v_lshlrev_b32 v6, 4, v6\nv_lshl_add_u32 v{13+k}, v3, 7, v6")
        a("v_and_b32 v3, 15, v1\nv_lshrrev_b32 v4, 2, v3\nv_lshrrev_b32 v5, 5, v1\nv_lshl_add_u32 v4, v5, 3, v4")
        a(f"v_bfe_u32 v5, v1, 4, 1\nv_lshlrev_b32 v5, 1, v5\nv_bfe_u32 v6, v1, 1, 1\nv_add_u32 v5, v5, v6")
        a(f"s_lshl_b32 s72, {sP}, 2\nv_add_u32 v5, s72, v5\nv_bfe_u32 v6, v1, 3, 1\nv_lshlrev_b32 v6, 2, v6\nv_xor_b32 v5, v5, v6")
        a("v_lshlrev_b32 v5, 4, v5\nv_lshl_add_u32 v5, v4, 7, v5\nv_and_b32 v6, 1, v1\nv_lshl_add_u32 v5, v6, 3, v5")
        for e in range(2):
            a(f"s_xor_b32 s72, {sB}, {e}\ns_lshl_b32 s72, s72, 11\ns_add_u32 s72, s72, {L_RING}")
            a(f"v_add_u32 v{17+e}, s72, v5\nv_add_u32 v{19+e}, 49152, v{17+e}")
        a("v_mov_b32 v21, 0\nv_mov_b32 v22, 0\nv_mov_b32 v23, 0\nv_mov_b32 v24, 0\nv_mov_b32 v25, 0")
        a("s_mov_b32 s74, 0x3f803f80")
        XF, WF, AK, AV, AQ = 64, 32, 192, 208, 224

        def waddr(s, e):
            slot = s % 5
            return (f"v{17+e}", slot * 16384) if slot < 3 else (f"v{19+e}", (slot - 3) * 16384)

        def reads_kv(n):
            s, k = n >> 2, n & 3
            a(f"ds_read_b128 v[{XF+4*n}:{XF+4*n+3}], v{13+k} offset:{L_X + s*8192}")
            reg, off = waddr(s, k & 1)
            wf = WF + (n % 3) * 8
            for part in range(2):
                for rd in range(2):
                    a(f"ds_read_b64_tr_b16 v[{wf+4*part+2*rd}:{wf+4*part+2*rd+1}], {reg} offset:{off + part*8192 + (k >> 1)*4096 + rd*512}")

        def stage_sync(s):
            a("s_waitcnt lgkmcnt(0)")
            a.wait_tag(f"W{s}", f"X{s}") if s < 8 else a.wait_tag(f"W{s}")
            a("s_barrier")
            if s >= 1 and s + 4 < 12:
                self.w_dma(s + 4)

        self.w_dma_setup()
        stage_sync(0)
        reads_kv(0); reads_kv(1)
        for n in range(32):
            if n + 2 < 32:
                if (n + 2) % 4 == 0:
                    stage_sync((n + 2) >> 2)
                reads_kv(n + 2)
            wf = WF + (n % 3) * 8
            x = f"v[{XF+4*n}:{XF+4*n+3}]"
            ck = "0" if n == 0 else f"v[{AK}:{AK+15}]"
            cv = "0" if n == 0 else f"v[{AV}:{AV+15}]"
            a(f"v_mfma_f32_32x32x16_bf16 v[{AK}:{AK+15}], v[{wf}:{wf+3}], {x}, {ck}")
            if n % 2 == 0:
                for i in range(4):
                    a(f"v_dot2c_f32_bf16 v22, s74, v{XF+4*n+i}\nv_dot2c_f32_bf16 v23, v{XF+4*n+i}, v{XF+4*n+i}")
            a(f"v_mfma_f32_32x32x16_bf16 v[{AV}:{AV+15}], {x}, v[{wf+4}:{wf+7}], {cv}")
            if n % 2 == 0:
                for i in range(4):
                    a(f"v_dot2c_f32_bf16 v24, s74, v{wf+i}\nv_dot2c_f32_bf16 v25, s74, v{wf+4+i}")
        self.stamp(2)
        for i, rg in enumerate((22, 23, 24, 25)):
            a(f"v_mov_b32 v{26+i}, v{rg}")
        for i, rg in enumerate((22, 23, 24, 25)):
            a(f"v_permlane32_swap_b32 v{rg}, v{26+i}")
        for i, rg in enumerate((22, 23, 24, 25)):
            a(f"v_add_f32 v{rg}, v{rg}, v{26+i}")
        a("v_and_b32 v3, 31, v1")
        a(f"s_lshl_b32 s72, {sTB}, 1\ns_add_u32 s72, s72, {sP}\ns_lshl_b32 s72, s72, 8\ns_add_u32 s72, s72, {L_SP}")
        a("v_lshl_add_u32 v4, v3, 3, s72\nds_write_b64 v4, v[22:23]")
        a(f"s_lshl_b32 s72, {sP}, 1\ns_add_u32 s72, s72, {sTB}\ns_mul_i32 s72, s72, 384\ns_add_u32 s72, s72, {L_CP}")
        a("v_lshl_add_u32 v9, v3, 2, s72\nds_write_b32 v9, v24\nds_write_b32 v9, v25 offset:128")
        a("s_waitcnt lgkmcnt(0)\ns_barrier")
        self.wo_dma_pending = True
        a(f"s_lshl_b32 s72, {sTB}, 9\ns_add_u32 s72, s72, {L_SP}\nv_lshl_add_u32 v4, v3, 3, s72")
        a("ds_read_b64 v[26:27], v4\nds_read_b64 v[28:29], v4 offset:256")
        a(f"s_mul_i32 s72, {sP}, 768\ns_add_u32 s72, s72, {L_CP}")
        a("v_lshrrev_b32 v5, 5, v1\nv_lshl_add_u32 v56, v5, 4, s72")
        for q in range(4):
            a(f"ds_read_b128 v[{240+4*q}:{243+4*q}], v56 offset:{32*q}")
        for q in range(4):
            a(f"ds_read_b128 v[{32+4*q}:{35+4*q}], v56 offset:{384 + 32*q}")
        a("v_lshl_add_u32 v57, v3, 2, s72\nds_read_b32 v58, v57 offset:128\nds_read_b32 v59, v57 offset:512")
        a("v_add_f32 v26, v26, v28\nv_add_f32 v27, v27, v29")
        a(f"v_mul_f32 v26, {f32(1/512)}, v26\nv_mul_f32 v27, {f32(1/512)}, v27")
        a(f"v_fma_f32 v27, -v26, v26, v27\nv_add_f32 v27, {f32(1e-5)}, v27\nv_rsq_f32 v27, v27")
        a(f"s_lshl_b32 s72, {sWV}, 8\ns_add_u32 s72, s72, {L_MR}\nv_lshl_add_u32 v4, v3, 2, s72")
        a("ds_write_b32 v4, v26\nds_write_b32 v4, v27 offset:128")
        for i in range(16):
            a(f"v_add_f32 v{240+i}, v{240+i}, v{32+i}")
        a("v_add_f32 v58, v58, v59")
        a(f"v_lshl_add_u32 v4, v5, 4, s72")
        a("s_waitcnt lgkmcnt(0)")
        for q in range(4):
            a(f"ds_read_b128 v[{32+4*q}:{35+4*q}], v4 offset:{32*q}")
        for q in range(4):
            a(f"ds_read_b128 v[{48+4*q}:{51+4*q}], v4 offset:{128 + 32*q}") if q < 2 else None
        for i in range(16):
            a(f"v_fma_f32 v{AK+i}, -v26, v{240+i}, v{AK+i}")
        for i in range(16):
            a(f"v_mul_f32 v{AK+i}, v27, v{AK+i}")
        for k in range(8):
            a(f"v_cvt_pk_bf16_f32 v{AK+k}, v{AK+2*k}, v{AK+2*k+1}")
        a(f"s_lshl_b32 s75, {sCQ}, 1\ns_add_u32 s75, s75, {sP}\ns_lshl_b32 s75, s75, 6\ns_lshl_b32 s76, {sR}, 1\ns_add_u32 s75, s75, s76")
        a(f"s_add_u32 s75, s75, {sTB}\ns_lshl_b32 s75, s75, 12\ns_lshl_b32 s76, {sL}, 22\ns_add_u32 s75, s75, s76\ns_add_u32 s75, s75, {WS_KV}")
        a(f"buffer_store_dwordx4 v[{AK}:{AK+3}], v2, {SRD_WS}, s75 offen sc1", tag="KVst")
        a(f"buffer_store_dwordx4 v[{AK+4}:{AK+7}], v2, {SRD_WS}, s75 offen offset:2048 sc1", tag="KVst")
        for q in range(2, 4):
            a(f"ds_read_b128 v[{240+4*q}:{243+4*q}], v4 offset:{128 + 32*q}")
        rs = lambda i: (48 + i) if i < 8 else (240 + i)
        for i in range(16):
            a(f"v_fma_f32 v{AV+i}, -v{32+i}, v58, v{AV+i}")
        for i in range(16):
            a(f"v_mul_f32 v{AV+i}, v{rs(i)}, v{AV+i}")
        for k in range(8):
            a(f"v_cvt_pk_bf16_f32 v{AV+k}, v{AV+2*k}, v{AV+2*k+1}")
        a("v_bfe_u32 v3, v1, 4, 1\nv_lshlrev_b32 v3, 11, v3\nv_lshrrev_b32 v5, 5, v1\nv_lshl_add_u32 v3, v5, 8, v3")
        a("v_and_b32 v5, 15, v1\nv_lshl_add_u32 v3, v5, 4, v3")
        a(f"buffer_store_dwordx4 v[{AV}:{AV+3}], v3, {SRD_WS}, s75 offen offset:1024 sc1", tag="KVst")
        a(f"buffer_store_dwordx4 v[{AV+4}:{AV+7}], v3, {SRD_WS}, s75 offen offset:1536 sc1", tag="KVst")
        self.stamp(3)
        self.wo_dma()
        def reads_q(n):
            s, k = 8 + (n >> 3), n & 7
            reg, off = waddr(s, k & 1)
            wf = WF + (n % 3) * 8
            for rd in range(2):
                a(f"ds_read_b64_tr_b16 v[{wf+2*rd}:{wf+2*rd+1}], {reg} offset:{off + (k >> 1)*4096 + rd*512}")
        stage_sync(8)
        reads_q(0); reads_q(1)
        for n in range(32):
            if n + 2 < 32:
                if (n + 2) % 8 == 0:
                    stage_sync(8 + ((n + 2) >> 3))
                reads_q(n + 2)
            wf = WF + (n % 3) * 8
            cq = "0" if n == 0 else f"v[{AQ}:{AQ+15}]"
            a(f"v_mfma_f32_32x32x16_bf16 v[{AQ}:{AQ+15}], v[{wf}:{wf+3}], v[{XF+4*n}:{XF+4*n+3}], {cq}")
            if n % 2 == 0:
                for i in range(4):
                    a(f"v_dot2c_f32_bf16 v21, s74, v{wf+i}")
        a("v_mov_b32 v28, v21\nv_permlane32_swap_b32 v21, v28\nv_add_f32 v21, v21, v28")
        a("ds_write_b32 v9, v21 offset:256")
        a("s_waitcnt lgkmcnt(0)")
        a.wait_tag("KVst")
        self.publish(PH_KV)
        self.stamp(4)
        for q in range(4):
            a(f"ds_read_b128 v[{240+4*q}:{243+4*q}], v56 offset:{256 + 32*q}")
        for q in range(4):
            a(f"ds_read_b128 v[{32+4*q}:{35+4*q}], v56 offset:{384 + 256 + 32*q}")
        a(f"v_mul_f32 v27, {f32(0.25*LOG2E)}, v27")
        for i in range(16):
            a(f"v_add_f32 v{240+i}, v{240+i}, v{32+i}")
        for i in range(16):
            a(f"v_fma_f32 v{AQ+i}, -v26, v{240+i}, v{AQ+i}")
        for i in range(16):
            a(f"v_mul_f32 v{AQ+i}, v27, v{AQ+i}")
        for k in range(8):
            a(f"v_cvt_pk_bf16_f32 v{AQ+k}, v{AQ+2*k}, v{AQ+2*k+1}")

    def wo_dma(self):
        a = self.a
        a("v_lshrrev_b32 v3, 3, v1\nv_lshlrev_b32 v3, 10, v3\nv_bfe_u32 v4, v1, 1, 2\nv_bfe_u32 v5, v1, 4, 2\nv_xor_b32 v4, v4, v5")
        a("v_lshlrev_b32 v4, 1, v4\nv_and_b32 v5, 1, v1\nv_add_u32 v4, v4, v5\nv_lshl_add_u32 v8, v4, 4, v3")
        a(f"s_lshl_b32 s72, {sWV}, 17\ns_lshl_b32 s73, {sCQ}, 7\ns_add_u32 s72, s72, s73\ns_lshl_b32 s73, {sWV}, 14")
        for n in range(16):
            a(f"s_add_u32 m0, s73, {L_X + n*1024}")
            a(f"buffer_load_dwordx4 v8, {SRD_WO}, s72 offen lds", tag="WO")
            if n < 15:
                a("s_add_u32 s72, s72, 8192")

    def build(self):
        a = self.a
        self.prologue()
        a("s_waitcnt lgkmcnt(0)")
        a.label("L_layer")
        done = False
        self.q_phase()
        done = self.stop("q")
        if not done:
            from gen2 import rest
            rest(self)
        a.label("L_fail", reset=False)
        self.srd(32, P_DBG, 256)
        a("v_mov_b32 v4, 0xdead\nv_mov_b32 v5, 0\ns_mov_b64 exec, 1")
        a(f"buffer_store_dword v4, v5, {SRD_T}, 0 offen")
        a.label("L_end", reset=False)
        a("s_endpgm")
        body = a.finalize()
        head = open("interleave_layers__sliding_block__mixer_token_mlp__prompt.s.ref").read().split("\n")
        hdr = [l for l in head if l.startswith(";") and "@launch" not in l and "Override launch" not in l and "grid=ceil" not in l]
        hdr = hdr[:hdr.index(next(l for l in hdr if "d_ws" in l)) + 1]
        out = "\n".join(hdr) + f"\n; @launch grid=(256,1,1) block=(256,1,1) lds={LDS_SIZE}\n"
        out += '.amdgcn_target "amdgcn-amd-amdhsa--gfx950"\n.text\n'
        out += f".globl {KNAME}\n.p2align 8\n.type {KNAME},@function\n{KNAME}:\n"
        out += body
        out += f'''.section .rodata,"a"
.p2align 6
.amdhsa_kernel {KNAME}
  .amdhsa_next_free_vgpr 512
  .amdhsa_next_free_sgpr 102
  .amdhsa_accum_offset 256
  .amdhsa_group_segment_fixed_size 0
  .amdhsa_kernarg_size 88
  .amdhsa_user_sgpr_count 2
  .amdhsa_user_sgpr_kernarg_segment_ptr 1
  .amdhsa_system_sgpr_workgroup_id_x 1
.end_amdhsa_kernel
'''
        return out


if __name__ == "__main__":
    import argparse
    ap = argparse.ArgumentParser()
    ap.add_argument("--stop", default=None)
    ap.add_argument("--diag", action="store_true")
    ap.add_argument("-o", default="interleave_layers__sliding_block__mixer_token_mlp__prompt.s")
    args = ap.parse_args()
    g = Gen(stop_after=args.stop, diag=args.diag)
    src = g.build()
    open(args.o, "w").write(src)
    print("written", args.o, g.a.stats, "bytes", len(src))
```

```python
import re

REG_RE = re.compile(r"^(-|\|)?(abs\()?([vas])(\d+)\)?\|?$")
RANGE_RE = re.compile(r"^(-)?([vas])\[(\d+):(\d+)\]$")


def parse_regs(tok):
    tok = tok.strip()
    m = RANGE_RE.match(tok)
    if m:
        return [(m.group(2), i) for i in range(int(m.group(3)), int(m.group(4)) + 1)]
    m = REG_RE.match(tok)
    if m:
        return [(m.group(3), int(m.group(4)))]
    if tok == "vcc":
        return [("s", "vcc_lo"), ("s", "vcc_hi")]
    if tok in ("vcc_lo", "vcc_hi"):
        return [("s", tok)]
    if tok == "exec":
        return [("s", "exec_lo"), ("s", "exec_hi")]
    if tok in ("exec_lo", "exec_hi"):
        return [("s", tok)]
    if tok == "m0":
        return [("s", "m0")]
    return []


def split_ops(rest):
    toks, depth, cur = [], 0, ""
    for ch in rest:
        if ch in "[(":
            depth += 1
        elif ch in "])":
            depth -= 1
        if ch == "," and depth == 0:
            toks.append(cur.strip()); cur = ""
        else:
            cur += ch
    toks.append(cur.strip())
    return toks


TRANS = ("v_exp_f32", "v_log_f32", "v_rcp_f32", "v_rsq_f32", "v_sqrt_f32", "v_sin_f32", "v_cos_f32",
         "v_rcp_iflag_f32")
RMW = ("v_fmac_f32", "v_dot2c_f32_bf16", "v_pk_fmac_f16", "v_fmac_f16")


class Ins:
    __slots__ = ("text", "op", "ops", "mods", "kind", "rd", "wr", "passes", "srcc", "srcab", "cnt", "lds_dma",
                 "wide_store", "dpp", "comment")

    def __init__(self, text):
        self.text = text
        body = text.split(";")[0].strip()
        parts = body.split(None, 1)
        self.op = parts[0]
        rest = parts[1] if len(parts) > 1 else ""
        toks = split_ops(rest) if rest else []
        self.mods = []
        if toks:
            last = toks[-1].split()
            toks[-1] = last[0] if last else ""
            self.mods = last[1:]
        self.ops = toks
        self.rd, self.wr = set(), set()
        self.kind = "other"
        self.passes = 0
        self.srcc, self.srcab = set(), set()
        self.cnt = None
        self.lds_dma = False
        self.wide_store = False
        self.dpp = False
        self._classify()

    def R(self, i):
        return set(parse_regs(self.ops[i])) if i < len(self.ops) else set()

    def _classify(self):
        op, n = self.op, len(self.ops)
        op = re.sub(r"_(e32|e64|dpp|sdwa)$", "", op)
        if self.op.endswith("_dpp") or any(m.startswith(("quad_perm", "row_", "wave_")) for m in self.mods):
            self.dpp = True
        if op.startswith("v_mfma"):
            self.kind = "mfma"
            self.passes = 8 if "32x32" in op else 4
            self.wr = self.R(0)
            self.srcab = self.R(1) | self.R(2)
            self.srcc = self.R(3)
            self.rd = self.srcab | self.srcc
        elif op.startswith("v_"):
            self.kind = "valu"
            if op.startswith("v_cmp"):
                self.wr = self.R(0)
                for i in range(1, n):
                    self.rd |= self.R(i)
            elif op.startswith("v_permlane") and "swap" in op:
                self.wr = self.R(0) | self.R(1)
                self.rd = set(self.wr)
            elif op in ("v_add_co_u32", "v_sub_co_u32", "v_subrev_co_u32"):
                self.wr = self.R(0) | self.R(1)
                for i in range(2, n):
                    self.rd |= self.R(i)
            elif op in ("v_addc_co_u32", "v_subb_co_u32"):
                self.wr = self.R(0) | self.R(1)
                for i in range(2, n):
                    self.rd |= self.R(i)
            else:
                self.wr = self.R(0)
                for i in range(1, n):
                    self.rd |= self.R(i)
                if op in RMW or op == "v_writelane_b32":
                    self.rd |= self.R(0)
                if op == "v_cndmask_b32" and n == 3:
                    self.rd |= set(parse_regs("vcc"))
            if self.dpp:
                self.rd |= self.R(0)
        elif op.startswith("ds_"):
            self.kind = "ds"
            self.cnt = "lgkm"
            if op.startswith(("ds_read", "ds_bpermute", "ds_permute", "ds_swizzle")):
                self.wr = self.R(0)
                for i in range(1, n):
                    self.rd |= self.R(i)
            else:
                for i in range(n):
                    self.rd |= self.R(i)
        elif op.startswith("buffer_"):
            self.kind = "vmem"
            self.cnt = "vm"
            if "lds" in self.mods:
                self.lds_dma = True
                for i in range(n):
                    self.rd |= self.R(i)
                self.rd.add(("s", "m0"))
            elif op.startswith("buffer_load"):
                self.wr = self.R(0)
                for i in range(1, n):
                    self.rd |= self.R(i)
            else:
                for i in range(n):
                    self.rd |= self.R(i)
                if op.startswith("buffer_atomic") and "sc0" in self.mods:
                    self.wr = self.R(0)
                self.wide_store = op.endswith(("x3", "x4"))
        elif op.startswith("s_"):
            self.kind = "salu"
            if op.startswith(("s_load", "s_memtime", "s_memrealtime")):
                self.kind = "smem"
                self.cnt = "smem"
                self.wr = self.R(0)
                for i in range(1, n):
                    self.rd |= self.R(i)
            elif op.startswith(("s_cmp", "s_bitcmp")):
                for i in range(n):
                    self.rd |= self.R(i)
            elif op.startswith(("s_cbranch", "s_branch", "s_waitcnt", "s_barrier", "s_nop", "s_endpgm", "s_sleep",
                                "s_setprio")):
                self.kind = "ctl"
                if op == "s_cbranch_vccz" or op == "s_cbranch_vccnz":
                    self.rd = set(parse_regs("vcc"))
                if op.startswith("s_cbranch_exec"):
                    self.rd = set(parse_regs("exec"))
            elif "saveexec" in op:
                self.wr = self.R(0) | set(parse_regs("exec"))
                self.rd = self.R(1) | set(parse_regs("exec"))
            else:
                self.wr = self.R(0)
                for i in range(1, n):
                    self.rd |= self.R(i)
                if op in ("s_addk_i32", "s_mulk_i32"):
                    self.rd |= self.R(0)
        else:
            raise ValueError("unknown instruction: " + self.text)


def vreg(s):
    return {r for r in s if r[0] in "va"}


def sreg(s):
    return {r for r in s if r[0] == "s"}


class Asm:
    def __init__(self):
        self.items = []
        self.ctx = ()

    def __call__(self, text, tag=None):
        for line in text.split("\n"):
            line = line.strip()
            if not line:
                continue
            if line.startswith(";"):
                self.items.append(("c", line))
            else:
                self.items.append(("i", line, tag, self.ctx))

    def cond(self, name):
        outer = self

        class _C:
            def __enter__(s_):
                s_.old = outer.ctx
                outer.ctx = outer.ctx + (name,)
                outer.items.append(("cin", name))

            def __exit__(s_, *e):
                outer.ctx = s_.old
                outer.items.append(("cout", name))
        return _C()

    def uncond(self, text, tag=None):
        old, self.ctx = self.ctx, ()
        self(text, tag)
        self.ctx = old

    def wait_tag(self, *tags):
        self.items.append(("w", tags, self.ctx))

    def c(self, text):
        self.items.append(("c", "; " + text))

    def label(self, name, reset=True):
        self.items.append(("l", name, reset))

    def raw(self, text):
        self.items.append(("raw", text))

    def fork(self):
        self.items.append(("fork",))

    def alt(self):
        self.items.append(("alt",))

    def endfork(self):
        self.items.append(("endfork",))

    def assume_clean(self):
        self.items.append(("reset",))

    def finalize(self, check_only=False):
        out = []
        hist = []
        pos = 0
        vm, lg = [], []
        smem = set()
        nnop = nwait = 0
        forks = []
        conds = []

        def emit(text):
            out.append("  " + text)

        def last_gap(pred):
            for (p, ins) in reversed(hist):
                if pos - p > 24:
                    break
                if pred(ins):
                    return pos - p - 1
            return None

        def trim(lst, nkeep, ctx):
            if nkeep == 0:
                return []
            seen = 0
            for i in range(len(lst) - 1, -1, -1):
                if set(lst[i][2]) <= set(ctx):
                    seen += 1
                    if seen > nkeep:
                        return lst[i + 1:]
            return lst

        def younger(lst, i, ctx):
            return sum(1 for e in lst[i + 1:] if set(e[2]) <= set(ctx))

        for it in self.items:
            if it[0] == "w":
                idx = [i for i, e in enumerate(vm) if e[1] in it[1]]
                if idx:
                    i = idx[-1]
                    n = min(younger(vm, i, it[2]), 63)
                    t = f"s_waitcnt vmcnt({n})"
                    emit(t); hist.append((pos, Ins(t))); pos += 1
                    vm = vm[i + 1:]
                continue
            if it[0] == "cin":
                conds.append((list(vm), list(lg), set(smem))); continue
            if it[0] == "cout":
                v0, l0, s0 = conds.pop()
                ids = {id(e) for e in vm}
                vm = [e for e in v0 if id(e) not in ids and it[1] not in e[2]] + vm
                ids = {id(e) for e in lg}
                lg = [e for e in l0 if id(e) not in ids and it[1] not in e[2]] + lg
                smem |= s0
                continue
            if it[0] == "fork":
                forks.append((list(vm), list(lg), set(smem), list(hist))); continue
            if it[0] == "alt":
                s0 = forks.pop()
                forks.append((list(vm), list(lg), set(smem), list(hist)))
                vm, lg, smem = list(s0[0]), list(s0[1]), set(s0[2])
                continue
            if it[0] == "endfork":
                sa = forks.pop()
                vm, lg, smem = list(sa[0]), list(sa[1]) if len(sa[1]) >= len(lg) else lg, set(sa[2]) | smem
                continue
            if it[0] == "c":
                out.append(it[1]); continue
            if it[0] == "raw":
                out.append(it[1]); continue
            if it[0] == "reset":
                vm, lg, smem = [], [], set(); continue
            if it[0] == "l":
                out.append(it[1] + ":")
                if it[2]:
                    pend = [e[0] for e in vm if e[0]] + [e[0] for e in lg if e[0]]
                    if pend or smem:
                        raise RuntimeError(f"label {it[1]}: register loads still outstanding: {pend} {smem}")
                    vm = []
                    lg = []
                continue
            ins = Ins(it[1])
            op = ins.op
            ctx = it[3]
            if op == "s_waitcnt":
                t = ins.text
                m = re.search(r"vmcnt\((\d+)\)", t)
                if m:
                    vm = trim(vm, int(m.group(1)), ctx)
                m = re.search(r"lgkmcnt\((\d+)\)", t)
                if m:
                    nkeep = int(m.group(1))
                    if nkeep == 0:
                        lg = []; smem = set()
                    elif not smem:
                        lg = trim(lg, nkeep, ctx)
                emit(t); hist.append((pos, ins)); pos += 1
                continue
            touched = ins.rd | ins.wr
            iv = [i for i, e in enumerate(vm) if e[0] & touched]
            il = [i for i, e in enumerate(lg) if e[0] & touched]
            w = []
            if iv:
                n = min(younger(vm, iv[-1], ctx), 63)
                w.append(f"vmcnt({n})")
                vm = vm[iv[-1] + 1:]
            if (smem & touched) or (il and smem):
                w.append("lgkmcnt(0)")
                lg = []; smem = set()
            elif il:
                n = min(younger(lg, il[-1], ctx), 15)
                w.append(f"lgkmcnt({n})")
                lg = lg[il[-1] + 1:]
            if w:
                t = "s_waitcnt " + " ".join(w)
                emit(t); hist.append((pos, Ins(t))); pos += 1; nwait += 1
            need = 0

            def req(n, pred):
                nonlocal need
                g = last_gap(pred)
                if g is not None and g < n:
                    need = max(need, n - g)

            rv, wv = vreg(ins.rd), vreg(ins.wr)
            rs = sreg(ins.rd)
            if ins.kind == "mfma":
                req(2, lambda p: p.kind == "valu" and vreg(p.wr) & rv)
                req(8, lambda p: p.kind == "mfma" and p.passes == 4 and p.wr & ins.srcab)
                req(12, lambda p: p.kind == "mfma" and p.passes == 8 and p.wr & ins.srcab)
                for ps, n in ((4, 6), (8, 10)):
                    req(n, lambda p, ps=ps: p.kind == "mfma" and p.passes == ps and (p.wr & ins.srcc)
                        and not (p.wr == ins.srcc and p.passes == ins.passes))
                for ps, n in ((4, 6), (8, 10)):
                    req(n, lambda p, ps=ps: p.kind == "mfma" and p.passes == ps and (p.wr & ins.wr)
                        and not (p.wr == ins.wr and p.wr == ins.srcc and p.passes == ins.passes))
            if ins.kind in ("valu", "ds", "vmem"):
                tv = rv | wv
                req(8, lambda p: p.kind == "mfma" and p.passes == 4 and p.wr & tv)
                req(12, lambda p: p.kind == "mfma" and p.passes == 8 and p.wr & tv)
            if ins.kind == "valu":
                req(3, lambda p: p.kind == "mfma" and p.passes == 4 and p.srcc & wv)
                req(7, lambda p: p.kind == "mfma" and p.passes == 8 and p.srcc & wv)
                base = re.sub(r"_(e32|e64)$", "", op)
                if base not in TRANS:
                    req(1, lambda p: p.kind == "valu" and re.sub(r"_(e32|e64)$", "", p.op) in TRANS and p.wr & (rv | wv))
                if "permlane" in op:
                    req(2, lambda p: p.kind == "valu" and vreg(p.wr) & rv)
                if op.startswith(("v_readfirstlane", "v_readlane")):
                    req(1, lambda p: p.kind == "valu" and vreg(p.wr) & rv)
                if op.startswith(("v_readlane", "v_writelane")):
                    req(4, lambda p: p.kind == "valu" and sreg(p.wr) & rs)
                req(2, lambda p: p.kind == "valu" and sreg(p.wr) & rs)
                if ins.dpp:
                    req(2, lambda p: p.kind == "valu" and vreg(p.wr) & rv)
                req(2, lambda p: p.kind == "vmem" and p.wide_store and vreg(p.R(0)) & wv)
            if ins.kind in ("ds", "vmem") and wv:
                req(1, lambda p: p.kind == "vmem" and p.wide_store and vreg(p.R(0)) & wv)
            if ins.kind == "vmem":
                req(5, lambda p: p.kind == "valu" and sreg(p.wr) & rs)
                if ins.lds_dma:
                    req(1, lambda p: p.kind == "salu" and ("s", "m0") in p.wr)
            if ins.kind == "ctl" and op in ("s_cbranch_vccz", "s_cbranch_vccnz"):
                req(1, lambda p: p.kind == "valu" and sreg(p.wr) & set(parse_regs("vcc")))
            while need > 0:
                k = min(need, 16)
                t = f"s_nop {k - 1}"
                emit(t); hist.append((pos, Ins("s_nop 0"))); pos += k; need -= k; nnop += 1
            emit(ins.text)
            hist.append((pos, ins))
            pos += 1
            if op == "s_nop":
                pos += int(ins.ops[0])
            if len(hist) > 64:
                hist = hist[-48:]
            if ins.cnt == "vm":
                vm.append((set(ins.wr), it[2], ctx))
            elif ins.cnt == "lgkm":
                lg.append((set(ins.wr), it[2], ctx))
            elif ins.cnt == "smem":
                smem |= ins.wr
        self.stats = dict(nops=nnop, waits=nwait, lines=len(out))
        return "\n".join(out) + "\n"
```

```python
import math
from gen import *

NEG = f32(-1e30)


def ar(b, n=4):
    return f"a[{b}:{b+n-1}]"


def vr(b, n=4):
    return f"v[{b}:{b+n-1}]"


QA, QB = 224, 228
SBUF = (64, 80, 96, 112)
NEGM = {"A": 128, "B": 144}
OACC = {"A": 160, "B": 176}
PBUF = {"A": 192, "B": 200}
CDIAG, CFAR, ANDD, ANDF = 208, 232, 32, 40
AK0, AV0 = 0, 72
L_KV = L_RING


def kfrag(b):
    return AK0 + b * 4


def vfrag(b, half):
    return AV0 + ((b & 1) * 2 + half) * 4


def attn_setup(g):
    a = g.a
    a.c("======== attention constants")
    a("v_and_b32 v3, 31, v1\nv_lshrrev_b32 v4, 5, v1\nv_lshlrev_b32 v4, 2, v4\nv_sub_u32 v3, v3, v4")
    a(f"v_mov_b32 v48, 0\nv_mov_b32 v49, {NEG}\nv_mov_b32 v50, 0xffff\nv_mov_b32 v51, 0xffff0000")
    for i in range(16):
        ci = (i & 3) + 8 * (i >> 2)
        sp = f"s[{72 + 2*(i % 4)}:{73 + 2*(i % 4)}]"
        a(f"v_cmp_le_i32 {sp}, {ci}, v3")
        a(f"v_mov_b32 v{OACC['A']+i}, 0\nv_mov_b32 v{OACC['B']+i}, 0")
        a(f"v_cndmask_b32 v{CDIAG+i}, v49, v48, {sp}\nv_cndmask_b32 v{CFAR+i}, v48, v49, {sp}")
        a(f"v_cndmask_b32 v{52 + (i & 1)}, v48, v{50 + (i & 1)}, {sp}")
        if i & 1:
            a(f"v_or_b32 v{ANDD + i//2}, v52, v53\nv_not_b32 v{ANDF + i//2}, v{ANDD + i//2}")
    for i in range(8):
        a(f"v_mov_b32 v{PBUF['A']+i}, 0\nv_mov_b32 v{PBUF['B']+i}, 0")
    for k in range(AV0, AV0 + 16):
        a(f"v_accvgpr_write_b32 a{k}, v48")
    a("v_mov_b32 v54, 0x3f803f80\ns_mov_b32 exec_lo, 0x00110000\ns_mov_b32 exec_hi, 0x00110000")
    for k in range(AV0, AV0 + 16):
        a(f"v_accvgpr_write_b32 a{k}, v54")
    a("s_mov_b64 exec, -1")


def attn(g):
    a = g.a
    a.c("======== attention")
    a(f"s_sub_u32 s72, {sR}, 4\nv_add_u32 v8, s72, v1\nv_cmp_le_i32 s[74:75], 0, v8")
    g.wg_of("v9", "v8", sCQ)
    g.vflag("v9", PH_KV)
    a("s_and_b64 s[74:75], s[74:75], 0xf")
    a(f"s_lshl_b32 s76, {sR}, 1\ns_add_u32 s76, s76, {sTB}\ns_sub_u32 s77, 8, s76\ns_max_i32 s77, s77, 0")
    a(f"s_lshl_b32 s78, {sCQ}, 1\ns_add_u32 s78, s78, {sP}\ns_lshl_b32 s78, s78, 18\ns_lshl_b32 s79, {sL}, 22")
    a(f"s_add_u32 s78, s78, s79\ns_add_u32 s78, s78, {WS_KV}")
    a(f"s_mul_i32 s79, {sTB}, 5\ns_lshl_b32 s80, {sR}, 1\ns_add_u32 s80, s80, s79\ns_sub_u32 s80, s80, 8")
    for i in range(5):
        a(f"s_add_i32 s{81+i}, s80, {i}\ns_max_i32 s{81+i}, s{81+i}, 0\ns_lshl_b32 s{81+i}, s{81+i}, 12\ns_add_u32 s{81+i}, s{81+i}, s78")
    a(f"s_mul_i32 s86, {sP}, 40960\ns_mul_i32 s87, {sTB}, 20480\ns_add_u32 s87, s87, s86\ns_add_u32 s87, s87, {L_KV}")
    a(f"s_lshl_b32 s88, {sTB}, 12\ns_add_u32 s88, s88, s86\ns_add_u32 s88, s88, {L_KV}\nv_add_u32 v10, s88, v2")
    a("v_and_b32 v8, 15, v1\nv_lshlrev_b32 v8, 4, v8\nv_lshrrev_b32 v7, 5, v1\nv_lshl_add_u32 v8, v7, 8, v8\nv_add_u32 v11, s88, v8")
    a("s_mov_b32 s90, 0xffff\ns_mov_b32 s91, 0xffff")
    g.poll("v9", "s[74:75]")
    g.stamp(6)
    for part, tag in ((0, "Kd"), (1024, "Vd")):
        for i in range(5):
            for h in range(2):
                a(f"s_add_u32 m0, s87, {i*4096 + h*2048 + part}\ns_add_u32 s72, s{81+i}, {h*2048 + part}")
                a(f"buffer_load_dwordx4 v2, {SRD_WS}, s72 offen sc1 lds", tag=tag)
    heads = ("A", "B")
    q = {"A": QA, "B": QB}
    mx = {"A": (48, 49), "B": (50, 51)}

    def kread(b):
        t, h = b >> 1, b & 1
        return f"ds_read_b128 {ar(kfrag(b))}, v10 offset:{t*4096 + h*2048}"

    def vread(b, half):
        t, h = b >> 1, b & 1
        return f"ds_read_b128 {ar(vfrag(b, half))}, v11 offset:{t*4096 + h*2048 + 1024 + half*512}"

    def qk(b, c):
        return f"v_mfma_f32_32x32x16_bf16 {vr(SBUF[b & 3],16)}, {ar(kfrag(b))}, {vr(q[heads[b & 1]])}, {c}"

    def cmask(t):
        return vr(CFAR, 16) if t == 0 else vr(CDIAG, 16) if t == 8 else "0"

    for h in heads:
        a(f"v_mov_b32 v{mx[h][0]}, {NEG}\nv_mov_b32 v{mx[h][1]}, {NEG}")
    a.wait_tag("Kd")
    a("s_barrier")
    a.c("pass 1: true row maximum over the masked window")
    for b in range(4):
        a(kread(b))
    a(qk(0, cmask(0)))
    a(kread(4))
    a(qk(1, cmask(0)))
    for b in range(18):
        t, s_, h = b >> 1, SBUF[b & 3], heads[b & 1]
        if t < 8 and b % 2 == 0:
            stub, back = g.lab("p1s"), g.lab("p1b")
            always = [x for bb in (b, b + 1) for x in ([kread(bb + 5)] if bb + 5 < 18 else []) + ([qk(bb + 2, cmask((bb + 2) >> 1))] if bb + 2 < 18 else [])]
            a(f"s_cmp_gt_u32 s77, {t}\ns_cbranch_scc1 {stub}")
        if b + 5 < 18:
            a(kread(b + 5))
        if b + 2 < 18:
            a(qk(b + 2, cmask((b + 2) >> 1)))
        for i in range(8):
            m = mx[h][i & 1]
            a(f"v_max3_f32 v{m}, v{m}, v{s_+2*i}, v{s_+2*i+1}")
        if t < 8 and b % 2 == 1:
            a.label(back, reset=False)
            g.stubs.append((stub, back, ["s_waitcnt lgkmcnt(0)"] + [y for x in always for y in (x, "s_waitcnt lgkmcnt(0)")]))
    for h in heads:
        m0, m1 = mx[h]
        a(f"v_max_f32 v{m0}, v{m0}, v{m1}\nv_mov_b32 v{m1}, v{m0}")
    for h in heads:
        m0, m1 = mx[h]
        a(f"v_permlane32_swap_b32 v{m0}, v{m1}")
    for h in heads:
        m0, m1 = mx[h]
        a(f"v_max_f32 v{m0}, v{m0}, v{m1}\nv_xor_b32 v{m0}, 0x80000000, v{m0}")
    for i in range(16):
        a(f"v_mov_b32 v{NEGM['A']+i}, v{mx['A'][0]}")
    a(qk(0, vr(NEGM["A"], 16)))
    for i in range(16):
        a(f"v_mov_b32 v{NEGM['B']+i}, v{mx['B'][0]}")
    a.wait_tag("Vd")
    a("s_barrier")
    g.stamp(7)
    a.c("pass 2: P = exp2(S - m), O += V^T P; block b exponentiates S_b, starts S_{b+1} and finishes block b-1")

    def s2(b):
        return SBUF[b & 1]

    def qk2(b):
        h = heads[b & 1]
        return f"v_mfma_f32_32x32x16_bf16 {vr(s2(b),16)}, {ar(kfrag(b))}, {vr(q[h])}, {vr(NEGM[h],16)}"

    def pv(b, half):
        h = heads[b & 1]
        o, p = OACC[h], PBUF[h]
        return f"v_mfma_f32_32x32x16_bf16 {vr(o,16)}, {ar(vfrag(b, half))}, {vr(p+4*half)}, {vr(o,16)}"

    for b in range(18):
        t, h = b >> 1, heads[b & 1]
        nxt = [qk2(b + 1)] if b + 1 < 18 else []
        prv = [pv(b - 1, 0), pv(b - 1, 1)] if b >= 1 else []
        vl = ["s_mov_b64 exec, s[90:91]\n" + vread(b, 0) + "\n" + vread(b, 1) + "\ns_mov_b64 exec, -1"]
        if t < 8 and b % 2 == 0:
            stub, back = g.lab("sk"), g.lab("bk")
            a(f"s_cmp_gt_u32 s77, {t}\ns_cbranch_scc1 {stub}")
        s_, p = s2(b), PBUF[h]
        extra = {1: nxt[:1], 4: prv[:1], 9: prv[1:2], 11: vl}
        for i in range(16):
            a(f"v_exp_f32 v{s_+i}, v{s_+i}")
            if i >= 2 and i % 2 == 0:
                k = i // 2 - 1
                a(f"v_cvt_pk_bf16_f32 v{p+k}, v{s_+2*k}, v{s_+2*k+1}")
            for x in extra.get(i, []):
                a(x)
        a(f"s_nop 0\nv_cvt_pk_bf16_f32 v{p+7}, v{s_+14}, v{s_+15}")
        if t in (0, 8):
            msk = ANDF if t == 0 else ANDD
            for k in range(8):
                a(f"v_and_b32 v{p+k}, v{msk+k}, v{p+k}")
        if t < 8 and b % 2 == 1:
            a.label(back, reset=False)
            g.stubs.append((stub, back, nxt))
    a(pv(17, 0)); a(pv(17, 1))
    g.stamp(8)
    a("v_bfe_u32 v8, v1, 4, 1\nv_lshlrev_b32 v8, 14, v8\nv_and_b32 v9, 15, v1\nv_lshl_add_u32 v8, v9, 4, v8")
    a("v_lshrrev_b32 v9, 5, v1\nv_lshl_add_u32 v8, v9, 8, v8")
    a(f"s_lshl_b32 s72, {sR}, 2\ns_lshl_b32 s73, {sTB}, 1\ns_add_u32 s72, s72, s73\ns_lshl_b32 s72, s72, 4")
    a(f"s_lshl_b32 s73, {sCQ}, 1\ns_add_u32 s72, s72, s73\ns_add_u32 s72, s72, {sP}\ns_lshl_b32 s72, s72, 10")
    a(f"s_lshl_b32 s73, {sL}, 21\ns_add_u32 s72, s72, s73\ns_add_u32 s72, s72, {WS_OF}")
    for hi, h in enumerate(heads):
        o = OACC[h]
        a(f"v_rcp_f32 v52, v{o+8}")
        for i in range(8):
            a(f"v_mul_f32 v{o+i}, v52, v{o+i}")
        for k in range(4):
            a(f"v_cvt_pk_bf16_f32 v{o+k}, v{o+2*k}, v{o+2*k+1}")
        a(f"buffer_store_dwordx4 {vr(o)}, v8, {SRD_WS}, s72 offen offset:{hi*512} sc1", tag="Ost")


PA1, PA2 = 96, 128


def relayout_loads(g):
    a = g.a
    ops = []

    def setup1():
        g.srd(32, P_W1, 2048 * 1376 * 2)
        a("s_lshr_b32 s80, s2, 2\ns_and_b32 s81, s2, 3")
        a("s_mul_i32 s82, s81, 7\ns_min_u32 s83, s81, 1\ns_add_u32 s82, s82, s83")
        a("s_cmp_eq_u32 s81, 0\ns_cselect_b32 s83, 8, 7")
        a(f"s_mul_i32 s84, s80, {32*2752}\ns_mul_i32 s85, s82, 96\ns_add_u32 s84, s84, s85\ns_mul_i32 s85, s83, 6")
        a("s_mov_b32 s86, 1311\ns_mov_b32 s87, 2752")

    def w1(n):
        if n == 0:
            setup1()
        a(f"s_lshl_b32 s88, {sWV}, 6\ns_add_u32 s88, s88, {256*n}\nv_add_u32 v26, s88, v1")
        a("v_mul_lo_u32 v27, v26, s86\nv_lshrrev_b32 v27, 16, v27\nv_mul_u32_u24 v28, 50, v27\nv_sub_u32 v28, v26, v28")
        a("v_mul_lo_u32 v29, v27, s87\nv_lshl_add_u32 v29, v28, 4, v29")
        a("v_cmp_gt_u32 vcc, s85, v28\nv_cmp_gt_u32 s[90:91], 32, v27\ns_and_b64 vcc, vcc, s[90:91]")
        a("v_mov_b32 v28, 0x7ff00000\nv_cndmask_b32 v29, v28, v29, vcc")
        a(f"buffer_load_dwordx4 {ar(PA1+4*n)}, v29, {SRD_T}, s84 offen")

    def w2(i):
        n, m = i >> 2, i & 3
        if i == 0:
            g.srd(32, P_W2, 1376 * 4096)
            a("v_lshrrev_b32 v30, 3, v1\nv_lshlrev_b32 v30, 12, v30\nv_and_b32 v31, 7, v1\nv_lshl_add_u32 v30, v31, 4, v30")
            a(f"s_lshl_b32 s89, s2, 2\ns_add_u32 s89, s89, {sWV}")
        a(f"s_add_u32 s88, s89, {1024*n}\ns_lshr_b32 s90, s88, 5\ns_and_b32 s91, s88, 31")
        a(f"s_lshl_b32 s90, s90, 17\ns_lshl_b32 s91, s91, 7\ns_add_u32 s90, s90, s91\ns_add_u32 s90, s90, {m*32768}")
        a(f"buffer_load_dwordx4 {ar(PA2+4*i)}, v30, {SRD_T}, s90 offen")
    for n in range(7):
        ops.append(lambda n=n: w1(n))
    for i in range(8):
        ops.append(lambda i=i: w2(i))
    return ops


def relayout(g):
    a = g.a
    a.c("======== weight re-layout (layer 0 only)")
    skip = g.lab("nop")
    a(f"s_cmp_eq_u32 {sL}, 0\ns_cbranch_scc0 {skip}")
    with a.cond("l0"):
        L1 = L_RING
        L2 = L_RING + 28672
        a("s_lshr_b32 s72, s2, 2\ns_and_b32 s73, s2, 3")
        a("s_mul_i32 s74, s73, 7\ns_min_u32 s75, s73, 1\ns_add_u32 s74, s74, s75")
        a("s_cmp_eq_u32 s73, 0\ns_cselect_b32 s75, 8, 7")
        a(f"s_lshl_b32 s80, {sWV}, 10\ns_add_u32 s80, s80, {L1}\nv_add_u32 v64, s80, v2")
        for n in range(7):
            a(f"ds_write_b128 v64, {ar(PA1+4*n)} offset:{n*4096}")
        a(f"s_lshl_b32 s80, {sWV}, 13\ns_add_u32 s80, s80, {L2}\nv_add_u32 v64, s80, v2")
        for i in range(8):
            a(f"ds_write_b128 v64, {ar(PA2+4*i)} offset:{i*1024}")
        a(f"s_lshl_b32 s84, s2, 2\ns_add_u32 s84, s84, {sWV}")
        a("v_lshrrev_b32 v65, 4, v1\nv_lshlrev_b32 v65, 3, v65\nv_bfe_u32 v66, v1, 2, 2\nv_add_u32 v65, v65, v66\nv_and_b32 v66, 3, v1")
        a(f"v_mul_u32_u24 v67, 800, v65\nv_lshl_add_u32 v67, v66, 3, v67\ns_lshl_b32 s80, {sWV}, 5\ns_add_u32 s80, s80, {L1}\nv_add_u32 v67, s80, v67")
        a(f"v_lshlrev_b32 v68, 7, v65\nv_lshl_add_u32 v68, v66, 3, v68\ns_lshl_b32 s80, {sWV}, 13\ns_add_u32 s80, s80, {L2}\nv_add_u32 v68, s80, v68")
        a("s_waitcnt lgkmcnt(0)\ns_barrier")
        for n in range(6):
            for rd in range(2):
                a(f"ds_read_b64_tr_b16 v[{72+4*n+2*rd}:{73+4*n+2*rd}], v67 offset:{128*n + rd*3200}")
        for n in range(2):
            for st in range(4):
                for rd in range(2):
                    b = 96 + 16*n + 4*st + 2*rd
                    a(f"ds_read_b64_tr_b16 v[{b}:{b+1}], v68 offset:{n*4096 + 32*st + rd*512}")
        for n in range(6):
            a(f"s_add_u32 s80, {sWV}, {4*n}\ns_mul_i32 s81, s80, 43\ns_lshr_b32 s81, s81, 7\ns_mul_i32 s82, s81, 3\ns_sub_u32 s82, s80, s82")
            a("s_cmp_lt_u32 s81, s75\ns_cselect_b32 s85, 0, 0x70000000")
            a("s_add_u32 s81, s81, s74\ns_lshl_b32 s81, s81, 6\ns_add_u32 s81, s81, s72\ns_mul_i32 s81, s81, 3\ns_add_u32 s81, s81, s82")
            a(f"s_lshl_b32 s81, s81, 10\ns_add_u32 s81, s81, {WS_W1P}\ns_or_b32 s81, s81, s85")
            a(f"buffer_store_dwordx4 {vr(72+4*n)}, v2, {SRD_WS}, s81 offen sc1")
        for n in range(2):
            a(f"s_add_u32 s80, s84, {1024*n}\ns_lshr_b32 s81, s80, 5\ns_and_b32 s82, s80, 31")
            a("s_cmp_lt_u32 s80, 1376\ns_cselect_b32 s85, 0, 0x70000000")
            a(f"s_mul_i32 s82, s82, 43\ns_add_u32 s81, s81, s82\ns_lshl_b32 s81, s81, 12\ns_add_u32 s81, s81, {WS_W2P}\ns_or_b32 s81, s81, s85")
            for st in range(4):
                a(f"buffer_store_dwordx4 {vr(96+16*n+4*st)}, v2, {SRD_WS}, s81 offen offset:{st*1024} sc1")
        a("s_waitcnt lgkmcnt(0)\ns_barrier")
    a.label(skip, reset=False)


def w1_prefetch(g, s0, s1):
    a = g.a
    skip = g.lab("w1p")
    a(f"s_cmp_eq_u32 {sM1}, 0\ns_cbranch_scc1 {skip}")
    with a.cond("m1"):
        a(f"s_lshl_b32 s72, {sJ1}, 6\ns_lshl_b32 s73, {sWV}, 4\ns_add_u32 s72, s72, s73\ns_add_u32 s72, s72, {s0}")
        a(f"s_mul_i32 s72, s72, 3072\ns_add_u32 s72, s72, {WS_W1P}")
        for st in range(s0, s1):
            for ft in range(3):
                a(f"buffer_load_dwordx4 {ar((st*3+ft)*4)}, v2, {SRD_WS}, s72 offen offset:{ft*1024} sc1")
            if st < s1 - 1:
                a("s_add_u32 s72, s72, 3072")
    a.label(skip, reset=False)


def w2_load(g, i):
    st, k = i >> 2, i & 3
    g.a(f"s_add_u32 s88, s89, {st*4096}")
    g.a(f"buffer_load_dwordx4 {ar(4*i)}, v2, {SRD_W2P}, s88 offen offset:{k*1024} sc1")


def o_flags(g):
    a = g.a
    a(f"v_mov_b32 v8, {sR}\nv_and_b32 v9, 3, v8\nv_lshlrev_b32 v9, 3, v9\nv_add_u32 v9, v1, v9\nv_lshlrev_b32 v9, 3, v9")
    a("v_lshrrev_b32 v7, 2, v8\nv_add_u32 v9, v9, v7")
    g.vflag("v9", PH_O)
    a(f"s_cmp_ge_u32 {sJ1}, 8\ns_cselect_b32 s72, 1, 0\ns_cmp_ge_u32 {sJ1}, 15\ns_addc_u32 s72, s72, 0")
    a(f"s_cmp_ge_u32 {sJ1}, 22\ns_addc_u32 s72, s72, 0")
    a(f"s_lshl_b32 s73, {sWV}, 4\ns_sub_u32 s73, s73, 8\nv_add_u32 v8, s73, v1\nv_lshl_add_u32 v8, v8, 2, s72")
    a(f"s_mul_i32 s73, {sWV}, 11\ns_sub_u32 s73, s73, 24\nv_add_u32 v7, s73, v1\nv_min_i32 v7, 42, v7\nv_lshlrev_b32 v7, 5, v7")
    a(f"v_add_u32 v7, {sR}, v7\nv_and_b32 v7, 1023, v7\nv_lshrrev_b32 v7, 2, v7")
    a("v_cmp_le_u32 vcc, 24, v1\nv_cndmask_b32 v8, v8, v7, vcc\nv_and_b32 v8, 255, v8")
    a(f"v_lshlrev_b32 v8, 7, v8\nv_add_u32 v8, {WS_FLAG + PH_P*2*256*128}, v8")
    a("v_cmp_le_u32 vcc, 8, v1\nv_cndmask_b32 v9, v9, v8, vcc")
    a(f"s_cmp_eq_u32 {sL}, 0\ns_cselect_b32 s72, {sM1}, 0\ns_cselect_b32 s77, 7, 0\ns_cselect_b32 s73, 0xff000000, 0")
    a("s_cmp_lg_u32 s72, 0\ns_cselect_b32 s72, 0x00ffff00, 0\ns_or_b32 s76, s72, s73\ns_or_b32 s76, s76, 0xff")


def oproj(g):
    a = g.a
    a.c("======== output projection, residual, double LayerNorm")
    g.poll("v9", "s[76:77]")
    g.stamp(10)
    OFR, WFR, ACC = 64, 128, 160
    a(f"s_lshl_b32 s72, {sR}, 2\ns_add_u32 s72, s72, {sWV}\ns_lshl_b32 s72, s72, 14\ns_lshl_b32 s73, {sL}, 21")
    a(f"s_add_u32 s72, s72, s73\ns_add_u32 s72, s72, {WS_OF}")
    def oload(ks):
        a(f"s_add_u32 s73, s72, {(ks >> 2)*4096}")
        a(f"buffer_load_dwordx4 {vr(OFR+4*ks)}, v2, {SRD_WS}, s73 offen offset:{(ks & 3)*1024} sc1")
    OD = 16
    for ks in range(OD):
        oload(ks)
    g.stamp(25)
    a("v_lshrrev_b32 v3, 5, v1\nv_lshlrev_b32 v3, 4, v3\nv_bfe_u32 v4, v1, 4, 1\nv_lshl_add_u32 v3, v4, 2, v3")
    a("v_bfe_u32 v5, v1, 2, 2\nv_add_u32 v3, v3, v5\nv_bfe_u32 v5, v3, 1, 2\nv_and_b32 v6, 3, v1\nv_lshlrev_b32 v6, 3, v6")
    a("v_lshl_add_u32 v6, v3, 7, v6")
    for nt in range(4):
        a(f"v_xor_b32 v7, {nt}, v5\nv_lshl_add_u32 v{10+nt}, v7, 5, v6")

    def wreads(ks):
        for nt in range(4):
            b = WFR + (ks & 1) * 16 + nt * 4
            for rd in range(2):
                a(f"ds_read_b64_tr_b16 v[{b+2*rd}:{b+2*rd+1}], v{10+nt} offset:{L_X + ks*4096 + rd*1024}")
    wreads(0)
    for ks in range(16):
        if ks < 15:
            wreads(ks + 1)
        if ks + OD < 16:
            oload(ks + OD)
        for nt in range(4):
            b = WFR + (ks & 1) * 16 + nt * 4
            c = "0" if ks == 0 else vr(ACC + 4*nt)
            a(f"v_mfma_f32_16x16x32_bf16 {vr(ACC+4*nt)}, {vr(b)}, {vr(OFR+4*ks)}, {c}")
    g.stamp(11)
    a(f"v_and_b32 v3, 15, v1\ns_lshl_b32 s72, {sWV}, 4\nv_add_u32 v14, s72, v3\nv_lshrrev_b32 v4, 4, v1")
    a(f"v_mul_u32_u24 v5, 144, v14\nv_lshl_add_u32 v5, v4, 3, v5\nv_add_u32 v15, {L_R}, v5")
    for nt in range(4):
        a(f"ds_read_b64 v[{176+2*nt}:{177+2*nt}], v15 offset:{32*nt}")
    X1 = 192
    for nt in range(4):
        for k in range(2):
            a(f"v_lshlrev_b32 v{X1+4*nt+2*k}, 16, v{176+2*nt+k}\nv_and_b32 v{X1+4*nt+2*k+1}, 0xffff0000, v{176+2*nt+k}")
    for i in range(16):
        a(f"v_add_f32 v{X1+i}, v{X1+i}, v{ACC+i}")
    for k in range(8):
        a(f"v_cvt_pk_bf16_f32 v{176+k}, v{X1+2*k}, v{X1+2*k+1}")
    for nt in range(4):
        a(f"ds_write_b64 v15, v[{176+2*nt}:{177+2*nt}] offset:{32*nt}")
    a(f"v_add_f32 v16, v{X1}, v{X1+1}\nv_mul_f32 v17, v{X1}, v{X1}\nv_fmac_f32 v17, v{X1+1}, v{X1+1}")
    for i in range(2, 16):
        a(f"v_add_f32 v16, v16, v{X1+i}\nv_fmac_f32 v17, v{X1+i}, v{X1+i}")

    def fold_groups(r0, r1):
        for sw in ("16", "32"):
            a(f"v_mov_b32 v20, v{r0}\nv_mov_b32 v21, v{r1}")
            a(f"v_permlane{sw}_swap_b32 v{r0}, v20\nv_permlane{sw}_swap_b32 v{r1}, v21")
            a(f"v_add_f32 v{r0}, v{r0}, v20\nv_add_f32 v{r1}, v{r1}, v21")
    fold_groups(16, 17)
    a(f"v_mov_b32 v18, {sN}\nv_mov_b32 v19, {sNN}")
    a(f"s_lshl_b32 s72, {sL}, 5\ns_add_u32 s72, s72, {sR}\ns_lshl_b32 s72, s72, 13\ns_add_u32 s72, s72, {WS_ST}")
    a(f"s_lshl_b32 s73, {sCQ}, 10\ns_add_u32 s73, s73, s72\nv_lshlrev_b32 v22, 4, v14")
    a("s_mov_b64 exec, 0xffff")
    a(f"buffer_store_dwordx4 v[16:19], v22, {SRD_WS}, s73 offen sc1")
    a("s_mov_b64 exec, -1")
    g.stamp(26)
    w1_prefetch(g, 0, 6)
    g.stamp(27)
    a(f"s_lshl_b32 s72, {sL}, 5\ns_add_u32 s72, s72, {sR}\ns_lshl_b32 s72, s72, 13\ns_add_u32 s72, s72, {WS_ST}")
    a("v_lshl_add_u32 v23, v4, 11, v22\ns_mov_b32 s98, 0")
    top, ok = g.lab("stp"), g.lab("sto")
    a.label(top, reset=False)
    a(f"buffer_load_dwordx4 v[24:27], v23, {SRD_WS}, s72 offen sc1")
    a(f"buffer_load_dwordx4 v[28:31], v23, {SRD_WS}, s72 offen offset:1024 sc1")
    a("s_waitcnt vmcnt(0)")
    a(f"v_cmp_ne_u64 vcc, {sNP}, v[26:27]\nv_cmp_ne_u64 s[74:75], {sNP}, v[30:31]\ns_or_b64 vcc, vcc, s[74:75]")
    a(f"s_cbranch_vccz {ok}")
    a(f"s_add_u32 s98, s98, 1\ns_cmp_lt_u32 s98, {POLL_LIMIT}\ns_cbranch_scc1 {top}\ns_branch L_fail")
    a.label(ok, reset=False)
    g.stamp(12)
    a("v_add_f32 v16, v24, v28\nv_add_f32 v17, v25, v29")
    fold_groups(16, 17)
    a(f"v_mul_f32 v16, {f32(1/512)}, v16\nv_mul_f32 v17, {f32(1/512)}, v17\nv_fma_f32 v17, -v16, v16, v17\nv_max_f32 v17, 0, v17")
    a(f"v_add_f32 v18, {f32(1e-5)}, v17\nv_rsq_f32 v18, v18")
    a(f"v_mul_f32 v19, v18, v18\nv_mul_f32 v19, v19, v17\nv_add_f32 v19, {f32(1e-5)}, v19\nv_rsq_f32 v19, v19\nv_mul_f32 v18, v18, v19")
    for i in range(16):
        a(f"v_sub_f32 v{X1+i}, v{X1+i}, v16")
    for i in range(16):
        a(f"v_mul_f32 v{X1+i}, v18, v{X1+i}")
    for k in range(8):
        a(f"v_cvt_pk_bf16_f32 v{176+k}, v{X1+2*k}, v{X1+2*k+1}")
    HT = L_RING
    a(f"v_mul_u32_u24 v5, 160, v14\nv_lshl_add_u32 v5, v4, 3, v5\nv_add_u32 v5, {HT}, v5")
    for nt in range(4):
        a(f"ds_write_b64 v5, v[{176+2*nt}:{177+2*nt}] offset:{32*nt}")
    a("v_lshrrev_b32 v3, 4, v1\nv_lshlrev_b32 v3, 3, v3\nv_bfe_u32 v6, v1, 2, 2\nv_add_u32 v3, v3, v6")
    a(f"s_lshl_b32 s72, {sTB}, 5\nv_add_u32 v3, s72, v3\nv_mul_u32_u24 v3, 160, v3\nv_and_b32 v6, 3, v1\nv_lshl_add_u32 v3, v6, 3, v3")
    a(f"s_lshl_b32 s72, {sP}, 6\ns_add_u32 s72, s72, {HT}\nv_add_u32 v3, s72, v3")
    a("s_waitcnt lgkmcnt(0)\ns_barrier")
    for e in range(2):
        for rd in range(2):
            a(f"ds_read_b64_tr_b16 v[{184+4*e+2*rd}:{185+4*e+2*rd}], v3 offset:{32*e + rd*640}")
    a(f"s_lshl_b32 s72, {sCQ}, 6\ns_lshl_b32 s73, {sR}, 1\ns_add_u32 s72, s72, s73\ns_add_u32 s72, s72, {sTB}\ns_lshl_b32 s72, s72, 2")
    a(f"s_lshl_b32 s73, {sP}, 1\ns_add_u32 s72, s72, s73\ns_lshl_b32 s72, s72, 10\ns_lshl_b32 s73, {sL}, 21\ns_add_u32 s72, s72, s73\ns_add_u32 s72, s72, {WS_H}")
    for e in range(2):
        a(f"buffer_store_dwordx4 {vr(184+4*e)}, v2, {SRD_WS}, s72 offen offset:{e*1024} sc1", tag="Hst")


W2_EARLY = 20


def mix1(g):
    a = g.a
    a.c("======== token mixing 1: u = gelu(h^T W1 + b1)")
    skip, other = g.lab("m1"), g.lab("m1o")
    a(f"s_mul_i32 s89, {sWV}, {11*4096}")
    a(f"s_cmp_eq_u32 {sM1}, 0\ns_cbranch_scc1 {other}")

    def w2(i):
        st, k = i >> 2, i & 3
        a(f"s_add_u32 s88, s89, {st*4096}")
        t = f"buffer_load_dwordx4 {ar(4*i)}, v2, {SRD_W2P}, s88 offen offset:{k*1024} sc1"
        a.uncond(t)
        return f"s_add_u32 s88, s89, {st*4096}\n" + t
    w2_text = []
    with a.cond("m1"):
        g.srd(32, P_B1, 2752)
        a(f"s_mul_i32 s72, {sJ1}, 96\nv_and_b32 v3, 1, v1\nv_lshlrev_b32 v3, 3, v3\ns_mul_i32 s73, {sWV}, 3")
        for i in range(3):
            a(f"s_add_u32 s74, s73, {i}\ns_lshr_b32 s74, s74, 1\ns_lshl_b32 s74, s74, 4\ns_add_u32 s74, s74, s72")
            a(f"buffer_load_dwordx2 v[{14+2*i}:{15+2*i}], v3, {SRD_T}, s74 offen")
        a(f"s_lshl_b32 s73, {sWV}, 3\nv_add_u32 v8, s73, v1")
        g.wg_of("v9", "v8", sC1)
        g.vflag("v9", PH_H)
        g.poll("v9", "0xff")
        g.stamp(14)
        HB, NS, ACC, HD = 64, 24, 192, 20
        a(f"s_lshl_b32 s72, {sC1}, 6\ns_lshl_b32 s73, {sWV}, 4\ns_add_u32 s72, s72, s73\ns_lshl_b32 s72, s72, 12")
        a(f"s_lshl_b32 s73, {sL}, 21\ns_add_u32 s72, s72, s73\ns_add_u32 s72, s72, {WS_H}")
        nload = [0]

        def hload():
            n = nload[0]
            a(f"buffer_load_dwordx4 {vr(HB + 4*(n % NS))}, v2, {SRD_WS}, s72 offen offset:{(n & 3)*1024} sc1")
            if n & 3 == 3:
                a("s_add_u32 s72, s72, 4096")
            nload[0] += 1
        for _ in range(HD):
            hload()
        for st in range(16):
            for dt in range(4):
                hb = HB + 4 * ((st*4 + dt) % NS)
                for ft in range(3):
                    acc = ACC + (ft*4 + dt) * 4
                    c = "0" if st == 0 else ar(acc)
                    a(f"v_mfma_f32_16x16x32_bf16 {ar(acc)}, {ar((st*3+ft)*4)}, {vr(hb)}, {c}")
                if nload[0] < 64:
                    hload()
        g.stamp(15)
        a(f"v_and_b32 v3, 15, v1\nv_mul_u32_u24 v3, 208, v3\nv_lshrrev_b32 v4, 4, v1\nv_lshl_add_u32 v3, v4, 4, v3")
        a(f"s_mul_i32 s72, {sWV}, 13312\nv_add_u32 v3, s72, v3")
        nw2 = 0
        for dt in range(4):
            for ft in range(3):
                a(f"ds_write_b128 v3, {ar(ACC + (ft*4+dt)*4)} offset:{L_X + dt*16*208 + ft*64}")
                if ft == 2:
                    w2_text.append(w2(nw2)); nw2 += 1
        a("s_waitcnt lgkmcnt(0)\ns_barrier")
        sk3 = g.lab("ep")
        a(f"s_or_b32 s72, s2, {sL}\ns_or_b32 s72, s72, {sWV}\ns_cmp_eq_u32 s72, 0\ns_cbranch_scc0 {sk3}")
        with a.cond(sk3):
            a(f"v_mov_b32 v4, {sN}\nv_mov_b32 v5, {WS_EPOCH}\ns_mov_b64 exec, 1")
            a(f"buffer_store_dword v4, v5, {SRD_WS}, 0 offen sc1")
            a("s_mov_b64 exec, -1")
        a.label(sk3, reset=False)
        c0 = -2 * math.log2(math.e) * math.sqrt(2 / math.pi)
        c1 = c0 * 0.044715
        a("v_lshrrev_b32 v3, 1, v1\nv_mul_u32_u24 v10, 208, v3\nv_and_b32 v4, 1, v1\nv_lshl_add_u32 v10, v4, 4, v10")
        a("v_lshrrev_b32 v5, 5, v1\nv_lshlrev_b32 v11, 10, v5\nv_and_b32 v3, 15, v3\nv_lshl_add_u32 v11, v3, 4, v11\nv_lshl_add_u32 v11, v4, 3, v11")
        a(f"s_mul_i32 s76, {sWV}, 3\ns_mul_i32 s77, {sC1}, {UC}\ns_lshl_b32 s73, {sL}, 21\ns_add_u32 s77, s77, s73\ns_add_u32 s77, s77, {WS_U}")
        a(f"s_mov_b32 s84, {f32(c1)}\ns_mov_b32 s85, {f32(c0)}")
        for i in range(3):
            B = 64 + 16 * i
            a(f"s_add_u32 s72, s76, {i}\ns_lshr_b32 s73, s72, 1\ns_and_b32 s72, s72, 1")
            a(f"s_mul_i32 s74, s72, {32*208}\ns_lshl_b32 s75, s73, 5\ns_add_u32 s74, s74, s75\nv_add_u32 v12, s74, v10")
            for k in range(4):
                a(f"ds_read_b128 {vr(B + 4*k)}, v12 offset:{L_X + k*13312}")
            a(f"s_mul_i32 s74, {sJ1}, 6\ns_add_u32 s74, s74, s73\ns_lshr_b32 s75, s74, 2\ns_and_b32 s78, s74, 3")
            a(f"s_lshl_b32 s75, s75, 12\ns_lshl_b32 s78, s78, 8\ns_add_u32 s75, s75, s78\ns_lshl_b32 s72, s72, 11\ns_add_u32 s75, s75, s72")
            a(f"s_add_u32 s75, s75, s77\ns_cmp_ge_u32 s74, 172\ns_cselect_b32 s78, 0x70000000, 0\ns_or_b32 s{80+i}, s75, s78")
        for i in range(3):
            B = 64 + 16 * i
            bb = 14 + 2 * i

            def w2x():
                nonlocal nw2
                if nw2 < W2_EARLY:
                    w2_text.append(w2(nw2)); nw2 += 1
            for e in range(4):
                a(f"v_add_f32 v{B+e}, v{B+e}, v{B+4+e}\nv_add_f32 v{B+8+e}, v{B+8+e}, v{B+12+e}")
            w2x()
            a(f"v_lshlrev_b32 v{B+4}, 16, v{bb}\nv_and_b32 v{B+5}, 0xffff0000, v{bb}\nv_lshlrev_b32 v{B+6}, 16, v{bb+1}\nv_and_b32 v{B+7}, 0xffff0000, v{bb+1}")
            for e in range(4):
                a(f"v_add_f32 v{B+e}, v{B+e}, v{B+8+e}")
            for e in range(4):
                a(f"v_add_f32 v{B+e}, v{B+e}, v{B+4+e}")
            w2x()
            for e in range(4):
                a(f"v_mul_f32 v{B+4+e}, v{B+e}, v{B+e}\nv_mov_b32 v{B+8+e}, s85")
            for e in range(4):
                a(f"v_fmac_f32 v{B+8+e}, s84, v{B+4+e}")
            w2x()
            for e in range(4):
                a(f"v_mul_f32 v{B+8+e}, v{B+8+e}, v{B+e}")
            for e in range(4):
                a(f"v_exp_f32 v{B+8+e}, v{B+8+e}")
            w2x()
            for e in range(4):
                a(f"v_add_f32 v{B+8+e}, 1.0, v{B+8+e}")
            for e in range(4):
                a(f"v_rcp_f32 v{B+8+e}, v{B+8+e}")
            w2x()
            for e in range(4):
                a(f"v_mul_f32 v{B+e}, v{B+e}, v{B+8+e}")
            a(f"v_cvt_pk_bf16_f32 v{B+4}, v{B}, v{B+1}\nv_cvt_pk_bf16_f32 v{B+5}, v{B+2}, v{B+3}")
            a(f"buffer_store_dwordx2 v[{B+4}:{B+5}], v11, {SRD_WS}, s{80+i} offen sc1", tag="Ust")
        while nw2 < W2_EARLY:
            w2_text.append(w2(nw2)); nw2 += 1
        a.wait_tag("Ust")
        g.publish(PH_U)
    a.label(skip, reset=False)
    g.tails.append((other, skip, w2_text))


def mix2(g):
    a = g.a
    a.c("======== token mixing 2: x += (u W2 + b2)^T")
    g.srd(32, P_B2, 4096)
    a(f"v_lshrrev_b32 v10, 3, v0\ns_lshl_b32 s72, {sR}, 7\nv_lshl_add_u32 v11, v10, 1, s72")
    a(f"buffer_load_ushort v12, v11, {SRD_T}, 0 offen\nbuffer_load_ushort v13, v11, {SRD_T}, 0 offen offset:64")
    a(f"s_mul_i32 s72, {sCQ}, {UC}\ns_lshl_b32 s73, {sL}, 21\ns_add_u32 s72, s72, s73\ns_add_u32 s72, s72, {WS_U}")
    g.srd(24, P_WS, UC, "s72")
    a(f"s_mul_i32 s72, {sWV}, 352\ns_mul_hi_u32 s72, s72, {(1 << 32)//48 + 1}\nv_add_u32 v8, s72, v1\nv_min_u32 v8, 28, v8")
    a("v_cmp_le_u32 vcc, 8, v8\nv_cndmask_b32 v6, 0, 1, vcc\nv_cmp_le_u32 vcc, 15, v8\nv_addc_co_u32 v6, vcc, 0, v6, vcc")
    a("v_cmp_le_u32 vcc, 22, v8\nv_addc_co_u32 v6, vcc, 0, v6, vcc")
    a("v_mul_u32_u24 v7, 7, v6\nv_min_u32 v9, 1, v6\nv_add_u32 v7, v7, v9\nv_sub_u32 v7, v8, v7")
    a(f"s_and_b32 s72, {sCQ}, 3\ns_lshr_b32 s73, {sCQ}, 2\nv_lshl_add_u32 v7, v7, 2, s72\nv_lshlrev_b32 v7, 3, v7")
    a("v_lshl_add_u32 v9, v6, 1, v7\nv_add_u32 v9, s73, v9")
    g.vflag("v9", PH_U)
    g.poll("v9", "0xff")
    g.stamp(17)
    UB, ACC, UD = 64, 192, 20

    def uload(i):
        st, dt = i >> 2, i & 3
        a(f"s_add_u32 s72, s89, {st*4096}")
        a(f"buffer_load_dwordx4 {vr(UB + 4*i)}, v2, {SRD_U}, s72 offen offset:{dt*1024} sc1")
    for i in range(UD):
        uload(i)
    for st in range(11):
        for dt in range(4):
            for k in range(4):
                acc = ACC + (dt*4 + k) * 4
                c = "0" if st == 0 else ar(acc)
                a(f"v_mfma_f32_16x16x32_bf16 {ar(acc)}, {vr(UB + (st*4+dt)*4)}, {ar((st*4+k)*4)}, {c}")
                if k == 1 and st*4 + dt + UD < 44:
                    uload(st*4 + dt + UD)
    g.stamp(18)
    a("v_and_b32 v3, 15, v1\nv_lshrrev_b32 v4, 4, v1\nv_and_b32 v5, 7, v1")
    a(f"s_lshl_b32 s72, {sWV}, 14")
    for dt in range(4):
        a(f"v_add_u32 v6, {4*dt}, v4\nv_xor_b32 v6, v6, v5\nv_lshlrev_b32 v6, 4, v6\nv_lshl_add_u32 v6, v3, 8, v6\nv_add_u32 v{14+dt}, s72, v6")
    for dt in range(4):
        for k in range(4):
            a(f"ds_write_b128 v{14+dt}, {ar(ACC + (dt*4+k)*4)} offset:{L_X + k*4096}")
    a("s_waitcnt lgkmcnt(0)\ns_barrier")
    a("v_and_b32 v3, 7, v0\nv_and_b32 v4, 7, v10\nv_lshlrev_b32 v5, 1, v3")
    for e in range(2):
        a(f"v_add_u32 v6, {e}, v5\nv_xor_b32 v6, v6, v4\nv_lshlrev_b32 v6, 4, v6\nv_lshl_add_u32 v{18+e}, v10, 8, v6")
    a(f"v_mul_u32_u24 v20, 144, v10\nv_lshl_add_u32 v20, v3, 4, v20\nv_add_u32 v20, {L_R}, v20")
    a(f"v_lshlrev_b32 v21, 10, v10\nv_lshl_add_u32 v21, v3, 4, v21")
    a(f"s_lshl_b32 s72, {sR}, 16\ns_lshl_b32 s73, {sCQ}, 7\ns_add_u32 s72, s72, s73")
    for half in range(2):
        B = 64 + half * 48
        for k in range(4):
            for e in range(2):
                a(f"ds_read_b128 {vr(B + k*8 + e*4)}, v{18+e} offset:{L_X + k*16384 + half*8192}")
        a(f"ds_read_b128 {vr(B+32)}, v20 offset:{half*4608}")
    for half in range(2):
        B = 64 + half * 48
        a(f"v_lshlrev_b32 v22, 16, v{12+half}")
        for i in range(8):
            a(f"v_add_f32 v{B+i}, v{B+i}, v{B+8+i}\nv_add_f32 v{B+16+i}, v{B+16+i}, v{B+24+i}")
        for i in range(8):
            a(f"v_add_f32 v{B+i}, v{B+i}, v{B+16+i}")
        for i in range(8):
            a(f"v_add_f32 v{B+i}, v{B+i}, v22")
        for k in range(4):
            a(f"v_lshlrev_b32 v{B+8+2*k}, 16, v{B+32+k}\nv_and_b32 v{B+9+2*k}, 0xffff0000, v{B+32+k}")
        for i in range(8):
            a(f"v_add_f32 v{B+i}, v{B+i}, v{B+8+i}")
        for k in range(4):
            a(f"v_cvt_pk_bf16_f32 v{B+36+k}, v{B+2*k}, v{B+2*k+1}")
        a(f"ds_write_b128 v20, {vr(B+36)} offset:{half*4608}")
        a(f"buffer_store_dwordx4 {vr(B+36)}, v21, {SRD_DST}, s72 offen sc1", tag="Xst")
        if half == 0:
            a("s_add_u32 s72, s72, 32768")
        a(f"v_add_f32 v{B+40}, v{B}, v{B+1}\nv_mul_f32 v{B+41}, v{B}, v{B}\nv_fmac_f32 v{B+41}, v{B+1}, v{B+1}")
        for i in range(2, 8):
            a(f"v_add_f32 v{B+40}, v{B+40}, v{B+i}\nv_fmac_f32 v{B+41}, v{B+i}, v{B+i}")
    sk = g.lab("st2")
    a(f"s_cmp_eq_u32 {sL}, 0\ns_cbranch_scc0 {sk}")
    with a.cond(sk):
        g.row_stats_store([104, 152], 1)
    a.label(sk, reset=False)


def rest(g):
    a = g.a
    g.tails = []
    attn_setup(g)
    relayout(g)
    g.stamp(5)
    attn(g)
    a.wait_tag("Ost")
    g.publish(PH_O, also_l0=PH_P)
    g.stamp(9)
    if g.stop("a"):
        return finish(g)
    o_flags(g)
    oproj(g)
    a.wait_tag("Hst")
    g.publish(PH_H)
    g.stamp(13)
    if g.stop("o"):
        return finish(g)
    w1_prefetch(g, 6, 16)
    mix1(g)
    g.stamp(16)
    if g.stop("m1"):
        return finish(g)
    for i in range(W2_EARLY, 44):
        w2_load(g, i)
    mix2(g)
    g.stamp(19)
    if g.stop("m2"):
        return finish(g)
    a(f"s_cmp_eq_u32 {sL}, 1\ns_cbranch_scc1 L_done")
    g.srd(4, P_WS, 2 << 20, WS_X2)
    g.srd(20, P_OUT, 2 << 20)
    a(f"s_mov_b32 {sL}, 1")
    a("s_waitcnt lgkmcnt(0)")
    a("s_branch L_layer")
    a.label("L_done", reset=False)
    a("s_waitcnt vmcnt(0)\ns_branch L_end")
    finish(g)


def finish(g):
    a = g.a
    a("s_branch L_end")
    a.assume_clean()
    for stub, back, always in g.stubs:
        a.label(stub, reset=False)
        a("s_nop 7")
        for x in always:
            a(x)
        a(f"s_nop 11\ns_branch {back}")
        a.assume_clean()
    for lab, back, texts in g.tails:
        a.label(lab, reset=False)
        for x in texts:
            a(x)
        a(f"s_branch {back}")
        a.assume_clean()
```

```python
import sys
sys.path.insert(0, "tools")
from asmfw import Asm

KNAME = "interleave_layers__sliding_block__mixer_token_mlp__prompt_kernel"

WS_EPOCH = 0x0
WS_FLAG = 0x1000
WS_ST = 0x80000
WS_KV = 0x100000
WS_OF = 0x900000
WS_H = 0xD00000
WS_U = 0x1100000
WS_X2 = 0x1500000
WS_W1P = 0x1700000
WS_W2P = 0x1D00000
WS_ST2 = 0x2300000
WS_DIAG = 0x2400000
WS_SIZE = 0x4000000
UC = 43 * 4096
PH_KV, PH_O, PH_H, PH_U, PH_X, PH_P = range(6)

L_X = 0
L_RING = 65536
L_R = 147456
L_MISC = 156672
L_SP = L_MISC
L_CP = L_MISC + 1024
L_MR = L_MISC + 2560
LDS_SIZE = 163840

SRD_X, SRD_WQ, SRD_WO, SRD_WS = "s[4:7]", "s[8:11]", "s[12:15]", "s[16:19]"
SRD_DST, SRD_U, SRD_W2P, SRD_T = "s[20:23]", "s[24:27]", "s[28:31]", "s[32:35]"
P_X, P_WQ, P_WO, P_W1, P_B1, P_W2, P_B2, P_OUT, P_DBG, P_WS = 36, 38, 40, 44, 46, 48, 50, 52, 54, 56
sR, sCQ, sWV, sL = "s58", "s59", "s60", "s61"
sN, sNN, sNP = "s62", "s63", "s[62:63]"
sC1, sJ1, sM1 = "s64", "s65", "s66"
sP, sTB, sB = "s67", "s68", "s69"
sCNT = "s98"
POLL_LIMIT = 400000

LOG2E = 1.4426950408889634


def f32(x):
    import struct
    return "0x%08x" % struct.unpack("<I", struct.pack("<f", x))[0]


class Gen:
    def __init__(self, stop_after=None, diag=False):
        self.a = Asm()
        self.stop_after = stop_after
        self.diag = diag
        self.uid = 0
        self.stubs = []
        self.nstamp = 0

    def lab(self, base):
        self.uid += 1
        return f"L_{base}_{self.uid}"

    def srd(self, name, ptr, size, off=None):
        a = self.a
        if off is None:
            a(f"s_mov_b32 s{name}, s{ptr}\ns_mov_b32 s{name+1}, s{ptr+1}")
        else:
            a(f"s_add_u32 s{name}, s{ptr}, {off}\ns_addc_u32 s{name+1}, s{ptr+1}, 0")
        a(f"s_mov_b32 s{name+2}, {size}\ns_mov_b32 s{name+3}, 0x20000")

    def stamp(self, idx):
        if not self.diag:
            return
        a = self.a
        skip = self.lab("st")
        a(f"s_memtime s[92:93]\ns_waitcnt lgkmcnt(0)")
        a(f"s_cmp_eq_u32 {sWV}, 0\ns_cbranch_scc0 {skip}")
        with a.cond(skip):
            a(f"s_lshl_b32 s94, s2, 8\ns_lshl_b32 s95, {sL}, 7\ns_add_u32 s94, s94, s95\ns_add_u32 s94, s94, {WS_DIAG + idx*4}")
            a("v_mov_b32 v62, s92\nv_mov_b32 v63, s94\ns_mov_b64 exec, 1")
            a(f"buffer_store_dword v62, v63, {SRD_WS}, 0 offen")
            a("s_mov_b64 exec, -1")
        a.label(skip, reset=False)

    def flag_addr(self, dst, phase, wg):
        a = self.a
        a(f"s_lshl_b32 {dst}, {sL}, 8\ns_add_u32 {dst}, {dst}, {wg}\ns_lshl_b32 {dst}, {dst}, 7")
        a(f"s_add_u32 {dst}, {dst}, {WS_FLAG + phase*2*256*128}")

    def publish(self, phase, wg="s2", also_l0=None):
        a = self.a
        skip = self.lab("pub")
        a("s_barrier")
        a(f"s_cmp_eq_u32 {sWV}, 0\ns_cbranch_scc0 {skip}")
        with a.cond(skip):
            self.flag_addr("s70", phase, wg)
            a(f"v_mov_b32 v4, {sN}\nv_mov_b32 v5, {sNN}\nv_mov_b32 v6, s70\ns_mov_b64 exec, 1")
            a(f"buffer_store_dwordx2 v[4:5], v6, {SRD_WS}, 0 offen sc1")
            if also_l0 is not None:
                a(f"s_lshl_b32 s70, {wg}, 7\ns_add_u32 s70, s70, {WS_FLAG + also_l0*2*256*128}")
                a(f"s_cmp_eq_u32 {sL}, 0\ns_cselect_b32 s70, s70, 0x70000000\nv_mov_b32 v6, s70")
                a(f"buffer_store_dwordx2 v[4:5], v6, {SRD_WS}, 0 offen sc1")
            a("s_mov_b64 exec, -1")
        a.label(skip, reset=False)

    def poll(self, vaddr, mask):
        a = self.a
        top, ok = self.lab("poll"), self.lab("pok")
        a(f"s_mov_b64 exec, {mask}\ns_mov_b32 {sCNT}, 0")
        a(f"s_cbranch_execz {ok}")
        a.label(top, reset=False)
        with a.cond(top):
            a(f"buffer_load_dwordx2 v[4:5], {vaddr}, {SRD_WS}, 0 offen sc1")
            a("s_waitcnt vmcnt(0)")
            a(f"v_cmp_ne_u64 vcc, {sNP}, v[4:5]")
            a(f"s_cbranch_vccz {ok}")
            a(f"s_add_u32 {sCNT}, {sCNT}, 1\ns_cmp_lt_u32 {sCNT}, {POLL_LIMIT}\ns_cbranch_scc1 {top}")
            a("s_branch L_fail")
        a.label(ok, reset=False)
        a("s_mov_b64 exec, -1")

    def wg_of(self, dst, r, cq):
        a = self.a
        a(f"v_and_b32 {dst}, 3, {r}\nv_lshlrev_b32 {dst}, 3, {dst}\nv_add_u32 {dst}, {cq}, {dst}\nv_lshlrev_b32 {dst}, 3, {dst}")
        a(f"v_lshrrev_b32 v7, 2, {r}\nv_add_u32 {dst}, {dst}, v7")

    def vflag(self, dst, phase):
        a = self.a
        a(f"s_lshl_b32 s70, {sL}, 15\ns_add_u32 s70, s70, {WS_FLAG + phase*2*256*128}")
        a(f"v_lshlrev_b32 {dst}, 7, {dst}\nv_add_u32 {dst}, s70, {dst}")

    def row_stats_store(self, sums, layer):
        a = self.a
        for ctl in ("quad_perm:[1,0,3,2]", "quad_perm:[2,3,0,1]", "row_half_mirror"):
            for r0 in sums:
                for k in range(2):
                    a(f"v_add_f32_dpp v{r0+k}, v{r0+k}, v{r0+k} {ctl} row_mask:0xf bank_mask:0xf")
        for r0 in sums:
            a(f"v_mov_b32 v{r0+2}, {sN}\nv_mov_b32 v{r0+3}, {sNN}")
        if isinstance(layer, int):
            a(f"s_add_u32 s72, {sR}, {layer*32}")
        else:
            a(f"s_lshl_b32 s72, {layer}, 5\ns_add_u32 s72, s72, {sR}")
        a(f"s_lshl_b32 s72, s72, 3\ns_add_u32 s72, s72, {sCQ}\ns_lshl_b32 s72, s72, 10\ns_add_u32 s72, s72, {WS_ST2}")
        a("v_lshrrev_b32 v3, 3, v0\nv_lshlrev_b32 v3, 4, v3\nv_and_b32 v4, 7, v0\nv_cmp_eq_u32 vcc, 0, v4\ns_mov_b64 exec, vcc")
        for i, r0 in enumerate(sums):
            a(f"buffer_store_dwordx4 v[{r0}:{r0+3}], v3, {SRD_WS}, s72 offen offset:{i*512} sc1")
        a("s_mov_b64 exec, -1")

    def stop(self, name):
        if self.stop_after == name:
            self.a("s_waitcnt vmcnt(0) lgkmcnt(0)\ns_branch L_end")
            self.a.assume_clean()
            return True
        return False

    def prologue(self):
        a = self.a
        a("s_cmp_ge_u32 s2, 256\ns_cbranch_scc1 L_end")
        a("s_load_dwordx16 s[36:51], s[0:1], 0\ns_load_dwordx4 s[52:55], s[0:1], 64\ns_load_dwordx2 s[56:57], s[0:1], 80")
        a("v_and_b32 v1, 63, v0\nv_lshlrev_b32 v2, 4, v1\nv_lshrrev_b32 v3, 6, v0")
        a(f"v_readfirstlane_b32 {sWV}, v3")
        a(f"s_and_b32 s70, s2, 7\ns_lshr_b32 s71, s2, 3")
        a(f"s_lshr_b32 s72, s71, 3\ns_lshl_b32 {sR}, s70, 2\ns_add_u32 {sR}, {sR}, s72\ns_and_b32 {sCQ}, s71, 7")
        a(f"s_and_b32 s72, s70, 1\ns_lshl_b32 s72, s72, 2\ns_and_b32 s73, s71, 3\ns_add_u32 {sC1}, s72, s73")
        a("s_lshr_b32 s72, s70, 1\ns_lshr_b32 s73, s71, 2")
        a("s_mul_i32 s74, s72, 7\ns_min_u32 s75, s72, 1\ns_add_u32 s74, s74, s75")
        a(f"s_add_u32 {sJ1}, s74, s73")
        a("s_cmp_eq_u32 s72, 0\ns_cselect_b32 s75, 8, 7")
        a(f"s_cmp_lt_u32 s73, s75\ns_cselect_b32 {sM1}, 1, 0")
        a(f"s_and_b32 {sP}, {sWV}, 1\ns_lshr_b32 {sTB}, {sWV}, 1\ns_xor_b32 {sB}, {sP}, {sTB}")
        a(f"s_mov_b32 {sL}, 0")
        a("s_waitcnt lgkmcnt(0)")
        self.srd(4, P_X, 2 << 20)
        self.srd(8, P_WQ, 512 * 1536 * 2)
        self.srd(12, P_WO, 512 * 512 * 2)
        self.srd(16, P_WS, WS_SIZE)
        a(f"s_mul_i32 s70, {sR}, {UC}\ns_add_u32 s70, s70, {WS_W2P}")
        self.srd(28, P_WS, UC, "s70")
        self.srd(20, P_WS, 2 << 20, WS_X2)
        a(f"v_mov_b32 v3, {WS_EPOCH}")
        a(f"buffer_load_dword v250, v3, {SRD_WS}, 0 offen sc1")
        a("v_lshrrev_b32 v3, 3, v0\nv_and_b32 v4, 7, v0")
        a(f"s_lshl_b32 s70, {sR}, 16\ns_lshl_b32 s71, {sCQ}, 7\ns_add_u32 s70, s70, s71")
        a("v_lshlrev_b32 v5, 10, v3\nv_lshl_add_u32 v5, v4, 4, v5")
        a(f"buffer_load_dwordx4 v[240:243], v5, {SRD_X}, s70 offen")
        a("s_add_u32 s70, s70, 32768")
        a(f"buffer_load_dwordx4 v[244:247], v5, {SRD_X}, s70 offen")
        a("v_mul_u32_u24 v6, 144, v3\nv_lshl_add_u32 v6, v4, 4, v6")
        a(f"v_add_u32 v6, {L_R}, v6")
        a(f"v_readfirstlane_b32 {sN}, v250")
        a(f"s_add_u32 {sN}, {sN}, 1\ns_not_b32 {sNN}, {sN}")
        a("ds_write_b128 v6, v[240:243]\nds_write_b128 v6, v[244:247] offset:4608")
        for h, (src, dst) in enumerate(((240, 232), (244, 236))):
            a(f"v_mov_b32 v{dst}, 0\nv_mov_b32 v{dst+1}, 0")
            for k in range(4):
                a(f"v_lshlrev_b32 v8, 16, v{src+k}\nv_and_b32 v9, 0xffff0000, v{src+k}")
                a(f"v_add_f32 v{dst}, v{dst}, v8\nv_fmac_f32 v{dst+1}, v8, v8\nv_add_f32 v{dst}, v{dst}, v9\nv_fmac_f32 v{dst+1}, v9, v9")
        self.row_stats_store([232, 236], 0)

    def w_dma(self, s, only=None):
        a = self.a
        slot = L_RING + (s % 5) * 16384
        for n in range(4):
            if only is not None and n != only:
                continue
            if s < 8:
                part = n >> 1
                krow = 64 * s + (n & 1) * 32
                col = 1024 * (1 + part)
                lds = slot + part * 8192 + (n & 1) * 4096
            else:
                krow = 128 * (s - 8) + 32 * n
                col = 0
                lds = slot + n * 4096
            a(f"s_add_u32 s72, s70, {krow*3072 + col}\ns_add_u32 m0, s71, {lds}")
            a(f"buffer_load_dwordx4 v12, {SRD_WQ}, s72 offen lds", tag=f"W{s}")

    def w_dma_setup(self):
        a = self.a
        a(f"s_mul_i32 s70, {sWV}, {8*3072}\ns_lshl_b32 s72, {sCQ}, 7\ns_add_u32 s70, s70, s72\ns_lshl_b32 s71, {sWV}, 10")

    def q_phase(self):
        a = self.a
        a.c("======== QKV phase")
        a("v_lshrrev_b32 v3, 3, v1\nv_mul_u32_u24 v12, 3072, v3\nv_bfe_u32 v4, v1, 4, 1\nv_lshlrev_b32 v4, 2, v4")
        a("v_and_b32 v5, 7, v1\nv_xor_b32 v5, v5, v4\nv_lshl_add_u32 v12, v5, 4, v12")
        for e in range(2):
            a(f"s_lshl_b32 s72, {sWV}, 4\ns_add_u32 s72, s72, {8*e}\nv_add_u32 v6, s72, v3")
            a(f"v_bfe_u32 v7, v6, 1, 3\nv_and_b32 v5, 7, v1\nv_xor_b32 v5, v5, v7\nv_lshlrev_b32 v6, 10, v6\nv_lshl_add_u32 v{10+e}, v5, 4, v6")
        self.w_dma_setup()
        for s in range(5):
            self.w_dma(s)
        self.stamp(0)
        skip = self.lab("q_l0")
        a(f"s_cmp_eq_u32 {sL}, 0\ns_cbranch_scc1 {skip}")
        with a.cond(skip):
            a("s_waitcnt vmcnt(20)")
            a(f"s_mov_b32 {sL}, 0")
            self.publish(PH_X)
            a(f"v_mov_b32 v8, {sR}")
            a(f"v_and_b32 v9, 3, v8\nv_lshlrev_b32 v9, 3, v9\nv_add_u32 v9, v1, v9\nv_lshlrev_b32 v9, 3, v9")
            a(f"v_lshrrev_b32 v7, 2, v8\nv_add_u32 v9, v9, v7")
            self.vflag("v9", PH_X)
            self.poll("v9", "0xff")
            a(f"s_mov_b32 {sL}, 1")
        a.label(skip, reset=False)
        self.stamp(1)
        for kc in range(8):
            for e in range(2):
                a(f"s_lshl_b32 s72, {sR}, 16\ns_add_u32 s72, s72, {kc*128}")
                a(f"s_lshl_b32 s73, {sWV}, 11\ns_add_u32 m0, s73, {L_X + kc*8192 + e*1024}")
                a(f"buffer_load_dwordx4 v{10+e}, {SRD_X}, s72 offen sc1 lds", tag=f"X{kc}")
        a(f"v_and_b32 v3, 31, v1\ns_lshl_b32 s72, {sTB}, 5\nv_add_u32 v3, s72, v3\nv_bfe_u32 v4, v3, 1, 3\nv_lshrrev_b32 v5, 5, v1")
        for k in range(4):
            a(f"s_xor_b32 s72, {sB}, {k}\ns_lshl_b32 s72, s72, 1\nv_add_u32 v6, s72, v5\nv_xor_b32 v6, v6, v4")
            a(f"v_lshlrev_b32 v6, 4, v6\nv_lshl_add_u32 v{13+k}, v3, 7, v6")
        a("v_and_b32 v3, 15, v1\nv_lshrrev_b32 v4, 2, v3\nv_lshrrev_b32 v5, 5, v1\nv_lshl_add_u32 v4, v5, 3, v4")
        a(f"v_bfe_u32 v5, v1, 4, 1\nv_lshlrev_b32 v5, 1, v5\nv_bfe_u32 v6, v1, 1, 1\nv_add_u32 v5, v5, v6")
        a(f"s_lshl_b32 s72, {sP}, 2\nv_add_u32 v5, s72, v5\nv_bfe_u32 v6, v1, 3, 1\nv_lshlrev_b32 v6, 2, v6\nv_xor_b32 v5, v5, v6")
        a("v_lshlrev_b32 v5, 4, v5\nv_lshl_add_u32 v5, v4, 7, v5\nv_and_b32 v6, 1, v1\nv_lshl_add_u32 v5, v6, 3, v5")
        for e in range(2):
            a(f"s_xor_b32 s72, {sB}, {e}\ns_lshl_b32 s72, s72, 11\ns_add_u32 s72, s72, {L_RING}")
            a(f"v_add_u32 v{17+e}, s72, v5\nv_add_u32 v{19+e}, 49152, v{17+e}")
        a("v_mov_b32 v21, 0\nv_mov_b32 v22, 0\nv_mov_b32 v23, 0\nv_mov_b32 v24, 0\nv_mov_b32 v25, 0")
        a("s_mov_b32 s74, 0x3f803f80")
        XF, WF, AK, AV, AQ = 64, 32, 192, 208, 224

        def waddr(s, e):
            slot = s % 5
            return (f"v{17+e}", slot * 16384) if slot < 3 else (f"v{19+e}", (slot - 3) * 16384)

        def reads_kv(n):
            s, k = n >> 2, n & 3
            a(f"ds_read_b128 v[{XF+4*n}:{XF+4*n+3}], v{13+k} offset:{L_X + s*8192}")
            reg, off = waddr(s, k & 1)
            wf = WF + (n % 3) * 8
            for part in range(2):
                for rd in range(2):
                    a(f"ds_read_b64_tr_b16 v[{wf+4*part+2*rd}:{wf+4*part+2*rd+1}], {reg} offset:{off + part*8192 + (k >> 1)*4096 + rd*512}")

        def stage_sync(s):
            a("s_waitcnt lgkmcnt(0)")
            a.wait_tag(f"W{s}", f"X{s}") if s < 8 else a.wait_tag(f"W{s}")
            a("s_barrier")

        a(f"s_lshl_b32 s72, {sL}, 5\ns_add_u32 s72, s72, {sR}\ns_lshl_b32 s75, s72, 13\ns_add_u32 s75, s75, {WS_ST2}")
        a(f"v_and_b32 v3, 31, v1\ns_lshl_b32 s72, {sTB}, 5\nv_add_u32 v3, s72, v3\nv_lshlrev_b32 v3, 4, v3\nv_lshrrev_b32 v4, 5, v1\nv_lshl_add_u32 v61, v4, 12, v3")

        def stat_loads():
            for k in range(4):
                a(f"buffer_load_dwordx4 v[{240+4*k}:{243+4*k}], v61, {SRD_WS}, s75 offen offset:{k*1024} sc1")
        self.w_dma_setup()
        self.stamp(20)
        from gen2 import relayout_loads

        def kv_pass(first):
            extra = relayout_loads(self) if first else []
            stage_sync(0)
            self.stamp(21)
            reads_kv(0); reads_kv(1)
            for n in range(32):
                if n + 2 < 32:
                    if (n + 2) % 4 == 0:
                        stage_sync((n + 2) >> 2)
                    reads_kv(n + 2)
                wf = WF + (n % 3) * 8
                x = f"v[{XF+4*n}:{XF+4*n+3}]"
                ck = "0" if n == 0 else f"v[{AK}:{AK+15}]"
                cv = "0" if n == 0 else f"v[{AV}:{AV+15}]"
                a(f"v_mfma_f32_32x32x16_bf16 v[{AK}:{AK+15}], v[{wf}:{wf+3}], {x}, {ck}")
                sfree = (n + 2) >> 2
                if n >= 2 and sfree + 4 < 12:
                    self.w_dma(sfree + 4, only=(n + 2) & 3)
                a(f"v_mfma_f32_32x32x16_bf16 v[{AV}:{AV+15}], {x}, v[{wf+4}:{wf+7}], {cv}")
                if n == 24:
                    stat_loads()
                if first:
                    if n % 2 == 0:
                        for i in range(4):
                            a(f"v_dot2c_f32_bf16 v24, s74, v{wf+i}\nv_dot2c_f32_bf16 v25, s74, v{wf+4+i}")
                    elif n >= 1 and extra:
                        with a.cond("l0"):
                            extra.pop(0)()
            assert not extra
        lb, lj = self.lab("kvb"), self.lab("kvj")
        a(f"s_cmp_eq_u32 {sL}, 0\ns_cbranch_scc0 {lb}")
        a.fork()
        kv_pass(True)
        a(f"s_branch {lj}")
        a.label(lb, reset=False)
        a.alt()
        kv_pass(False)
        a.endfork()
        a.label(lj, reset=False)
        self.stamp(2)
        a("v_and_b32 v3, 31, v1")
        a(f"s_lshl_b32 s72, {sP}, 1\ns_add_u32 s72, s72, {sTB}\ns_mul_i32 s72, s72, 384\ns_add_u32 s72, s72, {L_CP}")
        a("v_lshl_add_u32 v9, v3, 2, s72")
        sk = self.lab("cs")
        a(f"s_cmp_eq_u32 {sL}, 0\ns_cbranch_scc0 {sk}")
        with a.cond("l0"):
            a("v_mov_b32 v26, v24\nv_mov_b32 v27, v25\nv_permlane32_swap_b32 v24, v26\nv_permlane32_swap_b32 v25, v27")
            a("v_add_f32 v24, v24, v26\nv_add_f32 v25, v25, v27")
            a("ds_write_b32 v9, v24\nds_write_b32 v9, v25 offset:128")
            a("s_waitcnt lgkmcnt(0)")
        a.label(sk, reset=False)
        a("s_barrier")
        top, ok = self.lab("s2p"), self.lab("s2o")
        a(f"s_mov_b32 {sCNT}, 0")
        a.label(top, reset=False)
        a(f"v_cmp_ne_u64 vcc, {sNP}, v[242:243]")
        for k in range(1, 4):
            a(f"v_cmp_ne_u64 s[72:73], {sNP}, v[{242+4*k}:{243+4*k}]\ns_or_b64 vcc, vcc, s[72:73]")
        a(f"s_cbranch_vccz {ok}")
        with a.cond(top):
            stat_loads()
            a("s_waitcnt vmcnt(0)")
            a(f"s_add_u32 {sCNT}, {sCNT}, 1\ns_cmp_lt_u32 {sCNT}, {POLL_LIMIT}\ns_cbranch_scc1 {top}\ns_branch L_fail")
        a.label(ok, reset=False)
        a("v_add_f32 v26, v240, v244\nv_add_f32 v27, v241, v245\nv_add_f32 v28, v248, v252\nv_add_f32 v29, v249, v253")
        a("v_add_f32 v26, v26, v28\nv_add_f32 v27, v27, v29\nv_mov_b32 v28, v26\nv_mov_b32 v29, v27")
        a("v_permlane32_swap_b32 v26, v28\nv_permlane32_swap_b32 v27, v29\nv_add_f32 v26, v26, v28\nv_add_f32 v27, v27, v29")
        a(f"s_mul_i32 s72, {sP}, 768\ns_add_u32 s72, s72, {L_CP}")
        a("v_lshrrev_b32 v5, 5, v1\nv_lshl_add_u32 v56, v5, 4, s72")
        for q in range(4):
            a(f"ds_read_b128 v[{240+4*q}:{243+4*q}], v56 offset:{32*q}")
        for q in range(4):
            a(f"ds_read_b128 v[{32+4*q}:{35+4*q}], v56 offset:{384 + 32*q}")
        a("v_lshl_add_u32 v57, v3, 2, s72\nds_read_b32 v58, v57 offset:128\nds_read_b32 v59, v57 offset:512")
        a(f"v_mul_f32 v26, {f32(1/512)}, v26\nv_mul_f32 v27, {f32(1/512)}, v27")
        a(f"v_fma_f32 v27, -v26, v26, v27\nv_max_f32 v27, 0, v27\nv_add_f32 v27, {f32(1e-5)}, v27\nv_rsq_f32 v27, v27")
        a(f"s_lshl_b32 s72, {sWV}, 8\ns_add_u32 s72, s72, {L_MR}\nv_lshl_add_u32 v4, v3, 2, s72")
        a("ds_write_b32 v4, v26\nds_write_b32 v4, v27 offset:128")
        for i in range(16):
            a(f"v_add_f32 v{240+i}, v{240+i}, v{32+i}")
        a("v_add_f32 v58, v58, v59")
        a(f"v_lshl_add_u32 v4, v5, 4, s72")
        a("s_waitcnt lgkmcnt(0)")
        for q in range(4):
            a(f"ds_read_b128 v[{32+4*q}:{35+4*q}], v4 offset:{32*q}")
        for q in range(4):
            a(f"ds_read_b128 v[{48+4*q}:{51+4*q}], v4 offset:{128 + 32*q}") if q < 2 else None
        for i in range(16):
            a(f"v_fma_f32 v{AK+i}, -v26, v{240+i}, v{AK+i}")
        for i in range(16):
            a(f"v_mul_f32 v{AK+i}, v27, v{AK+i}")
        for k in range(8):
            a(f"v_cvt_pk_bf16_f32 v{AK+k}, v{AK+2*k}, v{AK+2*k+1}")
        a(f"s_lshl_b32 s75, {sCQ}, 1\ns_add_u32 s75, s75, {sP}\ns_lshl_b32 s75, s75, 6\ns_lshl_b32 s76, {sR}, 1\ns_add_u32 s75, s75, s76")
        a(f"s_add_u32 s75, s75, {sTB}\ns_lshl_b32 s75, s75, 12\ns_lshl_b32 s76, {sL}, 22\ns_add_u32 s75, s75, s76\ns_add_u32 s75, s75, {WS_KV}")
        a(f"buffer_store_dwordx4 v[{AK}:{AK+3}], v2, {SRD_WS}, s75 offen sc1", tag="KVst")
        a(f"buffer_store_dwordx4 v[{AK+4}:{AK+7}], v2, {SRD_WS}, s75 offen offset:2048 sc1", tag="KVst")
        for q in range(2, 4):
            a(f"ds_read_b128 v[{240+4*q}:{243+4*q}], v4 offset:{128 + 32*q}")
        rs = lambda i: (48 + i) if i < 8 else (240 + i)
        for i in range(16):
            a(f"v_fma_f32 v{AV+i}, -v{32+i}, v58, v{AV+i}")
        for i in range(16):
            a(f"v_mul_f32 v{AV+i}, v{rs(i)}, v{AV+i}")
        for k in range(8):
            a(f"v_cvt_pk_bf16_f32 v{AV+k}, v{AV+2*k}, v{AV+2*k+1}")
        a("v_bfe_u32 v3, v1, 4, 1\nv_lshlrev_b32 v3, 11, v3\nv_lshrrev_b32 v5, 5, v1\nv_lshl_add_u32 v3, v5, 8, v3")
        a("v_and_b32 v5, 15, v1\nv_lshl_add_u32 v3, v5, 4, v3")
        a(f"buffer_store_dwordx4 v[{AV}:{AV+3}], v3, {SRD_WS}, s75 offen offset:1024 sc1", tag="KVst")
        a(f"buffer_store_dwordx4 v[{AV+4}:{AV+7}], v3, {SRD_WS}, s75 offen offset:1536 sc1", tag="KVst")
        self.stamp(3)
        wo = self.wo_dma()
        def reads_q(n):
            s, k = 8 + (n >> 3), n & 7
            reg, off = waddr(s, k & 1)
            wf = WF + (n % 3) * 8
            for rd in range(2):
                a(f"ds_read_b64_tr_b16 v[{wf+2*rd}:{wf+2*rd+1}], {reg} offset:{off + (k >> 1)*4096 + rd*512}")
        def q_pass(first):
            stage_sync(8)
            reads_q(0); reads_q(1)
            for n in range(32):
                if n + 2 < 32:
                    if (n + 2) % 8 == 0:
                        stage_sync(8 + ((n + 2) >> 3))
                    reads_q(n + 2)
                wf = WF + (n % 3) * 8
                cq = "0" if n == 0 else f"v[{AQ}:{AQ+15}]"
                a(f"v_mfma_f32_32x32x16_bf16 v[{AQ}:{AQ+15}], v[{wf}:{wf+3}], v[{XF+4*n}:{XF+4*n+3}], {cq}")
                if n % 2 == 1:
                    wo(n >> 1)
                elif first:
                    for i in range(4):
                        a(f"v_dot2c_f32_bf16 v21, s74, v{wf+i}")
            if first:
                a("v_mov_b32 v28, v21\nv_permlane32_swap_b32 v21, v28\nv_add_f32 v21, v21, v28")
                a("ds_write_b32 v9, v21 offset:256")
        lb, lj = self.lab("qb"), self.lab("qj")
        a(f"s_cmp_eq_u32 {sL}, 0\ns_cbranch_scc0 {lb}")
        a.fork()
        q_pass(True)
        a(f"s_branch {lj}")
        a.label(lb, reset=False)
        a.alt()
        q_pass(False)
        a.endfork()
        a.label(lj, reset=False)
        a("s_waitcnt lgkmcnt(0)")
        a.wait_tag("KVst")
        self.publish(PH_KV)
        self.stamp(4)
        for q in range(4):
            a(f"ds_read_b128 v[{240+4*q}:{243+4*q}], v56 offset:{256 + 32*q}")
        for q in range(4):
            a(f"ds_read_b128 v[{32+4*q}:{35+4*q}], v56 offset:{384 + 256 + 32*q}")
        a(f"v_mul_f32 v27, {f32(0.25*LOG2E)}, v27")
        for i in range(16):
            a(f"v_add_f32 v{240+i}, v{240+i}, v{32+i}")
        for i in range(16):
            a(f"v_fma_f32 v{AQ+i}, -v26, v{240+i}, v{AQ+i}")
        for i in range(16):
            a(f"v_mul_f32 v{AQ+i}, v27, v{AQ+i}")
        for k in range(8):
            a(f"v_cvt_pk_bf16_f32 v{AQ+k}, v{AQ+2*k}, v{AQ+2*k+1}")

    def wo_dma(self):
        a = self.a
        a("v_lshrrev_b32 v3, 3, v1\nv_lshlrev_b32 v3, 10, v3\nv_bfe_u32 v4, v1, 1, 2\nv_bfe_u32 v5, v1, 4, 2\nv_xor_b32 v4, v4, v5")
        a("v_lshlrev_b32 v4, 1, v4\nv_and_b32 v5, 1, v1\nv_add_u32 v4, v4, v5\nv_lshl_add_u32 v8, v4, 4, v3")
        a(f"s_lshl_b32 s76, {sWV}, 17\ns_lshl_b32 s73, {sCQ}, 7\ns_add_u32 s76, s76, s73\ns_lshl_b32 s77, {sWV}, 14")

        def one(n):
            a(f"s_add_u32 m0, s77, {L_X + n*1024}\ns_add_u32 s72, s76, {n*8192}")
            a(f"buffer_load_dwordx4 v8, {SRD_WO}, s72 offen lds", tag="WO")
        return one

    def build(self):
        a = self.a
        self.prologue()
        a("s_waitcnt lgkmcnt(0)")
        a.label("L_layer")
        done = False
        self.q_phase()
        done = self.stop("q")
        if not done:
            from gen2 import rest
            rest(self)
        a.label("L_fail", reset=False)
        self.srd(32, P_DBG, 256)
        a("v_mov_b32 v4, 0xdead\nv_mov_b32 v5, 0\ns_mov_b64 exec, 1")
        a(f"buffer_store_dword v4, v5, {SRD_T}, 0 offen")
        a.label("L_end", reset=False)
        a("s_endpgm")
        body = a.finalize()
        head = open("interleave_layers__sliding_block__mixer_token_mlp__prompt.s.ref").read().split("\n")
        hdr = [l for l in head if l.startswith(";") and "@launch" not in l and "Override launch" not in l and "grid=ceil" not in l]
        hdr = hdr[:hdr.index(next(l for l in hdr if "d_ws" in l)) + 1]
        out = "\n".join(hdr) + f"\n; @launch grid=(256,1,1) block=(256,1,1) lds={LDS_SIZE}\n"
        out += '.amdgcn_target "amdgcn-amd-amdhsa--gfx950"\n.text\n'
        out += f".globl {KNAME}\n.p2align 8\n.type {KNAME},@function\n{KNAME}:\n"
        out += body
        out += f'''.section .rodata,"a"
.p2align 6
.amdhsa_kernel {KNAME}
  .amdhsa_next_free_vgpr 512
  .amdhsa_next_free_sgpr 102
  .amdhsa_accum_offset 256
  .amdhsa_group_segment_fixed_size 0
  .amdhsa_kernarg_size 88
  .amdhsa_user_sgpr_count 2
  .amdhsa_user_sgpr_kernarg_segment_ptr 1
  .amdhsa_system_sgpr_workgroup_id_x 1
.end_amdhsa_kernel
'''
        return out


if __name__ == "__main__":
    import argparse
    ap = argparse.ArgumentParser()
    ap.add_argument("--stop", default=None)
    ap.add_argument("--diag", action="store_true")
    ap.add_argument("-o", default="interleave_layers__sliding_block__mixer_token_mlp__prompt.s")
    args = ap.parse_args()
    g = Gen(stop_after=args.stop, diag=args.diag)
    src = g.build()
    open(args.o, "w").write(src)
    print("written", args.o, g.a.stats, "bytes", len(src))
```

```python
import re

REG_RE = re.compile(r"^(-|\|)?(abs\()?([vas])(\d+)\)?\|?$")
RANGE_RE = re.compile(r"^(-)?([vas])\[(\d+):(\d+)\]$")


def parse_regs(tok):
    tok = tok.strip()
    m = RANGE_RE.match(tok)
    if m:
        return [(m.group(2), i) for i in range(int(m.group(3)), int(m.group(4)) + 1)]
    m = REG_RE.match(tok)
    if m:
        return [(m.group(3), int(m.group(4)))]
    if tok == "vcc":
        return [("s", "vcc_lo"), ("s", "vcc_hi")]
    if tok in ("vcc_lo", "vcc_hi"):
        return [("s", tok)]
    if tok == "exec":
        return [("s", "exec_lo"), ("s", "exec_hi")]
    if tok in ("exec_lo", "exec_hi"):
        return [("s", tok)]
    if tok == "m0":
        return [("s", "m0")]
    return []


def split_ops(rest):
    toks, depth, cur = [], 0, ""
    for ch in rest:
        if ch in "[(":
            depth += 1
        elif ch in "])":
            depth -= 1
        if ch == "," and depth == 0:
            toks.append(cur.strip()); cur = ""
        else:
            cur += ch
    toks.append(cur.strip())
    return toks


TRANS = ("v_exp_f32", "v_log_f32", "v_rcp_f32", "v_rsq_f32", "v_sqrt_f32", "v_sin_f32", "v_cos_f32",
         "v_rcp_iflag_f32")
RMW = ("v_fmac_f32", "v_dot2c_f32_bf16", "v_pk_fmac_f16", "v_fmac_f16")


class Ins:
    __slots__ = ("text", "op", "ops", "mods", "kind", "rd", "wr", "passes", "srcc", "srcab", "cnt", "lds_dma",
                 "wide_store", "dpp", "comment")

    def __init__(self, text):
        self.text = text
        body = text.split(";")[0].strip()
        parts = body.split(None, 1)
        self.op = parts[0]
        rest = parts[1] if len(parts) > 1 else ""
        toks = split_ops(rest) if rest else []
        self.mods = []
        if toks:
            last = toks[-1].split()
            toks[-1] = last[0] if last else ""
            self.mods = last[1:]
        self.ops = toks
        self.rd, self.wr = set(), set()
        self.kind = "other"
        self.passes = 0
        self.srcc, self.srcab = set(), set()
        self.cnt = None
        self.lds_dma = False
        self.wide_store = False
        self.dpp = False
        self._classify()

    def R(self, i):
        return set(parse_regs(self.ops[i])) if i < len(self.ops) else set()

    def _classify(self):
        op, n = self.op, len(self.ops)
        op = re.sub(r"_(e32|e64|dpp|sdwa)$", "", op)
        if self.op.endswith("_dpp") or any(m.startswith(("quad_perm", "row_", "wave_")) for m in self.mods):
            self.dpp = True
        if op.startswith("v_mfma"):
            self.kind = "mfma"
            self.passes = 8 if "32x32" in op else 4
            self.wr = self.R(0)
            self.srcab = self.R(1) | self.R(2)
            self.srcc = self.R(3)
            self.rd = self.srcab | self.srcc
        elif op.startswith("v_"):
            self.kind = "valu"
            if op.startswith("v_cmp"):
                self.wr = self.R(0)
                for i in range(1, n):
                    self.rd |= self.R(i)
            elif op.startswith("v_permlane") and "swap" in op:
                self.wr = self.R(0) | self.R(1)
                self.rd = set(self.wr)
            elif op in ("v_add_co_u32", "v_sub_co_u32", "v_subrev_co_u32"):
                self.wr = self.R(0) | self.R(1)
                for i in range(2, n):
                    self.rd |= self.R(i)
            elif op in ("v_addc_co_u32", "v_subb_co_u32"):
                self.wr = self.R(0) | self.R(1)
                for i in range(2, n):
                    self.rd |= self.R(i)
            else:
                self.wr = self.R(0)
                for i in range(1, n):
                    self.rd |= self.R(i)
                if op in RMW or op == "v_writelane_b32":
                    self.rd |= self.R(0)
                if op == "v_cndmask_b32" and n == 3:
                    self.rd |= set(parse_regs("vcc"))
            if self.dpp:
                self.rd |= self.R(0)
        elif op.startswith("ds_"):
            self.kind = "ds"
            self.cnt = "lgkm"
            if op.startswith(("ds_read", "ds_bpermute", "ds_permute", "ds_swizzle")):
                self.wr = self.R(0)
                for i in range(1, n):
                    self.rd |= self.R(i)
            else:
                for i in range(n):
                    self.rd |= self.R(i)
        elif op.startswith("buffer_"):
            self.kind = "vmem"
            self.cnt = "vm"
            if "lds" in self.mods:
                self.lds_dma = True
                for i in range(n):
                    self.rd |= self.R(i)
                self.rd.add(("s", "m0"))
            elif op.startswith("buffer_load"):
                self.wr = self.R(0)
                for i in range(1, n):
                    self.rd |= self.R(i)
            else:
                for i in range(n):
                    self.rd |= self.R(i)
                if op.startswith("buffer_atomic") and "sc0" in self.mods:
                    self.wr = self.R(0)
                self.wide_store = op.endswith(("x3", "x4"))
        elif op.startswith("s_"):
            self.kind = "salu"
            if op.startswith(("s_load", "s_memtime", "s_memrealtime")):
                self.kind = "smem"
                self.cnt = "smem"
                self.wr = self.R(0)
                for i in range(1, n):
                    self.rd |= self.R(i)
            elif op.startswith(("s_cmp", "s_bitcmp")):
                for i in range(n):
                    self.rd |= self.R(i)
            elif op.startswith(("s_cbranch", "s_branch", "s_waitcnt", "s_barrier", "s_nop", "s_endpgm", "s_sleep",
                                "s_setprio")):
                self.kind = "ctl"
                if op == "s_cbranch_vccz" or op == "s_cbranch_vccnz":
                    self.rd = set(parse_regs("vcc"))
                if op.startswith("s_cbranch_exec"):
                    self.rd = set(parse_regs("exec"))
            elif "saveexec" in op:
                self.wr = self.R(0) | set(parse_regs("exec"))
                self.rd = self.R(1) | set(parse_regs("exec"))
            else:
                self.wr = self.R(0)
                for i in range(1, n):
                    self.rd |= self.R(i)
                if op in ("s_addk_i32", "s_mulk_i32"):
                    self.rd |= self.R(0)
        else:
            raise ValueError("unknown instruction: " + self.text)


def vreg(s):
    return {r for r in s if r[0] in "va"}


def sreg(s):
    return {r for r in s if r[0] == "s"}


class Asm:
    def __init__(self):
        self.items = []
        self.ctx = ()

    def __call__(self, text, tag=None):
        for line in text.split("\n"):
            line = line.strip()
            if not line:
                continue
            if line.startswith(";"):
                self.items.append(("c", line))
            else:
                self.items.append(("i", line, tag, self.ctx))

    def cond(self, name):
        outer = self

        class _C:
            def __enter__(s_):
                s_.old = outer.ctx
                outer.ctx = outer.ctx + (name,)
                outer.items.append(("cin", name))

            def __exit__(s_, *e):
                outer.ctx = s_.old
                outer.items.append(("cout", name))
        return _C()

    def uncond(self, text, tag=None):
        old, self.ctx = self.ctx, ()
        self(text, tag)
        self.ctx = old

    def wait_tag(self, *tags, emit=True):
        self.items.append(("w", tags, self.ctx, emit))

    def c(self, text):
        self.items.append(("c", "; " + text))

    def label(self, name, reset=True):
        self.items.append(("l", name, reset))

    def raw(self, text):
        self.items.append(("raw", text))

    def fork(self):
        self.items.append(("fork",))

    def alt(self):
        self.items.append(("alt",))

    def endfork(self):
        self.items.append(("endfork",))

    def assume_clean(self):
        self.items.append(("reset",))

    def finalize(self, check_only=False):
        out = []
        hist = []
        pos = 0
        vm, lg = [], []
        smem = set()
        nnop = nwait = 0
        forks = []
        conds = []

        def emit(text):
            out.append("  " + text)

        def last_gap(pred):
            for (p, ins) in reversed(hist):
                if pos - p > 24:
                    break
                if pred(ins):
                    return pos - p - 1
            return None

        def trim(lst, nkeep, ctx):
            if nkeep == 0:
                return []
            seen = 0
            for i in range(len(lst) - 1, -1, -1):
                if set(lst[i][2]) <= set(ctx):
                    seen += 1
                    if seen > nkeep:
                        return lst[i + 1:]
            return lst

        def younger(lst, i, ctx):
            return sum(1 for e in lst[i + 1:] if set(e[2]) <= set(ctx))

        for it in self.items:
            if it[0] == "w":
                idx = [i for i, e in enumerate(vm) if e[1] in it[1]]
                if idx:
                    i = idx[-1]
                    n = min(younger(vm, i, it[2]), 63)
                    if it[3]:
                        t = f"s_waitcnt vmcnt({n})"
                        emit(t); hist.append((pos, Ins(t))); pos += 1
                    vm = vm[i + 1:]
                continue
            if it[0] == "cin":
                conds.append((list(vm), list(lg), set(smem))); continue
            if it[0] == "cout":
                v0, l0, s0 = conds.pop()
                ids = {id(e) for e in vm}
                vm = [e for e in v0 if id(e) not in ids and it[1] not in e[2]] + vm
                ids = {id(e) for e in lg}
                lg = [e for e in l0 if id(e) not in ids and it[1] not in e[2]] + lg
                smem |= s0
                continue
            if it[0] == "fork":
                forks.append((list(vm), list(lg), set(smem), list(hist))); continue
            if it[0] == "alt":
                s0 = forks.pop()
                forks.append((list(vm), list(lg), set(smem), list(hist)))
                vm, lg, smem = list(s0[0]), list(s0[1]), set(s0[2])
                continue
            if it[0] == "endfork":
                sa = forks.pop()
                vm, lg, smem = list(sa[0]), list(sa[1]) if len(sa[1]) >= len(lg) else lg, set(sa[2]) | smem
                continue
            if it[0] == "c":
                out.append(it[1]); continue
            if it[0] == "raw":
                out.append(it[1]); continue
            if it[0] == "reset":
                vm, lg, smem = [], [], set(); continue
            if it[0] == "l":
                out.append(it[1] + ":")
                if it[2]:
                    pend = [e[0] for e in vm if e[0]] + [e[0] for e in lg if e[0]]
                    if pend or smem:
                        raise RuntimeError(f"label {it[1]}: register loads still outstanding: {pend} {smem}")
                    vm = []
                    lg = []
                continue
            ins = Ins(it[1])
            op = ins.op
            ctx = it[3]
            if op == "s_waitcnt":
                t = ins.text
                m = re.search(r"vmcnt\((\d+)\)", t)
                if m:
                    vm = trim(vm, int(m.group(1)), ctx)
                m = re.search(r"lgkmcnt\((\d+)\)", t)
                if m:
                    nkeep = int(m.group(1))
                    if nkeep == 0:
                        lg = []; smem = set()
                    elif not smem:
                        lg = trim(lg, nkeep, ctx)
                emit(t); hist.append((pos, ins)); pos += 1
                continue
            touched = ins.rd | ins.wr
            iv = [i for i, e in enumerate(vm) if e[0] & touched]
            il = [i for i, e in enumerate(lg) if e[0] & touched]
            w = []
            if iv:
                n = min(younger(vm, iv[-1], ctx), 63)
                w.append(f"vmcnt({n})")
                vm = vm[iv[-1] + 1:]
            if (smem & touched) or (il and smem):
                w.append("lgkmcnt(0)")
                lg = []; smem = set()
            elif il:
                n = min(younger(lg, il[-1], ctx), 15)
                w.append(f"lgkmcnt({n})")
                lg = lg[il[-1] + 1:]
            if w:
                t = "s_waitcnt " + " ".join(w)
                emit(t); hist.append((pos, Ins(t))); pos += 1; nwait += 1
            need = 0

            def req(n, pred):
                nonlocal need
                g = last_gap(pred)
                if g is not None and g < n:
                    need = max(need, n - g)

            rv, wv = vreg(ins.rd), vreg(ins.wr)
            rs = sreg(ins.rd)
            if ins.kind == "mfma":
                req(2, lambda p: p.kind == "valu" and vreg(p.wr) & rv)
                req(8, lambda p: p.kind == "mfma" and p.passes == 4 and p.wr & ins.srcab)
                req(12, lambda p: p.kind == "mfma" and p.passes == 8 and p.wr & ins.srcab)
                for ps, n in ((4, 6), (8, 10)):
                    req(n, lambda p, ps=ps: p.kind == "mfma" and p.passes == ps and (p.wr & ins.srcc)
                        and not (p.wr == ins.srcc and p.passes == ins.passes))
                for ps, n in ((4, 6), (8, 10)):
                    req(n, lambda p, ps=ps: p.kind == "mfma" and p.passes == ps and (p.wr & ins.wr)
                        and not (p.wr == ins.wr and p.wr == ins.srcc and p.passes == ins.passes))
            if ins.kind in ("valu", "ds", "vmem"):
                tv = rv | wv
                req(8, lambda p: p.kind == "mfma" and p.passes == 4 and p.wr & tv)
                req(12, lambda p: p.kind == "mfma" and p.passes == 8 and p.wr & tv)
            if ins.kind == "valu":
                req(3, lambda p: p.kind == "mfma" and p.passes == 4 and p.srcc & wv)
                req(7, lambda p: p.kind == "mfma" and p.passes == 8 and p.srcc & wv)
                base = re.sub(r"_(e32|e64)$", "", op)
                if base not in TRANS:
                    req(1, lambda p: p.kind == "valu" and re.sub(r"_(e32|e64)$", "", p.op) in TRANS and p.wr & (rv | wv))
                if "permlane" in op:
                    req(2, lambda p: p.kind == "valu" and vreg(p.wr) & rv)
                if op.startswith(("v_readfirstlane", "v_readlane")):
                    req(1, lambda p: p.kind == "valu" and vreg(p.wr) & rv)
                if op.startswith(("v_readlane", "v_writelane")):
                    req(4, lambda p: p.kind == "valu" and sreg(p.wr) & rs)
                req(2, lambda p: p.kind == "valu" and sreg(p.wr) & rs)
                if ins.dpp:
                    req(2, lambda p: p.kind == "valu" and vreg(p.wr) & rv)
                req(2, lambda p: p.kind == "vmem" and p.wide_store and vreg(p.R(0)) & wv)
            if ins.kind in ("ds", "vmem") and wv:
                req(1, lambda p: p.kind == "vmem" and p.wide_store and vreg(p.R(0)) & wv)
            if ins.kind == "vmem":
                req(5, lambda p: p.kind == "valu" and sreg(p.wr) & rs)
                if ins.lds_dma:
                    req(1, lambda p: p.kind == "salu" and ("s", "m0") in p.wr)
            if ins.kind == "ctl" and op in ("s_cbranch_vccz", "s_cbranch_vccnz"):
                req(1, lambda p: p.kind == "valu" and sreg(p.wr) & set(parse_regs("vcc")))
            while need > 0:
                k = min(need, 16)
                t = f"s_nop {k - 1}"
                emit(t); hist.append((pos, Ins("s_nop 0"))); pos += k; need -= k; nnop += 1
            emit(ins.text)
            hist.append((pos, ins))
            pos += 1
            if op == "s_nop":
                pos += int(ins.ops[0])
            if len(hist) > 64:
                hist = hist[-48:]
            if ins.cnt == "vm":
                vm.append((set(ins.wr), it[2], ctx))
            elif ins.cnt == "lgkm":
                lg.append((set(ins.wr), it[2], ctx))
            elif ins.cnt == "smem":
                smem |= ins.wr
        self.stats = dict(nops=nnop, waits=nwait, lines=len(out))
        return "\n".join(out) + "\n"
```

```python
import math
from gen import *

NEG = f32(-1e30)


def ar(b, n=4):
    return f"a[{b}:{b+n-1}]"


def vr(b, n=4):
    return f"v[{b}:{b+n-1}]"


QA, QB = 224, 228
SBUF = (64, 80, 96, 112)
NEGM = {"A": 128, "B": 144}
OACC = {"A": 160, "B": 176}
PBUF = {"A": 192, "B": 200}
CDIAG, CFAR, ANDD, ANDF = 208, 232, 32, 40
AK0, AV0 = 0, 72
L_KV = L_RING


def kfrag(b):
    return AK0 + b * 4


def vfrag(b, half):
    return AV0 + ((b & 1) * 2 + half) * 4


def attn_setup(g):
    a = g.a
    a.c("======== attention constants")
    a("v_and_b32 v3, 31, v1\nv_lshrrev_b32 v4, 5, v1\nv_lshlrev_b32 v4, 2, v4\nv_sub_u32 v3, v3, v4")
    a(f"v_mov_b32 v48, 0\nv_mov_b32 v49, {NEG}\nv_mov_b32 v50, 0xffff\nv_mov_b32 v51, 0xffff0000")
    for i in range(16):
        ci = (i & 3) + 8 * (i >> 2)
        sp = f"s[{72 + 2*(i % 4)}:{73 + 2*(i % 4)}]"
        a(f"v_cmp_le_i32 {sp}, {ci}, v3")
        a(f"v_mov_b32 v{OACC['A']+i}, 0\nv_mov_b32 v{OACC['B']+i}, 0")
        a(f"v_cndmask_b32 v{CDIAG+i}, v49, v48, {sp}\nv_cndmask_b32 v{CFAR+i}, v48, v49, {sp}")
        a(f"v_cndmask_b32 v{52 + (i & 1)}, v48, v{50 + (i & 1)}, {sp}")
        if i & 1:
            a(f"v_or_b32 v{ANDD + i//2}, v52, v53\nv_not_b32 v{ANDF + i//2}, v{ANDD + i//2}")
    for i in range(8):
        a(f"v_mov_b32 v{PBUF['A']+i}, 0\nv_mov_b32 v{PBUF['B']+i}, 0")
    for k in range(AV0, AV0 + 16):
        a(f"v_accvgpr_write_b32 a{k}, v48")
    a("v_mov_b32 v54, 0x3f803f80\ns_mov_b32 exec_lo, 0x00110000\ns_mov_b32 exec_hi, 0x00110000")
    for k in range(AV0, AV0 + 16):
        a(f"v_accvgpr_write_b32 a{k}, v54")
    a("s_mov_b64 exec, -1")


def warmup_text(srd, dst):
    return (f"s_lshl_b32 s72, s2, 2\ns_add_u32 s72, s72, {sWV}\ns_mul_i32 s73, s72, {43*128}\nv_lshlrev_b32 v7, 7, v1\n"
            f"s_cmp_eq_u32 {sL}, 0\ns_cselect_b32 s73, s73, 0x70000000\n"
            f"s_mov_b32 exec_lo, -1\ns_mov_b32 exec_hi, 0x7ff\n"
            f"buffer_load_dword {dst}, v7, {srd}, s73 offen\ns_mov_b64 exec, -1")


def warmup(g, srd, dst):
    g.a(warmup_text(srd, dst))


def team_check(g):
    a = g.a
    top, ok = g.lab("tc"), g.lab("tco")
    a(f"s_lshl_b32 s72, {sR}, 7\ns_add_u32 s72, s72, {WS_XC}\nv_lshlrev_b32 v3, 4, v1\ns_mov_b32 {sCNT}, 0\ns_mov_b64 exec, 0xff")
    a.label(top, reset=False)
    a(f"buffer_load_dwordx4 v[24:27], v3, {SRD_WS}, s72 offen sc1\ns_waitcnt vmcnt(0)")
    a(f"v_cmp_ne_u64 vcc, {sNP}, v[26:27]\ns_cbranch_vccz {ok}")
    a(f"s_add_u32 {sCNT}, {sCNT}, 1\ns_cmp_lt_u32 {sCNT}, {POLL_LIMIT}\ns_cbranch_scc1 {top}\ns_branch L_fail")
    a.label(ok, reset=False)
    a(f"v_cmp_ne_u32 vcc, s1, v24\ns_cmp_eq_u64 vcc, 0\ns_cselect_b32 {sFAST}, 1, 0\ns_mov_b64 exec, -1")


def attn(g):
    a = g.a
    a.c("======== attention")
    a(f"s_sub_u32 s72, {sR}, 4\nv_add_u32 v8, s72, v1\nv_cmp_le_i32 s[74:75], 0, v8")
    g.wg_of("v9", "v8", sCQ)
    g.vflag("v9", PH_KV)
    a("s_and_b64 s[74:75], s[74:75], 0xf")
    a(f"s_lshl_b32 s76, {sR}, 1\ns_add_u32 s76, s76, {sTB}\ns_sub_u32 s77, 8, s76\ns_max_i32 s77, s77, 0")
    a(f"s_lshl_b32 s78, {sCQ}, 1\ns_add_u32 s78, s78, {sP}\ns_lshl_b32 s78, s78, 18\ns_lshl_b32 s79, {sL}, 22")
    a(f"s_add_u32 s78, s78, s79\ns_add_u32 s78, s78, {WS_KV}")
    a(f"s_mul_i32 s79, {sTB}, 5\ns_lshl_b32 s80, {sR}, 1\ns_add_u32 s80, s80, s79\ns_sub_u32 s80, s80, 8")
    for i in range(5):
        a(f"s_add_i32 s{81+i}, s80, {i}\ns_max_i32 s{81+i}, s{81+i}, 0\ns_lshl_b32 s{81+i}, s{81+i}, 12\ns_add_u32 s{81+i}, s{81+i}, s78")
    a(f"s_mul_i32 s86, {sP}, 40960\ns_mul_i32 s87, {sTB}, 20480\ns_add_u32 s87, s87, s86\ns_add_u32 s87, s87, {L_KV}")
    a(f"s_lshl_b32 s88, {sTB}, 12\ns_add_u32 s88, s88, s86\ns_add_u32 s88, s88, {L_KV}\nv_add_u32 v10, s88, v2")
    a("v_and_b32 v8, 15, v1\nv_lshlrev_b32 v8, 4, v8\nv_lshrrev_b32 v7, 5, v1\nv_lshl_add_u32 v8, v7, 8, v8\nv_add_u32 v11, s88, v8")
    a("s_mov_b32 s90, 0xffff\ns_mov_b32 s91, 0xffff")
    a("v_bfe_u32 v20, v1, 4, 1\nv_lshlrev_b32 v20, 14, v20\nv_and_b32 v7, 15, v1\nv_lshl_add_u32 v20, v7, 4, v20")
    a("v_lshrrev_b32 v7, 5, v1\nv_lshl_add_u32 v20, v7, 8, v20")
    a(f"s_lshl_b32 s72, {sR}, 2\ns_lshl_b32 s73, {sTB}, 1\ns_add_u32 s72, s72, s73\ns_lshl_b32 s72, s72, 4")
    a(f"s_lshl_b32 s73, {sCQ}, 1\ns_add_u32 s72, s72, s73\ns_add_u32 s72, s72, {sP}\ns_lshl_b32 s72, s72, 10")
    a(f"s_lshl_b32 s73, {sL}, 21\ns_add_u32 s72, s72, s73\ns_add_u32 s89, s72, {WS_OF}")
    a(f"buffer_load_dword v21, v20, {SRD_WS}, s89 offen sc1\nbuffer_load_dword v23, v20, {SRD_WS}, s89 offen offset:512 sc1")
    a("s_mov_b64 s[76:77], s[74:75]")
    l0_only(g, "l0p", lambda: (team_check(g), p1_setup(g)))
    wo = g.wo_dma()
    g.poll("v9", "s[76:77]")
    a(f"s_lshl_b32 s76, {sR}, 1\ns_add_u32 s76, s76, {sTB}\ns_sub_u32 s77, 8, s76\ns_max_i32 s77, s77, 0")
    g.stamp(6)
    for part, tag in ((0, "Kd"), (1024, "Vd")):
        for i in range(5):
            for h in range(2):
                a(f"s_add_u32 m0, s87, {i*4096 + h*2048 + part}\ns_add_u32 s72, s{81+i}, {h*2048 + part}")
                a(f"buffer_load_dwordx4 v2, {SRD_WS}, s72 offen sc1 lds", tag=tag)
    heads = ("A", "B")
    q = {"A": QA, "B": QB}
    mx = {"A": (48, 49), "B": (50, 51)}

    def kread(b):
        t, h = b >> 1, b & 1
        return f"ds_read_b128 {ar(kfrag(b))}, v10 offset:{t*4096 + h*2048}"

    def vread(b, half):
        t, h = b >> 1, b & 1
        return f"ds_read_b128 {ar(vfrag(b, half))}, v11 offset:{t*4096 + h*2048 + 1024 + half*512}"

    def qk(b, c):
        return f"v_mfma_f32_32x32x16_bf16 {vr(SBUF[b & 3],16)}, {ar(kfrag(b))}, {vr(q[heads[b & 1]])}, {c}"

    def cmask(t):
        return vr(CFAR, 16) if t == 0 else vr(CDIAG, 16) if t == 8 else "0"

    for h in heads:
        a(f"v_mov_b32 v{mx[h][0]}, {NEG}\nv_mov_b32 v{mx[h][1]}, {NEG}")
    a.wait_tag("Kd")
    a("s_barrier")
    a.c("pass 1: true row maximum over the masked window")
    for b in range(4):
        a(kread(b))
    a(qk(0, cmask(0)))
    a(kread(4))
    a(qk(1, cmask(0)))
    for b in range(18):
        t, s_, h = b >> 1, SBUF[b & 3], heads[b & 1]
        if t < 8 and b % 2 == 0:
            stub, back = g.lab("p1s"), g.lab("p1b")
            always = [x for bb in (b, b + 1) for x in ([kread(bb + 5)] if bb + 5 < 18 else []) + ([qk(bb + 2, cmask((bb + 2) >> 1))] if bb + 2 < 18 else [])]
            a(f"s_cmp_gt_u32 s77, {t}\ns_cbranch_scc1 {stub}")
        if b + 5 < 18:
            a(kread(b + 5))
        if b + 2 < 18:
            a(qk(b + 2, cmask((b + 2) >> 1)))
        for i in range(8):
            m = mx[h][i & 1]
            a(f"v_max3_f32 v{m}, v{m}, v{s_+2*i}, v{s_+2*i+1}")
        if t < 8 and b % 2 == 1:
            a.label(back, reset=False)
            g.stubs.append((stub, back, ["s_waitcnt lgkmcnt(0)"] + [y for x in always for y in (x, "s_waitcnt lgkmcnt(0)")]))
    for h in heads:
        m0, m1 = mx[h]
        a(f"v_max_f32 v{m0}, v{m0}, v{m1}\nv_mov_b32 v{m1}, v{m0}")
    for h in heads:
        m0, m1 = mx[h]
        a(f"v_permlane32_swap_b32 v{m0}, v{m1}")
    for h in heads:
        m0, m1 = mx[h]
        a(f"v_max_f32 v{m0}, v{m0}, v{m1}\nv_xor_b32 v{m0}, 0x80000000, v{m0}")
    for i in range(16):
        a(f"v_mov_b32 v{NEGM['A']+i}, v{mx['A'][0]}")
    a(qk(0, vr(NEGM["A"], 16)))
    for i in range(16):
        a(f"v_mov_b32 v{NEGM['B']+i}, v{mx['B'][0]}")
    a.wait_tag("Vd")
    a("s_barrier")
    l0_only(g, "l0p", lambda: p1_loads(g))
    g.stamp(7)
    a.c("pass 2: P = exp2(S - m), O += V^T P; block b exponentiates S_b, starts S_{b+1} and finishes block b-1")

    def s2(b):
        return SBUF[b & 1]

    def qk2(b):
        h = heads[b & 1]
        return f"v_mfma_f32_32x32x16_bf16 {vr(s2(b),16)}, {ar(kfrag(b))}, {vr(q[h])}, {vr(NEGM[h],16)}"

    def pv(b, half):
        h = heads[b & 1]
        o, p = OACC[h], PBUF[h]
        return f"v_mfma_f32_32x32x16_bf16 {vr(o,16)}, {ar(vfrag(b, half))}, {vr(p+4*half)}, {vr(o,16)}"

    for b in range(18):
        t, h = b >> 1, heads[b & 1]
        nxt = [qk2(b + 1)] if b + 1 < 18 else []
        prv = [pv(b - 1, 0), pv(b - 1, 1)] if b >= 1 else []
        vl = ["s_mov_b64 exec, s[90:91]\n" + vread(b, 0) + "\n" + vread(b, 1) + "\ns_mov_b64 exec, -1"]
        if t < 8 and b % 2 == 0:
            stub, back = g.lab("sk"), g.lab("bk")
            a(f"s_cmp_gt_u32 s77, {t}\ns_cbranch_scc1 {stub}")
        s_, p = s2(b), PBUF[h]
        wd = [wo(b)] if b < 16 else []
        extra = {1: nxt[:1], 4: prv[:1], 7: wd, 9: prv[1:2], 11: vl}
        for i in range(16):
            a(f"v_exp_f32 v{s_+i}, v{s_+i}")
            if i >= 2 and i % 2 == 0:
                k = i // 2 - 1
                a(f"v_cvt_pk_bf16_f32 v{p+k}, v{s_+2*k}, v{s_+2*k+1}")
            for x in extra.get(i, []):
                a(x)
        a(f"s_nop 0\nv_cvt_pk_bf16_f32 v{p+7}, v{s_+14}, v{s_+15}")
        if t in (0, 8):
            msk = ANDF if t == 0 else ANDD
            for k in range(8):
                a(f"v_and_b32 v{p+k}, v{msk+k}, v{p+k}")
        if t < 8 and b % 2 == 1:
            a.label(back, reset=False)
            g.stubs.append((stub, back, nxt + [wo(b - 1), wo(b)]))
    a(pv(17, 0)); a(pv(17, 1))
    g.stamp(8)
    for hi, h in enumerate(heads):
        o = OACC[h]
        a(f"v_rcp_f32 v52, v{o+8}")
        for i in range(8):
            a(f"v_mul_f32 v{o+i}, v52, v{o+i}")
        for k in range(4):
            a(f"v_cvt_pk_bf16_f32 v{o+k}, v{o+2*k}, v{o+2*k+1}")

    def ost(m):
        for hi, h in enumerate(heads):
            a(f"buffer_store_dwordx4 {vr(OACC[h])}, v20, {SRD_WS}, s89 offen offset:{hi*512} {m}", tag="Ost")
    g.dual(ost)


L_STG = L_RING + 10240
L_STG2 = L_RING
V_W1D, V_W1R, V_W2D, V_W2R = 52, 56, 40, 42


PA1 = 96
V_P1 = 12


def p1_setup(g):
    a = g.a
    a("s_lshr_b32 s72, s2, 2\ns_and_b32 s73, s2, 3")
    a("s_mul_i32 s74, s73, 7\ns_min_u32 s75, s73, 1\ns_add_u32 s74, s74, s75")
    a("s_cmp_eq_u32 s73, 0\ns_cselect_b32 s75, 8, 7")
    a(f"s_mul_i32 s101, s72, {32*2752}\ns_mul_i32 s73, s74, 96\ns_add_u32 s101, s101, s73\ns_mul_i32 s75, s75, 6")
    a("s_mov_b32 s72, 1311\ns_mov_b32 s73, 2752")
    for n in range(7):
        a(f"s_lshl_b32 s74, {sWV}, 6\ns_add_u32 s74, s74, {256*n}\nv_add_u32 v3, s74, v1")
        a("v_mul_lo_u32 v4, v3, s72\nv_lshrrev_b32 v4, 16, v4\nv_mul_u32_u24 v5, 50, v4\nv_sub_u32 v5, v3, v5")
        a("v_mul_lo_u32 v6, v4, s73\nv_lshl_add_u32 v6, v5, 4, v6")
        a("v_cmp_gt_u32 vcc, s75, v5\nv_cmp_gt_u32 s[78:79], 32, v4\ns_and_b64 vcc, vcc, s[78:79]")
        a(f"v_mov_b32 v5, 0x7ff00000\nv_cndmask_b32 v{V_P1+n}, v5, v6, vcc")


def p1_loads(g):
    a = g.a
    for n in range(7):
        a(f"buffer_load_dwordx4 {ar(PA1+4*n)}, v{V_P1+n}, {SRD_W1}, s101 offen")


def p1_finish(g):
    a = g.a
    L1 = L_RING
    a("s_lshr_b32 s72, s2, 2\ns_and_b32 s73, s2, 3")
    a("s_mul_i32 s74, s73, 7\ns_min_u32 s75, s73, 1\ns_add_u32 s74, s74, s75")
    a("s_cmp_eq_u32 s73, 0\ns_cselect_b32 s75, 8, 7")
    a(f"s_lshl_b32 s80, {sWV}, 10\ns_add_u32 s80, s80, {L1}\nv_add_u32 v64, s80, v2")
    for n in range(7):
        a(f"ds_write_b128 v64, {ar(PA1+4*n)} offset:{n*4096}")
    a("v_lshrrev_b32 v65, 4, v1\nv_lshlrev_b32 v65, 3, v65\nv_bfe_u32 v66, v1, 2, 2\nv_add_u32 v65, v65, v66\nv_and_b32 v66, 3, v1")
    a(f"v_mul_u32_u24 v67, 800, v65\nv_lshl_add_u32 v67, v66, 3, v67\ns_lshl_b32 s80, {sWV}, 5\ns_add_u32 s80, s80, {L1}\nv_add_u32 v67, s80, v67")
    a("s_waitcnt lgkmcnt(0)\ns_barrier")
    for n in range(6):
        for rd in range(2):
            a(f"ds_read_b64_tr_b16 v[{72+4*n+2*rd}:{73+4*n+2*rd}], v67 offset:{128*n + rd*3200}")
    for n in range(6):
        a(f"s_add_u32 s80, {sWV}, {4*n}\ns_mul_i32 s81, s80, 43\ns_lshr_b32 s81, s81, 7\ns_mul_i32 s82, s81, 3\ns_sub_u32 s82, s80, s82")
        a("s_mul_i32 s83, s81, 6\ns_mul_i32 s85, s75, 6\ns_cmp_lt_u32 s83, s85\ns_cselect_b32 s85, 0, 0x70000000")
        a("s_add_u32 s81, s81, s74\ns_lshl_b32 s81, s81, 6\ns_add_u32 s81, s81, s72\ns_mul_i32 s81, s81, 3\ns_add_u32 s81, s81, s82")
        a(f"s_lshl_b32 s81, s81, 10\ns_add_u32 s81, s81, {WS_W1P}\ns_or_b32 s81, s81, s85")
        a(f"buffer_store_dwordx4 {vr(72+4*n)}, v2, {SRD_WS}, s81 offen sc1")


def early_w1(g, i0, i1):
    a = g.a
    skip = g.lab("e1")
    a(f"s_cmp_eq_u32 {sL}, 0\ns_cselect_b32 s72, 0, {sM1}\ns_cmp_eq_u32 s72, 0\ns_cbranch_scc1 {skip}")
    with a.cond("e1"):
        w1_loads(g, i0, i1)
    a.label(skip, reset=False)


def l0_only(g, name, fn):
    a = g.a
    skip = g.lab("l0s")
    a(f"s_cmp_eq_u32 {sL}, 0\ns_cbranch_scc0 {skip}")
    with a.cond(name):
        fn()
    a.label(skip, reset=False)


def p1_check(g):
    a = g.a
    a(f"s_cmp_ge_u32 {sJ1}, 8\ns_cselect_b32 s72, 1, 0\ns_cmp_ge_u32 {sJ1}, 15\ns_addc_u32 s72, s72, 0")
    a(f"s_cmp_ge_u32 {sJ1}, 22\ns_addc_u32 s72, s72, 0")
    a(f"s_lshl_b32 s73, {sWV}, 4\nv_add_u32 v9, s73, v1\nv_lshl_add_u32 v9, v9, 2, s72")
    a(f"v_lshlrev_b32 v9, 7, v9\nv_add_u32 v9, {WS_FLAG + PH_P*2*256*128}, v9")
    g.poll("v9", "0xffff")


def w1_loads(g, i0, i1):
    a = g.a
    a(f"s_lshl_b32 s72, {sJ1}, 6\ns_lshl_b32 s73, {sWV}, 4\ns_add_u32 s72, s72, s73\ns_mul_i32 s72, s72, 3072\ns_add_u32 s72, s72, {WS_W1P}")
    for i in range(i0, i1):
        st, ft = divmod(i, 3)
        a(f"s_add_u32 s73, s72, {st*3072}")
        a(f"buffer_load_dwordx4 {ar(4*i)}, v2, {SRD_WS}, s73 offen offset:{ft*1024} sc1")


def m1_only(g, fn):
    a = g.a
    skip = g.lab("m1s")
    a(f"s_cmp_eq_u32 {sM1}, 0\ns_cbranch_scc1 {skip}")
    with a.cond("m1"):
        fn()
    a.label(skip, reset=False)


def w2_setup(g):
    a = g.a
    a("v_lshrrev_b32 v3, 3, v1\nv_lshlrev_b32 v3, 12, v3\nv_bfe_u32 v4, v1, 1, 2\nv_bfe_u32 v5, v1, 4, 1\nv_and_b32 v6, 1, v1")
    for e in range(2):
        a(f"v_or_b32 v7, {2*e}, v5\nv_xor_b32 v7, v4, v7\nv_lshl_add_u32 v7, v7, 1, v6\nv_lshl_add_u32 v{V_W2D+e}, v7, 4, v3")
    a("v_lshrrev_b32 v3, 4, v1\nv_lshlrev_b32 v4, 3, v3\nv_bfe_u32 v5, v1, 2, 2\nv_add_u32 v4, v4, v5\nv_lshlrev_b32 v4, 7, v4")
    a("v_and_b32 v5, 3, v1\nv_lshl_add_u32 v4, v5, 3, v4\nv_and_b32 v3, 1, v3\nv_lshlrev_b32 v3, 1, v3\nv_bfe_u32 v5, v1, 3, 1\nv_or_b32 v3, v3, v5")
    for k in range(4):
        a(f"v_xor_b32 v5, {k}, v3\nv_lshl_add_u32 v{V_W2R+k}, v5, 5, v4")
    a(f"s_mul_i32 s89, {sWV}, {11*32*4096}\ns_lshl_b32 s88, {sR}, 7\ns_add_u32 s89, s89, s88")


def w2_lds(st):
    if st < 5:
        return ("s86", st * 4096)
    if st < 9:
        return ("s87", (st - 5) * 4096)
    return ("s86", (st - 9) * 4096)


def w2_bases(g):
    g.a(f"s_mul_i32 s86, {sWV}, 20480\ns_add_u32 s86, s86, {L_STG2}\ns_lshl_b32 s87, {sWV}, 14\ns_add_u32 s87, s87, {L_X}")


def w2_dma_text(st, m):
    base, off = w2_lds(st)
    return (f"s_add_u32 m0, {base}, {off + m*1024}\ns_add_u32 s88, s89, {(st*32 + 8*m)*4096}",
            f"buffer_load_dwordx4 v{V_W2D + (m & 1)}, {SRD_W2P}, s88 offen lds")


def w2_dma(g, st, m, uncond=False):
    pre, ld = w2_dma_text(st, m)
    g.a(pre)
    (g.a.uncond if uncond else g.a)(ld, tag=f"D2_{0 if st < 5 else 5 if st < 9 else 9}")
    return pre + "\n" + ld


def w2_tr(g, s0, s1):
    a = g.a
    base, _ = w2_lds(s0)
    for k in range(4):
        a(f"v_add_u32 v{32+k}, {base}, v{V_W2R+k}")
    for st in range(s0, s1):
        _, off = w2_lds(st)
        for k in range(4):
            for rd in range(2):
                b = (st*4 + k) * 4 + 2*rd
                a(f"ds_read_b64_tr_b16 a[{b}:{b+1}], v{32+k} offset:{off + rd*512}")


def o_flags(g):
    a = g.a
    a(f"s_lshl_b32 s72, {sL}, 5\ns_add_u32 s72, s72, {sR}\ns_lshl_b32 s72, s72, 3\ns_add_u32 s72, s72, {sCQ}\ns_lshl_b32 s72, s72, 10")
    a(f"s_lshl_b32 s73, {sWV}, 8\ns_add_u32 s72, s72, s73\ns_add_u32 s72, s72, {WS_ST}")
    a(f"s_mov_b64 exec, 0xffff\nbuffer_load_dword v21, v2, {SRD_WS}, s72 offen sc1\ns_mov_b64 exec, -1")
    a(f"v_mov_b32 v8, {sR}\nv_and_b32 v9, 3, v8\nv_lshlrev_b32 v9, 3, v9\nv_add_u32 v9, v1, v9\nv_lshlrev_b32 v9, 3, v9")
    a("v_lshrrev_b32 v7, 2, v8\nv_add_u32 v9, v9, v7")
    g.vflag("v9", PH_O)


def oproj(g):
    a = g.a
    a.c("======== output projection, residual, double LayerNorm")
    g.poll("v9", "0xff")
    a("s_waitcnt vmcnt(0)")
    lp = g.lab("pp")
    a("s_barrier")
    a(f"s_or_b32 s72, {sL}, {sWV}\ns_cmp_eq_u32 s72, 0\ns_cbranch_scc0 {lp}")
    with a.cond(lp):
        a(f"s_lshl_b32 s70, s2, 7\ns_add_u32 s70, s70, {WS_FLAG + PH_P*2*256*128}")
        a(f"v_mov_b32 v4, {sN}\nv_mov_b32 v5, {sNN}\nv_mov_b32 v6, s70\ns_mov_b64 exec, 1")
        a(f"buffer_store_dwordx2 v[4:5], v6, {SRD_WS}, 0 offen sc1")
        a("s_mov_b64 exec, -1")
    a.label(lp, reset=False)
    g.stamp(10)
    OFR, WFR, ACC = 64, 128, 160
    a(f"s_lshl_b32 s72, {sR}, 2\ns_add_u32 s72, s72, {sWV}\ns_lshl_b32 s72, s72, 14\ns_lshl_b32 s73, {sL}, 21")
    a(f"s_add_u32 s72, s72, s73\ns_add_u32 s72, s72, {WS_OF}")
    def oload(ks):
        a(f"s_add_u32 s73, s72, {(ks >> 2)*4096}")
        a(f"buffer_load_dwordx4 {vr(OFR+4*ks)}, v2, {SRD_WS}, s73 offen offset:{(ks & 3)*1024} sc1")
    OD = 16
    for ks in range(OD):
        oload(ks)
    g.stamp(25)
    a("v_lshrrev_b32 v3, 5, v1\nv_lshlrev_b32 v3, 4, v3\nv_bfe_u32 v4, v1, 4, 1\nv_lshl_add_u32 v3, v4, 2, v3")
    a("v_bfe_u32 v5, v1, 2, 2\nv_add_u32 v3, v3, v5\nv_bfe_u32 v5, v3, 1, 2\nv_and_b32 v6, 3, v1\nv_lshlrev_b32 v6, 3, v6")
    a("v_lshl_add_u32 v6, v3, 7, v6")
    for nt in range(4):
        a(f"v_xor_b32 v7, {nt}, v5\nv_lshl_add_u32 v{10+nt}, v7, 5, v6")

    def wreads(ks):
        for nt in range(4):
            b = WFR + (ks & 1) * 16 + nt * 4
            for rd in range(2):
                a(f"ds_read_b64_tr_b16 v[{b+2*rd}:{b+2*rd+1}], v{10+nt} offset:{L_X + ks*4096 + rd*1024}")
    wreads(0)
    for ks in range(16):
        if ks < 15:
            wreads(ks + 1)
        if ks + OD < 16:
            oload(ks + OD)
        for nt in range(4):
            b = WFR + (ks & 1) * 16 + nt * 4
            c = "0" if ks == 0 else vr(ACC + 4*nt)
            a(f"v_mfma_f32_16x16x32_bf16 {vr(ACC+4*nt)}, {vr(b)}, {vr(OFR+4*ks)}, {c}")
        if ks == 0:
            g.stamp(28)
        if ks == 7:
            g.stamp(29)
    g.stamp(11)
    a(f"v_and_b32 v3, 15, v1\ns_lshl_b32 s72, {sWV}, 4\nv_add_u32 v14, s72, v3\nv_lshrrev_b32 v4, 4, v1")
    a(f"v_mul_u32_u24 v5, 144, v14\nv_lshl_add_u32 v5, v4, 3, v5\nv_add_u32 v15, {L_R}, v5")
    for nt in range(4):
        a(f"ds_read_b64 v[{176+2*nt}:{177+2*nt}], v15 offset:{32*nt}")
    X1 = 192
    for nt in range(4):
        for k in range(2):
            a(f"v_lshlrev_b32 v{X1+4*nt+2*k}, 16, v{176+2*nt+k}\nv_and_b32 v{X1+4*nt+2*k+1}, 0xffff0000, v{176+2*nt+k}")
    for i in range(16):
        a(f"v_add_f32 v{X1+i}, v{X1+i}, v{ACC+i}")
    for k in range(8):
        a(f"v_cvt_pk_bf16_f32 v{176+k}, v{X1+2*k}, v{X1+2*k+1}")
    for nt in range(4):
        a(f"ds_write_b64 v15, v[{176+2*nt}:{177+2*nt}] offset:{32*nt}")
    a(f"v_add_f32 v16, v{X1}, v{X1+1}\nv_mul_f32 v17, v{X1}, v{X1}\nv_fmac_f32 v17, v{X1+1}, v{X1+1}")
    for i in range(2, 16):
        a(f"v_add_f32 v16, v16, v{X1+i}\nv_fmac_f32 v17, v{X1+i}, v{X1+i}")

    def fold_groups(r0, r1):
        for sw in ("16", "32"):
            a(f"v_mov_b32 v20, v{r0}\nv_mov_b32 v21, v{r1}")
            a(f"v_permlane{sw}_swap_b32 v{r0}, v20\nv_permlane{sw}_swap_b32 v{r1}, v21")
            a(f"v_add_f32 v{r0}, v{r0}, v20\nv_add_f32 v{r1}, v{r1}, v21")
    fold_groups(16, 17)
    a(f"v_mov_b32 v18, {sN}\nv_mov_b32 v19, {sNN}")
    a(f"s_lshl_b32 s72, {sL}, 5\ns_add_u32 s72, s72, {sR}\ns_lshl_b32 s72, s72, 13\ns_add_u32 s72, s72, {WS_ST}")
    a(f"s_lshl_b32 s73, {sCQ}, 10\ns_add_u32 s73, s73, s72\nv_lshlrev_b32 v22, 4, v14")
    a("s_mov_b64 exec, 0xffff")
    g.dual(lambda m: a(f"buffer_store_dwordx4 v[16:19], v22, {SRD_WS}, s73 offen {m}"))
    a("s_mov_b64 exec, -1")
    g.stamp(26)
    early_w1(g, 16, 32)
    g.stamp(27)
    a(f"s_lshl_b32 s72, {sL}, 5\ns_add_u32 s72, s72, {sR}\ns_lshl_b32 s72, s72, 13\ns_add_u32 s72, s72, {WS_ST}")
    a("v_lshl_add_u32 v23, v4, 11, v22\ns_mov_b32 s100, 0")
    top, ok = g.lab("stp"), g.lab("sto")
    a.label(top, reset=False)
    a(f"buffer_load_dwordx4 v[24:27], v23, {SRD_WS}, s72 offen sc1")
    a(f"buffer_load_dwordx4 v[28:31], v23, {SRD_WS}, s72 offen offset:1024 sc1")
    a("s_waitcnt vmcnt(0)")
    a(f"v_cmp_ne_u64 vcc, {sNP}, v[26:27]\nv_cmp_ne_u64 s[74:75], {sNP}, v[30:31]\ns_or_b64 vcc, vcc, s[74:75]")
    a(f"s_cbranch_vccz {ok}")
    a(f"s_add_u32 s100, s100, 1\ns_cmp_lt_u32 s100, {POLL_LIMIT}\ns_cbranch_scc1 {top}\ns_branch L_fail")
    a.label(ok, reset=False)
    g.stamp(12)
    a("v_add_f32 v16, v24, v28\nv_add_f32 v17, v25, v29")
    fold_groups(16, 17)
    a(f"v_mul_f32 v16, {f32(1/512)}, v16\nv_mul_f32 v17, {f32(1/512)}, v17\nv_fma_f32 v17, -v16, v16, v17\nv_max_f32 v17, 0, v17")
    a(f"v_add_f32 v18, {f32(1e-5)}, v17\nv_rsq_f32 v18, v18")
    a(f"v_mul_f32 v19, v18, v18\nv_mul_f32 v19, v19, v17\nv_add_f32 v19, {f32(1e-5)}, v19\nv_rsq_f32 v19, v19\nv_mul_f32 v18, v18, v19")
    for i in range(16):
        a(f"v_sub_f32 v{X1+i}, v{X1+i}, v16")
    for i in range(16):
        a(f"v_mul_f32 v{X1+i}, v18, v{X1+i}")
    for k in range(8):
        a(f"v_cvt_pk_bf16_f32 v{176+k}, v{X1+2*k}, v{X1+2*k+1}")
    HT = L_RING
    a(f"v_mul_u32_u24 v5, 160, v14\nv_lshl_add_u32 v5, v4, 3, v5\nv_add_u32 v5, {HT}, v5")
    for nt in range(4):
        a(f"ds_write_b64 v5, v[{176+2*nt}:{177+2*nt}] offset:{32*nt}")
    a("v_lshrrev_b32 v3, 4, v1\nv_lshlrev_b32 v3, 3, v3\nv_bfe_u32 v6, v1, 2, 2\nv_add_u32 v3, v3, v6")
    a(f"s_lshl_b32 s72, {sTB}, 5\nv_add_u32 v3, s72, v3\nv_mul_u32_u24 v3, 160, v3\nv_and_b32 v6, 3, v1\nv_lshl_add_u32 v3, v6, 3, v3")
    a(f"s_lshl_b32 s72, {sP}, 6\ns_add_u32 s72, s72, {HT}\nv_add_u32 v3, s72, v3")
    a("s_waitcnt lgkmcnt(0)\ns_barrier")
    for e in range(2):
        for rd in range(2):
            a(f"ds_read_b64_tr_b16 v[{184+4*e+2*rd}:{185+4*e+2*rd}], v3 offset:{32*e + rd*640}")
    a(f"s_lshl_b32 s72, {sCQ}, 6\ns_lshl_b32 s73, {sR}, 1\ns_add_u32 s72, s72, s73\ns_add_u32 s72, s72, {sTB}\ns_lshl_b32 s72, s72, 2")
    a(f"s_lshl_b32 s73, {sP}, 1\ns_add_u32 s72, s72, s73\ns_lshl_b32 s72, s72, 10\ns_lshl_b32 s73, {sL}, 21\ns_add_u32 s72, s72, s73\ns_add_u32 s72, s72, {WS_H}")
    for e in range(2):
        a(f"buffer_store_dwordx4 {vr(184+4*e)}, v2, {SRD_WS}, s72 offen offset:{e*1024} sc1", tag="Hst")


def mix1(g):
    a = g.a
    a.c("======== token mixing 1: u = gelu(h^T W1 + b1)")
    skip, other = g.lab("m1"), g.lab("m1o")
    w2_setup(g)
    w2_bases(g)
    a(f"s_cmp_eq_u32 {sM1}, 0\ns_cbranch_scc1 {other}")
    w2_text = []

    def w2(i):
        return w2_dma(g, i >> 2, i & 3, uncond=True)
    with a.cond("m1"):
        g.srd(32, P_B1, 2752)
        a(f"s_mul_i32 s72, {sJ1}, 96\nv_and_b32 v3, 1, v1\nv_lshlrev_b32 v3, 3, v3\ns_mul_i32 s73, {sWV}, 3")
        for i in range(3):
            a(f"s_add_u32 s74, s73, {i}\ns_lshr_b32 s74, s74, 1\ns_lshl_b32 s74, s74, 4\ns_add_u32 s74, s74, s72")
            a(f"buffer_load_dwordx2 v[{14+2*i}:{15+2*i}], v3, {SRD_T}, s74 offen")
        a(f"s_lshl_b32 s73, {sWV}, 3\nv_add_u32 v8, s73, v1")
        g.wg_of("v9", "v8", sC1)
        g.vflag("v9", PH_H)
        g.poll("v9", "0xff")
        g.stamp(14)
        HB, NS, ACC, HD = 64, 24, 192, 15
        a(f"s_lshl_b32 s72, {sC1}, 6\ns_lshl_b32 s73, {sWV}, 4\ns_add_u32 s72, s72, s73\ns_lshl_b32 s72, s72, 12")
        a(f"s_lshl_b32 s73, {sL}, 21\ns_add_u32 s72, s72, s73\ns_add_u32 s72, s72, {WS_H}")
        nload = [0]

        def hload():
            n = nload[0]
            a(f"buffer_load_dwordx4 {vr(HB + 4*(n % NS))}, v2, {SRD_WS}, s72 offen offset:{(n & 3)*1024} sc1")
            if n & 3 == 3:
                a("s_add_u32 s72, s72, 4096")
            nload[0] += 1
        for _ in range(HD):
            hload()
        for st in range(16):
            for dt in range(4):
                hb = HB + 4 * ((st*4 + dt) % NS)
                for ft in range(3):
                    acc = ACC + (ft*4 + dt) * 4
                    c = "0" if st == 0 else ar(acc)
                    a(f"v_mfma_f32_16x16x32_bf16 {ar(acc)}, {ar((st*3+ft)*4)}, {vr(hb)}, {c}")
                if nload[0] < 64:
                    hload()
                    if nload[0] == 64:
                        warmup(g, SRD_W2P, "v60")
        g.stamp(15)
        a(f"v_and_b32 v3, 15, v1\nv_mul_u32_u24 v3, 208, v3\nv_lshrrev_b32 v4, 4, v1\nv_lshl_add_u32 v3, v4, 4, v3")
        a(f"s_mul_i32 s72, {sWV}, 13312\nv_add_u32 v3, s72, v3")
        nw2 = 0
        for dt in range(4):
            for ft in range(3):
                a(f"ds_write_b128 v3, {ar(ACC + (ft*4+dt)*4)} offset:{L_X + dt*16*208 + ft*64}")
        a("s_waitcnt lgkmcnt(0)\ns_barrier")
        sk3 = g.lab("ep")
        a(f"s_or_b32 s72, s2, {sL}\ns_or_b32 s72, s72, {sWV}\ns_cmp_eq_u32 s72, 0\ns_cbranch_scc0 {sk3}")
        with a.cond(sk3):
            a(f"v_mov_b32 v4, {sN}\nv_mov_b32 v5, {WS_EPOCH}\ns_mov_b64 exec, 1")
            a(f"buffer_store_dword v4, v5, {SRD_WS}, 0 offen sc1")
            a("s_mov_b64 exec, -1")
        a.label(sk3, reset=False)
        c0 = -2 * math.log2(math.e) * math.sqrt(2 / math.pi)
        c1 = c0 * 0.044715
        a("v_lshrrev_b32 v3, 1, v1\nv_mul_u32_u24 v10, 208, v3\nv_and_b32 v4, 1, v1\nv_lshl_add_u32 v10, v4, 4, v10")
        a("v_lshrrev_b32 v5, 5, v1\nv_lshlrev_b32 v11, 10, v5\nv_and_b32 v3, 15, v3\nv_lshl_add_u32 v11, v3, 4, v11\nv_lshl_add_u32 v11, v4, 3, v11")
        a(f"s_mul_i32 s76, {sWV}, 3\ns_mul_i32 s77, {sC1}, {UC}\ns_lshl_b32 s73, {sL}, 21\ns_add_u32 s77, s77, s73\ns_add_u32 s77, s77, {WS_U}")
        a(f"s_mov_b32 s84, {f32(c1)}\ns_mov_b32 s85, {f32(c0)}")
        for i in range(3):
            B = 64 + 16 * i
            a(f"s_add_u32 s72, s76, {i}\ns_lshr_b32 s73, s72, 1\ns_and_b32 s72, s72, 1")
            a(f"s_mul_i32 s74, s72, {32*208}\ns_lshl_b32 s75, s73, 5\ns_add_u32 s74, s74, s75\nv_add_u32 v12, s74, v10")
            for k in range(4):
                a(f"ds_read_b128 {vr(B + 4*k)}, v12 offset:{L_X + k*13312}")
            a(f"s_mul_i32 s74, {sJ1}, 6\ns_add_u32 s74, s74, s73\ns_lshr_b32 s75, s74, 2\ns_and_b32 s78, s74, 3")
            a(f"s_lshl_b32 s75, s75, 12\ns_lshl_b32 s78, s78, 8\ns_add_u32 s75, s75, s78\ns_lshl_b32 s72, s72, 11\ns_add_u32 s75, s75, s72")
            a(f"s_add_u32 s75, s75, s77\ns_cmp_ge_u32 s74, 172\ns_cselect_b32 s78, 0x70000000, 0\ns_or_b32 s{80+i}, s75, s78")
        for i in range(3):
            B = 64 + 16 * i
            bb = 14 + 2 * i

            def w2x():
                nonlocal nw2
                if nw2 < 20:
                    w2_text.append(w2(nw2)); nw2 += 1
            for e in range(4):
                a(f"v_add_f32 v{B+e}, v{B+e}, v{B+4+e}\nv_add_f32 v{B+8+e}, v{B+8+e}, v{B+12+e}")
            w2x()
            a(f"v_lshlrev_b32 v{B+4}, 16, v{bb}\nv_and_b32 v{B+5}, 0xffff0000, v{bb}\nv_lshlrev_b32 v{B+6}, 16, v{bb+1}\nv_and_b32 v{B+7}, 0xffff0000, v{bb+1}")
            for e in range(4):
                a(f"v_add_f32 v{B+e}, v{B+e}, v{B+8+e}")
            for e in range(4):
                a(f"v_add_f32 v{B+e}, v{B+e}, v{B+4+e}")
            w2x()
            for e in range(4):
                a(f"v_mul_f32 v{B+4+e}, v{B+e}, v{B+e}\nv_mov_b32 v{B+8+e}, s85")
            for e in range(4):
                a(f"v_fmac_f32 v{B+8+e}, s84, v{B+4+e}")
            w2x()
            for e in range(4):
                a(f"v_mul_f32 v{B+8+e}, v{B+8+e}, v{B+e}")
            for e in range(4):
                a(f"v_exp_f32 v{B+8+e}, v{B+8+e}")
            w2x()
            for e in range(4):
                a(f"v_add_f32 v{B+8+e}, 1.0, v{B+8+e}")
            for e in range(4):
                a(f"v_rcp_f32 v{B+8+e}, v{B+8+e}")
            w2x()
            for e in range(4):
                a(f"v_mul_f32 v{B+e}, v{B+e}, v{B+8+e}")
            a(f"v_cvt_pk_bf16_f32 v{B+4}, v{B}, v{B+1}\nv_cvt_pk_bf16_f32 v{B+5}, v{B+2}, v{B+3}")
            a(f"buffer_store_dwordx2 v[{B+4}:{B+5}], v11, {SRD_WS}, s{80+i} offen sc1", tag="Ust")
        while nw2 < 20:
            w2_text.append(w2(nw2)); nw2 += 1
        a.wait_tag("Ust")
        g.publish(PH_U)
    a.label(skip, reset=False)
    g.tails.append((other, skip, [warmup_text(SRD_W2P, "v60")] + w2_text))


def mix2(g):
    a = g.a
    a.c("======== token mixing 2: x += (u W2 + b2)^T")
    g.srd(32, P_B2, 4096)
    a(f"v_lshrrev_b32 v10, 3, v0\ns_lshl_b32 s72, {sR}, 7\nv_lshl_add_u32 v11, v10, 1, s72")
    a(f"buffer_load_ushort v12, v11, {SRD_T}, 0 offen\nbuffer_load_ushort v13, v11, {SRD_T}, 0 offen offset:64")
    a(f"s_mul_i32 s72, {sCQ}, {UC}\ns_lshl_b32 s73, {sL}, 21\ns_add_u32 s72, s72, s73\ns_add_u32 s72, s72, {WS_U}")
    g.srd(24, P_WS, UC, "s72")
    a(f"s_mul_i32 s72, {sWV}, 352\ns_mul_hi_u32 s72, s72, {(1 << 32)//48 + 1}\nv_add_u32 v8, s72, v1\nv_min_u32 v8, 28, v8")
    a("v_cmp_le_u32 vcc, 8, v8\nv_cndmask_b32 v6, 0, 1, vcc\nv_cmp_le_u32 vcc, 15, v8\nv_addc_co_u32 v6, vcc, 0, v6, vcc")
    a("v_cmp_le_u32 vcc, 22, v8\nv_addc_co_u32 v6, vcc, 0, v6, vcc")
    a("v_mul_u32_u24 v7, 7, v6\nv_min_u32 v9, 1, v6\nv_add_u32 v7, v7, v9\nv_sub_u32 v7, v8, v7")
    a(f"s_and_b32 s72, {sCQ}, 3\ns_lshr_b32 s73, {sCQ}, 2\nv_lshl_add_u32 v7, v7, 2, s72\nv_lshlrev_b32 v7, 3, v7")
    a("v_lshl_add_u32 v9, v6, 1, v7\nv_add_u32 v9, s73, v9")
    g.vflag("v9", PH_U)
    a("v_and_b32 v3, 7, v0\nv_lshlrev_b32 v21, 10, v10\nv_lshl_add_u32 v21, v3, 4, v21")
    a(f"s_lshl_b32 s72, {sR}, 16\ns_lshl_b32 s73, {sCQ}, 7\ns_add_u32 s72, s72, s73\ns_add_u32 s73, s72, 32768")
    a(f"buffer_load_dword v23, v21, {SRD_DST}, s72 offen sc1\nbuffer_load_dword v24, v21, {SRD_DST}, s73 offen sc1")
    a(f"s_add_u32 s72, {sR}, 32\ns_lshl_b32 s72, s72, 3\ns_add_u32 s72, s72, {sCQ}\ns_lshl_b32 s72, s72, 10\ns_add_u32 s72, s72, {WS_ST2}")
    a(f"buffer_load_dword v25, v2, {SRD_WS}, s72 offen sc1")
    g.poll("v9", "0xff")
    g.stamp(17)
    UB, ACC, UD = 64, 192, 14
    a(f"s_mul_i32 s85, {sWV}, {11*4096}")

    def uload(i):
        st, dt = i >> 2, i & 3
        a(f"s_add_u32 s72, s85, {st*4096}")
        a(f"buffer_load_dwordx4 {vr(UB + 4*i)}, v2, {SRD_U}, s72 offen offset:{dt*1024} sc1")
    for i in range(UD):
        uload(i)
    a.wait_tag("D2_5")
    w2_tr(g, 5, 9)
    a.wait_tag("D2_9")
    w2_tr(g, 9, 11)
    for st in range(11):
        for dt in range(4):
            for k in range(4):
                acc = ACC + (dt*4 + k) * 4
                c = "0" if st == 0 else ar(acc)
                a(f"v_mfma_f32_16x16x32_bf16 {ar(acc)}, {vr(UB + (st*4+dt)*4)}, {ar((st*4+k)*4)}, {c}")
                if k == 1 and st*4 + dt + UD < 44:
                    uload(st*4 + dt + UD)
    g.stamp(18)
    a("v_and_b32 v3, 15, v1\nv_lshrrev_b32 v4, 4, v1\nv_and_b32 v5, 7, v1")
    a(f"s_lshl_b32 s72, {sWV}, 14")
    for dt in range(4):
        a(f"v_add_u32 v6, {4*dt}, v4\nv_xor_b32 v6, v6, v5\nv_lshlrev_b32 v6, 4, v6\nv_lshl_add_u32 v6, v3, 8, v6\nv_add_u32 v{14+dt}, s72, v6")
    for dt in range(4):
        for k in range(4):
            a(f"ds_write_b128 v{14+dt}, {ar(ACC + (dt*4+k)*4)} offset:{L_X + k*4096}")
    a("s_waitcnt lgkmcnt(0)\ns_barrier")
    a("v_and_b32 v3, 7, v0\nv_and_b32 v4, 7, v10\nv_lshlrev_b32 v5, 1, v3")
    for e in range(2):
        a(f"v_add_u32 v6, {e}, v5\nv_xor_b32 v6, v6, v4\nv_lshlrev_b32 v6, 4, v6\nv_lshl_add_u32 v{18+e}, v10, 8, v6")
    a(f"v_mul_u32_u24 v20, 144, v10\nv_lshl_add_u32 v20, v3, 4, v20\nv_add_u32 v20, {L_R}, v20")
    a(f"v_lshlrev_b32 v21, 10, v10\nv_lshl_add_u32 v21, v3, 4, v21")
    a(f"s_lshl_b32 s72, {sR}, 16\ns_lshl_b32 s73, {sCQ}, 7\ns_add_u32 s72, s72, s73")
    for half in range(2):
        B = 64 + half * 48
        for k in range(4):
            for e in range(2):
                a(f"ds_read_b128 {vr(B + k*8 + e*4)}, v{18+e} offset:{L_X + k*16384 + half*8192}")
        a(f"ds_read_b128 {vr(B+32)}, v20 offset:{half*4608}")
    a(f"s_or_b32 s83, {sFAST}, {sL}")
    g.q_addr_w(46)
    g.w_dma_setup("s80", "s81", "s82")
    a(f"s_cmp_eq_u32 {sL}, 0\ns_cselect_b32 s80, s80, 0x70000000")
    ring = [(s_, n) for s_ in range(5) for n in range(4)]

    def ringdma(k=1):
        for _ in range(k):
            if ring:
                s_, n = ring.pop(0)
                g.w_dma(s_, only=n, sg="s80", sl="s81", st="s82", va="v46")
    for half in range(2):
        B = 64 + half * 48
        a(f"v_lshlrev_b32 v22, 16, v{12+half}")
        for i in range(8):
            a(f"v_add_f32 v{B+i}, v{B+i}, v{B+8+i}\nv_add_f32 v{B+16+i}, v{B+16+i}, v{B+24+i}")
            if i % 2 == 1:
                ringdma()
        for i in range(8):
            a(f"v_add_f32 v{B+i}, v{B+i}, v{B+16+i}")
        ringdma()
        for i in range(8):
            a(f"v_add_f32 v{B+i}, v{B+i}, v22")
        ringdma()
        for k in range(4):
            a(f"v_lshlrev_b32 v{B+8+2*k}, 16, v{B+32+k}\nv_and_b32 v{B+9+2*k}, 0xffff0000, v{B+32+k}")
        ringdma()
        for i in range(8):
            a(f"v_add_f32 v{B+i}, v{B+i}, v{B+8+i}")
        ringdma()
        for k in range(4):
            a(f"v_cvt_pk_bf16_f32 v{B+36+k}, v{B+2*k}, v{B+2*k+1}")
        a(f"ds_write_b128 v20, {vr(B+36)} offset:{half*4608}")
        g.dual(lambda m, B=B: a(f"buffer_store_dwordx4 {vr(B+36)}, v21, {SRD_DST}, s72 offen {m}", tag="Xst"), sel="s83")
        if half == 0:
            a("s_add_u32 s72, s72, 32768")
        a(f"v_add_f32 v{B+40}, v{B}, v{B+1}\nv_mul_f32 v{B+41}, v{B}, v{B}\nv_fmac_f32 v{B+41}, v{B+1}, v{B+1}")
        for i in range(2, 8):
            a(f"v_add_f32 v{B+40}, v{B+40}, v{B+i}\nv_fmac_f32 v{B+41}, v{B+i}, v{B+i}")
        ringdma(2)
    ringdma(20)
    a("v_mov_b32 v12, v46")
    sk = g.lab("st2")
    a(f"s_cmp_eq_u32 {sL}, 0\ns_cbranch_scc0 {sk}")
    with a.cond(sk):
        g.row_stats_store([104, 152], 1, local=True)
    a.label(sk, reset=False)


def drain(g, tag, n, sreg, val):
    a = g.a
    lw = g.lab("dr")
    a(f"s_cmp_eq_u32 {sreg}, {val}\ns_cbranch_scc1 {lw}")
    a.raw("  s_waitcnt vmcnt(0)")
    a.label(lw, reset=False)
    a.raw(f"  s_waitcnt vmcnt({n})")
    a.wait_tag(tag, emit=False)


def o_drain_publish(g):
    a = g.a
    drain(g, "Ost", 6, sL, 0)
    g.publish(PH_O, local=True)


def rest(g):
    a = g.a
    g.tails = []
    attn_setup(g)
    g.stamp(5)
    attn(g)
    a("s_barrier")
    l0_only(g, "l0p", lambda: p1_finish(g))
    o_drain_publish(g)
    g.stamp(9)
    if g.stop("a"):
        return finish(g)
    early_w1(g, 0, 16)
    o_flags(g)
    oproj(g)
    m1_only(g, lambda: l0_only(g, "l0c", lambda: p1_check(g)))
    early_w1(g, 32, 44)
    a(f"s_and_b32 s79, {sM1}, {sL}")
    drain(g, "Hst", 12, "s79", 1)
    g.publish(PH_H)
    g.stamp(13)
    if g.stop("o"):
        return finish(g)
    m1_only(g, lambda: (l0_only(g, "l0d", lambda: w1_loads(g, 0, 44)), w1_loads(g, 44, 48)))
    mix1(g)
    g.stamp(16)
    if g.stop("m1"):
        return finish(g)
    for i in range(20, 36):
        w2_dma(g, i >> 2, i & 3)
    a.wait_tag("D2_0")
    w2_tr(g, 0, 5)
    a("s_waitcnt lgkmcnt(0)")
    for i in range(36, 44):
        w2_dma(g, i >> 2, i & 3)
    mix2(g)
    g.stamp(19)
    if g.stop("m2"):
        return finish(g)
    a(f"s_cmp_eq_u32 {sL}, 1\ns_cbranch_scc1 L_done")
    g.srd(4, P_WS, 2 << 20, WS_X2)
    g.srd(20, P_OUT, 2 << 20)
    a(f"s_mov_b32 {sL}, 1")
    a("s_waitcnt lgkmcnt(0)")
    g.q_entry(1)
    g.kv_pass(False)
    a("s_branch L_kvdone")
    a.label("L_done", reset=False)
    a("s_waitcnt vmcnt(0)\ns_branch L_end")
    finish(g)


def finish(g):
    a = g.a
    a("s_branch L_end")
    a.assume_clean()
    for stub, back, always in g.stubs:
        a.label(stub, reset=False)
        a("s_nop 7")
        for x in always:
            a(x)
        a(f"s_nop 11\ns_branch {back}")
        a.assume_clean()
    for lab, back, texts in g.tails:
        a.label(lab, reset=False)
        for x in texts:
            for line in x.split("\n"):
                if line.startswith("@"):
                    a.label(line[1:], reset=False)
                else:
                    a(line)
        a(f"s_branch {back}")
        a.assume_clean()
```

```python
import sys
sys.path.insert(0, "tools")
from asmfw import Asm

KNAME = "interleave_layers__sliding_block__mixer_token_mlp__prompt_kernel"

WS_EPOCH = 0x0
WS_FLAG = 0x1000
WS_ST = 0x80000
WS_KV = 0x100000
WS_OF = 0x900000
WS_H = 0xD00000
WS_U = 0x1100000
WS_X2 = 0x1500000
WS_W1P = 0x1700000
WS_W2P = 0x1D00000
WS_ST2 = 0x2300000
WS_XC = 0x2380000
WS_DIAG = 0x2400000
WS_SIZE = 0x4000000
UC = 43 * 4096
PH_KV, PH_O, PH_H, PH_U, PH_X, PH_P = range(6)

L_X = 0
L_RING = 65536
L_R = 147456
L_MISC = 156672
L_SP = L_MISC
L_CP = L_MISC + 1024
L_MR = L_MISC + 2560
LDS_SIZE = 163840

SRD_X, SRD_WQ, SRD_WO, SRD_WS = "s[4:7]", "s[8:11]", "s[12:15]", "s[16:19]"
SRD_DST, SRD_U, SRD_W2P, SRD_T = "s[20:23]", "s[24:27]", "s[28:31]", "s[32:35]"
P_X, P_WQ, P_WO, P_W1, P_B1, P_W2, P_B2, P_OUT, P_DBG, P_WS = 36, 38, 40, 44, 46, 48, 50, 52, 54, 56
sR, sCQ, sWV, sL = "s58", "s59", "s60", "s61"
sN, sNN, sNP = "s62", "s63", "s[62:63]"
sC1, sJ1, sM1 = "s64", "s65", "s66"
sP, sTB, sB = "s67", "s68", "s69"
sCNT = "s100"
sFAST = "s0"
SRD_W1 = "s[96:99]"
POLL_LIMIT = 400000

LOG2E = 1.4426950408889634


def f32(x):
    import struct
    return "0x%08x" % struct.unpack("<I", struct.pack("<f", x))[0]


class Gen:
    def __init__(self, stop_after=None, diag=False):
        self.a = Asm()
        self.stop_after = stop_after
        self.diag = diag
        self.uid = 0
        self.stubs = []
        self.nstamp = 0

    def lab(self, base):
        self.uid += 1
        return f"L_{base}_{self.uid}"

    def srd(self, name, ptr, size, off=None):
        a = self.a
        if off is None:
            a(f"s_mov_b32 s{name}, s{ptr}\ns_mov_b32 s{name+1}, s{ptr+1}")
        else:
            a(f"s_add_u32 s{name}, s{ptr}, {off}\ns_addc_u32 s{name+1}, s{ptr+1}, 0")
        a(f"s_mov_b32 s{name+2}, {size}\ns_mov_b32 s{name+3}, 0x20000")

    def stamp(self, idx):
        if not self.diag:
            return
        a = self.a
        skip = self.lab("st")
        a(f"s_memrealtime s[92:93]\ns_waitcnt lgkmcnt(0)")
        a(f"s_cmp_eq_u32 {sWV}, 0\ns_cbranch_scc0 {skip}")
        with a.cond(skip):
            a(f"s_lshl_b32 s94, s2, 8\ns_lshl_b32 s95, {sL}, 7\ns_add_u32 s94, s94, s95\ns_add_u32 s94, s94, {WS_DIAG + idx*4}")
            a("v_mov_b32 v62, s92\nv_mov_b32 v63, s94\ns_mov_b64 exec, 1")
            a(f"buffer_store_dword v62, v63, {SRD_WS}, 0 offen")
            a("s_mov_b64 exec, -1")
        a.label(skip, reset=False)

    def flag_addr(self, dst, phase, wg):
        a = self.a
        a(f"s_lshl_b32 {dst}, {sL}, 8\ns_add_u32 {dst}, {dst}, {wg}\ns_lshl_b32 {dst}, {dst}, 7")
        a(f"s_add_u32 {dst}, {dst}, {WS_FLAG + phase*2*256*128}")

    def dual(self, fn, sel=sFAST):
        a = self.a
        slow, j = self.lab("slow"), self.lab("dj")
        a(f"s_cmp_eq_u32 {sel}, 0\ns_cbranch_scc1 {slow}")
        a.fork()
        fn("")
        a(f"s_branch {j}")
        a.label(slow, reset=False)
        a.alt()
        fn("sc1")
        a.endfork()
        a.label(j, reset=False)

    def publish(self, phase, wg="s2", also_l0=None, local=False):
        a = self.a
        skip = self.lab("pub")
        a("s_barrier")
        a(f"s_cmp_eq_u32 {sWV}, 0\ns_cbranch_scc0 {skip}")
        with a.cond(skip):
            self.flag_addr("s70", phase, wg)
            a(f"v_mov_b32 v4, {sN}\nv_mov_b32 v5, {sNN}\nv_mov_b32 v6, s70\ns_mov_b64 exec, 1")
            if local:
                self.dual(lambda m: a(f"buffer_store_dwordx2 v[4:5], v6, {SRD_WS}, 0 offen {m}"))
            else:
                a(f"buffer_store_dwordx2 v[4:5], v6, {SRD_WS}, 0 offen sc1")
            if also_l0 is not None:
                a(f"s_lshl_b32 s70, {wg}, 7\ns_add_u32 s70, s70, {WS_FLAG + also_l0*2*256*128}")
                a(f"s_cmp_eq_u32 {sL}, 0\ns_cselect_b32 s70, s70, 0x70000000\nv_mov_b32 v6, s70")
                a(f"buffer_store_dwordx2 v[4:5], v6, {SRD_WS}, 0 offen sc1")
            a("s_mov_b64 exec, -1")
        a.label(skip, reset=False)

    def poll(self, vaddr, mask):
        a = self.a
        top, ok = self.lab("poll"), self.lab("pok")
        a(f"s_mov_b64 exec, {mask}\ns_mov_b32 {sCNT}, 0")
        a(f"s_cbranch_execz {ok}")
        a.label(top, reset=False)
        with a.cond(top):
            a(f"buffer_load_dwordx2 v[4:5], {vaddr}, {SRD_WS}, 0 offen sc1")
            a("s_waitcnt vmcnt(0)")
            a(f"v_cmp_ne_u64 vcc, {sNP}, v[4:5]")
            a(f"s_cbranch_vccz {ok}")
            a(f"s_add_u32 {sCNT}, {sCNT}, 1\ns_cmp_lt_u32 {sCNT}, {POLL_LIMIT}\ns_cbranch_scc1 {top}")
            a("s_branch L_fail")
        a.label(ok, reset=False)
        a("s_mov_b64 exec, -1")

    def wg_of(self, dst, r, cq):
        a = self.a
        a(f"v_and_b32 {dst}, 3, {r}\nv_lshlrev_b32 {dst}, 3, {dst}\nv_add_u32 {dst}, {cq}, {dst}\nv_lshlrev_b32 {dst}, 3, {dst}")
        a(f"v_lshrrev_b32 v7, 2, {r}\nv_add_u32 {dst}, {dst}, v7")

    def vflag(self, dst, phase):
        a = self.a
        a(f"s_lshl_b32 s70, {sL}, 15\ns_add_u32 s70, s70, {WS_FLAG + phase*2*256*128}")
        a(f"v_lshlrev_b32 {dst}, 7, {dst}\nv_add_u32 {dst}, s70, {dst}")

    def row_stats_store(self, sums, layer, local=False):
        a = self.a
        for ctl in ("quad_perm:[1,0,3,2]", "quad_perm:[2,3,0,1]", "row_half_mirror"):
            for r0 in sums:
                for k in range(2):
                    a(f"v_add_f32_dpp v{r0+k}, v{r0+k}, v{r0+k} {ctl} row_mask:0xf bank_mask:0xf")
        for r0 in sums:
            a(f"v_mov_b32 v{r0+2}, {sN}\nv_mov_b32 v{r0+3}, {sNN}")
        if isinstance(layer, int):
            a(f"s_add_u32 s72, {sR}, {layer*32}")
        else:
            a(f"s_lshl_b32 s72, {layer}, 5\ns_add_u32 s72, s72, {sR}")
        a(f"s_lshl_b32 s72, s72, 3\ns_add_u32 s72, s72, {sCQ}\ns_lshl_b32 s72, s72, 10\ns_add_u32 s72, s72, {WS_ST2}")
        a("v_lshrrev_b32 v3, 3, v0\nv_lshlrev_b32 v3, 4, v3\nv_and_b32 v4, 7, v0\nv_cmp_eq_u32 vcc, 0, v4\ns_mov_b64 exec, vcc")
        def st(m):
            for i, r0 in enumerate(sums):
                a(f"buffer_store_dwordx4 v[{r0}:{r0+3}], v3, {SRD_WS}, s72 offen offset:{i*512} {m}")
        if local:
            self.dual(st)
        else:
            st("sc1")
        a("s_mov_b64 exec, -1")

    def stop(self, name):
        if self.stop_after == name:
            self.a("s_waitcnt vmcnt(0) lgkmcnt(0)\ns_branch L_end")
            self.a.assume_clean()
            return True
        return False

    def prologue(self):
        a = self.a
        a("s_cmp_ge_u32 s2, 256\ns_cbranch_scc1 L_end")
        a("s_load_dwordx16 s[36:51], s[0:1], 0\ns_load_dwordx4 s[52:55], s[0:1], 64\ns_load_dwordx2 s[56:57], s[0:1], 80")
        a("v_and_b32 v1, 63, v0\nv_lshlrev_b32 v2, 4, v1\nv_lshrrev_b32 v3, 6, v0")
        a(f"v_readfirstlane_b32 {sWV}, v3")
        a(f"s_and_b32 s70, s2, 7\ns_lshr_b32 s71, s2, 3")
        a(f"s_lshr_b32 s72, s71, 3\ns_lshl_b32 {sR}, s70, 2\ns_add_u32 {sR}, {sR}, s72\ns_and_b32 {sCQ}, s71, 7")
        a(f"s_and_b32 s72, s70, 1\ns_lshl_b32 s72, s72, 2\ns_and_b32 s73, s71, 3\ns_add_u32 {sC1}, s72, s73")
        a("s_lshr_b32 s72, s70, 1\ns_lshr_b32 s73, s71, 2")
        a("s_mul_i32 s74, s72, 7\ns_min_u32 s75, s72, 1\ns_add_u32 s74, s74, s75")
        a(f"s_add_u32 {sJ1}, s74, s73")
        a("s_cmp_eq_u32 s72, 0\ns_cselect_b32 s75, 8, 7")
        a(f"s_cmp_lt_u32 s73, s75\ns_cselect_b32 {sM1}, 1, 0")
        a(f"s_and_b32 {sP}, {sWV}, 1\ns_lshr_b32 {sTB}, {sWV}, 1\ns_xor_b32 {sB}, {sP}, {sTB}")
        a(f"s_mov_b32 {sL}, 0")
        a("s_waitcnt lgkmcnt(0)")
        self.srd(4, P_X, 2 << 20)
        self.srd(8, P_WQ, 512 * 1536 * 2)
        self.srd(12, P_WO, 512 * 512 * 2)
        self.srd(16, P_WS, WS_SIZE)
        self.srd(28, P_W2, 1376 * 4096)
        self.srd(96, P_W1, 2048 * 2752)
        self.srd(20, P_WS, 2 << 20, WS_X2)
        a(f"v_mov_b32 v3, {WS_EPOCH}")
        a(f"buffer_load_dword v250, v3, {SRD_WS}, 0 offen sc1")
        a("v_lshrrev_b32 v3, 3, v0\nv_and_b32 v4, 7, v0")
        a(f"s_lshl_b32 s70, {sR}, 16\ns_lshl_b32 s71, {sCQ}, 7\ns_add_u32 s70, s70, s71")
        a("v_lshlrev_b32 v5, 10, v3\nv_lshl_add_u32 v5, v4, 4, v5")
        a(f"buffer_load_dwordx4 v[240:243], v5, {SRD_X}, s70 offen")
        a("s_add_u32 s70, s70, 32768")
        a(f"buffer_load_dwordx4 v[244:247], v5, {SRD_X}, s70 offen")

    def prologue_tail(self):
        a = self.a
        a(f"v_lshlrev_b32 v3, 21, v1\ns_mov_b64 exec, 0x3ffff\nbuffer_load_dword v251, v3, {SRD_WS}, 0 offen\ns_mov_b64 exec, -1")
        a("v_lshrrev_b32 v3, 3, v0\nv_and_b32 v4, 7, v0")
        a("v_mul_u32_u24 v6, 144, v3\nv_lshl_add_u32 v6, v4, 4, v6")
        a(f"v_add_u32 v6, {L_R}, v6")
        a(f"v_readfirstlane_b32 {sN}, v250")
        a(f"s_add_u32 {sN}, {sN}, 1\ns_not_b32 {sNN}, {sN}")
        a("ds_write_b128 v6, v[240:243]\nds_write_b128 v6, v[244:247] offset:4608")
        for h, (src, dst) in enumerate(((240, 232), (244, 236))):
            a(f"v_mov_b32 v{dst}, 0\nv_mov_b32 v{dst+1}, 0")
            for k in range(4):
                a(f"v_lshlrev_b32 v8, 16, v{src+k}\nv_and_b32 v9, 0xffff0000, v{src+k}")
                a(f"v_add_f32 v{dst}, v{dst}, v8\nv_fmac_f32 v{dst+1}, v8, v8\nv_add_f32 v{dst}, v{dst}, v9\nv_fmac_f32 v{dst+1}, v9, v9")
        self.row_stats_store([232, 236], 0)
        a(f"s_getreg_b32 s72, hwreg(HW_REG_XCC_ID)\ns_and_b32 s1, s72, 15\ns_mov_b32 {sFAST}, 0")
        a(f"s_lshl_b32 s72, {sR}, 3\ns_add_u32 s72, s72, {sCQ}\ns_lshl_b32 s72, s72, 4\ns_add_u32 s72, s72, {WS_XC}")
        a(f"v_mov_b32 v232, s1\nv_mov_b32 v233, 0\nv_mov_b32 v234, {sN}\nv_mov_b32 v235, {sNN}\nv_mov_b32 v3, s72")
        sk = self.lab("xc")
        a(f"s_cmp_eq_u32 {sWV}, 0\ns_cbranch_scc0 {sk}")
        with a.cond(sk):
            a(f"s_mov_b64 exec, 1\nbuffer_store_dwordx4 v[232:235], v3, {SRD_WS}, 0 offen sc1\ns_mov_b64 exec, -1")
        a.label(sk, reset=False)

    def w_dma(self, s, only=None, sg="s70", sl="s71", st="s72", va="v12"):
        a = self.a
        slot = L_RING + (s % 5) * 16384
        for n in range(4):
            if only is not None and n != only:
                continue
            if s < 8:
                part = n >> 1
                krow = 64 * s + (n & 1) * 32
                col = 1024 * (1 + part)
                lds = slot + part * 8192 + (n & 1) * 4096
            else:
                krow = 128 * (s - 8) + 32 * n
                col = 0
                lds = slot + n * 4096
            a(f"s_add_u32 {st}, {sg}, {krow*3072 + col}\ns_add_u32 m0, {sl}, {lds}")
            a(f"buffer_load_dwordx4 {va}, {SRD_WQ}, {st} offen lds", tag=f"W{s}")

    def w_dma_setup(self, sg="s70", sl="s71", st="s72"):
        a = self.a
        a(f"s_mul_i32 {sg}, {sWV}, {8*3072}\ns_lshl_b32 {st}, {sCQ}, 7\ns_add_u32 {sg}, {sg}, {st}\ns_lshl_b32 {sl}, {sWV}, 10")

    def q_addr_w(self, dst=12):
        a = self.a
        a(f"v_lshrrev_b32 v3, 3, v1\nv_mul_u32_u24 v{dst}, 3072, v3\nv_bfe_u32 v4, v1, 4, 1\nv_lshlrev_b32 v4, 2, v4")
        a(f"v_and_b32 v5, 7, v1\nv_xor_b32 v5, v5, v4\nv_lshl_add_u32 v{dst}, v5, 4, v{dst}")

    def q_addr_x(self):
        a = self.a
        a("v_lshrrev_b32 v3, 3, v1")
        for e in range(2):
            a(f"s_lshl_b32 s72, {sWV}, 4\ns_add_u32 s72, s72, {8*e}\nv_add_u32 v6, s72, v3")
            a(f"v_bfe_u32 v7, v6, 1, 3\nv_and_b32 v5, 7, v1\nv_xor_b32 v5, v5, v7\nv_lshlrev_b32 v6, 10, v6\nv_lshl_add_u32 v{10+e}, v5, 4, v6")

    def q_addr(self):
        self.q_addr_w()
        self.q_addr_x()
        self.w_dma_setup()

    def q_addr2(self):
        a = self.a
        a(f"v_and_b32 v3, 31, v1\ns_lshl_b32 s72, {sTB}, 5\nv_add_u32 v3, s72, v3\nv_bfe_u32 v4, v3, 1, 3\nv_lshrrev_b32 v5, 5, v1")
        for k in range(4):
            a(f"s_xor_b32 s72, {sB}, {k}\ns_lshl_b32 s72, s72, 1\nv_add_u32 v6, s72, v5\nv_xor_b32 v6, v6, v4")
            a(f"v_lshlrev_b32 v6, 4, v6\nv_lshl_add_u32 v{13+k}, v3, 7, v6")
        a("v_and_b32 v3, 15, v1\nv_lshrrev_b32 v4, 2, v3\nv_lshrrev_b32 v5, 5, v1\nv_lshl_add_u32 v4, v5, 3, v4")
        a(f"v_bfe_u32 v5, v1, 4, 1\nv_lshlrev_b32 v5, 1, v5\nv_bfe_u32 v6, v1, 1, 1\nv_add_u32 v5, v5, v6")
        a(f"s_lshl_b32 s72, {sP}, 2\nv_add_u32 v5, s72, v5\nv_bfe_u32 v6, v1, 3, 1\nv_lshlrev_b32 v6, 2, v6\nv_xor_b32 v5, v5, v6")
        a("v_lshlrev_b32 v5, 4, v5\nv_lshl_add_u32 v5, v4, 7, v5\nv_and_b32 v6, 1, v1\nv_lshl_add_u32 v5, v6, 3, v5")
        for e in range(2):
            a(f"s_xor_b32 s72, {sB}, {e}\ns_lshl_b32 s72, s72, 11\ns_add_u32 s72, s72, {L_RING}")
            a(f"v_add_u32 v{17+e}, s72, v5\nv_add_u32 v{19+e}, 49152, v{17+e}")
        a("v_mov_b32 v21, 0\nv_mov_b32 v24, 0\nv_mov_b32 v25, 0")
        a("s_mov_b32 s74, 0x3f803f80")
        a(f"s_lshl_b32 s72, {sL}, 5\ns_add_u32 s72, s72, {sR}\ns_lshl_b32 s75, s72, 13\ns_add_u32 s75, s75, {WS_ST2}")
        a(f"v_and_b32 v3, 31, v1\ns_lshl_b32 s72, {sTB}, 5\nv_add_u32 v3, s72, v3\nv_lshlrev_b32 v3, 4, v3\nv_lshrrev_b32 v4, 5, v1\nv_lshl_add_u32 v61, v4, 12, v3")

    def x_dma(self, kc):
        a = self.a
        for e in range(2):
            a(f"s_add_u32 s72, s76, {kc*128}\ns_add_u32 m0, s77, {L_X + kc*8192 + e*1024}")
            a(f"buffer_load_dwordx4 v{10+e}, {SRD_X}, s72 offen sc1 lds", tag=f"X{kc}")

    def q_entry(self, layer):
        a = self.a
        a.c(f"======== QKV phase entry, layer {layer}")
        if layer == 0:
            self.q_addr()
        else:
            self.q_addr_x()
        a(f"s_lshl_b32 s76, {sR}, 16\ns_lshl_b32 s77, {sWV}, 11")
        if layer == 0:
            for s_ in range(5):
                self.w_dma(s_)
                self.x_dma(s_)
            for kc in range(5, 8):
                self.x_dma(kc)
            self.stamp(0)
            self.prologue_tail()
            self.q_addr2()
            self.stamp(1)
        else:
            self.q_addr2()
            a(f"v_mov_b32 v8, {sR}")
            a(f"v_and_b32 v9, 3, v8\nv_lshlrev_b32 v9, 3, v9\nv_add_u32 v9, v1, v9\nv_lshlrev_b32 v9, 3, v9")
            a(f"v_lshrrev_b32 v7, 2, v8\nv_add_u32 v9, v9, v7")
            a(f"v_lshlrev_b32 v9, 7, v9\nv_add_u32 v9, {WS_FLAG + PH_X*2*256*128}, v9")
            self.stamp(0)
            a("s_waitcnt vmcnt(0)")
            a(f"s_mov_b32 {sL}, 0")
            self.publish(PH_X, local=True)
            a(f"s_mov_b32 {sL}, 1")
            self.poll("v9", "0xff")
            self.stamp(1)
            for kc in range(8):
                self.x_dma(kc)

    XF, WF, AK, AV, AQ = 64, 32, 192, 208, 224

    def waddr(self, s, e):
        slot = s % 5
        return (f"v{17+e}", slot * 16384) if slot < 3 else (f"v{19+e}", (slot - 3) * 16384)

    def stage_sync(self, s):
        a = self.a
        a("s_waitcnt lgkmcnt(0)")
        a.wait_tag(f"W{s}", f"X{s}") if s < 8 else a.wait_tag(f"W{s}")
        a("s_barrier")

    def stat_loads(self):
        for k in range(4):
            self.a(f"buffer_load_dwordx4 v[{240+4*k}:{243+4*k}], v61, {SRD_WS}, s75 offen offset:{k*1024} sc1")

    def kv_pass(self, first):
        a = self.a
        XF, WF, AK, AV = self.XF, self.WF, self.AK, self.AV
        a.c("======== K/V projection" + (" (layer 0)" if first else " (layer 1)"))

        def reads_kv(n):
            s, k = n >> 2, n & 3
            a(f"ds_read_b128 v[{XF+4*n}:{XF+4*n+3}], v{13+k} offset:{L_X + s*8192}")
            reg, off = self.waddr(s, k & 1)
            wf = WF + (n % 3) * 8
            for part in range(2):
                for rd in range(2):
                    a(f"ds_read_b64_tr_b16 v[{wf+4*part+2*rd}:{wf+4*part+2*rd+1}], {reg} offset:{off + part*8192 + (k >> 1)*4096 + rd*512}")
        self.w_dma_setup()
        self.stamp(20)
        self.stage_sync(0)
        self.stamp(21)
        reads_kv(0); reads_kv(1)
        for n in range(32):
            if n + 2 < 32:
                if (n + 2) % 4 == 0:
                    self.stage_sync((n + 2) >> 2)
                reads_kv(n + 2)
            wf = WF + (n % 3) * 8
            x = f"v[{XF+4*n}:{XF+4*n+3}]"
            ck = "0" if n == 0 else f"v[{AK}:{AK+15}]"
            cv = "0" if n == 0 else f"v[{AV}:{AV+15}]"
            a(f"v_mfma_f32_32x32x16_bf16 v[{AK}:{AK+15}], v[{wf}:{wf+3}], {x}, {ck}")
            sfree = (n + 2) >> 2
            if n >= 2 and sfree + 4 < 12:
                self.w_dma(sfree + 4, only=(n + 2) & 3)
            a(f"v_mfma_f32_32x32x16_bf16 v[{AV}:{AV+15}], {x}, v[{wf+4}:{wf+7}], {cv}")
            if n == 24:
                self.stat_loads()
            if first and n % 2 == 0:
                for i in range(4):
                    a(f"v_dot2c_f32_bf16 v24, s74, v{wf+i}\nv_dot2c_f32_bf16 v25, s74, v{wf+4+i}")

    def q_phase(self):
        a = self.a
        XF, WF, AK, AV, AQ = self.XF, self.WF, self.AK, self.AV, self.AQ
        waddr, stage_sync, stat_loads = self.waddr, self.stage_sync, self.stat_loads
        a.label("L_kvdone", reset=False)
        self.stamp(2)
        a("v_and_b32 v3, 31, v1")
        a(f"s_lshl_b32 s72, {sP}, 1\ns_add_u32 s72, s72, {sTB}\ns_mul_i32 s72, s72, 384\ns_add_u32 s72, s72, {L_CP}")
        a("v_lshl_add_u32 v9, v3, 2, s72")
        sk = self.lab("cs")
        a(f"s_cmp_eq_u32 {sL}, 0\ns_cbranch_scc0 {sk}")
        with a.cond("l0"):
            a("v_mov_b32 v26, v24\nv_mov_b32 v27, v25\nv_permlane32_swap_b32 v24, v26\nv_permlane32_swap_b32 v25, v27")
            a("v_add_f32 v24, v24, v26\nv_add_f32 v25, v25, v27")
            a("ds_write_b32 v9, v24\nds_write_b32 v9, v25 offset:128")
            a("s_waitcnt lgkmcnt(0)")
        a.label(sk, reset=False)
        a("s_barrier")
        top, ok = self.lab("s2p"), self.lab("s2o")
        a(f"s_mov_b32 {sCNT}, 0")
        a.label(top, reset=False)
        a(f"v_cmp_ne_u64 vcc, {sNP}, v[242:243]")
        for k in range(1, 4):
            a(f"v_cmp_ne_u64 s[72:73], {sNP}, v[{242+4*k}:{243+4*k}]\ns_or_b64 vcc, vcc, s[72:73]")
        a(f"s_cbranch_vccz {ok}")
        with a.cond(top):
            stat_loads()
            a("s_waitcnt vmcnt(0)")
            a(f"s_add_u32 {sCNT}, {sCNT}, 1\ns_cmp_lt_u32 {sCNT}, {POLL_LIMIT}\ns_cbranch_scc1 {top}\ns_branch L_fail")
        a.label(ok, reset=False)
        a("v_add_f32 v26, v240, v244\nv_add_f32 v27, v241, v245\nv_add_f32 v28, v248, v252\nv_add_f32 v29, v249, v253")
        a("v_add_f32 v26, v26, v28\nv_add_f32 v27, v27, v29\nv_mov_b32 v28, v26\nv_mov_b32 v29, v27")
        a("v_permlane32_swap_b32 v26, v28\nv_permlane32_swap_b32 v27, v29\nv_add_f32 v26, v26, v28\nv_add_f32 v27, v27, v29")
        a(f"s_mul_i32 s72, {sP}, 768\ns_add_u32 s72, s72, {L_CP}")
        a("v_lshrrev_b32 v5, 5, v1\nv_lshl_add_u32 v56, v5, 4, s72")
        for q in range(4):
            a(f"ds_read_b128 v[{240+4*q}:{243+4*q}], v56 offset:{32*q}")
        for q in range(4):
            a(f"ds_read_b128 v[{32+4*q}:{35+4*q}], v56 offset:{384 + 32*q}")
        a("v_lshl_add_u32 v57, v3, 2, s72\nds_read_b32 v58, v57 offset:128\nds_read_b32 v59, v57 offset:512")
        a(f"v_mul_f32 v26, {f32(1/512)}, v26\nv_mul_f32 v27, {f32(1/512)}, v27")
        a(f"v_fma_f32 v27, -v26, v26, v27\nv_max_f32 v27, 0, v27\nv_add_f32 v27, {f32(1e-5)}, v27\nv_rsq_f32 v27, v27")
        a(f"s_lshl_b32 s72, {sWV}, 8\ns_add_u32 s72, s72, {L_MR}\nv_lshl_add_u32 v4, v3, 2, s72")
        a("ds_write_b32 v4, v26\nds_write_b32 v4, v27 offset:128")
        for i in range(16):
            a(f"v_add_f32 v{240+i}, v{240+i}, v{32+i}")
        a("v_add_f32 v58, v58, v59")
        a(f"v_lshl_add_u32 v4, v5, 4, s72")
        a("s_waitcnt lgkmcnt(0)")
        for q in range(4):
            a(f"ds_read_b128 v[{32+4*q}:{35+4*q}], v4 offset:{32*q}")
        for q in range(4):
            a(f"ds_read_b128 v[{48+4*q}:{51+4*q}], v4 offset:{128 + 32*q}") if q < 2 else None
        for i in range(16):
            a(f"v_fma_f32 v{AK+i}, -v26, v{240+i}, v{AK+i}")
        for i in range(16):
            a(f"v_mul_f32 v{AK+i}, v27, v{AK+i}")
        for k in range(8):
            a(f"v_cvt_pk_bf16_f32 v{AK+k}, v{AK+2*k}, v{AK+2*k+1}")
        a(f"s_lshl_b32 s75, {sCQ}, 1\ns_add_u32 s75, s75, {sP}\ns_lshl_b32 s75, s75, 6\ns_lshl_b32 s76, {sR}, 1\ns_add_u32 s75, s75, s76")
        a(f"s_add_u32 s75, s75, {sTB}\ns_lshl_b32 s75, s75, 12\ns_lshl_b32 s76, {sL}, 22\ns_add_u32 s75, s75, s76\ns_add_u32 s75, s75, {WS_KV}")
        a(f"buffer_store_dwordx4 v[{AK}:{AK+3}], v2, {SRD_WS}, s75 offen sc1", tag="KVst")
        a(f"buffer_store_dwordx4 v[{AK+4}:{AK+7}], v2, {SRD_WS}, s75 offen offset:2048 sc1", tag="KVst")
        for q in range(2, 4):
            a(f"ds_read_b128 v[{240+4*q}:{243+4*q}], v4 offset:{128 + 32*q}")
        rs = lambda i: (48 + i) if i < 8 else (240 + i)
        for i in range(16):
            a(f"v_fma_f32 v{AV+i}, -v{32+i}, v58, v{AV+i}")
        for i in range(16):
            a(f"v_mul_f32 v{AV+i}, v{rs(i)}, v{AV+i}")
        for k in range(8):
            a(f"v_cvt_pk_bf16_f32 v{AV+k}, v{AV+2*k}, v{AV+2*k+1}")
        a("v_bfe_u32 v3, v1, 4, 1\nv_lshlrev_b32 v3, 11, v3\nv_lshrrev_b32 v5, 5, v1\nv_lshl_add_u32 v3, v5, 8, v3")
        a("v_and_b32 v5, 15, v1\nv_lshl_add_u32 v3, v5, 4, v3")
        a(f"buffer_store_dwordx4 v[{AV}:{AV+3}], v3, {SRD_WS}, s75 offen offset:1024 sc1", tag="KVst")
        a(f"buffer_store_dwordx4 v[{AV+4}:{AV+7}], v3, {SRD_WS}, s75 offen offset:1536 sc1", tag="KVst")
        self.stamp(3)
        def reads_q(n):
            s, k = 8 + (n >> 3), n & 7
            reg, off = waddr(s, k & 1)
            wf = WF + (n % 3) * 8
            for rd in range(2):
                a(f"ds_read_b64_tr_b16 v[{wf+2*rd}:{wf+2*rd+1}], {reg} offset:{off + (k >> 1)*4096 + rd*512}")
        def q_pass(first):
            stage_sync(8)
            reads_q(0); reads_q(1)
            for n in range(32):
                if n + 2 < 32:
                    if (n + 2) % 8 == 0:
                        stage_sync(8 + ((n + 2) >> 3))
                    reads_q(n + 2)
                wf = WF + (n % 3) * 8
                cq = "0" if n == 0 else f"v[{AQ}:{AQ+15}]"
                a(f"v_mfma_f32_32x32x16_bf16 v[{AQ}:{AQ+15}], v[{wf}:{wf+3}], v[{XF+4*n}:{XF+4*n+3}], {cq}")
                if first and n % 2 == 0:
                    for i in range(4):
                        a(f"v_dot2c_f32_bf16 v21, s74, v{wf+i}")

            if first:
                a("v_mov_b32 v28, v21\nv_permlane32_swap_b32 v21, v28\nv_add_f32 v21, v21, v28")
                a("ds_write_b32 v9, v21 offset:256")
        lb, lj = self.lab("qb"), self.lab("qj")
        a(f"s_cmp_eq_u32 {sL}, 0\ns_cbranch_scc0 {lb}")
        a.fork()
        q_pass(True)
        a(f"s_branch {lj}")
        a.label(lb, reset=False)
        a.alt()
        q_pass(False)
        a.endfork()
        a.label(lj, reset=False)
        a("s_waitcnt lgkmcnt(0)")
        a.wait_tag("KVst")
        self.publish(PH_KV)
        self.stamp(4)
        for q in range(4):
            a(f"ds_read_b128 v[{240+4*q}:{243+4*q}], v56 offset:{256 + 32*q}")
        for q in range(4):
            a(f"ds_read_b128 v[{32+4*q}:{35+4*q}], v56 offset:{384 + 256 + 32*q}")
        a(f"v_mul_f32 v27, {f32(0.25*LOG2E)}, v27")
        for i in range(16):
            a(f"v_add_f32 v{240+i}, v{240+i}, v{32+i}")
        for i in range(16):
            a(f"v_fma_f32 v{AQ+i}, -v26, v{240+i}, v{AQ+i}")
        for i in range(16):
            a(f"v_mul_f32 v{AQ+i}, v27, v{AQ+i}")
        for k in range(8):
            a(f"v_cvt_pk_bf16_f32 v{AQ+k}, v{AQ+2*k}, v{AQ+2*k+1}")

    def wo_dma(self):
        a = self.a
        a("v_lshrrev_b32 v3, 3, v1\nv_lshlrev_b32 v3, 10, v3\nv_bfe_u32 v4, v1, 1, 2\nv_bfe_u32 v5, v1, 4, 2\nv_xor_b32 v4, v4, v5")
        a("v_lshlrev_b32 v4, 1, v4\nv_and_b32 v5, 1, v1\nv_add_u32 v4, v4, v5\nv_lshl_add_u32 v19, v4, 4, v3")
        a(f"s_lshl_b32 s78, {sWV}, 17\ns_lshl_b32 s73, {sCQ}, 7\ns_add_u32 s78, s78, s73\ns_lshl_b32 s79, {sWV}, 14")

        def one(n):
            return (f"s_add_u32 m0, s79, {L_X + n*1024}\ns_add_u32 s72, s78, {n*8192}\n"
                    f"buffer_load_dwordx4 v19, {SRD_WO}, s72 offen lds")
        return one

    def build(self):
        a = self.a
        self.prologue()
        self.q_entry(0)
        self.kv_pass(True)
        done = False
        self.q_phase()
        done = self.stop("q")
        if not done:
            from gen2 import rest
            rest(self)
        a.label("L_fail", reset=False)
        self.srd(32, P_DBG, 256)
        a("v_mov_b32 v4, 0xdead\nv_mov_b32 v5, 0\ns_mov_b64 exec, 1")
        a(f"buffer_store_dword v4, v5, {SRD_T}, 0 offen")
        a.label("L_end", reset=False)
        a("s_endpgm")
        body = a.finalize()
        head = open("interleave_layers__sliding_block__mixer_token_mlp__prompt.s.ref").read().split("\n")
        hdr = [l for l in head if l.startswith(";") and "@launch" not in l and "Override launch" not in l and "grid=ceil" not in l]
        hdr = hdr[:hdr.index(next(l for l in hdr if "d_ws" in l)) + 1]
        out = "\n".join(hdr) + f"\n; @launch grid=(256,1,1) block=(256,1,1) lds={LDS_SIZE}\n"
        out += '.amdgcn_target "amdgcn-amd-amdhsa--gfx950"\n.text\n'
        out += f".globl {KNAME}\n.p2align 8\n.type {KNAME},@function\n{KNAME}:\n"
        out += body
        out += f'''.section .rodata,"a"
.p2align 6
.amdhsa_kernel {KNAME}
  .amdhsa_next_free_vgpr 512
  .amdhsa_next_free_sgpr 102
  .amdhsa_accum_offset 256
  .amdhsa_group_segment_fixed_size 0
  .amdhsa_kernarg_size 88
  .amdhsa_user_sgpr_count 2
  .amdhsa_user_sgpr_kernarg_segment_ptr 1
  .amdhsa_system_sgpr_workgroup_id_x 1
.end_amdhsa_kernel
'''
        return out


if __name__ == "__main__":
    import argparse
    ap = argparse.ArgumentParser()
    ap.add_argument("--stop", default=None)
    ap.add_argument("--diag", action="store_true")
    ap.add_argument("-o", default="interleave_layers__sliding_block__mixer_token_mlp__prompt.s")
    args = ap.parse_args()
    g = Gen(stop_after=args.stop, diag=args.diag)
    src = g.build()
    open(args.o, "w").write(src)
    print("written", args.o, g.a.stats, "bytes", len(src))
```

```python
import re

REG_RE = re.compile(r"^(-|\|)?(abs\()?([vas])(\d+)\)?\|?$")
RANGE_RE = re.compile(r"^(-)?([vas])\[(\d+):(\d+)\]$")


def parse_regs(tok):
    tok = tok.strip()
    m = RANGE_RE.match(tok)
    if m:
        return [(m.group(2), i) for i in range(int(m.group(3)), int(m.group(4)) + 1)]
    m = REG_RE.match(tok)
    if m:
        return [(m.group(3), int(m.group(4)))]
    if tok == "vcc":
        return [("s", "vcc_lo"), ("s", "vcc_hi")]
    if tok in ("vcc_lo", "vcc_hi"):
        return [("s", tok)]
    if tok == "exec":
        return [("s", "exec_lo"), ("s", "exec_hi")]
    if tok in ("exec_lo", "exec_hi"):
        return [("s", tok)]
    if tok == "m0":
        return [("s", "m0")]
    return []


def split_ops(rest):
    toks, depth, cur = [], 0, ""
    for ch in rest:
        if ch in "[(":
            depth += 1
        elif ch in "])":
            depth -= 1
        if ch == "," and depth == 0:
            toks.append(cur.strip()); cur = ""
        else:
            cur += ch
    toks.append(cur.strip())
    return toks


TRANS = ("v_exp_f32", "v_log_f32", "v_rcp_f32", "v_rsq_f32", "v_sqrt_f32", "v_sin_f32", "v_cos_f32",
         "v_rcp_iflag_f32")
RMW = ("v_fmac_f32", "v_dot2c_f32_bf16", "v_pk_fmac_f16", "v_fmac_f16")


class Ins:
    __slots__ = ("text", "op", "ops", "mods", "kind", "rd", "wr", "passes", "srcc", "srcab", "cnt", "lds_dma",
                 "wide_store", "dpp", "comment")

    def __init__(self, text):
        self.text = text
        body = text.split(";")[0].strip()
        parts = body.split(None, 1)
        self.op = parts[0]
        rest = parts[1] if len(parts) > 1 else ""
        toks = split_ops(rest) if rest else []
        self.mods = []
        if toks:
            last = toks[-1].split()
            toks[-1] = last[0] if last else ""
            self.mods = last[1:]
        self.ops = toks
        self.rd, self.wr = set(), set()
        self.kind = "other"
        self.passes = 0
        self.srcc, self.srcab = set(), set()
        self.cnt = None
        self.lds_dma = False
        self.wide_store = False
        self.dpp = False
        self._classify()

    def R(self, i):
        return set(parse_regs(self.ops[i])) if i < len(self.ops) else set()

    def _classify(self):
        op, n = self.op, len(self.ops)
        op = re.sub(r"_(e32|e64|dpp|sdwa)$", "", op)
        if self.op.endswith("_dpp") or any(m.startswith(("quad_perm", "row_", "wave_")) for m in self.mods):
            self.dpp = True
        if op.startswith("v_mfma"):
            self.kind = "mfma"
            self.passes = 8 if "32x32" in op else 4
            self.wr = self.R(0)
            self.srcab = self.R(1) | self.R(2)
            self.srcc = self.R(3)
            self.rd = self.srcab | self.srcc
        elif op.startswith("v_"):
            self.kind = "valu"
            if op.startswith("v_cmp"):
                self.wr = self.R(0)
                for i in range(1, n):
                    self.rd |= self.R(i)
            elif op.startswith("v_permlane") and "swap" in op:
                self.wr = self.R(0) | self.R(1)
                self.rd = set(self.wr)
            elif op in ("v_add_co_u32", "v_sub_co_u32", "v_subrev_co_u32"):
                self.wr = self.R(0) | self.R(1)
                for i in range(2, n):
                    self.rd |= self.R(i)
            elif op in ("v_addc_co_u32", "v_subb_co_u32"):
                self.wr = self.R(0) | self.R(1)
                for i in range(2, n):
                    self.rd |= self.R(i)
            else:
                self.wr = self.R(0)
                for i in range(1, n):
                    self.rd |= self.R(i)
                if op in RMW or op == "v_writelane_b32":
                    self.rd |= self.R(0)
                if op == "v_cndmask_b32" and n == 3:
                    self.rd |= set(parse_regs("vcc"))
            if self.dpp:
                self.rd |= self.R(0)
        elif op.startswith("ds_"):
            self.kind = "ds"
            self.cnt = "lgkm"
            if op.startswith(("ds_read", "ds_bpermute", "ds_permute", "ds_swizzle")):
                self.wr = self.R(0)
                for i in range(1, n):
                    self.rd |= self.R(i)
            else:
                for i in range(n):
                    self.rd |= self.R(i)
        elif op.startswith("buffer_"):
            self.kind = "vmem"
            self.cnt = "vm"
            if "lds" in self.mods:
                self.lds_dma = True
                for i in range(n):
                    self.rd |= self.R(i)
                self.rd.add(("s", "m0"))
            elif op.startswith("buffer_load"):
                self.wr = self.R(0)
                for i in range(1, n):
                    self.rd |= self.R(i)
            else:
                for i in range(n):
                    self.rd |= self.R(i)
                if op.startswith("buffer_atomic") and "sc0" in self.mods:
                    self.wr = self.R(0)
                self.wide_store = op.endswith(("x3", "x4"))
        elif op.startswith("s_"):
            self.kind = "salu"
            if op.startswith(("s_load", "s_memtime", "s_memrealtime")):
                self.kind = "smem"
                self.cnt = "smem"
                self.wr = self.R(0)
                for i in range(1, n):
                    self.rd |= self.R(i)
            elif op.startswith(("s_cmp", "s_bitcmp")):
                for i in range(n):
                    self.rd |= self.R(i)
            elif op.startswith(("s_cbranch", "s_branch", "s_waitcnt", "s_barrier", "s_nop", "s_endpgm", "s_sleep",
                                "s_setprio")):
                self.kind = "ctl"
                if op == "s_cbranch_vccz" or op == "s_cbranch_vccnz":
                    self.rd = set(parse_regs("vcc"))
                if op.startswith("s_cbranch_exec"):
                    self.rd = set(parse_regs("exec"))
            elif "saveexec" in op:
                self.wr = self.R(0) | set(parse_regs("exec"))
                self.rd = self.R(1) | set(parse_regs("exec"))
            else:
                self.wr = self.R(0)
                for i in range(1, n):
                    self.rd |= self.R(i)
                if op in ("s_addk_i32", "s_mulk_i32"):
                    self.rd |= self.R(0)
        else:
            raise ValueError("unknown instruction: " + self.text)


def vreg(s):
    return {r for r in s if r[0] in "va"}


def sreg(s):
    return {r for r in s if r[0] == "s"}


class Asm:
    def __init__(self):
        self.items = []
        self.ctx = ()

    def __call__(self, text, tag=None):
        for line in text.split("\n"):
            line = line.strip()
            if not line:
                continue
            if line.startswith(";"):
                self.items.append(("c", line))
            else:
                self.items.append(("i", line, tag, self.ctx))

    def cond(self, name):
        outer = self

        class _C:
            def __enter__(s_):
                s_.old = outer.ctx
                outer.ctx = outer.ctx + (name,)
                outer.items.append(("cin", name))

            def __exit__(s_, *e):
                outer.ctx = s_.old
                outer.items.append(("cout", name))
        return _C()

    def uncond(self, text, tag=None):
        old, self.ctx = self.ctx, ()
        self(text, tag)
        self.ctx = old

    def wait_tag(self, *tags, emit=True):
        self.items.append(("w", tags, self.ctx, emit))

    def c(self, text):
        self.items.append(("c", "; " + text))

    def label(self, name, reset=True):
        self.items.append(("l", name, reset))

    def raw(self, text):
        self.items.append(("raw", text))

    def fork(self):
        self.items.append(("fork",))

    def alt(self):
        self.items.append(("alt",))

    def endfork(self):
        self.items.append(("endfork",))

    def note_vm(self):
        self.items.append(("notevm", self.ctx))

    def dropfork(self):
        self.items.append(("dropfork",))

    def assume_clean(self):
        self.items.append(("reset",))

    def finalize(self, check_only=False):
        out = []
        hist = []
        pos = 0
        vm, lg = [], []
        smem = set()
        nnop = nwait = 0
        forks = []
        conds = []

        def emit(text):
            out.append("  " + text)

        def last_gap(pred):
            for (p, ins) in reversed(hist):
                if pos - p > 24:
                    break
                if pred(ins):
                    return pos - p - 1
            return None

        def trim(lst, nkeep, ctx):
            if nkeep == 0:
                return []
            seen = 0
            for i in range(len(lst) - 1, -1, -1):
                if set(lst[i][2]) <= set(ctx):
                    seen += 1
                    if seen > nkeep:
                        return lst[i + 1:]
            return lst

        def younger(lst, i, ctx):
            return sum(1 for e in lst[i + 1:] if set(e[2]) <= set(ctx))

        for it in self.items:
            if it[0] == "w":
                idx = [i for i, e in enumerate(vm) if e[1] in it[1]]
                if idx:
                    i = idx[-1]
                    n = min(younger(vm, i, it[2]), 63)
                    if it[3]:
                        t = f"s_waitcnt vmcnt({n})"
                        emit(t); hist.append((pos, Ins(t))); pos += 1
                    vm = vm[i + 1:]
                continue
            if it[0] == "dropfork":
                forks.pop(); continue
            if it[0] == "notevm":
                vm.append((set(), None, it[1])); continue
            if it[0] == "cin":
                conds.append((list(vm), list(lg), set(smem))); continue
            if it[0] == "cout":
                v0, l0, s0 = conds.pop()
                ids = {id(e) for e in vm}
                vm = [e for e in v0 if id(e) not in ids and it[1] not in e[2]] + vm
                ids = {id(e) for e in lg}
                lg = [e for e in l0 if id(e) not in ids and it[1] not in e[2]] + lg
                smem |= s0
                continue
            if it[0] == "fork":
                forks.append((list(vm), list(lg), set(smem), list(hist))); continue
            if it[0] == "alt":
                s0 = forks.pop()
                forks.append((list(vm), list(lg), set(smem), list(hist)))
                vm, lg, smem = list(s0[0]), list(s0[1]), set(s0[2])
                continue
            if it[0] == "endfork":
                sa = forks.pop()
                vm, lg, smem = list(sa[0]), list(sa[1]) if len(sa[1]) >= len(lg) else lg, set(sa[2]) | smem
                continue
            if it[0] == "c":
                out.append(it[1]); continue
            if it[0] == "raw":
                out.append(it[1]); continue
            if it[0] == "reset":
                vm, lg, smem = [], [], set(); continue
            if it[0] == "l":
                out.append(it[1] + ":")
                if it[2]:
                    pend = [e[0] for e in vm if e[0]] + [e[0] for e in lg if e[0]]
                    if pend or smem:
                        raise RuntimeError(f"label {it[1]}: register loads still outstanding: {pend} {smem}")
                    vm = []
                    lg = []
                continue
            ins = Ins(it[1])
            op = ins.op
            ctx = it[3]
            if op == "s_waitcnt":
                t = ins.text
                m = re.search(r"vmcnt\((\d+)\)", t)
                if m:
                    vm = trim(vm, int(m.group(1)), ctx)
                m = re.search(r"lgkmcnt\((\d+)\)", t)
                if m:
                    nkeep = int(m.group(1))
                    if nkeep == 0:
                        lg = []; smem = set()
                    elif not smem:
                        lg = trim(lg, nkeep, ctx)
                emit(t); hist.append((pos, ins)); pos += 1
                continue
            touched = ins.rd | ins.wr
            iv = [i for i, e in enumerate(vm) if e[0] & touched]
            il = [i for i, e in enumerate(lg) if e[0] & touched]
            w = []
            if iv:
                n = min(younger(vm, iv[-1], ctx), 63)
                w.append(f"vmcnt({n})")
                vm = vm[iv[-1] + 1:]
            if (smem & touched) or (il and smem):
                w.append("lgkmcnt(0)")
                lg = []; smem = set()
            elif il:
                n = min(younger(lg, il[-1], ctx), 15)
                w.append(f"lgkmcnt({n})")
                lg = lg[il[-1] + 1:]
            if w:
                t = "s_waitcnt " + " ".join(w)
                emit(t); hist.append((pos, Ins(t))); pos += 1; nwait += 1
            need = 0

            def req(n, pred):
                nonlocal need
                g = last_gap(pred)
                if g is not None and g < n:
                    need = max(need, n - g)

            rv, wv = vreg(ins.rd), vreg(ins.wr)
            rs = sreg(ins.rd)
            if ins.kind == "mfma":
                req(2, lambda p: p.kind == "valu" and vreg(p.wr) & rv)
                req(8, lambda p: p.kind == "mfma" and p.passes == 4 and p.wr & ins.srcab)
                req(12, lambda p: p.kind == "mfma" and p.passes == 8 and p.wr & ins.srcab)
                for ps, n in ((4, 6), (8, 10)):
                    req(n, lambda p, ps=ps: p.kind == "mfma" and p.passes == ps and (p.wr & ins.srcc)
                        and not (p.wr == ins.srcc and p.passes == ins.passes))
                for ps, n in ((4, 6), (8, 10)):
                    req(n, lambda p, ps=ps: p.kind == "mfma" and p.passes == ps and (p.wr & ins.wr)
                        and not (p.wr == ins.wr and p.wr == ins.srcc and p.passes == ins.passes))
            if ins.kind in ("valu", "ds", "vmem"):
                tv = rv | wv
                req(8, lambda p: p.kind == "mfma" and p.passes == 4 and p.wr & tv)
                req(12, lambda p: p.kind == "mfma" and p.passes == 8 and p.wr & tv)
            if ins.kind == "valu":
                req(3, lambda p: p.kind == "mfma" and p.passes == 4 and p.srcc & wv)
                req(7, lambda p: p.kind == "mfma" and p.passes == 8 and p.srcc & wv)
                base = re.sub(r"_(e32|e64)$", "", op)
                if base not in TRANS:
                    req(1, lambda p: p.kind == "valu" and re.sub(r"_(e32|e64)$", "", p.op) in TRANS and p.wr & (rv | wv))
                if "permlane" in op:
                    req(2, lambda p: p.kind == "valu" and vreg(p.wr) & rv)
                if op.startswith(("v_readfirstlane", "v_readlane")):
                    req(1, lambda p: p.kind == "valu" and vreg(p.wr) & rv)
                if op.startswith(("v_readlane", "v_writelane")):
                    req(4, lambda p: p.kind == "valu" and sreg(p.wr) & rs)
                req(2, lambda p: p.kind == "valu" and sreg(p.wr) & rs)
                if ins.dpp:
                    req(2, lambda p: p.kind == "valu" and vreg(p.wr) & rv)
                req(2, lambda p: p.kind == "vmem" and p.wide_store and vreg(p.R(0)) & wv)
            if ins.kind in ("ds", "vmem") and wv:
                req(1, lambda p: p.kind == "vmem" and p.wide_store and vreg(p.R(0)) & wv)
            if ins.kind == "vmem":
                req(5, lambda p: p.kind == "valu" and sreg(p.wr) & rs)
                if ins.lds_dma:
                    req(1, lambda p: p.kind == "salu" and ("s", "m0") in p.wr)
            if ins.kind == "ctl" and op in ("s_cbranch_vccz", "s_cbranch_vccnz"):
                req(1, lambda p: p.kind == "valu" and sreg(p.wr) & set(parse_regs("vcc")))
            while need > 0:
                k = min(need, 16)
                t = f"s_nop {k - 1}"
                emit(t); hist.append((pos, Ins("s_nop 0"))); pos += k; need -= k; nnop += 1
            emit(ins.text)
            hist.append((pos, ins))
            pos += 1
            if op == "s_nop":
                pos += int(ins.ops[0])
            if len(hist) > 64:
                hist = hist[-48:]
            if ins.cnt == "vm":
                vm.append((set(ins.wr), it[2], ctx))
            elif ins.cnt == "lgkm":
                lg.append((set(ins.wr), it[2], ctx))
            elif ins.cnt == "smem":
                smem |= ins.wr
        self.stats = dict(nops=nnop, waits=nwait, lines=len(out))
        return "\n".join(out) + "\n"
```

```python
import math
from gen import *

NEG = f32(-1e30)
import os
OPT = set(os.environ.get("KOPT", "").split(","))


def ar(b, n=4):
    return f"a[{b}:{b+n-1}]"


def vr(b, n=4):
    return f"v[{b}:{b+n-1}]"


QA, QB = 224, 228
SBUF = (64, 80, 96, 112)
NEGM = {"A": 128, "B": 144}
OACC = {"A": 160, "B": 176}
PBUF = {"A": 192, "B": 200}
CDIAG, CFAR, ANDD, ANDF = 208, 232, 32, 40
AK0, AV0 = 0, 72
L_KV = L_RING


def kfrag(b):
    return AK0 + b * 4


def vfrag(b, half):
    return AV0 + ((b & 1) * 2 + half) * 4


def attn_setup(g):
    a = g.a
    a.c("======== attention constants")
    a("v_and_b32 v3, 31, v1\nv_lshrrev_b32 v4, 5, v1\nv_lshlrev_b32 v4, 2, v4\nv_sub_u32 v3, v3, v4")
    a(f"v_mov_b32 v48, 0\nv_mov_b32 v49, {NEG}\nv_mov_b32 v50, 0xffff\nv_mov_b32 v51, 0xffff0000")
    for i in range(16):
        ci = (i & 3) + 8 * (i >> 2)
        sp = f"s[{72 + 2*(i % 4)}:{73 + 2*(i % 4)}]"
        a(f"v_cmp_le_i32 {sp}, {ci}, v3")
        a(f"v_mov_b32 v{OACC['A']+i}, 0\nv_mov_b32 v{OACC['B']+i}, 0")
        a(f"v_cndmask_b32 v{CDIAG+i}, v49, v48, {sp}\nv_cndmask_b32 v{CFAR+i}, v48, v49, {sp}")
        a(f"v_cndmask_b32 v{52 + (i & 1)}, v48, v{50 + (i & 1)}, {sp}")
        if i & 1:
            a(f"v_or_b32 v{ANDD + i//2}, v52, v53\nv_not_b32 v{ANDF + i//2}, v{ANDD + i//2}")
    for i in range(8):
        a(f"v_mov_b32 v{PBUF['A']+i}, 0\nv_mov_b32 v{PBUF['B']+i}, 0")
    for k in range(AV0, AV0 + 16):
        a(f"v_accvgpr_write_b32 a{k}, v48")
    a("v_mov_b32 v54, 0x3f803f80\ns_mov_b32 exec_lo, 0x00110000\ns_mov_b32 exec_hi, 0x00110000")
    for k in range(AV0, AV0 + 16):
        a(f"v_accvgpr_write_b32 a{k}, v54")
    a("s_mov_b64 exec, -1")


def warmup_text(srd, dst):
    return (f"s_lshl_b32 s72, s2, 2\ns_add_u32 s72, s72, {sWV}\ns_mul_i32 s73, s72, {43*128}\nv_lshlrev_b32 v7, 7, v1\n"
            f"s_cmp_eq_u32 {sL}, 0\ns_cselect_b32 s73, s73, 0x70000000\n"
            f"s_mov_b32 exec_lo, -1\ns_mov_b32 exec_hi, 0x7ff\n"
            f"buffer_load_dword {dst}, v7, {srd}, s73 offen\ns_mov_b64 exec, -1")


def warmup(g, srd, dst):
    g.a(warmup_text(srd, dst))


def team_check(g):
    a = g.a
    top, ok = g.lab("tc"), g.lab("tco")
    a(f"s_lshl_b32 s72, {sR}, 7\ns_add_u32 s72, s72, {WS_XC}\nv_lshlrev_b32 v3, 4, v1\ns_mov_b32 {sCNT}, 0\ns_mov_b64 exec, 0xff")
    a.label(top, reset=False)
    a(f"buffer_load_dwordx4 v[24:27], v3, {SRD_WS}, s72 offen sc1\ns_waitcnt vmcnt(0)")
    a(f"v_cmp_ne_u64 vcc, {sNP}, v[26:27]\ns_cbranch_vccz {ok}")
    a(f"s_add_u32 {sCNT}, {sCNT}, 1\ns_cmp_lt_u32 {sCNT}, {POLL_LIMIT}\ns_cbranch_scc1 {top}\ns_branch L_fail")
    a.label(ok, reset=False)
    a(f"v_cmp_ne_u32 vcc, s1, v24\ns_cmp_eq_u64 vcc, 0\ns_cselect_b32 {sFAST}, 1, 0\ns_mov_b64 exec, -1")


def x2_touch_text():
    return ("v_lshrrev_b32 v6, 3, v0\nv_and_b32 v3, 7, v0\nv_lshlrev_b32 v6, 10, v6\nv_lshl_add_u32 v6, v3, 4, v6\n"
            f"s_lshl_b32 s72, {sR}, 16\ns_lshl_b32 s73, {sCQ}, 7\ns_add_u32 s72, s72, s73\n"
            f"s_cmp_eq_u32 {sL}, 0\ns_cselect_b32 s72, s72, 0x70000000\ns_add_u32 s73, s72, 32768\n"
            f"buffer_load_dword v23, v6, {SRD_DST}, s72 offen sc1\nbuffer_load_dword v24, v6, {SRD_DST}, s73 offen sc1\n"
            f"s_add_u32 s72, {sR}, 32\ns_lshl_b32 s72, s72, 3\ns_add_u32 s72, s72, {sCQ}\ns_lshl_b32 s72, s72, 10\ns_add_u32 s72, s72, {WS_ST2}\n"
            f"s_cmp_eq_u32 {sL}, 0\ns_cselect_b32 s72, s72, 0x70000000\n"
            f"buffer_load_dword v25, v2, {SRD_WS}, s72 offen sc1")


def attn(g):
    a = g.a
    a.c("======== attention")
    a(f"s_sub_u32 s72, {sR}, 4\nv_add_u32 v8, s72, v1\nv_cmp_le_i32 s[74:75], 0, v8")
    g.wg_of("v9", "v8", sCQ)
    g.vflag("v9", PH_KV)
    a("s_and_b64 s[74:75], s[74:75], 0xf")
    a(f"s_lshl_b32 s76, {sR}, 1\ns_add_u32 s76, s76, {sTB}\ns_sub_u32 s77, 8, s76\ns_max_i32 s77, s77, 0")
    a(f"s_lshl_b32 s78, {sCQ}, 1\ns_add_u32 s78, s78, {sP}\ns_lshl_b32 s78, s78, 18\ns_lshl_b32 s79, {sL}, 22")
    a(f"s_add_u32 s78, s78, s79\ns_add_u32 s78, s78, {WS_KV}")
    a(f"s_lshl_b32 s79, {sTB}, 2\ns_lshl_b32 s80, {sR}, 1\ns_add_u32 s80, s80, s79\ns_sub_u32 s80, s80, 8")
    for i in range(4):
        a(f"s_add_i32 s{81+i}, s80, {i}\ns_max_i32 s{81+i}, s{81+i}, 0\ns_lshl_b32 s{81+i}, s{81+i}, 12\ns_add_u32 s{81+i}, s{81+i}, s78")
    a(f"s_lshl_b32 s85, {sR}, 1\ns_add_u32 s85, s85, {sTB}\ns_lshl_b32 s85, s85, 12\ns_add_u32 s85, s85, s78")
    a(f"s_mul_i32 s86, {sP}, 40960\ns_lshl_b32 s87, {sTB}, 14\ns_add_u32 s87, s87, s86\ns_add_u32 s87, s87, {L_KV}")
    a(f"s_lshl_b32 s79, {sTB}, 12\ns_add_u32 s79, s79, s86\ns_add_u32 s79, s79, {L_KV + 8*4096}")
    for q4 in range(4):
        a(f"s_add_u32 m0, s79, {q4*1024}\ns_add_u32 s72, s85, {q4*1024}")
        a(f"buffer_load_dwordx4 v2, {SRD_WS}, s72 offen sc1 lds", tag="Kd")
    a(f"s_lshl_b32 s88, {sTB}, 12\ns_add_u32 s88, s88, s86\ns_add_u32 s88, s88, {L_KV}\nv_add_u32 v10, s88, v2")
    a("v_and_b32 v8, 15, v1\nv_lshlrev_b32 v8, 4, v8\nv_lshrrev_b32 v7, 5, v1\nv_lshl_add_u32 v8, v7, 8, v8\nv_add_u32 v11, s88, v8")
    a("s_mov_b32 s90, 0xffff\ns_mov_b32 s91, 0xffff")
    a("v_bfe_u32 v20, v1, 4, 1\nv_lshlrev_b32 v20, 14, v20\nv_and_b32 v7, 15, v1\nv_lshl_add_u32 v20, v7, 4, v20")
    a("v_lshrrev_b32 v7, 5, v1\nv_lshl_add_u32 v20, v7, 8, v20")
    a(f"s_lshl_b32 s72, {sR}, 2\ns_lshl_b32 s73, {sTB}, 1\ns_add_u32 s72, s72, s73\ns_lshl_b32 s72, s72, 4")
    a(f"s_lshl_b32 s73, {sCQ}, 1\ns_add_u32 s72, s72, s73\ns_add_u32 s72, s72, {sP}\ns_lshl_b32 s72, s72, 10")
    a(f"s_lshl_b32 s73, {sL}, 21\ns_add_u32 s72, s72, s73\ns_add_u32 s89, s72, {WS_OF}")
    a("s_mov_b64 s[76:77], s[74:75]")
    l0_only(g, "l0p", lambda: (team_check(g), p1_setup(g)))
    wo = g.wo_dma()
    g.poll("v9", "s[76:77]")
    a(f"s_lshl_b32 s76, {sR}, 1\ns_add_u32 s76, s76, {sTB}\ns_sub_u32 s77, 8, s76\ns_max_i32 s77, s77, 0")
    g.stamp(6)
    def kvdma(i, h, part):
        return (f"s_add_u32 m0, s87, {i*4096 + h*2048 + part}\ns_add_u32 s72, s{81+i}, {h*2048 + part}\n"
                f"buffer_load_dwordx4 v2, {SRD_WS}, s72 offen sc1 lds")
    for i in range(4):
        for h in range(2):
            a(kvdma(i, h, 0), tag="Kd")
    vd = [kvdma(i, h, 1024) for i in range(4) for h in range(2)]
    heads = ("A", "B")
    q = {"A": QA, "B": QB}
    mx = {"A": (48, 49), "B": (50, 51)}

    def kread(b):
        t, h = b >> 1, b & 1
        return f"ds_read_b128 {ar(kfrag(b))}, v10 offset:{t*4096 + h*2048}"

    def vread(b, half):
        t, h = b >> 1, b & 1
        return f"ds_read_b128 {ar(vfrag(b, half))}, v11 offset:{t*4096 + h*2048 + 1024 + half*512}"

    def qk(b, c):
        return f"v_mfma_f32_32x32x16_bf16 {vr(SBUF[b & 3],16)}, {ar(kfrag(b))}, {vr(q[heads[b & 1]])}, {c}"

    def cmask(t):
        return vr(CFAR, 16) if t == 0 else vr(CDIAG, 16) if t == 8 else "0"

    for h in heads:
        a(f"v_mov_b32 v{mx[h][0]}, {NEG}\nv_mov_b32 v{mx[h][1]}, {NEG}")
    a.wait_tag("Kd")
    a("s_barrier")
    a.c("pass 1: true row maximum over the masked window")
    for b in range(4):
        a(kread(b))
    a(qk(0, cmask(0)))
    a(kread(4))
    a(qk(1, cmask(0)))
    for b in range(18):
        t, s_, h = b >> 1, SBUF[b & 3], heads[b & 1]
        if t < 8 and b % 2 == 0:
            stub, back = g.lab("p1s"), g.lab("p1b")
            always = [x for bb in (b, b + 1) for x in ([kread(bb + 5)] if bb + 5 < 18 else []) + ([qk(bb + 2, cmask((bb + 2) >> 1))] if bb + 2 < 18 else [])
                      + ([vd[bb]] if bb < 8 else []) + ([wo(bb - 2)] if bb >= 2 else [])]
            a(f"s_cmp_gt_u32 s77, {t}\ns_cbranch_scc1 {stub}")
        if b + 5 < 18:
            a(kread(b + 5))
        if b + 2 < 18:
            a(qk(b + 2, cmask((b + 2) >> 1)))
        if b < 8:
            a(vd[b], tag="Vd")
        for i in range(8):
            m = mx[h][i & 1]
            a(f"v_max3_f32 v{m}, v{m}, v{s_+2*i}, v{s_+2*i+1}")
            if i == 3 and b >= 2:
                a(wo(b - 2))
        if t < 8 and b % 2 == 1:
            a.label(back, reset=False)
            g.stubs.append((stub, back, ["s_waitcnt lgkmcnt(0)"] + [y for x in always for y in (x, "s_waitcnt lgkmcnt(0)")]))
    for h in heads:
        m0, m1 = mx[h]
        a(f"v_max_f32 v{m0}, v{m0}, v{m1}\nv_mov_b32 v{m1}, v{m0}")
    for h in heads:
        m0, m1 = mx[h]
        a(f"v_permlane32_swap_b32 v{m0}, v{m1}")
    for h in heads:
        m0, m1 = mx[h]
        a(f"v_max_f32 v{m0}, v{m0}, v{m1}\nv_xor_b32 v{m0}, 0x80000000, v{m0}")
    for i in range(16):
        a(f"v_mov_b32 v{NEGM['A']+i}, v{mx['A'][0]}")
    a(qk(0, vr(NEGM["A"], 16)))
    for i in range(16):
        a(f"v_mov_b32 v{NEGM['B']+i}, v{mx['B'][0]}")
    a.wait_tag("Vd")
    a("s_barrier")
    a(f"buffer_load_dword v21, v20, {SRD_WS}, s89 offen sc1\nbuffer_load_dword v23, v20, {SRD_WS}, s89 offen offset:512 sc1")
    a(f"s_lshl_b32 s72, {sL}, 5\ns_add_u32 s72, s72, {sR}\ns_lshl_b32 s72, s72, 3\ns_add_u32 s72, s72, {sCQ}\ns_lshl_b32 s72, s72, 10")
    a(f"s_lshl_b32 s73, {sWV}, 8\ns_add_u32 s72, s72, s73\ns_add_u32 s72, s72, {WS_ST}")
    a(f"s_mov_b64 exec, 0xffff\nbuffer_load_dword v22, v2, {SRD_WS}, s72 offen sc1\ns_mov_b64 exec, -1")
    l0_only(g, "l0p", lambda: p1_loads(g))
    g.stamp(7)
    a.c("pass 2: P = exp2(S - m), O += V^T P; block b exponentiates S_b, starts S_{b+1} and finishes block b-1")

    def s2(b):
        return SBUF[b & 1]

    def qk2(b):
        h = heads[b & 1]
        return f"v_mfma_f32_32x32x16_bf16 {vr(s2(b),16)}, {ar(kfrag(b))}, {vr(q[h])}, {vr(NEGM[h],16)}"

    def pv(b, half):
        h = heads[b & 1]
        o, p = OACC[h], PBUF[h]
        return f"v_mfma_f32_32x32x16_bf16 {vr(o,16)}, {ar(vfrag(b, half))}, {vr(p+4*half)}, {vr(o,16)}"

    for b in range(18):
        t, h = b >> 1, heads[b & 1]
        nxt = [qk2(b + 1)] if b + 1 < 18 else []
        prv = [pv(b - 1, 0), pv(b - 1, 1)] if b >= 1 else []
        vl = ["s_mov_b64 exec, s[90:91]\n" + vread(b, 0) + "\n" + vread(b, 1) + "\ns_mov_b64 exec, -1"]
        if t < 8 and b % 2 == 0:
            stub, back = g.lab("sk"), g.lab("bk")
            a(f"s_cmp_gt_u32 s77, {t}\ns_cbranch_scc1 {stub}")
        s_, p = s2(b), PBUF[h]
        extra = {1: nxt[:1], 4: prv[:1], 9: prv[1:2], 11: vl}
        for i in range(16):
            a(f"v_exp_f32 v{s_+i}, v{s_+i}")
            if i >= 2 and i % 2 == 0:
                k = i // 2 - 1
                a(f"v_cvt_pk_bf16_f32 v{p+k}, v{s_+2*k}, v{s_+2*k+1}")
            for x in extra.get(i, []):
                a(x)
        a(f"s_nop 0\nv_cvt_pk_bf16_f32 v{p+7}, v{s_+14}, v{s_+15}")
        if t in (0, 8):
            msk = ANDF if t == 0 else ANDD
            for k in range(8):
                a(f"v_and_b32 v{p+k}, v{msk+k}, v{p+k}")
        if t < 8 and b % 2 == 1:
            a.label(back, reset=False)
            g.stubs.append((stub, back, nxt))
    a(pv(17, 0)); a(pv(17, 1))
    g.stamp(8)
    for hi, h in enumerate(heads):
        o = OACC[h]
        a(f"v_rcp_f32 v52, v{o+8}")
        for i in range(8):
            a(f"v_mul_f32 v{o+i}, v52, v{o+i}")
        for k in range(4):
            a(f"v_cvt_pk_bf16_f32 v{o+k}, v{o+2*k}, v{o+2*k+1}")

    def ost(m):
        for hi, h in enumerate(heads):
            a(f"buffer_store_dwordx4 {vr(OACC[h])}, v20, {SRD_WS}, s89 offen offset:{hi*512} {m}", tag="Ost")
    g.dual(ost)


L_STG = L_RING + 10240
L_STG2 = L_RING
V_W1D, V_W1R, V_W2D, V_W2R = 52, 56, 40, 42


PA1 = 96
V_P1 = 12


def p1_setup(g):
    a = g.a
    a("s_lshr_b32 s72, s2, 2\ns_and_b32 s73, s2, 3")
    a("s_mul_i32 s74, s73, 7\ns_min_u32 s75, s73, 1\ns_add_u32 s74, s74, s75")
    a("s_cmp_eq_u32 s73, 0\ns_cselect_b32 s75, 8, 7")
    a(f"s_mul_i32 s101, s72, {32*2752}\ns_mul_i32 s73, s74, 96\ns_add_u32 s101, s101, s73\ns_mul_i32 s75, s75, 6")
    a("s_mov_b32 s72, 1311\ns_mov_b32 s73, 2752")
    for n in range(7):
        a(f"s_lshl_b32 s74, {sWV}, 6\ns_add_u32 s74, s74, {256*n}\nv_add_u32 v3, s74, v1")
        a("v_mul_lo_u32 v4, v3, s72\nv_lshrrev_b32 v4, 16, v4\nv_mul_u32_u24 v5, 50, v4\nv_sub_u32 v5, v3, v5")
        a("v_mul_lo_u32 v6, v4, s73\nv_lshl_add_u32 v6, v5, 4, v6")
        a("v_cmp_gt_u32 vcc, s75, v5\nv_cmp_gt_u32 s[78:79], 32, v4\ns_and_b64 vcc, vcc, s[78:79]")
        a(f"v_mov_b32 v5, 0x7ff00000\nv_cndmask_b32 v{V_P1+n}, v5, v6, vcc")


def p1_loads(g):
    a = g.a
    for n in range(7):
        a(f"buffer_load_dwordx4 {ar(PA1+4*n)}, v{V_P1+n}, {SRD_W1}, s101 offen")


def p1_finish(g):
    a = g.a
    L1 = L_RING
    a("s_lshr_b32 s72, s2, 2\ns_and_b32 s73, s2, 3")
    a("s_mul_i32 s74, s73, 7\ns_min_u32 s75, s73, 1\ns_add_u32 s74, s74, s75")
    a("s_cmp_eq_u32 s73, 0\ns_cselect_b32 s75, 8, 7")
    a(f"s_lshl_b32 s80, {sWV}, 10\ns_add_u32 s80, s80, {L1}\nv_add_u32 v64, s80, v2")
    for n in range(7):
        a(f"ds_write_b128 v64, {ar(PA1+4*n)} offset:{n*4096}")
    a("v_lshrrev_b32 v65, 4, v1\nv_lshlrev_b32 v65, 3, v65\nv_bfe_u32 v66, v1, 2, 2\nv_add_u32 v65, v65, v66\nv_and_b32 v66, 3, v1")
    a(f"v_mul_u32_u24 v67, 800, v65\nv_lshl_add_u32 v67, v66, 3, v67\ns_lshl_b32 s80, {sWV}, 5\ns_add_u32 s80, s80, {L1}\nv_add_u32 v67, s80, v67")
    a("s_waitcnt lgkmcnt(0)\ns_barrier")
    for n in range(6):
        for rd in range(2):
            a(f"ds_read_b64_tr_b16 v[{72+4*n+2*rd}:{73+4*n+2*rd}], v67 offset:{128*n + rd*3200}")
    for n in range(6):
        a(f"s_add_u32 s80, {sWV}, {4*n}\ns_mul_i32 s81, s80, 43\ns_lshr_b32 s81, s81, 7\ns_mul_i32 s82, s81, 3\ns_sub_u32 s82, s80, s82")
        a("s_mul_i32 s83, s81, 6\ns_mul_i32 s85, s75, 6\ns_cmp_lt_u32 s83, s85\ns_cselect_b32 s85, 0, 0x70000000")
        a("s_add_u32 s81, s81, s74\ns_lshl_b32 s81, s81, 6\ns_add_u32 s81, s81, s72\ns_mul_i32 s81, s81, 3\ns_add_u32 s81, s81, s82")
        a(f"s_lshl_b32 s81, s81, 10\ns_add_u32 s81, s81, {WS_W1P}\ns_or_b32 s81, s81, s85")
        a(f"buffer_store_dwordx4 {vr(72+4*n)}, v2, {SRD_WS}, s81 offen sc1")


def early_w1(g, i0, i1, check=False):
    a = g.a
    skip = g.lab("e1")
    a(f"s_cmp_eq_u32 {sM1}, 0\ns_cbranch_scc1 {skip}")
    with a.cond("m1"):
        if check:
            l0_only(g, "l0c", lambda: (p1_check(g), w1_loads(g, 0, i0)))
        w1_loads(g, i0, i1)
    a.label(skip, reset=False)


def l0_only(g, name, fn):
    a = g.a
    skip = g.lab("l0s")
    a(f"s_cmp_eq_u32 {sL}, 0\ns_cbranch_scc0 {skip}")
    with a.cond(name):
        fn()
    a.label(skip, reset=False)


def p1_check(g):
    a = g.a
    a(f"s_cmp_ge_u32 {sJ1}, 8\ns_cselect_b32 s72, 1, 0\ns_cmp_ge_u32 {sJ1}, 15\ns_addc_u32 s72, s72, 0")
    a(f"s_cmp_ge_u32 {sJ1}, 22\ns_addc_u32 s72, s72, 0")
    a(f"s_lshl_b32 s73, {sWV}, 4\nv_add_u32 v9, s73, v1\nv_lshl_add_u32 v9, v9, 2, s72")
    a(f"v_lshlrev_b32 v9, 7, v9\nv_add_u32 v9, {WS_FLAG + PH_P*2*256*128}, v9")
    g.poll("v9", "0xffff")


def w1_loads(g, i0, i1):
    a = g.a
    a(f"s_lshl_b32 s72, {sJ1}, 6\ns_lshl_b32 s73, {sWV}, 4\ns_add_u32 s72, s72, s73\ns_mul_i32 s72, s72, 3072\ns_add_u32 s72, s72, {WS_W1P}")
    for i in range(i0, i1):
        st, ft = divmod(i, 3)
        a(f"s_add_u32 s73, s72, {st*3072}")
        a(f"buffer_load_dwordx4 {ar(4*i)}, v2, {SRD_WS}, s73 offen offset:{ft*1024} sc1")


def m1_only(g, fn):
    a = g.a
    skip = g.lab("m1s")
    a(f"s_cmp_eq_u32 {sM1}, 0\ns_cbranch_scc1 {skip}")
    with a.cond("m1"):
        fn()
    a.label(skip, reset=False)


def w2_setup(g):
    a = g.a
    a("v_lshrrev_b32 v3, 3, v1\nv_lshlrev_b32 v3, 12, v3\nv_bfe_u32 v4, v1, 1, 2\nv_bfe_u32 v5, v1, 4, 1\nv_and_b32 v6, 1, v1")
    for e in range(2):
        a(f"v_or_b32 v7, {2*e}, v5\nv_xor_b32 v7, v4, v7\nv_lshl_add_u32 v7, v7, 1, v6\nv_lshl_add_u32 v{V_W2D+e}, v7, 4, v3")
    a("v_lshrrev_b32 v3, 4, v1\nv_lshlrev_b32 v4, 3, v3\nv_bfe_u32 v5, v1, 2, 2\nv_add_u32 v4, v4, v5\nv_lshlrev_b32 v4, 7, v4")
    a("v_and_b32 v5, 3, v1\nv_lshl_add_u32 v4, v5, 3, v4\nv_and_b32 v3, 1, v3\nv_lshlrev_b32 v3, 1, v3\nv_bfe_u32 v5, v1, 3, 1\nv_or_b32 v3, v3, v5")
    for k in range(4):
        a(f"v_xor_b32 v5, {k}, v3\nv_lshl_add_u32 v{V_W2R+k}, v5, 5, v4")
    a(f"s_mul_i32 s89, {sWV}, {11*32*4096}\ns_lshl_b32 s88, {sR}, 7\ns_add_u32 s89, s89, s88")


def w2_lds(st):
    if st < 5:
        return ("s86", st * 4096)
    if st < 9:
        return ("s87", (st - 5) * 4096)
    return ("s86", (st - 9) * 4096)


def w2_bases(g):
    g.a(f"s_mul_i32 s86, {sWV}, 20480\ns_add_u32 s86, s86, {L_STG2}\ns_lshl_b32 s87, {sWV}, 14\ns_add_u32 s87, s87, {L_X}")


def w2_dma_text(st, m):
    base, off = w2_lds(st)
    return (f"s_add_u32 m0, {base}, {off + m*1024}\ns_add_u32 s88, s89, {(st*32 + 8*m)*4096}",
            f"buffer_load_dwordx4 v{V_W2D + (m & 1)}, {SRD_W2P}, s88 offen lds")


def w2_dma(g, st, m, uncond=False):
    pre, ld = w2_dma_text(st, m)
    g.a(pre)
    (g.a.uncond if uncond else g.a)(ld, tag=f"D2_{0 if st < 5 else 5 if st < 9 else 9}")
    return pre + "\n" + ld


def w2_tr(g, s0, s1):
    a = g.a
    base, _ = w2_lds(s0)
    for k in range(4):
        a(f"v_add_u32 v{32+k}, {base}, v{V_W2R+k}")
    for st in range(s0, s1):
        _, off = w2_lds(st)
        for k in range(4):
            for rd in range(2):
                b = (st*4 + k) * 4 + 2*rd
                a(f"ds_read_b64_tr_b16 a[{b}:{b+1}], v{32+k} offset:{off + rd*512}")


def o_flags(g):
    a = g.a
    a(f"v_mov_b32 v8, {sR}\nv_and_b32 v9, 3, v8\nv_lshlrev_b32 v9, 3, v9\nv_add_u32 v9, v1, v9\nv_lshlrev_b32 v9, 3, v9")
    a("v_lshrrev_b32 v7, 2, v8\nv_add_u32 v9, v9, v7")
    g.vflag("v9", PH_O)


def oproj(g):
    a = g.a
    a.c("======== output projection, residual, double LayerNorm")
    OFR, WPRE, WFR, ACC = 64, 128, 14, 46
    a("v_lshrrev_b32 v3, 5, v1\nv_lshlrev_b32 v3, 4, v3\nv_bfe_u32 v4, v1, 4, 1\nv_lshl_add_u32 v3, v4, 2, v3")
    a("v_bfe_u32 v5, v1, 2, 2\nv_add_u32 v3, v3, v5\nv_bfe_u32 v5, v3, 1, 2\nv_and_b32 v6, 3, v1\nv_lshlrev_b32 v6, 3, v6")
    a("v_lshl_add_u32 v6, v3, 7, v6")
    for nt in range(4):
        a(f"v_xor_b32 v7, {nt}, v5\nv_lshl_add_u32 v{10+nt}, v7, 5, v6")

    def wreg(ks, nt):
        return WPRE + ks * 16 + nt * 4 if ks < 8 else WFR + (ks & 1) * 16 + nt * 4

    def wread(ks, nt):
        b = wreg(ks, nt)
        for rd in range(2):
            a(f"ds_read_b64_tr_b16 v[{b+2*rd}:{b+2*rd+1}], v{10+nt} offset:{L_X + ks*4096 + rd*1024}")
    for ks in range(8):
        for nt in range(4):
            wread(ks, nt)
    g.poll("v9", "0xff")
    a("s_waitcnt vmcnt(0) lgkmcnt(0)")
    lp = g.lab("pp")
    a("s_barrier")
    a(f"s_or_b32 s72, {sL}, {sWV}\ns_cmp_eq_u32 s72, 0\ns_cbranch_scc0 {lp}")
    with a.cond(lp):
        a(f"s_lshl_b32 s70, s2, 7\ns_add_u32 s70, s70, {WS_FLAG + PH_P*2*256*128}")
        a(f"v_mov_b32 v4, {sN}\nv_mov_b32 v5, {sNN}\nv_mov_b32 v6, s70\ns_mov_b64 exec, 1")
        a(f"buffer_store_dwordx2 v[4:5], v6, {SRD_WS}, 0 offen sc1")
        a("s_mov_b64 exec, -1")
    a.label(lp, reset=False)
    g.stamp(10)
    a(f"s_lshl_b32 s72, {sR}, 2\ns_add_u32 s72, s72, {sWV}\ns_lshl_b32 s72, s72, 14\ns_lshl_b32 s73, {sL}, 21")
    a(f"s_add_u32 s72, s72, s73\ns_add_u32 s74, s72, {WS_OF}")

    def oload(ks):
        a(f"s_add_u32 s73, s74, {(ks >> 2)*4096}")
        a(f"buffer_load_dwordx4 {vr(OFR+4*ks)}, v2, {SRD_WS}, s73 offen offset:{(ks & 3)*1024} sc1")
    OD = 11
    for ks in range(OD):
        oload(ks)
    g.stamp(25)

    def main(w1):
        if w1:
            a(f"s_lshl_b32 s76, {sJ1}, 6\ns_lshl_b32 s77, {sWV}, 4\ns_add_u32 s76, s76, s77\ns_mul_i32 s76, s76, 3072\ns_add_u32 s76, s76, {WS_W1P}")
        for ks in range(16):
            if ks + OD < 16:
                oload(ks + OD)
            for nt in range(4):
                c = "0" if ks == 0 else vr(ACC + 4*nt)
                a(f"v_mfma_f32_16x16x32_bf16 {vr(ACC+4*nt)}, {vr(wreg(ks, nt))}, {vr(OFR+4*ks)}, {c}")
                if 6 <= ks <= 13:
                    wread(ks + 2, nt)
                if w1 and nt == 1 and ks >= 4:
                    for i in ((ks - 4) * 2, (ks - 4) * 2 + 1) if ks < 12 else ():
                        st, ft = divmod(i, 3)
                        a(f"s_add_u32 s77, s76, {st*3072}")
                        a(f"buffer_load_dwordx4 {ar(4*i)}, v2, {SRD_WS}, s77 offen offset:{ft*1024} sc1")
            if ks == 0:
                g.stamp(28)
            if ks == 7:
                g.stamp(29)
    la, lb = g.lab("oa"), g.lab("ob")
    a(f"s_and_b32 s79, {sM1}, {sL}\ns_cmp_eq_u32 s79, 0\ns_cbranch_scc1 {la}")
    a.fork()
    main(True)
    a(f"s_branch {lb}")
    a.label(la, reset=False)
    a.alt()
    main(False)
    a.endfork()
    a.label(lb, reset=False)
    g.stamp(11)
    a(f"v_and_b32 v3, 15, v1\ns_lshl_b32 s72, {sWV}, 4\nv_add_u32 v14, s72, v3\nv_lshrrev_b32 v4, 4, v1")
    a(f"v_mul_u32_u24 v5, 144, v14\nv_lshl_add_u32 v5, v4, 3, v5\nv_add_u32 v15, {L_R}, v5")
    for nt in range(4):
        a(f"ds_read_b64 v[{176+2*nt}:{177+2*nt}], v15 offset:{32*nt}")
    X1 = 192
    for nt in range(4):
        for k in range(2):
            a(f"v_lshlrev_b32 v{X1+4*nt+2*k}, 16, v{176+2*nt+k}\nv_and_b32 v{X1+4*nt+2*k+1}, 0xffff0000, v{176+2*nt+k}")
    for i in range(16):
        a(f"v_add_f32 v{X1+i}, v{X1+i}, v{ACC+i}")
    for k in range(8):
        a(f"v_cvt_pk_bf16_f32 v{176+k}, v{X1+2*k}, v{X1+2*k+1}")
    for nt in range(4):
        a(f"ds_write_b64 v15, v[{176+2*nt}:{177+2*nt}] offset:{32*nt}")
    a(f"v_add_f32 v16, v{X1}, v{X1+1}\nv_mul_f32 v17, v{X1}, v{X1}\nv_fmac_f32 v17, v{X1+1}, v{X1+1}")
    for i in range(2, 16):
        a(f"v_add_f32 v16, v16, v{X1+i}\nv_fmac_f32 v17, v{X1+i}, v{X1+i}")

    def fold_groups(r0, r1):
        for sw in ("16", "32"):
            a(f"v_mov_b32 v20, v{r0}\nv_mov_b32 v21, v{r1}")
            a(f"v_permlane{sw}_swap_b32 v{r0}, v20\nv_permlane{sw}_swap_b32 v{r1}, v21")
            a(f"v_add_f32 v{r0}, v{r0}, v20\nv_add_f32 v{r1}, v{r1}, v21")
    fold_groups(16, 17)
    a(f"v_mov_b32 v18, {sN}\nv_mov_b32 v19, {sNN}")
    a(f"s_lshl_b32 s72, {sL}, 5\ns_add_u32 s72, s72, {sR}\ns_lshl_b32 s72, s72, 13\ns_add_u32 s72, s72, {WS_ST}")
    a(f"s_lshl_b32 s73, {sCQ}, 10\ns_add_u32 s73, s73, s72\nv_lshlrev_b32 v22, 4, v14")
    a("s_mov_b64 exec, 0xffff")
    g.dual(lambda m: a(f"buffer_store_dwordx4 v[16:19], v22, {SRD_WS}, s73 offen {m}"))
    a("s_mov_b64 exec, -1")
    g.stamp(26)
    early_w1(g, 16, 28, check=True)
    a("v_lshrrev_b32 v4, 4, v1")
    g.stamp(27)
    a(f"s_lshl_b32 s72, {sL}, 5\ns_add_u32 s72, s72, {sR}\ns_lshl_b32 s72, s72, 13\ns_add_u32 s72, s72, {WS_ST}")
    a("v_lshl_add_u32 v23, v4, 11, v22\ns_mov_b32 s100, 0")
    top, ok = g.lab("stp"), g.lab("sto")
    a.label(top, reset=False)
    a(f"buffer_load_dwordx4 v[24:27], v23, {SRD_WS}, s72 offen sc1")
    a(f"buffer_load_dwordx4 v[28:31], v23, {SRD_WS}, s72 offen offset:1024 sc1")
    a("s_waitcnt vmcnt(0)")
    a(f"v_cmp_ne_u64 vcc, {sNP}, v[26:27]\nv_cmp_ne_u64 s[74:75], {sNP}, v[30:31]\ns_or_b64 vcc, vcc, s[74:75]")
    a(f"s_cbranch_vccz {ok}")
    a(f"s_add_u32 s100, s100, 1\ns_cmp_lt_u32 s100, {POLL_LIMIT}\ns_cbranch_scc1 {top}\ns_branch L_fail")
    a.label(ok, reset=False)
    g.stamp(12)
    a("v_add_f32 v16, v24, v28\nv_add_f32 v17, v25, v29")
    fold_groups(16, 17)
    a(f"v_mul_f32 v16, {f32(1/512)}, v16\nv_mul_f32 v17, {f32(1/512)}, v17\nv_fma_f32 v17, -v16, v16, v17\nv_max_f32 v17, 0, v17")
    a(f"v_add_f32 v18, {f32(1e-5)}, v17\nv_rsq_f32 v18, v18")
    a(f"v_mul_f32 v19, v18, v18\nv_mul_f32 v19, v19, v17\nv_add_f32 v19, {f32(1e-5)}, v19\nv_rsq_f32 v19, v19\nv_mul_f32 v18, v18, v19")
    for i in range(16):
        a(f"v_sub_f32 v{X1+i}, v{X1+i}, v16")
    for i in range(16):
        a(f"v_mul_f32 v{X1+i}, v18, v{X1+i}")
    for k in range(8):
        a(f"v_cvt_pk_bf16_f32 v{176+k}, v{X1+2*k}, v{X1+2*k+1}")
    HT = L_RING
    a(f"v_mul_u32_u24 v5, 160, v14\nv_lshl_add_u32 v5, v4, 3, v5\nv_add_u32 v5, {HT}, v5")
    for nt in range(4):
        a(f"ds_write_b64 v5, v[{176+2*nt}:{177+2*nt}] offset:{32*nt}")
    a("v_lshrrev_b32 v3, 4, v1\nv_lshlrev_b32 v3, 3, v3\nv_bfe_u32 v6, v1, 2, 2\nv_add_u32 v3, v3, v6")
    a(f"s_lshl_b32 s72, {sTB}, 5\nv_add_u32 v3, s72, v3\nv_mul_u32_u24 v3, 160, v3\nv_and_b32 v6, 3, v1\nv_lshl_add_u32 v3, v6, 3, v3")
    a(f"s_lshl_b32 s72, {sP}, 6\ns_add_u32 s72, s72, {HT}\nv_add_u32 v3, s72, v3")
    a("s_waitcnt lgkmcnt(0)\ns_barrier")
    for e in range(2):
        for rd in range(2):
            a(f"ds_read_b64_tr_b16 v[{184+4*e+2*rd}:{185+4*e+2*rd}], v3 offset:{32*e + rd*640}")
    a(f"s_lshl_b32 s72, {sCQ}, 6\ns_lshl_b32 s73, {sR}, 1\ns_add_u32 s72, s72, s73\ns_add_u32 s72, s72, {sTB}\ns_lshl_b32 s72, s72, 2")
    a(f"s_lshl_b32 s73, {sP}, 1\ns_add_u32 s72, s72, s73\ns_lshl_b32 s72, s72, 10\ns_lshl_b32 s73, {sL}, 21\ns_add_u32 s72, s72, s73\ns_add_u32 s72, s72, {WS_H}")
    for e in range(2):
        a(f"buffer_store_dwordx4 {vr(184+4*e)}, v2, {SRD_WS}, s72 offen offset:{e*1024} sc1", tag="Hst")


def mix1(g):
    a = g.a
    a.c("======== token mixing 1: u = gelu(h^T W1 + b1)")
    skip, other = g.lab("m1"), g.lab("m1o")
    w2_setup(g)
    w2_bases(g)
    a(f"s_cmp_eq_u32 {sM1}, 0\ns_cbranch_scc1 {other}")
    w2_text = []

    def w2(i):
        return w2_dma(g, i >> 2, i & 3, uncond=True)
    with a.cond("m1"):
        g.srd(32, P_B1, 2752)
        a(f"s_mul_i32 s72, {sJ1}, 96\nv_and_b32 v3, 1, v1\nv_lshlrev_b32 v3, 3, v3\ns_mul_i32 s73, {sWV}, 3")
        for i in range(3):
            a(f"s_add_u32 s74, s73, {i}\ns_lshr_b32 s74, s74, 1\ns_lshl_b32 s74, s74, 4\ns_add_u32 s74, s74, s72")
            a(f"buffer_load_dwordx2 v[{14+2*i}:{15+2*i}], v3, {SRD_T}, s74 offen")
        a(f"s_lshl_b32 s73, {sWV}, 3\nv_add_u32 v8, s73, v1")
        g.wg_of("v9", "v8", sC1)
        g.vflag("v9", PH_H)
        c0 = -2 * math.log2(math.e) * math.sqrt(2 / math.pi)
        c1 = c0 * 0.044715
        a(f"v_and_b32 v3, 15, v1\nv_mul_u32_u24 v3, 208, v3\nv_lshrrev_b32 v4, 4, v1\nv_lshl_add_u32 v3, v4, 4, v3")
        a(f"s_mul_i32 s72, {sWV}, 13312\nv_add_u32 v13, s72, v3")
        a("v_lshrrev_b32 v3, 1, v1\nv_mul_u32_u24 v10, 208, v3\nv_and_b32 v4, 1, v1\nv_lshl_add_u32 v10, v4, 4, v10")
        a("v_lshrrev_b32 v5, 5, v1\nv_lshlrev_b32 v11, 10, v5\nv_and_b32 v3, 15, v3\nv_lshl_add_u32 v11, v3, 4, v11\nv_lshl_add_u32 v11, v4, 3, v11")
        a(f"s_mul_i32 s76, {sWV}, 3\ns_mul_i32 s77, {sC1}, {UC}\ns_lshl_b32 s73, {sL}, 21\ns_add_u32 s77, s77, s73\ns_add_u32 s77, s77, {WS_U}")
        a(f"s_mov_b32 s84, {f32(c1)}\ns_mov_b32 s85, {f32(c0)}")
        for i in range(3):
            a(f"s_add_u32 s72, s76, {i}\ns_lshr_b32 s73, s72, 1\ns_and_b32 s72, s72, 1")
            a(f"s_mul_i32 s74, s72, {32*208}\ns_lshl_b32 s75, s73, 5\ns_add_u32 s74, s74, s75\nv_add_u32 v{20+i}, s74, v10")
            a(f"s_mul_i32 s74, {sJ1}, 6\ns_add_u32 s74, s74, s73\ns_lshr_b32 s75, s74, 2\ns_and_b32 s78, s74, 3")
            a(f"s_lshl_b32 s75, s75, 12\ns_lshl_b32 s78, s78, 8\ns_add_u32 s75, s75, s78\ns_lshl_b32 s72, s72, 11\ns_add_u32 s75, s75, s72")
            a(f"s_add_u32 s75, s75, s77\ns_cmp_ge_u32 s74, 172\ns_cselect_b32 s78, 0x70000000, 0\ns_or_b32 s{80+i}, s75, s78")
        g.poll("v9", "0xff")
        g.stamp(14)
        HB, NS, ACC, HD = 64, 24, 192, 15
        a(f"s_lshl_b32 s72, {sC1}, 6\ns_lshl_b32 s73, {sWV}, 4\ns_add_u32 s72, s72, s73\ns_lshl_b32 s72, s72, 12")
        a(f"s_lshl_b32 s73, {sL}, 21\ns_add_u32 s72, s72, s73\ns_add_u32 s72, s72, {WS_H}")
        nload = [0]

        def hload():
            n = nload[0]
            a(f"buffer_load_dwordx4 {vr(HB + 4*(n % NS))}, v2, {SRD_WS}, s72 offen offset:{(n & 3)*1024} sc1")
            if n & 3 == 3:
                a("s_add_u32 s72, s72, 4096")
            nload[0] += 1
        for _ in range(HD):
            hload()
        for st in range(16):
            for dt in range(4):
                hb = HB + 4 * ((st*4 + dt) % NS)
                for ft in range(3):
                    acc = ACC + (ft*4 + dt) * 4
                    c = "0" if st == 0 else ar(acc)
                    a(f"v_mfma_f32_16x16x32_bf16 {ar(acc)}, {ar((st*3+ft)*4)}, {vr(hb)}, {c}")
                if nload[0] < 64:
                    hload()
                    pass
        l0_only(g, "l0t", lambda: (warmup(g, SRD_W2P, "v60") if "now2wu" not in OPT else None, a(x2_touch_text())))
        g.stamp(15)
        nw2 = 0
        for dt in range(4):
            for ft in range(3):
                a(f"ds_write_b128 v13, {ar(ACC + (ft*4+dt)*4)} offset:{L_X + dt*16*208 + ft*64}")
        a("s_waitcnt lgkmcnt(0)\ns_barrier")
        for i in range(3):
            for k in range(4):
                a(f"ds_read_b128 {vr(64 + 16*i + 4*k)}, v{20+i} offset:{L_X + k*13312}")
        sk3 = g.lab("ep")
        a(f"s_or_b32 s72, s2, {sL}\ns_or_b32 s72, s72, {sWV}\ns_cmp_eq_u32 s72, 0\ns_cbranch_scc0 {sk3}")
        with a.cond(sk3):
            a(f"v_mov_b32 v4, {sN}\nv_mov_b32 v5, {WS_EPOCH}\ns_mov_b64 exec, 1")
            a(f"buffer_store_dword v4, v5, {SRD_WS}, 0 offen sc1")
            a("s_mov_b64 exec, -1")
        a.label(sk3, reset=False)
        for i in range(3):
            B = 64 + 16 * i
            bb = 14 + 2 * i

            def w2x(k=1):
                nonlocal nw2
                for _ in range(k):
                    if nw2 < 18:
                        w2_text.append(w2(nw2)); nw2 += 1
            for e in range(4):
                a(f"v_add_f32 v{B+e}, v{B+e}, v{B+4+e}\nv_add_f32 v{B+8+e}, v{B+8+e}, v{B+12+e}")
            w2x()
            a(f"v_lshlrev_b32 v{B+4}, 16, v{bb}\nv_and_b32 v{B+5}, 0xffff0000, v{bb}\nv_lshlrev_b32 v{B+6}, 16, v{bb+1}\nv_and_b32 v{B+7}, 0xffff0000, v{bb+1}")
            for e in range(4):
                a(f"v_add_f32 v{B+e}, v{B+e}, v{B+8+e}")
            w2x()
            for e in range(4):
                a(f"v_add_f32 v{B+e}, v{B+e}, v{B+4+e}")
            for e in range(4):
                a(f"v_mul_f32 v{B+4+e}, v{B+e}, v{B+e}\nv_mov_b32 v{B+8+e}, s85")
            w2x()
            for e in range(4):
                a(f"v_fmac_f32 v{B+8+e}, s84, v{B+4+e}")
            for e in range(4):
                a(f"v_mul_f32 v{B+8+e}, v{B+8+e}, v{B+e}")
            for e in range(4):
                a(f"v_exp_f32 v{B+8+e}, v{B+8+e}")
            w2x()
            for e in range(4):
                a(f"v_add_f32 v{B+8+e}, 1.0, v{B+8+e}")
            for e in range(4):
                a(f"v_rcp_f32 v{B+8+e}, v{B+8+e}")
            for e in range(4):
                a(f"v_mul_f32 v{B+e}, v{B+e}, v{B+8+e}")
            a(f"v_cvt_pk_bf16_f32 v{B+4}, v{B}, v{B+1}\nv_cvt_pk_bf16_f32 v{B+5}, v{B+2}, v{B+3}")
            a(f"buffer_store_dwordx2 v[{B+4}:{B+5}], v11, {SRD_WS}, s{80+i} offen sc1", tag="Ust")
        while nw2 < 20:
            w2_text.append(w2(nw2)); nw2 += 1
        a.wait_tag("Ust")
        g.publish(PH_U)
    a.label(skip, reset=False)
    lt = g.lab("tl")
    g.tails.append((other, skip, [f"s_cmp_eq_u32 {sL}, 0\ns_cbranch_scc0 {lt}\n" + warmup_text(SRD_W2P, "v60") + "\n" + x2_touch_text() + f"\n@{lt}"] + w2_text))
    for i in range(20, 36):
        w2_dma(g, i >> 2, i & 3)
    a.wait_tag("D2_0")
    w2_tr(g, 0, 5)
    a("s_waitcnt lgkmcnt(0)")
    for i in range(36, 44):
        w2_dma(g, i >> 2, i & 3)


def mix2(g):
    a = g.a
    a.c("======== token mixing 2: x += (u W2 + b2)^T")
    g.srd(32, P_B2, 4096)
    a(f"v_lshrrev_b32 v10, 3, v0\ns_lshl_b32 s72, {sR}, 7\nv_lshl_add_u32 v11, v10, 1, s72")
    a(f"buffer_load_ushort v12, v11, {SRD_T}, 0 offen\nbuffer_load_ushort v13, v11, {SRD_T}, 0 offen offset:64")
    a(f"s_mul_i32 s72, {sCQ}, {UC}\ns_lshl_b32 s73, {sL}, 21\ns_add_u32 s72, s72, s73\ns_add_u32 s72, s72, {WS_U}")
    g.srd(24, P_WS, UC, "s72")
    a(f"s_mul_i32 s72, {sWV}, 352\ns_mul_hi_u32 s72, s72, {(1 << 32)//48 + 1}\nv_add_u32 v8, s72, v1\nv_min_u32 v8, 28, v8")
    a("v_cmp_le_u32 vcc, 8, v8\nv_cndmask_b32 v6, 0, 1, vcc\nv_cmp_le_u32 vcc, 15, v8\nv_addc_co_u32 v6, vcc, 0, v6, vcc")
    a("v_cmp_le_u32 vcc, 22, v8\nv_addc_co_u32 v6, vcc, 0, v6, vcc")
    a("v_mul_u32_u24 v7, 7, v6\nv_min_u32 v9, 1, v6\nv_add_u32 v7, v7, v9\nv_sub_u32 v7, v8, v7")
    a(f"s_and_b32 s72, {sCQ}, 3\ns_lshr_b32 s73, {sCQ}, 2\nv_lshl_add_u32 v7, v7, 2, s72\nv_lshlrev_b32 v7, 3, v7")
    a("v_lshl_add_u32 v9, v6, 1, v7\nv_add_u32 v9, s73, v9")
    g.vflag("v9", PH_U)
    g.poll("v9", "0xff")
    g.stamp(17)
    UB, ACC, UD = 64, 192, 14
    a(f"s_mul_i32 s85, {sWV}, {11*4096}")

    def uload(i):
        st, dt = i >> 2, i & 3
        a(f"s_add_u32 s72, s85, {st*4096}")
        a(f"buffer_load_dwordx4 {vr(UB + 4*i)}, v2, {SRD_U}, s72 offen offset:{dt*1024} sc1")
    for i in range(UD):
        uload(i)
    a.wait_tag("D2_5")
    w2_tr(g, 5, 9)
    a.wait_tag("D2_9")
    w2_tr(g, 9, 11)
    for st in range(11):
        for dt in range(4):
            for k in range(4):
                acc = ACC + (dt*4 + k) * 4
                c = "0" if st == 0 else ar(acc)
                a(f"v_mfma_f32_16x16x32_bf16 {ar(acc)}, {vr(UB + (st*4+dt)*4)}, {ar((st*4+k)*4)}, {c}")
                if k == 1 and st*4 + dt + UD < 44:
                    uload(st*4 + dt + UD)
    g.stamp(18)
    a("v_and_b32 v3, 15, v1\nv_lshrrev_b32 v4, 4, v1\nv_and_b32 v5, 7, v1")
    a(f"s_lshl_b32 s72, {sWV}, 14")
    for dt in range(4):
        a(f"v_add_u32 v6, {4*dt}, v4\nv_xor_b32 v6, v6, v5\nv_lshlrev_b32 v6, 4, v6\nv_lshl_add_u32 v6, v3, 8, v6\nv_add_u32 v{14+dt}, s72, v6")
    for dt in range(4):
        for k in range(4):
            a(f"ds_write_b128 v{14+dt}, {ar(ACC + (dt*4+k)*4)} offset:{L_X + k*4096}")
    a("s_waitcnt lgkmcnt(0)\ns_barrier")
    a("v_and_b32 v3, 7, v0\nv_and_b32 v4, 7, v10\nv_lshlrev_b32 v5, 1, v3")
    for e in range(2):
        a(f"v_add_u32 v6, {e}, v5\nv_xor_b32 v6, v6, v4\nv_lshlrev_b32 v6, 4, v6\nv_lshl_add_u32 v{18+e}, v10, 8, v6")
    a(f"v_mul_u32_u24 v20, 144, v10\nv_lshl_add_u32 v20, v3, 4, v20\nv_add_u32 v20, {L_R}, v20")
    a(f"v_lshlrev_b32 v21, 10, v10\nv_lshl_add_u32 v21, v3, 4, v21")
    a(f"s_lshl_b32 s72, {sR}, 16\ns_lshl_b32 s73, {sCQ}, 7\ns_add_u32 s72, s72, s73")
    for half in range(2):
        B = 64 + half * 48
        for k in range(4):
            for e in range(2):
                a(f"ds_read_b128 {vr(B + k*8 + e*4)}, v{18+e} offset:{L_X + k*16384 + half*8192}")
        a(f"ds_read_b128 {vr(B+32)}, v20 offset:{half*4608}")
    def epilogue(first):
        ring = []
        if first:
            g.q_addr_w(46)
            g.w_dma_setup("s80", "s81", "s82")
            ring = [(s_, n) for s_ in range(5) for n in range(4)]

        def ringdma(k=1):
            for _ in range(k):
                if ring:
                    s_, n = ring.pop(0)
                    g.w_dma(s_, only=n, sg="s80", sl="s81", st="s82", va="v46")
        for half in range(2):
            B = 64 + half * 48
            a(f"v_lshlrev_b32 v22, 16, v{12+half}")
            for i in range(8):
                a(f"v_add_f32 v{B+i}, v{B+i}, v{B+8+i}\nv_add_f32 v{B+16+i}, v{B+16+i}, v{B+24+i}")
                if i % 2 == 1:
                    ringdma()
            for i in range(8):
                a(f"v_add_f32 v{B+i}, v{B+i}, v{B+16+i}")
            ringdma()
            for i in range(8):
                a(f"v_add_f32 v{B+i}, v{B+i}, v22")
            ringdma()
            for k in range(4):
                a(f"v_lshlrev_b32 v{B+8+2*k}, 16, v{B+32+k}\nv_and_b32 v{B+9+2*k}, 0xffff0000, v{B+32+k}")
            ringdma()
            for i in range(8):
                a(f"v_add_f32 v{B+i}, v{B+i}, v{B+8+i}")
            ringdma()
            for k in range(4):
                a(f"v_cvt_pk_bf16_f32 v{B+36+k}, v{B+2*k}, v{B+2*k+1}")
            if first:
                a(f"ds_write_b128 v20, {vr(B+36)} offset:{half*4608}")
                g.dual(lambda m, B=B: a(f"buffer_store_dwordx4 {vr(B+36)}, v21, {SRD_DST}, s72 offen {m}", tag="Xst"))
            else:
                a(f"buffer_store_dwordx4 {vr(B+36)}, v21, {SRD_DST}, s72 offen")
            if half == 0:
                a("s_add_u32 s72, s72, 32768")
            if first:
                a(f"v_add_f32 v{B+40}, v{B}, v{B+1}\nv_mul_f32 v{B+41}, v{B}, v{B}\nv_fmac_f32 v{B+41}, v{B+1}, v{B+1}")
                for i in range(2, 8):
                    a(f"v_add_f32 v{B+40}, v{B+40}, v{B+i}\nv_fmac_f32 v{B+41}, v{B+i}, v{B+i}")
                ringdma(2)
        if first:
            ringdma(20)
            a("v_mov_b32 v12, v46")
            g.row_stats_store([104, 152], 1, local=True)
    l0 = g.lab("ep0")
    a(f"s_cmp_eq_u32 {sL}, 0\ns_cbranch_scc1 {l0}")
    a.fork()
    epilogue(False)
    g.stamp(19)
    a("s_waitcnt vmcnt(0)\ns_endpgm")
    a.label(l0, reset=False)
    a.alt()
    epilogue(True)
    a.dropfork()


def drain(g, tag, n, sreg, val):
    a = g.a
    lw = g.lab("dr")
    a(f"s_cmp_eq_u32 {sreg}, {val}\ns_cbranch_scc1 {lw}")
    a.raw("  s_waitcnt vmcnt(0)")
    a.label(lw, reset=False)
    a.raw(f"  s_waitcnt vmcnt({n})")
    a.wait_tag(tag, emit=False)


def o_drain_publish(g):
    a = g.a
    drain(g, "Ost", 6, sL, 0)
    g.publish(PH_O, local=True)


def rest(g):
    a = g.a
    g.tails = []
    attn_setup(g)
    g.stamp(5)
    attn(g)
    a("s_barrier")
    l0_only(g, "l0p", lambda: p1_finish(g))
    o_drain_publish(g)
    g.stamp(9)
    if g.stop("a"):
        return finish(g)
    o_flags(g)
    oproj(g)
    early_w1(g, 28, 40)
    drain(g, "Hst", 12, sM1, 1)
    g.publish(PH_H)
    g.stamp(13)
    if g.stop("o"):
        return finish(g)
    m1_only(g, lambda: w1_loads(g, 40, 48))
    mix1(g)
    g.stamp(16)
    if g.stop("m1"):
        return finish(g)
    mix2(g)
    g.stamp(19)
    if g.stop("m2"):
        return finish(g)
    g.srd(4, P_WS, 2 << 20, WS_X2)
    g.srd(20, P_OUT, 2 << 20)
    a(f"s_mov_b32 {sL}, 1")
    a("s_waitcnt lgkmcnt(0)")
    g.q_entry(1)
    g.kv_pass(False)
    g.kv_epilogue_l1()
    a("s_branch L_kvstored")
    finish(g)


def finish(g):
    a = g.a
    a("s_branch L_end")
    a.assume_clean()
    for stub, back, always in g.stubs:
        a.label(stub, reset=False)
        a("s_nop 7")
        for x in always:
            a(x)
        a(f"s_nop 11\ns_branch {back}")
        a.assume_clean()
    for lab, back, texts in g.tails:
        a.label(lab, reset=False)
        for x in texts:
            for line in x.split("\n"):
                if line.startswith("@"):
                    a.label(line[1:], reset=False)
                else:
                    a(line)
        a(f"s_branch {back}")
        a.assume_clean()
```

```python
import sys
sys.path.insert(0, "tools")
from asmfw import Asm

KNAME = "interleave_layers__sliding_block__mixer_token_mlp__prompt_kernel"

WS_EPOCH = 0x0
WS_FLAG = 0x1000
WS_ST = 0x80000
WS_KV = 0x100000
WS_OF = 0x900000
WS_H = 0xD00000
WS_U = 0x1100000
WS_X2 = 0x1500000
WS_W1P = 0x1700000
WS_W2P = 0x1D00000
WS_ST2 = 0x2300000
WS_XC = 0x2380000
WS_DIAG = 0x2400000
WS_SIZE = 0x4000000
UC = 43 * 4096
PH_KV, PH_O, PH_H, PH_U, PH_X, PH_P = range(6)

L_X = 0
L_RING = 65536
L_R = 147456
L_MISC = 156672
L_SP = L_MISC
L_CP = L_MISC + 1024
L_MR = L_MISC + 2560
LDS_SIZE = 163840

SRD_X, SRD_WQ, SRD_WO, SRD_WS = "s[4:7]", "s[8:11]", "s[12:15]", "s[16:19]"
SRD_DST, SRD_U, SRD_W2P, SRD_T = "s[20:23]", "s[24:27]", "s[28:31]", "s[32:35]"
P_X, P_WQ, P_WO, P_W1, P_B1, P_W2, P_B2, P_OUT, P_DBG, P_WS = 36, 38, 40, 44, 46, 48, 50, 52, 54, 56
sR, sCQ, sWV, sL = "s58", "s59", "s60", "s61"
sN, sNN, sNP = "s62", "s63", "s[62:63]"
sC1, sJ1, sM1 = "s64", "s65", "s66"
sP, sTB, sB = "s67", "s68", "s69"
sCNT = "s100"
sFAST = "s0"
SRD_W1 = "s[96:99]"
POLL_LIMIT = 400000

LOG2E = 1.4426950408889634


def f32(x):
    import struct
    return "0x%08x" % struct.unpack("<I", struct.pack("<f", x))[0]


class Gen:
    def __init__(self, stop_after=None, diag=False):
        self.a = Asm()
        self.stop_after = stop_after
        self.diag = diag
        self.uid = 0
        self.stubs = []
        self.nstamp = 0

    def lab(self, base):
        self.uid += 1
        return f"L_{base}_{self.uid}"

    def srd(self, name, ptr, size, off=None):
        a = self.a
        if off is None:
            a(f"s_mov_b32 s{name}, s{ptr}\ns_mov_b32 s{name+1}, s{ptr+1}")
        else:
            a(f"s_add_u32 s{name}, s{ptr}, {off}\ns_addc_u32 s{name+1}, s{ptr+1}, 0")
        a(f"s_mov_b32 s{name+2}, {size}\ns_mov_b32 s{name+3}, 0x20000")

    def stamp(self, idx):
        if not self.diag:
            return
        a = self.a
        skip = self.lab("st")
        a(f"s_memrealtime s[92:93]\ns_waitcnt lgkmcnt(0)")
        a(f"s_cmp_eq_u32 {sWV}, 0\ns_cbranch_scc0 {skip}")
        with a.cond(skip):
            a(f"s_lshl_b32 s94, s2, 8\ns_lshl_b32 s95, {sL}, 7\ns_add_u32 s94, s94, s95\ns_add_u32 s94, s94, {WS_DIAG + idx*4}")
            a("v_mov_b32 v62, s92\nv_mov_b32 v63, s94\ns_mov_b64 exec, 1")
            a(f"buffer_store_dword v62, v63, {SRD_WS}, 0 offen")
            a("s_mov_b64 exec, -1")
        a.label(skip, reset=False)

    def flag_addr(self, dst, phase, wg):
        a = self.a
        a(f"s_lshl_b32 {dst}, {sL}, 8\ns_add_u32 {dst}, {dst}, {wg}\ns_lshl_b32 {dst}, {dst}, 7")
        a(f"s_add_u32 {dst}, {dst}, {WS_FLAG + phase*2*256*128}")

    def dual(self, fn, sel=sFAST):
        a = self.a
        slow, j = self.lab("slow"), self.lab("dj")
        a(f"s_cmp_eq_u32 {sel}, 0\ns_cbranch_scc1 {slow}")
        a.fork()
        fn("")
        a(f"s_branch {j}")
        a.label(slow, reset=False)
        a.alt()
        fn("sc1")
        a.endfork()
        a.label(j, reset=False)

    def publish(self, phase, wg="s2", also_l0=None, local=False):
        a = self.a
        skip = self.lab("pub")
        a("s_barrier")
        a(f"s_cmp_eq_u32 {sWV}, 0\ns_cbranch_scc0 {skip}")
        with a.cond(skip):
            self.flag_addr("s70", phase, wg)
            a(f"v_mov_b32 v4, {sN}\nv_mov_b32 v5, {sNN}\nv_mov_b32 v6, s70\ns_mov_b64 exec, 1")
            if local:
                self.dual(lambda m: a(f"buffer_store_dwordx2 v[4:5], v6, {SRD_WS}, 0 offen {m}"))
            else:
                a(f"buffer_store_dwordx2 v[4:5], v6, {SRD_WS}, 0 offen sc1")
            if also_l0 is not None:
                a(f"s_lshl_b32 s70, {wg}, 7\ns_add_u32 s70, s70, {WS_FLAG + also_l0*2*256*128}")
                a(f"s_cmp_eq_u32 {sL}, 0\ns_cselect_b32 s70, s70, 0x70000000\nv_mov_b32 v6, s70")
                a(f"buffer_store_dwordx2 v[4:5], v6, {SRD_WS}, 0 offen sc1")
            a("s_mov_b64 exec, -1")
        a.label(skip, reset=False)

    def flag_store(self, phase):
        a = self.a
        skip = self.lab("fs")
        a(f"s_cmp_eq_u32 {sWV}, 0\ns_cbranch_scc0 {skip}")
        with a.cond(skip):
            self.flag_addr("s78", phase, "s2")
            a(f"v_mov_b32 v4, {sN}\nv_mov_b32 v5, {sNN}\nv_mov_b32 v6, s78\ns_mov_b64 exec, 1")
            a(f"buffer_store_dwordx2 v[4:5], v6, {SRD_WS}, 0 offen sc1")
            a("s_mov_b64 exec, -1")
        a.label(skip, reset=False)

    def poll(self, vaddr, mask):
        a = self.a
        top, ok = self.lab("poll"), self.lab("pok")
        a(f"s_mov_b64 exec, {mask}\ns_mov_b32 {sCNT}, 0")
        a(f"s_cbranch_execz {ok}")
        a.label(top, reset=False)
        with a.cond(top):
            a(f"buffer_load_dwordx2 v[4:5], {vaddr}, {SRD_WS}, 0 offen sc1")
            a("s_waitcnt vmcnt(0)")
            a(f"v_cmp_ne_u64 vcc, {sNP}, v[4:5]")
            a(f"s_cbranch_vccz {ok}")
            a(f"s_add_u32 {sCNT}, {sCNT}, 1\ns_cmp_lt_u32 {sCNT}, {POLL_LIMIT}\ns_cbranch_scc1 {top}")
            a("s_branch L_fail")
        a.label(ok, reset=False)
        a("s_mov_b64 exec, -1")

    def wg_of(self, dst, r, cq):
        a = self.a
        a(f"v_and_b32 {dst}, 3, {r}\nv_lshlrev_b32 {dst}, 3, {dst}\nv_add_u32 {dst}, {cq}, {dst}\nv_lshlrev_b32 {dst}, 3, {dst}")
        a(f"v_lshrrev_b32 v7, 2, {r}\nv_add_u32 {dst}, {dst}, v7")

    def vflag(self, dst, phase):
        a = self.a
        a(f"s_lshl_b32 s70, {sL}, 15\ns_add_u32 s70, s70, {WS_FLAG + phase*2*256*128}")
        a(f"v_lshlrev_b32 {dst}, 7, {dst}\nv_add_u32 {dst}, s70, {dst}")

    def row_stats_store(self, sums, layer, local=False):
        a = self.a
        for ctl in ("quad_perm:[1,0,3,2]", "quad_perm:[2,3,0,1]", "row_half_mirror"):
            for r0 in sums:
                for k in range(2):
                    a(f"v_add_f32_dpp v{r0+k}, v{r0+k}, v{r0+k} {ctl} row_mask:0xf bank_mask:0xf")
        for r0 in sums:
            a(f"v_mov_b32 v{r0+2}, {sN}\nv_mov_b32 v{r0+3}, {sNN}")
        if isinstance(layer, int):
            a(f"s_add_u32 s72, {sR}, {layer*32}")
        else:
            a(f"s_lshl_b32 s72, {layer}, 5\ns_add_u32 s72, s72, {sR}")
        a(f"s_lshl_b32 s72, s72, 3\ns_add_u32 s72, s72, {sCQ}\ns_lshl_b32 s72, s72, 10\ns_add_u32 s72, s72, {WS_ST2}")
        a("v_lshrrev_b32 v3, 3, v0\nv_lshlrev_b32 v3, 4, v3\nv_and_b32 v4, 7, v0\nv_cmp_eq_u32 vcc, 0, v4\ns_mov_b64 exec, vcc")
        def st(m):
            for i, r0 in enumerate(sums):
                a(f"buffer_store_dwordx4 v[{r0}:{r0+3}], v3, {SRD_WS}, s72 offen offset:{i*512} {m}")
        if local:
            self.dual(st)
        else:
            st("sc1")
        a("s_mov_b64 exec, -1")

    def stop(self, name):
        if self.stop_after == name:
            self.a("s_waitcnt vmcnt(0) lgkmcnt(0)\ns_branch L_end")
            self.a.assume_clean()
            return True
        return False

    def prologue(self):
        a = self.a
        a("s_cmp_ge_u32 s2, 256\ns_cbranch_scc1 L_end")
        a("s_load_dwordx16 s[36:51], s[0:1], 0\ns_load_dwordx4 s[52:55], s[0:1], 64\ns_load_dwordx2 s[56:57], s[0:1], 80")
        a("v_and_b32 v1, 63, v0\nv_lshlrev_b32 v2, 4, v1\nv_lshrrev_b32 v3, 6, v0")
        a(f"v_readfirstlane_b32 {sWV}, v3")
        a(f"s_and_b32 s70, s2, 7\ns_lshr_b32 s71, s2, 3")
        a(f"s_lshr_b32 s72, s71, 3\ns_lshl_b32 {sR}, s70, 2\ns_add_u32 {sR}, {sR}, s72\ns_and_b32 {sCQ}, s71, 7")
        a(f"s_and_b32 s72, s70, 1\ns_lshl_b32 s72, s72, 2\ns_and_b32 s73, s71, 3\ns_add_u32 {sC1}, s72, s73")
        a("s_lshr_b32 s72, s70, 1\ns_lshr_b32 s73, s71, 2")
        a("s_mul_i32 s74, s72, 7\ns_min_u32 s75, s72, 1\ns_add_u32 s74, s74, s75")
        a(f"s_add_u32 {sJ1}, s74, s73")
        a("s_cmp_eq_u32 s72, 0\ns_cselect_b32 s75, 8, 7")
        a(f"s_cmp_lt_u32 s73, s75\ns_cselect_b32 {sM1}, 1, 0")
        a(f"s_and_b32 {sP}, {sWV}, 1\ns_lshr_b32 {sTB}, {sWV}, 1\ns_xor_b32 {sB}, {sP}, {sTB}")
        a(f"s_mov_b32 {sL}, 0")
        a("s_waitcnt lgkmcnt(0)")
        self.srd(4, P_X, 2 << 20)
        self.srd(8, P_WQ, 512 * 1536 * 2)
        self.srd(12, P_WO, 512 * 512 * 2)
        self.srd(16, P_WS, WS_SIZE)
        self.srd(28, P_W2, 1376 * 4096)
        self.srd(96, P_W1, 2048 * 2752)
        self.srd(20, P_WS, 2 << 20, WS_X2)
        a(f"v_mov_b32 v3, {WS_EPOCH}")
        a(f"buffer_load_dword v250, v3, {SRD_WS}, 0 offen sc1")
        a("v_lshrrev_b32 v3, 3, v0\nv_and_b32 v4, 7, v0")
        a(f"s_lshl_b32 s70, {sR}, 16\ns_lshl_b32 s71, {sCQ}, 7\ns_add_u32 s70, s70, s71")
        a("v_lshlrev_b32 v5, 10, v3\nv_lshl_add_u32 v5, v4, 4, v5")
        a(f"buffer_load_dwordx4 v[240:243], v5, {SRD_X}, s70 offen")
        a("s_add_u32 s70, s70, 32768")
        a(f"buffer_load_dwordx4 v[244:247], v5, {SRD_X}, s70 offen")

    def prologue_tail(self):
        a = self.a
        a(f"v_lshlrev_b32 v3, 21, v1\ns_mov_b64 exec, 0x3ffff\nbuffer_load_dword v251, v3, {SRD_WS}, 0 offen\ns_mov_b64 exec, -1")
        a(f"s_lshl_b32 s72, s2, 2\ns_add_u32 s72, s72, {sWV}\ns_lshl_b32 s72, s72, 9\nv_lshlrev_b32 v3, 7, v1")
        a(f"s_mov_b64 exec, 0xf\nbuffer_load_dword v252, v3, {SRD_WO}, s72 offen\ns_mov_b64 exec, -1")
        a("v_lshrrev_b32 v3, 3, v0\nv_and_b32 v4, 7, v0")
        a("v_mul_u32_u24 v6, 144, v3\nv_lshl_add_u32 v6, v4, 4, v6")
        a(f"v_add_u32 v6, {L_R}, v6")
        a(f"v_readfirstlane_b32 {sN}, v250")
        a(f"s_add_u32 {sN}, {sN}, 1\ns_not_b32 {sNN}, {sN}")
        a("ds_write_b128 v6, v[240:243]\nds_write_b128 v6, v[244:247] offset:4608")
        for h, (src, dst) in enumerate(((240, 232), (244, 236))):
            a(f"v_mov_b32 v{dst}, 0\nv_mov_b32 v{dst+1}, 0")
            for k in range(4):
                a(f"v_lshlrev_b32 v8, 16, v{src+k}\nv_and_b32 v9, 0xffff0000, v{src+k}")
                a(f"v_add_f32 v{dst}, v{dst}, v8\nv_fmac_f32 v{dst+1}, v8, v8\nv_add_f32 v{dst}, v{dst}, v9\nv_fmac_f32 v{dst+1}, v9, v9")
        self.row_stats_store([232, 236], 0)
        a(f"s_getreg_b32 s72, hwreg(HW_REG_XCC_ID)\ns_and_b32 s1, s72, 15\ns_mov_b32 {sFAST}, 0")
        a(f"s_lshl_b32 s72, {sR}, 3\ns_add_u32 s72, s72, {sCQ}\ns_lshl_b32 s72, s72, 4\ns_add_u32 s72, s72, {WS_XC}")
        a(f"v_mov_b32 v232, s1\nv_mov_b32 v233, 0\nv_mov_b32 v234, {sN}\nv_mov_b32 v235, {sNN}\nv_mov_b32 v3, s72")
        sk = self.lab("xc")
        a(f"s_cmp_eq_u32 {sWV}, 0\ns_cbranch_scc0 {sk}")
        with a.cond(sk):
            a(f"s_mov_b64 exec, 1\nbuffer_store_dwordx4 v[232:235], v3, {SRD_WS}, 0 offen sc1\ns_mov_b64 exec, -1")
        a.label(sk, reset=False)

    def w_dma(self, s, only=None, sg="s70", sl="s71", st="s72", va="v12"):
        a = self.a
        slot = L_RING + (s % 5) * 16384
        for n in range(4):
            if only is not None and n != only:
                continue
            if s < 8:
                part = n >> 1
                krow = 64 * s + (n & 1) * 32
                col = 1024 * (1 + part)
                lds = slot + part * 8192 + (n & 1) * 4096
            else:
                krow = 128 * (s - 8) + 32 * n
                col = 0
                lds = slot + n * 4096
            a(f"s_add_u32 m0, {sl}, {lds}\ns_add_u32 {st}, {sg}, {krow*3072 + col}")
            a(f"buffer_load_dwordx4 {va}, {SRD_WQ}, {st} offen lds", tag=f"W{s}")

    def w_dma_setup(self, sg="s70", sl="s71", st="s72"):
        a = self.a
        a(f"s_mul_i32 {sg}, {sWV}, {8*3072}\ns_lshl_b32 {st}, {sCQ}, 7\ns_add_u32 {sg}, {sg}, {st}\ns_lshl_b32 {sl}, {sWV}, 10")

    def q_addr_w(self, dst=12):
        a = self.a
        a(f"v_lshrrev_b32 v3, 3, v1\nv_mul_u32_u24 v{dst}, 3072, v3\nv_bfe_u32 v4, v1, 4, 1\nv_lshlrev_b32 v4, 2, v4")
        a(f"v_and_b32 v5, 7, v1\nv_xor_b32 v5, v5, v4\nv_lshl_add_u32 v{dst}, v5, 4, v{dst}")

    def q_addr_x(self):
        a = self.a
        a("v_lshrrev_b32 v3, 3, v1")
        for e in range(2):
            a(f"s_lshl_b32 s72, {sWV}, 4\ns_add_u32 s72, s72, {8*e}\nv_add_u32 v6, s72, v3")
            a(f"v_bfe_u32 v7, v6, 1, 3\nv_and_b32 v5, 7, v1\nv_xor_b32 v5, v5, v7\nv_lshlrev_b32 v6, 10, v6\nv_lshl_add_u32 v{10+e}, v5, 4, v6")

    def q_addr(self):
        self.q_addr_w()
        self.q_addr_x()
        self.w_dma_setup()

    def q_addr2(self):
        a = self.a
        a(f"v_and_b32 v3, 31, v1\ns_lshl_b32 s72, {sTB}, 5\nv_add_u32 v3, s72, v3\nv_bfe_u32 v4, v3, 1, 3\nv_lshrrev_b32 v5, 5, v1")
        for k in range(4):
            a(f"s_xor_b32 s72, {sB}, {k}\ns_lshl_b32 s72, s72, 1\nv_add_u32 v6, s72, v5\nv_xor_b32 v6, v6, v4")
            a(f"v_lshlrev_b32 v6, 4, v6\nv_lshl_add_u32 v{13+k}, v3, 7, v6")
        a("v_and_b32 v3, 15, v1\nv_lshrrev_b32 v4, 2, v3\nv_lshrrev_b32 v5, 5, v1\nv_lshl_add_u32 v4, v5, 3, v4")
        a(f"v_bfe_u32 v5, v1, 4, 1\nv_lshlrev_b32 v5, 1, v5\nv_bfe_u32 v6, v1, 1, 1\nv_add_u32 v5, v5, v6")
        a(f"s_lshl_b32 s72, {sP}, 2\nv_add_u32 v5, s72, v5\nv_bfe_u32 v6, v1, 3, 1\nv_lshlrev_b32 v6, 2, v6\nv_xor_b32 v5, v5, v6")
        a("v_lshlrev_b32 v5, 4, v5\nv_lshl_add_u32 v5, v4, 7, v5\nv_and_b32 v6, 1, v1\nv_lshl_add_u32 v5, v6, 3, v5")
        for e in range(2):
            a(f"s_xor_b32 s72, {sB}, {e}\ns_lshl_b32 s72, s72, 11\ns_add_u32 s72, s72, {L_RING}")
            a(f"v_add_u32 v{17+e}, s72, v5\nv_add_u32 v{19+e}, 49152, v{17+e}")
        a("v_mov_b32 v21, 0\nv_mov_b32 v24, 0\nv_mov_b32 v25, 0")
        a("s_mov_b32 s74, 0x3f803f80")
        a(f"s_lshl_b32 s72, {sL}, 5\ns_add_u32 s72, s72, {sR}\ns_lshl_b32 s75, s72, 13\ns_add_u32 s75, s75, {WS_ST2}")
        a(f"v_and_b32 v3, 31, v1\ns_lshl_b32 s72, {sTB}, 5\nv_add_u32 v3, s72, v3\nv_lshlrev_b32 v3, 4, v3\nv_lshrrev_b32 v4, 5, v1\nv_lshl_add_u32 v61, v4, 12, v3")

    def x_dma(self, kc):
        a = self.a
        for e in range(2):
            a(f"s_add_u32 m0, s77, {L_X + kc*8192 + e*1024}\ns_add_u32 s72, s76, {kc*128}")
            a(f"buffer_load_dwordx4 v{10+e}, {SRD_X}, s72 offen sc1 lds", tag=f"X{kc}")

    def q_entry(self, layer):
        a = self.a
        a.c(f"======== QKV phase entry, layer {layer}")
        if layer == 0:
            self.q_addr()
        else:
            self.q_addr_x()
        a(f"s_lshl_b32 s76, {sR}, 16\ns_lshl_b32 s77, {sWV}, 11")
        if layer == 0:
            for s_ in range(5):
                self.w_dma(s_)
                self.x_dma(s_)
            for kc in range(5, 8):
                self.x_dma(kc)
            self.stamp(0)
            self.prologue_tail()
            self.q_addr2()
            self.stamp(1)
        else:
            self.q_addr2()
            a(f"v_mov_b32 v8, {sR}")
            a(f"v_and_b32 v9, 3, v8\nv_lshlrev_b32 v9, 3, v9\nv_add_u32 v9, v1, v9\nv_lshlrev_b32 v9, 3, v9")
            a(f"v_lshrrev_b32 v7, 2, v8\nv_add_u32 v9, v9, v7")
            a(f"v_lshlrev_b32 v9, 7, v9\nv_add_u32 v9, {WS_FLAG + PH_X*2*256*128}, v9")
            self.stamp(0)
            a.wait_tag("Xst")
            a(f"s_mov_b32 {sL}, 0")
            self.publish(PH_X, local=True)
            a(f"s_mov_b32 {sL}, 1")
            self.stat_loads()
            a("v_mov_b32 v30, v9")
            self.ln_init()
            self.poll("v30", "0xff")
            self.stamp(1)
            for kc in range(8):
                self.x_dma(kc)

    XF, WF, AK, AV, AQ = 64, 32, 192, 208, 224

    def row_stats(self):
        a = self.a
        top, ok = self.lab("s2p"), self.lab("s2o")
        a(f"s_mov_b32 {sCNT}, 0")
        a.label(top, reset=False)
        a(f"v_cmp_ne_u64 vcc, {sNP}, v[242:243]")
        for k in range(1, 4):
            a(f"v_cmp_ne_u64 s[72:73], {sNP}, v[{242+4*k}:{243+4*k}]\ns_or_b64 vcc, vcc, s[72:73]")
        a(f"s_cbranch_vccz {ok}")
        with a.cond(top):
            self.stat_loads()
            a("s_waitcnt vmcnt(0)")
            a(f"s_add_u32 {sCNT}, {sCNT}, 1\ns_cmp_lt_u32 {sCNT}, {POLL_LIMIT}\ns_cbranch_scc1 {top}\ns_branch L_fail")
        a.label(ok, reset=False)
        a("v_add_f32 v26, v240, v244\nv_add_f32 v27, v241, v245\nv_add_f32 v28, v248, v252\nv_add_f32 v29, v249, v253")
        a("v_add_f32 v26, v26, v28\nv_add_f32 v27, v27, v29\nv_mov_b32 v28, v26\nv_mov_b32 v29, v27")
        a("v_permlane32_swap_b32 v26, v28\nv_permlane32_swap_b32 v27, v29\nv_add_f32 v26, v26, v28\nv_add_f32 v27, v27, v29")
        a(f"v_mul_f32 v26, {f32(1/512)}, v26\nv_mul_f32 v27, {f32(1/512)}, v27")
        a(f"v_fma_f32 v27, -v26, v26, v27\nv_max_f32 v27, 0, v27\nv_add_f32 v27, {f32(1e-5)}, v27\nv_rsq_f32 v27, v27")

    def ln_init(self):
        a = self.a
        AK, AV, AQ = self.AK, self.AV, self.AQ
        a("v_and_b32 v3, 31, v1\nv_lshrrev_b32 v5, 5, v1")
        a(f"s_mul_i32 s73, {sP}, 768\ns_add_u32 s73, s73, {L_CP}")
        a("v_lshl_add_u32 v56, v5, 4, s73\nv_lshl_add_u32 v57, v3, 2, s73")
        for part, dst in ((0, AK), (384, 32), (256, AQ), (384 + 256, AV)):
            for q in range(4):
                a(f"ds_read_b128 v[{dst+4*q}:{dst+4*q+3}], v56 offset:{part + 32*q}")
        a("ds_read_b32 v58, v57 offset:128\nds_read_b32 v59, v57 offset:512")
        self.row_stats()
        a(f"s_lshl_b32 s72, {sWV}, 8\ns_add_u32 s72, s72, {L_MR}\nv_lshl_add_u32 v4, v3, 2, s72")
        a("ds_write_b32 v4, v26\nds_write_b32 v4, v27 offset:128")
        a("v_lshl_add_u32 v60, v5, 4, s72")
        for i in range(16):
            a(f"v_add_f32 v{AK+i}, v{AK+i}, v{32+i}\nv_add_f32 v{AQ+i}, v{AQ+i}, v{AV+i}")
        a("v_add_f32 v58, v58, v59\ns_waitcnt lgkmcnt(0)")
        for q in range(4):
            a(f"ds_read_b128 v[{AV+4*q}:{AV+4*q+3}], v60 offset:{32*q}")
        for i in range(16):
            a(f"v_mul_f32 v{AK+i}, -v26, v{AK+i}\nv_mul_f32 v{AQ+i}, -v26, v{AQ+i}")
        for i in range(16):
            a(f"v_mul_f32 v{AV+i}, -v58, v{AV+i}")

    def waddr(self, s, e):
        slot = s % 5
        return (f"v{17+e}", slot * 16384) if slot < 3 else (f"v{19+e}", (slot - 3) * 16384)

    def stage_sync(self, s):
        a = self.a
        a("s_waitcnt lgkmcnt(0)")
        a.wait_tag(f"W{s}", f"X{s}") if s < 8 else a.wait_tag(f"W{s}")
        a("s_barrier")

    def stat_loads(self):
        for k in range(4):
            self.a(f"buffer_load_dwordx4 v[{240+4*k}:{243+4*k}], v61, {SRD_WS}, s75 offen offset:{k*1024} sc1")

    def kv_pass(self, first):
        a = self.a
        XF, WF, AK, AV = self.XF, self.WF, self.AK, self.AV
        a.c("======== K/V projection" + (" (layer 0)" if first else " (layer 1)"))

        def reads_kv(n, part=None):
            s, k = n >> 2, n & 3
            reg, off = self.waddr(s, k & 1)
            wf = WF + (n % 3) * 8
            for pt in range(2):
                if part is not None and pt != part:
                    continue
                if pt == 0:
                    a(f"ds_read_b128 v[{XF+4*n}:{XF+4*n+3}], v{13+k} offset:{L_X + s*8192}")
                for rd in range(2):
                    a(f"ds_read_b64_tr_b16 v[{wf+4*pt+2*rd}:{wf+4*pt+2*rd+1}], {reg} offset:{off + pt*8192 + (k >> 1)*4096 + rd*512}")
        self.w_dma_setup()
        self.stamp(20)
        self.stage_sync(0)
        self.stamp(21)
        reads_kv(0); reads_kv(1)
        for n in range(32):
            wf = WF + (n % 3) * 8
            x = f"v[{XF+4*n}:{XF+4*n+3}]"
            ck = "0" if n == 0 and first else f"v[{AK}:{AK+15}]"
            cv = "0" if n == 0 and first else f"v[{AV}:{AV+15}]"
            a(f"v_mfma_f32_32x32x16_bf16 v[{AK}:{AK+15}], v[{wf}:{wf+3}], {x}, {ck}")
            if n + 2 < 32:
                if (n + 2) % 4 == 0:
                    self.stage_sync((n + 2) >> 2)
                reads_kv(n + 2, 0)
            a(f"v_mfma_f32_32x32x16_bf16 v[{AV}:{AV+15}], {x}, v[{wf+4}:{wf+7}], {cv}")
            if n + 2 < 32:
                reads_kv(n + 2, 1)
            sfree = (n + 2) >> 2
            if n >= 2 and sfree + 4 < 12:
                self.w_dma(sfree + 4, only=(n + 2) & 3)
            if n == 24 and first:
                self.stat_loads()
            if n == 28 and not first:
                for q in range(4):
                    a(f"ds_read_b128 v[{240+4*q}:{243+4*q}], v60 offset:{128 + 32*q}")
            if first and n % 2 == 0:
                for i in range(4):
                    a(f"v_dot2c_f32_bf16 v24, s74, v{wf+i}\nv_dot2c_f32_bf16 v25, s74, v{wf+4+i}")

    def k_store(self):
        a = self.a
        AK = self.AK
        a(f"s_lshl_b32 s75, {sCQ}, 1\ns_add_u32 s75, s75, {sP}\ns_lshl_b32 s75, s75, 6\ns_lshl_b32 s76, {sR}, 1\ns_add_u32 s75, s75, s76")
        a(f"s_add_u32 s75, s75, {sTB}\ns_lshl_b32 s75, s75, 12\ns_lshl_b32 s76, {sL}, 22\ns_add_u32 s75, s75, s76\ns_add_u32 s75, s75, {WS_KV}")
        a(f"buffer_store_dwordx4 v[{AK}:{AK+3}], v2, {SRD_WS}, s75 offen sc1", tag="KVst")
        a(f"buffer_store_dwordx4 v[{AK+4}:{AK+7}], v2, {SRD_WS}, s75 offen offset:2048 sc1", tag="KVst")

    def v_store(self):
        a = self.a
        AV = self.AV
        a("v_bfe_u32 v3, v1, 4, 1\nv_lshlrev_b32 v3, 11, v3\nv_lshrrev_b32 v5, 5, v1\nv_lshl_add_u32 v3, v5, 8, v3")
        a("v_and_b32 v5, 15, v1\nv_lshl_add_u32 v3, v5, 4, v3")
        a(f"buffer_store_dwordx4 v[{AV}:{AV+3}], v3, {SRD_WS}, s75 offen offset:1024 sc1", tag="KVst")
        a(f"buffer_store_dwordx4 v[{AV+4}:{AV+7}], v3, {SRD_WS}, s75 offen offset:1536 sc1", tag="KVst")

    def kv_epilogue_l1(self):
        a = self.a
        AK, AV = self.AK, self.AV
        self.stamp(2)
        for i in range(16):
            a(f"v_mul_f32 v{AK+i}, v27, v{AK+i}")
        for k in range(8):
            a(f"v_cvt_pk_bf16_f32 v{AK+k}, v{AK+2*k}, v{AK+2*k+1}")
        self.k_store()
        for i in range(16):
            a(f"v_mul_f32 v{AV+i}, v{240+i}, v{AV+i}")
        for k in range(8):
            a(f"v_cvt_pk_bf16_f32 v{AV+k}, v{AV+2*k}, v{AV+2*k+1}")
        self.v_store()

    def q_phase(self):
        a = self.a
        XF, WF, AK, AV, AQ = self.XF, self.WF, self.AK, self.AV, self.AQ
        waddr, stage_sync, stat_loads = self.waddr, self.stage_sync, self.stat_loads
        a.label("L_kvdone", reset=False)
        self.stamp(2)
        a("v_and_b32 v3, 31, v1")
        a(f"s_lshl_b32 s72, {sP}, 1\ns_add_u32 s72, s72, {sTB}\ns_mul_i32 s72, s72, 384\ns_add_u32 s72, s72, {L_CP}")
        a("v_lshl_add_u32 v9, v3, 2, s72")
        sk = self.lab("cs")
        a(f"s_cmp_eq_u32 {sL}, 0\ns_cbranch_scc0 {sk}")
        with a.cond("l0"):
            a("v_mov_b32 v26, v24\nv_mov_b32 v27, v25\nv_permlane32_swap_b32 v24, v26\nv_permlane32_swap_b32 v25, v27")
            a("v_add_f32 v24, v24, v26\nv_add_f32 v25, v25, v27")
            a("ds_write_b32 v9, v24\nds_write_b32 v9, v25 offset:128")
            a("s_waitcnt lgkmcnt(0)")
        a.label(sk, reset=False)
        a("s_barrier")
        self.row_stats()
        a(f"s_mul_i32 s72, {sP}, 768\ns_add_u32 s72, s72, {L_CP}")
        a("v_lshrrev_b32 v5, 5, v1\nv_lshl_add_u32 v56, v5, 4, s72")
        for q in range(4):
            a(f"ds_read_b128 v[{240+4*q}:{243+4*q}], v56 offset:{32*q}")
        for q in range(4):
            a(f"ds_read_b128 v[{32+4*q}:{35+4*q}], v56 offset:{384 + 32*q}")
        a("v_lshl_add_u32 v57, v3, 2, s72\nds_read_b32 v58, v57 offset:128\nds_read_b32 v59, v57 offset:512")
        a(f"s_lshl_b32 s72, {sWV}, 8\ns_add_u32 s72, s72, {L_MR}\nv_lshl_add_u32 v4, v3, 2, s72")
        a("ds_write_b32 v4, v26\nds_write_b32 v4, v27 offset:128")
        for i in range(16):
            a(f"v_add_f32 v{240+i}, v{240+i}, v{32+i}")
        a("v_add_f32 v58, v58, v59")
        a(f"v_lshl_add_u32 v4, v5, 4, s72")
        a("s_waitcnt lgkmcnt(0)")
        for q in range(4):
            a(f"ds_read_b128 v[{32+4*q}:{35+4*q}], v4 offset:{32*q}")
        for q in range(4):
            a(f"ds_read_b128 v[{48+4*q}:{51+4*q}], v4 offset:{128 + 32*q}") if q < 2 else None
        for i in range(16):
            a(f"v_fma_f32 v{AK+i}, -v26, v{240+i}, v{AK+i}")
        for i in range(16):
            a(f"v_mul_f32 v{AK+i}, v27, v{AK+i}")
        for k in range(8):
            a(f"v_cvt_pk_bf16_f32 v{AK+k}, v{AK+2*k}, v{AK+2*k+1}")
        self.k_store()
        for q in range(2, 4):
            a(f"ds_read_b128 v[{240+4*q}:{243+4*q}], v4 offset:{128 + 32*q}")
        rs = lambda i: (48 + i) if i < 8 else (240 + i)
        for i in range(16):
            a(f"v_fma_f32 v{AV+i}, -v{32+i}, v58, v{AV+i}")
        for i in range(16):
            a(f"v_mul_f32 v{AV+i}, v{rs(i)}, v{AV+i}")
        for k in range(8):
            a(f"v_cvt_pk_bf16_f32 v{AV+k}, v{AV+2*k}, v{AV+2*k+1}")
        self.v_store()
        a.label("L_kvstored", reset=False)
        self.stamp(3)
        def reads_q(n):
            s, k = 8 + (n >> 3), n & 7
            reg, off = waddr(s, k & 1)
            wf = WF + (n % 3) * 8
            for rd in range(2):
                a(f"ds_read_b64_tr_b16 v[{wf+2*rd}:{wf+2*rd+1}], {reg} offset:{off + (k >> 1)*4096 + rd*512}")
        def q_pass(first):
            stage_sync(8)
            reads_q(0); reads_q(1)
            for n in range(32):
                wf = WF + (n % 3) * 8
                cq = "0" if n == 0 and first else f"v[{AQ}:{AQ+15}]"
                a(f"v_mfma_f32_32x32x16_bf16 v[{AQ}:{AQ+15}], v[{wf}:{wf+3}], v[{XF+4*n}:{XF+4*n+3}], {cq}")
                if n + 2 < 32:
                    if (n + 2) % 8 == 0:
                        last = (n + 2) == 24
                        if last:
                            a.wait_tag("KVst")
                        stage_sync(8 + ((n + 2) >> 3))
                        if last:
                            self.flag_store(PH_KV)
                    reads_q(n + 2)
                if first and n % 2 == 0:
                    for i in range(4):
                        a(f"v_dot2c_f32_bf16 v21, s74, v{wf+i}")
            if first:
                a("v_mov_b32 v28, v21\nv_permlane32_swap_b32 v21, v28\nv_add_f32 v21, v21, v28")
                a("ds_write_b32 v9, v21 offset:256")
        lb, lj = self.lab("qb"), self.lab("qj")
        a(f"s_cmp_eq_u32 {sL}, 0\ns_cbranch_scc0 {lb}")
        a.fork()
        q_pass(True)
        a(f"s_branch {lj}")
        a.label(lb, reset=False)
        a.alt()
        q_pass(False)
        a.endfork()
        a.label(lj, reset=False)
        a("s_waitcnt lgkmcnt(0)\ns_barrier")
        self.stamp(4)
        sk = self.lab("qe")
        a(f"s_cmp_eq_u32 {sL}, 0\ns_cbranch_scc0 {sk}")
        with a.cond("l0q"):
            for q in range(4):
                a(f"ds_read_b128 v[{240+4*q}:{243+4*q}], v56 offset:{256 + 32*q}")
            for q in range(4):
                a(f"ds_read_b128 v[{32+4*q}:{35+4*q}], v56 offset:{384 + 256 + 32*q}")
            for i in range(16):
                a(f"v_add_f32 v{240+i}, v{240+i}, v{32+i}")
            for i in range(16):
                a(f"v_fma_f32 v{AQ+i}, -v26, v{240+i}, v{AQ+i}")
        a.label(sk, reset=False)
        a(f"v_mul_f32 v27, {f32(0.25*LOG2E)}, v27")
        for i in range(16):
            a(f"v_mul_f32 v{AQ+i}, v27, v{AQ+i}")
        for k in range(8):
            a(f"v_cvt_pk_bf16_f32 v{AQ+k}, v{AQ+2*k}, v{AQ+2*k+1}")

    def wo_dma(self):
        a = self.a
        a("v_lshrrev_b32 v3, 3, v1\nv_lshlrev_b32 v3, 10, v3\nv_bfe_u32 v4, v1, 1, 2\nv_bfe_u32 v5, v1, 4, 2\nv_xor_b32 v4, v4, v5")
        a("v_lshlrev_b32 v4, 1, v4\nv_and_b32 v5, 1, v1\nv_add_u32 v4, v4, v5\nv_lshl_add_u32 v19, v4, 4, v3")
        a(f"s_lshl_b32 s78, {sWV}, 17\ns_lshl_b32 s73, {sCQ}, 7\ns_add_u32 s78, s78, s73\ns_lshl_b32 s79, {sWV}, 14")

        def one(n):
            return (f"s_add_u32 m0, s79, {L_X + n*1024}\ns_add_u32 s72, s78, {n*8192}\n"
                    f"buffer_load_dwordx4 v19, {SRD_WO}, s72 offen lds")
        return one

    def build(self):
        a = self.a
        self.prologue()
        self.q_entry(0)
        self.kv_pass(True)
        done = False
        self.q_phase()
        done = self.stop("q")
        if not done:
            from gen2 import rest
            rest(self)
        a.label("L_fail", reset=False)
        self.srd(32, P_DBG, 256)
        a("v_mov_b32 v4, 0xdead\nv_mov_b32 v5, 0\ns_mov_b64 exec, 1")
        a(f"buffer_store_dword v4, v5, {SRD_T}, 0 offen")
        a.label("L_end", reset=False)
        a("s_endpgm")
        body = a.finalize()
        head = open("interleave_layers__sliding_block__mixer_token_mlp__prompt.s.ref").read().split("\n")
        hdr = [l for l in head if l.startswith(";") and "@launch" not in l and "Override launch" not in l and "grid=ceil" not in l]
        hdr = hdr[:hdr.index(next(l for l in hdr if "d_ws" in l)) + 1]
        out = "\n".join(hdr) + f"\n; @launch grid=(256,1,1) block=(256,1,1) lds={LDS_SIZE}\n"
        out += '.amdgcn_target "amdgcn-amd-amdhsa--gfx950"\n.text\n'
        out += f".globl {KNAME}\n.p2align 8\n.type {KNAME},@function\n{KNAME}:\n"
        out += body
        out += f'''.section .rodata,"a"
.p2align 6
.amdhsa_kernel {KNAME}
  .amdhsa_next_free_vgpr 512
  .amdhsa_next_free_sgpr 102
  .amdhsa_accum_offset 256
  .amdhsa_group_segment_fixed_size 0
  .amdhsa_kernarg_size 88
  .amdhsa_user_sgpr_count 2
  .amdhsa_user_sgpr_kernarg_segment_ptr 1
  .amdhsa_system_sgpr_workgroup_id_x 1
.end_amdhsa_kernel
'''
        return out


if __name__ == "__main__":
    import argparse
    ap = argparse.ArgumentParser()
    ap.add_argument("--stop", default=None)
    ap.add_argument("--diag", action="store_true")
    ap.add_argument("-o", default="interleave_layers__sliding_block__mixer_token_mlp__prompt.s")
    args = ap.parse_args()
    g = Gen(stop_after=args.stop, diag=args.diag)
    src = g.build()
    open(args.o, "w").write(src)
    print("written", args.o, g.a.stats, "bytes", len(src))
```

```python
import os, sys
OPT = set(os.environ.get("KOPT", "").split(","))
sys.path.insert(0, "tools")
from asmfw import Asm

KNAME = "interleave_layers__sliding_block__mixer_token_mlp__prompt_kernel"

WS_EPOCH = 0x0
WS_FLAG = 0x1000
WS_ST = 0x80000
WS_KV = 0x100000
WS_OF = 0x900000
WS_H = 0xD00000
WS_U = 0x1100000
WS_X2 = 0x1500000
WS_W1P = 0x1700000
WS_W2P = 0x1D00000
WS_ST2 = 0x2300000
WS_XC = 0x2380000
WS_DIAG = 0x2400000
WS_SIZE = 0x4000000
UC = 43 * 4096
PH_KV, PH_O, PH_H, PH_U, PH_X, PH_P = range(6)

L_X = 0
L_RING = 65536
L_R = 147456
L_MISC = 156672
L_SP = L_MISC
L_CP = L_MISC + 1024
L_MR = L_MISC + 2560
LDS_SIZE = 163840

SRD_X, SRD_WQ, SRD_WO, SRD_WS = "s[4:7]", "s[8:11]", "s[12:15]", "s[16:19]"
SRD_DST, SRD_U, SRD_W2P, SRD_T = "s[20:23]", "s[24:27]", "s[28:31]", "s[32:35]"
P_X, P_WQ, P_WO, P_W1, P_B1, P_W2, P_B2, P_OUT, P_DBG, P_WS = 36, 38, 40, 44, 46, 48, 50, 52, 54, 56
sR, sCQ, sWV, sL = "s58", "s59", "s60", "s61"
sN, sNN, sNP = "s62", "s63", "s[62:63]"
sC1, sJ1, sM1 = "s64", "s65", "s66"
sP, sTB, sB = "s67", "s68", "s69"
sCNT = "s100"
sFAST = "s0"
SRD_W1 = "s[96:99]"
POLL_LIMIT = 400000

LOG2E = 1.4426950408889634


def f32(x):
    import struct
    return "0x%08x" % struct.unpack("<I", struct.pack("<f", x))[0]


class Gen:
    def __init__(self, stop_after=None, diag=False):
        self.a = Asm()
        self.stop_after = stop_after
        self.diag = diag
        self.uid = 0
        self.stubs = []
        self.nstamp = 0

    def lab(self, base):
        self.uid += 1
        return f"L_{base}_{self.uid}"

    def srd(self, name, ptr, size, off=None):
        a = self.a
        if off is None:
            a(f"s_mov_b32 s{name}, s{ptr}\ns_mov_b32 s{name+1}, s{ptr+1}")
        else:
            a(f"s_add_u32 s{name}, s{ptr}, {off}\ns_addc_u32 s{name+1}, s{ptr+1}, 0")
        a(f"s_mov_b32 s{name+2}, {size}\ns_mov_b32 s{name+3}, 0x20000")

    def stamp(self, idx):
        if not self.diag:
            return
        a = self.a
        skip = self.lab("st")
        a(f"s_memrealtime s[92:93]\ns_waitcnt lgkmcnt(0)")
        a(f"s_cmp_eq_u32 {sWV}, 0\ns_cbranch_scc0 {skip}")
        with a.cond(skip):
            a(f"s_lshl_b32 s94, s2, 8\ns_lshl_b32 s95, {sL}, 7\ns_add_u32 s94, s94, s95\ns_add_u32 s94, s94, {WS_DIAG + idx*4}")
            a("v_mov_b32 v62, s92\nv_mov_b32 v63, s94\ns_mov_b64 exec, 1")
            a(f"buffer_store_dword v62, v63, {SRD_WS}, 0 offen")
            a("s_mov_b64 exec, -1")
        a.label(skip, reset=False)

    def flag_addr(self, dst, phase, wg):
        a = self.a
        a(f"s_lshl_b32 {dst}, {sL}, 8\ns_add_u32 {dst}, {dst}, {wg}\ns_lshl_b32 {dst}, {dst}, 7")
        a(f"s_add_u32 {dst}, {dst}, {WS_FLAG + phase*2*256*128}")

    def dual(self, fn, sel=sFAST):
        a = self.a
        slow, j = self.lab("slow"), self.lab("dj")
        a(f"s_cmp_eq_u32 {sel}, 0\ns_cbranch_scc1 {slow}")
        a.fork()
        fn("")
        a(f"s_branch {j}")
        a.label(slow, reset=False)
        a.alt()
        fn("sc1")
        a.endfork()
        a.label(j, reset=False)

    def publish(self, phase, wg="s2", also_l0=None, local=False):
        a = self.a
        skip = self.lab("pub")
        a("s_barrier")
        a(f"s_cmp_eq_u32 {sWV}, 0\ns_cbranch_scc0 {skip}")
        with a.cond(skip):
            self.flag_addr("s70", phase, wg)
            a(f"v_mov_b32 v4, {sN}\nv_mov_b32 v5, {sNN}\nv_mov_b32 v6, s70\ns_mov_b64 exec, 1")
            if local:
                self.dual(lambda m: a(f"buffer_store_dwordx2 v[4:5], v6, {SRD_WS}, 0 offen {m}"))
            else:
                a(f"buffer_store_dwordx2 v[4:5], v6, {SRD_WS}, 0 offen sc1")
            if also_l0 is not None:
                a(f"s_lshl_b32 s70, {wg}, 7\ns_add_u32 s70, s70, {WS_FLAG + also_l0*2*256*128}")
                a(f"s_cmp_eq_u32 {sL}, 0\ns_cselect_b32 s70, s70, 0x70000000\nv_mov_b32 v6, s70")
                a(f"buffer_store_dwordx2 v[4:5], v6, {SRD_WS}, 0 offen sc1")
            a("s_mov_b64 exec, -1")
        a.label(skip, reset=False)

    def flag_store(self, phase):
        a = self.a
        skip = self.lab("fs")
        a(f"s_cmp_eq_u32 {sWV}, 0\ns_cbranch_scc0 {skip}")
        with a.cond(skip):
            self.flag_addr("s78", phase, "s2")
            a(f"v_mov_b32 v4, {sN}\nv_mov_b32 v5, {sNN}\nv_mov_b32 v6, s78\ns_mov_b64 exec, 1")
            a(f"buffer_store_dwordx2 v[4:5], v6, {SRD_WS}, 0 offen sc1")
            a("s_mov_b64 exec, -1")
        a.label(skip, reset=False)

    def poll(self, vaddr, mask):
        a = self.a
        top, ok = self.lab("poll"), self.lab("pok")
        a(f"s_mov_b64 exec, {mask}\ns_mov_b32 {sCNT}, 0")
        a(f"s_cbranch_execz {ok}")
        a.label(top, reset=False)
        with a.cond(top):
            a(f"buffer_load_dwordx2 v[4:5], {vaddr}, {SRD_WS}, 0 offen sc1")
            a("s_waitcnt vmcnt(0)")
            a(f"v_cmp_ne_u64 vcc, {sNP}, v[4:5]")
            a(f"s_cbranch_vccz {ok}")
            a(f"s_add_u32 {sCNT}, {sCNT}, 1\ns_cmp_lt_u32 {sCNT}, {POLL_LIMIT}\ns_cbranch_scc1 {top}")
            a("s_branch L_fail")
        a.label(ok, reset=False)
        a("s_mov_b64 exec, -1")

    def wg_of(self, dst, r, cq):
        a = self.a
        a(f"v_and_b32 {dst}, 3, {r}\nv_lshlrev_b32 {dst}, 3, {dst}\nv_add_u32 {dst}, {cq}, {dst}\nv_lshlrev_b32 {dst}, 3, {dst}")
        a(f"v_lshrrev_b32 v7, 2, {r}\nv_add_u32 {dst}, {dst}, v7")

    def vflag(self, dst, phase):
        a = self.a
        a(f"s_lshl_b32 s70, {sL}, 15\ns_add_u32 s70, s70, {WS_FLAG + phase*2*256*128}")
        a(f"v_lshlrev_b32 {dst}, 7, {dst}\nv_add_u32 {dst}, s70, {dst}")

    def row_stats_store(self, sums, layer, local=False):
        a = self.a
        for ctl in ("quad_perm:[1,0,3,2]", "quad_perm:[2,3,0,1]", "row_half_mirror"):
            for r0 in sums:
                for k in range(2):
                    a(f"v_add_f32_dpp v{r0+k}, v{r0+k}, v{r0+k} {ctl} row_mask:0xf bank_mask:0xf")
        for r0 in sums:
            a(f"v_mov_b32 v{r0+2}, {sN}\nv_mov_b32 v{r0+3}, {sNN}")
        if isinstance(layer, int):
            a(f"s_add_u32 s72, {sR}, {layer*32}")
        else:
            a(f"s_lshl_b32 s72, {layer}, 5\ns_add_u32 s72, s72, {sR}")
        a(f"s_lshl_b32 s72, s72, 3\ns_add_u32 s72, s72, {sCQ}\ns_lshl_b32 s72, s72, 10\ns_add_u32 s72, s72, {WS_ST2}")
        a("v_lshrrev_b32 v3, 3, v0\nv_lshlrev_b32 v3, 4, v3\nv_and_b32 v4, 7, v0\nv_cmp_eq_u32 vcc, 0, v4\ns_mov_b64 exec, vcc")
        def st(m):
            for i, r0 in enumerate(sums):
                a(f"buffer_store_dwordx4 v[{r0}:{r0+3}], v3, {SRD_WS}, s72 offen offset:{i*512} {m}")
        if local:
            self.dual(st)
        else:
            st("sc1")
        a("s_mov_b64 exec, -1")

    def stop(self, name):
        if self.stop_after == name:
            self.a("s_waitcnt vmcnt(0) lgkmcnt(0)\ns_branch L_end")
            self.a.assume_clean()
            return True
        return False

    def prologue(self):
        a = self.a
        a("s_cmp_ge_u32 s2, 256\ns_cbranch_scc1 L_end")
        a("s_load_dwordx16 s[36:51], s[0:1], 0\ns_load_dwordx4 s[52:55], s[0:1], 64\ns_load_dwordx2 s[56:57], s[0:1], 80")
        a("v_and_b32 v1, 63, v0\nv_lshlrev_b32 v2, 4, v1\nv_lshrrev_b32 v3, 6, v0")
        a(f"v_readfirstlane_b32 {sWV}, v3")
        a(f"s_and_b32 s70, s2, 7\ns_lshr_b32 s71, s2, 3")
        a(f"s_lshr_b32 s72, s71, 3\ns_lshl_b32 {sR}, s70, 2\ns_add_u32 {sR}, {sR}, s72\ns_and_b32 {sCQ}, s71, 7")
        a(f"s_and_b32 s72, s70, 1\ns_lshl_b32 s72, s72, 2\ns_and_b32 s73, s71, 3\ns_add_u32 {sC1}, s72, s73")
        a("s_lshr_b32 s72, s70, 1\ns_lshr_b32 s73, s71, 2")
        a("s_mul_i32 s74, s72, 7\ns_min_u32 s75, s72, 1\ns_add_u32 s74, s74, s75")
        a(f"s_add_u32 {sJ1}, s74, s73")
        a("s_cmp_eq_u32 s72, 0\ns_cselect_b32 s75, 8, 7")
        a(f"s_cmp_lt_u32 s73, s75\ns_cselect_b32 {sM1}, 1, 0")
        a(f"s_and_b32 {sP}, {sWV}, 1\ns_lshr_b32 {sTB}, {sWV}, 1\ns_xor_b32 {sB}, {sP}, {sTB}")
        a(f"s_mov_b32 {sL}, 0")
        a("s_waitcnt lgkmcnt(0)")
        self.srd(4, P_X, 2 << 20)
        self.srd(8, P_WQ, 512 * 1536 * 2)
        self.srd(12, P_WO, 512 * 512 * 2)
        self.srd(16, P_WS, WS_SIZE)
        self.srd(28, P_W2, 1376 * 4096)
        self.srd(96, P_W1, 2048 * 2752)
        self.srd(20, P_WS, 2 << 20, WS_X2)
        a(f"v_mov_b32 v3, {WS_EPOCH}")
        a(f"buffer_load_dword v250, v3, {SRD_WS}, 0 offen sc1")
        a("v_lshrrev_b32 v3, 3, v0\nv_and_b32 v4, 7, v0")
        a(f"s_lshl_b32 s70, {sR}, 16\ns_lshl_b32 s71, {sCQ}, 7\ns_add_u32 s70, s70, s71")
        a("v_lshlrev_b32 v5, 10, v3\nv_lshl_add_u32 v5, v4, 4, v5")
        a(f"buffer_load_dwordx4 v[240:243], v5, {SRD_X}, s70 offen")
        a("s_add_u32 s70, s70, 32768")
        a(f"buffer_load_dwordx4 v[244:247], v5, {SRD_X}, s70 offen")

    def prologue_tail(self):
        a = self.a
        a(f"v_lshlrev_b32 v3, 21, v1\ns_mov_b64 exec, 0x3ffff\nbuffer_load_dword v251, v3, {SRD_WS}, 0 offen\ns_mov_b64 exec, -1")
        if "tlb" in OPT:
            a(f"s_mov_b64 exec, 7\nbuffer_load_dword v253, v3, {SRD_W1}, 0 offen\nbuffer_load_dword v254, v3, {SRD_W2P}, 0 offen\ns_mov_b64 exec, 1")
            self.srd(32, P_OUT, 2 << 20)
            a(f"buffer_load_dword v255, v3, {SRD_T}, 0 offen")
            self.srd(32, P_B1, 2752)
            a(f"buffer_load_dword v249, v3, {SRD_T}, 0 offen")
            self.srd(32, P_B2, 4096)
            a(f"buffer_load_dword v248, v3, {SRD_T}, 0 offen\ns_mov_b64 exec, -1")
        a(f"s_lshl_b32 s72, s2, 2\ns_add_u32 s72, s72, {sWV}\ns_lshl_b32 s72, s72, 9\nv_lshlrev_b32 v3, 7, v1")
        a(f"s_mov_b64 exec, 0xf\nbuffer_load_dword v252, v3, {SRD_WO}, s72 offen\ns_mov_b64 exec, -1")
        a("v_lshrrev_b32 v3, 3, v0\nv_and_b32 v4, 7, v0")
        a("v_mul_u32_u24 v6, 144, v3\nv_lshl_add_u32 v6, v4, 4, v6")
        a(f"v_add_u32 v6, {L_R}, v6")
        a(f"v_readfirstlane_b32 {sN}, v250")
        a(f"s_add_u32 {sN}, {sN}, 1\ns_not_b32 {sNN}, {sN}")
        a("ds_write_b128 v6, v[240:243]\nds_write_b128 v6, v[244:247] offset:4608")
        for h, (src, dst) in enumerate(((240, 232), (244, 236))):
            a(f"v_mov_b32 v{dst}, 0\nv_mov_b32 v{dst+1}, 0")
            for k in range(4):
                a(f"v_lshlrev_b32 v8, 16, v{src+k}\nv_and_b32 v9, 0xffff0000, v{src+k}")
                a(f"v_add_f32 v{dst}, v{dst}, v8\nv_fmac_f32 v{dst+1}, v8, v8\nv_add_f32 v{dst}, v{dst}, v9\nv_fmac_f32 v{dst+1}, v9, v9")
        self.row_stats_store([232, 236], 0)
        a(f"s_getreg_b32 s72, hwreg(HW_REG_XCC_ID)\ns_and_b32 s1, s72, 15\ns_mov_b32 {sFAST}, 0")
        a(f"s_lshl_b32 s72, {sR}, 3\ns_add_u32 s72, s72, {sCQ}\ns_lshl_b32 s72, s72, 4\ns_add_u32 s72, s72, {WS_XC}")
        a(f"v_mov_b32 v232, s1\nv_mov_b32 v233, 0\nv_mov_b32 v234, {sN}\nv_mov_b32 v235, {sNN}\nv_mov_b32 v3, s72")
        sk = self.lab("xc")
        a(f"s_cmp_eq_u32 {sWV}, 0\ns_cbranch_scc0 {sk}")
        with a.cond(sk):
            a(f"s_mov_b64 exec, 1\nbuffer_store_dwordx4 v[232:235], v3, {SRD_WS}, 0 offen sc1\ns_mov_b64 exec, -1")
        a.label(sk, reset=False)

    def w_dma(self, s, only=None, sg="s70", sl="s71", st="s72", va="v12"):
        a = self.a
        slot = L_RING + (s % 5) * 16384
        for n in range(4):
            if only is not None and n != only:
                continue
            if s < 8:
                part = n >> 1
                krow = 64 * s + (n & 1) * 32
                col = 1024 * (1 + part)
                lds = slot + part * 8192 + (n & 1) * 4096
            else:
                krow = 128 * (s - 8) + 32 * n
                col = 0
                lds = slot + n * 4096
            a(f"s_add_u32 m0, {sl}, {lds}\ns_add_u32 {st}, {sg}, {krow*3072 + col}")
            a(f"buffer_load_dwordx4 {va}, {SRD_WQ}, {st} offen lds", tag=f"W{s}")

    def w_dma_setup(self, sg="s70", sl="s71", st="s72"):
        a = self.a
        a(f"s_mul_i32 {sg}, {sWV}, {8*3072}\ns_lshl_b32 {st}, {sCQ}, 7\ns_add_u32 {sg}, {sg}, {st}\ns_lshl_b32 {sl}, {sWV}, 10")

    def q_addr_w(self, dst=12):
        a = self.a
        a(f"v_lshrrev_b32 v3, 3, v1\nv_mul_u32_u24 v{dst}, 3072, v3\nv_bfe_u32 v4, v1, 4, 1\nv_lshlrev_b32 v4, 2, v4")
        a(f"v_and_b32 v5, 7, v1\nv_xor_b32 v5, v5, v4\nv_lshl_add_u32 v{dst}, v5, 4, v{dst}")

    def q_addr_x(self):
        a = self.a
        a("v_lshrrev_b32 v3, 3, v1")
        for e in range(2):
            a(f"s_lshl_b32 s72, {sWV}, 4\ns_add_u32 s72, s72, {8*e}\nv_add_u32 v6, s72, v3")
            a(f"v_bfe_u32 v7, v6, 1, 3\nv_and_b32 v5, 7, v1\nv_xor_b32 v5, v5, v7\nv_lshlrev_b32 v6, 10, v6\nv_lshl_add_u32 v{10+e}, v5, 4, v6")

    def q_addr(self):
        self.q_addr_w()
        self.q_addr_x()
        self.w_dma_setup()

    def q_addr2(self):
        a = self.a
        a(f"v_and_b32 v3, 31, v1\ns_lshl_b32 s72, {sTB}, 5\nv_add_u32 v3, s72, v3\nv_bfe_u32 v4, v3, 1, 3\nv_lshrrev_b32 v5, 5, v1")
        for k in range(4):
            a(f"s_xor_b32 s72, {sB}, {k}\ns_lshl_b32 s72, s72, 1\nv_add_u32 v6, s72, v5\nv_xor_b32 v6, v6, v4")
            a(f"v_lshlrev_b32 v6, 4, v6\nv_lshl_add_u32 v{13+k}, v3, 7, v6")
        a("v_and_b32 v3, 15, v1\nv_lshrrev_b32 v4, 2, v3\nv_lshrrev_b32 v5, 5, v1\nv_lshl_add_u32 v4, v5, 3, v4")
        a(f"v_bfe_u32 v5, v1, 4, 1\nv_lshlrev_b32 v5, 1, v5\nv_bfe_u32 v6, v1, 1, 1\nv_add_u32 v5, v5, v6")
        a(f"s_lshl_b32 s72, {sP}, 2\nv_add_u32 v5, s72, v5\nv_bfe_u32 v6, v1, 3, 1\nv_lshlrev_b32 v6, 2, v6\nv_xor_b32 v5, v5, v6")
        a("v_lshlrev_b32 v5, 4, v5\nv_lshl_add_u32 v5, v4, 7, v5\nv_and_b32 v6, 1, v1\nv_lshl_add_u32 v5, v6, 3, v5")
        for e in range(2):
            a(f"s_xor_b32 s72, {sB}, {e}\ns_lshl_b32 s72, s72, 11\ns_add_u32 s72, s72, {L_RING}")
            a(f"v_add_u32 v{17+e}, s72, v5\nv_add_u32 v{19+e}, 49152, v{17+e}")
        a("v_mov_b32 v21, 0\nv_mov_b32 v24, 0\nv_mov_b32 v25, 0")
        a("s_mov_b32 s74, 0x3f803f80")
        a(f"s_lshl_b32 s72, {sL}, 5\ns_add_u32 s72, s72, {sR}\ns_lshl_b32 s75, s72, 13\ns_add_u32 s75, s75, {WS_ST2}")
        a(f"v_and_b32 v3, 31, v1\ns_lshl_b32 s72, {sTB}, 5\nv_add_u32 v3, s72, v3\nv_lshlrev_b32 v3, 4, v3\nv_lshrrev_b32 v4, 5, v1\nv_lshl_add_u32 v61, v4, 12, v3")

    def x_dma(self, kc):
        a = self.a
        for e in range(2):
            a(f"s_add_u32 m0, s77, {L_X + kc*8192 + e*1024}\ns_add_u32 s72, s76, {kc*128}")
            a(f"buffer_load_dwordx4 v{10+e}, {SRD_X}, s72 offen sc1 lds", tag=f"X{kc}")

    def q_entry(self, layer):
        a = self.a
        a.c(f"======== QKV phase entry, layer {layer}")
        if layer == 0:
            self.q_addr()
        else:
            self.q_addr_x()
        a(f"s_lshl_b32 s76, {sR}, 16\ns_lshl_b32 s77, {sWV}, 11")
        if layer == 0:
            for s_ in range(5):
                self.w_dma(s_)
                self.x_dma(s_)
            for kc in range(5, 8):
                self.x_dma(kc)
            self.stamp(0)
            self.prologue_tail()
            self.q_addr2()
            self.stamp(1)
        else:
            self.q_addr2()
            a(f"v_mov_b32 v8, {sR}")
            a(f"v_and_b32 v9, 3, v8\nv_lshlrev_b32 v9, 3, v9\nv_add_u32 v9, v1, v9\nv_lshlrev_b32 v9, 3, v9")
            a(f"v_lshrrev_b32 v7, 2, v8\nv_add_u32 v9, v9, v7")
            a(f"v_lshlrev_b32 v9, 7, v9\nv_add_u32 v9, {WS_FLAG + PH_X*2*256*128}, v9")
            self.stamp(0)
            a.wait_tag("Xst")
            a(f"s_mov_b32 {sL}, 0")
            self.publish(PH_X, local=True)
            a(f"s_mov_b32 {sL}, 1")
            self.stat_loads()
            a("v_mov_b32 v30, v9")
            self.ln_init()
            self.poll("v30", "0xff")
            self.stamp(1)
            for kc in range(8):
                self.x_dma(kc)

    XF, WF, AK, AV, AQ = 64, 32, 192, 208, 224

    def row_stats(self):
        a = self.a
        top, ok = self.lab("s2p"), self.lab("s2o")
        a(f"s_mov_b32 {sCNT}, 0")
        a.label(top, reset=False)
        a(f"v_cmp_ne_u64 vcc, {sNP}, v[242:243]")
        for k in range(1, 4):
            a(f"v_cmp_ne_u64 s[72:73], {sNP}, v[{242+4*k}:{243+4*k}]\ns_or_b64 vcc, vcc, s[72:73]")
        a(f"s_cbranch_vccz {ok}")
        with a.cond(top):
            self.stat_loads()
            a("s_waitcnt vmcnt(0)")
            a(f"s_add_u32 {sCNT}, {sCNT}, 1\ns_cmp_lt_u32 {sCNT}, {POLL_LIMIT}\ns_cbranch_scc1 {top}\ns_branch L_fail")
        a.label(ok, reset=False)
        a("v_add_f32 v26, v240, v244\nv_add_f32 v27, v241, v245\nv_add_f32 v28, v248, v252\nv_add_f32 v29, v249, v253")
        a("v_add_f32 v26, v26, v28\nv_add_f32 v27, v27, v29\nv_mov_b32 v28, v26\nv_mov_b32 v29, v27")
        a("v_permlane32_swap_b32 v26, v28\nv_permlane32_swap_b32 v27, v29\nv_add_f32 v26, v26, v28\nv_add_f32 v27, v27, v29")
        a(f"v_mul_f32 v26, {f32(1/512)}, v26\nv_mul_f32 v27, {f32(1/512)}, v27")
        a(f"v_fma_f32 v27, -v26, v26, v27\nv_max_f32 v27, 0, v27\nv_add_f32 v27, {f32(1e-5)}, v27\nv_rsq_f32 v27, v27")

    def ln_init(self):
        a = self.a
        AK, AV, AQ = self.AK, self.AV, self.AQ
        a("v_and_b32 v3, 31, v1\nv_lshrrev_b32 v5, 5, v1")
        a(f"s_mul_i32 s73, {sP}, 768\ns_add_u32 s73, s73, {L_CP}")
        a("v_lshl_add_u32 v56, v5, 4, s73\nv_lshl_add_u32 v57, v3, 2, s73")
        for part, dst in ((0, AK), (384, 32), (256, AQ), (384 + 256, AV)):
            for q in range(4):
                a(f"ds_read_b128 v[{dst+4*q}:{dst+4*q+3}], v56 offset:{part + 32*q}")
        a("ds_read_b32 v58, v57 offset:128\nds_read_b32 v59, v57 offset:512")
        self.row_stats()
        a(f"s_lshl_b32 s72, {sWV}, 8\ns_add_u32 s72, s72, {L_MR}\nv_lshl_add_u32 v4, v3, 2, s72")
        a("ds_write_b32 v4, v26\nds_write_b32 v4, v27 offset:128")
        a("v_lshl_add_u32 v60, v5, 4, s72")
        for i in range(16):
            a(f"v_add_f32 v{AK+i}, v{AK+i}, v{32+i}\nv_add_f32 v{AQ+i}, v{AQ+i}, v{AV+i}")
        a("v_add_f32 v58, v58, v59\ns_waitcnt lgkmcnt(0)")
        for q in range(4):
            a(f"ds_read_b128 v[{AV+4*q}:{AV+4*q+3}], v60 offset:{32*q}")
        for i in range(16):
            a(f"v_mul_f32 v{AK+i}, -v26, v{AK+i}\nv_mul_f32 v{AQ+i}, -v26, v{AQ+i}")
        for i in range(16):
            a(f"v_mul_f32 v{AV+i}, -v58, v{AV+i}")

    def waddr(self, s, e):
        slot = s % 5
        return (f"v{17+e}", slot * 16384) if slot < 3 else (f"v{19+e}", (slot - 3) * 16384)

    def stage_sync(self, s):
        a = self.a
        a("s_waitcnt lgkmcnt(0)")
        a.wait_tag(f"W{s}", f"X{s}") if s < 8 else a.wait_tag(f"W{s}")
        a("s_barrier")

    def stat_loads(self):
        for k in range(4):
            self.a(f"buffer_load_dwordx4 v[{240+4*k}:{243+4*k}], v61, {SRD_WS}, s75 offen offset:{k*1024} sc1")

    def kv_pass(self, first):
        a = self.a
        XF, WF, AK, AV = self.XF, self.WF, self.AK, self.AV
        a.c("======== K/V projection" + (" (layer 0)" if first else " (layer 1)"))

        def reads_kv(n, part=None):
            s, k = n >> 2, n & 3
            reg, off = self.waddr(s, k & 1)
            wf = WF + (n % 3) * 8
            for pt in range(2):
                if part is not None and pt != part:
                    continue
                if pt == 0:
                    a(f"ds_read_b128 v[{XF+4*n}:{XF+4*n+3}], v{13+k} offset:{L_X + s*8192}")
                for rd in range(2):
                    a(f"ds_read_b64_tr_b16 v[{wf+4*pt+2*rd}:{wf+4*pt+2*rd+1}], {reg} offset:{off + pt*8192 + (k >> 1)*4096 + rd*512}")
        self.w_dma_setup()
        self.stamp(20)
        self.stage_sync(0)
        self.stamp(21)
        reads_kv(0); reads_kv(1)
        for n in range(32):
            wf = WF + (n % 3) * 8
            x = f"v[{XF+4*n}:{XF+4*n+3}]"
            ck = "0" if n == 0 and first else f"v[{AK}:{AK+15}]"
            cv = "0" if n == 0 and first else f"v[{AV}:{AV+15}]"
            a(f"v_mfma_f32_32x32x16_bf16 v[{AK}:{AK+15}], v[{wf}:{wf+3}], {x}, {ck}")
            if n + 2 < 32:
                if (n + 2) % 4 == 0:
                    self.stage_sync((n + 2) >> 2)
                reads_kv(n + 2, 0)
            a(f"v_mfma_f32_32x32x16_bf16 v[{AV}:{AV+15}], {x}, v[{wf+4}:{wf+7}], {cv}")
            if n + 2 < 32:
                reads_kv(n + 2, 1)
            sfree = (n + 2) >> 2
            if n >= 2 and sfree + 4 < 12:
                self.w_dma(sfree + 4, only=(n + 2) & 3)
            if n == 24 and first:
                self.stat_loads()
            if n == 28 and not first:
                for q in range(4):
                    a(f"ds_read_b128 v[{240+4*q}:{243+4*q}], v60 offset:{128 + 32*q}")
            if first and n % 2 == 0:
                for i in range(4):
                    a(f"v_dot2c_f32_bf16 v24, s74, v{wf+i}\nv_dot2c_f32_bf16 v25, s74, v{wf+4+i}")

    def k_store(self):
        a = self.a
        AK = self.AK
        a(f"s_lshl_b32 s75, {sCQ}, 1\ns_add_u32 s75, s75, {sP}\ns_lshl_b32 s75, s75, 6\ns_lshl_b32 s76, {sR}, 1\ns_add_u32 s75, s75, s76")
        a(f"s_add_u32 s75, s75, {sTB}\ns_lshl_b32 s75, s75, 12\ns_lshl_b32 s76, {sL}, 22\ns_add_u32 s75, s75, s76\ns_add_u32 s75, s75, {WS_KV}")
        a(f"buffer_store_dwordx4 v[{AK}:{AK+3}], v2, {SRD_WS}, s75 offen sc1", tag="KVst")
        a(f"buffer_store_dwordx4 v[{AK+4}:{AK+7}], v2, {SRD_WS}, s75 offen offset:2048 sc1", tag="KVst")

    def v_store(self):
        a = self.a
        AV = self.AV
        a("v_bfe_u32 v3, v1, 4, 1\nv_lshlrev_b32 v3, 11, v3\nv_lshrrev_b32 v5, 5, v1\nv_lshl_add_u32 v3, v5, 8, v3")
        a("v_and_b32 v5, 15, v1\nv_lshl_add_u32 v3, v5, 4, v3")
        a(f"buffer_store_dwordx4 v[{AV}:{AV+3}], v3, {SRD_WS}, s75 offen offset:1024 sc1", tag="KVst")
        a(f"buffer_store_dwordx4 v[{AV+4}:{AV+7}], v3, {SRD_WS}, s75 offen offset:1536 sc1", tag="KVst")

    def kv_epilogue_l1(self):
        a = self.a
        AK, AV = self.AK, self.AV
        self.stamp(2)
        for i in range(16):
            a(f"v_mul_f32 v{AK+i}, v27, v{AK+i}")
        for k in range(8):
            a(f"v_cvt_pk_bf16_f32 v{AK+k}, v{AK+2*k}, v{AK+2*k+1}")
        self.k_store()
        for i in range(16):
            a(f"v_mul_f32 v{AV+i}, v{240+i}, v{AV+i}")
        for k in range(8):
            a(f"v_cvt_pk_bf16_f32 v{AV+k}, v{AV+2*k}, v{AV+2*k+1}")
        self.v_store()

    def q_phase(self):
        a = self.a
        XF, WF, AK, AV, AQ = self.XF, self.WF, self.AK, self.AV, self.AQ
        waddr, stage_sync, stat_loads = self.waddr, self.stage_sync, self.stat_loads
        a.label("L_kvdone", reset=False)
        self.stamp(2)
        a("v_and_b32 v3, 31, v1")
        a(f"s_lshl_b32 s72, {sP}, 1\ns_add_u32 s72, s72, {sTB}\ns_mul_i32 s72, s72, 384\ns_add_u32 s72, s72, {L_CP}")
        a("v_lshl_add_u32 v9, v3, 2, s72")
        sk = self.lab("cs")
        a(f"s_cmp_eq_u32 {sL}, 0\ns_cbranch_scc0 {sk}")
        with a.cond("l0"):
            a("v_mov_b32 v26, v24\nv_mov_b32 v27, v25\nv_permlane32_swap_b32 v24, v26\nv_permlane32_swap_b32 v25, v27")
            a("v_add_f32 v24, v24, v26\nv_add_f32 v25, v25, v27")
            a("ds_write_b32 v9, v24\nds_write_b32 v9, v25 offset:128")
            a("s_waitcnt lgkmcnt(0)")
        a.label(sk, reset=False)
        a("s_barrier")
        self.row_stats()
        a(f"s_mul_i32 s72, {sP}, 768\ns_add_u32 s72, s72, {L_CP}")
        a("v_lshrrev_b32 v5, 5, v1\nv_lshl_add_u32 v56, v5, 4, s72")
        for q in range(4):
            a(f"ds_read_b128 v[{240+4*q}:{243+4*q}], v56 offset:{32*q}")
        for q in range(4):
            a(f"ds_read_b128 v[{32+4*q}:{35+4*q}], v56 offset:{384 + 32*q}")
        a("v_lshl_add_u32 v57, v3, 2, s72\nds_read_b32 v58, v57 offset:128\nds_read_b32 v59, v57 offset:512")
        a(f"s_lshl_b32 s72, {sWV}, 8\ns_add_u32 s72, s72, {L_MR}\nv_lshl_add_u32 v4, v3, 2, s72")
        a("ds_write_b32 v4, v26\nds_write_b32 v4, v27 offset:128")
        for i in range(16):
            a(f"v_add_f32 v{240+i}, v{240+i}, v{32+i}")
        a("v_add_f32 v58, v58, v59")
        a(f"v_lshl_add_u32 v4, v5, 4, s72")
        a("s_waitcnt lgkmcnt(0)")
        for q in range(4):
            a(f"ds_read_b128 v[{32+4*q}:{35+4*q}], v4 offset:{32*q}")
        for q in range(4):
            a(f"ds_read_b128 v[{48+4*q}:{51+4*q}], v4 offset:{128 + 32*q}") if q < 2 else None
        for i in range(16):
            a(f"v_fma_f32 v{AK+i}, -v26, v{240+i}, v{AK+i}")
        for i in range(16):
            a(f"v_mul_f32 v{AK+i}, v27, v{AK+i}")
        for k in range(8):
            a(f"v_cvt_pk_bf16_f32 v{AK+k}, v{AK+2*k}, v{AK+2*k+1}")
        self.k_store()
        for q in range(2, 4):
            a(f"ds_read_b128 v[{240+4*q}:{243+4*q}], v4 offset:{128 + 32*q}")
        rs = lambda i: (48 + i) if i < 8 else (240 + i)
        for i in range(16):
            a(f"v_fma_f32 v{AV+i}, -v{32+i}, v58, v{AV+i}")
        for i in range(16):
            a(f"v_mul_f32 v{AV+i}, v{rs(i)}, v{AV+i}")
        for k in range(8):
            a(f"v_cvt_pk_bf16_f32 v{AV+k}, v{AV+2*k}, v{AV+2*k+1}")
        self.v_store()
        a.label("L_kvstored", reset=False)
        self.stamp(3)
        def reads_q(n):
            s, k = 8 + (n >> 3), n & 7
            reg, off = waddr(s, k & 1)
            wf = WF + (n % 3) * 8
            for rd in range(2):
                a(f"ds_read_b64_tr_b16 v[{wf+2*rd}:{wf+2*rd+1}], {reg} offset:{off + (k >> 1)*4096 + rd*512}")
        def q_pass(first):
            stage_sync(8)
            reads_q(0); reads_q(1)
            for n in range(32):
                wf = WF + (n % 3) * 8
                cq = "0" if n == 0 and first else f"v[{AQ}:{AQ+15}]"
                a(f"v_mfma_f32_32x32x16_bf16 v[{AQ}:{AQ+15}], v[{wf}:{wf+3}], v[{XF+4*n}:{XF+4*n+3}], {cq}")
                if n + 2 < 32:
                    if (n + 2) % 8 == 0:
                        last = (n + 2) == 24
                        if last:
                            a.wait_tag("KVst")
                        stage_sync(8 + ((n + 2) >> 3))
                        if last:
                            self.flag_store(PH_KV)
                    reads_q(n + 2)
                if first and n % 2 == 0:
                    for i in range(4):
                        a(f"v_dot2c_f32_bf16 v21, s74, v{wf+i}")
            if first:
                a("v_mov_b32 v28, v21\nv_permlane32_swap_b32 v21, v28\nv_add_f32 v21, v21, v28")
                a("ds_write_b32 v9, v21 offset:256")
        lb, lj = self.lab("qb"), self.lab("qj")
        a(f"s_cmp_eq_u32 {sL}, 0\ns_cbranch_scc0 {lb}")
        a.fork()
        q_pass(True)
        a(f"s_branch {lj}")
        a.label(lb, reset=False)
        a.alt()
        q_pass(False)
        a.endfork()
        a.label(lj, reset=False)
        a("s_waitcnt lgkmcnt(0)\ns_barrier")
        self.stamp(4)
        sk = self.lab("qe")
        a(f"s_cmp_eq_u32 {sL}, 0\ns_cbranch_scc0 {sk}")
        with a.cond("l0q"):
            for q in range(4):
                a(f"ds_read_b128 v[{240+4*q}:{243+4*q}], v56 offset:{256 + 32*q}")
            for q in range(4):
                a(f"ds_read_b128 v[{32+4*q}:{35+4*q}], v56 offset:{384 + 256 + 32*q}")
            for i in range(16):
                a(f"v_add_f32 v{240+i}, v{240+i}, v{32+i}")
            for i in range(16):
                a(f"v_fma_f32 v{AQ+i}, -v26, v{240+i}, v{AQ+i}")
        a.label(sk, reset=False)
        a(f"v_mul_f32 v27, {f32(0.25*LOG2E)}, v27")
        for i in range(16):
            a(f"v_mul_f32 v{AQ+i}, v27, v{AQ+i}")
        for k in range(8):
            a(f"v_cvt_pk_bf16_f32 v{AQ+k}, v{AQ+2*k}, v{AQ+2*k+1}")

    def wo_dma(self):
        a = self.a
        a("v_lshrrev_b32 v3, 3, v1\nv_lshlrev_b32 v3, 10, v3\nv_bfe_u32 v4, v1, 1, 2\nv_bfe_u32 v5, v1, 4, 2\nv_xor_b32 v4, v4, v5")
        a("v_lshlrev_b32 v4, 1, v4\nv_and_b32 v5, 1, v1\nv_add_u32 v4, v4, v5\nv_lshl_add_u32 v19, v4, 4, v3")
        a(f"s_lshl_b32 s78, {sWV}, 17\ns_lshl_b32 s73, {sCQ}, 7\ns_add_u32 s78, s78, s73\ns_lshl_b32 s79, {sWV}, 14")

        def one(n):
            return (f"s_add_u32 m0, s79, {L_X + n*1024}\ns_add_u32 s72, s78, {n*8192}\n"
                    f"buffer_load_dwordx4 v19, {SRD_WO}, s72 offen lds")
        return one

    def build(self):
        a = self.a
        self.prologue()
        self.q_entry(0)
        self.kv_pass(True)
        done = False
        self.q_phase()
        done = self.stop("q")
        if not done:
            from gen2 import rest
            rest(self)
        a.label("L_fail", reset=False)
        self.srd(32, P_DBG, 256)
        a("v_mov_b32 v4, 0xdead\nv_mov_b32 v5, 0\ns_mov_b64 exec, 1")
        a(f"buffer_store_dword v4, v5, {SRD_T}, 0 offen")
        a.label("L_end", reset=False)
        a("s_endpgm")
        body = a.finalize()
        head = open("interleave_layers__sliding_block__mixer_token_mlp__prompt.s.ref").read().split("\n")
        hdr = [l for l in head if l.startswith(";") and "@launch" not in l and "Override launch" not in l and "grid=ceil" not in l]
        hdr = hdr[:hdr.index(next(l for l in hdr if "d_ws" in l)) + 1]
        out = "\n".join(hdr) + f"\n; @launch grid=(256,1,1) block=(256,1,1) lds={LDS_SIZE}\n"
        out += '.amdgcn_target "amdgcn-amd-amdhsa--gfx950"\n.text\n'
        out += f".globl {KNAME}\n.p2align 8\n.type {KNAME},@function\n{KNAME}:\n"
        out += body
        out += f'''.section .rodata,"a"
.p2align 6
.amdhsa_kernel {KNAME}
  .amdhsa_next_free_vgpr 512
  .amdhsa_next_free_sgpr 102
  .amdhsa_accum_offset 256
  .amdhsa_group_segment_fixed_size 0
  .amdhsa_kernarg_size 88
  .amdhsa_user_sgpr_count 2
  .amdhsa_user_sgpr_kernarg_segment_ptr 1
  .amdhsa_system_sgpr_workgroup_id_x 1
.end_amdhsa_kernel
'''
        return out


if __name__ == "__main__":
    import argparse
    ap = argparse.ArgumentParser()
    ap.add_argument("--stop", default=None)
    ap.add_argument("--diag", action="store_true")
    ap.add_argument("-o", default="interleave_layers__sliding_block__mixer_token_mlp__prompt.s")
    args = ap.parse_args()
    g = Gen(stop_after=args.stop, diag=args.diag)
    src = g.build()
    open(args.o, "w").write(src)
    print("written", args.o, g.a.stats, "bytes", len(src))
```

```python
import math
from gen import *

NEG = f32(-1e30)
import os
OPT = set(os.environ.get("KOPT", "").split(","))
INB = "inb" in OPT
sHB, sUO, sACC, sREDO = "s36", 37, "s[40:41]", "s42"


def ar(b, n=4):
    return f"a[{b}:{b+n-1}]"


def vr(b, n=4):
    return f"v[{b}:{b+n-1}]"


QA, QB = 224, 228
SBUF = (64, 80, 96, 112)
NEGM = {"A": 128, "B": 144}
OACC = {"A": 160, "B": 176}
PBUF = {"A": 192, "B": 200}
CDIAG, CFAR, ANDD, ANDF = 208, 232, 32, 40
AK0, AV0 = 0, 72
L_KV = L_RING


def kfrag(b):
    return AK0 + b * 4


def vfrag(b, half):
    return AV0 + ((b & 1) * 2 + half) * 4


def attn_setup(g):
    a = g.a
    a.c("======== attention constants")
    a("v_and_b32 v3, 31, v1\nv_lshrrev_b32 v4, 5, v1\nv_lshlrev_b32 v4, 2, v4\nv_sub_u32 v3, v3, v4")
    a(f"v_mov_b32 v48, 0\nv_mov_b32 v49, {NEG}\nv_mov_b32 v50, 0xffff\nv_mov_b32 v51, 0xffff0000")
    for i in range(16):
        ci = (i & 3) + 8 * (i >> 2)
        sp = f"s[{72 + 2*(i % 4)}:{73 + 2*(i % 4)}]"
        a(f"v_cmp_le_i32 {sp}, {ci}, v3")
        a(f"v_mov_b32 v{OACC['A']+i}, 0\nv_mov_b32 v{OACC['B']+i}, 0")
        a(f"v_cndmask_b32 v{CDIAG+i}, v49, v48, {sp}\nv_cndmask_b32 v{CFAR+i}, v48, v49, {sp}")
        a(f"v_cndmask_b32 v{52 + (i & 1)}, v48, v{50 + (i & 1)}, {sp}")
        if i & 1:
            a(f"v_or_b32 v{ANDD + i//2}, v52, v53\nv_not_b32 v{ANDF + i//2}, v{ANDD + i//2}")
    for i in range(8):
        a(f"v_mov_b32 v{PBUF['A']+i}, 0\nv_mov_b32 v{PBUF['B']+i}, 0")
    for k in range(AV0, AV0 + 16):
        a(f"v_accvgpr_write_b32 a{k}, v48")
    a("v_mov_b32 v54, 0x3f803f80\ns_mov_b32 exec_lo, 0x00110000\ns_mov_b32 exec_hi, 0x00110000")
    for k in range(AV0, AV0 + 16):
        a(f"v_accvgpr_write_b32 a{k}, v54")
    a("s_mov_b64 exec, -1")


def warmup_text(srd, dst):
    return (f"s_lshl_b32 s72, s2, 2\ns_add_u32 s72, s72, {sWV}\ns_mul_i32 s73, s72, {43*128}\nv_lshlrev_b32 v7, 7, v1\n"
            f"s_cmp_eq_u32 {sL}, 0\ns_cselect_b32 s73, s73, 0x70000000\n"
            f"s_mov_b32 exec_lo, -1\ns_mov_b32 exec_hi, 0x7ff\n"
            f"buffer_load_dword {dst}, v7, {srd}, s73 offen\ns_mov_b64 exec, -1")


def warmup(g, srd, dst):
    g.a(warmup_text(srd, dst))


def team_check(g):
    a = g.a
    top, ok = g.lab("tc"), g.lab("tco")
    a(f"s_lshl_b32 s72, {sR}, 7\ns_add_u32 s72, s72, {WS_XC}\nv_lshlrev_b32 v3, 4, v1\ns_mov_b32 {sCNT}, 0\ns_mov_b64 exec, 0xff")
    a.label(top, reset=False)
    a(f"buffer_load_dwordx4 v[24:27], v3, {SRD_WS}, s72 offen sc1\ns_waitcnt vmcnt(0)")
    a(f"v_cmp_ne_u64 vcc, {sNP}, v[26:27]\ns_cbranch_vccz {ok}")
    a(f"s_add_u32 {sCNT}, {sCNT}, 1\ns_cmp_lt_u32 {sCNT}, {POLL_LIMIT}\ns_cbranch_scc1 {top}\ns_branch L_fail")
    a.label(ok, reset=False)
    a(f"v_cmp_ne_u32 vcc, s1, v24\ns_cmp_eq_u64 vcc, 0\ns_cselect_b32 {sFAST}, 1, 0\ns_mov_b64 exec, -1")


def x2_touch_text():
    return ("v_lshrrev_b32 v6, 3, v0\nv_and_b32 v3, 7, v0\nv_lshlrev_b32 v6, 10, v6\nv_lshl_add_u32 v6, v3, 4, v6\n"
            f"s_lshl_b32 s72, {sR}, 16\ns_lshl_b32 s73, {sCQ}, 7\ns_add_u32 s72, s72, s73\n"
            f"s_cmp_eq_u32 {sL}, 0\ns_cselect_b32 s72, s72, 0x70000000\ns_add_u32 s73, s72, 32768\n"
            f"buffer_load_dword v23, v6, {SRD_DST}, s72 offen sc1\nbuffer_load_dword v24, v6, {SRD_DST}, s73 offen sc1\n"
            f"s_add_u32 s72, {sR}, 32\ns_lshl_b32 s72, s72, 3\ns_add_u32 s72, s72, {sCQ}\ns_lshl_b32 s72, s72, 10\ns_add_u32 s72, s72, {WS_ST2}\n"
            f"s_cmp_eq_u32 {sL}, 0\ns_cselect_b32 s72, s72, 0x70000000\n"
            f"buffer_load_dword v25, v2, {SRD_WS}, s72 offen sc1")


def u_offsets(g, dst):
    a = g.a
    a(f"s_mul_i32 s76, {sWV}, 3\ns_mul_i32 s77, {sC1}, {UC}\ns_lshl_b32 s73, {sL}, 21\ns_add_u32 s77, s77, s73\ns_add_u32 s77, s77, {WS_U}")
    for i in range(3):
        a(f"s_add_u32 s72, s76, {i}\ns_lshr_b32 s73, s72, 1\ns_and_b32 s72, s72, 1")
        a(f"s_mul_i32 s74, {sJ1}, 6\ns_add_u32 s74, s74, s73\ns_lshr_b32 s75, s74, 2\ns_and_b32 s79, s74, 3")
        a(f"s_lshl_b32 s75, s75, 12\ns_lshl_b32 s79, s79, 8\ns_add_u32 s75, s75, s79\ns_lshl_b32 s72, s72, 11\ns_add_u32 s75, s75, s72")
        a(f"s_add_u32 s75, s75, s77\ns_cmp_ge_u32 s74, 172\ns_cselect_b32 s79, 0x70000000, 0\ns_or_b32 s75, s75, s79")
        a(f"s_cmp_eq_u32 {sM1}, 0\ns_cselect_b32 s{dst+i}, 0x70000000, s75")


def inband_addresses(g):
    a = g.a
    a(f"s_lshl_b32 s72, {sCQ}, 6\ns_lshl_b32 s73, {sR}, 1\ns_add_u32 s72, s72, s73\ns_add_u32 s72, s72, {sTB}\ns_lshl_b32 s72, s72, 2")
    a(f"s_lshl_b32 s73, {sP}, 1\ns_add_u32 s72, s72, s73\ns_lshl_b32 s72, s72, 10\ns_lshl_b32 s73, {sL}, 21\ns_add_u32 s72, s72, s73\ns_add_u32 {sHB}, s72, {WS_H}")
    a("s_mov_b64 s[44:45], s[74:75]")
    u_offsets(g, sUO)
    a("s_mov_b64 s[74:75], s[44:45]")
    a("v_lshrrev_b32 v25, 5, v1\nv_lshlrev_b32 v25, 10, v25\nv_bfe_u32 v7, v1, 1, 4\nv_lshl_add_u32 v25, v7, 4, v25")
    a("v_mov_b32 v28, -1\nv_mov_b32 v29, -1\nv_mov_b32 v30, -1\nv_mov_b32 v31, -1")


def attn(g):
    a = g.a
    a.c("======== attention")
    a(f"s_sub_u32 s72, {sR}, 4\nv_add_u32 v8, s72, v1\nv_cmp_le_i32 s[74:75], 0, v8")
    g.wg_of("v9", "v8", sCQ)
    g.vflag("v9", PH_KV)
    a("s_and_b64 s[74:75], s[74:75], 0xf")
    a(f"s_lshl_b32 s76, {sR}, 1\ns_add_u32 s76, s76, {sTB}\ns_sub_u32 s77, 8, s76\ns_max_i32 s77, s77, 0")
    a(f"s_lshl_b32 s78, {sCQ}, 1\ns_add_u32 s78, s78, {sP}\ns_lshl_b32 s78, s78, 18\ns_lshl_b32 s79, {sL}, 22")
    a(f"s_add_u32 s78, s78, s79\ns_add_u32 s78, s78, {WS_KV}")
    a(f"s_lshl_b32 s79, {sTB}, 2\ns_lshl_b32 s80, {sR}, 1\ns_add_u32 s80, s80, s79\ns_sub_u32 s80, s80, 8")
    for i in range(4):
        a(f"s_add_i32 s{81+i}, s80, {i}\ns_max_i32 s{81+i}, s{81+i}, 0\ns_lshl_b32 s{81+i}, s{81+i}, 12\ns_add_u32 s{81+i}, s{81+i}, s78")
    a(f"s_lshl_b32 s85, {sR}, 1\ns_add_u32 s85, s85, {sTB}\ns_lshl_b32 s85, s85, 12\ns_add_u32 s85, s85, s78")
    a(f"s_mul_i32 s86, {sP}, 40960\ns_lshl_b32 s87, {sTB}, 14\ns_add_u32 s87, s87, s86\ns_add_u32 s87, s87, {L_KV}")
    a(f"s_lshl_b32 s79, {sTB}, 12\ns_add_u32 s79, s79, s86\ns_add_u32 s79, s79, {L_KV + 8*4096}")
    for q4 in range(4):
        a(f"s_add_u32 m0, s79, {q4*1024}\ns_add_u32 s72, s85, {q4*1024}")
        a(f"buffer_load_dwordx4 v2, {SRD_WS}, s72 offen sc1 lds", tag="Kd")
    a(f"s_lshl_b32 s88, {sTB}, 12\ns_add_u32 s88, s88, s86\ns_add_u32 s88, s88, {L_KV}\nv_add_u32 v10, s88, v2")
    a("v_and_b32 v8, 15, v1\nv_lshlrev_b32 v8, 4, v8\nv_lshrrev_b32 v7, 5, v1\nv_lshl_add_u32 v8, v7, 8, v8\nv_add_u32 v11, s88, v8")
    a("s_mov_b32 s90, 0xffff\ns_mov_b32 s91, 0xffff")
    a("v_bfe_u32 v20, v1, 4, 1\nv_lshlrev_b32 v20, 14, v20\nv_and_b32 v7, 15, v1\nv_lshl_add_u32 v20, v7, 4, v20")
    a("v_lshrrev_b32 v7, 5, v1\nv_lshl_add_u32 v20, v7, 8, v20")
    a(f"s_lshl_b32 s72, {sR}, 2\ns_lshl_b32 s73, {sTB}, 1\ns_add_u32 s72, s72, s73\ns_lshl_b32 s72, s72, 4")
    a(f"s_lshl_b32 s73, {sCQ}, 1\ns_add_u32 s72, s72, s73\ns_add_u32 s72, s72, {sP}\ns_lshl_b32 s72, s72, 10")
    a(f"s_lshl_b32 s73, {sL}, 21\ns_add_u32 s72, s72, s73\ns_add_u32 s89, s72, {WS_OF}")
    if INB:
        inband_addresses(g)
    a("s_mov_b64 s[76:77], s[74:75]")
    l0_only(g, "l0p", lambda: (team_check(g), p1_setup(g)))
    wo = g.wo_dma()
    g.poll("v9", "s[76:77]")
    a(f"s_lshl_b32 s76, {sR}, 1\ns_add_u32 s76, s76, {sTB}\ns_sub_u32 s77, 8, s76\ns_max_i32 s77, s77, 0")
    g.stamp(6)
    def kvdma(i, h, part):
        return (f"s_add_u32 m0, s87, {i*4096 + h*2048 + part}\ns_add_u32 s72, s{81+i}, {h*2048 + part}\n"
                f"buffer_load_dwordx4 v2, {SRD_WS}, s72 offen sc1 lds")
    for i in range(4):
        for h in range(2):
            a(kvdma(i, h, 0), tag="Kd")
    vd = [kvdma(i, h, 1024) for i in range(4) for h in range(2)]
    heads = ("A", "B")
    q = {"A": QA, "B": QB}
    mx = {"A": (48, 49), "B": (50, 51)}

    def kread(b):
        t, h = b >> 1, b & 1
        return f"ds_read_b128 {ar(kfrag(b))}, v10 offset:{t*4096 + h*2048}"

    def vread(b, half):
        t, h = b >> 1, b & 1
        return f"ds_read_b128 {ar(vfrag(b, half))}, v11 offset:{t*4096 + h*2048 + 1024 + half*512}"

    def qk(b, c):
        return f"v_mfma_f32_32x32x16_bf16 {vr(SBUF[b & 3],16)}, {ar(kfrag(b))}, {vr(q[heads[b & 1]])}, {c}"

    def cmask(t):
        return vr(CFAR, 16) if t == 0 else vr(CDIAG, 16) if t == 8 else "0"

    for h in heads:
        a(f"v_mov_b32 v{mx[h][0]}, {NEG}\nv_mov_b32 v{mx[h][1]}, {NEG}")
    a.wait_tag("Kd")
    a("s_barrier")
    a.c("pass 1: true row maximum over the masked window")
    for b in range(4):
        a(kread(b))
    a(qk(0, cmask(0)))
    a(kread(4))
    a(qk(1, cmask(0)))
    for b in range(18):
        t, s_, h = b >> 1, SBUF[b & 3], heads[b & 1]
        if t < 8 and b % 2 == 0:
            stub, back = g.lab("p1s"), g.lab("p1b")
            always = [x for bb in (b, b + 1) for x in ([kread(bb + 5)] if bb + 5 < 18 else []) + ([qk(bb + 2, cmask((bb + 2) >> 1))] if bb + 2 < 18 else [])
                      + ([vd[bb]] if bb < 8 else []) + ([wo(bb - 2)] if bb >= 2 else [])]
            a(f"s_cmp_gt_u32 s77, {t}\ns_cbranch_scc1 {stub}")
        if b + 5 < 18:
            a(kread(b + 5))
        if b + 2 < 18:
            a(qk(b + 2, cmask((b + 2) >> 1)))
        if b < 8:
            a(vd[b], tag="Vd")
        for i in range(8):
            m = mx[h][i & 1]
            a(f"v_max3_f32 v{m}, v{m}, v{s_+2*i}, v{s_+2*i+1}")
            if i == 3 and b >= 2:
                a(wo(b - 2))
        if t < 8 and b % 2 == 1:
            a.label(back, reset=False)
            g.stubs.append((stub, back, ["s_waitcnt lgkmcnt(0)"] + [y for x in always for y in (x, "s_waitcnt lgkmcnt(0)")]))
    for h in heads:
        m0, m1 = mx[h]
        a(f"v_max_f32 v{m0}, v{m0}, v{m1}\nv_mov_b32 v{m1}, v{m0}")
    for h in heads:
        m0, m1 = mx[h]
        a(f"v_permlane32_swap_b32 v{m0}, v{m1}")
    for h in heads:
        m0, m1 = mx[h]
        a(f"v_max_f32 v{m0}, v{m0}, v{m1}\nv_xor_b32 v{m0}, 0x80000000, v{m0}")
    for i in range(16):
        a(f"v_mov_b32 v{NEGM['A']+i}, v{mx['A'][0]}")
    a(qk(0, vr(NEGM["A"], 16)))
    for i in range(16):
        a(f"v_mov_b32 v{NEGM['B']+i}, v{mx['B'][0]}")
    a.wait_tag("Vd")
    a("s_barrier")
    a(f"buffer_load_dword v21, v20, {SRD_WS}, s89 offen sc1\nbuffer_load_dword v23, v20, {SRD_WS}, s89 offen offset:512 sc1")
    a(f"s_lshl_b32 s72, {sL}, 5\ns_add_u32 s72, s72, {sR}\ns_lshl_b32 s72, s72, 3\ns_add_u32 s72, s72, {sCQ}\ns_lshl_b32 s72, s72, 10")
    a(f"s_lshl_b32 s73, {sWV}, 8\ns_add_u32 s72, s72, s73\ns_add_u32 s72, s72, {WS_ST}")
    a(f"s_mov_b64 exec, 0xffff\nbuffer_load_dword v22, v2, {SRD_WS}, s72 offen sc1\ns_mov_b64 exec, -1")
    l0_only(g, "l0p", lambda: p1_loads(g))
    g.stamp(7)
    a.c("pass 2: P = exp2(S - m), O += V^T P; block b exponentiates S_b, starts S_{b+1} and finishes block b-1")

    def s2(b):
        return SBUF[b & 1]

    def qk2(b):
        h = heads[b & 1]
        return f"v_mfma_f32_32x32x16_bf16 {vr(s2(b),16)}, {ar(kfrag(b))}, {vr(q[h])}, {vr(NEGM[h],16)}"

    def pv(b, half):
        h = heads[b & 1]
        o, p = OACC[h], PBUF[h]
        return f"v_mfma_f32_32x32x16_bf16 {vr(o,16)}, {ar(vfrag(b, half))}, {vr(p+4*half)}, {vr(o,16)}"

    for b in range(18):
        t, h = b >> 1, heads[b & 1]
        nxt = [qk2(b + 1)] if b + 1 < 18 else []
        prv = [pv(b - 1, 0), pv(b - 1, 1)] if b >= 1 else []
        vl = ["s_mov_b64 exec, s[90:91]\n" + vread(b, 0) + "\n" + vread(b, 1) + "\ns_mov_b64 exec, -1"]
        if INB and b == 2:
            for e in range(2):
                a(f"buffer_store_dwordx4 v[28:31], v2, {SRD_WS}, {sHB} offen offset:{e*1024} sc1")
        if INB and b == 4:
            a("s_mov_b32 exec_lo, 0x55555555\ns_mov_b32 exec_hi, 0x55555555")
            for i in range(3):
                a(f"buffer_store_dwordx4 v[28:31], v25, {SRD_WS}, s{sUO+i} offen sc1")
            a("s_mov_b64 exec, -1")
        if t < 8 and b % 2 == 0:
            stub, back = g.lab("sk"), g.lab("bk")
            a(f"s_cmp_gt_u32 s77, {t}\ns_cbranch_scc1 {stub}")
        s_, p = s2(b), PBUF[h]
        extra = {1: nxt[:1], 4: prv[:1], 9: prv[1:2], 11: vl}
        for i in range(16):
            a(f"v_exp_f32 v{s_+i}, v{s_+i}")
            if i >= 2 and i % 2 == 0:
                k = i // 2 - 1
                a(f"v_cvt_pk_bf16_f32 v{p+k}, v{s_+2*k}, v{s_+2*k+1}")
            for x in extra.get(i, []):
                a(x)
        a(f"s_nop 0\nv_cvt_pk_bf16_f32 v{p+7}, v{s_+14}, v{s_+15}")
        if t in (0, 8):
            msk = ANDF if t == 0 else ANDD
            for k in range(8):
                a(f"v_and_b32 v{p+k}, v{msk+k}, v{p+k}")
        if t < 8 and b % 2 == 1:
            a.label(back, reset=False)
            g.stubs.append((stub, back, nxt))
    a(pv(17, 0)); a(pv(17, 1))
    g.stamp(8)
    for hi, h in enumerate(heads):
        o = OACC[h]
        a(f"v_rcp_f32 v52, v{o+8}")
        for i in range(8):
            a(f"v_mul_f32 v{o+i}, v52, v{o+i}")
        for k in range(4):
            a(f"v_cvt_pk_bf16_f32 v{o+k}, v{o+2*k}, v{o+2*k+1}")

    def ost(m):
        for hi, h in enumerate(heads):
            a(f"buffer_store_dwordx4 {vr(OACC[h])}, v20, {SRD_WS}, s89 offen offset:{hi*512} {m}", tag="Ost")
    g.dual(ost)


L_STG = L_RING + 10240
L_STG2 = L_RING
V_W1D, V_W1R, V_W2D, V_W2R = 52, 56, 40, 42


PA1 = 96
V_P1 = 12


def p1_setup(g):
    a = g.a
    a("s_lshr_b32 s72, s2, 2\ns_and_b32 s73, s2, 3")
    a("s_mul_i32 s74, s73, 7\ns_min_u32 s75, s73, 1\ns_add_u32 s74, s74, s75")
    a("s_cmp_eq_u32 s73, 0\ns_cselect_b32 s75, 8, 7")
    a(f"s_mul_i32 s101, s72, {32*2752}\ns_mul_i32 s73, s74, 96\ns_add_u32 s101, s101, s73\ns_mul_i32 s75, s75, 6")
    a("s_mov_b32 s72, 1311\ns_mov_b32 s73, 2752")
    for n in range(7):
        a(f"s_lshl_b32 s74, {sWV}, 6\ns_add_u32 s74, s74, {256*n}\nv_add_u32 v3, s74, v1")
        a("v_mul_lo_u32 v4, v3, s72\nv_lshrrev_b32 v4, 16, v4\nv_mul_u32_u24 v5, 50, v4\nv_sub_u32 v5, v3, v5")
        a("v_mul_lo_u32 v6, v4, s73\nv_lshl_add_u32 v6, v5, 4, v6")
        a("v_cmp_gt_u32 vcc, s75, v5\nv_cmp_gt_u32 s[78:79], 32, v4\ns_and_b64 vcc, vcc, s[78:79]")
        a(f"v_mov_b32 v5, 0x7ff00000\nv_cndmask_b32 v{V_P1+n}, v5, v6, vcc")


def p1_loads(g):
    a = g.a
    for n in range(7):
        a(f"buffer_load_dwordx4 {ar(PA1+4*n)}, v{V_P1+n}, {SRD_W1}, s101 offen")


def p1_finish(g):
    a = g.a
    L1 = L_RING
    a("s_lshr_b32 s72, s2, 2\ns_and_b32 s73, s2, 3")
    a("s_mul_i32 s74, s73, 7\ns_min_u32 s75, s73, 1\ns_add_u32 s74, s74, s75")
    a("s_cmp_eq_u32 s73, 0\ns_cselect_b32 s75, 8, 7")
    a(f"s_lshl_b32 s80, {sWV}, 10\ns_add_u32 s80, s80, {L1}\nv_add_u32 v64, s80, v2")
    for n in range(7):
        a(f"ds_write_b128 v64, {ar(PA1+4*n)} offset:{n*4096}")
    a("v_lshrrev_b32 v65, 4, v1\nv_lshlrev_b32 v65, 3, v65\nv_bfe_u32 v66, v1, 2, 2\nv_add_u32 v65, v65, v66\nv_and_b32 v66, 3, v1")
    a(f"v_mul_u32_u24 v67, 800, v65\nv_lshl_add_u32 v67, v66, 3, v67\ns_lshl_b32 s80, {sWV}, 5\ns_add_u32 s80, s80, {L1}\nv_add_u32 v67, s80, v67")
    a("s_waitcnt lgkmcnt(0)\ns_barrier")
    for n in range(6):
        for rd in range(2):
            a(f"ds_read_b64_tr_b16 v[{72+4*n+2*rd}:{73+4*n+2*rd}], v67 offset:{128*n + rd*3200}")
    for n in range(6):
        a(f"s_add_u32 s80, {sWV}, {4*n}\ns_mul_i32 s81, s80, 43\ns_lshr_b32 s81, s81, 7\ns_mul_i32 s82, s81, 3\ns_sub_u32 s82, s80, s82")
        a("s_mul_i32 s83, s81, 6\ns_mul_i32 s85, s75, 6\ns_cmp_lt_u32 s83, s85\ns_cselect_b32 s85, 0, 0x70000000")
        a("s_add_u32 s81, s81, s74\ns_lshl_b32 s81, s81, 6\ns_add_u32 s81, s81, s72\ns_mul_i32 s81, s81, 3\ns_add_u32 s81, s81, s82")
        a(f"s_lshl_b32 s81, s81, 10\ns_add_u32 s81, s81, {WS_W1P}\ns_or_b32 s81, s81, s85")
        a(f"buffer_store_dwordx4 {vr(72+4*n)}, v2, {SRD_WS}, s81 offen sc1")


def early_w1(g, i0, i1, check=False):
    a = g.a
    skip = g.lab("e1")
    a(f"s_cmp_eq_u32 {sM1}, 0\ns_cbranch_scc1 {skip}")
    with a.cond("m1"):
        if check:
            l0_only(g, "l0c", lambda: (p1_check(g), w1_loads(g, 0, i0)))
        w1_loads(g, i0, i1)
    a.label(skip, reset=False)


def l0_only(g, name, fn):
    a = g.a
    skip = g.lab("l0s")
    a(f"s_cmp_eq_u32 {sL}, 0\ns_cbranch_scc0 {skip}")
    with a.cond(name):
        fn()
    a.label(skip, reset=False)


def p1_check(g):
    a = g.a
    a(f"s_cmp_ge_u32 {sJ1}, 8\ns_cselect_b32 s72, 1, 0\ns_cmp_ge_u32 {sJ1}, 15\ns_addc_u32 s72, s72, 0")
    a(f"s_cmp_ge_u32 {sJ1}, 22\ns_addc_u32 s72, s72, 0")
    a(f"s_lshl_b32 s73, {sWV}, 4\nv_add_u32 v9, s73, v1\nv_lshl_add_u32 v9, v9, 2, s72")
    a(f"v_lshlrev_b32 v9, 7, v9\nv_add_u32 v9, {WS_FLAG + PH_P*2*256*128}, v9")
    g.poll("v9", "0xffff")


def w1_loads(g, i0, i1):
    a = g.a
    a(f"s_lshl_b32 s72, {sJ1}, 6\ns_lshl_b32 s73, {sWV}, 4\ns_add_u32 s72, s72, s73\ns_mul_i32 s72, s72, 3072\ns_add_u32 s72, s72, {WS_W1P}")
    for i in range(i0, i1):
        st, ft = divmod(i, 3)
        a(f"s_add_u32 s73, s72, {st*3072}")
        a(f"buffer_load_dwordx4 {ar(4*i)}, v2, {SRD_WS}, s73 offen offset:{ft*1024} sc1")


def m1_only(g, fn):
    a = g.a
    skip = g.lab("m1s")
    a(f"s_cmp_eq_u32 {sM1}, 0\ns_cbranch_scc1 {skip}")
    with a.cond("m1"):
        fn()
    a.label(skip, reset=False)


def w2_setup(g):
    a = g.a
    a("v_lshrrev_b32 v3, 3, v1\nv_lshlrev_b32 v3, 12, v3\nv_bfe_u32 v4, v1, 1, 2\nv_bfe_u32 v5, v1, 4, 1\nv_and_b32 v6, 1, v1")
    for e in range(2):
        a(f"v_or_b32 v7, {2*e}, v5\nv_xor_b32 v7, v4, v7\nv_lshl_add_u32 v7, v7, 1, v6\nv_lshl_add_u32 v{V_W2D+e}, v7, 4, v3")
    a("v_lshrrev_b32 v3, 4, v1\nv_lshlrev_b32 v4, 3, v3\nv_bfe_u32 v5, v1, 2, 2\nv_add_u32 v4, v4, v5\nv_lshlrev_b32 v4, 7, v4")
    a("v_and_b32 v5, 3, v1\nv_lshl_add_u32 v4, v5, 3, v4\nv_and_b32 v3, 1, v3\nv_lshlrev_b32 v3, 1, v3\nv_bfe_u32 v5, v1, 3, 1\nv_or_b32 v3, v3, v5")
    for k in range(4):
        a(f"v_xor_b32 v5, {k}, v3\nv_lshl_add_u32 v{V_W2R+k}, v5, 5, v4")
    a(f"s_mul_i32 s89, {sWV}, {11*32*4096}\ns_lshl_b32 s88, {sR}, 7\ns_add_u32 s89, s89, s88")


def w2_lds(st):
    if st < 5:
        return ("s86", st * 4096)
    if st < 9:
        return ("s87", (st - 5) * 4096)
    return ("s86", (st - 9) * 4096)


def w2_bases(g):
    g.a(f"s_mul_i32 s86, {sWV}, 20480\ns_add_u32 s86, s86, {L_STG2}\ns_lshl_b32 s87, {sWV}, 14\ns_add_u32 s87, s87, {L_X}")


def w2_dma_text(st, m):
    base, off = w2_lds(st)
    return (f"s_add_u32 m0, {base}, {off + m*1024}\ns_add_u32 s88, s89, {(st*32 + 8*m)*4096}",
            f"buffer_load_dwordx4 v{V_W2D + (m & 1)}, {SRD_W2P}, s88 offen lds")


def w2_dma(g, st, m, uncond=False):
    pre, ld = w2_dma_text(st, m)
    g.a(pre)
    (g.a.uncond if uncond else g.a)(ld, tag=f"D2_{0 if st < 5 else 5 if st < 9 else 9}")
    return pre + "\n" + ld


def w2_tr(g, s0, s1):
    a = g.a
    base, _ = w2_lds(s0)
    for k in range(4):
        a(f"v_add_u32 v{32+k}, {base}, v{V_W2R+k}")
    for st in range(s0, s1):
        _, off = w2_lds(st)
        for k in range(4):
            for rd in range(2):
                b = (st*4 + k) * 4 + 2*rd
                a(f"ds_read_b64_tr_b16 a[{b}:{b+1}], v{32+k} offset:{off + rd*512}")


def u_producers(g, dst, lane0):
    a = g.a
    a(f"s_mul_i32 s72, {sWV}, 352\ns_mul_hi_u32 s72, s72, {(1 << 32)//48 + 1}\ns_sub_u32 s72, s72, {lane0}\nv_add_u32 v8, s72, v1\nv_max_i32 v8, 0, v8\nv_min_u32 v8, 28, v8")
    a("v_cmp_le_u32 vcc, 8, v8\nv_cndmask_b32 v6, 0, 1, vcc\nv_cmp_le_u32 vcc, 15, v8\nv_addc_co_u32 v6, vcc, 0, v6, vcc")
    a("v_cmp_le_u32 vcc, 22, v8\nv_addc_co_u32 v6, vcc, 0, v6, vcc")
    a("v_mul_u32_u24 v7, 7, v6\nv_min_u32 v9, 1, v6\nv_add_u32 v7, v7, v9\nv_sub_u32 v7, v8, v7")
    a(f"s_and_b32 s72, {sCQ}, 3\ns_lshr_b32 s73, {sCQ}, 2\nv_lshl_add_u32 v7, v7, 2, s72\nv_lshlrev_b32 v7, 3, v7")
    a(f"v_lshl_add_u32 {dst}, v6, 1, v7\nv_add_u32 {dst}, s73, {dst}")


def sentinel(g, loads, srd):
    a = g.a
    top, ok = g.lab("sn"), g.lab("sno")
    a(f"s_mov_b32 {sCNT}, 0")
    a.label(top, reset=False)
    with a.cond(top):
        for k, (addr, soff) in enumerate(loads):
            a(f"buffer_load_dword v{4+k}, {addr}, {srd}, {soff} offen sc1")
        a("s_waitcnt vmcnt(0)")
        a("v_cmp_eq_u32 vcc, -1, v4")
        for k in range(1, len(loads)):
            a(f"v_cmp_eq_u32 s[72:73], -1, v{4+k}\ns_or_b64 vcc, vcc, s[72:73]")
        a(f"s_cbranch_vccz {ok}")
        a(f"s_add_u32 {sCNT}, {sCNT}, 1\ns_cmp_lt_u32 {sCNT}, {POLL_LIMIT}\ns_cbranch_scc1 {top}")
    a.label(ok, reset=False)


def redo_end(g, redo):
    a = g.a
    done = g.lab("rd")
    a(f"s_cmp_eq_u64 {sACC}, 0\ns_cbranch_scc1 {done}")
    if g.diag:
        g.srd(32, P_DBG, 256)
        a(f"v_mov_b32 v4, 1\nv_mov_b32 v5, 4\ns_mov_b64 exec, 1\nbuffer_atomic_add v4, v5, {SRD_T}, 0 offen\ns_mov_b64 exec, -1")
    a(f"s_add_u32 {sREDO}, {sREDO}, 1\ns_cmp_lt_u32 {sREDO}, 64\ns_cbranch_scc1 {redo}")
    a.label(done, reset=False)


def o_flags(g):
    a = g.a
    a(f"v_mov_b32 v8, {sR}\nv_and_b32 v9, 3, v8\nv_lshlrev_b32 v9, 3, v9\nv_add_u32 v9, v1, v9\nv_lshlrev_b32 v9, 3, v9")
    a("v_lshrrev_b32 v7, 2, v8\nv_add_u32 v9, v9, v7")
    g.vflag("v9", PH_O)


def oproj(g):
    a = g.a
    a.c("======== output projection, residual, double LayerNorm")
    OFR, WPRE, WFR, ACC = 64, 128, 14, 46
    a("v_lshrrev_b32 v3, 5, v1\nv_lshlrev_b32 v3, 4, v3\nv_bfe_u32 v4, v1, 4, 1\nv_lshl_add_u32 v3, v4, 2, v3")
    a("v_bfe_u32 v5, v1, 2, 2\nv_add_u32 v3, v3, v5\nv_bfe_u32 v5, v3, 1, 2\nv_and_b32 v6, 3, v1\nv_lshlrev_b32 v6, 3, v6")
    a("v_lshl_add_u32 v6, v3, 7, v6")
    for nt in range(4):
        a(f"v_xor_b32 v7, {nt}, v5\nv_lshl_add_u32 v{10+nt}, v7, 5, v6")

    def wreg(ks, nt):
        return WPRE + ks * 16 + nt * 4 if ks < 8 else WFR + (ks & 1) * 16 + nt * 4

    def wread(ks, nt):
        b = wreg(ks, nt)
        for rd in range(2):
            a(f"ds_read_b64_tr_b16 v[{b+2*rd}:{b+2*rd+1}], v{10+nt} offset:{L_X + ks*4096 + rd*1024}")
    for ks in range(8):
        for nt in range(4):
            wread(ks, nt)
    g.poll("v9", "0xff")
    a("s_waitcnt vmcnt(0) lgkmcnt(0)")
    lp = g.lab("pp")
    a("s_barrier")
    a(f"s_or_b32 s72, {sL}, {sWV}\ns_cmp_eq_u32 s72, 0\ns_cbranch_scc0 {lp}")
    with a.cond(lp):
        a(f"s_lshl_b32 s70, s2, 7\ns_add_u32 s70, s70, {WS_FLAG + PH_P*2*256*128}")
        a(f"v_mov_b32 v4, {sN}\nv_mov_b32 v5, {sNN}\nv_mov_b32 v6, s70\ns_mov_b64 exec, 1")
        a(f"buffer_store_dwordx2 v[4:5], v6, {SRD_WS}, 0 offen sc1")
        a("s_mov_b64 exec, -1")
    a.label(lp, reset=False)
    g.stamp(10)
    a(f"s_lshl_b32 s72, {sR}, 2\ns_add_u32 s72, s72, {sWV}\ns_lshl_b32 s72, s72, 14\ns_lshl_b32 s73, {sL}, 21")
    a(f"s_add_u32 s72, s72, s73\ns_add_u32 s74, s72, {WS_OF}")

    def oload(ks):
        a(f"s_add_u32 s73, s74, {(ks >> 2)*4096}")
        a(f"buffer_load_dwordx4 {vr(OFR+4*ks)}, v2, {SRD_WS}, s73 offen offset:{(ks & 3)*1024} sc1")
    OD = 11
    for ks in range(OD):
        oload(ks)
    g.stamp(25)

    def main(w1):
        if w1:
            a(f"s_lshl_b32 s76, {sJ1}, 6\ns_lshl_b32 s77, {sWV}, 4\ns_add_u32 s76, s76, s77\ns_mul_i32 s76, s76, 3072\ns_add_u32 s76, s76, {WS_W1P}")
        for ks in range(16):
            if ks + OD < 16:
                oload(ks + OD)
            for nt in range(4):
                c = "0" if ks == 0 else vr(ACC + 4*nt)
                a(f"v_mfma_f32_16x16x32_bf16 {vr(ACC+4*nt)}, {vr(wreg(ks, nt))}, {vr(OFR+4*ks)}, {c}")
                if 6 <= ks <= 13:
                    wread(ks + 2, nt)
                if w1 and nt == 1 and ks >= 4:
                    for i in ((ks - 4) * 2, (ks - 4) * 2 + 1) if ks < 12 else ():
                        st, ft = divmod(i, 3)
                        a(f"s_add_u32 s77, s76, {st*3072}")
                        a(f"buffer_load_dwordx4 {ar(4*i)}, v2, {SRD_WS}, s77 offen offset:{ft*1024} sc1")
            if ks == 0:
                g.stamp(28)
            if ks == 7:
                g.stamp(29)
    la, lb = g.lab("oa"), g.lab("ob")
    a(f"s_and_b32 s79, {sM1}, {sL}\ns_cmp_eq_u32 s79, 0\ns_cbranch_scc1 {la}")
    a.fork()
    main(True)
    a(f"s_branch {lb}")
    a.label(la, reset=False)
    a.alt()
    main(False)
    a.endfork()
    a.label(lb, reset=False)
    g.stamp(11)
    a(f"v_and_b32 v3, 15, v1\ns_lshl_b32 s72, {sWV}, 4\nv_add_u32 v14, s72, v3\nv_lshrrev_b32 v4, 4, v1")
    a(f"v_mul_u32_u24 v5, 144, v14\nv_lshl_add_u32 v5, v4, 3, v5\nv_add_u32 v15, {L_R}, v5")
    for nt in range(4):
        a(f"ds_read_b64 v[{176+2*nt}:{177+2*nt}], v15 offset:{32*nt}")
    X1 = 192
    for nt in range(4):
        for k in range(2):
            a(f"v_lshlrev_b32 v{X1+4*nt+2*k}, 16, v{176+2*nt+k}\nv_and_b32 v{X1+4*nt+2*k+1}, 0xffff0000, v{176+2*nt+k}")
    for i in range(16):
        a(f"v_add_f32 v{X1+i}, v{X1+i}, v{ACC+i}")
    for k in range(8):
        a(f"v_cvt_pk_bf16_f32 v{176+k}, v{X1+2*k}, v{X1+2*k+1}")
    for nt in range(4):
        a(f"ds_write_b64 v15, v[{176+2*nt}:{177+2*nt}] offset:{32*nt}")
    a(f"v_add_f32 v16, v{X1}, v{X1+1}\nv_mul_f32 v17, v{X1}, v{X1}\nv_fmac_f32 v17, v{X1+1}, v{X1+1}")
    for i in range(2, 16):
        a(f"v_add_f32 v16, v16, v{X1+i}\nv_fmac_f32 v17, v{X1+i}, v{X1+i}")

    def fold_groups(r0, r1):
        for sw in ("16", "32"):
            a(f"v_mov_b32 v20, v{r0}\nv_mov_b32 v21, v{r1}")
            a(f"v_permlane{sw}_swap_b32 v{r0}, v20\nv_permlane{sw}_swap_b32 v{r1}, v21")
            a(f"v_add_f32 v{r0}, v{r0}, v20\nv_add_f32 v{r1}, v{r1}, v21")
    fold_groups(16, 17)
    a(f"v_mov_b32 v18, {sN}\nv_mov_b32 v19, {sNN}")
    a(f"s_lshl_b32 s72, {sL}, 5\ns_add_u32 s72, s72, {sR}\ns_lshl_b32 s72, s72, 13\ns_add_u32 s72, s72, {WS_ST}")
    a(f"s_lshl_b32 s73, {sCQ}, 10\ns_add_u32 s73, s73, s72\nv_lshlrev_b32 v22, 4, v14")
    a("s_mov_b64 exec, 0xffff")
    g.dual(lambda m: a(f"buffer_store_dwordx4 v[16:19], v22, {SRD_WS}, s73 offen {m}"))
    a("s_mov_b64 exec, -1")
    g.stamp(26)
    if INB:
        a(f"s_lshl_b32 s73, {sWV}, 3\nv_add_u32 v34, s73, v1")
        g.wg_of("v35", "v34", sC1)
        u_producers(g, "v36", 8)
        a("v_cmp_le_u32 vcc, 8, v1\nv_cndmask_b32 v35, v35, v36, vcc\nv_and_b32 v35, 255, v35")
        g.vflag("v35", PH_PD)
        a(f"s_lshl_b32 s44, {sM1}, 8\ns_sub_u32 s44, s44, {sM1}\ns_or_b32 s44, s44, 0xff00\ns_mov_b32 s45, 0")
        a(f"s_mov_b64 exec, s[44:45]\nbuffer_load_dwordx2 v[32:33], v35, {SRD_WS}, 0 offen sc1\ns_mov_b64 exec, -1")
    early_w1(g, 16, 28, check=True)
    a("v_lshrrev_b32 v4, 4, v1")
    g.stamp(27)
    a(f"s_lshl_b32 s72, {sL}, 5\ns_add_u32 s72, s72, {sR}\ns_lshl_b32 s72, s72, 13\ns_add_u32 s72, s72, {WS_ST}")
    a("v_lshl_add_u32 v23, v4, 11, v22\ns_mov_b32 s100, 0")
    top, ok = g.lab("stp"), g.lab("sto")
    a.label(top, reset=False)
    a(f"buffer_load_dwordx4 v[24:27], v23, {SRD_WS}, s72 offen sc1")
    a(f"buffer_load_dwordx4 v[28:31], v23, {SRD_WS}, s72 offen offset:1024 sc1")
    a("s_waitcnt vmcnt(0)")
    a(f"v_cmp_ne_u64 vcc, {sNP}, v[26:27]\nv_cmp_ne_u64 s[74:75], {sNP}, v[30:31]\ns_or_b64 vcc, vcc, s[74:75]")
    a(f"s_cbranch_vccz {ok}")
    a(f"s_add_u32 s100, s100, 1\ns_cmp_lt_u32 s100, {POLL_LIMIT}\ns_cbranch_scc1 {top}\ns_branch L_fail")
    a.label(ok, reset=False)
    if INB:
        pd = g.lab("pd")
        a(f"s_mov_b64 exec, s[44:45]\nv_cmp_ne_u64 vcc, {sNP}, v[32:33]\ns_mov_b64 exec, -1\ns_cbranch_vccz {pd}")
        with a.cond(pd):
            a("v_mov_b32 v36, v4\nv_mov_b32 v37, v5")
            g.poll("v35", "s[44:45]")
            a("v_mov_b32 v4, v36\nv_mov_b32 v5, v37")
        a.label(pd, reset=False)
    g.stamp(12)
    a("v_add_f32 v16, v24, v28\nv_add_f32 v17, v25, v29")
    fold_groups(16, 17)
    a(f"v_mul_f32 v16, {f32(1/512)}, v16\nv_mul_f32 v17, {f32(1/512)}, v17\nv_fma_f32 v17, -v16, v16, v17\nv_max_f32 v17, 0, v17")
    a(f"v_add_f32 v18, {f32(1e-5)}, v17\nv_rsq_f32 v18, v18")
    a(f"v_mul_f32 v19, v18, v18\nv_mul_f32 v19, v19, v17\nv_add_f32 v19, {f32(1e-5)}, v19\nv_rsq_f32 v19, v19\nv_mul_f32 v18, v18, v19")
    for i in range(16):
        a(f"v_sub_f32 v{X1+i}, v{X1+i}, v16")
    for i in range(16):
        a(f"v_mul_f32 v{X1+i}, v18, v{X1+i}")
    for k in range(8):
        a(f"v_cvt_pk_bf16_f32 v{176+k}, v{X1+2*k}, v{X1+2*k+1}")
    HT = L_RING
    a(f"v_mul_u32_u24 v5, 160, v14\nv_lshl_add_u32 v5, v4, 3, v5\nv_add_u32 v5, {HT}, v5")
    for nt in range(4):
        a(f"ds_write_b64 v5, v[{176+2*nt}:{177+2*nt}] offset:{32*nt}")
    a("v_lshrrev_b32 v3, 4, v1\nv_lshlrev_b32 v3, 3, v3\nv_bfe_u32 v6, v1, 2, 2\nv_add_u32 v3, v3, v6")
    a(f"s_lshl_b32 s72, {sTB}, 5\nv_add_u32 v3, s72, v3\nv_mul_u32_u24 v3, 160, v3\nv_and_b32 v6, 3, v1\nv_lshl_add_u32 v3, v6, 3, v3")
    a(f"s_lshl_b32 s72, {sP}, 6\ns_add_u32 s72, s72, {HT}\nv_add_u32 v3, s72, v3")
    a("s_waitcnt lgkmcnt(0)\ns_barrier")
    for e in range(2):
        for rd in range(2):
            a(f"ds_read_b64_tr_b16 v[{184+4*e+2*rd}:{185+4*e+2*rd}], v3 offset:{32*e + rd*640}")
    if INB:
        a(f"s_mov_b32 s72, {sHB}")
    else:
        a(f"s_lshl_b32 s72, {sCQ}, 6\ns_lshl_b32 s73, {sR}, 1\ns_add_u32 s72, s72, s73\ns_add_u32 s72, s72, {sTB}\ns_lshl_b32 s72, s72, 2")
        a(f"s_lshl_b32 s73, {sP}, 1\ns_add_u32 s72, s72, s73\ns_lshl_b32 s72, s72, 10\ns_lshl_b32 s73, {sL}, 21\ns_add_u32 s72, s72, s73\ns_add_u32 s72, s72, {WS_H}")
    for e in range(2):
        a(f"buffer_store_dwordx4 {vr(184+4*e)}, v2, {SRD_WS}, s72 offen offset:{e*1024} sc1", tag="Hst")


def mix1(g):
    a = g.a
    a.c("======== token mixing 1: u = gelu(h^T W1 + b1)")
    skip, other = g.lab("m1"), g.lab("m1o")
    w2_setup(g)
    w2_bases(g)
    a(f"s_cmp_eq_u32 {sM1}, 0\ns_cbranch_scc1 {other}")
    w2_text = []

    def w2(i):
        return w2_dma(g, i >> 2, i & 3, uncond=True)
    with a.cond("m1"):
        g.srd(32, P_B1, 2752)
        a(f"s_mul_i32 s72, {sJ1}, 96\nv_and_b32 v3, 1, v1\nv_lshlrev_b32 v3, 3, v3\ns_mul_i32 s73, {sWV}, 3")
        for i in range(3):
            a(f"s_add_u32 s74, s73, {i}\ns_lshr_b32 s74, s74, 1\ns_lshl_b32 s74, s74, 4\ns_add_u32 s74, s74, s72")
            a(f"buffer_load_dwordx2 v[{14+2*i}:{15+2*i}], v3, {SRD_T}, s74 offen")
        if not INB:
            a(f"s_lshl_b32 s73, {sWV}, 3\nv_add_u32 v8, s73, v1")
            g.wg_of("v9", "v8", sC1)
            g.vflag("v9", PH_H)
        c0 = -2 * math.log2(math.e) * math.sqrt(2 / math.pi)
        c1 = c0 * 0.044715
        a(f"v_and_b32 v3, 15, v1\nv_mul_u32_u24 v3, 208, v3\nv_lshrrev_b32 v4, 4, v1\nv_lshl_add_u32 v3, v4, 4, v3")
        a(f"s_mul_i32 s72, {sWV}, 13312\nv_add_u32 v13, s72, v3")
        a("v_lshrrev_b32 v3, 1, v1\nv_mul_u32_u24 v10, 208, v3\nv_and_b32 v4, 1, v1\nv_lshl_add_u32 v10, v4, 4, v10")
        a("v_lshrrev_b32 v5, 5, v1\nv_lshlrev_b32 v11, 10, v5\nv_and_b32 v3, 15, v3\nv_lshl_add_u32 v11, v3, 4, v11")
        if not INB:
            a("v_lshl_add_u32 v11, v4, 3, v11")
        a(f"s_mul_i32 s76, {sWV}, 3\ns_mov_b32 s84, {f32(c1)}\ns_mov_b32 s85, {f32(c0)}")
        for i in range(3):
            a(f"s_add_u32 s72, s76, {i}\ns_lshr_b32 s73, s72, 1\ns_and_b32 s72, s72, 1")
            a(f"s_mul_i32 s74, s72, {32*208}\ns_lshl_b32 s75, s73, 5\ns_add_u32 s74, s74, s75\nv_add_u32 v{20+i}, s74, v10")
        if INB:
            for i in range(3):
                a(f"s_mov_b32 s{80+i}, s{sUO+i}")
        else:
            u_offsets(g, 80)
        HB, NS, ACC, HD = 64, 24, 192, 15
        a(f"s_lshl_b32 s72, {sC1}, 6\ns_lshl_b32 s73, {sWV}, 4\ns_add_u32 s72, s72, s73\ns_lshl_b32 s72, s72, 12")
        a(f"s_lshl_b32 s73, {sL}, 21\ns_add_u32 s72, s72, s73\ns_add_u32 s43, s72, {WS_H}")
        if INB:
            a(f"v_lshlrev_b32 v9, 10, v1\nv_add_u32 v9, 1008, v9\ns_mov_b32 {sREDO}, 0")
            redo = g.lab("m1r")
            a.label(redo, reset=False)
            sentinel(g, [("v9", "s43")], SRD_WS)
            a(f"s_mov_b64 {sACC}, 0")
        else:
            g.poll("v9", "0xff")
        g.stamp(14)
        a("s_mov_b32 s72, s43")
        nload = [0]

        def hload():
            n = nload[0]
            a(f"buffer_load_dwordx4 {vr(HB + 4*(n % NS))}, v2, {SRD_WS}, s72 offen offset:{(n & 3)*1024} sc1")
            if n & 3 == 3:
                a("s_add_u32 s72, s72, 4096")
            nload[0] += 1
        for _ in range(HD):
            hload()
        for st in range(16):
            for dt in range(4):
                hb = HB + 4 * ((st*4 + dt) % NS)
                for ft in range(3):
                    acc = ACC + (ft*4 + dt) * 4
                    c = "0" if st == 0 else ar(acc)
                    a(f"v_mfma_f32_16x16x32_bf16 {ar(acc)}, {ar((st*3+ft)*4)}, {vr(hb)}, {c}")
                    if INB and ft == 0:
                        a(f"v_cmp_eq_u32 vcc, -1, v{hb}\ns_or_b64 {sACC}, {sACC}, vcc")
                if nload[0] < 64:
                    hload()
        if INB:
            redo_end(g, redo)
        l0_only(g, "l0t", lambda: (warmup(g, SRD_W2P, "v60") if "now2wu" not in OPT else None, a(x2_touch_text())))
        g.stamp(15)
        nw2 = 0
        for dt in range(4):
            for ft in range(3):
                a(f"ds_write_b128 v13, {ar(ACC + (ft*4+dt)*4)} offset:{L_X + dt*16*208 + ft*64}")
        a("s_waitcnt lgkmcnt(0)\ns_barrier")
        for i in range(3):
            for k in range(4):
                a(f"ds_read_b128 {vr(64 + 16*i + 4*k)}, v{20+i} offset:{L_X + k*13312}")
        sk3 = g.lab("ep")
        a(f"s_or_b32 s72, s2, {sL}\ns_or_b32 s72, s72, {sWV}\ns_cmp_eq_u32 s72, 0\ns_cbranch_scc0 {sk3}")
        with a.cond(sk3):
            a(f"v_mov_b32 v4, {sN}\nv_mov_b32 v5, {WS_EPOCH}\ns_mov_b64 exec, 1")
            a(f"buffer_store_dword v4, v5, {SRD_WS}, 0 offen sc1")
            a("s_mov_b64 exec, -1")
        a.label(sk3, reset=False)
        for i in range(3):
            B = 64 + 16 * i
            bb = 14 + 2 * i

            def w2x(k=1):
                nonlocal nw2
                for _ in range(k):
                    if nw2 < 18:
                        w2_text.append(w2(nw2)); nw2 += 1
            for e in range(4):
                a(f"v_add_f32 v{B+e}, v{B+e}, v{B+4+e}\nv_add_f32 v{B+8+e}, v{B+8+e}, v{B+12+e}")
            w2x()
            a(f"v_lshlrev_b32 v{B+4}, 16, v{bb}\nv_and_b32 v{B+5}, 0xffff0000, v{bb}\nv_lshlrev_b32 v{B+6}, 16, v{bb+1}\nv_and_b32 v{B+7}, 0xffff0000, v{bb+1}")
            for e in range(4):
                a(f"v_add_f32 v{B+e}, v{B+e}, v{B+8+e}")
            w2x()
            for e in range(4):
                a(f"v_add_f32 v{B+e}, v{B+e}, v{B+4+e}")
            for e in range(4):
                a(f"v_mul_f32 v{B+4+e}, v{B+e}, v{B+e}\nv_mov_b32 v{B+8+e}, s85")
            w2x()
            for e in range(4):
                a(f"v_fmac_f32 v{B+8+e}, s84, v{B+4+e}")
            for e in range(4):
                a(f"v_mul_f32 v{B+8+e}, v{B+8+e}, v{B+e}")
            for e in range(4):
                a(f"v_exp_f32 v{B+8+e}, v{B+8+e}")
            w2x()
            for e in range(4):
                a(f"v_add_f32 v{B+8+e}, 1.0, v{B+8+e}")
            for e in range(4):
                a(f"v_rcp_f32 v{B+8+e}, v{B+8+e}")
            for e in range(4):
                a(f"v_mul_f32 v{B+e}, v{B+e}, v{B+8+e}")
            a(f"v_cvt_pk_bf16_f32 v{B+4}, v{B}, v{B+1}\nv_cvt_pk_bf16_f32 v{B+5}, v{B+2}, v{B+3}")
            if INB:
                a(f"v_mov_b32_dpp v{B+6}, v{B+4} quad_perm:[1,0,3,2] row_mask:0xf bank_mask:0xf")
                a(f"v_mov_b32_dpp v{B+7}, v{B+5} quad_perm:[1,0,3,2] row_mask:0xf bank_mask:0xf")
                a("s_mov_b32 exec_lo, 0x55555555\ns_mov_b32 exec_hi, 0x55555555")
                a(f"buffer_store_dwordx4 v[{B+4}:{B+7}], v11, {SRD_WS}, s{80+i} offen sc1", tag="Ust")
                a("s_mov_b64 exec, -1")
            else:
                a(f"buffer_store_dwordx2 v[{B+4}:{B+5}], v11, {SRD_WS}, s{80+i} offen sc1", tag="Ust")
        while nw2 < 20:
            w2_text.append(w2(nw2)); nw2 += 1
        if INB:
            a("s_barrier")
        else:
            a.wait_tag("Ust")
            g.publish(PH_U)
    a.label(skip, reset=False)
    lt = g.lab("tl")
    g.tails.append((other, skip, [f"s_cmp_eq_u32 {sL}, 0\ns_cbranch_scc0 {lt}\n" + warmup_text(SRD_W2P, "v60") + "\n" + x2_touch_text() + f"\n@{lt}"] + w2_text))
    for i in range(20, 36):
        w2_dma(g, i >> 2, i & 3)
    a.wait_tag("D2_0")
    w2_tr(g, 0, 5)
    a("s_waitcnt lgkmcnt(0)")
    for i in range(36, 44):
        w2_dma(g, i >> 2, i & 3)


def mix2(g):
    a = g.a
    a.c("======== token mixing 2: x += (u W2 + b2)^T")
    g.srd(32, P_B2, 4096)
    a(f"v_lshrrev_b32 v10, 3, v0\ns_lshl_b32 s72, {sR}, 7\nv_lshl_add_u32 v11, v10, 1, s72")
    a(f"buffer_load_ushort v12, v11, {SRD_T}, 0 offen\nbuffer_load_ushort v13, v11, {SRD_T}, 0 offen offset:64")
    a(f"s_mul_i32 s72, {sCQ}, {UC}\ns_lshl_b32 s73, {sL}, 21\ns_add_u32 s72, s72, s73\ns_add_u32 s72, s72, {WS_U}")
    g.srd(24, P_WS, UC, "s72")
    if INB:
        a(f"s_mul_i32 s85, {sWV}, {11*4096}\nv_lshlrev_b32 v9, 8, v1\nv_add_u32 v9, 240, v9")
        a(f"s_add_u32 s43, s85, 16384\ns_add_u32 s48, s85, 32768\ns_mov_b32 {sREDO}, 0")
        a("v_cmp_gt_u32 vcc, 48, v1\nv_mov_b32 v8, 0x7ff00000\nv_cndmask_b32 v8, v8, v9, vcc")
        redo = g.lab("m2r")
        a.label(redo, reset=False)
        sentinel(g, [("v9", "s85"), ("v9", "s43"), ("v8", "s48")], SRD_U)
        a(f"s_mov_b64 {sACC}, 0")
    else:
        u_producers(g, "v9", 0)
        g.vflag("v9", PH_U)
        g.poll("v9", "0xff")
    g.stamp(17)
    UB, ACC, UD = 64, 192, 14
    a(f"s_mul_i32 s85, {sWV}, {11*4096}")

    def uload(i):
        st, dt = i >> 2, i & 3
        a(f"s_add_u32 s72, s85, {st*4096}")
        a(f"buffer_load_dwordx4 {vr(UB + 4*i)}, v2, {SRD_U}, s72 offen offset:{dt*1024} sc1")
    for i in range(UD):
        uload(i)
    a.wait_tag("D2_5")
    w2_tr(g, 5, 9)
    a.wait_tag("D2_9")
    w2_tr(g, 9, 11)
    for st in range(11):
        for dt in range(4):
            for k in range(4):
                acc = ACC + (dt*4 + k) * 4
                c = "0" if st == 0 else ar(acc)
                a(f"v_mfma_f32_16x16x32_bf16 {ar(acc)}, {vr(UB + (st*4+dt)*4)}, {ar((st*4+k)*4)}, {c}")
                if INB and k == 0:
                    a(f"v_cmp_eq_u32 vcc, -1, v{UB + (st*4+dt)*4}\ns_or_b64 {sACC}, {sACC}, vcc")
                if k == 1 and st*4 + dt + UD < 44:
                    uload(st*4 + dt + UD)
    if INB:
        redo_end(g, redo)
    g.stamp(18)
    a("v_and_b32 v3, 15, v1\nv_lshrrev_b32 v4, 4, v1\nv_and_b32 v5, 7, v1")
    a(f"s_lshl_b32 s72, {sWV}, 14")
    for dt in range(4):
        a(f"v_add_u32 v6, {4*dt}, v4\nv_xor_b32 v6, v6, v5\nv_lshlrev_b32 v6, 4, v6\nv_lshl_add_u32 v6, v3, 8, v6\nv_add_u32 v{14+dt}, s72, v6")
    for dt in range(4):
        for k in range(4):
            a(f"ds_write_b128 v{14+dt}, {ar(ACC + (dt*4+k)*4)} offset:{L_X + k*4096}")
    a("s_waitcnt lgkmcnt(0)\ns_barrier")
    a("v_and_b32 v3, 7, v0\nv_and_b32 v4, 7, v10\nv_lshlrev_b32 v5, 1, v3")
    for e in range(2):
        a(f"v_add_u32 v6, {e}, v5\nv_xor_b32 v6, v6, v4\nv_lshlrev_b32 v6, 4, v6\nv_lshl_add_u32 v{18+e}, v10, 8, v6")
    a(f"v_mul_u32_u24 v20, 144, v10\nv_lshl_add_u32 v20, v3, 4, v20\nv_add_u32 v20, {L_R}, v20")
    a(f"v_lshlrev_b32 v21, 10, v10\nv_lshl_add_u32 v21, v3, 4, v21")
    a(f"s_lshl_b32 s72, {sR}, 16\ns_lshl_b32 s73, {sCQ}, 7\ns_add_u32 s72, s72, s73")
    for half in range(2):
        B = 64 + half * 48
        for k in range(4):
            for e in range(2):
                a(f"ds_read_b128 {vr(B + k*8 + e*4)}, v{18+e} offset:{L_X + k*16384 + half*8192}")
        a(f"ds_read_b128 {vr(B+32)}, v20 offset:{half*4608}")
    def epilogue(first):
        ring = []
        if first:
            g.q_addr_w(46)
            g.w_dma_setup("s80", "s81", "s82")
            ring = [(s_, n) for s_ in range(5) for n in range(4)]

        def ringdma(k=1):
            for _ in range(k):
                if ring:
                    s_, n = ring.pop(0)
                    g.w_dma(s_, only=n, sg="s80", sl="s81", st="s82", va="v46")
        for half in range(2):
            B = 64 + half * 48
            a(f"v_lshlrev_b32 v22, 16, v{12+half}")
            for i in range(8):
                a(f"v_add_f32 v{B+i}, v{B+i}, v{B+8+i}\nv_add_f32 v{B+16+i}, v{B+16+i}, v{B+24+i}")
                if i % 2 == 1:
                    ringdma()
            for i in range(8):
                a(f"v_add_f32 v{B+i}, v{B+i}, v{B+16+i}")
            ringdma()
            for i in range(8):
                a(f"v_add_f32 v{B+i}, v{B+i}, v22")
            ringdma()
            for k in range(4):
                a(f"v_lshlrev_b32 v{B+8+2*k}, 16, v{B+32+k}\nv_and_b32 v{B+9+2*k}, 0xffff0000, v{B+32+k}")
            ringdma()
            for i in range(8):
                a(f"v_add_f32 v{B+i}, v{B+i}, v{B+8+i}")
            ringdma()
            for k in range(4):
                a(f"v_cvt_pk_bf16_f32 v{B+36+k}, v{B+2*k}, v{B+2*k+1}")
            if first:
                a(f"ds_write_b128 v20, {vr(B+36)} offset:{half*4608}")
                g.dual(lambda m, B=B: a(f"buffer_store_dwordx4 {vr(B+36)}, v21, {SRD_DST}, s72 offen {m}", tag="Xst"))
            else:
                om = "sc1" if "outsc1" in OPT else "nt" if "outnt" in OPT else "sc0 sc1" if "outsys" in OPT else ""
                a(f"buffer_store_dwordx4 {vr(B+36)}, v21, {SRD_DST}, s72 offen {om}")
            if half == 0:
                a("s_add_u32 s72, s72, 32768")
            if first:
                a(f"v_add_f32 v{B+40}, v{B}, v{B+1}\nv_mul_f32 v{B+41}, v{B}, v{B}\nv_fmac_f32 v{B+41}, v{B+1}, v{B+1}")
                for i in range(2, 8):
                    a(f"v_add_f32 v{B+40}, v{B+40}, v{B+i}\nv_fmac_f32 v{B+41}, v{B+i}, v{B+i}")
                ringdma(2)
        if first:
            ringdma(20)
            a("v_mov_b32 v12, v46")
            g.row_stats_store([104, 152], 1, local=True)
    l0 = g.lab("ep0")
    a(f"s_cmp_eq_u32 {sL}, 0\ns_cbranch_scc1 {l0}")
    a.fork()
    epilogue(False)
    g.stamp(19)
    a("s_waitcnt vmcnt(0)\ns_endpgm")
    a.label(l0, reset=False)
    a.alt()
    epilogue(True)
    a.dropfork()


def drain(g, tag, n, sreg, val):
    a = g.a
    lw = g.lab("dr")
    a(f"s_cmp_eq_u32 {sreg}, {val}\ns_cbranch_scc1 {lw}")
    a.raw("  s_waitcnt vmcnt(0)")
    a.label(lw, reset=False)
    a.raw(f"  s_waitcnt vmcnt({n})")
    a.wait_tag(tag, emit=False)


def o_drain_publish(g):
    a = g.a
    drain(g, "Ost", 6, sL, 0)
    g.publish(PH_O, local=True, also=PH_PD if INB else None)


def rest(g):
    a = g.a
    g.tails = []
    attn_setup(g)
    g.stamp(5)
    attn(g)
    a("s_barrier")
    l0_only(g, "l0p", lambda: p1_finish(g))
    o_drain_publish(g)
    g.stamp(9)
    if g.stop("a"):
        return finish(g)
    o_flags(g)
    oproj(g)
    early_w1(g, 28, 40)
    if not INB:
        drain(g, "Hst", 12, sM1, 1)
        g.publish(PH_H)
    g.stamp(13)
    if g.stop("o"):
        return finish(g)
    m1_only(g, lambda: w1_loads(g, 40, 48))
    mix1(g)
    g.stamp(16)
    if g.stop("m1"):
        return finish(g)
    mix2(g)
    g.stamp(19)
    if g.stop("m2"):
        return finish(g)
    g.srd(4, P_WS, 2 << 20, WS_X2)
    g.srd(20, P_OUT, 2 << 20)
    a(f"s_mov_b32 {sL}, 1")
    a("s_waitcnt lgkmcnt(0)")
    g.q_entry(1)
    g.kv_pass(False)
    g.kv_epilogue_l1()
    a("s_branch L_kvstored")
    finish(g)


def finish(g):
    a = g.a
    a("s_branch L_end")
    a.assume_clean()
    for stub, back, always in g.stubs:
        a.label(stub, reset=False)
        a("s_nop 7")
        for x in always:
            a(x)
        a(f"s_nop 11\ns_branch {back}")
        a.assume_clean()
    for lab, back, texts in g.tails:
        a.label(lab, reset=False)
        for x in texts:
            for line in x.split("\n"):
                if line.startswith("@"):
                    a.label(line[1:], reset=False)
                else:
                    a(line)
        a(f"s_branch {back}")
        a.assume_clean()
```

```python
import os, sys
OPT = set(os.environ.get("KOPT", "").split(","))
sys.path.insert(0, "tools")
from asmfw import Asm

KNAME = "interleave_layers__sliding_block__mixer_token_mlp__prompt_kernel"

WS_EPOCH = 0x0
WS_FLAG = 0x1000
WS_ST = 0x80000
WS_KV = 0x100000
WS_OF = 0x900000
WS_H = 0xD00000
WS_U = 0x1100000
WS_X2 = 0x1500000
WS_W1P = 0x1700000
WS_W2P = 0x1D00000
WS_ST2 = 0x2300000
WS_XC = 0x2380000
WS_DIAG = 0x2400000
WS_SIZE = 0x4000000
UC = 43 * 4096
PH_KV, PH_O, PH_H, PH_U, PH_X, PH_P, PH_PD = range(7)

L_X = 0
L_RING = 65536
L_R = 147456
L_MISC = 156672
L_SP = L_MISC
L_CP = L_MISC + 1024
L_MR = L_MISC + 2560
LDS_SIZE = 163840

SRD_X, SRD_WQ, SRD_WO, SRD_WS = "s[4:7]", "s[8:11]", "s[12:15]", "s[16:19]"
SRD_DST, SRD_U, SRD_W2P, SRD_T = "s[20:23]", "s[24:27]", "s[28:31]", "s[32:35]"
P_X, P_WQ, P_WO, P_W1, P_B1, P_W2, P_B2, P_OUT, P_DBG, P_WS = 36, 38, 40, 44, 46, 48, 50, 52, 54, 56
sR, sCQ, sWV, sL = "s58", "s59", "s60", "s61"
sN, sNN, sNP = "s62", "s63", "s[62:63]"
sC1, sJ1, sM1 = "s64", "s65", "s66"
sP, sTB, sB = "s67", "s68", "s69"
sCNT = "s100"
sFAST = "s0"
SRD_W1 = "s[96:99]"
POLL_LIMIT = 400000

LOG2E = 1.4426950408889634


def f32(x):
    import struct
    return "0x%08x" % struct.unpack("<I", struct.pack("<f", x))[0]


class Gen:
    def __init__(self, stop_after=None, diag=False):
        self.a = Asm()
        self.stop_after = stop_after
        self.diag = diag
        self.uid = 0
        self.stubs = []
        self.nstamp = 0

    def lab(self, base):
        self.uid += 1
        return f"L_{base}_{self.uid}"

    def srd(self, name, ptr, size, off=None):
        a = self.a
        if off is None:
            a(f"s_mov_b32 s{name}, s{ptr}\ns_mov_b32 s{name+1}, s{ptr+1}")
        else:
            a(f"s_add_u32 s{name}, s{ptr}, {off}\ns_addc_u32 s{name+1}, s{ptr+1}, 0")
        a(f"s_mov_b32 s{name+2}, {size}\ns_mov_b32 s{name+3}, 0x20000")

    def stamp(self, idx):
        if not self.diag:
            return
        a = self.a
        skip = self.lab("st")
        a(f"s_memrealtime s[92:93]\ns_waitcnt lgkmcnt(0)")
        a(f"s_cmp_eq_u32 {sWV}, 0\ns_cbranch_scc0 {skip}")
        with a.cond(skip):
            a(f"s_lshl_b32 s94, s2, 8\ns_lshl_b32 s95, {sL}, 7\ns_add_u32 s94, s94, s95\ns_add_u32 s94, s94, {WS_DIAG + idx*4}")
            a("v_mov_b32 v62, s92\nv_mov_b32 v63, s94\ns_mov_b64 exec, 1")
            a(f"buffer_store_dword v62, v63, {SRD_WS}, 0 offen")
            a("s_mov_b64 exec, -1")
        a.label(skip, reset=False)

    def flag_addr(self, dst, phase, wg):
        a = self.a
        a(f"s_lshl_b32 {dst}, {sL}, 8\ns_add_u32 {dst}, {dst}, {wg}\ns_lshl_b32 {dst}, {dst}, 7")
        a(f"s_add_u32 {dst}, {dst}, {WS_FLAG + phase*2*256*128}")

    def dual(self, fn, sel=sFAST):
        a = self.a
        slow, j = self.lab("slow"), self.lab("dj")
        a(f"s_cmp_eq_u32 {sel}, 0\ns_cbranch_scc1 {slow}")
        a.fork()
        fn("")
        a(f"s_branch {j}")
        a.label(slow, reset=False)
        a.alt()
        fn("sc1")
        a.endfork()
        a.label(j, reset=False)

    def publish(self, phase, wg="s2", also=None, local=False):
        a = self.a
        skip = self.lab("pub")
        a("s_barrier")
        a(f"s_cmp_eq_u32 {sWV}, 0\ns_cbranch_scc0 {skip}")
        with a.cond(skip):
            self.flag_addr("s70", phase, wg)
            a(f"v_mov_b32 v4, {sN}\nv_mov_b32 v5, {sNN}\nv_mov_b32 v6, s70\ns_mov_b64 exec, 1")
            if local:
                self.dual(lambda m: a(f"buffer_store_dwordx2 v[4:5], v6, {SRD_WS}, 0 offen {m}"))
            else:
                a(f"buffer_store_dwordx2 v[4:5], v6, {SRD_WS}, 0 offen sc1")
            if also is not None:
                self.flag_addr("s70", also, wg)
                a(f"v_mov_b32 v6, s70\nbuffer_store_dwordx2 v[4:5], v6, {SRD_WS}, 0 offen sc1")
            a("s_mov_b64 exec, -1")
        a.label(skip, reset=False)

    def flag_store(self, phase):
        a = self.a
        skip = self.lab("fs")
        a(f"s_cmp_eq_u32 {sWV}, 0\ns_cbranch_scc0 {skip}")
        with a.cond(skip):
            self.flag_addr("s78", phase, "s2")
            a(f"v_mov_b32 v4, {sN}\nv_mov_b32 v5, {sNN}\nv_mov_b32 v6, s78\ns_mov_b64 exec, 1")
            a(f"buffer_store_dwordx2 v[4:5], v6, {SRD_WS}, 0 offen sc1")
            a("s_mov_b64 exec, -1")
        a.label(skip, reset=False)

    def poll(self, vaddr, mask):
        a = self.a
        top, ok = self.lab("poll"), self.lab("pok")
        a(f"s_mov_b64 exec, {mask}\ns_mov_b32 {sCNT}, 0")
        a(f"s_cbranch_execz {ok}")
        a.label(top, reset=False)
        with a.cond(top):
            a(f"buffer_load_dwordx2 v[4:5], {vaddr}, {SRD_WS}, 0 offen sc1")
            a("s_waitcnt vmcnt(0)")
            a(f"v_cmp_ne_u64 vcc, {sNP}, v[4:5]")
            a(f"s_cbranch_vccz {ok}")
            for o in OPT:
                if o.startswith("sleep"):
                    a(f"s_sleep {o[5:]}")
            a(f"s_add_u32 {sCNT}, {sCNT}, 1\ns_cmp_lt_u32 {sCNT}, {POLL_LIMIT}\ns_cbranch_scc1 {top}")
            a("s_branch L_fail")
        a.label(ok, reset=False)
        a("s_mov_b64 exec, -1")

    def wg_of(self, dst, r, cq):
        a = self.a
        a(f"v_and_b32 {dst}, 3, {r}\nv_lshlrev_b32 {dst}, 3, {dst}\nv_add_u32 {dst}, {cq}, {dst}\nv_lshlrev_b32 {dst}, 3, {dst}")
        a(f"v_lshrrev_b32 v7, 2, {r}\nv_add_u32 {dst}, {dst}, v7")

    def vflag(self, dst, phase):
        a = self.a
        a(f"s_lshl_b32 s70, {sL}, 15\ns_add_u32 s70, s70, {WS_FLAG + phase*2*256*128}")
        a(f"v_lshlrev_b32 {dst}, 7, {dst}\nv_add_u32 {dst}, s70, {dst}")

    def row_stats_store(self, sums, layer, local=False):
        a = self.a
        for ctl in ("quad_perm:[1,0,3,2]", "quad_perm:[2,3,0,1]", "row_half_mirror"):
            for r0 in sums:
                for k in range(2):
                    a(f"v_add_f32_dpp v{r0+k}, v{r0+k}, v{r0+k} {ctl} row_mask:0xf bank_mask:0xf")
        for r0 in sums:
            a(f"v_mov_b32 v{r0+2}, {sN}\nv_mov_b32 v{r0+3}, {sNN}")
        if isinstance(layer, int):
            a(f"s_add_u32 s72, {sR}, {layer*32}")
        else:
            a(f"s_lshl_b32 s72, {layer}, 5\ns_add_u32 s72, s72, {sR}")
        a(f"s_lshl_b32 s72, s72, 3\ns_add_u32 s72, s72, {sCQ}\ns_lshl_b32 s72, s72, 10\ns_add_u32 s72, s72, {WS_ST2}")
        a("v_lshrrev_b32 v3, 3, v0\nv_lshlrev_b32 v3, 4, v3\nv_and_b32 v4, 7, v0\nv_cmp_eq_u32 vcc, 0, v4\ns_mov_b64 exec, vcc")
        def st(m):
            for i, r0 in enumerate(sums):
                a(f"buffer_store_dwordx4 v[{r0}:{r0+3}], v3, {SRD_WS}, s72 offen offset:{i*512} {m}")
        if local:
            self.dual(st)
        else:
            st("sc1")
        a("s_mov_b64 exec, -1")

    def stop(self, name):
        if self.stop_after == name:
            self.a("s_waitcnt vmcnt(0) lgkmcnt(0)\ns_branch L_end")
            self.a.assume_clean()
            return True
        return False

    def prologue(self):
        a = self.a
        a("s_cmp_ge_u32 s2, 256\ns_cbranch_scc1 L_end")
        a("s_load_dwordx16 s[36:51], s[0:1], 0\ns_load_dwordx4 s[52:55], s[0:1], 64\ns_load_dwordx2 s[56:57], s[0:1], 80")
        a("v_and_b32 v1, 63, v0\nv_lshlrev_b32 v2, 4, v1\nv_lshrrev_b32 v3, 6, v0")
        a(f"v_readfirstlane_b32 {sWV}, v3")
        a(f"s_and_b32 s70, s2, 7\ns_lshr_b32 s71, s2, 3")
        a(f"s_lshr_b32 s72, s71, 3\ns_lshl_b32 {sR}, s70, 2\ns_add_u32 {sR}, {sR}, s72\ns_and_b32 {sCQ}, s71, 7")
        a(f"s_and_b32 s72, s70, 1\ns_lshl_b32 s72, s72, 2\ns_and_b32 s73, s71, 3\ns_add_u32 {sC1}, s72, s73")
        a("s_lshr_b32 s72, s70, 1\ns_lshr_b32 s73, s71, 2")
        a("s_mul_i32 s74, s72, 7\ns_min_u32 s75, s72, 1\ns_add_u32 s74, s74, s75")
        a(f"s_add_u32 {sJ1}, s74, s73")
        a("s_cmp_eq_u32 s72, 0\ns_cselect_b32 s75, 8, 7")
        a(f"s_cmp_lt_u32 s73, s75\ns_cselect_b32 {sM1}, 1, 0")
        a(f"s_and_b32 {sP}, {sWV}, 1\ns_lshr_b32 {sTB}, {sWV}, 1\ns_xor_b32 {sB}, {sP}, {sTB}")
        a(f"s_mov_b32 {sL}, 0")
        a("s_waitcnt lgkmcnt(0)")
        self.srd(4, P_X, 2 << 20)
        self.srd(8, P_WQ, 512 * 1536 * 2)
        self.srd(12, P_WO, 512 * 512 * 2)
        self.srd(16, P_WS, WS_SIZE)
        self.srd(28, P_W2, 1376 * 4096)
        self.srd(96, P_W1, 2048 * 2752)
        self.srd(20, P_WS, 2 << 20, WS_X2)
        a(f"v_mov_b32 v3, {WS_EPOCH}")
        a(f"buffer_load_dword v250, v3, {SRD_WS}, 0 offen sc1")
        a("v_lshrrev_b32 v3, 3, v0\nv_and_b32 v4, 7, v0")
        a(f"s_lshl_b32 s70, {sR}, 16\ns_lshl_b32 s71, {sCQ}, 7\ns_add_u32 s70, s70, s71")
        a("v_lshlrev_b32 v5, 10, v3\nv_lshl_add_u32 v5, v4, 4, v5")
        a(f"buffer_load_dwordx4 v[240:243], v5, {SRD_X}, s70 offen")
        a("s_add_u32 s70, s70, 32768")
        a(f"buffer_load_dwordx4 v[244:247], v5, {SRD_X}, s70 offen")

    def prologue_tail(self):
        a = self.a
        a(f"v_lshlrev_b32 v3, 21, v1\ns_mov_b64 exec, 0x3ffff\nbuffer_load_dword v251, v3, {SRD_WS}, 0 offen\ns_mov_b64 exec, -1")
        if "tlb" in OPT:
            a(f"s_mov_b64 exec, 7\nbuffer_load_dword v253, v3, {SRD_W1}, 0 offen\nbuffer_load_dword v254, v3, {SRD_W2P}, 0 offen\ns_mov_b64 exec, 1")
            self.srd(32, P_OUT, 2 << 20)
            a(f"buffer_load_dword v255, v3, {SRD_T}, 0 offen")
            self.srd(32, P_B1, 2752)
            a(f"buffer_load_dword v249, v3, {SRD_T}, 0 offen")
            self.srd(32, P_B2, 4096)
            a(f"buffer_load_dword v248, v3, {SRD_T}, 0 offen\ns_mov_b64 exec, -1")
        a(f"s_lshl_b32 s72, s2, 2\ns_add_u32 s72, s72, {sWV}\ns_lshl_b32 s72, s72, 9\nv_lshlrev_b32 v3, 7, v1")
        a(f"s_mov_b64 exec, 0xf\nbuffer_load_dword v252, v3, {SRD_WO}, s72 offen\ns_mov_b64 exec, -1")
        a("v_lshrrev_b32 v3, 3, v0\nv_and_b32 v4, 7, v0")
        a("v_mul_u32_u24 v6, 144, v3\nv_lshl_add_u32 v6, v4, 4, v6")
        a(f"v_add_u32 v6, {L_R}, v6")
        a(f"v_readfirstlane_b32 {sN}, v250")
        a(f"s_add_u32 {sN}, {sN}, 1\ns_not_b32 {sNN}, {sN}")
        a("ds_write_b128 v6, v[240:243]\nds_write_b128 v6, v[244:247] offset:4608")
        for h, (src, dst) in enumerate(((240, 232), (244, 236))):
            a(f"v_mov_b32 v{dst}, 0\nv_mov_b32 v{dst+1}, 0")
            for k in range(4):
                a(f"v_lshlrev_b32 v8, 16, v{src+k}\nv_and_b32 v9, 0xffff0000, v{src+k}")
                a(f"v_add_f32 v{dst}, v{dst}, v8\nv_fmac_f32 v{dst+1}, v8, v8\nv_add_f32 v{dst}, v{dst}, v9\nv_fmac_f32 v{dst+1}, v9, v9")
        self.row_stats_store([232, 236], 0)
        a(f"s_getreg_b32 s72, hwreg(HW_REG_XCC_ID)\ns_and_b32 s1, s72, 15\ns_mov_b32 {sFAST}, 0")
        a(f"s_lshl_b32 s72, {sR}, 3\ns_add_u32 s72, s72, {sCQ}\ns_lshl_b32 s72, s72, 4\ns_add_u32 s72, s72, {WS_XC}")
        a(f"v_mov_b32 v232, s1\nv_mov_b32 v233, 0\nv_mov_b32 v234, {sN}\nv_mov_b32 v235, {sNN}\nv_mov_b32 v3, s72")
        sk = self.lab("xc")
        a(f"s_cmp_eq_u32 {sWV}, 0\ns_cbranch_scc0 {sk}")
        with a.cond(sk):
            a(f"s_mov_b64 exec, 1\nbuffer_store_dwordx4 v[232:235], v3, {SRD_WS}, 0 offen sc1\ns_mov_b64 exec, -1")
        a.label(sk, reset=False)

    def w_dma(self, s, only=None, sg="s70", sl="s71", st="s72", va="v12"):
        a = self.a
        slot = L_RING + (s % 5) * 16384
        for n in range(4):
            if only is not None and n != only:
                continue
            if s < 8:
                part = n >> 1
                krow = 64 * s + (n & 1) * 32
                col = 1024 * (1 + part)
                lds = slot + part * 8192 + (n & 1) * 4096
            else:
                krow = 128 * (s - 8) + 32 * n
                col = 0
                lds = slot + n * 4096
            a(f"s_add_u32 m0, {sl}, {lds}\ns_add_u32 {st}, {sg}, {krow*3072 + col}")
            a(f"buffer_load_dwordx4 {va}, {SRD_WQ}, {st} offen lds", tag=f"W{s}")

    def w_dma_setup(self, sg="s70", sl="s71", st="s72"):
        a = self.a
        a(f"s_mul_i32 {sg}, {sWV}, {8*3072}\ns_lshl_b32 {st}, {sCQ}, 7\ns_add_u32 {sg}, {sg}, {st}\ns_lshl_b32 {sl}, {sWV}, 10")

    def q_addr_w(self, dst=12):
        a = self.a
        a(f"v_lshrrev_b32 v3, 3, v1\nv_mul_u32_u24 v{dst}, 3072, v3\nv_bfe_u32 v4, v1, 4, 1\nv_lshlrev_b32 v4, 2, v4")
        a(f"v_and_b32 v5, 7, v1\nv_xor_b32 v5, v5, v4\nv_lshl_add_u32 v{dst}, v5, 4, v{dst}")

    def q_addr_x(self):
        a = self.a
        a("v_lshrrev_b32 v3, 3, v1")
        for e in range(2):
            a(f"s_lshl_b32 s72, {sWV}, 4\ns_add_u32 s72, s72, {8*e}\nv_add_u32 v6, s72, v3")
            a(f"v_bfe_u32 v7, v6, 1, 3\nv_and_b32 v5, 7, v1\nv_xor_b32 v5, v5, v7\nv_lshlrev_b32 v6, 10, v6\nv_lshl_add_u32 v{10+e}, v5, 4, v6")

    def q_addr(self):
        self.q_addr_w()
        self.q_addr_x()
        self.w_dma_setup()

    def q_addr2(self):
        a = self.a
        a(f"v_and_b32 v3, 31, v1\ns_lshl_b32 s72, {sTB}, 5\nv_add_u32 v3, s72, v3\nv_bfe_u32 v4, v3, 1, 3\nv_lshrrev_b32 v5, 5, v1")
        for k in range(4):
            a(f"s_xor_b32 s72, {sB}, {k}\ns_lshl_b32 s72, s72, 1\nv_add_u32 v6, s72, v5\nv_xor_b32 v6, v6, v4")
            a(f"v_lshlrev_b32 v6, 4, v6\nv_lshl_add_u32 v{13+k}, v3, 7, v6")
        a("v_and_b32 v3, 15, v1\nv_lshrrev_b32 v4, 2, v3\nv_lshrrev_b32 v5, 5, v1\nv_lshl_add_u32 v4, v5, 3, v4")
        a(f"v_bfe_u32 v5, v1, 4, 1\nv_lshlrev_b32 v5, 1, v5\nv_bfe_u32 v6, v1, 1, 1\nv_add_u32 v5, v5, v6")
        a(f"s_lshl_b32 s72, {sP}, 2\nv_add_u32 v5, s72, v5\nv_bfe_u32 v6, v1, 3, 1\nv_lshlrev_b32 v6, 2, v6\nv_xor_b32 v5, v5, v6")
        a("v_lshlrev_b32 v5, 4, v5\nv_lshl_add_u32 v5, v4, 7, v5\nv_and_b32 v6, 1, v1\nv_lshl_add_u32 v5, v6, 3, v5")
        for e in range(2):
            a(f"s_xor_b32 s72, {sB}, {e}\ns_lshl_b32 s72, s72, 11\ns_add_u32 s72, s72, {L_RING}")
            a(f"v_add_u32 v{17+e}, s72, v5\nv_add_u32 v{19+e}, 49152, v{17+e}")
        a("v_mov_b32 v21, 0\nv_mov_b32 v24, 0\nv_mov_b32 v25, 0")
        a("s_mov_b32 s74, 0x3f803f80")
        a(f"s_lshl_b32 s72, {sL}, 5\ns_add_u32 s72, s72, {sR}\ns_lshl_b32 s75, s72, 13\ns_add_u32 s75, s75, {WS_ST2}")
        a(f"v_and_b32 v3, 31, v1\ns_lshl_b32 s72, {sTB}, 5\nv_add_u32 v3, s72, v3\nv_lshlrev_b32 v3, 4, v3\nv_lshrrev_b32 v4, 5, v1\nv_lshl_add_u32 v61, v4, 12, v3")

    def x_dma(self, kc):
        a = self.a
        for e in range(2):
            a(f"s_add_u32 m0, s77, {L_X + kc*8192 + e*1024}\ns_add_u32 s72, s76, {kc*128}")
            a(f"buffer_load_dwordx4 v{10+e}, {SRD_X}, s72 offen sc1 lds", tag=f"X{kc}")

    def q_entry(self, layer):
        a = self.a
        a.c(f"======== QKV phase entry, layer {layer}")
        if layer == 0:
            self.q_addr()
        else:
            self.q_addr_x()
        a(f"s_lshl_b32 s76, {sR}, 16\ns_lshl_b32 s77, {sWV}, 11")
        if layer == 0:
            for s_ in range(5):
                self.w_dma(s_)
                self.x_dma(s_)
            for kc in range(5, 8):
                self.x_dma(kc)
            self.stamp(0)
            self.prologue_tail()
            self.q_addr2()
            self.stamp(1)
        else:
            self.q_addr2()
            a(f"v_mov_b32 v8, {sR}")
            a(f"v_and_b32 v9, 3, v8\nv_lshlrev_b32 v9, 3, v9\nv_add_u32 v9, v1, v9\nv_lshlrev_b32 v9, 3, v9")
            a(f"v_lshrrev_b32 v7, 2, v8\nv_add_u32 v9, v9, v7")
            a(f"v_lshlrev_b32 v9, 7, v9\nv_add_u32 v9, {WS_FLAG + PH_X*2*256*128}, v9")
            self.stamp(0)
            a.wait_tag("Xst")
            a(f"s_mov_b32 {sL}, 0")
            self.publish(PH_X, local=True)
            a(f"s_mov_b32 {sL}, 1")
            self.stat_loads()
            a("v_mov_b32 v30, v9")
            self.ln_init()
            self.poll("v30", "0xff")
            self.stamp(1)
            for kc in range(8):
                self.x_dma(kc)

    XF, WF, AK, AV, AQ = 64, 32, 192, 208, 224

    def row_stats(self):
        a = self.a
        top, ok = self.lab("s2p"), self.lab("s2o")
        a(f"s_mov_b32 {sCNT}, 0")
        a.label(top, reset=False)
        a(f"v_cmp_ne_u64 vcc, {sNP}, v[242:243]")
        for k in range(1, 4):
            a(f"v_cmp_ne_u64 s[72:73], {sNP}, v[{242+4*k}:{243+4*k}]\ns_or_b64 vcc, vcc, s[72:73]")
        a(f"s_cbranch_vccz {ok}")
        with a.cond(top):
            self.stat_loads()
            a("s_waitcnt vmcnt(0)")
            a(f"s_add_u32 {sCNT}, {sCNT}, 1\ns_cmp_lt_u32 {sCNT}, {POLL_LIMIT}\ns_cbranch_scc1 {top}\ns_branch L_fail")
        a.label(ok, reset=False)
        a("v_add_f32 v26, v240, v244\nv_add_f32 v27, v241, v245\nv_add_f32 v28, v248, v252\nv_add_f32 v29, v249, v253")
        a("v_add_f32 v26, v26, v28\nv_add_f32 v27, v27, v29\nv_mov_b32 v28, v26\nv_mov_b32 v29, v27")
        a("v_permlane32_swap_b32 v26, v28\nv_permlane32_swap_b32 v27, v29\nv_add_f32 v26, v26, v28\nv_add_f32 v27, v27, v29")
        a(f"v_mul_f32 v26, {f32(1/512)}, v26\nv_mul_f32 v27, {f32(1/512)}, v27")
        a(f"v_fma_f32 v27, -v26, v26, v27\nv_max_f32 v27, 0, v27\nv_add_f32 v27, {f32(1e-5)}, v27\nv_rsq_f32 v27, v27")

    def ln_init(self):
        a = self.a
        AK, AV, AQ = self.AK, self.AV, self.AQ
        a("v_and_b32 v3, 31, v1\nv_lshrrev_b32 v5, 5, v1")
        a(f"s_mul_i32 s73, {sP}, 768\ns_add_u32 s73, s73, {L_CP}")
        a("v_lshl_add_u32 v56, v5, 4, s73\nv_lshl_add_u32 v57, v3, 2, s73")
        for part, dst in ((0, AK), (384, 32), (256, AQ), (384 + 256, AV)):
            for q in range(4):
                a(f"ds_read_b128 v[{dst+4*q}:{dst+4*q+3}], v56 offset:{part + 32*q}")
        a("ds_read_b32 v58, v57 offset:128\nds_read_b32 v59, v57 offset:512")
        self.row_stats()
        a(f"s_lshl_b32 s72, {sWV}, 8\ns_add_u32 s72, s72, {L_MR}\nv_lshl_add_u32 v4, v3, 2, s72")
        a("ds_write_b32 v4, v26\nds_write_b32 v4, v27 offset:128")
        a("v_lshl_add_u32 v60, v5, 4, s72")
        for i in range(16):
            a(f"v_add_f32 v{AK+i}, v{AK+i}, v{32+i}\nv_add_f32 v{AQ+i}, v{AQ+i}, v{AV+i}")
        a("v_add_f32 v58, v58, v59\ns_waitcnt lgkmcnt(0)")
        for q in range(4):
            a(f"ds_read_b128 v[{AV+4*q}:{AV+4*q+3}], v60 offset:{32*q}")
        for i in range(16):
            a(f"v_mul_f32 v{AK+i}, -v26, v{AK+i}\nv_mul_f32 v{AQ+i}, -v26, v{AQ+i}")
        for i in range(16):
            a(f"v_mul_f32 v{AV+i}, -v58, v{AV+i}")

    def waddr(self, s, e):
        slot = s % 5
        return (f"v{17+e}", slot * 16384) if slot < 3 else (f"v{19+e}", (slot - 3) * 16384)

    def stage_sync(self, s):
        a = self.a
        a("s_waitcnt lgkmcnt(0)")
        a.wait_tag(f"W{s}", f"X{s}") if s < 8 else a.wait_tag(f"W{s}")
        a("s_barrier")

    def stat_loads(self):
        for k in range(4):
            self.a(f"buffer_load_dwordx4 v[{240+4*k}:{243+4*k}], v61, {SRD_WS}, s75 offen offset:{k*1024} sc1")

    def kv_pass(self, first):
        a = self.a
        XF, WF, AK, AV = self.XF, self.WF, self.AK, self.AV
        a.c("======== K/V projection" + (" (layer 0)" if first else " (layer 1)"))

        def reads_kv(n, part=None):
            s, k = n >> 2, n & 3
            reg, off = self.waddr(s, k & 1)
            wf = WF + (n % 3) * 8
            for pt in range(2):
                if part is not None and pt != part:
                    continue
                if pt == 0:
                    a(f"ds_read_b128 v[{XF+4*n}:{XF+4*n+3}], v{13+k} offset:{L_X + s*8192}")
                for rd in range(2):
                    a(f"ds_read_b64_tr_b16 v[{wf+4*pt+2*rd}:{wf+4*pt+2*rd+1}], {reg} offset:{off + pt*8192 + (k >> 1)*4096 + rd*512}")
        self.w_dma_setup()
        self.stamp(20)
        self.stage_sync(0)
        self.stamp(21)
        reads_kv(0); reads_kv(1)
        for n in range(32):
            wf = WF + (n % 3) * 8
            x = f"v[{XF+4*n}:{XF+4*n+3}]"
            ck = "0" if n == 0 and first else f"v[{AK}:{AK+15}]"
            cv = "0" if n == 0 and first else f"v[{AV}:{AV+15}]"
            a(f"v_mfma_f32_32x32x16_bf16 v[{AK}:{AK+15}], v[{wf}:{wf+3}], {x}, {ck}")
            if n + 2 < 32:
                if (n + 2) % 4 == 0:
                    self.stage_sync((n + 2) >> 2)
                reads_kv(n + 2, 0)
            a(f"v_mfma_f32_32x32x16_bf16 v[{AV}:{AV+15}], {x}, v[{wf+4}:{wf+7}], {cv}")
            if n + 2 < 32:
                reads_kv(n + 2, 1)
            sfree = (n + 2) >> 2
            if n >= 2 and sfree + 4 < 12:
                self.w_dma(sfree + 4, only=(n + 2) & 3)
            if n == 24 and first:
                self.stat_loads()
            if n == 28 and not first:
                for q in range(4):
                    a(f"ds_read_b128 v[{240+4*q}:{243+4*q}], v60 offset:{128 + 32*q}")
            if first and n % 2 == 0:
                for i in range(4):
                    a(f"v_dot2c_f32_bf16 v24, s74, v{wf+i}\nv_dot2c_f32_bf16 v25, s74, v{wf+4+i}")

    def k_store(self):
        a = self.a
        AK = self.AK
        a(f"s_lshl_b32 s75, {sCQ}, 1\ns_add_u32 s75, s75, {sP}\ns_lshl_b32 s75, s75, 6\ns_lshl_b32 s76, {sR}, 1\ns_add_u32 s75, s75, s76")
        a(f"s_add_u32 s75, s75, {sTB}\ns_lshl_b32 s75, s75, 12\ns_lshl_b32 s76, {sL}, 22\ns_add_u32 s75, s75, s76\ns_add_u32 s75, s75, {WS_KV}")
        a(f"buffer_store_dwordx4 v[{AK}:{AK+3}], v2, {SRD_WS}, s75 offen sc1", tag="KVst")
        a(f"buffer_store_dwordx4 v[{AK+4}:{AK+7}], v2, {SRD_WS}, s75 offen offset:2048 sc1", tag="KVst")

    def v_store(self):
        a = self.a
        AV = self.AV
        a("v_bfe_u32 v3, v1, 4, 1\nv_lshlrev_b32 v3, 11, v3\nv_lshrrev_b32 v5, 5, v1\nv_lshl_add_u32 v3, v5, 8, v3")
        a("v_and_b32 v5, 15, v1\nv_lshl_add_u32 v3, v5, 4, v3")
        a(f"buffer_store_dwordx4 v[{AV}:{AV+3}], v3, {SRD_WS}, s75 offen offset:1024 sc1", tag="KVst")
        a(f"buffer_store_dwordx4 v[{AV+4}:{AV+7}], v3, {SRD_WS}, s75 offen offset:1536 sc1", tag="KVst")

    def kv_epilogue_l1(self):
        a = self.a
        AK, AV = self.AK, self.AV
        self.stamp(2)
        for i in range(16):
            a(f"v_mul_f32 v{AK+i}, v27, v{AK+i}")
        for k in range(8):
            a(f"v_cvt_pk_bf16_f32 v{AK+k}, v{AK+2*k}, v{AK+2*k+1}")
        self.k_store()
        for i in range(16):
            a(f"v_mul_f32 v{AV+i}, v{240+i}, v{AV+i}")
        for k in range(8):
            a(f"v_cvt_pk_bf16_f32 v{AV+k}, v{AV+2*k}, v{AV+2*k+1}")
        self.v_store()

    def q_phase(self):
        a = self.a
        XF, WF, AK, AV, AQ = self.XF, self.WF, self.AK, self.AV, self.AQ
        waddr, stage_sync, stat_loads = self.waddr, self.stage_sync, self.stat_loads
        a.label("L_kvdone", reset=False)
        self.stamp(2)
        a("v_and_b32 v3, 31, v1")
        a(f"s_lshl_b32 s72, {sP}, 1\ns_add_u32 s72, s72, {sTB}\ns_mul_i32 s72, s72, 384\ns_add_u32 s72, s72, {L_CP}")
        a("v_lshl_add_u32 v9, v3, 2, s72")
        sk = self.lab("cs")
        a(f"s_cmp_eq_u32 {sL}, 0\ns_cbranch_scc0 {sk}")
        with a.cond("l0"):
            a("v_mov_b32 v26, v24\nv_mov_b32 v27, v25\nv_permlane32_swap_b32 v24, v26\nv_permlane32_swap_b32 v25, v27")
            a("v_add_f32 v24, v24, v26\nv_add_f32 v25, v25, v27")
            a("ds_write_b32 v9, v24\nds_write_b32 v9, v25 offset:128")
            a("s_waitcnt lgkmcnt(0)")
        a.label(sk, reset=False)
        a("s_barrier")
        self.row_stats()
        a(f"s_mul_i32 s72, {sP}, 768\ns_add_u32 s72, s72, {L_CP}")
        a("v_lshrrev_b32 v5, 5, v1\nv_lshl_add_u32 v56, v5, 4, s72")
        for q in range(4):
            a(f"ds_read_b128 v[{240+4*q}:{243+4*q}], v56 offset:{32*q}")
        for q in range(4):
            a(f"ds_read_b128 v[{32+4*q}:{35+4*q}], v56 offset:{384 + 32*q}")
        a("v_lshl_add_u32 v57, v3, 2, s72\nds_read_b32 v58, v57 offset:128\nds_read_b32 v59, v57 offset:512")
        a(f"s_lshl_b32 s72, {sWV}, 8\ns_add_u32 s72, s72, {L_MR}\nv_lshl_add_u32 v4, v3, 2, s72")
        a("ds_write_b32 v4, v26\nds_write_b32 v4, v27 offset:128")
        for i in range(16):
            a(f"v_add_f32 v{240+i}, v{240+i}, v{32+i}")
        a("v_add_f32 v58, v58, v59")
        a(f"v_lshl_add_u32 v4, v5, 4, s72")
        a("s_waitcnt lgkmcnt(0)")
        for q in range(4):
            a(f"ds_read_b128 v[{32+4*q}:{35+4*q}], v4 offset:{32*q}")
        for q in range(4):
            a(f"ds_read_b128 v[{48+4*q}:{51+4*q}], v4 offset:{128 + 32*q}") if q < 2 else None
        for i in range(16):
            a(f"v_fma_f32 v{AK+i}, -v26, v{240+i}, v{AK+i}")
        for i in range(16):
            a(f"v_mul_f32 v{AK+i}, v27, v{AK+i}")
        for k in range(8):
            a(f"v_cvt_pk_bf16_f32 v{AK+k}, v{AK+2*k}, v{AK+2*k+1}")
        self.k_store()
        for q in range(2, 4):
            a(f"ds_read_b128 v[{240+4*q}:{243+4*q}], v4 offset:{128 + 32*q}")
        rs = lambda i: (48 + i) if i < 8 else (240 + i)
        for i in range(16):
            a(f"v_fma_f32 v{AV+i}, -v{32+i}, v58, v{AV+i}")
        for i in range(16):
            a(f"v_mul_f32 v{AV+i}, v{rs(i)}, v{AV+i}")
        for k in range(8):
            a(f"v_cvt_pk_bf16_f32 v{AV+k}, v{AV+2*k}, v{AV+2*k+1}")
        self.v_store()
        a.label("L_kvstored", reset=False)
        self.stamp(3)
        def reads_q(n):
            s, k = 8 + (n >> 3), n & 7
            reg, off = waddr(s, k & 1)
            wf = WF + (n % 3) * 8
            for rd in range(2):
                a(f"ds_read_b64_tr_b16 v[{wf+2*rd}:{wf+2*rd+1}], {reg} offset:{off + (k >> 1)*4096 + rd*512}")
        def q_pass(first):
            stage_sync(8)
            reads_q(0); reads_q(1)
            for n in range(32):
                wf = WF + (n % 3) * 8
                cq = "0" if n == 0 and first else f"v[{AQ}:{AQ+15}]"
                a(f"v_mfma_f32_32x32x16_bf16 v[{AQ}:{AQ+15}], v[{wf}:{wf+3}], v[{XF+4*n}:{XF+4*n+3}], {cq}")
                if n + 2 < 32:
                    if (n + 2) % 8 == 0:
                        last = (n + 2) == 24
                        if last:
                            a.wait_tag("KVst")
                        stage_sync(8 + ((n + 2) >> 3))
                        if last:
                            self.flag_store(PH_KV)
                    reads_q(n + 2)
                if first and n % 2 == 0:
                    for i in range(4):
                        a(f"v_dot2c_f32_bf16 v21, s74, v{wf+i}")
            if first:
                a("v_mov_b32 v28, v21\nv_permlane32_swap_b32 v21, v28\nv_add_f32 v21, v21, v28")
                a("ds_write_b32 v9, v21 offset:256")
        lb, lj = self.lab("qb"), self.lab("qj")
        a(f"s_cmp_eq_u32 {sL}, 0\ns_cbranch_scc0 {lb}")
        a.fork()
        q_pass(True)
        a(f"s_branch {lj}")
        a.label(lb, reset=False)
        a.alt()
        q_pass(False)
        a.endfork()
        a.label(lj, reset=False)
        a("s_waitcnt lgkmcnt(0)\ns_barrier")
        self.stamp(4)
        sk = self.lab("qe")
        a(f"s_cmp_eq_u32 {sL}, 0\ns_cbranch_scc0 {sk}")
        with a.cond("l0q"):
            for q in range(4):
                a(f"ds_read_b128 v[{240+4*q}:{243+4*q}], v56 offset:{256 + 32*q}")
            for q in range(4):
                a(f"ds_read_b128 v[{32+4*q}:{35+4*q}], v56 offset:{384 + 256 + 32*q}")
            for i in range(16):
                a(f"v_add_f32 v{240+i}, v{240+i}, v{32+i}")
            for i in range(16):
                a(f"v_fma_f32 v{AQ+i}, -v26, v{240+i}, v{AQ+i}")
        a.label(sk, reset=False)
        a(f"v_mul_f32 v27, {f32(0.25*LOG2E)}, v27")
        for i in range(16):
            a(f"v_mul_f32 v{AQ+i}, v27, v{AQ+i}")
        for k in range(8):
            a(f"v_cvt_pk_bf16_f32 v{AQ+k}, v{AQ+2*k}, v{AQ+2*k+1}")

    def wo_dma(self):
        a = self.a
        a("v_lshrrev_b32 v3, 3, v1\nv_lshlrev_b32 v3, 10, v3\nv_bfe_u32 v4, v1, 1, 2\nv_bfe_u32 v5, v1, 4, 2\nv_xor_b32 v4, v4, v5")
        a("v_lshlrev_b32 v4, 1, v4\nv_and_b32 v5, 1, v1\nv_add_u32 v4, v4, v5\nv_lshl_add_u32 v19, v4, 4, v3")
        a(f"s_lshl_b32 s78, {sWV}, 17\ns_lshl_b32 s73, {sCQ}, 7\ns_add_u32 s78, s78, s73\ns_lshl_b32 s79, {sWV}, 14")

        def one(n):
            return (f"s_add_u32 m0, s79, {L_X + n*1024}\ns_add_u32 s72, s78, {n*8192}\n"
                    f"buffer_load_dwordx4 v19, {SRD_WO}, s72 offen lds")
        return one

    def build(self):
        a = self.a
        self.prologue()
        self.q_entry(0)
        self.kv_pass(True)
        done = False
        self.q_phase()
        done = self.stop("q")
        if not done:
            from gen2 import rest
            rest(self)
        a.label("L_fail", reset=False)
        self.srd(32, P_DBG, 256)
        a("v_mov_b32 v4, 0xdead\nv_mov_b32 v5, 0\ns_mov_b64 exec, 1")
        a(f"buffer_store_dword v4, v5, {SRD_T}, 0 offen")
        a.label("L_end", reset=False)
        a("s_endpgm")
        body = a.finalize()
        head = open("interleave_layers__sliding_block__mixer_token_mlp__prompt.s.ref").read().split("\n")
        hdr = [l for l in head if l.startswith(";") and "@launch" not in l and "Override launch" not in l and "grid=ceil" not in l]
        hdr = hdr[:hdr.index(next(l for l in hdr if "d_ws" in l)) + 1]
        out = "\n".join(hdr) + f"\n; @launch grid=(256,1,1) block=(256,1,1) lds={LDS_SIZE}\n"
        out += '.amdgcn_target "amdgcn-amd-amdhsa--gfx950"\n.text\n'
        out += f".globl {KNAME}\n.p2align 8\n.type {KNAME},@function\n{KNAME}:\n"
        out += body
        out += f'''.section .rodata,"a"
.p2align 6
.amdhsa_kernel {KNAME}
  .amdhsa_next_free_vgpr 512
  .amdhsa_next_free_sgpr 102
  .amdhsa_accum_offset 256
  .amdhsa_group_segment_fixed_size 0
  .amdhsa_kernarg_size 88
  .amdhsa_user_sgpr_count 2
  .amdhsa_user_sgpr_kernarg_segment_ptr 1
  .amdhsa_system_sgpr_workgroup_id_x 1
.end_amdhsa_kernel
'''
        return out


if __name__ == "__main__":
    import argparse
    ap = argparse.ArgumentParser()
    ap.add_argument("--stop", default=None)
    ap.add_argument("--diag", action="store_true")
    ap.add_argument("-o", default="interleave_layers__sliding_block__mixer_token_mlp__prompt.s")
    args = ap.parse_args()
    g = Gen(stop_after=args.stop, diag=args.diag)
    src = g.build()
    open(args.o, "w").write(src)
    print("written", args.o, g.a.stats, "bytes", len(src))
```

```python
import math
from gen import *

NEG = f32(-1e30)
import os
OPT = set(os.environ.get("KOPT", "").split(","))
INB = "inb" in OPT
sHB, sUO, sACC, sREDO = "s36", 37, "s[40:41]", "s42"


def ar(b, n=4):
    return f"a[{b}:{b+n-1}]"


def vr(b, n=4):
    return f"v[{b}:{b+n-1}]"


QA, QB = 224, 228
SBUF = (64, 80, 96, 112)
NEGM = {"A": 128, "B": 144}
OACC = {"A": 160, "B": 176}
PBUF = {"A": 192, "B": 200}
CDIAG, CFAR, ANDD, ANDF = 208, 232, 32, 40
AK0, AV0 = 0, 72
L_KV = L_RING


def kfrag(b):
    return AK0 + b * 4


def vfrag(b, half):
    return AV0 + ((b & 1) * 2 + half) * 4


def attn_setup(g):
    a = g.a
    a.c("======== attention constants")
    a("v_and_b32 v3, 31, v1\nv_lshrrev_b32 v4, 5, v1\nv_lshlrev_b32 v4, 2, v4\nv_sub_u32 v3, v3, v4")
    a(f"v_mov_b32 v48, 0\nv_mov_b32 v49, {NEG}\nv_mov_b32 v50, 0xffff\nv_mov_b32 v51, 0xffff0000")
    for i in range(16):
        ci = (i & 3) + 8 * (i >> 2)
        sp = f"s[{72 + 2*(i % 4)}:{73 + 2*(i % 4)}]"
        a(f"v_cmp_le_i32 {sp}, {ci}, v3")
        a(f"v_mov_b32 v{OACC['A']+i}, 0\nv_mov_b32 v{OACC['B']+i}, 0")
        a(f"v_cndmask_b32 v{CDIAG+i}, v49, v48, {sp}\nv_cndmask_b32 v{CFAR+i}, v48, v49, {sp}")
        a(f"v_cndmask_b32 v{52 + (i & 1)}, v48, v{50 + (i & 1)}, {sp}")
        if i & 1:
            a(f"v_or_b32 v{ANDD + i//2}, v52, v53\nv_not_b32 v{ANDF + i//2}, v{ANDD + i//2}")
    for i in range(8):
        a(f"v_mov_b32 v{PBUF['A']+i}, 0\nv_mov_b32 v{PBUF['B']+i}, 0")
    for k in range(AV0, AV0 + 16):
        a(f"v_accvgpr_write_b32 a{k}, v48")
    a("v_mov_b32 v54, 0x3f803f80\ns_mov_b32 exec_lo, 0x00110000\ns_mov_b32 exec_hi, 0x00110000")
    for k in range(AV0, AV0 + 16):
        a(f"v_accvgpr_write_b32 a{k}, v54")
    a("s_mov_b64 exec, -1")


def warmup_text(srd, dst):
    return (f"s_lshl_b32 s72, s2, 2\ns_add_u32 s72, s72, {sWV}\ns_mul_i32 s73, s72, {43*128}\nv_lshlrev_b32 v7, 7, v1\n"
            f"s_cmp_eq_u32 {sL}, 0\ns_cselect_b32 s73, s73, 0x70000000\n"
            f"s_mov_b32 exec_lo, -1\ns_mov_b32 exec_hi, 0x7ff\n"
            f"buffer_load_dword {dst}, v7, {srd}, s73 offen\ns_mov_b64 exec, -1")


def warmup(g, srd, dst):
    g.a(warmup_text(srd, dst))


def team_check(g):
    a = g.a
    top, ok = g.lab("tc"), g.lab("tco")
    a(f"s_lshl_b32 s72, {sR}, 7\ns_add_u32 s72, s72, {WS_XC}\nv_lshlrev_b32 v3, 4, v1\ns_mov_b32 {sCNT}, 0\ns_mov_b64 exec, 0xff")
    a.label(top, reset=False)
    a(f"buffer_load_dwordx4 v[24:27], v3, {SRD_WS}, s72 offen sc1\ns_waitcnt vmcnt(0)")
    a(f"v_cmp_ne_u64 vcc, {sNP}, v[26:27]\ns_cbranch_vccz {ok}")
    a(f"s_add_u32 {sCNT}, {sCNT}, 1\ns_cmp_lt_u32 {sCNT}, {POLL_LIMIT}\ns_cbranch_scc1 {top}\ns_branch L_fail")
    a.label(ok, reset=False)
    a(f"v_cmp_ne_u32 vcc, s1, v24\ns_cmp_eq_u64 vcc, 0\ns_cselect_b32 {sFAST}, 1, 0\ns_mov_b64 exec, -1")


def x2_touch_text():
    return ("v_lshrrev_b32 v6, 3, v0\nv_and_b32 v3, 7, v0\nv_lshlrev_b32 v6, 10, v6\nv_lshl_add_u32 v6, v3, 4, v6\n"
            f"s_lshl_b32 s72, {sR}, 16\ns_lshl_b32 s73, {sCQ}, 7\ns_add_u32 s72, s72, s73\n"
            f"s_cmp_eq_u32 {sL}, 0\ns_cselect_b32 s72, s72, 0x70000000\ns_add_u32 s73, s72, 32768\n"
            f"buffer_load_dword v23, v6, {SRD_DST}, s72 offen sc1\nbuffer_load_dword v24, v6, {SRD_DST}, s73 offen sc1\n"
            f"s_add_u32 s72, {sR}, 32\ns_lshl_b32 s72, s72, 3\ns_add_u32 s72, s72, {sCQ}\ns_lshl_b32 s72, s72, 10\ns_add_u32 s72, s72, {WS_ST2}\n"
            f"s_cmp_eq_u32 {sL}, 0\ns_cselect_b32 s72, s72, 0x70000000\n"
            f"buffer_load_dword v25, v2, {SRD_WS}, s72 offen sc1")


def u_offsets(g, dst):
    a = g.a
    a(f"s_mul_i32 s76, {sWV}, 3\ns_mul_i32 s77, {sC1}, {UC}\ns_lshl_b32 s73, {sL}, 21\ns_add_u32 s77, s77, s73\ns_add_u32 s77, s77, {WS_U}")
    for i in range(3):
        a(f"s_add_u32 s72, s76, {i}\ns_lshr_b32 s73, s72, 1\ns_and_b32 s72, s72, 1")
        a(f"s_mul_i32 s74, {sJ1}, 6\ns_add_u32 s74, s74, s73\ns_lshr_b32 s75, s74, 2\ns_and_b32 s79, s74, 3")
        a(f"s_lshl_b32 s75, s75, 12\ns_lshl_b32 s79, s79, 8\ns_add_u32 s75, s75, s79\ns_lshl_b32 s72, s72, 11\ns_add_u32 s75, s75, s72")
        a(f"s_add_u32 s75, s75, s77\ns_cmp_ge_u32 s74, 172\ns_cselect_b32 s79, 0x70000000, 0\ns_or_b32 s75, s75, s79")
        a(f"s_cmp_eq_u32 {sM1}, 0\ns_cselect_b32 s{dst+i}, 0x70000000, s75")


def inband_addresses(g):
    a = g.a
    a(f"s_lshl_b32 s72, {sCQ}, 6\ns_lshl_b32 s73, {sR}, 1\ns_add_u32 s72, s72, s73\ns_add_u32 s72, s72, {sTB}\ns_lshl_b32 s72, s72, 2")
    a(f"s_lshl_b32 s73, {sP}, 1\ns_add_u32 s72, s72, s73\ns_lshl_b32 s72, s72, 10\ns_lshl_b32 s73, {sL}, 21\ns_add_u32 s72, s72, s73\ns_add_u32 {sHB}, s72, {WS_H}")
    a("s_mov_b64 s[44:45], s[74:75]")
    u_offsets(g, sUO)
    a("s_mov_b64 s[74:75], s[44:45]")
    a("v_lshrrev_b32 v25, 5, v1\nv_lshlrev_b32 v25, 10, v25\nv_bfe_u32 v7, v1, 1, 4\nv_lshl_add_u32 v25, v7, 4, v25")
    a("v_mov_b32 v28, -1\nv_mov_b32 v29, -1\nv_mov_b32 v30, -1\nv_mov_b32 v31, -1")


def attn(g):
    a = g.a
    a.c("======== attention")
    a(f"s_sub_u32 s72, {sR}, 4\nv_add_u32 v8, s72, v1\nv_cmp_le_i32 s[74:75], 0, v8")
    g.wg_of("v9", "v8", sCQ)
    g.vflag("v9", PH_KV)
    a("s_and_b64 s[74:75], s[74:75], 0xf")
    a(f"s_lshl_b32 s76, {sR}, 1\ns_add_u32 s76, s76, {sTB}\ns_sub_u32 s77, 8, s76\ns_max_i32 s77, s77, 0")
    a(f"s_lshl_b32 s78, {sCQ}, 1\ns_add_u32 s78, s78, {sP}\ns_lshl_b32 s78, s78, 18\ns_lshl_b32 s79, {sL}, 22")
    a(f"s_add_u32 s78, s78, s79\ns_add_u32 s78, s78, {WS_KV}")
    a(f"s_lshl_b32 s79, {sTB}, 2\ns_lshl_b32 s80, {sR}, 1\ns_add_u32 s80, s80, s79\ns_sub_u32 s80, s80, 8")
    for i in range(4):
        a(f"s_add_i32 s{81+i}, s80, {i}\ns_max_i32 s{81+i}, s{81+i}, 0\ns_lshl_b32 s{81+i}, s{81+i}, 12\ns_add_u32 s{81+i}, s{81+i}, s78")
    a(f"s_lshl_b32 s85, {sR}, 1\ns_add_u32 s85, s85, {sTB}\ns_lshl_b32 s85, s85, 12\ns_add_u32 s85, s85, s78")
    a(f"s_mul_i32 s86, {sP}, 40960\ns_lshl_b32 s87, {sTB}, 14\ns_add_u32 s87, s87, s86\ns_add_u32 s87, s87, {L_KV}")
    a(f"s_lshl_b32 s79, {sTB}, 12\ns_add_u32 s79, s79, s86\ns_add_u32 s79, s79, {L_KV + 8*4096}")
    for q4 in range(4):
        a(f"s_add_u32 m0, s79, {q4*1024}\ns_add_u32 s72, s85, {q4*1024}")
        a(f"buffer_load_dwordx4 v2, {SRD_WS}, s72 offen sc1 lds", tag="Kd")
    a(f"s_lshl_b32 s88, {sTB}, 12\ns_add_u32 s88, s88, s86\ns_add_u32 s88, s88, {L_KV}\nv_add_u32 v10, s88, v2")
    a("v_and_b32 v8, 15, v1\nv_lshlrev_b32 v8, 4, v8\nv_lshrrev_b32 v7, 5, v1\nv_lshl_add_u32 v8, v7, 8, v8\nv_add_u32 v11, s88, v8")
    a("s_mov_b32 s90, 0xffff\ns_mov_b32 s91, 0xffff")
    a("v_bfe_u32 v20, v1, 4, 1\nv_lshlrev_b32 v20, 14, v20\nv_and_b32 v7, 15, v1\nv_lshl_add_u32 v20, v7, 4, v20")
    a("v_lshrrev_b32 v7, 5, v1\nv_lshl_add_u32 v20, v7, 8, v20")
    a(f"s_lshl_b32 s72, {sR}, 2\ns_lshl_b32 s73, {sTB}, 1\ns_add_u32 s72, s72, s73\ns_lshl_b32 s72, s72, 4")
    a(f"s_lshl_b32 s73, {sCQ}, 1\ns_add_u32 s72, s72, s73\ns_add_u32 s72, s72, {sP}\ns_lshl_b32 s72, s72, 10")
    a(f"s_lshl_b32 s73, {sL}, 21\ns_add_u32 s72, s72, s73\ns_add_u32 s89, s72, {WS_OF}")
    if INB:
        inband_addresses(g)
    a("s_mov_b64 s[76:77], s[74:75]")
    l0_only(g, "l0p", lambda: (team_check(g), p1_setup(g)))
    wo = g.wo_dma()
    g.poll("v9", "s[76:77]")
    a(f"s_lshl_b32 s76, {sR}, 1\ns_add_u32 s76, s76, {sTB}\ns_sub_u32 s77, 8, s76\ns_max_i32 s77, s77, 0")
    g.stamp(6)
    def kvdma(i, h, part):
        return (f"s_add_u32 m0, s87, {i*4096 + h*2048 + part}\ns_add_u32 s72, s{81+i}, {h*2048 + part}\n"
                f"buffer_load_dwordx4 v2, {SRD_WS}, s72 offen sc1 lds")
    for i in range(4):
        for h in range(2):
            a(kvdma(i, h, 0), tag="Kd")
    vd = [kvdma(i, h, 1024) for i in range(4) for h in range(2)]
    heads = ("A", "B")
    q = {"A": QA, "B": QB}
    mx = {"A": (48, 49), "B": (50, 51)}

    def kread(b):
        t, h = b >> 1, b & 1
        return f"ds_read_b128 {ar(kfrag(b))}, v10 offset:{t*4096 + h*2048}"

    def vread(b, half):
        t, h = b >> 1, b & 1
        return f"ds_read_b128 {ar(vfrag(b, half))}, v11 offset:{t*4096 + h*2048 + 1024 + half*512}"

    def qk(b, c):
        return f"v_mfma_f32_32x32x16_bf16 {vr(SBUF[b & 3],16)}, {ar(kfrag(b))}, {vr(q[heads[b & 1]])}, {c}"

    def cmask(t):
        return vr(CFAR, 16) if t == 0 else vr(CDIAG, 16) if t == 8 else "0"

    for h in heads:
        a(f"v_mov_b32 v{mx[h][0]}, {NEG}\nv_mov_b32 v{mx[h][1]}, {NEG}")
    a.wait_tag("Kd")
    a("s_barrier")
    a.c("pass 1: true row maximum over the masked window")
    for b in range(4):
        a(kread(b))
    a(qk(0, cmask(0)))
    a(kread(4))
    a(qk(1, cmask(0)))
    for b in range(18):
        t, s_, h = b >> 1, SBUF[b & 3], heads[b & 1]
        if t < 8 and b % 2 == 0:
            stub, back = g.lab("p1s"), g.lab("p1b")
            always = [x for bb in (b, b + 1) for x in ([kread(bb + 5)] if bb + 5 < 18 else []) + ([qk(bb + 2, cmask((bb + 2) >> 1))] if bb + 2 < 18 else [])
                      + ([vd[bb]] if bb < 8 else []) + ([wo(bb - 2)] if bb >= 2 else [])]
            a(f"s_cmp_gt_u32 s77, {t}\ns_cbranch_scc1 {stub}")
        if b + 5 < 18:
            a(kread(b + 5))
        if b + 2 < 18:
            a(qk(b + 2, cmask((b + 2) >> 1)))
        if b < 8:
            a(vd[b], tag="Vd")
        for i in range(8):
            m = mx[h][i & 1]
            a(f"v_max3_f32 v{m}, v{m}, v{s_+2*i}, v{s_+2*i+1}")
            if i == 3 and b >= 2:
                a(wo(b - 2))
        if t < 8 and b % 2 == 1:
            a.label(back, reset=False)
            g.stubs.append((stub, back, ["s_waitcnt lgkmcnt(0)"] + [y for x in always for y in (x, "s_waitcnt lgkmcnt(0)")]))
    for h in heads:
        m0, m1 = mx[h]
        a(f"v_max_f32 v{m0}, v{m0}, v{m1}\nv_mov_b32 v{m1}, v{m0}")
    for h in heads:
        m0, m1 = mx[h]
        a(f"v_permlane32_swap_b32 v{m0}, v{m1}")
    for h in heads:
        m0, m1 = mx[h]
        a(f"v_max_f32 v{m0}, v{m0}, v{m1}\nv_xor_b32 v{m0}, 0x80000000, v{m0}")
    for i in range(16):
        a(f"v_mov_b32 v{NEGM['A']+i}, v{mx['A'][0]}")
    a(qk(0, vr(NEGM["A"], 16)))
    for i in range(16):
        a(f"v_mov_b32 v{NEGM['B']+i}, v{mx['B'][0]}")
    a.wait_tag("Vd")
    a("s_barrier")
    a(f"buffer_load_dword v21, v20, {SRD_WS}, s89 offen sc1\nbuffer_load_dword v23, v20, {SRD_WS}, s89 offen offset:512 sc1")
    a(f"s_lshl_b32 s72, {sL}, 5\ns_add_u32 s72, s72, {sR}\ns_lshl_b32 s72, s72, 3\ns_add_u32 s72, s72, {sCQ}\ns_lshl_b32 s72, s72, 10")
    a(f"s_lshl_b32 s73, {sWV}, 8\ns_add_u32 s72, s72, s73\ns_add_u32 s72, s72, {WS_ST}")
    a(f"s_mov_b64 exec, 0xffff\nbuffer_load_dword v22, v2, {SRD_WS}, s72 offen sc1\ns_mov_b64 exec, -1")
    l0_only(g, "l0p", lambda: p1_loads(g))
    g.stamp(7)
    a.c("pass 2: P = exp2(S - m), O += V^T P; block b exponentiates S_b, starts S_{b+1} and finishes block b-1")

    def s2(b):
        return SBUF[b & 1]

    def qk2(b):
        h = heads[b & 1]
        return f"v_mfma_f32_32x32x16_bf16 {vr(s2(b),16)}, {ar(kfrag(b))}, {vr(q[h])}, {vr(NEGM[h],16)}"

    def pv(b, half):
        h = heads[b & 1]
        o, p = OACC[h], PBUF[h]
        return f"v_mfma_f32_32x32x16_bf16 {vr(o,16)}, {ar(vfrag(b, half))}, {vr(p+4*half)}, {vr(o,16)}"

    for b in range(18):
        t, h = b >> 1, heads[b & 1]
        nxt = [qk2(b + 1)] if b + 1 < 18 else []
        prv = [pv(b - 1, 0), pv(b - 1, 1)] if b >= 1 else []
        vl = ["s_mov_b64 exec, s[90:91]\n" + vread(b, 0) + "\n" + vread(b, 1) + "\ns_mov_b64 exec, -1"]
        if INB and b == 2:
            for e in range(2):
                a(f"buffer_store_dwordx4 v[28:31], v2, {SRD_WS}, {sHB} offen offset:{e*1024} sc1")
        if INB and b == 4:
            a("s_mov_b32 exec_lo, 0x55555555\ns_mov_b32 exec_hi, 0x55555555")
            for i in range(3):
                a(f"buffer_store_dwordx4 v[28:31], v25, {SRD_WS}, s{sUO+i} offen sc1")
            a("s_mov_b64 exec, -1")
        if t < 8 and b % 2 == 0:
            stub, back = g.lab("sk"), g.lab("bk")
            a(f"s_cmp_gt_u32 s77, {t}\ns_cbranch_scc1 {stub}")
        s_, p = s2(b), PBUF[h]
        extra = {1: nxt[:1], 4: prv[:1], 9: prv[1:2], 11: vl}
        for i in range(16):
            a(f"v_exp_f32 v{s_+i}, v{s_+i}")
            if i >= 2 and i % 2 == 0:
                k = i // 2 - 1
                a(f"v_cvt_pk_bf16_f32 v{p+k}, v{s_+2*k}, v{s_+2*k+1}")
            for x in extra.get(i, []):
                a(x)
        a(f"s_nop 0\nv_cvt_pk_bf16_f32 v{p+7}, v{s_+14}, v{s_+15}")
        if t in (0, 8):
            msk = ANDF if t == 0 else ANDD
            for k in range(8):
                a(f"v_and_b32 v{p+k}, v{msk+k}, v{p+k}")
        if t < 8 and b % 2 == 1:
            a.label(back, reset=False)
            g.stubs.append((stub, back, nxt))
    a(pv(17, 0)); a(pv(17, 1))
    g.stamp(8)
    for hi, h in enumerate(heads):
        o = OACC[h]
        a(f"v_rcp_f32 v52, v{o+8}")
        for i in range(8):
            a(f"v_mul_f32 v{o+i}, v52, v{o+i}")
        for k in range(4):
            a(f"v_cvt_pk_bf16_f32 v{o+k}, v{o+2*k}, v{o+2*k+1}")

    def ost(m):
        for hi, h in enumerate(heads):
            a(f"buffer_store_dwordx4 {vr(OACC[h])}, v20, {SRD_WS}, s89 offen offset:{hi*512} {m}", tag="Ost")
    g.dual(ost)


L_STG = L_RING + 10240
L_STG2 = L_RING
V_W1D, V_W1R, V_W2D, V_W2R = 52, 56, 40, 42


PA1 = 96
V_P1 = 12


def p1_setup(g):
    a = g.a
    a("s_lshr_b32 s72, s2, 2\ns_and_b32 s73, s2, 3")
    a("s_mul_i32 s74, s73, 7\ns_min_u32 s75, s73, 1\ns_add_u32 s74, s74, s75")
    a("s_cmp_eq_u32 s73, 0\ns_cselect_b32 s75, 8, 7")
    a(f"s_mul_i32 s101, s72, {32*2752}\ns_mul_i32 s73, s74, 96\ns_add_u32 s101, s101, s73\ns_mul_i32 s75, s75, 6")
    a("s_mov_b32 s72, 1311\ns_mov_b32 s73, 2752")
    for n in range(7):
        a(f"s_lshl_b32 s74, {sWV}, 6\ns_add_u32 s74, s74, {256*n}\nv_add_u32 v3, s74, v1")
        a("v_mul_lo_u32 v4, v3, s72\nv_lshrrev_b32 v4, 16, v4\nv_mul_u32_u24 v5, 50, v4\nv_sub_u32 v5, v3, v5")
        a("v_mul_lo_u32 v6, v4, s73\nv_lshl_add_u32 v6, v5, 4, v6")
        a("v_cmp_gt_u32 vcc, s75, v5\nv_cmp_gt_u32 s[78:79], 32, v4\ns_and_b64 vcc, vcc, s[78:79]")
        a(f"v_mov_b32 v5, 0x7ff00000\nv_cndmask_b32 v{V_P1+n}, v5, v6, vcc")


def p1_loads(g):
    a = g.a
    for n in range(7):
        a(f"buffer_load_dwordx4 {ar(PA1+4*n)}, v{V_P1+n}, {SRD_W1}, s101 offen")


def p1_finish(g):
    a = g.a
    L1 = L_RING
    a("s_lshr_b32 s72, s2, 2\ns_and_b32 s73, s2, 3")
    a("s_mul_i32 s74, s73, 7\ns_min_u32 s75, s73, 1\ns_add_u32 s74, s74, s75")
    a("s_cmp_eq_u32 s73, 0\ns_cselect_b32 s75, 8, 7")
    a(f"s_lshl_b32 s80, {sWV}, 10\ns_add_u32 s80, s80, {L1}\nv_add_u32 v64, s80, v2")
    for n in range(7):
        a(f"ds_write_b128 v64, {ar(PA1+4*n)} offset:{n*4096}")
    a("v_lshrrev_b32 v65, 4, v1\nv_lshlrev_b32 v65, 3, v65\nv_bfe_u32 v66, v1, 2, 2\nv_add_u32 v65, v65, v66\nv_and_b32 v66, 3, v1")
    a(f"v_mul_u32_u24 v67, 800, v65\nv_lshl_add_u32 v67, v66, 3, v67\ns_lshl_b32 s80, {sWV}, 5\ns_add_u32 s80, s80, {L1}\nv_add_u32 v67, s80, v67")
    a("s_waitcnt lgkmcnt(0)\ns_barrier")
    for n in range(6):
        for rd in range(2):
            a(f"ds_read_b64_tr_b16 v[{72+4*n+2*rd}:{73+4*n+2*rd}], v67 offset:{128*n + rd*3200}")
    for n in range(6):
        a(f"s_add_u32 s80, {sWV}, {4*n}\ns_mul_i32 s81, s80, 43\ns_lshr_b32 s81, s81, 7\ns_mul_i32 s82, s81, 3\ns_sub_u32 s82, s80, s82")
        a("s_mul_i32 s83, s81, 6\ns_mul_i32 s85, s75, 6\ns_cmp_lt_u32 s83, s85\ns_cselect_b32 s85, 0, 0x70000000")
        a("s_add_u32 s81, s81, s74\ns_lshl_b32 s81, s81, 6\ns_add_u32 s81, s81, s72\ns_mul_i32 s81, s81, 3\ns_add_u32 s81, s81, s82")
        a(f"s_lshl_b32 s81, s81, 10\ns_add_u32 s81, s81, {WS_W1P}\ns_or_b32 s81, s81, s85")
        a(f"buffer_store_dwordx4 {vr(72+4*n)}, v2, {SRD_WS}, s81 offen sc1")


def early_w1(g, i0, i1, check=False):
    a = g.a
    skip = g.lab("e1")
    a(f"s_cmp_eq_u32 {sM1}, 0\ns_cbranch_scc1 {skip}")
    with a.cond("m1"):
        if check:
            l0_only(g, "l0c", lambda: (p1_check(g), w1_loads(g, 0, i0)))
        w1_loads(g, i0, i1)
    a.label(skip, reset=False)


def l0_only(g, name, fn):
    a = g.a
    skip = g.lab("l0s")
    a(f"s_cmp_eq_u32 {sL}, 0\ns_cbranch_scc0 {skip}")
    with a.cond(name):
        fn()
    a.label(skip, reset=False)


def p1_check(g):
    a = g.a
    a(f"s_cmp_ge_u32 {sJ1}, 8\ns_cselect_b32 s72, 1, 0\ns_cmp_ge_u32 {sJ1}, 15\ns_addc_u32 s72, s72, 0")
    a(f"s_cmp_ge_u32 {sJ1}, 22\ns_addc_u32 s72, s72, 0")
    a(f"s_lshl_b32 s73, {sWV}, 4\nv_add_u32 v9, s73, v1\nv_lshl_add_u32 v9, v9, 2, s72")
    a(f"v_lshlrev_b32 v9, 7, v9\nv_add_u32 v9, {WS_FLAG + PH_P*2*256*128}, v9")
    g.poll("v9", "0xffff")


def w1_loads(g, i0, i1):
    a = g.a
    a(f"s_lshl_b32 s72, {sJ1}, 6\ns_lshl_b32 s73, {sWV}, 4\ns_add_u32 s72, s72, s73\ns_mul_i32 s72, s72, 3072\ns_add_u32 s72, s72, {WS_W1P}")
    for i in range(i0, i1):
        st, ft = divmod(i, 3)
        a(f"s_add_u32 s73, s72, {st*3072}")
        a(f"buffer_load_dwordx4 {ar(4*i)}, v2, {SRD_WS}, s73 offen offset:{ft*1024} sc1")


def m1_only(g, fn):
    a = g.a
    skip = g.lab("m1s")
    a(f"s_cmp_eq_u32 {sM1}, 0\ns_cbranch_scc1 {skip}")
    with a.cond("m1"):
        fn()
    a.label(skip, reset=False)


def w2_setup(g):
    a = g.a
    a("v_lshrrev_b32 v3, 3, v1\nv_lshlrev_b32 v3, 12, v3\nv_bfe_u32 v4, v1, 1, 2\nv_bfe_u32 v5, v1, 4, 1\nv_and_b32 v6, 1, v1")
    for e in range(2):
        a(f"v_or_b32 v7, {2*e}, v5\nv_xor_b32 v7, v4, v7\nv_lshl_add_u32 v7, v7, 1, v6\nv_lshl_add_u32 v{V_W2D+e}, v7, 4, v3")
    a("v_lshrrev_b32 v3, 4, v1\nv_lshlrev_b32 v4, 3, v3\nv_bfe_u32 v5, v1, 2, 2\nv_add_u32 v4, v4, v5\nv_lshlrev_b32 v4, 7, v4")
    a("v_and_b32 v5, 3, v1\nv_lshl_add_u32 v4, v5, 3, v4\nv_and_b32 v3, 1, v3\nv_lshlrev_b32 v3, 1, v3\nv_bfe_u32 v5, v1, 3, 1\nv_or_b32 v3, v3, v5")
    for k in range(4):
        a(f"v_xor_b32 v5, {k}, v3\nv_lshl_add_u32 v{V_W2R+k}, v5, 5, v4")
    a(f"s_mul_i32 s89, {sWV}, {11*32*4096}\ns_lshl_b32 s88, {sR}, 7\ns_add_u32 s89, s89, s88")


def w2_lds(st):
    if st < 5:
        return ("s86", st * 4096)
    if st < 9:
        return ("s87", (st - 5) * 4096)
    return ("s86", (st - 9) * 4096)


def w2_bases(g):
    g.a(f"s_mul_i32 s86, {sWV}, 20480\ns_add_u32 s86, s86, {L_STG2}\ns_lshl_b32 s87, {sWV}, 14\ns_add_u32 s87, s87, {L_X}")


def w2_dma_text(st, m):
    base, off = w2_lds(st)
    return (f"s_add_u32 m0, {base}, {off + m*1024}\ns_add_u32 s88, s89, {(st*32 + 8*m)*4096}",
            f"buffer_load_dwordx4 v{V_W2D + (m & 1)}, {SRD_W2P}, s88 offen lds")


def w2_dma(g, st, m, uncond=False):
    pre, ld = w2_dma_text(st, m)
    g.a(pre)
    (g.a.uncond if uncond else g.a)(ld, tag=f"D2_{0 if st < 5 else 5 if st < 9 else 9}")
    return pre + "\n" + ld


def w2_tr(g, s0, s1):
    a = g.a
    base, _ = w2_lds(s0)
    for k in range(4):
        a(f"v_add_u32 v{32+k}, {base}, v{V_W2R+k}")
    for st in range(s0, s1):
        _, off = w2_lds(st)
        for k in range(4):
            for rd in range(2):
                b = (st*4 + k) * 4 + 2*rd
                a(f"ds_read_b64_tr_b16 a[{b}:{b+1}], v{32+k} offset:{off + rd*512}")


def u_producers(g, dst, lane0):
    a = g.a
    a(f"s_mul_i32 s72, {sWV}, 352\ns_mul_hi_u32 s72, s72, {(1 << 32)//48 + 1}\ns_sub_u32 s72, s72, {lane0}\nv_add_u32 v8, s72, v1\nv_max_i32 v8, 0, v8\nv_min_u32 v8, 28, v8")
    a("v_cmp_le_u32 vcc, 8, v8\nv_cndmask_b32 v6, 0, 1, vcc\nv_cmp_le_u32 vcc, 15, v8\nv_addc_co_u32 v6, vcc, 0, v6, vcc")
    a("v_cmp_le_u32 vcc, 22, v8\nv_addc_co_u32 v6, vcc, 0, v6, vcc")
    a("v_mul_u32_u24 v7, 7, v6\nv_min_u32 v9, 1, v6\nv_add_u32 v7, v7, v9\nv_sub_u32 v7, v8, v7")
    a(f"s_and_b32 s72, {sCQ}, 3\ns_lshr_b32 s73, {sCQ}, 2\nv_lshl_add_u32 v7, v7, 2, s72\nv_lshlrev_b32 v7, 3, v7")
    a(f"v_lshl_add_u32 {dst}, v6, 1, v7\nv_add_u32 {dst}, s73, {dst}")


def sentinel(g, loads, srd):
    a = g.a
    top, ok = g.lab("sn"), g.lab("sno")
    a(f"s_mov_b32 {sCNT}, 0")
    a.label(top, reset=False)
    with a.cond(top):
        for k, (addr, soff) in enumerate(loads):
            a(f"buffer_load_dword v{4+k}, {addr}, {srd}, {soff} offen sc1")
        a("s_waitcnt vmcnt(0)")
        a("v_cmp_eq_u32 vcc, -1, v4")
        for k in range(1, len(loads)):
            a(f"v_cmp_eq_u32 s[72:73], -1, v{4+k}\ns_or_b64 vcc, vcc, s[72:73]")
        a(f"s_cbranch_vccz {ok}")
        a(f"s_add_u32 {sCNT}, {sCNT}, 1\ns_cmp_lt_u32 {sCNT}, {POLL_LIMIT}\ns_cbranch_scc1 {top}")
    a.label(ok, reset=False)


def redo_end(g, redo):
    a = g.a
    done = g.lab("rd")
    a(f"s_cmp_eq_u64 {sACC}, 0\ns_cbranch_scc1 {done}")
    if g.diag:
        g.srd(32, P_DBG, 256)
        a(f"v_mov_b32 v4, 1\nv_mov_b32 v5, 4\ns_mov_b64 exec, 1\nbuffer_atomic_add v4, v5, {SRD_T}, 0 offen\ns_mov_b64 exec, -1")
    a(f"s_add_u32 {sREDO}, {sREDO}, 1\ns_cmp_lt_u32 {sREDO}, 64\ns_cbranch_scc1 {redo}")
    a.label(done, reset=False)


def o_flags(g):
    a = g.a
    a(f"v_mov_b32 v8, {sR}\nv_and_b32 v9, 3, v8\nv_lshlrev_b32 v9, 3, v9\nv_add_u32 v9, v1, v9\nv_lshlrev_b32 v9, 3, v9")
    a("v_lshrrev_b32 v7, 2, v8\nv_add_u32 v9, v9, v7")
    g.vflag("v9", PH_O)


def oproj(g):
    a = g.a
    a.c("======== output projection, residual, double LayerNorm")
    OFR, WPRE, WFR, ACC = 64, 128, 14, 46
    a("v_lshrrev_b32 v3, 5, v1\nv_lshlrev_b32 v3, 4, v3\nv_bfe_u32 v4, v1, 4, 1\nv_lshl_add_u32 v3, v4, 2, v3")
    a("v_bfe_u32 v5, v1, 2, 2\nv_add_u32 v3, v3, v5\nv_bfe_u32 v5, v3, 1, 2\nv_and_b32 v6, 3, v1\nv_lshlrev_b32 v6, 3, v6")
    a("v_lshl_add_u32 v6, v3, 7, v6")
    for nt in range(4):
        a(f"v_xor_b32 v7, {nt}, v5\nv_lshl_add_u32 v{10+nt}, v7, 5, v6")

    def wreg(ks, nt):
        return WPRE + ks * 16 + nt * 4 if ks < 8 else WFR + (ks & 1) * 16 + nt * 4

    def wread(ks, nt):
        b = wreg(ks, nt)
        for rd in range(2):
            a(f"ds_read_b64_tr_b16 v[{b+2*rd}:{b+2*rd+1}], v{10+nt} offset:{L_X + ks*4096 + rd*1024}")
    for ks in range(8):
        for nt in range(4):
            wread(ks, nt)
    g.poll("v9", "0xff")
    a("s_waitcnt vmcnt(0) lgkmcnt(0)")
    lp = g.lab("pp")
    a("s_barrier")
    a(f"s_or_b32 s72, {sL}, {sWV}\ns_cmp_eq_u32 s72, 0\ns_cbranch_scc0 {lp}")
    with a.cond(lp):
        a(f"s_lshl_b32 s70, s2, 7\ns_add_u32 s70, s70, {WS_FLAG + PH_P*2*256*128}")
        a(f"v_mov_b32 v4, {sN}\nv_mov_b32 v5, {sNN}\nv_mov_b32 v6, s70\ns_mov_b64 exec, 1")
        a(f"buffer_store_dwordx2 v[4:5], v6, {SRD_WS}, 0 offen sc1")
        a("s_mov_b64 exec, -1")
    a.label(lp, reset=False)
    g.stamp(10)
    a(f"s_lshl_b32 s72, {sR}, 2\ns_add_u32 s72, s72, {sWV}\ns_lshl_b32 s72, s72, 14\ns_lshl_b32 s73, {sL}, 21")
    a(f"s_add_u32 s72, s72, s73\ns_add_u32 s74, s72, {WS_OF}")

    def oload(ks):
        a(f"s_add_u32 s73, s74, {(ks >> 2)*4096}")
        a(f"buffer_load_dwordx4 {vr(OFR+4*ks)}, v2, {SRD_WS}, s73 offen offset:{(ks & 3)*1024} sc1")
    OD = 11
    for ks in range(OD):
        oload(ks)
    g.stamp(25)

    def main(w1):
        if w1:
            a(f"s_lshl_b32 s76, {sJ1}, 6\ns_lshl_b32 s77, {sWV}, 4\ns_add_u32 s76, s76, s77\ns_mul_i32 s76, s76, 3072\ns_add_u32 s76, s76, {WS_W1P}")
        for ks in range(16):
            if ks + OD < 16:
                oload(ks + OD)
            for nt in range(4):
                c = "0" if ks == 0 else vr(ACC + 4*nt)
                a(f"v_mfma_f32_16x16x32_bf16 {vr(ACC+4*nt)}, {vr(wreg(ks, nt))}, {vr(OFR+4*ks)}, {c}")
                if 6 <= ks <= 13:
                    wread(ks + 2, nt)
                if w1 and nt == 1 and ks >= 4:
                    for i in ((ks - 4) * 2, (ks - 4) * 2 + 1) if ks < 12 else ():
                        st, ft = divmod(i, 3)
                        a(f"s_add_u32 s77, s76, {st*3072}")
                        a(f"buffer_load_dwordx4 {ar(4*i)}, v2, {SRD_WS}, s77 offen offset:{ft*1024} sc1")
            if ks == 0:
                g.stamp(28)
            if ks == 7:
                g.stamp(29)
    la, lb = g.lab("oa"), g.lab("ob")
    a(f"s_and_b32 s79, {sM1}, {sL}\ns_cmp_eq_u32 s79, 0\ns_cbranch_scc1 {la}")
    a.fork()
    main(True)
    a(f"s_branch {lb}")
    a.label(la, reset=False)
    a.alt()
    main(False)
    a.endfork()
    a.label(lb, reset=False)
    g.stamp(11)
    a(f"v_and_b32 v3, 15, v1\ns_lshl_b32 s72, {sWV}, 4\nv_add_u32 v14, s72, v3\nv_lshrrev_b32 v4, 4, v1")
    a(f"v_mul_u32_u24 v5, 144, v14\nv_lshl_add_u32 v5, v4, 3, v5\nv_add_u32 v15, {L_R}, v5")
    for nt in range(4):
        a(f"ds_read_b64 v[{176+2*nt}:{177+2*nt}], v15 offset:{32*nt}")
    X1 = 192
    for nt in range(4):
        for k in range(2):
            a(f"v_lshlrev_b32 v{X1+4*nt+2*k}, 16, v{176+2*nt+k}\nv_and_b32 v{X1+4*nt+2*k+1}, 0xffff0000, v{176+2*nt+k}")
    for i in range(16):
        a(f"v_add_f32 v{X1+i}, v{X1+i}, v{ACC+i}")
    for k in range(8):
        a(f"v_cvt_pk_bf16_f32 v{176+k}, v{X1+2*k}, v{X1+2*k+1}")
    for nt in range(4):
        a(f"ds_write_b64 v15, v[{176+2*nt}:{177+2*nt}] offset:{32*nt}")
    a(f"v_add_f32 v16, v{X1}, v{X1+1}\nv_mul_f32 v17, v{X1}, v{X1}\nv_fmac_f32 v17, v{X1+1}, v{X1+1}")
    for i in range(2, 16):
        a(f"v_add_f32 v16, v16, v{X1+i}\nv_fmac_f32 v17, v{X1+i}, v{X1+i}")

    def fold_groups(r0, r1):
        for sw in ("16", "32"):
            a(f"v_mov_b32 v20, v{r0}\nv_mov_b32 v21, v{r1}")
            a(f"v_permlane{sw}_swap_b32 v{r0}, v20\nv_permlane{sw}_swap_b32 v{r1}, v21")
            a(f"v_add_f32 v{r0}, v{r0}, v20\nv_add_f32 v{r1}, v{r1}, v21")
    fold_groups(16, 17)
    a(f"v_mov_b32 v18, {sN}\nv_mov_b32 v19, {sNN}")
    a(f"s_lshl_b32 s72, {sL}, 5\ns_add_u32 s72, s72, {sR}\ns_lshl_b32 s72, s72, 13\ns_add_u32 s72, s72, {WS_ST}")
    a(f"s_lshl_b32 s73, {sCQ}, 10\ns_add_u32 s73, s73, s72\nv_lshlrev_b32 v22, 4, v14")
    a("s_mov_b64 exec, 0xffff")
    g.dual(lambda m: a(f"buffer_store_dwordx4 v[16:19], v22, {SRD_WS}, s73 offen {m}"))
    a("s_mov_b64 exec, -1")
    g.stamp(26)
    if INB:
        a(f"s_lshl_b32 s73, {sWV}, 3\nv_add_u32 v34, s73, v1")
        g.wg_of("v35", "v34", sC1)
        u_producers(g, "v36", 8)
        a("v_cmp_le_u32 vcc, 8, v1\nv_cndmask_b32 v35, v35, v36, vcc\nv_and_b32 v35, 255, v35")
        g.vflag("v35", PH_PD)
        a(f"s_lshl_b32 s44, {sM1}, 8\ns_sub_u32 s44, s44, {sM1}\ns_or_b32 s44, s44, 0xff00\ns_mov_b32 s45, 0")
        a(f"s_mov_b64 exec, s[44:45]\nbuffer_load_dwordx2 v[32:33], v35, {SRD_WS}, 0 offen sc1\ns_mov_b64 exec, -1")
    early_w1(g, 16, 28, check=True)
    a("v_lshrrev_b32 v4, 4, v1")
    g.stamp(27)
    a(f"s_lshl_b32 s72, {sL}, 5\ns_add_u32 s72, s72, {sR}\ns_lshl_b32 s72, s72, 13\ns_add_u32 s72, s72, {WS_ST}")
    a("v_lshl_add_u32 v23, v4, 11, v22\ns_mov_b32 s100, 0")
    top, ok = g.lab("stp"), g.lab("sto")
    a.label(top, reset=False)
    a(f"buffer_load_dwordx4 v[24:27], v23, {SRD_WS}, s72 offen sc1")
    a(f"buffer_load_dwordx4 v[28:31], v23, {SRD_WS}, s72 offen offset:1024 sc1")
    a("s_waitcnt vmcnt(0)")
    a(f"v_cmp_ne_u64 vcc, {sNP}, v[26:27]\nv_cmp_ne_u64 s[74:75], {sNP}, v[30:31]\ns_or_b64 vcc, vcc, s[74:75]")
    a(f"s_cbranch_vccz {ok}")
    a(f"s_add_u32 s100, s100, 1\ns_cmp_lt_u32 s100, {POLL_LIMIT}\ns_cbranch_scc1 {top}\ns_branch L_fail")
    a.label(ok, reset=False)
    if INB:
        pd = g.lab("pd")
        a(f"s_mov_b64 exec, s[44:45]\nv_cmp_ne_u64 vcc, {sNP}, v[32:33]\ns_mov_b64 exec, -1\ns_cbranch_vccz {pd}")
        with a.cond(pd):
            a("v_mov_b32 v36, v4\nv_mov_b32 v37, v5")
            g.poll("v35", "s[44:45]")
            a("v_mov_b32 v4, v36\nv_mov_b32 v5, v37")
        a.label(pd, reset=False)
    g.stamp(12)
    a("v_add_f32 v16, v24, v28\nv_add_f32 v17, v25, v29")
    fold_groups(16, 17)
    a(f"v_mul_f32 v16, {f32(1/512)}, v16\nv_mul_f32 v17, {f32(1/512)}, v17\nv_fma_f32 v17, -v16, v16, v17\nv_max_f32 v17, 0, v17")
    a(f"v_add_f32 v18, {f32(1e-5)}, v17\nv_rsq_f32 v18, v18")
    a(f"v_mul_f32 v19, v18, v18\nv_mul_f32 v19, v19, v17\nv_add_f32 v19, {f32(1e-5)}, v19\nv_rsq_f32 v19, v19\nv_mul_f32 v18, v18, v19")
    for i in range(16):
        a(f"v_sub_f32 v{X1+i}, v{X1+i}, v16")
    for i in range(16):
        a(f"v_mul_f32 v{X1+i}, v18, v{X1+i}")
    for k in range(8):
        a(f"v_cvt_pk_bf16_f32 v{176+k}, v{X1+2*k}, v{X1+2*k+1}")
    HT = L_RING
    a(f"v_mul_u32_u24 v5, 160, v14\nv_lshl_add_u32 v5, v4, 3, v5\nv_add_u32 v5, {HT}, v5")
    for nt in range(4):
        a(f"ds_write_b64 v5, v[{176+2*nt}:{177+2*nt}] offset:{32*nt}")
    a("v_lshrrev_b32 v3, 4, v1\nv_lshlrev_b32 v3, 3, v3\nv_bfe_u32 v6, v1, 2, 2\nv_add_u32 v3, v3, v6")
    a(f"s_lshl_b32 s72, {sTB}, 5\nv_add_u32 v3, s72, v3\nv_mul_u32_u24 v3, 160, v3\nv_and_b32 v6, 3, v1\nv_lshl_add_u32 v3, v6, 3, v3")
    a(f"s_lshl_b32 s72, {sP}, 6\ns_add_u32 s72, s72, {HT}\nv_add_u32 v3, s72, v3")
    a("s_waitcnt lgkmcnt(0)\ns_barrier")
    for e in range(2):
        for rd in range(2):
            a(f"ds_read_b64_tr_b16 v[{184+4*e+2*rd}:{185+4*e+2*rd}], v3 offset:{32*e + rd*640}")
    if INB:
        a(f"s_mov_b32 s72, {sHB}")
    else:
        a(f"s_lshl_b32 s72, {sCQ}, 6\ns_lshl_b32 s73, {sR}, 1\ns_add_u32 s72, s72, s73\ns_add_u32 s72, s72, {sTB}\ns_lshl_b32 s72, s72, 2")
        a(f"s_lshl_b32 s73, {sP}, 1\ns_add_u32 s72, s72, s73\ns_lshl_b32 s72, s72, 10\ns_lshl_b32 s73, {sL}, 21\ns_add_u32 s72, s72, s73\ns_add_u32 s72, s72, {WS_H}")
    for e in range(2):
        a(f"buffer_store_dwordx4 {vr(184+4*e)}, v2, {SRD_WS}, s72 offen offset:{e*1024} sc1", tag="Hst")


def mix1(g):
    a = g.a
    a.c("======== token mixing 1: u = gelu(h^T W1 + b1)")
    skip, other = g.lab("m1"), g.lab("m1o")
    w2_setup(g)
    w2_bases(g)
    a(f"s_cmp_eq_u32 {sM1}, 0\ns_cbranch_scc1 {other}")
    w2_text = []

    def w2(i):
        return w2_dma(g, i >> 2, i & 3, uncond=True)
    with a.cond("m1"):
        g.srd(32, P_B1, 2752)
        a(f"s_mul_i32 s72, {sJ1}, 96\nv_and_b32 v3, 1, v1\nv_lshlrev_b32 v3, 3, v3\ns_mul_i32 s73, {sWV}, 3")
        for i in range(3):
            a(f"s_add_u32 s74, s73, {i}\ns_lshr_b32 s74, s74, 1\ns_lshl_b32 s74, s74, 4\ns_add_u32 s74, s74, s72")
            a(f"buffer_load_dwordx2 v[{14+2*i}:{15+2*i}], v3, {SRD_T}, s74 offen")
        if not INB:
            a(f"s_lshl_b32 s73, {sWV}, 3\nv_add_u32 v8, s73, v1")
            g.wg_of("v9", "v8", sC1)
            g.vflag("v9", PH_H)
        c0 = -2 * math.log2(math.e) * math.sqrt(2 / math.pi)
        c1 = c0 * 0.044715
        a(f"v_and_b32 v3, 15, v1\nv_mul_u32_u24 v3, 208, v3\nv_lshrrev_b32 v4, 4, v1\nv_lshl_add_u32 v3, v4, 4, v3")
        a(f"s_mul_i32 s72, {sWV}, 13312\nv_add_u32 v13, s72, v3")
        a("v_lshrrev_b32 v3, 1, v1\nv_mul_u32_u24 v10, 208, v3\nv_and_b32 v4, 1, v1\nv_lshl_add_u32 v10, v4, 4, v10")
        a("v_lshrrev_b32 v5, 5, v1\nv_lshlrev_b32 v11, 10, v5\nv_and_b32 v3, 15, v3\nv_lshl_add_u32 v11, v3, 4, v11")
        if not INB:
            a("v_lshl_add_u32 v11, v4, 3, v11")
        a(f"s_mul_i32 s76, {sWV}, 3\ns_mov_b32 s84, {f32(c1)}\ns_mov_b32 s85, {f32(c0)}")
        for i in range(3):
            a(f"s_add_u32 s72, s76, {i}\ns_lshr_b32 s73, s72, 1\ns_and_b32 s72, s72, 1")
            a(f"s_mul_i32 s74, s72, {32*208}\ns_lshl_b32 s75, s73, 5\ns_add_u32 s74, s74, s75\nv_add_u32 v{20+i}, s74, v10")
        if INB:
            for i in range(3):
                a(f"s_mov_b32 s{80+i}, s{sUO+i}")
        else:
            u_offsets(g, 80)
        HB, NS, ACC, HD = 64, 24, 192, 15
        a(f"s_lshl_b32 s72, {sC1}, 6\ns_lshl_b32 s73, {sWV}, 4\ns_add_u32 s72, s72, s73\ns_lshl_b32 s72, s72, 12")
        a(f"s_lshl_b32 s73, {sL}, 21\ns_add_u32 s72, s72, s73\ns_add_u32 s43, s72, {WS_H}")
        if INB:
            a(f"v_lshlrev_b32 v9, 10, v1\nv_add_u32 v9, 1008, v9\ns_mov_b32 {sREDO}, 0")
            redo = g.lab("m1r")
            a.label(redo, reset=False)
            sentinel(g, [("v9", "s43")], SRD_WS)
            a(f"s_mov_b64 {sACC}, 0")
        else:
            g.poll("v9", "0xff")
        g.stamp(14)
        a("s_mov_b32 s72, s43")
        nload = [0]

        def hload():
            n = nload[0]
            a(f"buffer_load_dwordx4 {vr(HB + 4*(n % NS))}, v2, {SRD_WS}, s72 offen offset:{(n & 3)*1024} sc1")
            if n & 3 == 3:
                a("s_add_u32 s72, s72, 4096")
            nload[0] += 1
        for _ in range(HD):
            hload()
        for st in range(16):
            for dt in range(4):
                hb = HB + 4 * ((st*4 + dt) % NS)
                for ft in range(3):
                    acc = ACC + (ft*4 + dt) * 4
                    c = "0" if st == 0 else ar(acc)
                    a(f"v_mfma_f32_16x16x32_bf16 {ar(acc)}, {ar((st*3+ft)*4)}, {vr(hb)}, {c}")
                    if INB and ft == 0:
                        a(f"v_cmp_eq_u32 vcc, -1, v{hb}\ns_or_b64 {sACC}, {sACC}, vcc")
                if nload[0] < 64:
                    hload()
        if INB:
            redo_end(g, redo)
        l0_only(g, "l0t", lambda: (warmup(g, SRD_W2P, "v60") if "now2wu" not in OPT else None, a(x2_touch_text())))
        g.stamp(15)
        nw2 = 0
        for dt in range(4):
            for ft in range(3):
                a(f"ds_write_b128 v13, {ar(ACC + (ft*4+dt)*4)} offset:{L_X + dt*16*208 + ft*64}")
        a("s_waitcnt lgkmcnt(0)\ns_barrier")
        for i in range(3):
            for k in range(4):
                a(f"ds_read_b128 {vr(64 + 16*i + 4*k)}, v{20+i} offset:{L_X + k*13312}")
        sk3 = g.lab("ep")
        a(f"s_or_b32 s72, s2, {sL}\ns_or_b32 s72, s72, {sWV}\ns_cmp_eq_u32 s72, 0\ns_cbranch_scc0 {sk3}")
        with a.cond(sk3):
            a(f"v_mov_b32 v4, {sN}\nv_mov_b32 v5, {WS_EPOCH}\ns_mov_b64 exec, 1")
            a(f"buffer_store_dword v4, v5, {SRD_WS}, 0 offen sc1")
            a("s_mov_b64 exec, -1")
        a.label(sk3, reset=False)
        if "udrain" not in OPT:
            pass
        else:
            a("s_waitcnt lgkmcnt(0)\ns_barrier")
        for i in range(3):
            B = 64 + 16 * i
            bb = 14 + 2 * i

            def w2x(k=1):
                nonlocal nw2
                for _ in range(k):
                    if nw2 < 18:
                        w2_text.append(w2(nw2)); nw2 += 1
            for e in range(4):
                a(f"v_add_f32 v{B+e}, v{B+e}, v{B+4+e}\nv_add_f32 v{B+8+e}, v{B+8+e}, v{B+12+e}")
            w2x()
            a(f"v_lshlrev_b32 v{B+4}, 16, v{bb}\nv_and_b32 v{B+5}, 0xffff0000, v{bb}\nv_lshlrev_b32 v{B+6}, 16, v{bb+1}\nv_and_b32 v{B+7}, 0xffff0000, v{bb+1}")
            for e in range(4):
                a(f"v_add_f32 v{B+e}, v{B+e}, v{B+8+e}")
            w2x()
            for e in range(4):
                a(f"v_add_f32 v{B+e}, v{B+e}, v{B+4+e}")
            for e in range(4):
                a(f"v_mul_f32 v{B+4+e}, v{B+e}, v{B+e}\nv_mov_b32 v{B+8+e}, s85")
            w2x()
            for e in range(4):
                a(f"v_fmac_f32 v{B+8+e}, s84, v{B+4+e}")
            for e in range(4):
                a(f"v_mul_f32 v{B+8+e}, v{B+8+e}, v{B+e}")
            for e in range(4):
                a(f"v_exp_f32 v{B+8+e}, v{B+8+e}")
            w2x()
            for e in range(4):
                a(f"v_add_f32 v{B+8+e}, 1.0, v{B+8+e}")
            for e in range(4):
                a(f"v_rcp_f32 v{B+8+e}, v{B+8+e}")
            for e in range(4):
                a(f"v_mul_f32 v{B+e}, v{B+e}, v{B+8+e}")
            a(f"v_cvt_pk_bf16_f32 v{B+4}, v{B}, v{B+1}\nv_cvt_pk_bf16_f32 v{B+5}, v{B+2}, v{B+3}")
            if INB:
                a(f"v_mov_b32_dpp v{B+6}, v{B+4} quad_perm:[1,0,3,2] row_mask:0xf bank_mask:0xf")
                a(f"v_mov_b32_dpp v{B+7}, v{B+5} quad_perm:[1,0,3,2] row_mask:0xf bank_mask:0xf")
                a("s_mov_b32 exec_lo, 0x55555555\ns_mov_b32 exec_hi, 0x55555555")
                a(f"buffer_store_dwordx4 v[{B+4}:{B+7}], v11, {SRD_WS}, s{80+i} offen sc1", tag="Ust")
                a("s_mov_b64 exec, -1")
            else:
                a(f"buffer_store_dwordx2 v[{B+4}:{B+5}], v11, {SRD_WS}, s{80+i} offen sc1", tag="Ust")
        while nw2 < (36 if "udrain" in OPT else 20):
            w2_text.append(w2(nw2)); nw2 += 1
        if INB:
            a("s_barrier")
        else:
            a.wait_tag("Ust")
            g.publish(PH_U)
    a.label(skip, reset=False)
    lt = g.lab("tl")
    g.tails.append((other, skip, [f"s_cmp_eq_u32 {sL}, 0\ns_cbranch_scc0 {lt}\n" + warmup_text(SRD_W2P, "v60") + "\n" + x2_touch_text() + f"\n@{lt}"] + w2_text))
    for i in range(20, 36) if "udrain" not in OPT else ():
        w2_dma(g, i >> 2, i & 3)
    a.wait_tag("D2_0")
    w2_tr(g, 0, 5)
    a("s_waitcnt lgkmcnt(0)")
    for i in range(36, 44):
        w2_dma(g, i >> 2, i & 3)


def mix2(g):
    a = g.a
    a.c("======== token mixing 2: x += (u W2 + b2)^T")
    g.srd(32, P_B2, 4096)
    a(f"v_lshrrev_b32 v10, 3, v0\ns_lshl_b32 s72, {sR}, 7\nv_lshl_add_u32 v11, v10, 1, s72")
    a(f"buffer_load_ushort v12, v11, {SRD_T}, 0 offen\nbuffer_load_ushort v13, v11, {SRD_T}, 0 offen offset:64")
    a(f"s_mul_i32 s72, {sCQ}, {UC}\ns_lshl_b32 s73, {sL}, 21\ns_add_u32 s72, s72, s73\ns_add_u32 s72, s72, {WS_U}")
    g.srd(24, P_WS, UC, "s72")
    if INB:
        a(f"s_mul_i32 s85, {sWV}, {11*4096}\nv_lshlrev_b32 v9, 8, v1\nv_add_u32 v9, 240, v9")
        a(f"s_add_u32 s43, s85, 16384\ns_add_u32 s48, s85, 32768\ns_mov_b32 {sREDO}, 0")
        a("v_cmp_gt_u32 vcc, 48, v1\nv_mov_b32 v8, 0x7ff00000\nv_cndmask_b32 v8, v8, v9, vcc")
        redo = g.lab("m2r")
        a.label(redo, reset=False)
        sentinel(g, [("v9", "s85"), ("v9", "s43"), ("v8", "s48")], SRD_U)
        a(f"s_mov_b64 {sACC}, 0")
    else:
        u_producers(g, "v9", 0)
        g.vflag("v9", PH_U)
        g.poll("v9", "0xff")
    g.stamp(17)
    UB, ACC, UD = 64, 192, 14
    a(f"s_mul_i32 s85, {sWV}, {11*4096}")

    def uload(i):
        st, dt = i >> 2, i & 3
        a(f"s_add_u32 s72, s85, {st*4096}")
        a(f"buffer_load_dwordx4 {vr(UB + 4*i)}, v2, {SRD_U}, s72 offen offset:{dt*1024} sc1")
    for i in range(UD):
        uload(i)
    a.wait_tag("D2_5")
    w2_tr(g, 5, 9)
    a.wait_tag("D2_9")
    w2_tr(g, 9, 11)
    for st in range(11):
        for dt in range(4):
            for k in range(4):
                acc = ACC + (dt*4 + k) * 4
                c = "0" if st == 0 else ar(acc)
                a(f"v_mfma_f32_16x16x32_bf16 {ar(acc)}, {vr(UB + (st*4+dt)*4)}, {ar((st*4+k)*4)}, {c}")
                if INB and k == 0:
                    a(f"v_cmp_eq_u32 vcc, -1, v{UB + (st*4+dt)*4}\ns_or_b64 {sACC}, {sACC}, vcc")
                if k == 1 and st*4 + dt + UD < 44:
                    uload(st*4 + dt + UD)
    if INB:
        redo_end(g, redo)
    g.stamp(18)
    a("v_and_b32 v3, 15, v1\nv_lshrrev_b32 v4, 4, v1\nv_and_b32 v5, 7, v1")
    a(f"s_lshl_b32 s72, {sWV}, 14")
    for dt in range(4):
        a(f"v_add_u32 v6, {4*dt}, v4\nv_xor_b32 v6, v6, v5\nv_lshlrev_b32 v6, 4, v6\nv_lshl_add_u32 v6, v3, 8, v6\nv_add_u32 v{14+dt}, s72, v6")
    for dt in range(4):
        for k in range(4):
            a(f"ds_write_b128 v{14+dt}, {ar(ACC + (dt*4+k)*4)} offset:{L_X + k*4096}")
    a("s_waitcnt lgkmcnt(0)\ns_barrier")
    a("v_and_b32 v3, 7, v0\nv_and_b32 v4, 7, v10\nv_lshlrev_b32 v5, 1, v3")
    for e in range(2):
        a(f"v_add_u32 v6, {e}, v5\nv_xor_b32 v6, v6, v4\nv_lshlrev_b32 v6, 4, v6\nv_lshl_add_u32 v{18+e}, v10, 8, v6")
    a(f"v_mul_u32_u24 v20, 144, v10\nv_lshl_add_u32 v20, v3, 4, v20\nv_add_u32 v20, {L_R}, v20")
    a(f"v_lshlrev_b32 v21, 10, v10\nv_lshl_add_u32 v21, v3, 4, v21")
    a(f"s_lshl_b32 s72, {sR}, 16\ns_lshl_b32 s73, {sCQ}, 7\ns_add_u32 s72, s72, s73")
    for half in range(2):
        B = 64 + half * 48
        for k in range(4):
            for e in range(2):
                a(f"ds_read_b128 {vr(B + k*8 + e*4)}, v{18+e} offset:{L_X + k*16384 + half*8192}")
        a(f"ds_read_b128 {vr(B+32)}, v20 offset:{half*4608}")
    def epilogue(first):
        ring = []
        if first:
            g.q_addr_w(46)
            g.w_dma_setup("s80", "s81", "s82")
            ring = [(s_, n) for s_ in range(5) for n in range(4)]

        def ringdma(k=1):
            for _ in range(k):
                if ring:
                    s_, n = ring.pop(0)
                    g.w_dma(s_, only=n, sg="s80", sl="s81", st="s82", va="v46")
        for half in range(2):
            B = 64 + half * 48
            a(f"v_lshlrev_b32 v22, 16, v{12+half}")
            for i in range(8):
                a(f"v_add_f32 v{B+i}, v{B+i}, v{B+8+i}\nv_add_f32 v{B+16+i}, v{B+16+i}, v{B+24+i}")
                if i % 2 == 1:
                    ringdma()
            for i in range(8):
                a(f"v_add_f32 v{B+i}, v{B+i}, v{B+16+i}")
            ringdma()
            for i in range(8):
                a(f"v_add_f32 v{B+i}, v{B+i}, v22")
            ringdma()
            for k in range(4):
                a(f"v_lshlrev_b32 v{B+8+2*k}, 16, v{B+32+k}\nv_and_b32 v{B+9+2*k}, 0xffff0000, v{B+32+k}")
            ringdma()
            for i in range(8):
                a(f"v_add_f32 v{B+i}, v{B+i}, v{B+8+i}")
            ringdma()
            for k in range(4):
                a(f"v_cvt_pk_bf16_f32 v{B+36+k}, v{B+2*k}, v{B+2*k+1}")
            if first:
                a(f"ds_write_b128 v20, {vr(B+36)} offset:{half*4608}")
                g.dual(lambda m, B=B: a(f"buffer_store_dwordx4 {vr(B+36)}, v21, {SRD_DST}, s72 offen {m}", tag="Xst"))
            else:
                om = "" if "outplain" in OPT else "sc1"
                a(f"buffer_store_dwordx4 {vr(B+36)}, v21, {SRD_DST}, s72 offen {om}")
            if half == 0:
                a("s_add_u32 s72, s72, 32768")
            if first:
                a(f"v_add_f32 v{B+40}, v{B}, v{B+1}\nv_mul_f32 v{B+41}, v{B}, v{B}\nv_fmac_f32 v{B+41}, v{B+1}, v{B+1}")
                for i in range(2, 8):
                    a(f"v_add_f32 v{B+40}, v{B+40}, v{B+i}\nv_fmac_f32 v{B+41}, v{B+i}, v{B+i}")
                ringdma(2)
        if first:
            ringdma(20)
            a("v_mov_b32 v12, v46")
            g.row_stats_store([104, 152], 1, local=True)
    l0 = g.lab("ep0")
    a(f"s_cmp_eq_u32 {sL}, 0\ns_cbranch_scc1 {l0}")
    a.fork()
    epilogue(False)
    g.stamp(19)
    a("s_waitcnt vmcnt(0)\ns_endpgm")
    a.label(l0, reset=False)
    a.alt()
    epilogue(True)
    a.dropfork()


def drain(g, tag, n, sreg, val):
    a = g.a
    lw = g.lab("dr")
    a(f"s_cmp_eq_u32 {sreg}, {val}\ns_cbranch_scc1 {lw}")
    a.raw("  s_waitcnt vmcnt(0)")
    a.label(lw, reset=False)
    a.raw(f"  s_waitcnt vmcnt({n})")
    a.wait_tag(tag, emit=False)


def o_drain_publish(g):
    a = g.a
    drain(g, "Ost", 6, sL, 0)
    g.publish(PH_O, local=True, also=PH_PD if INB else None)


def rest(g):
    a = g.a
    g.tails = []
    attn_setup(g)
    g.stamp(5)
    attn(g)
    a("s_barrier")
    l0_only(g, "l0p", lambda: p1_finish(g))
    o_drain_publish(g)
    g.stamp(9)
    if g.stop("a"):
        return finish(g)
    o_flags(g)
    oproj(g)
    early_w1(g, 28, 40)
    if not INB:
        drain(g, "Hst", 12, sM1, 1)
        g.publish(PH_H)
    g.stamp(13)
    if g.stop("o"):
        return finish(g)
    m1_only(g, lambda: w1_loads(g, 40, 48))
    mix1(g)
    g.stamp(16)
    if g.stop("m1"):
        return finish(g)
    mix2(g)
    g.stamp(19)
    if g.stop("m2"):
        return finish(g)
    g.srd(4, P_WS, 2 << 20, WS_X2)
    g.srd(20, P_OUT, 2 << 20)
    a(f"s_mov_b32 {sL}, 1")
    a("s_waitcnt lgkmcnt(0)")
    g.q_entry(1)
    g.kv_pass(False)
    g.kv_epilogue_l1()
    a("s_branch L_kvstored")
    finish(g)


def finish(g):
    a = g.a
    a("s_branch L_end")
    a.assume_clean()
    for stub, back, always in g.stubs:
        a.label(stub, reset=False)
        a("s_nop 7")
        for x in always:
            a(x)
        a(f"s_nop 11\ns_branch {back}")
        a.assume_clean()
    for lab, back, texts in g.tails:
        a.label(lab, reset=False)
        for x in texts:
            for line in x.split("\n"):
                if line.startswith("@"):
                    a.label(line[1:], reset=False)
                else:
                    a(line)
        a(f"s_branch {back}")
        a.assume_clean()
```

```python
import os, sys
OPT = set(os.environ.get("KOPT", "").split(","))
sys.path.insert(0, "tools")
from asmfw import Asm

KNAME = "interleave_layers__sliding_block__mixer_token_mlp__prompt_kernel"

WS_EPOCH = 0x0
WS_FLAG = 0x1000
WS_ST = 0x80000
WS_KV = 0x100000
WS_OF = 0x900000
WS_H = 0xD00000
WS_U = 0x1100000
WS_X2 = 0x1500000
WS_W1P = 0x1700000
WS_W2P = 0x1D00000
WS_ST2 = 0x2300000
WS_XC = 0x2380000
WS_DIAG = 0x2400000
WS_SIZE = 0x4000000
UC = 43 * 4096
PH_KV, PH_O, PH_H, PH_U, PH_X, PH_P, PH_PD = range(7)

L_X = 0
L_RING = 65536
L_R = 147456
L_MISC = 156672
L_SP = L_MISC
L_CP = L_MISC + 1024
L_MR = L_MISC + 2560
LDS_SIZE = 163840

SRD_X, SRD_WQ, SRD_WO, SRD_WS = "s[4:7]", "s[8:11]", "s[12:15]", "s[16:19]"
SRD_DST, SRD_U, SRD_W2P, SRD_T = "s[20:23]", "s[24:27]", "s[28:31]", "s[32:35]"
P_X, P_WQ, P_WO, P_W1, P_B1, P_W2, P_B2, P_OUT, P_DBG, P_WS = 36, 38, 40, 44, 46, 48, 50, 52, 54, 56
sR, sCQ, sWV, sL = "s58", "s59", "s60", "s61"
sN, sNN, sNP = "s62", "s63", "s[62:63]"
sC1, sJ1, sM1 = "s64", "s65", "s66"
sP, sTB, sB = "s67", "s68", "s69"
sCNT = "s100"
sFAST = "s0"
SRD_W1 = "s[96:99]"
POLL_LIMIT = 400000

LOG2E = 1.4426950408889634


def f32(x):
    import struct
    return "0x%08x" % struct.unpack("<I", struct.pack("<f", x))[0]


class Gen:
    def __init__(self, stop_after=None, diag=False):
        self.a = Asm()
        self.stop_after = stop_after
        self.diag = diag
        self.uid = 0
        self.stubs = []
        self.nstamp = 0

    def lab(self, base):
        self.uid += 1
        return f"L_{base}_{self.uid}"

    def srd(self, name, ptr, size, off=None):
        a = self.a
        if off is None:
            a(f"s_mov_b32 s{name}, s{ptr}\ns_mov_b32 s{name+1}, s{ptr+1}")
        else:
            a(f"s_add_u32 s{name}, s{ptr}, {off}\ns_addc_u32 s{name+1}, s{ptr+1}, 0")
        a(f"s_mov_b32 s{name+2}, {size}\ns_mov_b32 s{name+3}, 0x20000")

    def stamp(self, idx):
        if not self.diag:
            return
        a = self.a
        skip = self.lab("st")
        a(f"s_memrealtime s[92:93]\ns_waitcnt lgkmcnt(0)")
        a(f"s_cmp_eq_u32 {sWV}, 0\ns_cbranch_scc0 {skip}")
        with a.cond(skip):
            a(f"s_lshl_b32 s94, s2, 8\ns_lshl_b32 s95, {sL}, 7\ns_add_u32 s94, s94, s95\ns_add_u32 s94, s94, {WS_DIAG + idx*4}")
            a("v_mov_b32 v62, s92\nv_mov_b32 v63, s94\ns_mov_b64 exec, 1")
            a(f"buffer_store_dword v62, v63, {SRD_WS}, 0 offen")
            a("s_mov_b64 exec, -1")
        a.label(skip, reset=False)

    def flag_addr(self, dst, phase, wg):
        a = self.a
        a(f"s_lshl_b32 {dst}, {sL}, 8\ns_add_u32 {dst}, {dst}, {wg}\ns_lshl_b32 {dst}, {dst}, 7")
        a(f"s_add_u32 {dst}, {dst}, {WS_FLAG + phase*2*256*128}")

    def dual(self, fn, sel=sFAST):
        a = self.a
        slow, j = self.lab("slow"), self.lab("dj")
        a(f"s_cmp_eq_u32 {sel}, 0\ns_cbranch_scc1 {slow}")
        a.fork()
        fn("")
        a(f"s_branch {j}")
        a.label(slow, reset=False)
        a.alt()
        fn("sc1")
        a.endfork()
        a.label(j, reset=False)

    def publish(self, phase, wg="s2", also=None, local=False):
        a = self.a
        skip = self.lab("pub")
        a("s_barrier")
        a(f"s_cmp_eq_u32 {sWV}, 0\ns_cbranch_scc0 {skip}")
        with a.cond(skip):
            self.flag_addr("s70", phase, wg)
            a(f"v_mov_b32 v4, {sN}\nv_mov_b32 v5, {sNN}\nv_mov_b32 v6, s70\ns_mov_b64 exec, 1")
            if local:
                self.dual(lambda m: a(f"buffer_store_dwordx2 v[4:5], v6, {SRD_WS}, 0 offen {m}"))
            else:
                a(f"buffer_store_dwordx2 v[4:5], v6, {SRD_WS}, 0 offen sc1")
            if also is not None:
                self.flag_addr("s70", also, wg)
                a(f"v_mov_b32 v6, s70\nbuffer_store_dwordx2 v[4:5], v6, {SRD_WS}, 0 offen sc1")
            a("s_mov_b64 exec, -1")
        a.label(skip, reset=False)

    def flag_store(self, phase):
        a = self.a
        skip = self.lab("fs")
        a(f"s_cmp_eq_u32 {sWV}, 0\ns_cbranch_scc0 {skip}")
        with a.cond(skip):
            self.flag_addr("s78", phase, "s2")
            a(f"v_mov_b32 v4, {sN}\nv_mov_b32 v5, {sNN}\nv_mov_b32 v6, s78\ns_mov_b64 exec, 1")
            a(f"buffer_store_dwordx2 v[4:5], v6, {SRD_WS}, 0 offen sc1")
            a("s_mov_b64 exec, -1")
        a.label(skip, reset=False)

    def poll(self, vaddr, mask):
        a = self.a
        top, ok = self.lab("poll"), self.lab("pok")
        a(f"s_mov_b64 exec, {mask}\ns_mov_b32 {sCNT}, 0")
        a(f"s_cbranch_execz {ok}")
        a.label(top, reset=False)
        with a.cond(top):
            a(f"buffer_load_dwordx2 v[4:5], {vaddr}, {SRD_WS}, 0 offen sc1")
            a("s_waitcnt vmcnt(0)")
            a(f"v_cmp_ne_u64 vcc, {sNP}, v[4:5]")
            a(f"s_cbranch_vccz {ok}")
            for o in OPT:
                if o.startswith("sleep"):
                    a(f"s_sleep {o[5:]}")
            a(f"s_add_u32 {sCNT}, {sCNT}, 1\ns_cmp_lt_u32 {sCNT}, {POLL_LIMIT}\ns_cbranch_scc1 {top}")
            a("s_branch L_fail")
        a.label(ok, reset=False)
        a("s_mov_b64 exec, -1")

    def wg_of(self, dst, r, cq):
        a = self.a
        a(f"v_and_b32 {dst}, 3, {r}\nv_lshlrev_b32 {dst}, 3, {dst}\nv_add_u32 {dst}, {cq}, {dst}\nv_lshlrev_b32 {dst}, 3, {dst}")
        a(f"v_lshrrev_b32 v7, 2, {r}\nv_add_u32 {dst}, {dst}, v7")

    def vflag(self, dst, phase):
        a = self.a
        a(f"s_lshl_b32 s70, {sL}, 15\ns_add_u32 s70, s70, {WS_FLAG + phase*2*256*128}")
        a(f"v_lshlrev_b32 {dst}, 7, {dst}\nv_add_u32 {dst}, s70, {dst}")

    def row_stats_store(self, sums, layer, local=False):
        a = self.a
        for ctl in ("quad_perm:[1,0,3,2]", "quad_perm:[2,3,0,1]", "row_half_mirror"):
            for r0 in sums:
                for k in range(2):
                    a(f"v_add_f32_dpp v{r0+k}, v{r0+k}, v{r0+k} {ctl} row_mask:0xf bank_mask:0xf")
        for r0 in sums:
            a(f"v_mov_b32 v{r0+2}, {sN}\nv_mov_b32 v{r0+3}, {sNN}")
        if isinstance(layer, int):
            a(f"s_add_u32 s72, {sR}, {layer*32}")
        else:
            a(f"s_lshl_b32 s72, {layer}, 5\ns_add_u32 s72, s72, {sR}")
        a(f"s_lshl_b32 s72, s72, 3\ns_add_u32 s72, s72, {sCQ}\ns_lshl_b32 s72, s72, 10\ns_add_u32 s72, s72, {WS_ST2}")
        a("v_lshrrev_b32 v3, 3, v0\nv_lshlrev_b32 v3, 4, v3\nv_and_b32 v4, 7, v0\nv_cmp_eq_u32 vcc, 0, v4\ns_mov_b64 exec, vcc")
        def st(m):
            for i, r0 in enumerate(sums):
                a(f"buffer_store_dwordx4 v[{r0}:{r0+3}], v3, {SRD_WS}, s72 offen offset:{i*512} {m}")
        if local:
            self.dual(st)
        else:
            st("sc1")
        a("s_mov_b64 exec, -1")

    def stop(self, name):
        if self.stop_after == name:
            self.a("s_waitcnt vmcnt(0) lgkmcnt(0)\ns_branch L_end")
            self.a.assume_clean()
            return True
        return False

    def prologue(self):
        a = self.a
        a("s_cmp_ge_u32 s2, 256\ns_cbranch_scc1 L_end")
        a("s_load_dwordx16 s[36:51], s[0:1], 0\ns_load_dwordx4 s[52:55], s[0:1], 64\ns_load_dwordx2 s[56:57], s[0:1], 80")
        a("v_and_b32 v1, 63, v0\nv_lshlrev_b32 v2, 4, v1\nv_lshrrev_b32 v3, 6, v0")
        a(f"v_readfirstlane_b32 {sWV}, v3")
        a(f"s_and_b32 s70, s2, 7\ns_lshr_b32 s71, s2, 3")
        a(f"s_lshr_b32 s72, s71, 3\ns_lshl_b32 {sR}, s70, 2\ns_add_u32 {sR}, {sR}, s72\ns_and_b32 {sCQ}, s71, 7")
        a(f"s_and_b32 s72, s70, 1\ns_lshl_b32 s72, s72, 2\ns_and_b32 s73, s71, 3\ns_add_u32 {sC1}, s72, s73")
        a("s_lshr_b32 s72, s70, 1\ns_lshr_b32 s73, s71, 2")
        a("s_mul_i32 s74, s72, 7\ns_min_u32 s75, s72, 1\ns_add_u32 s74, s74, s75")
        a(f"s_add_u32 {sJ1}, s74, s73")
        a("s_cmp_eq_u32 s72, 0\ns_cselect_b32 s75, 8, 7")
        a(f"s_cmp_lt_u32 s73, s75\ns_cselect_b32 {sM1}, 1, 0")
        a(f"s_and_b32 {sP}, {sWV}, 1\ns_lshr_b32 {sTB}, {sWV}, 1\ns_xor_b32 {sB}, {sP}, {sTB}")
        a(f"s_mov_b32 {sL}, 0")
        a("s_waitcnt lgkmcnt(0)")
        self.srd(4, P_X, 2 << 20)
        self.srd(8, P_WQ, 512 * 1536 * 2)
        self.srd(12, P_WO, 512 * 512 * 2)
        self.srd(16, P_WS, WS_SIZE)
        self.srd(28, P_W2, 1376 * 4096)
        self.srd(96, P_W1, 2048 * 2752)
        self.srd(20, P_WS, 2 << 20, WS_X2)
        a(f"v_mov_b32 v3, {WS_EPOCH}")
        a(f"buffer_load_dword v250, v3, {SRD_WS}, 0 offen sc1")
        a("v_lshrrev_b32 v3, 3, v0\nv_and_b32 v4, 7, v0")
        a(f"s_lshl_b32 s70, {sR}, 16\ns_lshl_b32 s71, {sCQ}, 7\ns_add_u32 s70, s70, s71")
        a("v_lshlrev_b32 v5, 10, v3\nv_lshl_add_u32 v5, v4, 4, v5")
        a(f"buffer_load_dwordx4 v[240:243], v5, {SRD_X}, s70 offen")
        a("s_add_u32 s70, s70, 32768")
        a(f"buffer_load_dwordx4 v[244:247], v5, {SRD_X}, s70 offen")

    def prologue_tail(self):
        a = self.a
        a(f"v_lshlrev_b32 v3, 21, v1\ns_mov_b64 exec, 0x3ffff\nbuffer_load_dword v251, v3, {SRD_WS}, 0 offen\ns_mov_b64 exec, -1")
        if "tlb" in OPT:
            a(f"s_mov_b64 exec, 7\nbuffer_load_dword v253, v3, {SRD_W1}, 0 offen\nbuffer_load_dword v254, v3, {SRD_W2P}, 0 offen\ns_mov_b64 exec, 1")
            self.srd(32, P_OUT, 2 << 20)
            a(f"buffer_load_dword v255, v3, {SRD_T}, 0 offen")
            self.srd(32, P_B1, 2752)
            a(f"buffer_load_dword v249, v3, {SRD_T}, 0 offen")
            self.srd(32, P_B2, 4096)
            a(f"buffer_load_dword v248, v3, {SRD_T}, 0 offen\ns_mov_b64 exec, -1")
        a(f"s_lshl_b32 s72, s2, 2\ns_add_u32 s72, s72, {sWV}\ns_lshl_b32 s72, s72, 9\nv_lshlrev_b32 v3, 7, v1")
        a(f"s_mov_b64 exec, 0xf\nbuffer_load_dword v252, v3, {SRD_WO}, s72 offen\ns_mov_b64 exec, -1")
        if "nocode" not in OPT:
            a("s_getpc_b64 s[32:33]")
            a.label("L_pc", reset=False)
            a(f"s_sub_u32 s32, s32, L_pc-{KNAME}\ns_subb_u32 s33, s33, 0\ns_mov_b32 s34, L_code_end-{KNAME}\ns_mov_b32 s35, 0x20000")
            a(f"s_lshr_b32 s72, s2, 3\ns_lshl_b32 s72, s72, 2\ns_add_u32 s72, s72, {sWV}\ns_mul_i32 s72, s72, 640")
            a(f"s_mov_b64 exec, 0x1f\nbuffer_load_dword v249, v3, {SRD_T}, s72 offen\ns_mov_b64 exec, -1")
        a("v_lshrrev_b32 v3, 3, v0\nv_and_b32 v4, 7, v0")
        a("v_mul_u32_u24 v6, 144, v3\nv_lshl_add_u32 v6, v4, 4, v6")
        a(f"v_add_u32 v6, {L_R}, v6")
        a(f"v_readfirstlane_b32 {sN}, v250")
        a(f"s_add_u32 {sN}, {sN}, 1\ns_not_b32 {sNN}, {sN}")
        a("ds_write_b128 v6, v[240:243]\nds_write_b128 v6, v[244:247] offset:4608")
        for h, (src, dst) in enumerate(((240, 232), (244, 236))):
            a(f"v_mov_b32 v{dst}, 0\nv_mov_b32 v{dst+1}, 0")
            for k in range(4):
                a(f"v_lshlrev_b32 v8, 16, v{src+k}\nv_and_b32 v9, 0xffff0000, v{src+k}")
                a(f"v_add_f32 v{dst}, v{dst}, v8\nv_fmac_f32 v{dst+1}, v8, v8\nv_add_f32 v{dst}, v{dst}, v9\nv_fmac_f32 v{dst+1}, v9, v9")
        self.row_stats_store([232, 236], 0)
        a(f"s_getreg_b32 s72, hwreg(HW_REG_XCC_ID)\ns_and_b32 s1, s72, 15\ns_mov_b32 {sFAST}, 0")
        a(f"s_lshl_b32 s72, {sR}, 3\ns_add_u32 s72, s72, {sCQ}\ns_lshl_b32 s72, s72, 4\ns_add_u32 s72, s72, {WS_XC}")
        a(f"v_mov_b32 v232, s1\nv_mov_b32 v233, 0\nv_mov_b32 v234, {sN}\nv_mov_b32 v235, {sNN}\nv_mov_b32 v3, s72")
        sk = self.lab("xc")
        a(f"s_cmp_eq_u32 {sWV}, 0\ns_cbranch_scc0 {sk}")
        with a.cond(sk):
            a(f"s_mov_b64 exec, 1\nbuffer_store_dwordx4 v[232:235], v3, {SRD_WS}, 0 offen sc1\ns_mov_b64 exec, -1")
        a.label(sk, reset=False)

    def w_dma(self, s, only=None, sg="s70", sl="s71", st="s72", va="v12"):
        a = self.a
        slot = L_RING + (s % 5) * 16384
        for n in range(4):
            if only is not None and n != only:
                continue
            if s < 8:
                part = n >> 1
                krow = 64 * s + (n & 1) * 32
                col = 1024 * (1 + part)
                lds = slot + part * 8192 + (n & 1) * 4096
            else:
                krow = 128 * (s - 8) + 32 * n
                col = 0
                lds = slot + n * 4096
            a(f"s_add_u32 m0, {sl}, {lds}\ns_add_u32 {st}, {sg}, {krow*3072 + col}")
            a(f"buffer_load_dwordx4 {va}, {SRD_WQ}, {st} offen lds", tag=f"W{s}")

    def w_dma_setup(self, sg="s70", sl="s71", st="s72"):
        a = self.a
        a(f"s_mul_i32 {sg}, {sWV}, {8*3072}\ns_lshl_b32 {st}, {sCQ}, 7\ns_add_u32 {sg}, {sg}, {st}\ns_lshl_b32 {sl}, {sWV}, 10")

    def q_addr_w(self, dst=12):
        a = self.a
        a(f"v_lshrrev_b32 v3, 3, v1\nv_mul_u32_u24 v{dst}, 3072, v3\nv_bfe_u32 v4, v1, 4, 1\nv_lshlrev_b32 v4, 2, v4")
        a(f"v_and_b32 v5, 7, v1\nv_xor_b32 v5, v5, v4\nv_lshl_add_u32 v{dst}, v5, 4, v{dst}")

    def q_addr_x(self):
        a = self.a
        a("v_lshrrev_b32 v3, 3, v1")
        for e in range(2):
            a(f"s_lshl_b32 s72, {sWV}, 4\ns_add_u32 s72, s72, {8*e}\nv_add_u32 v6, s72, v3")
            a(f"v_bfe_u32 v7, v6, 1, 3\nv_and_b32 v5, 7, v1\nv_xor_b32 v5, v5, v7\nv_lshlrev_b32 v6, 10, v6\nv_lshl_add_u32 v{10+e}, v5, 4, v6")

    def q_addr(self):
        self.q_addr_w()
        self.q_addr_x()
        self.w_dma_setup()

    def q_addr2(self):
        a = self.a
        a(f"v_and_b32 v3, 31, v1\ns_lshl_b32 s72, {sTB}, 5\nv_add_u32 v3, s72, v3\nv_bfe_u32 v4, v3, 1, 3\nv_lshrrev_b32 v5, 5, v1")
        for k in range(4):
            a(f"s_xor_b32 s72, {sB}, {k}\ns_lshl_b32 s72, s72, 1\nv_add_u32 v6, s72, v5\nv_xor_b32 v6, v6, v4")
            a(f"v_lshlrev_b32 v6, 4, v6\nv_lshl_add_u32 v{13+k}, v3, 7, v6")
        a("v_and_b32 v3, 15, v1\nv_lshrrev_b32 v4, 2, v3\nv_lshrrev_b32 v5, 5, v1\nv_lshl_add_u32 v4, v5, 3, v4")
        a(f"v_bfe_u32 v5, v1, 4, 1\nv_lshlrev_b32 v5, 1, v5\nv_bfe_u32 v6, v1, 1, 1\nv_add_u32 v5, v5, v6")
        a(f"s_lshl_b32 s72, {sP}, 2\nv_add_u32 v5, s72, v5\nv_bfe_u32 v6, v1, 3, 1\nv_lshlrev_b32 v6, 2, v6\nv_xor_b32 v5, v5, v6")
        a("v_lshlrev_b32 v5, 4, v5\nv_lshl_add_u32 v5, v4, 7, v5\nv_and_b32 v6, 1, v1\nv_lshl_add_u32 v5, v6, 3, v5")
        for e in range(2):
            a(f"s_xor_b32 s72, {sB}, {e}\ns_lshl_b32 s72, s72, 11\ns_add_u32 s72, s72, {L_RING}")
            a(f"v_add_u32 v{17+e}, s72, v5\nv_add_u32 v{19+e}, 49152, v{17+e}")
        a("v_mov_b32 v21, 0\nv_mov_b32 v24, 0\nv_mov_b32 v25, 0")
        a("s_mov_b32 s74, 0x3f803f80")
        a(f"s_lshl_b32 s72, {sL}, 5\ns_add_u32 s72, s72, {sR}\ns_lshl_b32 s75, s72, 13\ns_add_u32 s75, s75, {WS_ST2}")
        a(f"v_and_b32 v3, 31, v1\ns_lshl_b32 s72, {sTB}, 5\nv_add_u32 v3, s72, v3\nv_lshlrev_b32 v3, 4, v3\nv_lshrrev_b32 v4, 5, v1\nv_lshl_add_u32 v61, v4, 12, v3")

    def x_dma(self, kc):
        a = self.a
        for e in range(2):
            a(f"s_add_u32 m0, s77, {L_X + kc*8192 + e*1024}\ns_add_u32 s72, s76, {kc*128}")
            a(f"buffer_load_dwordx4 v{10+e}, {SRD_X}, s72 offen sc1 lds", tag=f"X{kc}")

    def q_entry(self, layer):
        a = self.a
        a.c(f"======== QKV phase entry, layer {layer}")
        if layer == 0:
            self.q_addr()
        else:
            self.q_addr_x()
        a(f"s_lshl_b32 s76, {sR}, 16\ns_lshl_b32 s77, {sWV}, 11")
        if layer == 0:
            for s_ in range(5):
                self.w_dma(s_)
                self.x_dma(s_)
            for kc in range(5, 8):
                self.x_dma(kc)
            self.stamp(0)
            self.prologue_tail()
            self.q_addr2()
            self.stamp(1)
        else:
            self.q_addr2()
            a(f"v_mov_b32 v8, {sR}")
            a(f"v_and_b32 v9, 3, v8\nv_lshlrev_b32 v9, 3, v9\nv_add_u32 v9, v1, v9\nv_lshlrev_b32 v9, 3, v9")
            a(f"v_lshrrev_b32 v7, 2, v8\nv_add_u32 v9, v9, v7")
            a(f"v_lshlrev_b32 v9, 7, v9\nv_add_u32 v9, {WS_FLAG + PH_X*2*256*128}, v9")
            self.stamp(0)
            a.wait_tag("Xst")
            a(f"s_mov_b32 {sL}, 0")
            self.publish(PH_X, local=True)
            a(f"s_mov_b32 {sL}, 1")
            self.stat_loads()
            a("v_mov_b32 v30, v9")
            self.ln_init()
            self.poll("v30", "0xff")
            self.stamp(1)
            for kc in range(8):
                self.x_dma(kc)

    XF, WF, AK, AV, AQ = 64, 32, 192, 208, 224

    def row_stats(self):
        a = self.a
        top, ok = self.lab("s2p"), self.lab("s2o")
        a(f"s_mov_b32 {sCNT}, 0")
        a.label(top, reset=False)
        a(f"v_cmp_ne_u64 vcc, {sNP}, v[242:243]")
        for k in range(1, 4):
            a(f"v_cmp_ne_u64 s[72:73], {sNP}, v[{242+4*k}:{243+4*k}]\ns_or_b64 vcc, vcc, s[72:73]")
        a(f"s_cbranch_vccz {ok}")
        with a.cond(top):
            self.stat_loads()
            a("s_waitcnt vmcnt(0)")
            a(f"s_add_u32 {sCNT}, {sCNT}, 1\ns_cmp_lt_u32 {sCNT}, {POLL_LIMIT}\ns_cbranch_scc1 {top}\ns_branch L_fail")
        a.label(ok, reset=False)
        a("v_add_f32 v26, v240, v244\nv_add_f32 v27, v241, v245\nv_add_f32 v28, v248, v252\nv_add_f32 v29, v249, v253")
        a("v_add_f32 v26, v26, v28\nv_add_f32 v27, v27, v29\nv_mov_b32 v28, v26\nv_mov_b32 v29, v27")
        a("v_permlane32_swap_b32 v26, v28\nv_permlane32_swap_b32 v27, v29\nv_add_f32 v26, v26, v28\nv_add_f32 v27, v27, v29")
        a(f"v_mul_f32 v26, {f32(1/512)}, v26\nv_mul_f32 v27, {f32(1/512)}, v27")
        a(f"v_fma_f32 v27, -v26, v26, v27\nv_max_f32 v27, 0, v27\nv_add_f32 v27, {f32(1e-5)}, v27\nv_rsq_f32 v27, v27")

    def ln_init(self):
        a = self.a
        AK, AV, AQ = self.AK, self.AV, self.AQ
        a("v_and_b32 v3, 31, v1\nv_lshrrev_b32 v5, 5, v1")
        a(f"s_mul_i32 s73, {sP}, 768\ns_add_u32 s73, s73, {L_CP}")
        a("v_lshl_add_u32 v56, v5, 4, s73\nv_lshl_add_u32 v57, v3, 2, s73")
        for part, dst in ((0, AK), (384, 32), (256, AQ), (384 + 256, AV)):
            for q in range(4):
                a(f"ds_read_b128 v[{dst+4*q}:{dst+4*q+3}], v56 offset:{part + 32*q}")
        a("ds_read_b32 v58, v57 offset:128\nds_read_b32 v59, v57 offset:512")
        self.row_stats()
        a(f"s_lshl_b32 s72, {sWV}, 8\ns_add_u32 s72, s72, {L_MR}\nv_lshl_add_u32 v4, v3, 2, s72")
        a("ds_write_b32 v4, v26\nds_write_b32 v4, v27 offset:128")
        a("v_lshl_add_u32 v60, v5, 4, s72")
        for i in range(16):
            a(f"v_add_f32 v{AK+i}, v{AK+i}, v{32+i}\nv_add_f32 v{AQ+i}, v{AQ+i}, v{AV+i}")
        a("v_add_f32 v58, v58, v59\ns_waitcnt lgkmcnt(0)")
        for q in range(4):
            a(f"ds_read_b128 v[{AV+4*q}:{AV+4*q+3}], v60 offset:{32*q}")
        for i in range(16):
            a(f"v_mul_f32 v{AK+i}, -v26, v{AK+i}\nv_mul_f32 v{AQ+i}, -v26, v{AQ+i}")
        for i in range(16):
            a(f"v_mul_f32 v{AV+i}, -v58, v{AV+i}")

    def waddr(self, s, e):
        slot = s % 5
        return (f"v{17+e}", slot * 16384) if slot < 3 else (f"v{19+e}", (slot - 3) * 16384)

    def stage_sync(self, s):
        a = self.a
        a.wait_tag(f"W{s}", f"X{s}") if s < 8 else a.wait_tag(f"W{s}")
        a("s_barrier")

    def stat_loads(self):
        for k in range(4):
            self.a(f"buffer_load_dwordx4 v[{240+4*k}:{243+4*k}], v61, {SRD_WS}, s75 offen offset:{k*1024} sc1")

    def kv_pass(self, first):
        a = self.a
        XF, WF, AK, AV = self.XF, self.WF, self.AK, self.AV
        a.c("======== K/V projection" + (" (layer 0)" if first else " (layer 1)"))

        def reads_kv(n, part=None):
            s, k = n >> 2, n & 3
            reg, off = self.waddr(s, k & 1)
            wf = WF + (n % 3) * 8
            for pt in range(2):
                if part is not None and pt != part:
                    continue
                if pt == 0:
                    a(f"ds_read_b128 v[{XF+4*n}:{XF+4*n+3}], v{13+k} offset:{L_X + s*8192}")
                for rd in range(2):
                    a(f"ds_read_b64_tr_b16 v[{wf+4*pt+2*rd}:{wf+4*pt+2*rd+1}], {reg} offset:{off + pt*8192 + (k >> 1)*4096 + rd*512}")
        self.w_dma_setup()
        self.stamp(20)
        self.stage_sync(0)
        self.stamp(21)
        reads_kv(0); reads_kv(1)
        for n in range(32):
            wf = WF + (n % 3) * 8
            x = f"v[{XF+4*n}:{XF+4*n+3}]"
            ck = "0" if n == 0 and first else f"v[{AK}:{AK+15}]"
            cv = "0" if n == 0 and first else f"v[{AV}:{AV+15}]"
            a(f"v_mfma_f32_32x32x16_bf16 v[{AK}:{AK+15}], v[{wf}:{wf+3}], {x}, {ck}")
            if n + 2 < 32:
                if (n + 2) % 4 == 0:
                    self.stage_sync((n + 2) >> 2)
                reads_kv(n + 2, 0)
            a(f"v_mfma_f32_32x32x16_bf16 v[{AV}:{AV+15}], {x}, v[{wf+4}:{wf+7}], {cv}")
            if n + 2 < 32:
                reads_kv(n + 2, 1)
            sfree = (n + 2) >> 2
            if n >= 6 and sfree + 3 < 11:
                self.w_dma(sfree + 3, only=(n + 2) & 3)
            if n == 24 and first:
                self.stat_loads()
            if n == 28 and not first:
                for q in range(4):
                    a(f"ds_read_b128 v[{240+4*q}:{243+4*q}], v60 offset:{128 + 32*q}")
            if first and n % 2 == 0:
                for i in range(4):
                    a(f"v_dot2c_f32_bf16 v24, s74, v{wf+i}\nv_dot2c_f32_bf16 v25, s74, v{wf+4+i}")

    def k_store(self):
        a = self.a
        AK = self.AK
        a(f"s_lshl_b32 s75, {sCQ}, 1\ns_add_u32 s75, s75, {sP}\ns_lshl_b32 s75, s75, 6\ns_lshl_b32 s76, {sR}, 1\ns_add_u32 s75, s75, s76")
        a(f"s_add_u32 s75, s75, {sTB}\ns_lshl_b32 s75, s75, 12\ns_lshl_b32 s76, {sL}, 22\ns_add_u32 s75, s75, s76\ns_add_u32 s75, s75, {WS_KV}")
        a(f"buffer_store_dwordx4 v[{AK}:{AK+3}], v2, {SRD_WS}, s75 offen sc1", tag="KVst")
        a(f"buffer_store_dwordx4 v[{AK+4}:{AK+7}], v2, {SRD_WS}, s75 offen offset:2048 sc1", tag="KVst")

    def v_store(self):
        a = self.a
        AV = self.AV
        a("v_bfe_u32 v3, v1, 4, 1\nv_lshlrev_b32 v3, 11, v3\nv_lshrrev_b32 v5, 5, v1\nv_lshl_add_u32 v3, v5, 8, v3")
        a("v_and_b32 v5, 15, v1\nv_lshl_add_u32 v3, v5, 4, v3")
        a(f"buffer_store_dwordx4 v[{AV}:{AV+3}], v3, {SRD_WS}, s75 offen offset:1024 sc1", tag="KVst")
        a(f"buffer_store_dwordx4 v[{AV+4}:{AV+7}], v3, {SRD_WS}, s75 offen offset:1536 sc1", tag="KVst")

    def kv_epilogue_l1(self):
        a = self.a
        AK, AV = self.AK, self.AV
        self.stamp(2)
        for i in range(16):
            a(f"v_mul_f32 v{AK+i}, v27, v{AK+i}")
        for k in range(8):
            a(f"v_cvt_pk_bf16_f32 v{AK+k}, v{AK+2*k}, v{AK+2*k+1}")
        self.k_store()
        for i in range(16):
            a(f"v_mul_f32 v{AV+i}, v{240+i}, v{AV+i}")
        for k in range(8):
            a(f"v_cvt_pk_bf16_f32 v{AV+k}, v{AV+2*k}, v{AV+2*k+1}")
        self.v_store()

    def q_phase(self):
        a = self.a
        XF, WF, AK, AV, AQ = self.XF, self.WF, self.AK, self.AV, self.AQ
        waddr, stage_sync, stat_loads = self.waddr, self.stage_sync, self.stat_loads
        a.label("L_kvdone", reset=False)
        self.stamp(2)
        a("v_and_b32 v3, 31, v1")
        a(f"s_lshl_b32 s72, {sP}, 1\ns_add_u32 s72, s72, {sTB}\ns_mul_i32 s72, s72, 384\ns_add_u32 s72, s72, {L_CP}")
        a("v_lshl_add_u32 v9, v3, 2, s72")
        sk = self.lab("cs")
        a(f"s_cmp_eq_u32 {sL}, 0\ns_cbranch_scc0 {sk}")
        with a.cond("l0"):
            a("v_mov_b32 v26, v24\nv_mov_b32 v27, v25\nv_permlane32_swap_b32 v24, v26\nv_permlane32_swap_b32 v25, v27")
            a("v_add_f32 v24, v24, v26\nv_add_f32 v25, v25, v27")
            a("ds_write_b32 v9, v24\nds_write_b32 v9, v25 offset:128")
            a("s_waitcnt lgkmcnt(0)")
        a.label(sk, reset=False)
        a("s_barrier")
        self.row_stats()
        a(f"s_mul_i32 s72, {sP}, 768\ns_add_u32 s72, s72, {L_CP}")
        a("v_lshrrev_b32 v5, 5, v1\nv_lshl_add_u32 v56, v5, 4, s72")
        for q in range(4):
            a(f"ds_read_b128 v[{240+4*q}:{243+4*q}], v56 offset:{32*q}")
        for q in range(4):
            a(f"ds_read_b128 v[{32+4*q}:{35+4*q}], v56 offset:{384 + 32*q}")
        a("v_lshl_add_u32 v57, v3, 2, s72\nds_read_b32 v58, v57 offset:128\nds_read_b32 v59, v57 offset:512")
        a(f"s_lshl_b32 s72, {sWV}, 8\ns_add_u32 s72, s72, {L_MR}\nv_lshl_add_u32 v4, v3, 2, s72")
        a("ds_write_b32 v4, v26\nds_write_b32 v4, v27 offset:128")
        for i in range(16):
            a(f"v_add_f32 v{240+i}, v{240+i}, v{32+i}")
        a("v_add_f32 v58, v58, v59")
        a(f"v_lshl_add_u32 v4, v5, 4, s72")
        a("s_waitcnt lgkmcnt(0)")
        for q in range(4):
            a(f"ds_read_b128 v[{32+4*q}:{35+4*q}], v4 offset:{32*q}")
        for q in range(4):
            a(f"ds_read_b128 v[{48+4*q}:{51+4*q}], v4 offset:{128 + 32*q}") if q < 2 else None
        for i in range(16):
            a(f"v_fma_f32 v{AK+i}, -v26, v{240+i}, v{AK+i}")
        for i in range(16):
            a(f"v_mul_f32 v{AK+i}, v27, v{AK+i}")
        for k in range(8):
            a(f"v_cvt_pk_bf16_f32 v{AK+k}, v{AK+2*k}, v{AK+2*k+1}")
        self.k_store()
        for q in range(2, 4):
            a(f"ds_read_b128 v[{240+4*q}:{243+4*q}], v4 offset:{128 + 32*q}")
        rs = lambda i: (48 + i) if i < 8 else (240 + i)
        for i in range(16):
            a(f"v_fma_f32 v{AV+i}, -v{32+i}, v58, v{AV+i}")
        for i in range(16):
            a(f"v_mul_f32 v{AV+i}, v{rs(i)}, v{AV+i}")
        for k in range(8):
            a(f"v_cvt_pk_bf16_f32 v{AV+k}, v{AV+2*k}, v{AV+2*k+1}")
        self.v_store()
        a.label("L_kvstored", reset=False)
        self.stamp(3)
        def reads_q(n):
            s, k = 8 + (n >> 3), n & 7
            reg, off = waddr(s, k & 1)
            wf = WF + (n % 3) * 8
            for rd in range(2):
                a(f"ds_read_b64_tr_b16 v[{wf+2*rd}:{wf+2*rd+1}], {reg} offset:{off + (k >> 1)*4096 + rd*512}")
        def q_pass(first):
            self.w_dma_setup()
            stage_sync(8)
            reads_q(0); reads_q(1)
            for n in range(32):
                wf = WF + (n % 3) * 8
                cq = "0" if n == 0 and first else f"v[{AQ}:{AQ+15}]"
                a(f"v_mfma_f32_32x32x16_bf16 v[{AQ}:{AQ+15}], v[{wf}:{wf+3}], v[{XF+4*n}:{XF+4*n+3}], {cq}")
                if n + 2 < 32:
                    if (n + 2) % 8 == 0:
                        last = (n + 2) == 24
                        if last:
                            a.wait_tag("KVst")
                        stage_sync(8 + ((n + 2) >> 3))
                        if last:
                            self.flag_store(PH_KV)
                    reads_q(n + 2)
                if n < 4:
                    self.w_dma(11, only=n)
                if first and n % 2 == 0:
                    for i in range(4):
                        a(f"v_dot2c_f32_bf16 v21, s74, v{wf+i}")
            if first:
                a("v_mov_b32 v28, v21\nv_permlane32_swap_b32 v21, v28\nv_add_f32 v21, v21, v28")
                a("ds_write_b32 v9, v21 offset:256")
        lb, lj = self.lab("qb"), self.lab("qj")
        a(f"s_cmp_eq_u32 {sL}, 0\ns_cbranch_scc0 {lb}")
        a.fork()
        q_pass(True)
        a(f"s_branch {lj}")
        a.label(lb, reset=False)
        a.alt()
        q_pass(False)
        a.endfork()
        a.label(lj, reset=False)
        a("s_waitcnt lgkmcnt(0)\ns_barrier")
        self.stamp(4)
        sk = self.lab("qe")
        a(f"s_cmp_eq_u32 {sL}, 0\ns_cbranch_scc0 {sk}")
        with a.cond("l0q"):
            for q in range(4):
                a(f"ds_read_b128 v[{240+4*q}:{243+4*q}], v56 offset:{256 + 32*q}")
            for q in range(4):
                a(f"ds_read_b128 v[{32+4*q}:{35+4*q}], v56 offset:{384 + 256 + 32*q}")
            for i in range(16):
                a(f"v_add_f32 v{240+i}, v{240+i}, v{32+i}")
            for i in range(16):
                a(f"v_fma_f32 v{AQ+i}, -v26, v{240+i}, v{AQ+i}")
        a.label(sk, reset=False)
        a(f"v_mul_f32 v27, {f32(0.25*LOG2E)}, v27")
        for i in range(16):
            a(f"v_mul_f32 v{AQ+i}, v27, v{AQ+i}")
        for k in range(8):
            a(f"v_cvt_pk_bf16_f32 v{AQ+k}, v{AQ+2*k}, v{AQ+2*k+1}")

    def wo_dma(self):
        a = self.a
        a("v_lshrrev_b32 v3, 3, v1\nv_lshlrev_b32 v3, 10, v3\nv_bfe_u32 v4, v1, 1, 2\nv_bfe_u32 v5, v1, 4, 2\nv_xor_b32 v4, v4, v5")
        a("v_lshlrev_b32 v4, 1, v4\nv_and_b32 v5, 1, v1\nv_add_u32 v4, v4, v5\nv_lshl_add_u32 v19, v4, 4, v3")
        a(f"s_lshl_b32 s78, {sWV}, 17\ns_lshl_b32 s73, {sCQ}, 7\ns_add_u32 s78, s78, s73\ns_lshl_b32 s79, {sWV}, 14")

        def one(n):
            return (f"s_add_u32 m0, s79, {L_X + n*1024}\ns_add_u32 s72, s78, {n*8192}\n"
                    f"buffer_load_dwordx4 v19, {SRD_WO}, s72 offen lds")
        return one

    def build(self):
        a = self.a
        self.prologue()
        self.q_entry(0)
        self.kv_pass(True)
        done = False
        self.q_phase()
        done = self.stop("q")
        if not done:
            from gen2 import rest
            rest(self)
        a.label("L_fail", reset=False)
        self.srd(32, P_DBG, 256)
        a("v_mov_b32 v4, 0xdead\nv_mov_b32 v5, 0\ns_mov_b64 exec, 1")
        a(f"buffer_store_dword v4, v5, {SRD_T}, 0 offen")
        a.label("L_end", reset=False)
        a("s_endpgm")
        a.label("L_code_end", reset=False)
        body = a.finalize()
        head = open("interleave_layers__sliding_block__mixer_token_mlp__prompt.s.ref").read().split("\n")
        hdr = [l for l in head if l.startswith(";") and "@launch" not in l and "Override launch" not in l and "grid=ceil" not in l]
        hdr = hdr[:hdr.index(next(l for l in hdr if "d_ws" in l)) + 1]
        out = "\n".join(hdr) + f"\n; @launch grid=(256,1,1) block=(256,1,1) lds={LDS_SIZE}\n"
        out += '.amdgcn_target "amdgcn-amd-amdhsa--gfx950"\n.text\n'
        out += f".globl {KNAME}\n.p2align 8\n.type {KNAME},@function\n{KNAME}:\n"
        out += body
        out += f'''.section .rodata,"a"
.p2align 6
.amdhsa_kernel {KNAME}
  .amdhsa_next_free_vgpr 512
  .amdhsa_next_free_sgpr 102
  .amdhsa_accum_offset 256
  .amdhsa_group_segment_fixed_size 0
  .amdhsa_kernarg_size 88
  .amdhsa_user_sgpr_count 2
  .amdhsa_user_sgpr_kernarg_segment_ptr 1
  .amdhsa_system_sgpr_workgroup_id_x 1
.end_amdhsa_kernel
'''
        return out


if __name__ == "__main__":
    import argparse
    ap = argparse.ArgumentParser()
    ap.add_argument("--stop", default=None)
    ap.add_argument("--diag", action="store_true")
    ap.add_argument("-o", default="interleave_layers__sliding_block__mixer_token_mlp__prompt.s")
    args = ap.parse_args()
    g = Gen(stop_after=args.stop, diag=args.diag)
    src = g.build()
    open(args.o, "w").write(src)
    print("written", args.o, g.a.stats, "bytes", len(src))
```

```python
import os, sys
OPT = set(os.environ.get("KOPT", "").split(","))
sys.path.insert(0, "tools")
from asmfw import Asm

KNAME = "interleave_layers__sliding_block__mixer_token_mlp__prompt_kernel"

WS_EPOCH = 0x0
WS_FLAG = 0x1000
WS_ST = 0x80000
WS_KV = 0x100000
WS_OF = 0x900000
WS_H = 0xD00000
WS_U = 0x1100000
WS_X2 = 0x1500000
WS_W1P = 0x1700000
WS_W2P = 0x1D00000
WS_ST2 = 0x2300000
WS_XC = 0x2380000
WS_DIAG = 0x2400000
WS_SIZE = 0x4000000
UC = 43 * 4096
PH_KV, PH_O, PH_H, PH_U, PH_X, PH_P, PH_PD = range(7)

L_X = 0
L_RING = 65536
L_R = 147456
L_MISC = 156672
L_SP = L_MISC
L_CP = L_MISC + 1024
L_MR = L_MISC + 2560
LDS_SIZE = 163840

SRD_X, SRD_WQ, SRD_WO, SRD_WS = "s[4:7]", "s[8:11]", "s[12:15]", "s[16:19]"
SRD_DST, SRD_U, SRD_W2P, SRD_T = "s[20:23]", "s[24:27]", "s[28:31]", "s[32:35]"
P_X, P_WQ, P_WO, P_W1, P_B1, P_W2, P_B2, P_OUT, P_DBG, P_WS = 36, 38, 40, 44, 46, 48, 50, 52, 54, 56
sR, sCQ, sWV, sL = "s58", "s59", "s60", "s61"
sN, sNN, sNP = "s62", "s63", "s[62:63]"
sC1, sJ1, sM1 = "s64", "s65", "s66"
sP, sTB, sB = "s67", "s68", "s69"
sCNT = "s100"
sFAST = "s0"
SRD_W1 = "s[96:99]"
POLL_LIMIT = 400000

LOG2E = 1.4426950408889634


def f32(x):
    import struct
    return "0x%08x" % struct.unpack("<I", struct.pack("<f", x))[0]


class Gen:
    def __init__(self, stop_after=None, diag=False):
        self.a = Asm()
        self.stop_after = stop_after
        self.diag = diag
        self.uid = 0
        self.stubs = []
        self.nstamp = 0

    def lab(self, base):
        self.uid += 1
        return f"L_{base}_{self.uid}"

    def srd(self, name, ptr, size, off=None):
        a = self.a
        if off is None:
            a(f"s_mov_b32 s{name}, s{ptr}\ns_mov_b32 s{name+1}, s{ptr+1}")
        else:
            a(f"s_add_u32 s{name}, s{ptr}, {off}\ns_addc_u32 s{name+1}, s{ptr+1}, 0")
        a(f"s_mov_b32 s{name+2}, {size}\ns_mov_b32 s{name+3}, 0x20000")

    def stamp(self, idx):
        if not self.diag:
            return
        a = self.a
        skip = self.lab("st")
        a(f"s_memrealtime s[92:93]\ns_waitcnt lgkmcnt(0)")
        a(f"s_cmp_eq_u32 {sWV}, 0\ns_cbranch_scc0 {skip}")
        with a.cond(skip):
            a(f"s_lshl_b32 s94, s2, 8\ns_lshl_b32 s95, {sL}, 7\ns_add_u32 s94, s94, s95\ns_add_u32 s94, s94, {WS_DIAG + idx*4}")
            a("v_mov_b32 v62, s92\nv_mov_b32 v63, s94\ns_mov_b64 exec, 1")
            a(f"buffer_store_dword v62, v63, {SRD_WS}, 0 offen")
            a("s_mov_b64 exec, -1")
        a.label(skip, reset=False)

    def flag_addr(self, dst, phase, wg):
        a = self.a
        a(f"s_lshl_b32 {dst}, {sL}, 8\ns_add_u32 {dst}, {dst}, {wg}\ns_lshl_b32 {dst}, {dst}, 7")
        a(f"s_add_u32 {dst}, {dst}, {WS_FLAG + phase*2*256*128}")

    def dual(self, fn, sel=sFAST):
        a = self.a
        slow, j = self.lab("slow"), self.lab("dj")
        a(f"s_cmp_eq_u32 {sel}, 0\ns_cbranch_scc1 {slow}")
        a.fork()
        fn("")
        a(f"s_branch {j}")
        a.label(slow, reset=False)
        a.alt()
        fn("sc1")
        a.endfork()
        a.label(j, reset=False)

    def publish(self, phase, wg="s2", also=None, local=False):
        a = self.a
        skip = self.lab("pub")
        a("s_barrier")
        a(f"s_cmp_eq_u32 {sWV}, 0\ns_cbranch_scc0 {skip}")
        with a.cond(skip):
            self.flag_addr("s70", phase, wg)
            a(f"v_mov_b32 v4, {sN}\nv_mov_b32 v5, {sNN}\nv_mov_b32 v6, s70\ns_mov_b64 exec, 1")
            if local:
                self.dual(lambda m: a(f"buffer_store_dwordx2 v[4:5], v6, {SRD_WS}, 0 offen {m}"))
            else:
                a(f"buffer_store_dwordx2 v[4:5], v6, {SRD_WS}, 0 offen sc1")
            if also is not None:
                self.flag_addr("s70", also, wg)
                a(f"v_mov_b32 v6, s70\nbuffer_store_dwordx2 v[4:5], v6, {SRD_WS}, 0 offen sc1")
            a("s_mov_b64 exec, -1")
        a.label(skip, reset=False)

    def flag_store(self, phase):
        a = self.a
        skip = self.lab("fs")
        a(f"s_cmp_eq_u32 {sWV}, 0\ns_cbranch_scc0 {skip}")
        with a.cond(skip):
            self.flag_addr("s78", phase, "s2")
            a(f"v_mov_b32 v4, {sN}\nv_mov_b32 v5, {sNN}\nv_mov_b32 v6, s78\ns_mov_b64 exec, 1")
            a(f"buffer_store_dwordx2 v[4:5], v6, {SRD_WS}, 0 offen sc1")
            a("s_mov_b64 exec, -1")
        a.label(skip, reset=False)

    def poll(self, vaddr, mask):
        a = self.a
        top, ok = self.lab("poll"), self.lab("pok")
        a(f"s_mov_b64 exec, {mask}\ns_mov_b32 {sCNT}, 0")
        a(f"s_cbranch_execz {ok}")
        a.label(top, reset=False)
        with a.cond(top):
            a(f"buffer_load_dwordx2 v[4:5], {vaddr}, {SRD_WS}, 0 offen sc1")
            a("s_waitcnt vmcnt(0)")
            a(f"v_cmp_ne_u64 vcc, {sNP}, v[4:5]")
            a(f"s_cbranch_vccz {ok}")
            for o in OPT:
                if o.startswith("sleep"):
                    a(f"s_sleep {o[5:]}")
            a(f"s_add_u32 {sCNT}, {sCNT}, 1\ns_cmp_lt_u32 {sCNT}, {POLL_LIMIT}\ns_cbranch_scc1 {top}")
            a("s_branch L_fail")
        a.label(ok, reset=False)
        a("s_mov_b64 exec, -1")

    def wg_of(self, dst, r, cq):
        a = self.a
        a(f"v_and_b32 {dst}, 3, {r}\nv_lshlrev_b32 {dst}, 3, {dst}\nv_add_u32 {dst}, {cq}, {dst}\nv_lshlrev_b32 {dst}, 3, {dst}")
        a(f"v_lshrrev_b32 v7, 2, {r}\nv_add_u32 {dst}, {dst}, v7")

    def vflag(self, dst, phase):
        a = self.a
        a(f"s_lshl_b32 s70, {sL}, 15\ns_add_u32 s70, s70, {WS_FLAG + phase*2*256*128}")
        a(f"v_lshlrev_b32 {dst}, 7, {dst}\nv_add_u32 {dst}, s70, {dst}")

    def row_stats_store(self, sums, layer, local=False):
        a = self.a
        for ctl in ("quad_perm:[1,0,3,2]", "quad_perm:[2,3,0,1]", "row_half_mirror"):
            for r0 in sums:
                for k in range(2):
                    a(f"v_add_f32_dpp v{r0+k}, v{r0+k}, v{r0+k} {ctl} row_mask:0xf bank_mask:0xf")
        for r0 in sums:
            a(f"v_mov_b32 v{r0+2}, {sN}\nv_mov_b32 v{r0+3}, {sNN}")
        if isinstance(layer, int):
            a(f"s_add_u32 s72, {sR}, {layer*32}")
        else:
            a(f"s_lshl_b32 s72, {layer}, 5\ns_add_u32 s72, s72, {sR}")
        a(f"s_lshl_b32 s72, s72, 3\ns_add_u32 s72, s72, {sCQ}\ns_lshl_b32 s72, s72, 10\ns_add_u32 s72, s72, {WS_ST2}")
        a("v_lshrrev_b32 v3, 3, v0\nv_lshlrev_b32 v3, 4, v3\nv_and_b32 v4, 7, v0\nv_cmp_eq_u32 vcc, 0, v4\ns_mov_b64 exec, vcc")
        def st(m):
            for i, r0 in enumerate(sums):
                a(f"buffer_store_dwordx4 v[{r0}:{r0+3}], v3, {SRD_WS}, s72 offen offset:{i*512} {m}")
        if local:
            self.dual(st)
        else:
            st("sc1")
        a("s_mov_b64 exec, -1")

    def stop(self, name):
        if self.stop_after == name:
            self.a("s_waitcnt vmcnt(0) lgkmcnt(0)\ns_branch L_end")
            self.a.assume_clean()
            return True
        return False

    def prologue(self):
        a = self.a
        a("s_cmp_ge_u32 s2, 256\ns_cbranch_scc1 L_end")
        if "nocode" not in OPT and "codelate" not in OPT:
            self.code_warmup()
        a("s_load_dwordx16 s[36:51], s[0:1], 0\ns_load_dwordx4 s[52:55], s[0:1], 64\ns_load_dwordx2 s[56:57], s[0:1], 80")
        a("v_and_b32 v1, 63, v0\nv_lshlrev_b32 v2, 4, v1\nv_lshrrev_b32 v3, 6, v0")
        a(f"v_readfirstlane_b32 {sWV}, v3")
        a(f"s_and_b32 s70, s2, 7\ns_lshr_b32 s71, s2, 3")
        a(f"s_lshr_b32 s72, s71, 3\ns_lshl_b32 {sR}, s70, 2\ns_add_u32 {sR}, {sR}, s72\ns_and_b32 {sCQ}, s71, 7")
        a(f"s_and_b32 s72, s70, 1\ns_lshl_b32 s72, s72, 2\ns_and_b32 s73, s71, 3\ns_add_u32 {sC1}, s72, s73")
        a("s_lshr_b32 s72, s70, 1\ns_lshr_b32 s73, s71, 2")
        a("s_mul_i32 s74, s72, 7\ns_min_u32 s75, s72, 1\ns_add_u32 s74, s74, s75")
        a(f"s_add_u32 {sJ1}, s74, s73")
        a("s_cmp_eq_u32 s72, 0\ns_cselect_b32 s75, 8, 7")
        a(f"s_cmp_lt_u32 s73, s75\ns_cselect_b32 {sM1}, 1, 0")
        a(f"s_and_b32 {sP}, {sWV}, 1\ns_lshr_b32 {sTB}, {sWV}, 1\ns_xor_b32 {sB}, {sP}, {sTB}")
        a(f"s_mov_b32 {sL}, 0")
        a("s_waitcnt lgkmcnt(0)")
        self.srd(4, P_X, 2 << 20)
        self.srd(8, P_WQ, 512 * 1536 * 2)
        self.srd(12, P_WO, 512 * 512 * 2)
        self.srd(16, P_WS, WS_SIZE)
        self.srd(28, P_W2, 1376 * 4096)
        self.srd(96, P_W1, 2048 * 2752)
        self.srd(20, P_WS, 2 << 20, WS_X2)
        a(f"v_mov_b32 v3, {WS_EPOCH}")
        a(f"buffer_load_dword v250, v3, {SRD_WS}, 0 offen sc1")
        a("v_lshrrev_b32 v3, 3, v0\nv_and_b32 v4, 7, v0")
        a(f"s_lshl_b32 s70, {sR}, 16\ns_lshl_b32 s71, {sCQ}, 7\ns_add_u32 s70, s70, s71")
        a("v_lshlrev_b32 v5, 10, v3\nv_lshl_add_u32 v5, v4, 4, v5")
        a(f"buffer_load_dwordx4 v[240:243], v5, {SRD_X}, s70 offen")
        a("s_add_u32 s70, s70, 32768")
        a(f"buffer_load_dwordx4 v[244:247], v5, {SRD_X}, s70 offen")

    def code_warmup(self):
        a = self.a
        a("s_getpc_b64 s[32:33]")
        a.label("L_pc", reset=False)
        a(f"s_sub_u32 s32, s32, L_pc-{KNAME}\ns_subb_u32 s33, s33, 0\ns_mov_b32 s34, L_code_end-{KNAME}\ns_mov_b32 s35, 0x20000")
        a("v_and_b32 v3, 63, v0\nv_lshrrev_b32 v4, 6, v0\nv_mul_u32_u24 v4, 640, v4\nv_lshl_add_u32 v3, v3, 7, v4")
        a("s_lshr_b32 s72, s2, 3\ns_mul_i32 s72, s72, 2560")
        a(f"s_mov_b64 exec, 0x1f\nbuffer_load_dword v249, v3, {SRD_T}, s72 offen\ns_mov_b64 exec, -1")

    def prologue_tail(self):
        a = self.a
        a(f"v_lshlrev_b32 v3, 21, v1\ns_mov_b64 exec, 0x3ffff\nbuffer_load_dword v251, v3, {SRD_WS}, 0 offen\ns_mov_b64 exec, -1")
        if "tlb" in OPT:
            a(f"s_mov_b64 exec, 7\nbuffer_load_dword v253, v3, {SRD_W1}, 0 offen\nbuffer_load_dword v254, v3, {SRD_W2P}, 0 offen\ns_mov_b64 exec, 1")
            self.srd(32, P_OUT, 2 << 20)
            a(f"buffer_load_dword v255, v3, {SRD_T}, 0 offen")
            self.srd(32, P_B1, 2752)
            a(f"buffer_load_dword v249, v3, {SRD_T}, 0 offen")
            self.srd(32, P_B2, 4096)
            a(f"buffer_load_dword v248, v3, {SRD_T}, 0 offen\ns_mov_b64 exec, -1")
        a(f"s_lshl_b32 s72, s2, 2\ns_add_u32 s72, s72, {sWV}\ns_lshl_b32 s72, s72, 9\nv_lshlrev_b32 v3, 7, v1")
        a(f"s_mov_b64 exec, 0xf\nbuffer_load_dword v252, v3, {SRD_WO}, s72 offen\ns_mov_b64 exec, -1")
        if "codelate" in OPT:
            self.code_warmup()
        a("v_lshrrev_b32 v3, 3, v0\nv_and_b32 v4, 7, v0")
        a("v_mul_u32_u24 v6, 144, v3\nv_lshl_add_u32 v6, v4, 4, v6")
        a(f"v_add_u32 v6, {L_R}, v6")
        a(f"v_readfirstlane_b32 {sN}, v250")
        a(f"s_add_u32 {sN}, {sN}, 1\ns_not_b32 {sNN}, {sN}")
        a("ds_write_b128 v6, v[240:243]\nds_write_b128 v6, v[244:247] offset:4608")
        for h, (src, dst) in enumerate(((240, 232), (244, 236))):
            a(f"v_mov_b32 v{dst}, 0\nv_mov_b32 v{dst+1}, 0")
            for k in range(4):
                a(f"v_lshlrev_b32 v8, 16, v{src+k}\nv_and_b32 v9, 0xffff0000, v{src+k}")
                a(f"v_add_f32 v{dst}, v{dst}, v8\nv_fmac_f32 v{dst+1}, v8, v8\nv_add_f32 v{dst}, v{dst}, v9\nv_fmac_f32 v{dst+1}, v9, v9")
        self.row_stats_store([232, 236], 0)
        a(f"s_getreg_b32 s72, hwreg(HW_REG_XCC_ID)\ns_and_b32 s1, s72, 15\ns_mov_b32 {sFAST}, 0")
        a(f"s_lshl_b32 s72, {sR}, 3\ns_add_u32 s72, s72, {sCQ}\ns_lshl_b32 s72, s72, 4\ns_add_u32 s72, s72, {WS_XC}")
        a(f"v_mov_b32 v232, s1\nv_mov_b32 v233, 0\nv_mov_b32 v234, {sN}\nv_mov_b32 v235, {sNN}\nv_mov_b32 v3, s72")
        sk = self.lab("xc")
        a(f"s_cmp_eq_u32 {sWV}, 0\ns_cbranch_scc0 {sk}")
        with a.cond(sk):
            a(f"s_mov_b64 exec, 1\nbuffer_store_dwordx4 v[232:235], v3, {SRD_WS}, 0 offen sc1\ns_mov_b64 exec, -1")
        a.label(sk, reset=False)

    def w_dma(self, s, only=None, sg="s70", sl="s71", st="s72", va="v12"):
        a = self.a
        slot = L_RING + (s % 5) * 16384
        for n in range(4):
            if only is not None and n != only:
                continue
            if s < 8:
                part = n >> 1
                krow = 64 * s + (n & 1) * 32
                col = 1024 * (1 + part)
                lds = slot + part * 8192 + (n & 1) * 4096
            else:
                krow = 128 * (s - 8) + 32 * n
                col = 0
                lds = slot + n * 4096
            a(f"s_add_u32 m0, {sl}, {lds}\ns_add_u32 {st}, {sg}, {krow*3072 + col}")
            a(f"buffer_load_dwordx4 {va}, {SRD_WQ}, {st} offen lds", tag=f"W{s}")

    def w_dma_setup(self, sg="s70", sl="s71", st="s72"):
        a = self.a
        a(f"s_mul_i32 {sg}, {sWV}, {8*3072}\ns_lshl_b32 {st}, {sCQ}, 7\ns_add_u32 {sg}, {sg}, {st}\ns_lshl_b32 {sl}, {sWV}, 10")

    def q_addr_w(self, dst=12):
        a = self.a
        a(f"v_lshrrev_b32 v3, 3, v1\nv_mul_u32_u24 v{dst}, 3072, v3\nv_bfe_u32 v4, v1, 4, 1\nv_lshlrev_b32 v4, 2, v4")
        a(f"v_and_b32 v5, 7, v1\nv_xor_b32 v5, v5, v4\nv_lshl_add_u32 v{dst}, v5, 4, v{dst}")

    def q_addr_x(self):
        a = self.a
        a("v_lshrrev_b32 v3, 3, v1")
        for e in range(2):
            a(f"s_lshl_b32 s72, {sWV}, 4\ns_add_u32 s72, s72, {8*e}\nv_add_u32 v6, s72, v3")
            a(f"v_bfe_u32 v7, v6, 1, 3\nv_and_b32 v5, 7, v1\nv_xor_b32 v5, v5, v7\nv_lshlrev_b32 v6, 10, v6\nv_lshl_add_u32 v{10+e}, v5, 4, v6")

    def q_addr(self):
        self.q_addr_w()
        self.q_addr_x()
        self.w_dma_setup()

    def q_addr2(self):
        a = self.a
        a(f"v_and_b32 v3, 31, v1\ns_lshl_b32 s72, {sTB}, 5\nv_add_u32 v3, s72, v3\nv_bfe_u32 v4, v3, 1, 3\nv_lshrrev_b32 v5, 5, v1")
        for k in range(4):
            a(f"s_xor_b32 s72, {sB}, {k}\ns_lshl_b32 s72, s72, 1\nv_add_u32 v6, s72, v5\nv_xor_b32 v6, v6, v4")
            a(f"v_lshlrev_b32 v6, 4, v6\nv_lshl_add_u32 v{13+k}, v3, 7, v6")
        a("v_and_b32 v3, 15, v1\nv_lshrrev_b32 v4, 2, v3\nv_lshrrev_b32 v5, 5, v1\nv_lshl_add_u32 v4, v5, 3, v4")
        a(f"v_bfe_u32 v5, v1, 4, 1\nv_lshlrev_b32 v5, 1, v5\nv_bfe_u32 v6, v1, 1, 1\nv_add_u32 v5, v5, v6")
        a(f"s_lshl_b32 s72, {sP}, 2\nv_add_u32 v5, s72, v5\nv_bfe_u32 v6, v1, 3, 1\nv_lshlrev_b32 v6, 2, v6\nv_xor_b32 v5, v5, v6")
        a("v_lshlrev_b32 v5, 4, v5\nv_lshl_add_u32 v5, v4, 7, v5\nv_and_b32 v6, 1, v1\nv_lshl_add_u32 v5, v6, 3, v5")
        for e in range(2):
            a(f"s_xor_b32 s72, {sB}, {e}\ns_lshl_b32 s72, s72, 11\ns_add_u32 s72, s72, {L_RING}")
            a(f"v_add_u32 v{17+e}, s72, v5\nv_add_u32 v{19+e}, 49152, v{17+e}")
        a("v_mov_b32 v21, 0\nv_mov_b32 v24, 0\nv_mov_b32 v25, 0")
        a("s_mov_b32 s74, 0x3f803f80")
        a(f"s_lshl_b32 s72, {sL}, 5\ns_add_u32 s72, s72, {sR}\ns_lshl_b32 s75, s72, 13\ns_add_u32 s75, s75, {WS_ST2}")
        a(f"v_and_b32 v3, 31, v1\ns_lshl_b32 s72, {sTB}, 5\nv_add_u32 v3, s72, v3\nv_lshlrev_b32 v3, 4, v3\nv_lshrrev_b32 v4, 5, v1\nv_lshl_add_u32 v61, v4, 12, v3")

    def x_dma(self, kc):
        a = self.a
        for e in range(2):
            a(f"s_add_u32 m0, s77, {L_X + kc*8192 + e*1024}\ns_add_u32 s72, s76, {kc*128}")
            a(f"buffer_load_dwordx4 v{10+e}, {SRD_X}, s72 offen sc1 lds", tag=f"X{kc}")

    def q_entry(self, layer):
        a = self.a
        a.c(f"======== QKV phase entry, layer {layer}")
        if layer == 0:
            self.q_addr()
        else:
            self.q_addr_x()
        a(f"s_lshl_b32 s76, {sR}, 16\ns_lshl_b32 s77, {sWV}, 11")
        if layer == 0:
            for s_ in range(5):
                self.w_dma(s_)
                self.x_dma(s_)
            for kc in range(5, 8):
                self.x_dma(kc)
            self.stamp(0)
            self.prologue_tail()
            self.q_addr2()
            self.stamp(1)
        else:
            self.q_addr2()
            a(f"v_mov_b32 v8, {sR}")
            a(f"v_and_b32 v9, 3, v8\nv_lshlrev_b32 v9, 3, v9\nv_add_u32 v9, v1, v9\nv_lshlrev_b32 v9, 3, v9")
            a(f"v_lshrrev_b32 v7, 2, v8\nv_add_u32 v9, v9, v7")
            a(f"v_lshlrev_b32 v9, 7, v9\nv_add_u32 v9, {WS_FLAG + PH_X*2*256*128}, v9")
            self.stamp(0)
            a.wait_tag("Xst")
            a(f"s_mov_b32 {sL}, 0")
            self.publish(PH_X, local=True)
            a(f"s_mov_b32 {sL}, 1")
            self.stat_loads()
            a("v_mov_b32 v30, v9")
            self.ln_init()
            self.poll("v30", "0xff")
            self.stamp(1)
            for kc in range(8):
                self.x_dma(kc)

    XF, WF, AK, AV, AQ = 64, 32, 192, 208, 224

    def row_stats(self):
        a = self.a
        top, ok = self.lab("s2p"), self.lab("s2o")
        a(f"s_mov_b32 {sCNT}, 0")
        a.label(top, reset=False)
        a(f"v_cmp_ne_u64 vcc, {sNP}, v[242:243]")
        for k in range(1, 4):
            a(f"v_cmp_ne_u64 s[72:73], {sNP}, v[{242+4*k}:{243+4*k}]\ns_or_b64 vcc, vcc, s[72:73]")
        a(f"s_cbranch_vccz {ok}")
        with a.cond(top):
            self.stat_loads()
            a("s_waitcnt vmcnt(0)")
            a(f"s_add_u32 {sCNT}, {sCNT}, 1\ns_cmp_lt_u32 {sCNT}, {POLL_LIMIT}\ns_cbranch_scc1 {top}\ns_branch L_fail")
        a.label(ok, reset=False)
        a("v_add_f32 v26, v240, v244\nv_add_f32 v27, v241, v245\nv_add_f32 v28, v248, v252\nv_add_f32 v29, v249, v253")
        a("v_add_f32 v26, v26, v28\nv_add_f32 v27, v27, v29\nv_mov_b32 v28, v26\nv_mov_b32 v29, v27")
        a("v_permlane32_swap_b32 v26, v28\nv_permlane32_swap_b32 v27, v29\nv_add_f32 v26, v26, v28\nv_add_f32 v27, v27, v29")
        a(f"v_mul_f32 v26, {f32(1/512)}, v26\nv_mul_f32 v27, {f32(1/512)}, v27")
        a(f"v_fma_f32 v27, -v26, v26, v27\nv_max_f32 v27, 0, v27\nv_add_f32 v27, {f32(1e-5)}, v27\nv_rsq_f32 v27, v27")

    def ln_init(self):
        a = self.a
        AK, AV, AQ = self.AK, self.AV, self.AQ
        a("v_and_b32 v3, 31, v1\nv_lshrrev_b32 v5, 5, v1")
        a(f"s_mul_i32 s73, {sP}, 768\ns_add_u32 s73, s73, {L_CP}")
        a("v_lshl_add_u32 v56, v5, 4, s73\nv_lshl_add_u32 v57, v3, 2, s73")
        for part, dst in ((0, AK), (384, 32), (256, AQ), (384 + 256, AV)):
            for q in range(4):
                a(f"ds_read_b128 v[{dst+4*q}:{dst+4*q+3}], v56 offset:{part + 32*q}")
        a("ds_read_b32 v58, v57 offset:128\nds_read_b32 v59, v57 offset:512")
        self.row_stats()
        a(f"s_lshl_b32 s72, {sWV}, 8\ns_add_u32 s72, s72, {L_MR}\nv_lshl_add_u32 v4, v3, 2, s72")
        a("ds_write_b32 v4, v26\nds_write_b32 v4, v27 offset:128")
        a("v_lshl_add_u32 v60, v5, 4, s72")
        for i in range(16):
            a(f"v_add_f32 v{AK+i}, v{AK+i}, v{32+i}\nv_add_f32 v{AQ+i}, v{AQ+i}, v{AV+i}")
        a("v_add_f32 v58, v58, v59\ns_waitcnt lgkmcnt(0)")
        for q in range(4):
            a(f"ds_read_b128 v[{AV+4*q}:{AV+4*q+3}], v60 offset:{32*q}")
        for i in range(16):
            a(f"v_mul_f32 v{AK+i}, -v26, v{AK+i}\nv_mul_f32 v{AQ+i}, -v26, v{AQ+i}")
        for i in range(16):
            a(f"v_mul_f32 v{AV+i}, -v58, v{AV+i}")

    def waddr(self, s, e):
        slot = s % 5
        return (f"v{17+e}", slot * 16384) if slot < 3 else (f"v{19+e}", (slot - 3) * 16384)

    def stage_sync(self, s):
        a = self.a
        a.wait_tag(f"W{s}", f"X{s}") if s < 8 else a.wait_tag(f"W{s}")
        a("s_barrier")

    def stat_loads(self):
        for k in range(4):
            self.a(f"buffer_load_dwordx4 v[{240+4*k}:{243+4*k}], v61, {SRD_WS}, s75 offen offset:{k*1024} sc1")

    def kv_pass(self, first):
        a = self.a
        XF, WF, AK, AV = self.XF, self.WF, self.AK, self.AV
        a.c("======== K/V projection" + (" (layer 0)" if first else " (layer 1)"))

        def reads_kv(n, part=None):
            s, k = n >> 2, n & 3
            reg, off = self.waddr(s, k & 1)
            wf = WF + (n % 3) * 8
            for pt in range(2):
                if part is not None and pt != part:
                    continue
                if pt == 0:
                    a(f"ds_read_b128 v[{XF+4*n}:{XF+4*n+3}], v{13+k} offset:{L_X + s*8192}")
                for rd in range(2):
                    a(f"ds_read_b64_tr_b16 v[{wf+4*pt+2*rd}:{wf+4*pt+2*rd+1}], {reg} offset:{off + pt*8192 + (k >> 1)*4096 + rd*512}")
        self.w_dma_setup()
        self.stamp(20)
        self.stage_sync(0)
        self.stamp(21)
        reads_kv(0); reads_kv(1)
        for n in range(32):
            wf = WF + (n % 3) * 8
            x = f"v[{XF+4*n}:{XF+4*n+3}]"
            ck = "0" if n == 0 and first else f"v[{AK}:{AK+15}]"
            cv = "0" if n == 0 and first else f"v[{AV}:{AV+15}]"
            a(f"v_mfma_f32_32x32x16_bf16 v[{AK}:{AK+15}], v[{wf}:{wf+3}], {x}, {ck}")
            if n + 2 < 32:
                if (n + 2) % 4 == 0:
                    self.stage_sync((n + 2) >> 2)
                reads_kv(n + 2, 0)
            a(f"v_mfma_f32_32x32x16_bf16 v[{AV}:{AV+15}], {x}, v[{wf+4}:{wf+7}], {cv}")
            if n + 2 < 32:
                reads_kv(n + 2, 1)
            sfree = (n + 2) >> 2
            if n >= 6 and sfree + 3 < 11:
                self.w_dma(sfree + 3, only=(n + 2) & 3)
            if n == 24 and first:
                self.stat_loads()
            if n == 28 and not first:
                for q in range(4):
                    a(f"ds_read_b128 v[{240+4*q}:{243+4*q}], v60 offset:{128 + 32*q}")
            if first and n % 2 == 0:
                for i in range(4):
                    a(f"v_dot2c_f32_bf16 v24, s74, v{wf+i}\nv_dot2c_f32_bf16 v25, s74, v{wf+4+i}")

    def k_store(self):
        a = self.a
        AK = self.AK
        a(f"s_lshl_b32 s75, {sCQ}, 1\ns_add_u32 s75, s75, {sP}\ns_lshl_b32 s75, s75, 6\ns_lshl_b32 s76, {sR}, 1\ns_add_u32 s75, s75, s76")
        a(f"s_add_u32 s75, s75, {sTB}\ns_lshl_b32 s75, s75, 12\ns_lshl_b32 s76, {sL}, 22\ns_add_u32 s75, s75, s76\ns_add_u32 s75, s75, {WS_KV}")
        a(f"buffer_store_dwordx4 v[{AK}:{AK+3}], v2, {SRD_WS}, s75 offen sc1", tag="KVst")
        a(f"buffer_store_dwordx4 v[{AK+4}:{AK+7}], v2, {SRD_WS}, s75 offen offset:2048 sc1", tag="KVst")

    def v_store(self):
        a = self.a
        AV = self.AV
        a("v_bfe_u32 v3, v1, 4, 1\nv_lshlrev_b32 v3, 11, v3\nv_lshrrev_b32 v5, 5, v1\nv_lshl_add_u32 v3, v5, 8, v3")
        a("v_and_b32 v5, 15, v1\nv_lshl_add_u32 v3, v5, 4, v3")
        a(f"buffer_store_dwordx4 v[{AV}:{AV+3}], v3, {SRD_WS}, s75 offen offset:1024 sc1", tag="KVst")
        a(f"buffer_store_dwordx4 v[{AV+4}:{AV+7}], v3, {SRD_WS}, s75 offen offset:1536 sc1", tag="KVst")

    def kv_epilogue_l1(self):
        a = self.a
        AK, AV = self.AK, self.AV
        self.stamp(2)
        for i in range(16):
            a(f"v_mul_f32 v{AK+i}, v27, v{AK+i}")
        for k in range(8):
            a(f"v_cvt_pk_bf16_f32 v{AK+k}, v{AK+2*k}, v{AK+2*k+1}")
        self.k_store()
        for i in range(16):
            a(f"v_mul_f32 v{AV+i}, v{240+i}, v{AV+i}")
        for k in range(8):
            a(f"v_cvt_pk_bf16_f32 v{AV+k}, v{AV+2*k}, v{AV+2*k+1}")
        self.v_store()

    def q_phase(self):
        a = self.a
        XF, WF, AK, AV, AQ = self.XF, self.WF, self.AK, self.AV, self.AQ
        waddr, stage_sync, stat_loads = self.waddr, self.stage_sync, self.stat_loads
        a.label("L_kvdone", reset=False)
        self.stamp(2)
        a("v_and_b32 v3, 31, v1")
        a(f"s_lshl_b32 s72, {sP}, 1\ns_add_u32 s72, s72, {sTB}\ns_mul_i32 s72, s72, 384\ns_add_u32 s72, s72, {L_CP}")
        a("v_lshl_add_u32 v9, v3, 2, s72")
        sk = self.lab("cs")
        a(f"s_cmp_eq_u32 {sL}, 0\ns_cbranch_scc0 {sk}")
        with a.cond("l0"):
            a("v_mov_b32 v26, v24\nv_mov_b32 v27, v25\nv_permlane32_swap_b32 v24, v26\nv_permlane32_swap_b32 v25, v27")
            a("v_add_f32 v24, v24, v26\nv_add_f32 v25, v25, v27")
            a("ds_write_b32 v9, v24\nds_write_b32 v9, v25 offset:128")
            a("s_waitcnt lgkmcnt(0)")
        a.label(sk, reset=False)
        a("s_barrier")
        self.row_stats()
        a(f"s_mul_i32 s72, {sP}, 768\ns_add_u32 s72, s72, {L_CP}")
        a("v_lshrrev_b32 v5, 5, v1\nv_lshl_add_u32 v56, v5, 4, s72")
        for q in range(4):
            a(f"ds_read_b128 v[{240+4*q}:{243+4*q}], v56 offset:{32*q}")
        for q in range(4):
            a(f"ds_read_b128 v[{32+4*q}:{35+4*q}], v56 offset:{384 + 32*q}")
        a("v_lshl_add_u32 v57, v3, 2, s72\nds_read_b32 v58, v57 offset:128\nds_read_b32 v59, v57 offset:512")
        a(f"s_lshl_b32 s72, {sWV}, 8\ns_add_u32 s72, s72, {L_MR}\nv_lshl_add_u32 v4, v3, 2, s72")
        a("ds_write_b32 v4, v26\nds_write_b32 v4, v27 offset:128")
        for i in range(16):
            a(f"v_add_f32 v{240+i}, v{240+i}, v{32+i}")
        a("v_add_f32 v58, v58, v59")
        a(f"v_lshl_add_u32 v4, v5, 4, s72")
        a("s_waitcnt lgkmcnt(0)")
        for q in range(4):
            a(f"ds_read_b128 v[{32+4*q}:{35+4*q}], v4 offset:{32*q}")
        for q in range(4):
            a(f"ds_read_b128 v[{48+4*q}:{51+4*q}], v4 offset:{128 + 32*q}") if q < 2 else None
        for i in range(16):
            a(f"v_fma_f32 v{AK+i}, -v26, v{240+i}, v{AK+i}")
        for i in range(16):
            a(f"v_mul_f32 v{AK+i}, v27, v{AK+i}")
        for k in range(8):
            a(f"v_cvt_pk_bf16_f32 v{AK+k}, v{AK+2*k}, v{AK+2*k+1}")
        self.k_store()
        for q in range(2, 4):
            a(f"ds_read_b128 v[{240+4*q}:{243+4*q}], v4 offset:{128 + 32*q}")
        rs = lambda i: (48 + i) if i < 8 else (240 + i)
        for i in range(16):
            a(f"v_fma_f32 v{AV+i}, -v{32+i}, v58, v{AV+i}")
        for i in range(16):
            a(f"v_mul_f32 v{AV+i}, v{rs(i)}, v{AV+i}")
        for k in range(8):
            a(f"v_cvt_pk_bf16_f32 v{AV+k}, v{AV+2*k}, v{AV+2*k+1}")
        self.v_store()
        a.label("L_kvstored", reset=False)
        self.stamp(3)
        def reads_q(n):
            s, k = 8 + (n >> 3), n & 7
            reg, off = waddr(s, k & 1)
            wf = WF + (n % 3) * 8
            for rd in range(2):
                a(f"ds_read_b64_tr_b16 v[{wf+2*rd}:{wf+2*rd+1}], {reg} offset:{off + (k >> 1)*4096 + rd*512}")
        def q_pass(first):
            self.w_dma_setup()
            stage_sync(8)
            reads_q(0); reads_q(1)
            for n in range(32):
                wf = WF + (n % 3) * 8
                cq = "0" if n == 0 and first else f"v[{AQ}:{AQ+15}]"
                a(f"v_mfma_f32_32x32x16_bf16 v[{AQ}:{AQ+15}], v[{wf}:{wf+3}], v[{XF+4*n}:{XF+4*n+3}], {cq}")
                if n + 2 < 32:
                    if (n + 2) % 8 == 0:
                        last = (n + 2) == 24
                        if last:
                            a.wait_tag("KVst")
                        stage_sync(8 + ((n + 2) >> 3))
                        if last:
                            self.flag_store(PH_KV)
                    reads_q(n + 2)
                if n < 4:
                    self.w_dma(11, only=n)
                if first and n % 2 == 0:
                    for i in range(4):
                        a(f"v_dot2c_f32_bf16 v21, s74, v{wf+i}")
            if first:
                a("v_mov_b32 v28, v21\nv_permlane32_swap_b32 v21, v28\nv_add_f32 v21, v21, v28")
                a("ds_write_b32 v9, v21 offset:256")
        lb, lj = self.lab("qb"), self.lab("qj")
        a(f"s_cmp_eq_u32 {sL}, 0\ns_cbranch_scc0 {lb}")
        a.fork()
        q_pass(True)
        a(f"s_branch {lj}")
        a.label(lb, reset=False)
        a.alt()
        q_pass(False)
        a.endfork()
        a.label(lj, reset=False)
        a("s_waitcnt lgkmcnt(0)\ns_barrier")
        self.stamp(4)
        sk = self.lab("qe")
        a(f"s_cmp_eq_u32 {sL}, 0\ns_cbranch_scc0 {sk}")
        with a.cond("l0q"):
            for q in range(4):
                a(f"ds_read_b128 v[{240+4*q}:{243+4*q}], v56 offset:{256 + 32*q}")
            for q in range(4):
                a(f"ds_read_b128 v[{32+4*q}:{35+4*q}], v56 offset:{384 + 256 + 32*q}")
            for i in range(16):
                a(f"v_add_f32 v{240+i}, v{240+i}, v{32+i}")
            for i in range(16):
                a(f"v_fma_f32 v{AQ+i}, -v26, v{240+i}, v{AQ+i}")
        a.label(sk, reset=False)
        a(f"v_mul_f32 v27, {f32(0.25*LOG2E)}, v27")
        for i in range(16):
            a(f"v_mul_f32 v{AQ+i}, v27, v{AQ+i}")
        for k in range(8):
            a(f"v_cvt_pk_bf16_f32 v{AQ+k}, v{AQ+2*k}, v{AQ+2*k+1}")

    def wo_dma(self):
        a = self.a
        a("v_lshrrev_b32 v3, 3, v1\nv_lshlrev_b32 v3, 10, v3\nv_bfe_u32 v4, v1, 1, 2\nv_bfe_u32 v5, v1, 4, 2\nv_xor_b32 v4, v4, v5")
        a("v_lshlrev_b32 v4, 1, v4\nv_and_b32 v5, 1, v1\nv_add_u32 v4, v4, v5\nv_lshl_add_u32 v19, v4, 4, v3")
        a(f"s_lshl_b32 s78, {sWV}, 17\ns_lshl_b32 s73, {sCQ}, 7\ns_add_u32 s78, s78, s73\ns_lshl_b32 s79, {sWV}, 14")

        def one(n):
            return (f"s_add_u32 m0, s79, {L_X + n*1024}\ns_add_u32 s72, s78, {n*8192}\n"
                    f"buffer_load_dwordx4 v19, {SRD_WO}, s72 offen lds")
        return one

    def build(self):
        a = self.a
        self.prologue()
        self.q_entry(0)
        self.kv_pass(True)
        done = False
        self.q_phase()
        done = self.stop("q")
        if not done:
            from gen2 import rest
            rest(self)
        a.label("L_fail", reset=False)
        self.srd(32, P_DBG, 256)
        a("v_mov_b32 v4, 0xdead\nv_mov_b32 v5, 0\ns_mov_b64 exec, 1")
        a(f"buffer_store_dword v4, v5, {SRD_T}, 0 offen")
        a.label("L_end", reset=False)
        a("s_endpgm")
        a.label("L_code_end", reset=False)
        body = a.finalize()
        head = open("interleave_layers__sliding_block__mixer_token_mlp__prompt.s.ref").read().split("\n")
        hdr = [l for l in head if l.startswith(";") and "@launch" not in l and "Override launch" not in l and "grid=ceil" not in l]
        hdr = hdr[:hdr.index(next(l for l in hdr if "d_ws" in l)) + 1]
        out = "\n".join(hdr) + f"\n; @launch grid=(256,1,1) block=(256,1,1) lds={LDS_SIZE}\n"
        out += '.amdgcn_target "amdgcn-amd-amdhsa--gfx950"\n.text\n'
        out += f".globl {KNAME}\n.p2align 8\n.type {KNAME},@function\n{KNAME}:\n"
        out += body
        out += f'''.section .rodata,"a"
.p2align 6
.amdhsa_kernel {KNAME}
  .amdhsa_next_free_vgpr 512
  .amdhsa_next_free_sgpr 102
  .amdhsa_accum_offset 256
  .amdhsa_group_segment_fixed_size 0
  .amdhsa_kernarg_size 88
  .amdhsa_user_sgpr_count 2
  .amdhsa_user_sgpr_kernarg_segment_ptr 1
  .amdhsa_system_sgpr_workgroup_id_x 1
.end_amdhsa_kernel
'''
        return out


if __name__ == "__main__":
    import argparse
    ap = argparse.ArgumentParser()
    ap.add_argument("--stop", default=None)
    ap.add_argument("--diag", action="store_true")
    ap.add_argument("-o", default="interleave_layers__sliding_block__mixer_token_mlp__prompt.s")
    args = ap.parse_args()
    g = Gen(stop_after=args.stop, diag=args.diag)
    src = g.build()
    open(args.o, "w").write(src)
    print("written", args.o, g.a.stats, "bytes", len(src))
```

```python
import re

REG_RE = re.compile(r"^(-|\|)?(abs\()?([vas])(\d+)\)?\|?$")
RANGE_RE = re.compile(r"^(-)?([vas])\[(\d+):(\d+)\]$")


def parse_regs(tok):
    tok = tok.strip()
    m = RANGE_RE.match(tok)
    if m:
        return [(m.group(2), i) for i in range(int(m.group(3)), int(m.group(4)) + 1)]
    m = REG_RE.match(tok)
    if m:
        return [(m.group(3), int(m.group(4)))]
    if tok == "vcc":
        return [("s", "vcc_lo"), ("s", "vcc_hi")]
    if tok in ("vcc_lo", "vcc_hi"):
        return [("s", tok)]
    if tok == "exec":
        return [("s", "exec_lo"), ("s", "exec_hi")]
    if tok in ("exec_lo", "exec_hi"):
        return [("s", tok)]
    if tok == "m0":
        return [("s", "m0")]
    return []


def split_ops(rest):
    toks, depth, cur = [], 0, ""
    for ch in rest:
        if ch in "[(":
            depth += 1
        elif ch in "])":
            depth -= 1
        if ch == "," and depth == 0:
            toks.append(cur.strip()); cur = ""
        else:
            cur += ch
    toks.append(cur.strip())
    return toks


TRANS = ("v_exp_f32", "v_log_f32", "v_rcp_f32", "v_rsq_f32", "v_sqrt_f32", "v_sin_f32", "v_cos_f32",
         "v_rcp_iflag_f32")
RMW = ("v_fmac_f32", "v_dot2c_f32_bf16", "v_pk_fmac_f16", "v_fmac_f16")


class Ins:
    __slots__ = ("text", "op", "ops", "mods", "kind", "rd", "wr", "passes", "srcc", "srcab", "cnt", "lds_dma",
                 "wide_store", "dpp", "comment")

    def __init__(self, text):
        self.text = text
        body = text.split(";")[0].strip()
        parts = body.split(None, 1)
        self.op = parts[0]
        rest = parts[1] if len(parts) > 1 else ""
        toks = split_ops(rest) if rest else []
        self.mods = []
        if toks:
            last = toks[-1].split()
            toks[-1] = last[0] if last else ""
            self.mods = last[1:]
        self.ops = toks
        self.rd, self.wr = set(), set()
        self.kind = "other"
        self.passes = 0
        self.srcc, self.srcab = set(), set()
        self.cnt = None
        self.lds_dma = False
        self.wide_store = False
        self.dpp = False
        self._classify()

    def R(self, i):
        return set(parse_regs(self.ops[i])) if i < len(self.ops) else set()

    def _classify(self):
        op, n = self.op, len(self.ops)
        op = re.sub(r"_(e32|e64|dpp|sdwa)$", "", op)
        if self.op.endswith("_dpp") or any(m.startswith(("quad_perm", "row_", "wave_")) for m in self.mods):
            self.dpp = True
        if op.startswith("v_mfma"):
            self.kind = "mfma"
            self.passes = 8 if "32x32" in op else 4
            self.wr = self.R(0)
            self.srcab = self.R(1) | self.R(2)
            self.srcc = self.R(3)
            self.rd = self.srcab | self.srcc
        elif op.startswith("v_"):
            self.kind = "valu"
            if op.startswith("v_cmp"):
                self.wr = self.R(0)
                for i in range(1, n):
                    self.rd |= self.R(i)
            elif op.startswith("v_permlane") and "swap" in op:
                self.wr = self.R(0) | self.R(1)
                self.rd = set(self.wr)
            elif op in ("v_add_co_u32", "v_sub_co_u32", "v_subrev_co_u32"):
                self.wr = self.R(0) | self.R(1)
                for i in range(2, n):
                    self.rd |= self.R(i)
            elif op in ("v_addc_co_u32", "v_subb_co_u32"):
                self.wr = self.R(0) | self.R(1)
                for i in range(2, n):
                    self.rd |= self.R(i)
            else:
                self.wr = self.R(0)
                for i in range(1, n):
                    self.rd |= self.R(i)
                if op in RMW or op == "v_writelane_b32":
                    self.rd |= self.R(0)
                if op == "v_cndmask_b32" and n == 3:
                    self.rd |= set(parse_regs("vcc"))
            if self.dpp:
                self.rd |= self.R(0)
        elif op.startswith("ds_"):
            self.kind = "ds"
            self.cnt = "lgkm"
            if op.startswith(("ds_read", "ds_bpermute", "ds_permute", "ds_swizzle")):
                self.wr = self.R(0)
                for i in range(1, n):
                    self.rd |= self.R(i)
            else:
                for i in range(n):
                    self.rd |= self.R(i)
        elif op.startswith("buffer_"):
            self.kind = "vmem"
            self.cnt = "vm"
            if "lds" in self.mods:
                self.lds_dma = True
                for i in range(n):
                    self.rd |= self.R(i)
                self.rd.add(("s", "m0"))
            elif op.startswith("buffer_load"):
                self.wr = self.R(0)
                for i in range(1, n):
                    self.rd |= self.R(i)
            else:
                for i in range(n):
                    self.rd |= self.R(i)
                if op.startswith("buffer_atomic") and "sc0" in self.mods:
                    self.wr = self.R(0)
                self.wide_store = op.endswith(("x3", "x4"))
        elif op.startswith("s_"):
            self.kind = "salu"
            if op.startswith(("s_load", "s_memtime", "s_memrealtime")):
                self.kind = "smem"
                self.cnt = "smem"
                self.wr = self.R(0)
                for i in range(1, n):
                    self.rd |= self.R(i)
            elif op.startswith(("s_cmp", "s_bitcmp")):
                for i in range(n):
                    self.rd |= self.R(i)
            elif op.startswith(("s_cbranch", "s_branch", "s_waitcnt", "s_barrier", "s_nop", "s_endpgm", "s_sleep",
                                "s_setprio")):
                self.kind = "ctl"
                if op == "s_cbranch_vccz" or op == "s_cbranch_vccnz":
                    self.rd = set(parse_regs("vcc"))
                if op.startswith("s_cbranch_exec"):
                    self.rd = set(parse_regs("exec"))
            elif "saveexec" in op:
                self.wr = self.R(0) | set(parse_regs("exec"))
                self.rd = self.R(1) | set(parse_regs("exec"))
            else:
                self.wr = self.R(0)
                for i in range(1, n):
                    self.rd |= self.R(i)
                if op in ("s_addk_i32", "s_mulk_i32"):
                    self.rd |= self.R(0)
        else:
            raise ValueError("unknown instruction: " + self.text)


def vreg(s):
    return {r for r in s if r[0] in "va"}


def sreg(s):
    return {r for r in s if r[0] == "s"}


class Asm:
    def __init__(self):
        self.items = []
        self.ctx = ()

    def __call__(self, text, tag=None):
        for line in text.split("\n"):
            line = line.strip()
            if not line:
                continue
            if line.startswith(";"):
                self.items.append(("c", line))
            else:
                self.items.append(("i", line, tag, self.ctx))

    def cond(self, name):
        outer = self

        class _C:
            def __enter__(s_):
                s_.old = outer.ctx
                outer.ctx = outer.ctx + (name,)
                outer.items.append(("cin", name))

            def __exit__(s_, *e):
                outer.ctx = s_.old
                outer.items.append(("cout", name))
        return _C()

    def uncond(self, text, tag=None):
        old, self.ctx = self.ctx, ()
        self(text, tag)
        self.ctx = old

    def wait_tag(self, *tags, emit=True):
        self.items.append(("w", tags, self.ctx, emit))

    def c(self, text):
        self.items.append(("c", "; " + text))

    def label(self, name, reset=True):
        self.items.append(("l", name, reset))

    def raw(self, text):
        self.items.append(("raw", text))

    def fork(self):
        self.items.append(("fork",))

    def alt(self):
        self.items.append(("alt",))

    def endfork(self):
        self.items.append(("endfork",))

    def note_vm(self):
        self.items.append(("notevm", self.ctx))

    def dropfork(self):
        self.items.append(("dropfork",))

    def snap(self, name):
        self.items.append(("snap", name))

    def restore(self, name):
        self.items.append(("restore", name))

    def assume_clean(self):
        self.items.append(("reset",))

    def finalize(self, check_only=False):
        out = []
        hist = []
        pos = 0
        vm, lg = [], []
        smem = set()
        nnop = nwait = 0
        forks = []
        conds = []
        snaps = {}

        def emit(text):
            out.append("  " + text)

        def last_gap(pred):
            for (p, ins) in reversed(hist):
                if pos - p > 24:
                    break
                if pred(ins):
                    return pos - p - 1
            return None

        def trim(lst, nkeep, ctx):
            if nkeep == 0:
                return []
            seen = 0
            for i in range(len(lst) - 1, -1, -1):
                if set(lst[i][2]) <= set(ctx):
                    seen += 1
                    if seen > nkeep:
                        return lst[i + 1:]
            return lst

        def younger(lst, i, ctx):
            return sum(1 for e in lst[i + 1:] if set(e[2]) <= set(ctx))

        for it in self.items:
            if it[0] == "w":
                idx = [i for i, e in enumerate(vm) if e[1] in it[1]]
                if idx:
                    i = idx[-1]
                    n = min(younger(vm, i, it[2]), 63)
                    if it[3]:
                        t = f"s_waitcnt vmcnt({n})"
                        emit(t); hist.append((pos, Ins(t))); pos += 1
                    vm = vm[i + 1:]
                continue
            if it[0] == "snap":
                snaps[it[1]] = (list(vm), list(lg), set(smem)); continue
            if it[0] == "restore":
                vm, lg, smem = list(snaps[it[1]][0]), list(snaps[it[1]][1]), set(snaps[it[1]][2]); continue
            if it[0] == "dropfork":
                forks.pop(); continue
            if it[0] == "notevm":
                vm.append((set(), None, it[1])); continue
            if it[0] == "cin":
                conds.append((list(vm), list(lg), set(smem))); continue
            if it[0] == "cout":
                v0, l0, s0 = conds.pop()
                ids = {id(e) for e in vm}
                vm = [e for e in v0 if id(e) not in ids and it[1] not in e[2]] + vm
                ids = {id(e) for e in lg}
                lg = [e for e in l0 if id(e) not in ids and it[1] not in e[2]] + lg
                smem |= s0
                continue
            if it[0] == "fork":
                forks.append((list(vm), list(lg), set(smem), list(hist))); continue
            if it[0] == "alt":
                s0 = forks.pop()
                forks.append((list(vm), list(lg), set(smem), list(hist)))
                vm, lg, smem = list(s0[0]), list(s0[1]), set(s0[2])
                continue
            if it[0] == "endfork":
                sa = forks.pop()
                vm, lg, smem = list(sa[0]), list(sa[1]) if len(sa[1]) >= len(lg) else lg, set(sa[2]) | smem
                continue
            if it[0] == "c":
                out.append(it[1]); continue
            if it[0] == "raw":
                out.append(it[1]); continue
            if it[0] == "reset":
                vm, lg, smem = [], [], set(); continue
            if it[0] == "l":
                out.append(it[1] + ":")
                if it[2]:
                    pend = [e[0] for e in vm if e[0]] + [e[0] for e in lg if e[0]]
                    if pend or smem:
                        raise RuntimeError(f"label {it[1]}: register loads still outstanding: {pend} {smem}")
                    vm = []
                    lg = []
                continue
            ins = Ins(it[1])
            op = ins.op
            ctx = it[3]
            if op == "s_waitcnt":
                t = ins.text
                m = re.search(r"vmcnt\((\d+)\)", t)
                if m:
                    vm = trim(vm, int(m.group(1)), ctx)
                m = re.search(r"lgkmcnt\((\d+)\)", t)
                if m:
                    nkeep = int(m.group(1))
                    if nkeep == 0:
                        lg = []; smem = set()
                    elif not smem:
                        lg = trim(lg, nkeep, ctx)
                emit(t); hist.append((pos, ins)); pos += 1
                continue
            touched = ins.rd | ins.wr
            iv = [i for i, e in enumerate(vm) if e[0] & touched]
            il = [i for i, e in enumerate(lg) if e[0] & touched]
            w = []
            if iv:
                n = min(younger(vm, iv[-1], ctx), 63)
                w.append(f"vmcnt({n})")
                vm = vm[iv[-1] + 1:]
            if (smem & touched) or (il and smem):
                w.append("lgkmcnt(0)")
                lg = []; smem = set()
            elif il:
                n = min(younger(lg, il[-1], ctx), 15)
                w.append(f"lgkmcnt({n})")
                lg = lg[il[-1] + 1:]
            if w:
                t = "s_waitcnt " + " ".join(w)
                emit(t); hist.append((pos, Ins(t))); pos += 1; nwait += 1
            need = 0

            def req(n, pred):
                nonlocal need
                g = last_gap(pred)
                if g is not None and g < n:
                    need = max(need, n - g)

            rv, wv = vreg(ins.rd), vreg(ins.wr)
            rs = sreg(ins.rd)
            if ins.kind == "mfma":
                req(2, lambda p: p.kind == "valu" and vreg(p.wr) & rv)
                req(8, lambda p: p.kind == "mfma" and p.passes == 4 and p.wr & ins.srcab)
                req(12, lambda p: p.kind == "mfma" and p.passes == 8 and p.wr & ins.srcab)
                for ps, n in ((4, 6), (8, 10)):
                    req(n, lambda p, ps=ps: p.kind == "mfma" and p.passes == ps and (p.wr & ins.srcc)
                        and not (p.wr == ins.srcc and p.passes == ins.passes))
                for ps, n in ((4, 6), (8, 10)):
                    req(n, lambda p, ps=ps: p.kind == "mfma" and p.passes == ps and (p.wr & ins.wr)
                        and not (p.wr == ins.wr and p.wr == ins.srcc and p.passes == ins.passes))
            if ins.kind in ("valu", "ds", "vmem"):
                tv = rv | wv
                req(8, lambda p: p.kind == "mfma" and p.passes == 4 and p.wr & tv)
                req(12, lambda p: p.kind == "mfma" and p.passes == 8 and p.wr & tv)
            if ins.kind == "valu":
                req(3, lambda p: p.kind == "mfma" and p.passes == 4 and p.srcc & wv)
                req(7, lambda p: p.kind == "mfma" and p.passes == 8 and p.srcc & wv)
                base = re.sub(r"_(e32|e64)$", "", op)
                if base not in TRANS:
                    req(1, lambda p: p.kind == "valu" and re.sub(r"_(e32|e64)$", "", p.op) in TRANS and p.wr & (rv | wv))
                if "permlane" in op:
                    req(2, lambda p: p.kind == "valu" and vreg(p.wr) & rv)
                if op.startswith(("v_readfirstlane", "v_readlane")):
                    req(1, lambda p: p.kind == "valu" and vreg(p.wr) & rv)
                if op.startswith(("v_readlane", "v_writelane")):
                    req(4, lambda p: p.kind == "valu" and sreg(p.wr) & rs)
                req(2, lambda p: p.kind == "valu" and sreg(p.wr) & rs)
                if ins.dpp:
                    req(2, lambda p: p.kind == "valu" and vreg(p.wr) & rv)
                req(2, lambda p: p.kind == "vmem" and p.wide_store and vreg(p.R(0)) & wv)
            if ins.kind in ("ds", "vmem") and wv:
                req(1, lambda p: p.kind == "vmem" and p.wide_store and vreg(p.R(0)) & wv)
            if ins.kind == "vmem":
                req(5, lambda p: p.kind == "valu" and sreg(p.wr) & rs)
                if ins.lds_dma:
                    req(1, lambda p: p.kind == "salu" and ("s", "m0") in p.wr)
            if ins.kind == "ctl" and op in ("s_cbranch_vccz", "s_cbranch_vccnz"):
                req(1, lambda p: p.kind == "valu" and sreg(p.wr) & set(parse_regs("vcc")))
            while need > 0:
                k = min(need, 16)
                t = f"s_nop {k - 1}"
                emit(t); hist.append((pos, Ins("s_nop 0"))); pos += k; need -= k; nnop += 1
            emit(ins.text)
            hist.append((pos, ins))
            pos += 1
            if op == "s_nop":
                pos += int(ins.ops[0])
            if len(hist) > 64:
                hist = hist[-48:]
            if ins.cnt == "vm":
                vm.append((set(ins.wr), it[2], ctx))
            elif ins.cnt == "lgkm":
                lg.append((set(ins.wr), it[2], ctx))
            elif ins.cnt == "smem":
                smem |= ins.wr
        self.stats = dict(nops=nnop, waits=nwait, lines=len(out))
        return "\n".join(out) + "\n"
```

```python
import math
from gen import *

NEG = f32(-1e30)
import os
OPT = set(os.environ.get("KOPT", "").split(","))
INB = "inb" in OPT
sHB, sUO, sACC, sREDO = "s36", 37, "s[40:41]", "s42"


def ar(b, n=4):
    return f"a[{b}:{b+n-1}]"


def vr(b, n=4):
    return f"v[{b}:{b+n-1}]"


QA, QB = 224, 228
SBUF = (64, 80, 96, 112)
NEGM = {"A": 128, "B": 144}
OACC = {"A": 160, "B": 176}
PBUF = {"A": 192, "B": 200}
CDIAG, CFAR, ANDD, ANDF = 208, 232, 32, 40
AK0, AV0 = 0, 72
L_KV = L_RING


def kfrag(b):
    return AK0 + b * 4


def vfrag(b, half):
    return AV0 + ((b & 1) * 2 + half) * 4


def attn_setup(g):
    a = g.a
    a.c("======== attention constants")
    a("v_and_b32 v3, 31, v1\nv_lshrrev_b32 v4, 5, v1\nv_lshlrev_b32 v4, 2, v4\nv_sub_u32 v3, v3, v4")
    a(f"v_mov_b32 v48, 0\nv_mov_b32 v49, {NEG}\nv_mov_b32 v50, 0xffff\nv_mov_b32 v51, 0xffff0000")
    for i in range(16):
        ci = (i & 3) + 8 * (i >> 2)
        sp = f"s[{72 + 2*(i % 4)}:{73 + 2*(i % 4)}]"
        a(f"v_cmp_le_i32 {sp}, {ci}, v3")
        a(f"v_mov_b32 v{OACC['A']+i}, 0\nv_mov_b32 v{OACC['B']+i}, 0")
        a(f"v_cndmask_b32 v{CDIAG+i}, v49, v48, {sp}\nv_cndmask_b32 v{CFAR+i}, v48, v49, {sp}")
        a(f"v_cndmask_b32 v{52 + (i & 1)}, v48, v{50 + (i & 1)}, {sp}")
        if i & 1:
            a(f"v_or_b32 v{ANDD + i//2}, v52, v53\nv_not_b32 v{ANDF + i//2}, v{ANDD + i//2}")
    for i in range(8):
        a(f"v_mov_b32 v{PBUF['A']+i}, 0\nv_mov_b32 v{PBUF['B']+i}, 0")
    for k in range(AV0, AV0 + 16):
        a(f"v_accvgpr_write_b32 a{k}, v48")
    a("v_mov_b32 v54, 0x3f803f80\ns_mov_b32 exec_lo, 0x00110000\ns_mov_b32 exec_hi, 0x00110000")
    for k in range(AV0, AV0 + 16):
        a(f"v_accvgpr_write_b32 a{k}, v54")
    a("s_mov_b64 exec, -1")


def warmup_text(srd, dst):
    return (f"s_lshl_b32 s72, s2, 2\ns_add_u32 s72, s72, {sWV}\ns_mul_i32 s73, s72, {43*128}\nv_lshlrev_b32 v7, 7, v1\n"
            f"s_mov_b32 exec_lo, -1\ns_mov_b32 exec_hi, 0x7ff\n"
            f"buffer_load_dword {dst}, v7, {srd}, s73 offen\ns_mov_b64 exec, -1")


def warmup(g, srd, dst):
    g.a(warmup_text(srd, dst))


def team_check(g):
    a = g.a
    top, ok = g.lab("tc"), g.lab("tco")
    a(f"s_lshl_b32 s72, {sR}, 7\ns_add_u32 s72, s72, {WS_XC}\nv_lshlrev_b32 v3, 4, v1\ns_mov_b32 {sCNT}, 0\ns_mov_b64 exec, 0xff")
    a.label(top, reset=False)
    a(f"buffer_load_dwordx4 v[24:27], v3, {SRD_WS}, s72 offen sc1\ns_waitcnt vmcnt(0)")
    a(f"v_cmp_ne_u64 vcc, {sNP}, v[26:27]\ns_cbranch_vccz {ok}")
    a(f"s_add_u32 {sCNT}, {sCNT}, 1\ns_cmp_lt_u32 {sCNT}, {POLL_LIMIT}\ns_cbranch_scc1 {top}\ns_branch L_fail")
    a.label(ok, reset=False)
    a(f"v_cmp_ne_u32 vcc, s1, v24\ns_cmp_eq_u64 vcc, 0\ns_cselect_b32 {sFAST}, 1, 0\ns_mov_b64 exec, -1")


def x2_touch_text():
    return ("v_lshrrev_b32 v6, 3, v0\nv_and_b32 v3, 7, v0\nv_lshlrev_b32 v6, 10, v6\nv_lshl_add_u32 v6, v3, 4, v6\n"
            f"s_lshl_b32 s72, {sR}, 16\ns_lshl_b32 s73, {sCQ}, 7\ns_add_u32 s72, s72, s73\n"
            f"s_add_u32 s73, s72, 32768\n"
            f"buffer_load_dword v23, v6, {SRD_DST}, s72 offen sc1\nbuffer_load_dword v24, v6, {SRD_DST}, s73 offen sc1\n"
            f"s_add_u32 s72, {sR}, 32\ns_lshl_b32 s72, s72, 3\ns_add_u32 s72, s72, {sCQ}\ns_lshl_b32 s72, s72, 10\ns_add_u32 s72, s72, {WS_ST2}\n"
            f"buffer_load_dword v25, v2, {SRD_WS}, s72 offen sc1")


def u_offsets(g, dst):
    a = g.a
    a(f"s_mul_i32 s76, {sWV}, 3\ns_mul_i32 s77, {sC1}, {UC}\ns_lshl_b32 s73, {sL}, 21\ns_add_u32 s77, s77, s73\ns_add_u32 s77, s77, {WS_U}")
    for i in range(3):
        a(f"s_add_u32 s72, s76, {i}\ns_lshr_b32 s73, s72, 1\ns_and_b32 s72, s72, 1")
        a(f"s_mul_i32 s74, {sJ1}, 6\ns_add_u32 s74, s74, s73\ns_lshr_b32 s75, s74, 2\ns_and_b32 s79, s74, 3")
        a(f"s_lshl_b32 s75, s75, 12\ns_lshl_b32 s79, s79, 8\ns_add_u32 s75, s75, s79\ns_lshl_b32 s72, s72, 11\ns_add_u32 s75, s75, s72")
        a(f"s_add_u32 s75, s75, s77\ns_cmp_ge_u32 s74, 172\ns_cselect_b32 s79, 0x70000000, 0\ns_or_b32 s75, s75, s79")
        a(f"s_cmp_eq_u32 {sM1}, 0\ns_cselect_b32 s{dst+i}, 0x70000000, s75")


def inband_addresses(g):
    a = g.a
    a(f"s_lshl_b32 s72, {sCQ}, 6\ns_lshl_b32 s73, {sR}, 1\ns_add_u32 s72, s72, s73\ns_add_u32 s72, s72, {sTB}\ns_lshl_b32 s72, s72, 2")
    a(f"s_lshl_b32 s73, {sP}, 1\ns_add_u32 s72, s72, s73\ns_lshl_b32 s72, s72, 10\ns_lshl_b32 s73, {sL}, 21\ns_add_u32 s72, s72, s73\ns_add_u32 {sHB}, s72, {WS_H}")
    a("s_mov_b64 s[44:45], s[74:75]")
    u_offsets(g, sUO)
    a("s_mov_b64 s[74:75], s[44:45]")
    a("v_lshrrev_b32 v25, 5, v1\nv_lshlrev_b32 v25, 10, v25\nv_bfe_u32 v7, v1, 1, 4\nv_lshl_add_u32 v25, v7, 4, v25")
    a("v_mov_b32 v28, -1\nv_mov_b32 v29, -1\nv_mov_b32 v30, -1\nv_mov_b32 v31, -1")


def attn(g):
    a = g.a
    a.c("======== attention")
    a(f"s_sub_u32 s72, {sR}, 4\nv_add_u32 v8, s72, v1\nv_cmp_le_i32 s[74:75], 0, v8")
    g.wg_of("v9", "v8", sCQ)
    g.vflag("v9", PH_KV)
    a("s_and_b64 s[74:75], s[74:75], 0xf")
    a(f"s_lshl_b32 s76, {sR}, 1\ns_add_u32 s76, s76, {sTB}\ns_sub_u32 s77, 8, s76\ns_max_i32 s77, s77, 0")
    a(f"s_lshl_b32 s78, {sCQ}, 1\ns_add_u32 s78, s78, {sP}\ns_lshl_b32 s78, s78, 18\ns_lshl_b32 s79, {sL}, 22")
    a(f"s_add_u32 s78, s78, s79\ns_add_u32 s78, s78, {WS_KV}")
    a(f"s_lshl_b32 s79, {sTB}, 2\ns_lshl_b32 s80, {sR}, 1\ns_add_u32 s80, s80, s79\ns_sub_u32 s80, s80, 8")
    for i in range(4):
        a(f"s_add_i32 s{81+i}, s80, {i}\ns_max_i32 s{81+i}, s{81+i}, 0\ns_lshl_b32 s{81+i}, s{81+i}, 12\ns_add_u32 s{81+i}, s{81+i}, s78")
    a(f"s_lshl_b32 s85, {sR}, 1\ns_add_u32 s85, s85, {sTB}\ns_lshl_b32 s85, s85, 12\ns_add_u32 s85, s85, s78")
    a(f"s_mul_i32 s86, {sP}, 40960\ns_lshl_b32 s87, {sTB}, 14\ns_add_u32 s87, s87, s86\ns_add_u32 s87, s87, {L_KV}")
    a(f"s_lshl_b32 s79, {sTB}, 12\ns_add_u32 s79, s79, s86\ns_add_u32 s79, s79, {L_KV + 8*4096}")
    for q4 in range(4):
        a(f"s_add_u32 m0, s79, {q4*1024}\ns_add_u32 s72, s85, {q4*1024}")
        a(f"buffer_load_dwordx4 v2, {SRD_WS}, s72 offen sc1 lds", tag="Kd")
    a(f"s_lshl_b32 s88, {sTB}, 12\ns_add_u32 s88, s88, s86\ns_add_u32 s88, s88, {L_KV}\nv_add_u32 v10, s88, v2")
    a("v_and_b32 v8, 15, v1\nv_lshlrev_b32 v8, 4, v8\nv_lshrrev_b32 v7, 5, v1\nv_lshl_add_u32 v8, v7, 8, v8\nv_add_u32 v11, s88, v8")
    a("s_mov_b32 s90, 0xffff\ns_mov_b32 s91, 0xffff")
    a("v_bfe_u32 v20, v1, 4, 1\nv_lshlrev_b32 v20, 14, v20\nv_and_b32 v7, 15, v1\nv_lshl_add_u32 v20, v7, 4, v20")
    a("v_lshrrev_b32 v7, 5, v1\nv_lshl_add_u32 v20, v7, 8, v20")
    a(f"s_lshl_b32 s72, {sR}, 2\ns_lshl_b32 s73, {sTB}, 1\ns_add_u32 s72, s72, s73\ns_lshl_b32 s72, s72, 4")
    a(f"s_lshl_b32 s73, {sCQ}, 1\ns_add_u32 s72, s72, s73\ns_add_u32 s72, s72, {sP}\ns_lshl_b32 s72, s72, 10")
    a(f"s_lshl_b32 s73, {sL}, 21\ns_add_u32 s72, s72, s73\ns_add_u32 s89, s72, {WS_OF}")
    if INB:
        inband_addresses(g)
    a("s_mov_b64 s[76:77], s[74:75]")
    l0_only(g, "l0p", lambda: (team_check(g), p1_setup(g)))
    wo = g.wo_dma()
    g.poll("v9", "s[76:77]")
    a(f"s_lshl_b32 s76, {sR}, 1\ns_add_u32 s76, s76, {sTB}\ns_sub_u32 s77, 8, s76\ns_max_i32 s77, s77, 0")
    g.stamp(6)
    def kvdma(i, h, part):
        return (f"s_add_u32 m0, s87, {i*4096 + h*2048 + part}\ns_add_u32 s72, s{81+i}, {h*2048 + part}\n"
                f"buffer_load_dwordx4 v2, {SRD_WS}, s72 offen sc1 lds")
    for i in range(4):
        for h in range(2):
            a(kvdma(i, h, 0), tag="Kd")
    vd = [kvdma(i, h, 1024) for i in range(4) for h in range(2)]
    heads = ("A", "B")
    q = {"A": QA, "B": QB}
    mx = {"A": (48, 49), "B": (50, 51)}

    def kread(b):
        t, h = b >> 1, b & 1
        return f"ds_read_b128 {ar(kfrag(b))}, v10 offset:{t*4096 + h*2048}"

    def vread(b, half):
        t, h = b >> 1, b & 1
        return f"ds_read_b128 {ar(vfrag(b, half))}, v11 offset:{t*4096 + h*2048 + 1024 + half*512}"

    def qk(b, c):
        return f"v_mfma_f32_32x32x16_bf16 {vr(SBUF[b & 3],16)}, {ar(kfrag(b))}, {vr(q[heads[b & 1]])}, {c}"

    def cmask(t):
        return vr(CFAR, 16) if t == 0 else vr(CDIAG, 16) if t == 8 else "0"

    for h in heads:
        a(f"v_mov_b32 v{mx[h][0]}, {NEG}\nv_mov_b32 v{mx[h][1]}, {NEG}")
    a.wait_tag("Kd")
    a("s_barrier")
    a.c("pass 1: true row maximum over the masked window")
    for b in range(4):
        a(kread(b))
    a(qk(0, cmask(0)))
    a(kread(4))
    a(qk(1, cmask(0)))
    for b in range(18):
        t, s_, h = b >> 1, SBUF[b & 3], heads[b & 1]
        if t < 8 and b % 2 == 0:
            stub, back = g.lab("p1s"), g.lab("p1b")
            always = [x for bb in (b, b + 1) for x in ([kread(bb + 5)] if bb + 5 < 18 else []) + ([qk(bb + 2, cmask((bb + 2) >> 1))] if bb + 2 < 18 else [])
                      + ([vd[bb]] if bb < 8 else []) + ([wo(bb - 2)] if bb >= 2 else [])]
            a(f"s_cmp_gt_u32 s77, {t}\ns_cbranch_scc1 {stub}")
        if b + 5 < 18:
            a(kread(b + 5))
        if b + 2 < 18:
            a(qk(b + 2, cmask((b + 2) >> 1)))
        if b < 8:
            a(vd[b], tag="Vd")
        for i in range(8):
            m = mx[h][i & 1]
            a(f"v_max3_f32 v{m}, v{m}, v{s_+2*i}, v{s_+2*i+1}")
            if i == 3 and b >= 2:
                a(wo(b - 2))
        if t < 8 and b % 2 == 1:
            a.label(back, reset=False)
            g.stubs.append((stub, back, ["s_waitcnt lgkmcnt(0)"] + [y for x in always for y in (x, "s_waitcnt lgkmcnt(0)")]))
    for h in heads:
        m0, m1 = mx[h]
        a(f"v_max_f32 v{m0}, v{m0}, v{m1}\nv_mov_b32 v{m1}, v{m0}")
    for h in heads:
        m0, m1 = mx[h]
        a(f"v_permlane32_swap_b32 v{m0}, v{m1}")
    for h in heads:
        m0, m1 = mx[h]
        a(f"v_max_f32 v{m0}, v{m0}, v{m1}\nv_xor_b32 v{m0}, 0x80000000, v{m0}")
    for i in range(16):
        a(f"v_mov_b32 v{NEGM['A']+i}, v{mx['A'][0]}")
    a(qk(0, vr(NEGM["A"], 16)))
    for i in range(16):
        a(f"v_mov_b32 v{NEGM['B']+i}, v{mx['B'][0]}")
    a.wait_tag("Vd")
    a("s_barrier")
    a(f"buffer_load_dword v21, v20, {SRD_WS}, s89 offen sc1\nbuffer_load_dword v23, v20, {SRD_WS}, s89 offen offset:512 sc1")
    a(f"s_lshl_b32 s72, {sL}, 5\ns_add_u32 s72, s72, {sR}\ns_lshl_b32 s72, s72, 3\ns_add_u32 s72, s72, {sCQ}\ns_lshl_b32 s72, s72, 10")
    a(f"s_lshl_b32 s73, {sWV}, 8\ns_add_u32 s72, s72, s73\ns_add_u32 s72, s72, {WS_ST}")
    a(f"s_mov_b64 exec, 0xffff\nbuffer_load_dword v22, v2, {SRD_WS}, s72 offen sc1\ns_mov_b64 exec, -1")
    l0_only(g, "l0p", lambda: p1_loads(g))
    g.stamp(7)
    a.c("pass 2: P = exp2(S - m), O += V^T P; block b exponentiates S_b, starts S_{b+1} and finishes block b-1")

    def s2(b):
        return SBUF[b & 1]

    def qk2(b):
        h = heads[b & 1]
        return f"v_mfma_f32_32x32x16_bf16 {vr(s2(b),16)}, {ar(kfrag(b))}, {vr(q[h])}, {vr(NEGM[h],16)}"

    def pv(b, half):
        h = heads[b & 1]
        o, p = OACC[h], PBUF[h]
        return f"v_mfma_f32_32x32x16_bf16 {vr(o,16)}, {ar(vfrag(b, half))}, {vr(p+4*half)}, {vr(o,16)}"

    for b in range(18):
        t, h = b >> 1, heads[b & 1]
        nxt = [qk2(b + 1)] if b + 1 < 18 else []
        prv = [pv(b - 1, 0), pv(b - 1, 1)] if b >= 1 else []
        vl = ["s_mov_b64 exec, s[90:91]\n" + vread(b, 0) + "\n" + vread(b, 1) + "\ns_mov_b64 exec, -1"]
        if INB and b == 2:
            for e in range(2):
                a(f"buffer_store_dwordx4 v[28:31], v2, {SRD_WS}, {sHB} offen offset:{e*1024} sc1")
        if INB and b == 4:
            a("s_mov_b32 exec_lo, 0x55555555\ns_mov_b32 exec_hi, 0x55555555")
            for i in range(3):
                a(f"buffer_store_dwordx4 v[28:31], v25, {SRD_WS}, s{sUO+i} offen sc1")
            a("s_mov_b64 exec, -1")
        if t < 8 and b % 2 == 0:
            stub, back = g.lab("sk"), g.lab("bk")
            a(f"s_cmp_gt_u32 s77, {t}\ns_cbranch_scc1 {stub}")
        s_, p = s2(b), PBUF[h]
        extra = {1: nxt[:1], 4: prv[:1], 9: prv[1:2], 11: vl}
        for i in range(16):
            a(f"v_exp_f32 v{s_+i}, v{s_+i}")
            if i >= 2 and i % 2 == 0:
                k = i // 2 - 1
                a(f"v_cvt_pk_bf16_f32 v{p+k}, v{s_+2*k}, v{s_+2*k+1}")
            for x in extra.get(i, []):
                a(x)
        a(f"s_nop 0\nv_cvt_pk_bf16_f32 v{p+7}, v{s_+14}, v{s_+15}")
        if t in (0, 8):
            msk = ANDF if t == 0 else ANDD
            for k in range(8):
                a(f"v_and_b32 v{p+k}, v{msk+k}, v{p+k}")
        if t < 8 and b % 2 == 1:
            a.label(back, reset=False)
            g.stubs.append((stub, back, nxt))
    a(pv(17, 0)); a(pv(17, 1))
    g.stamp(8)
    for hi, h in enumerate(heads):
        o = OACC[h]
        a(f"v_rcp_f32 v52, v{o+8}")
        for i in range(8):
            a(f"v_mul_f32 v{o+i}, v52, v{o+i}")
        for k in range(4):
            a(f"v_cvt_pk_bf16_f32 v{o+k}, v{o+2*k}, v{o+2*k+1}")

    def ost(m):
        for hi, h in enumerate(heads):
            a(f"buffer_store_dwordx4 {vr(OACC[h])}, v20, {SRD_WS}, s89 offen offset:{hi*512} {m}", tag="Ost")
    g.dual(ost)


L_STG = L_RING + 10240
L_STG2 = L_RING
V_W1D, V_W1R, V_W2D, V_W2R = 52, 56, 40, 42


PA1 = 96
V_P1 = 12


def p1_setup(g):
    a = g.a
    a("s_lshr_b32 s72, s2, 2\ns_and_b32 s73, s2, 3")
    a("s_mul_i32 s74, s73, 7\ns_min_u32 s75, s73, 1\ns_add_u32 s74, s74, s75")
    a("s_cmp_eq_u32 s73, 0\ns_cselect_b32 s75, 8, 7")
    a(f"s_mul_i32 s101, s72, {32*2752}\ns_mul_i32 s73, s74, 96\ns_add_u32 s101, s101, s73\ns_mul_i32 s75, s75, 6")
    a("s_mov_b32 s72, 1311\ns_mov_b32 s73, 2752")
    for n in range(7):
        a(f"s_lshl_b32 s74, {sWV}, 6\ns_add_u32 s74, s74, {256*n}\nv_add_u32 v3, s74, v1")
        a("v_mul_lo_u32 v4, v3, s72\nv_lshrrev_b32 v4, 16, v4\nv_mul_u32_u24 v5, 50, v4\nv_sub_u32 v5, v3, v5")
        a("v_mul_lo_u32 v6, v4, s73\nv_lshl_add_u32 v6, v5, 4, v6")
        a("v_cmp_gt_u32 vcc, s75, v5\nv_cmp_gt_u32 s[78:79], 32, v4\ns_and_b64 vcc, vcc, s[78:79]")
        a(f"v_mov_b32 v5, 0x7ff00000\nv_cndmask_b32 v{V_P1+n}, v5, v6, vcc")


def p1_loads(g):
    a = g.a
    for n in range(7):
        a(f"buffer_load_dwordx4 {ar(PA1+4*n)}, v{V_P1+n}, {SRD_W1}, s101 offen")


def p1_finish(g):
    a = g.a
    L1 = L_RING
    a("s_lshr_b32 s72, s2, 2\ns_and_b32 s73, s2, 3")
    a("s_mul_i32 s74, s73, 7\ns_min_u32 s75, s73, 1\ns_add_u32 s74, s74, s75")
    a("s_cmp_eq_u32 s73, 0\ns_cselect_b32 s75, 8, 7")
    a(f"s_lshl_b32 s80, {sWV}, 10\ns_add_u32 s80, s80, {L1}\nv_add_u32 v64, s80, v2")
    for n in range(7):
        a(f"ds_write_b128 v64, {ar(PA1+4*n)} offset:{n*4096}")
    a("v_lshrrev_b32 v65, 4, v1\nv_lshlrev_b32 v65, 3, v65\nv_bfe_u32 v66, v1, 2, 2\nv_add_u32 v65, v65, v66\nv_and_b32 v66, 3, v1")
    a(f"v_mul_u32_u24 v67, 800, v65\nv_lshl_add_u32 v67, v66, 3, v67\ns_lshl_b32 s80, {sWV}, 5\ns_add_u32 s80, s80, {L1}\nv_add_u32 v67, s80, v67")
    a("s_waitcnt lgkmcnt(0)\ns_barrier")
    for n in range(6):
        for rd in range(2):
            a(f"ds_read_b64_tr_b16 v[{72+4*n+2*rd}:{73+4*n+2*rd}], v67 offset:{128*n + rd*3200}")
    for n in range(6):
        a(f"s_add_u32 s80, {sWV}, {4*n}\ns_mul_i32 s81, s80, 43\ns_lshr_b32 s81, s81, 7\ns_mul_i32 s82, s81, 3\ns_sub_u32 s82, s80, s82")
        a("s_mul_i32 s83, s81, 6\ns_mul_i32 s85, s75, 6\ns_cmp_lt_u32 s83, s85\ns_cselect_b32 s85, 0, 0x70000000")
        a("s_add_u32 s81, s81, s74\ns_lshl_b32 s81, s81, 6\ns_add_u32 s81, s81, s72\ns_mul_i32 s81, s81, 3\ns_add_u32 s81, s81, s82")
        a(f"s_lshl_b32 s81, s81, 10\ns_add_u32 s81, s81, {WS_W1P}\ns_or_b32 s81, s81, s85")
        a(f"buffer_store_dwordx4 {vr(72+4*n)}, v2, {SRD_WS}, s81 offen sc1")


def early_w1(g, i0, i1, check=False):
    a = g.a
    skip = g.lab("e1")
    a(f"s_cmp_eq_u32 {sM1}, 0\ns_cbranch_scc1 {skip}")
    with a.cond("m1"):
        if check:
            l0_only(g, "l0c", lambda: (p1_check(g), w1_loads(g, 0, i0)))
        w1_loads(g, i0, i1)
    a.label(skip, reset=False)


def l0_only(g, name, fn):
    if g.layer == 0:
        fn()


def p1_check(g):
    a = g.a
    a(f"s_cmp_ge_u32 {sJ1}, 8\ns_cselect_b32 s72, 1, 0\ns_cmp_ge_u32 {sJ1}, 15\ns_addc_u32 s72, s72, 0")
    a(f"s_cmp_ge_u32 {sJ1}, 22\ns_addc_u32 s72, s72, 0")
    a(f"s_lshl_b32 s73, {sWV}, 4\nv_add_u32 v9, s73, v1\nv_lshl_add_u32 v9, v9, 2, s72")
    a(f"v_lshlrev_b32 v9, 7, v9\nv_add_u32 v9, {WS_FLAG + PH_P*2*256*128}, v9")
    g.poll("v9", "0xffff")


def w1_loads(g, i0, i1):
    a = g.a
    a(f"s_lshl_b32 s72, {sJ1}, 6\ns_lshl_b32 s73, {sWV}, 4\ns_add_u32 s72, s72, s73\ns_mul_i32 s72, s72, 3072\ns_add_u32 s72, s72, {WS_W1P}")
    for i in range(i0, i1):
        st, ft = divmod(i, 3)
        a(f"s_add_u32 s73, s72, {st*3072}")
        a(f"buffer_load_dwordx4 {ar(4*i)}, v2, {SRD_WS}, s73 offen offset:{ft*1024} sc1")


def m1_only(g, fn):
    a = g.a
    skip = g.lab("m1s")
    a(f"s_cmp_eq_u32 {sM1}, 0\ns_cbranch_scc1 {skip}")
    with a.cond("m1"):
        fn()
    a.label(skip, reset=False)


def w2_setup(g):
    a = g.a
    a("v_lshrrev_b32 v3, 3, v1\nv_lshlrev_b32 v3, 12, v3\nv_bfe_u32 v4, v1, 1, 2\nv_bfe_u32 v5, v1, 4, 1\nv_and_b32 v6, 1, v1")
    for e in range(2):
        a(f"v_or_b32 v7, {2*e}, v5\nv_xor_b32 v7, v4, v7\nv_lshl_add_u32 v7, v7, 1, v6\nv_lshl_add_u32 v{V_W2D+e}, v7, 4, v3")
    a("v_lshrrev_b32 v3, 4, v1\nv_lshlrev_b32 v4, 3, v3\nv_bfe_u32 v5, v1, 2, 2\nv_add_u32 v4, v4, v5\nv_lshlrev_b32 v4, 7, v4")
    a("v_and_b32 v5, 3, v1\nv_lshl_add_u32 v4, v5, 3, v4\nv_and_b32 v3, 1, v3\nv_lshlrev_b32 v3, 1, v3\nv_bfe_u32 v5, v1, 3, 1\nv_or_b32 v3, v3, v5")
    for k in range(4):
        a(f"v_xor_b32 v5, {k}, v3\nv_lshl_add_u32 v{V_W2R+k}, v5, 5, v4")
    a(f"s_mul_i32 s89, {sWV}, {11*32*4096}\ns_lshl_b32 s88, {sR}, 7\ns_add_u32 s89, s89, s88")


def w2_lds(st):
    if st < 5:
        return ("s86", st * 4096)
    if st < 9:
        return ("s87", (st - 5) * 4096)
    return ("s86", (st - 9) * 4096)


def w2_bases(g):
    g.a(f"s_mul_i32 s86, {sWV}, 20480\ns_add_u32 s86, s86, {L_STG2}\ns_lshl_b32 s87, {sWV}, 14\ns_add_u32 s87, s87, {L_X}")


def w2_dma_text(st, m):
    base, off = w2_lds(st)
    return (f"s_add_u32 m0, {base}, {off + m*1024}\ns_add_u32 s88, s89, {(st*32 + 8*m)*4096}",
            f"buffer_load_dwordx4 v{V_W2D + (m & 1)}, {SRD_W2P}, s88 offen lds")


def w2_dma(g, st, m, uncond=False):
    pre, ld = w2_dma_text(st, m)
    g.a(pre)
    (g.a.uncond if uncond else g.a)(ld, tag=f"D2_{0 if st < 5 else 5 if st < 9 else 9}")
    return pre + "\n" + ld


def w2_tr(g, s0, s1):
    a = g.a
    base, _ = w2_lds(s0)
    for k in range(4):
        a(f"v_add_u32 v{32+k}, {base}, v{V_W2R+k}")
    for st in range(s0, s1):
        _, off = w2_lds(st)
        for k in range(4):
            for rd in range(2):
                b = (st*4 + k) * 4 + 2*rd
                a(f"ds_read_b64_tr_b16 a[{b}:{b+1}], v{32+k} offset:{off + rd*512}")


def u_producers(g, dst, lane0):
    a = g.a
    a(f"s_mul_i32 s72, {sWV}, 352\ns_mul_hi_u32 s72, s72, {(1 << 32)//48 + 1}\ns_sub_u32 s72, s72, {lane0}\nv_add_u32 v8, s72, v1\nv_max_i32 v8, 0, v8\nv_min_u32 v8, 28, v8")
    a("v_cmp_le_u32 vcc, 8, v8\nv_cndmask_b32 v6, 0, 1, vcc\nv_cmp_le_u32 vcc, 15, v8\nv_addc_co_u32 v6, vcc, 0, v6, vcc")
    a("v_cmp_le_u32 vcc, 22, v8\nv_addc_co_u32 v6, vcc, 0, v6, vcc")
    a("v_mul_u32_u24 v7, 7, v6\nv_min_u32 v9, 1, v6\nv_add_u32 v7, v7, v9\nv_sub_u32 v7, v8, v7")
    a(f"s_and_b32 s72, {sCQ}, 3\ns_lshr_b32 s73, {sCQ}, 2\nv_lshl_add_u32 v7, v7, 2, s72\nv_lshlrev_b32 v7, 3, v7")
    a(f"v_lshl_add_u32 {dst}, v6, 1, v7\nv_add_u32 {dst}, s73, {dst}")


def sentinel(g, loads, srd):
    a = g.a
    top, ok = g.lab("sn"), g.lab("sno")
    a(f"s_mov_b32 {sCNT}, 0")
    a.label(top, reset=False)
    with a.cond(top):
        for k, (addr, soff) in enumerate(loads):
            a(f"buffer_load_dword v{4+k}, {addr}, {srd}, {soff} offen sc1")
        a("s_waitcnt vmcnt(0)")
        a("v_cmp_eq_u32 vcc, -1, v4")
        for k in range(1, len(loads)):
            a(f"v_cmp_eq_u32 s[72:73], -1, v{4+k}\ns_or_b64 vcc, vcc, s[72:73]")
        a(f"s_cbranch_vccz {ok}")
        a(f"s_add_u32 {sCNT}, {sCNT}, 1\ns_cmp_lt_u32 {sCNT}, {POLL_LIMIT}\ns_cbranch_scc1 {top}")
    a.label(ok, reset=False)


def redo_end(g, redo):
    a = g.a
    done = g.lab("rd")
    a(f"s_cmp_eq_u64 {sACC}, 0\ns_cbranch_scc1 {done}")
    if g.diag:
        g.srd(32, P_DBG, 256)
        a(f"v_mov_b32 v4, 1\nv_mov_b32 v5, 4\ns_mov_b64 exec, 1\nbuffer_atomic_add v4, v5, {SRD_T}, 0 offen\ns_mov_b64 exec, -1")
    a(f"s_add_u32 {sREDO}, {sREDO}, 1\ns_cmp_lt_u32 {sREDO}, 64\ns_cbranch_scc1 {redo}")
    a.label(done, reset=False)


def o_flags(g):
    a = g.a
    a(f"v_mov_b32 v8, {sR}\nv_and_b32 v9, 3, v8\nv_lshlrev_b32 v9, 3, v9\nv_add_u32 v9, v1, v9\nv_lshlrev_b32 v9, 3, v9")
    a("v_lshrrev_b32 v7, 2, v8\nv_add_u32 v9, v9, v7")
    g.vflag("v9", PH_O)


def oproj(g):
    a = g.a
    a.c("======== output projection, residual, double LayerNorm")
    OFR, WPRE, WFR, ACC = 64, 128, 14, 46
    a("v_lshrrev_b32 v3, 5, v1\nv_lshlrev_b32 v3, 4, v3\nv_bfe_u32 v4, v1, 4, 1\nv_lshl_add_u32 v3, v4, 2, v3")
    a("v_bfe_u32 v5, v1, 2, 2\nv_add_u32 v3, v3, v5\nv_bfe_u32 v5, v3, 1, 2\nv_and_b32 v6, 3, v1\nv_lshlrev_b32 v6, 3, v6")
    a("v_lshl_add_u32 v6, v3, 7, v6")
    for nt in range(4):
        a(f"v_xor_b32 v7, {nt}, v5\nv_lshl_add_u32 v{10+nt}, v7, 5, v6")

    def wreg(ks, nt):
        return WPRE + ks * 16 + nt * 4 if ks < 8 else WFR + (ks & 1) * 16 + nt * 4

    def wread(ks, nt):
        b = wreg(ks, nt)
        for rd in range(2):
            a(f"ds_read_b64_tr_b16 v[{b+2*rd}:{b+2*rd+1}], v{10+nt} offset:{L_X + ks*4096 + rd*1024}")
    for ks in range(8):
        for nt in range(4):
            wread(ks, nt)
    g.poll("v9", "0xff")
    a("s_waitcnt vmcnt(0) lgkmcnt(0)")
    a("s_barrier")
    if g.layer == 0:
        lp = g.lab("pp")
        a(f"s_cmp_eq_u32 {sWV}, 0\ns_cbranch_scc0 {lp}")
        with a.cond(lp):
            a(f"s_lshl_b32 s70, s2, 7\ns_add_u32 s70, s70, {WS_FLAG + PH_P*2*256*128}")
            a(f"v_mov_b32 v4, {sN}\nv_mov_b32 v5, {sNN}\nv_mov_b32 v6, s70\ns_mov_b64 exec, 1")
            a(f"buffer_store_dwordx2 v[4:5], v6, {SRD_WS}, 0 offen sc1")
            a("s_mov_b64 exec, -1")
        a.label(lp, reset=False)
    g.stamp(10)
    a(f"s_lshl_b32 s72, {sR}, 2\ns_add_u32 s72, s72, {sWV}\ns_lshl_b32 s72, s72, 14\ns_lshl_b32 s73, {sL}, 21")
    a(f"s_add_u32 s72, s72, s73\ns_add_u32 s74, s72, {WS_OF}")

    def oload(ks):
        a(f"s_add_u32 s73, s74, {(ks >> 2)*4096}")
        a(f"buffer_load_dwordx4 {vr(OFR+4*ks)}, v2, {SRD_WS}, s73 offen offset:{(ks & 3)*1024} sc1")
    OD = 11
    for ks in range(OD):
        oload(ks)
    g.stamp(25)

    def main(w1):
        if w1:
            a(f"s_lshl_b32 s76, {sJ1}, 6\ns_lshl_b32 s77, {sWV}, 4\ns_add_u32 s76, s76, s77\ns_mul_i32 s76, s76, 3072\ns_add_u32 s76, s76, {WS_W1P}")
        for ks in range(16):
            if ks + OD < 16:
                oload(ks + OD)
            for nt in range(4):
                c = "0" if ks == 0 else vr(ACC + 4*nt)
                a(f"v_mfma_f32_16x16x32_bf16 {vr(ACC+4*nt)}, {vr(wreg(ks, nt))}, {vr(OFR+4*ks)}, {c}")
                if 6 <= ks <= 13:
                    wread(ks + 2, nt)
                if w1 and nt == 1 and ks >= 4:
                    for i in ((ks - 4) * 2, (ks - 4) * 2 + 1) if ks < 12 else ():
                        st, ft = divmod(i, 3)
                        a(f"s_add_u32 s77, s76, {st*3072}")
                        a(f"buffer_load_dwordx4 {ar(4*i)}, v2, {SRD_WS}, s77 offen offset:{ft*1024} sc1")
            if ks == 0:
                g.stamp(28)
            if ks == 7:
                g.stamp(29)
    if g.layer == 0:
        main(False)
    else:
        la, lb = g.lab("oa"), g.lab("ob")
        a(f"s_cmp_eq_u32 {sM1}, 0\ns_cbranch_scc1 {la}")
        a.snap(la)
        main(True)
        a.label(lb, reset=False)
        g.late.append((la, lb, lambda: (a.restore(la), main(False))))
    g.stamp(11)
    a(f"v_and_b32 v3, 15, v1\ns_lshl_b32 s72, {sWV}, 4\nv_add_u32 v14, s72, v3\nv_lshrrev_b32 v4, 4, v1")
    a(f"v_mul_u32_u24 v5, 144, v14\nv_lshl_add_u32 v5, v4, 3, v5\nv_add_u32 v15, {L_R}, v5")
    for nt in range(4):
        a(f"ds_read_b64 v[{176+2*nt}:{177+2*nt}], v15 offset:{32*nt}")
    X1 = 192
    for nt in range(4):
        for k in range(2):
            a(f"v_lshlrev_b32 v{X1+4*nt+2*k}, 16, v{176+2*nt+k}\nv_and_b32 v{X1+4*nt+2*k+1}, 0xffff0000, v{176+2*nt+k}")
    for i in range(16):
        a(f"v_add_f32 v{X1+i}, v{X1+i}, v{ACC+i}")
    for k in range(8):
        a(f"v_cvt_pk_bf16_f32 v{176+k}, v{X1+2*k}, v{X1+2*k+1}")
    for nt in range(4):
        a(f"ds_write_b64 v15, v[{176+2*nt}:{177+2*nt}] offset:{32*nt}")
    a(f"v_add_f32 v16, v{X1}, v{X1+1}\nv_mul_f32 v17, v{X1}, v{X1}\nv_fmac_f32 v17, v{X1+1}, v{X1+1}")
    for i in range(2, 16):
        a(f"v_add_f32 v16, v16, v{X1+i}\nv_fmac_f32 v17, v{X1+i}, v{X1+i}")

    def fold_groups(r0, r1):
        for sw in ("16", "32"):
            a(f"v_mov_b32 v20, v{r0}\nv_mov_b32 v21, v{r1}")
            a(f"v_permlane{sw}_swap_b32 v{r0}, v20\nv_permlane{sw}_swap_b32 v{r1}, v21")
            a(f"v_add_f32 v{r0}, v{r0}, v20\nv_add_f32 v{r1}, v{r1}, v21")
    fold_groups(16, 17)
    a(f"v_mov_b32 v18, {sN}\nv_mov_b32 v19, {sNN}")
    a(f"s_lshl_b32 s72, {sL}, 5\ns_add_u32 s72, s72, {sR}\ns_lshl_b32 s72, s72, 13\ns_add_u32 s72, s72, {WS_ST}")
    a(f"s_lshl_b32 s73, {sCQ}, 10\ns_add_u32 s73, s73, s72\nv_lshlrev_b32 v22, 4, v14")
    a("s_mov_b64 exec, 0xffff")
    g.dual(lambda m: a(f"buffer_store_dwordx4 v[16:19], v22, {SRD_WS}, s73 offen {m}"))
    a("s_mov_b64 exec, -1")
    g.stamp(26)
    if INB:
        a(f"s_lshl_b32 s73, {sWV}, 3\nv_add_u32 v34, s73, v1")
        g.wg_of("v35", "v34", sC1)
        u_producers(g, "v36", 8)
        a("v_cmp_le_u32 vcc, 8, v1\nv_cndmask_b32 v35, v35, v36, vcc\nv_and_b32 v35, 255, v35")
        g.vflag("v35", PH_PD)
        a(f"s_lshl_b32 s44, {sM1}, 8\ns_sub_u32 s44, s44, {sM1}\ns_or_b32 s44, s44, 0xff00\ns_mov_b32 s45, 0")
        a(f"s_mov_b64 exec, s[44:45]\nbuffer_load_dwordx2 v[32:33], v35, {SRD_WS}, 0 offen sc1\ns_mov_b64 exec, -1")
    early_w1(g, 16, 28, check=True)
    a("v_lshrrev_b32 v4, 4, v1")
    g.stamp(27)
    a(f"s_lshl_b32 s72, {sL}, 5\ns_add_u32 s72, s72, {sR}\ns_lshl_b32 s72, s72, 13\ns_add_u32 s72, s72, {WS_ST}")
    a("v_lshl_add_u32 v23, v4, 11, v22\ns_mov_b32 s100, 0")
    top, ok = g.lab("stp"), g.lab("sto")
    a.label(top, reset=False)
    a(f"buffer_load_dwordx4 v[24:27], v23, {SRD_WS}, s72 offen sc1")
    a(f"buffer_load_dwordx4 v[28:31], v23, {SRD_WS}, s72 offen offset:1024 sc1")
    a("s_waitcnt vmcnt(0)")
    a(f"v_cmp_ne_u64 vcc, {sNP}, v[26:27]\nv_cmp_ne_u64 s[74:75], {sNP}, v[30:31]\ns_or_b64 vcc, vcc, s[74:75]")
    a(f"s_cbranch_vccz {ok}")
    a(f"s_add_u32 s100, s100, 1\ns_cmp_lt_u32 s100, {POLL_LIMIT}\ns_cbranch_scc1 {top}\ns_branch L_fail")
    a.label(ok, reset=False)
    if INB:
        pd = g.lab("pd")
        a(f"s_mov_b64 exec, s[44:45]\nv_cmp_ne_u64 vcc, {sNP}, v[32:33]\ns_mov_b64 exec, -1\ns_cbranch_vccz {pd}")
        with a.cond(pd):
            a("v_mov_b32 v36, v4\nv_mov_b32 v37, v5")
            g.poll("v35", "s[44:45]")
            a("v_mov_b32 v4, v36\nv_mov_b32 v5, v37")
        a.label(pd, reset=False)
    g.stamp(12)
    a("v_add_f32 v16, v24, v28\nv_add_f32 v17, v25, v29")
    fold_groups(16, 17)
    a(f"v_mul_f32 v16, {f32(1/512)}, v16\nv_mul_f32 v17, {f32(1/512)}, v17\nv_fma_f32 v17, -v16, v16, v17\nv_max_f32 v17, 0, v17")
    a(f"v_add_f32 v18, {f32(1e-5)}, v17\nv_rsq_f32 v18, v18")
    a(f"v_mul_f32 v19, v18, v18\nv_mul_f32 v19, v19, v17\nv_add_f32 v19, {f32(1e-5)}, v19\nv_rsq_f32 v19, v19\nv_mul_f32 v18, v18, v19")
    for i in range(16):
        a(f"v_sub_f32 v{X1+i}, v{X1+i}, v16")
    for i in range(16):
        a(f"v_mul_f32 v{X1+i}, v18, v{X1+i}")
    for k in range(8):
        a(f"v_cvt_pk_bf16_f32 v{176+k}, v{X1+2*k}, v{X1+2*k+1}")
    HT = L_RING
    a(f"v_mul_u32_u24 v5, 160, v14\nv_lshl_add_u32 v5, v4, 3, v5\nv_add_u32 v5, {HT}, v5")
    for nt in range(4):
        a(f"ds_write_b64 v5, v[{176+2*nt}:{177+2*nt}] offset:{32*nt}")
    a("v_lshrrev_b32 v3, 4, v1\nv_lshlrev_b32 v3, 3, v3\nv_bfe_u32 v6, v1, 2, 2\nv_add_u32 v3, v3, v6")
    a(f"s_lshl_b32 s72, {sTB}, 5\nv_add_u32 v3, s72, v3\nv_mul_u32_u24 v3, 160, v3\nv_and_b32 v6, 3, v1\nv_lshl_add_u32 v3, v6, 3, v3")
    a(f"s_lshl_b32 s72, {sP}, 6\ns_add_u32 s72, s72, {HT}\nv_add_u32 v3, s72, v3")
    a("s_waitcnt lgkmcnt(0)\ns_barrier")
    for e in range(2):
        for rd in range(2):
            a(f"ds_read_b64_tr_b16 v[{184+4*e+2*rd}:{185+4*e+2*rd}], v3 offset:{32*e + rd*640}")
    if INB:
        a(f"s_mov_b32 s72, {sHB}")
    else:
        a(f"s_lshl_b32 s72, {sCQ}, 6\ns_lshl_b32 s73, {sR}, 1\ns_add_u32 s72, s72, s73\ns_add_u32 s72, s72, {sTB}\ns_lshl_b32 s72, s72, 2")
        a(f"s_lshl_b32 s73, {sP}, 1\ns_add_u32 s72, s72, s73\ns_lshl_b32 s72, s72, 10\ns_lshl_b32 s73, {sL}, 21\ns_add_u32 s72, s72, s73\ns_add_u32 s72, s72, {WS_H}")
    for e in range(2):
        a(f"buffer_store_dwordx4 {vr(184+4*e)}, v2, {SRD_WS}, s72 offen offset:{e*1024} sc1", tag="Hst")


def mix1(g):
    a = g.a
    a.c("======== token mixing 1: u = gelu(h^T W1 + b1)")
    skip, other = g.lab("m1"), g.lab("m1o")
    w2_setup(g)
    w2_bases(g)
    a(f"s_cmp_eq_u32 {sM1}, 0\ns_cbranch_scc1 {other}")
    w2_text = []

    def w2(i):
        return w2_dma(g, i >> 2, i & 3, uncond=True)
    with a.cond("m1"):
        g.srd(32, P_B1, 2752)
        a(f"s_mul_i32 s72, {sJ1}, 96\nv_and_b32 v3, 1, v1\nv_lshlrev_b32 v3, 3, v3\ns_mul_i32 s73, {sWV}, 3")
        for i in range(3):
            a(f"s_add_u32 s74, s73, {i}\ns_lshr_b32 s74, s74, 1\ns_lshl_b32 s74, s74, 4\ns_add_u32 s74, s74, s72")
            a(f"buffer_load_dwordx2 v[{14+2*i}:{15+2*i}], v3, {SRD_T}, s74 offen")
        if not INB:
            a(f"s_lshl_b32 s73, {sWV}, 3\nv_add_u32 v8, s73, v1")
            g.wg_of("v9", "v8", sC1)
            g.vflag("v9", PH_H)
        c0 = -2 * math.log2(math.e) * math.sqrt(2 / math.pi)
        c1 = c0 * 0.044715
        a(f"v_and_b32 v3, 15, v1\nv_mul_u32_u24 v3, 208, v3\nv_lshrrev_b32 v4, 4, v1\nv_lshl_add_u32 v3, v4, 4, v3")
        a(f"s_mul_i32 s72, {sWV}, 13312\nv_add_u32 v13, s72, v3")
        a("v_lshrrev_b32 v3, 1, v1\nv_mul_u32_u24 v10, 208, v3\nv_and_b32 v4, 1, v1\nv_lshl_add_u32 v10, v4, 4, v10")
        a("v_lshrrev_b32 v5, 5, v1\nv_lshlrev_b32 v11, 10, v5\nv_and_b32 v3, 15, v3\nv_lshl_add_u32 v11, v3, 4, v11")
        if not INB:
            a("v_lshl_add_u32 v11, v4, 3, v11")
        a(f"s_mul_i32 s76, {sWV}, 3\ns_mov_b32 s84, {f32(c1)}\ns_mov_b32 s85, {f32(c0)}")
        for i in range(3):
            a(f"s_add_u32 s72, s76, {i}\ns_lshr_b32 s73, s72, 1\ns_and_b32 s72, s72, 1")
            a(f"s_mul_i32 s74, s72, {32*208}\ns_lshl_b32 s75, s73, 5\ns_add_u32 s74, s74, s75\nv_add_u32 v{20+i}, s74, v10")
        if INB:
            for i in range(3):
                a(f"s_mov_b32 s{80+i}, s{sUO+i}")
        else:
            u_offsets(g, 80)
        HB, NS, ACC, HD = 64, 24, 192, 15
        a(f"s_lshl_b32 s72, {sC1}, 6\ns_lshl_b32 s73, {sWV}, 4\ns_add_u32 s72, s72, s73\ns_lshl_b32 s72, s72, 12")
        a(f"s_lshl_b32 s73, {sL}, 21\ns_add_u32 s72, s72, s73\ns_add_u32 s43, s72, {WS_H}")
        if INB:
            a(f"v_lshlrev_b32 v9, 10, v1\nv_add_u32 v9, 1008, v9\ns_mov_b32 {sREDO}, 0")
            redo = g.lab("m1r")
            a.label(redo, reset=False)
            sentinel(g, [("v9", "s43")], SRD_WS)
            a(f"s_mov_b64 {sACC}, 0")
        else:
            g.poll("v9", "0xff")
        g.stamp(14)
        a("s_mov_b32 s72, s43")
        nload = [0]

        def hload():
            n = nload[0]
            a(f"buffer_load_dwordx4 {vr(HB + 4*(n % NS))}, v2, {SRD_WS}, s72 offen offset:{(n & 3)*1024} sc1")
            if n & 3 == 3:
                a("s_add_u32 s72, s72, 4096")
            nload[0] += 1
        for _ in range(HD):
            hload()
        for st in range(16):
            for dt in range(4):
                hb = HB + 4 * ((st*4 + dt) % NS)
                for ft in range(3):
                    acc = ACC + (ft*4 + dt) * 4
                    c = "0" if st == 0 else ar(acc)
                    a(f"v_mfma_f32_16x16x32_bf16 {ar(acc)}, {ar((st*3+ft)*4)}, {vr(hb)}, {c}")
                    if INB and ft == 0:
                        a(f"v_cmp_eq_u32 vcc, -1, v{hb}\ns_or_b64 {sACC}, {sACC}, vcc")
                if nload[0] < 64:
                    hload()
        if INB:
            redo_end(g, redo)
        l0_only(g, "l0t", lambda: (warmup(g, SRD_W2P, "v60") if "now2wu" not in OPT else None, a(x2_touch_text())))
        g.stamp(15)
        nw2 = 0
        for dt in range(4):
            for ft in range(3):
                a(f"ds_write_b128 v13, {ar(ACC + (ft*4+dt)*4)} offset:{L_X + dt*16*208 + ft*64}")
        a("s_waitcnt lgkmcnt(0)\ns_barrier")
        for i in range(3):
            for k in range(4):
                a(f"ds_read_b128 {vr(64 + 16*i + 4*k)}, v{20+i} offset:{L_X + k*13312}")
        if g.layer == 0:
            sk3 = g.lab("ep")
            a(f"s_or_b32 s72, s2, {sWV}\ns_cmp_eq_u32 s72, 0\ns_cbranch_scc0 {sk3}")
            with a.cond(sk3):
                a(f"v_mov_b32 v4, {sN}\nv_mov_b32 v5, {WS_EPOCH}\ns_mov_b64 exec, 1")
                a(f"buffer_store_dword v4, v5, {SRD_WS}, 0 offen sc1")
                a("s_mov_b64 exec, -1")
            a.label(sk3, reset=False)
        if "udrain" not in OPT:
            pass
        else:
            a("s_waitcnt lgkmcnt(0)\ns_barrier")
        for i in range(3):
            B = 64 + 16 * i
            bb = 14 + 2 * i

            def w2x(k=1):
                nonlocal nw2
                for _ in range(k):
                    if nw2 < 18:
                        w2_text.append(w2(nw2)); nw2 += 1
            for e in range(4):
                a(f"v_add_f32 v{B+e}, v{B+e}, v{B+4+e}\nv_add_f32 v{B+8+e}, v{B+8+e}, v{B+12+e}")
            w2x()
            a(f"v_lshlrev_b32 v{B+4}, 16, v{bb}\nv_and_b32 v{B+5}, 0xffff0000, v{bb}\nv_lshlrev_b32 v{B+6}, 16, v{bb+1}\nv_and_b32 v{B+7}, 0xffff0000, v{bb+1}")
            for e in range(4):
                a(f"v_add_f32 v{B+e}, v{B+e}, v{B+8+e}")
            w2x()
            for e in range(4):
                a(f"v_add_f32 v{B+e}, v{B+e}, v{B+4+e}")
            for e in range(4):
                a(f"v_mul_f32 v{B+4+e}, v{B+e}, v{B+e}\nv_mov_b32 v{B+8+e}, s85")
            w2x()
            for e in range(4):
                a(f"v_fmac_f32 v{B+8+e}, s84, v{B+4+e}")
            for e in range(4):
                a(f"v_mul_f32 v{B+8+e}, v{B+8+e}, v{B+e}")
            for e in range(4):
                a(f"v_exp_f32 v{B+8+e}, v{B+8+e}")
            w2x()
            for e in range(4):
                a(f"v_add_f32 v{B+8+e}, 1.0, v{B+8+e}")
            for e in range(4):
                a(f"v_rcp_f32 v{B+8+e}, v{B+8+e}")
            for e in range(4):
                a(f"v_mul_f32 v{B+e}, v{B+e}, v{B+8+e}")
            a(f"v_cvt_pk_bf16_f32 v{B+4}, v{B}, v{B+1}\nv_cvt_pk_bf16_f32 v{B+5}, v{B+2}, v{B+3}")
            if INB:
                a(f"v_mov_b32_dpp v{B+6}, v{B+4} quad_perm:[1,0,3,2] row_mask:0xf bank_mask:0xf")
                a(f"v_mov_b32_dpp v{B+7}, v{B+5} quad_perm:[1,0,3,2] row_mask:0xf bank_mask:0xf")
                a("s_mov_b32 exec_lo, 0x55555555\ns_mov_b32 exec_hi, 0x55555555")
                a(f"buffer_store_dwordx4 v[{B+4}:{B+7}], v11, {SRD_WS}, s{80+i} offen sc1", tag="Ust")
                a("s_mov_b64 exec, -1")
            else:
                a(f"buffer_store_dwordx2 v[{B+4}:{B+5}], v11, {SRD_WS}, s{80+i} offen sc1", tag="Ust")
        while nw2 < (36 if "udrain" in OPT else 20):
            w2_text.append(w2(nw2)); nw2 += 1
        if INB:
            a("s_barrier")
        else:
            a.wait_tag("Ust")
            g.publish(PH_U)
    a.label(skip, reset=False)
    pre = [warmup_text(SRD_W2P, "v60"), x2_touch_text()] if g.layer == 0 else []
    g.tails.append((other, skip, pre + w2_text))
    for i in range(20, 36) if "udrain" not in OPT else ():
        w2_dma(g, i >> 2, i & 3)
    a.wait_tag("D2_0")
    w2_tr(g, 0, 5)
    a("s_waitcnt lgkmcnt(0)")
    for i in range(36, 44):
        w2_dma(g, i >> 2, i & 3)


def mix2(g):
    a = g.a
    a.c("======== token mixing 2: x += (u W2 + b2)^T")
    if g.layer == 0 and "nocode2" not in OPT and g.stop_after is None:
        g.code_warmup2()
    g.srd(32, P_B2, 4096)
    a(f"v_lshrrev_b32 v10, 3, v0\ns_lshl_b32 s72, {sR}, 7\nv_lshl_add_u32 v11, v10, 1, s72")
    a(f"buffer_load_ushort v12, v11, {SRD_T}, 0 offen\nbuffer_load_ushort v13, v11, {SRD_T}, 0 offen offset:64")
    a(f"s_mul_i32 s72, {sCQ}, {UC}\ns_lshl_b32 s73, {sL}, 21\ns_add_u32 s72, s72, s73\ns_add_u32 s72, s72, {WS_U}")
    g.srd(24, P_WS, UC, "s72")
    if INB:
        a(f"s_mul_i32 s85, {sWV}, {11*4096}\nv_lshlrev_b32 v9, 8, v1\nv_add_u32 v9, 240, v9")
        a(f"s_add_u32 s43, s85, 16384\ns_add_u32 s48, s85, 32768\ns_mov_b32 {sREDO}, 0")
        a("v_cmp_gt_u32 vcc, 48, v1\nv_mov_b32 v8, 0x7ff00000\nv_cndmask_b32 v8, v8, v9, vcc")
        redo = g.lab("m2r")
        a.label(redo, reset=False)
        sentinel(g, [("v9", "s85"), ("v9", "s43"), ("v8", "s48")], SRD_U)
        a(f"s_mov_b64 {sACC}, 0")
    else:
        u_producers(g, "v9", 0)
        g.vflag("v9", PH_U)
        g.poll("v9", "0xff")
    g.stamp(17)
    UB, ACC, UD = 64, 192, 14
    a(f"s_mul_i32 s85, {sWV}, {11*4096}")

    def uload(i):
        st, dt = i >> 2, i & 3
        a(f"s_add_u32 s72, s85, {st*4096}")
        a(f"buffer_load_dwordx4 {vr(UB + 4*i)}, v2, {SRD_U}, s72 offen offset:{dt*1024} sc1")
    for i in range(UD):
        uload(i)
    a.wait_tag("D2_5")
    w2_tr(g, 5, 9)
    a.wait_tag("D2_9")
    w2_tr(g, 9, 11)
    for st in range(11):
        for dt in range(4):
            for k in range(4):
                acc = ACC + (dt*4 + k) * 4
                c = "0" if st == 0 else ar(acc)
                a(f"v_mfma_f32_16x16x32_bf16 {ar(acc)}, {vr(UB + (st*4+dt)*4)}, {ar((st*4+k)*4)}, {c}")
                if INB and k == 0:
                    a(f"v_cmp_eq_u32 vcc, -1, v{UB + (st*4+dt)*4}\ns_or_b64 {sACC}, {sACC}, vcc")
                if k == 1 and st*4 + dt + UD < 44:
                    uload(st*4 + dt + UD)
    if INB:
        redo_end(g, redo)
    g.stamp(18)
    a("v_and_b32 v3, 15, v1\nv_lshrrev_b32 v4, 4, v1\nv_and_b32 v5, 7, v1")
    a(f"s_lshl_b32 s72, {sWV}, 14")
    for dt in range(4):
        a(f"v_add_u32 v6, {4*dt}, v4\nv_xor_b32 v6, v6, v5\nv_lshlrev_b32 v6, 4, v6\nv_lshl_add_u32 v6, v3, 8, v6\nv_add_u32 v{14+dt}, s72, v6")
    for dt in range(4):
        for k in range(4):
            a(f"ds_write_b128 v{14+dt}, {ar(ACC + (dt*4+k)*4)} offset:{L_X + k*4096}")
    a("s_waitcnt lgkmcnt(0)\ns_barrier")
    a("v_and_b32 v3, 7, v0\nv_and_b32 v4, 7, v10\nv_lshlrev_b32 v5, 1, v3")
    for e in range(2):
        a(f"v_add_u32 v6, {e}, v5\nv_xor_b32 v6, v6, v4\nv_lshlrev_b32 v6, 4, v6\nv_lshl_add_u32 v{18+e}, v10, 8, v6")
    a(f"v_mul_u32_u24 v20, 144, v10\nv_lshl_add_u32 v20, v3, 4, v20\nv_add_u32 v20, {L_R}, v20")
    a(f"v_lshlrev_b32 v21, 10, v10\nv_lshl_add_u32 v21, v3, 4, v21")
    a(f"s_lshl_b32 s72, {sR}, 16\ns_lshl_b32 s73, {sCQ}, 7\ns_add_u32 s72, s72, s73")
    for half in range(2):
        B = 64 + half * 48
        for k in range(4):
            for e in range(2):
                a(f"ds_read_b128 {vr(B + k*8 + e*4)}, v{18+e} offset:{L_X + k*16384 + half*8192}")
        a(f"ds_read_b128 {vr(B+32)}, v20 offset:{half*4608}")
    def epilogue(first):
        ring = []
        if first:
            g.q_addr_w(46)
            g.w_dma_setup("s80", "s81", "s82")
            ring = [(s_, n) for s_ in range(5) for n in range(4)]

        def ringdma(k=1):
            for _ in range(k):
                if ring:
                    s_, n = ring.pop(0)
                    g.w_dma(s_, only=n, sg="s80", sl="s81", st="s82", va="v46")
        for half in range(2):
            B = 64 + half * 48
            a(f"v_lshlrev_b32 v22, 16, v{12+half}")
            for i in range(8):
                a(f"v_add_f32 v{B+i}, v{B+i}, v{B+8+i}\nv_add_f32 v{B+16+i}, v{B+16+i}, v{B+24+i}")
                if i % 2 == 1:
                    ringdma()
            for i in range(8):
                a(f"v_add_f32 v{B+i}, v{B+i}, v{B+16+i}")
            ringdma()
            for i in range(8):
                a(f"v_add_f32 v{B+i}, v{B+i}, v22")
            ringdma()
            for k in range(4):
                a(f"v_lshlrev_b32 v{B+8+2*k}, 16, v{B+32+k}\nv_and_b32 v{B+9+2*k}, 0xffff0000, v{B+32+k}")
            ringdma()
            for i in range(8):
                a(f"v_add_f32 v{B+i}, v{B+i}, v{B+8+i}")
            ringdma()
            for k in range(4):
                a(f"v_cvt_pk_bf16_f32 v{B+36+k}, v{B+2*k}, v{B+2*k+1}")
            if first:
                a(f"ds_write_b128 v20, {vr(B+36)} offset:{half*4608}")
                g.dual(lambda m, B=B: a(f"buffer_store_dwordx4 {vr(B+36)}, v21, {SRD_DST}, s72 offen {m}", tag="Xst"))
            else:
                om = "" if "outplain" in OPT else "sc1"
                a(f"buffer_store_dwordx4 {vr(B+36)}, v21, {SRD_DST}, s72 offen {om}")
            if half == 0:
                a("s_add_u32 s72, s72, 32768")
            if first:
                a(f"v_add_f32 v{B+40}, v{B}, v{B+1}\nv_mul_f32 v{B+41}, v{B}, v{B}\nv_fmac_f32 v{B+41}, v{B+1}, v{B+1}")
                for i in range(2, 8):
                    a(f"v_add_f32 v{B+40}, v{B+40}, v{B+i}\nv_fmac_f32 v{B+41}, v{B+i}, v{B+i}")
                ringdma(2)
        if first:
            ringdma(20)
            a("v_mov_b32 v12, v46")
            g.row_stats_store([104, 152], 1, local=True)
    epilogue(g.layer == 0)


def drain(g, tag, n, sreg, val):
    a = g.a
    lw = g.lab("dr")
    a(f"s_cmp_eq_u32 {sreg}, {val}\ns_cbranch_scc1 {lw}")
    a.raw("  s_waitcnt vmcnt(0)")
    a.label(lw, reset=False)
    a.raw(f"  s_waitcnt vmcnt({n})")
    a.wait_tag(tag, emit=False)


def o_drain_publish(g):
    a = g.a
    a.wait_tag("Ost")
    g.publish(PH_O, local=True, also=PH_PD if INB else None)


def rest(g):
    a = g.a
    attn_setup(g)
    g.stamp(5)
    attn(g)
    a("s_barrier")
    l0_only(g, "l0p", lambda: p1_finish(g))
    o_drain_publish(g)
    g.stamp(9)
    if g.stop("a"):
        return True
    o_flags(g)
    oproj(g)
    early_w1(g, 28, 40)
    if not INB:
        drain(g, "Hst", 12, sM1, 1)
        g.publish(PH_H)
    g.stamp(13)
    if g.stop("o"):
        return True
    m1_only(g, lambda: w1_loads(g, 40, 48))
    mix1(g)
    g.stamp(16)
    if g.stop("m1"):
        return True
    mix2(g)
    g.stamp(19)
    if g.stop("m2"):
        return True
    if g.layer == 1:
        a("s_endpgm")
        a.assume_clean()
        return True
    g.srd(4, P_WS, 2 << 20, WS_X2)
    g.srd(20, P_OUT, 2 << 20)
    a(f"s_mov_b32 {sL}, 1")
    a("s_waitcnt lgkmcnt(0)")
    return False


def finish(g):
    a = g.a
    a("s_branch L_end")
    a.assume_clean()
    for lab, back, fn in g.late:
        a.label(lab, reset=False)
        fn()
        a(f"s_branch {back}")
        a.assume_clean()
    for stub, back, always in g.stubs:
        a.label(stub, reset=False)
        a("s_nop 7")
        for x in always:
            a(x)
        a(f"s_nop 11\ns_branch {back}")
        a.assume_clean()
    for lab, back, texts in g.tails:
        a.label(lab, reset=False)
        for x in texts:
            for line in x.split("\n"):
                if line.startswith("@"):
                    a.label(line[1:], reset=False)
                else:
                    a(line)
        a(f"s_branch {back}")
        a.assume_clean()
```

```python
import os, sys
OPT = set(os.environ.get("KOPT", "").split(","))
sys.path.insert(0, "tools")
from asmfw import Asm

KNAME = "interleave_layers__sliding_block__mixer_token_mlp__prompt_kernel"

WS_EPOCH = 0x0
WS_FLAG = 0x1000
WS_ST = 0x80000
WS_KV = 0x100000
WS_OF = 0x900000
WS_H = 0xD00000
WS_U = 0x1100000
WS_X2 = 0x1500000
WS_W1P = 0x1700000
WS_W2P = 0x1D00000
WS_ST2 = 0x2300000
WS_XC = 0x2380000
WS_DIAG = 0x2400000
WS_SIZE = 0x4000000
UC = 43 * 4096
PH_KV, PH_O, PH_H, PH_U, PH_X, PH_P, PH_PD = range(7)

L_X = 0
L_RING = 65536
L_R = 147456
L_MISC = 156672
L_SP = L_MISC
L_CP = L_MISC + 1024
L_MR = L_MISC + 2560
LDS_SIZE = 163840

SRD_X, SRD_WQ, SRD_WO, SRD_WS = "s[4:7]", "s[8:11]", "s[12:15]", "s[16:19]"
SRD_DST, SRD_U, SRD_W2P, SRD_T = "s[20:23]", "s[24:27]", "s[28:31]", "s[32:35]"
P_X, P_WQ, P_WO, P_W1, P_B1, P_W2, P_B2, P_OUT, P_DBG, P_WS = 36, 38, 40, 44, 46, 48, 50, 52, 54, 56
sR, sCQ, sWV, sL = "s58", "s59", "s60", "s61"
sN, sNN, sNP = "s62", "s63", "s[62:63]"
sC1, sJ1, sM1 = "s64", "s65", "s66"
sP, sTB, sB = "s67", "s68", "s69"
sCNT = "s100"
sFAST = "s0"
SRD_W1 = "s[96:99]"
POLL_LIMIT = 400000

LOG2E = 1.4426950408889634


def f32(x):
    import struct
    return "0x%08x" % struct.unpack("<I", struct.pack("<f", x))[0]


class Gen:
    def __init__(self, stop_after=None, diag=False):
        self.a = Asm()
        self.stop_after = stop_after
        self.diag = diag
        self.uid = 0
        self.stubs = []
        self.nstamp = 0
        self.layer = 0
        self.tails = []
        self.late = []

    def lab(self, base):
        self.uid += 1
        return f"L_{base}_{self.uid}"

    def srd(self, name, ptr, size, off=None):
        a = self.a
        if off is None:
            a(f"s_mov_b32 s{name}, s{ptr}\ns_mov_b32 s{name+1}, s{ptr+1}")
        else:
            a(f"s_add_u32 s{name}, s{ptr}, {off}\ns_addc_u32 s{name+1}, s{ptr+1}, 0")
        a(f"s_mov_b32 s{name+2}, {size}\ns_mov_b32 s{name+3}, 0x20000")

    def stamp(self, idx):
        if not self.diag:
            return
        a = self.a
        skip = self.lab("st")
        a(f"s_memrealtime s[92:93]\ns_waitcnt lgkmcnt(0)")
        a(f"s_cmp_eq_u32 {sWV}, 0\ns_cbranch_scc0 {skip}")
        with a.cond(skip):
            a(f"s_lshl_b32 s94, s2, 8\ns_lshl_b32 s95, {sL}, 7\ns_add_u32 s94, s94, s95\ns_add_u32 s94, s94, {WS_DIAG + idx*4}")
            a("v_mov_b32 v62, s92\nv_mov_b32 v63, s94\ns_mov_b64 exec, 1")
            a(f"buffer_store_dword v62, v63, {SRD_WS}, 0 offen")
            a("s_mov_b64 exec, -1")
        a.label(skip, reset=False)

    def flag_addr(self, dst, phase, wg):
        a = self.a
        a(f"s_lshl_b32 {dst}, {sL}, 8\ns_add_u32 {dst}, {dst}, {wg}\ns_lshl_b32 {dst}, {dst}, 7")
        a(f"s_add_u32 {dst}, {dst}, {WS_FLAG + phase*2*256*128}")

    def dual(self, fn, sel=sFAST):
        a = self.a
        slow, j = self.lab("slow"), self.lab("dj")
        a(f"s_cmp_eq_u32 {sel}, 0\ns_cbranch_scc1 {slow}")
        a.fork()
        fn("")
        a(f"s_branch {j}")
        a.label(slow, reset=False)
        a.alt()
        fn("sc1")
        a.endfork()
        a.label(j, reset=False)

    def publish(self, phase, wg="s2", also=None, local=False):
        a = self.a
        skip = self.lab("pub")
        a("s_barrier")
        a(f"s_cmp_eq_u32 {sWV}, 0\ns_cbranch_scc0 {skip}")
        with a.cond(skip):
            self.flag_addr("s70", phase, wg)
            a(f"v_mov_b32 v4, {sN}\nv_mov_b32 v5, {sNN}\nv_mov_b32 v6, s70\ns_mov_b64 exec, 1")
            if local:
                self.dual(lambda m: a(f"buffer_store_dwordx2 v[4:5], v6, {SRD_WS}, 0 offen {m}"))
            else:
                a(f"buffer_store_dwordx2 v[4:5], v6, {SRD_WS}, 0 offen sc1")
            if also is not None:
                self.flag_addr("s70", also, wg)
                a(f"v_mov_b32 v6, s70\nbuffer_store_dwordx2 v[4:5], v6, {SRD_WS}, 0 offen sc1")
            a("s_mov_b64 exec, -1")
        a.label(skip, reset=False)

    def flag_store(self, phase):
        a = self.a
        skip = self.lab("fs")
        a(f"s_cmp_eq_u32 {sWV}, 0\ns_cbranch_scc0 {skip}")
        with a.cond(skip):
            self.flag_addr("s78", phase, "s2")
            a(f"v_mov_b32 v4, {sN}\nv_mov_b32 v5, {sNN}\nv_mov_b32 v6, s78\ns_mov_b64 exec, 1")
            a(f"buffer_store_dwordx2 v[4:5], v6, {SRD_WS}, 0 offen sc1")
            a("s_mov_b64 exec, -1")
        a.label(skip, reset=False)

    def poll(self, vaddr, mask):
        a = self.a
        top, ok = self.lab("poll"), self.lab("pok")
        a(f"s_mov_b64 exec, {mask}\ns_mov_b32 {sCNT}, 0")
        a(f"s_cbranch_execz {ok}")
        a.label(top, reset=False)
        with a.cond(top):
            a(f"buffer_load_dwordx2 v[4:5], {vaddr}, {SRD_WS}, 0 offen sc1")
            a("s_waitcnt vmcnt(0)")
            a(f"v_cmp_ne_u64 vcc, {sNP}, v[4:5]")
            a(f"s_cbranch_vccz {ok}")
            for o in OPT:
                if o.startswith("sleep"):
                    a(f"s_sleep {o[5:]}")
            a(f"s_add_u32 {sCNT}, {sCNT}, 1\ns_cmp_lt_u32 {sCNT}, {POLL_LIMIT}\ns_cbranch_scc1 {top}")
            a("s_branch L_fail")
        a.label(ok, reset=False)
        a("s_mov_b64 exec, -1")

    def wg_of(self, dst, r, cq):
        a = self.a
        a(f"v_and_b32 {dst}, 3, {r}\nv_lshlrev_b32 {dst}, 3, {dst}\nv_add_u32 {dst}, {cq}, {dst}\nv_lshlrev_b32 {dst}, 3, {dst}")
        a(f"v_lshrrev_b32 v7, 2, {r}\nv_add_u32 {dst}, {dst}, v7")

    def vflag(self, dst, phase):
        a = self.a
        a(f"s_lshl_b32 s70, {sL}, 15\ns_add_u32 s70, s70, {WS_FLAG + phase*2*256*128}")
        a(f"v_lshlrev_b32 {dst}, 7, {dst}\nv_add_u32 {dst}, s70, {dst}")

    def row_stats_store(self, sums, layer, local=False):
        a = self.a
        for ctl in ("quad_perm:[1,0,3,2]", "quad_perm:[2,3,0,1]", "row_half_mirror"):
            for r0 in sums:
                for k in range(2):
                    a(f"v_add_f32_dpp v{r0+k}, v{r0+k}, v{r0+k} {ctl} row_mask:0xf bank_mask:0xf")
        for r0 in sums:
            a(f"v_mov_b32 v{r0+2}, {sN}\nv_mov_b32 v{r0+3}, {sNN}")
        if isinstance(layer, int):
            a(f"s_add_u32 s72, {sR}, {layer*32}")
        else:
            a(f"s_lshl_b32 s72, {layer}, 5\ns_add_u32 s72, s72, {sR}")
        a(f"s_lshl_b32 s72, s72, 3\ns_add_u32 s72, s72, {sCQ}\ns_lshl_b32 s72, s72, 10\ns_add_u32 s72, s72, {WS_ST2}")
        a("v_lshrrev_b32 v3, 3, v0\nv_lshlrev_b32 v3, 4, v3\nv_and_b32 v4, 7, v0\nv_cmp_eq_u32 vcc, 0, v4\ns_mov_b64 exec, vcc")
        def st(m):
            for i, r0 in enumerate(sums):
                a(f"buffer_store_dwordx4 v[{r0}:{r0+3}], v3, {SRD_WS}, s72 offen offset:{i*512} {m}")
        if local:
            self.dual(st)
        else:
            st("sc1")
        a("s_mov_b64 exec, -1")

    def stop(self, name):
        if self.stop_after == name:
            self.a("s_waitcnt vmcnt(0) lgkmcnt(0)\ns_branch L_end")
            self.a.assume_clean()
            return True
        return False

    def prologue(self):
        a = self.a
        a("s_cmp_ge_u32 s2, 256\ns_cbranch_scc1 L_end")
        if "nocode" not in OPT and "codelate" not in OPT:
            self.code_warmup()
        a("s_load_dwordx16 s[36:51], s[0:1], 0\ns_load_dwordx4 s[52:55], s[0:1], 64\ns_load_dwordx2 s[56:57], s[0:1], 80")
        a("v_and_b32 v1, 63, v0\nv_lshlrev_b32 v2, 4, v1\nv_lshrrev_b32 v3, 6, v0")
        a(f"v_readfirstlane_b32 {sWV}, v3")
        a(f"s_and_b32 s70, s2, 7\ns_lshr_b32 s71, s2, 3")
        a(f"s_lshr_b32 s72, s71, 3\ns_lshl_b32 {sR}, s70, 2\ns_add_u32 {sR}, {sR}, s72\ns_and_b32 {sCQ}, s71, 7")
        a(f"s_and_b32 s72, s70, 1\ns_lshl_b32 s72, s72, 2\ns_and_b32 s73, s71, 3\ns_add_u32 {sC1}, s72, s73")
        a("s_lshr_b32 s72, s70, 1\ns_lshr_b32 s73, s71, 2")
        a("s_mul_i32 s74, s72, 7\ns_min_u32 s75, s72, 1\ns_add_u32 s74, s74, s75")
        a(f"s_add_u32 {sJ1}, s74, s73")
        a("s_cmp_eq_u32 s72, 0\ns_cselect_b32 s75, 8, 7")
        a(f"s_cmp_lt_u32 s73, s75\ns_cselect_b32 {sM1}, 1, 0")
        a(f"s_and_b32 {sP}, {sWV}, 1\ns_lshr_b32 {sTB}, {sWV}, 1\ns_xor_b32 {sB}, {sP}, {sTB}")
        a(f"s_mov_b32 {sL}, 0")
        a("s_waitcnt lgkmcnt(0)")
        self.srd(4, P_X, 2 << 20)
        self.srd(8, P_WQ, 512 * 1536 * 2)
        if "nowq" not in OPT:
            a(f"s_lshl_b32 s70, s2, 2\ns_add_u32 s70, s70, {sWV}\ns_mul_i32 s70, s70, 1536\nv_lshlrev_b32 v3, 7, v1")
            a(f"s_mov_b64 exec, 0xfff\nbuffer_load_dword v248, v3, {SRD_WQ}, s70 offen\ns_mov_b64 exec, -1")
        self.srd(12, P_WO, 512 * 512 * 2)
        self.srd(16, P_WS, WS_SIZE)
        self.srd(28, P_W2, 1376 * 4096)
        self.srd(96, P_W1, 2048 * 2752)
        self.srd(20, P_WS, 2 << 20, WS_X2)
        a(f"v_mov_b32 v3, {WS_EPOCH}")
        a(f"buffer_load_dword v250, v3, {SRD_WS}, 0 offen sc1")
        a("v_lshrrev_b32 v3, 3, v0\nv_and_b32 v4, 7, v0")
        a(f"s_lshl_b32 s70, {sR}, 16\ns_lshl_b32 s71, {sCQ}, 7\ns_add_u32 s70, s70, s71")
        a("v_lshlrev_b32 v5, 10, v3\nv_lshl_add_u32 v5, v4, 4, v5")
        a(f"buffer_load_dwordx4 v[240:243], v5, {SRD_X}, s70 offen")
        a("s_add_u32 s70, s70, 32768")
        a(f"buffer_load_dwordx4 v[244:247], v5, {SRD_X}, s70 offen")

    def code_warmup(self):
        a = self.a
        a("s_getpc_b64 s[32:33]")
        a.label("L_pc", reset=False)
        a(f"s_sub_u32 s32, s32, L_pc-{KNAME}\ns_subb_u32 s33, s33, 0\ns_mov_b32 s34, L_code_end-{KNAME}\ns_mov_b32 s35, 0x20000")
        a("v_and_b32 v3, 63, v0\nv_lshrrev_b32 v4, 6, v0\nv_mul_u32_u24 v4, 640, v4\nv_lshl_add_u32 v3, v3, 7, v4")
        a("s_lshr_b32 s72, s2, 3\ns_mul_i32 s72, s72, 2560")
        a(f"s_mov_b64 exec, 0x1f\nbuffer_load_dword v249, v3, {SRD_T}, s72 offen\ns_mov_b64 exec, -1")

    def code_warmup2(self):
        a = self.a
        lab = self.lab("pc")
        a("s_getpc_b64 s[32:33]")
        a.label(lab, reset=False)
        a(f"s_add_u32 s32, s32, L_layer1-{lab}\ns_addc_u32 s33, s33, 0\ns_mov_b32 s34, L_code_end-L_layer1\ns_mov_b32 s35, 0x20000")
        a("v_lshrrev_b32 v4, 6, v0\nv_mul_u32_u24 v4, 384, v4\nv_lshl_add_u32 v3, v1, 7, v4")
        a("s_lshr_b32 s72, s2, 3\ns_mul_i32 s72, s72, 1536")
        a(f"s_mov_b64 exec, 7\nbuffer_load_dword v61, v3, {SRD_T}, s72 offen\ns_mov_b64 exec, -1")

    def prologue_tail(self):
        a = self.a
        a(f"v_lshlrev_b32 v3, 21, v1\ns_mov_b64 exec, 0x3ffff\nbuffer_load_dword v251, v3, {SRD_WS}, 0 offen\ns_mov_b64 exec, -1")
        if "tlb" in OPT:
            a(f"s_mov_b64 exec, 7\nbuffer_load_dword v253, v3, {SRD_W1}, 0 offen\nbuffer_load_dword v254, v3, {SRD_W2P}, 0 offen\ns_mov_b64 exec, 1")
            self.srd(32, P_OUT, 2 << 20)
            a(f"buffer_load_dword v255, v3, {SRD_T}, 0 offen")
            self.srd(32, P_B1, 2752)
            a(f"buffer_load_dword v249, v3, {SRD_T}, 0 offen")
            self.srd(32, P_B2, 4096)
            a(f"buffer_load_dword v248, v3, {SRD_T}, 0 offen\ns_mov_b64 exec, -1")
        a(f"s_lshl_b32 s72, s2, 2\ns_add_u32 s72, s72, {sWV}\ns_lshl_b32 s72, s72, 9\nv_lshlrev_b32 v3, 7, v1")
        a(f"s_mov_b64 exec, 0xf\nbuffer_load_dword v252, v3, {SRD_WO}, s72 offen\ns_mov_b64 exec, -1")
        if "codelate" in OPT:
            self.code_warmup()
        a("v_lshrrev_b32 v3, 3, v0\nv_and_b32 v4, 7, v0")
        a("v_mul_u32_u24 v6, 144, v3\nv_lshl_add_u32 v6, v4, 4, v6")
        a(f"v_add_u32 v6, {L_R}, v6")
        a(f"v_readfirstlane_b32 {sN}, v250")
        a(f"s_add_u32 {sN}, {sN}, 1\ns_not_b32 {sNN}, {sN}")
        a("ds_write_b128 v6, v[240:243]\nds_write_b128 v6, v[244:247] offset:4608")
        for h, (src, dst) in enumerate(((240, 232), (244, 236))):
            a(f"v_mov_b32 v{dst}, 0\nv_mov_b32 v{dst+1}, 0")
            for k in range(4):
                a(f"v_lshlrev_b32 v8, 16, v{src+k}\nv_and_b32 v9, 0xffff0000, v{src+k}")
                a(f"v_add_f32 v{dst}, v{dst}, v8\nv_fmac_f32 v{dst+1}, v8, v8\nv_add_f32 v{dst}, v{dst}, v9\nv_fmac_f32 v{dst+1}, v9, v9")
        self.row_stats_store([232, 236], 0)
        a(f"s_getreg_b32 s72, hwreg(HW_REG_XCC_ID)\ns_and_b32 s1, s72, 15\ns_mov_b32 {sFAST}, 0")
        a(f"s_lshl_b32 s72, {sR}, 3\ns_add_u32 s72, s72, {sCQ}\ns_lshl_b32 s72, s72, 4\ns_add_u32 s72, s72, {WS_XC}")
        a(f"v_mov_b32 v232, s1\nv_mov_b32 v233, 0\nv_mov_b32 v234, {sN}\nv_mov_b32 v235, {sNN}\nv_mov_b32 v3, s72")
        sk = self.lab("xc")
        a(f"s_cmp_eq_u32 {sWV}, 0\ns_cbranch_scc0 {sk}")
        with a.cond(sk):
            a(f"s_mov_b64 exec, 1\nbuffer_store_dwordx4 v[232:235], v3, {SRD_WS}, 0 offen sc1\ns_mov_b64 exec, -1")
        a.label(sk, reset=False)

    def w_dma(self, s, only=None, sg="s70", sl="s71", st="s72", va="v12"):
        a = self.a
        slot = L_RING + (s % 5) * 16384
        for n in range(4):
            if only is not None and n != only:
                continue
            if s < 8:
                part = n >> 1
                krow = 64 * s + (n & 1) * 32
                col = 1024 * (1 + part)
                lds = slot + part * 8192 + (n & 1) * 4096
            else:
                krow = 128 * (s - 8) + 32 * n
                col = 0
                lds = slot + n * 4096
            a(f"s_add_u32 m0, {sl}, {lds}\ns_add_u32 {st}, {sg}, {krow*3072 + col}")
            a(f"buffer_load_dwordx4 {va}, {SRD_WQ}, {st} offen lds", tag=f"W{s}")

    def w_dma_setup(self, sg="s70", sl="s71", st="s72"):
        a = self.a
        a(f"s_mul_i32 {sg}, {sWV}, {8*3072}\ns_lshl_b32 {st}, {sCQ}, 7\ns_add_u32 {sg}, {sg}, {st}\ns_lshl_b32 {sl}, {sWV}, 10")

    def q_addr_w(self, dst=12):
        a = self.a
        a(f"v_lshrrev_b32 v3, 3, v1\nv_mul_u32_u24 v{dst}, 3072, v3\nv_bfe_u32 v4, v1, 4, 1\nv_lshlrev_b32 v4, 2, v4")
        a(f"v_and_b32 v5, 7, v1\nv_xor_b32 v5, v5, v4\nv_lshl_add_u32 v{dst}, v5, 4, v{dst}")

    def q_addr_x(self):
        a = self.a
        a("v_lshrrev_b32 v3, 3, v1")
        for e in range(2):
            a(f"s_lshl_b32 s72, {sWV}, 4\ns_add_u32 s72, s72, {8*e}\nv_add_u32 v6, s72, v3")
            a(f"v_bfe_u32 v7, v6, 1, 3\nv_and_b32 v5, 7, v1\nv_xor_b32 v5, v5, v7\nv_lshlrev_b32 v6, 10, v6\nv_lshl_add_u32 v{10+e}, v5, 4, v6")

    def q_addr(self):
        self.q_addr_w()
        self.q_addr_x()
        self.w_dma_setup()

    def q_addr2(self):
        a = self.a
        a(f"v_and_b32 v3, 31, v1\ns_lshl_b32 s72, {sTB}, 5\nv_add_u32 v3, s72, v3\nv_bfe_u32 v4, v3, 1, 3\nv_lshrrev_b32 v5, 5, v1")
        for k in range(4):
            a(f"s_xor_b32 s72, {sB}, {k}\ns_lshl_b32 s72, s72, 1\nv_add_u32 v6, s72, v5\nv_xor_b32 v6, v6, v4")
            a(f"v_lshlrev_b32 v6, 4, v6\nv_lshl_add_u32 v{13+k}, v3, 7, v6")
        a("v_and_b32 v3, 15, v1\nv_lshrrev_b32 v4, 2, v3\nv_lshrrev_b32 v5, 5, v1\nv_lshl_add_u32 v4, v5, 3, v4")
        a(f"v_bfe_u32 v5, v1, 4, 1\nv_lshlrev_b32 v5, 1, v5\nv_bfe_u32 v6, v1, 1, 1\nv_add_u32 v5, v5, v6")
        a(f"s_lshl_b32 s72, {sP}, 2\nv_add_u32 v5, s72, v5\nv_bfe_u32 v6, v1, 3, 1\nv_lshlrev_b32 v6, 2, v6\nv_xor_b32 v5, v5, v6")
        a("v_lshlrev_b32 v5, 4, v5\nv_lshl_add_u32 v5, v4, 7, v5\nv_and_b32 v6, 1, v1\nv_lshl_add_u32 v5, v6, 3, v5")
        for e in range(2):
            a(f"s_xor_b32 s72, {sB}, {e}\ns_lshl_b32 s72, s72, 11\ns_add_u32 s72, s72, {L_RING}")
            a(f"v_add_u32 v{17+e}, s72, v5\nv_add_u32 v{19+e}, 49152, v{17+e}")
        a("v_mov_b32 v21, 0\nv_mov_b32 v24, 0\nv_mov_b32 v25, 0")
        a("s_mov_b32 s74, 0x3f803f80")
        a(f"s_lshl_b32 s72, {sL}, 5\ns_add_u32 s72, s72, {sR}\ns_lshl_b32 s75, s72, 13\ns_add_u32 s75, s75, {WS_ST2}")
        a(f"v_and_b32 v3, 31, v1\ns_lshl_b32 s72, {sTB}, 5\nv_add_u32 v3, s72, v3\nv_lshlrev_b32 v3, 4, v3\nv_lshrrev_b32 v4, 5, v1\nv_lshl_add_u32 v61, v4, 12, v3")

    def x_dma(self, kc):
        a = self.a
        for e in range(2):
            a(f"s_add_u32 m0, s77, {L_X + kc*8192 + e*1024}\ns_add_u32 s72, s76, {kc*128}")
            a(f"buffer_load_dwordx4 v{10+e}, {SRD_X}, s72 offen sc1 lds", tag=f"X{kc}")

    def q_entry(self, layer):
        a = self.a
        a.c(f"======== QKV phase entry, layer {layer}")
        if layer == 0:
            self.q_addr()
        else:
            self.q_addr_x()
        a(f"s_lshl_b32 s76, {sR}, 16\ns_lshl_b32 s77, {sWV}, 11")
        if layer == 0:
            for s_ in range(5):
                self.w_dma(s_)
                self.x_dma(s_)
            for kc in range(5, 8):
                self.x_dma(kc)
            self.stamp(0)
            self.prologue_tail()
            self.q_addr2()
            self.stamp(1)
        else:
            self.q_addr2()
            a(f"v_mov_b32 v8, {sR}")
            a(f"v_and_b32 v9, 3, v8\nv_lshlrev_b32 v9, 3, v9\nv_add_u32 v9, v1, v9\nv_lshlrev_b32 v9, 3, v9")
            a(f"v_lshrrev_b32 v7, 2, v8\nv_add_u32 v9, v9, v7")
            a(f"v_lshlrev_b32 v9, 7, v9\nv_add_u32 v9, {WS_FLAG + PH_X*2*256*128}, v9")
            self.stamp(0)
            a.wait_tag("Xst")
            a(f"s_mov_b32 {sL}, 0")
            self.publish(PH_X, local=True)
            a(f"s_mov_b32 {sL}, 1")
            self.stat_loads()
            a("v_mov_b32 v30, v9")
            self.ln_init()
            self.poll("v30", "0xff")
            self.stamp(1)
            for kc in range(8):
                self.x_dma(kc)

    XF, WF, AK, AV, AQ = 64, 32, 192, 208, 224

    def row_stats(self):
        a = self.a
        top, ok = self.lab("s2p"), self.lab("s2o")
        a(f"s_mov_b32 {sCNT}, 0")
        a.label(top, reset=False)
        a(f"v_cmp_ne_u64 vcc, {sNP}, v[242:243]")
        for k in range(1, 4):
            a(f"v_cmp_ne_u64 s[72:73], {sNP}, v[{242+4*k}:{243+4*k}]\ns_or_b64 vcc, vcc, s[72:73]")
        a(f"s_cbranch_vccz {ok}")
        with a.cond(top):
            self.stat_loads()
            a("s_waitcnt vmcnt(0)")
            a(f"s_add_u32 {sCNT}, {sCNT}, 1\ns_cmp_lt_u32 {sCNT}, {POLL_LIMIT}\ns_cbranch_scc1 {top}\ns_branch L_fail")
        a.label(ok, reset=False)
        a("v_add_f32 v26, v240, v244\nv_add_f32 v27, v241, v245\nv_add_f32 v28, v248, v252\nv_add_f32 v29, v249, v253")
        a("v_add_f32 v26, v26, v28\nv_add_f32 v27, v27, v29\nv_mov_b32 v28, v26\nv_mov_b32 v29, v27")
        a("v_permlane32_swap_b32 v26, v28\nv_permlane32_swap_b32 v27, v29\nv_add_f32 v26, v26, v28\nv_add_f32 v27, v27, v29")
        a(f"v_mul_f32 v26, {f32(1/512)}, v26\nv_mul_f32 v27, {f32(1/512)}, v27")
        a(f"v_fma_f32 v27, -v26, v26, v27\nv_max_f32 v27, 0, v27\nv_add_f32 v27, {f32(1e-5)}, v27\nv_rsq_f32 v27, v27")

    def ln_init(self):
        a = self.a
        AK, AV, AQ = self.AK, self.AV, self.AQ
        a("v_and_b32 v3, 31, v1\nv_lshrrev_b32 v5, 5, v1")
        a(f"s_mul_i32 s73, {sP}, 768\ns_add_u32 s73, s73, {L_CP}")
        a("v_lshl_add_u32 v56, v5, 4, s73\nv_lshl_add_u32 v57, v3, 2, s73")
        for part, dst in ((0, AK), (384, 32), (256, AQ), (384 + 256, AV)):
            for q in range(4):
                a(f"ds_read_b128 v[{dst+4*q}:{dst+4*q+3}], v56 offset:{part + 32*q}")
        a("ds_read_b32 v58, v57 offset:128\nds_read_b32 v59, v57 offset:512")
        self.row_stats()
        a(f"s_lshl_b32 s72, {sWV}, 8\ns_add_u32 s72, s72, {L_MR}\nv_lshl_add_u32 v4, v3, 2, s72")
        a("ds_write_b32 v4, v26\nds_write_b32 v4, v27 offset:128")
        a("v_lshl_add_u32 v60, v5, 4, s72")
        for i in range(16):
            a(f"v_add_f32 v{AK+i}, v{AK+i}, v{32+i}\nv_add_f32 v{AQ+i}, v{AQ+i}, v{AV+i}")
        a("v_add_f32 v58, v58, v59\ns_waitcnt lgkmcnt(0)")
        for q in range(4):
            a(f"ds_read_b128 v[{AV+4*q}:{AV+4*q+3}], v60 offset:{32*q}")
        for i in range(16):
            a(f"v_mul_f32 v{AK+i}, -v26, v{AK+i}\nv_mul_f32 v{AQ+i}, -v26, v{AQ+i}")
        for i in range(16):
            a(f"v_mul_f32 v{AV+i}, -v58, v{AV+i}")

    def waddr(self, s, e):
        slot = s % 5
        return (f"v{17+e}", slot * 16384) if slot < 3 else (f"v{19+e}", (slot - 3) * 16384)

    def stage_sync(self, s):
        a = self.a
        a.wait_tag(f"W{s}", f"X{s}") if s < 8 else a.wait_tag(f"W{s}")
        a("s_barrier")

    def stat_loads(self):
        for k in range(4):
            self.a(f"buffer_load_dwordx4 v[{240+4*k}:{243+4*k}], v61, {SRD_WS}, s75 offen offset:{k*1024} sc1")

    def kv_pass(self, first):
        a = self.a
        XF, WF, AK, AV = self.XF, self.WF, self.AK, self.AV
        a.c("======== K/V projection" + (" (layer 0)" if first else " (layer 1)"))

        def reads_kv(n, part=None):
            s, k = n >> 2, n & 3
            reg, off = self.waddr(s, k & 1)
            wf = WF + (n % 3) * 8
            for pt in range(2):
                if part is not None and pt != part:
                    continue
                if pt == 0:
                    a(f"ds_read_b128 v[{XF+4*n}:{XF+4*n+3}], v{13+k} offset:{L_X + s*8192}")
                for rd in range(2):
                    a(f"ds_read_b64_tr_b16 v[{wf+4*pt+2*rd}:{wf+4*pt+2*rd+1}], {reg} offset:{off + pt*8192 + (k >> 1)*4096 + rd*512}")
        self.w_dma_setup()
        self.stamp(20)
        self.stage_sync(0)
        self.stamp(21)
        reads_kv(0); reads_kv(1)
        for n in range(32):
            wf = WF + (n % 3) * 8
            x = f"v[{XF+4*n}:{XF+4*n+3}]"
            ck = "0" if n == 0 and first else f"v[{AK}:{AK+15}]"
            cv = "0" if n == 0 and first else f"v[{AV}:{AV+15}]"
            a(f"v_mfma_f32_32x32x16_bf16 v[{AK}:{AK+15}], v[{wf}:{wf+3}], {x}, {ck}")
            if n + 2 < 32:
                if (n + 2) % 4 == 0:
                    self.stage_sync((n + 2) >> 2)
                reads_kv(n + 2, 0)
            a(f"v_mfma_f32_32x32x16_bf16 v[{AV}:{AV+15}], {x}, v[{wf+4}:{wf+7}], {cv}")
            if n + 2 < 32:
                reads_kv(n + 2, 1)
            sfree = (n + 2) >> 2
            if n >= 6 and sfree + 3 < 11:
                self.w_dma(sfree + 3, only=(n + 2) & 3)
            if n == 24 and first:
                self.stat_loads()
            if n == 28 and not first:
                for q in range(4):
                    a(f"ds_read_b128 v[{240+4*q}:{243+4*q}], v60 offset:{128 + 32*q}")
            if first and n % 2 == 0:
                for i in range(4):
                    a(f"v_dot2c_f32_bf16 v24, s74, v{wf+i}\nv_dot2c_f32_bf16 v25, s74, v{wf+4+i}")

    def k_store(self):
        a = self.a
        AK = self.AK
        a(f"s_lshl_b32 s75, {sCQ}, 1\ns_add_u32 s75, s75, {sP}\ns_lshl_b32 s75, s75, 6\ns_lshl_b32 s76, {sR}, 1\ns_add_u32 s75, s75, s76")
        a(f"s_add_u32 s75, s75, {sTB}\ns_lshl_b32 s75, s75, 12\ns_lshl_b32 s76, {sL}, 22\ns_add_u32 s75, s75, s76\ns_add_u32 s75, s75, {WS_KV}")
        a(f"buffer_store_dwordx4 v[{AK}:{AK+3}], v2, {SRD_WS}, s75 offen sc1", tag="KVst")
        a(f"buffer_store_dwordx4 v[{AK+4}:{AK+7}], v2, {SRD_WS}, s75 offen offset:2048 sc1", tag="KVst")

    def v_store(self):
        a = self.a
        AV = self.AV
        a("v_bfe_u32 v3, v1, 4, 1\nv_lshlrev_b32 v3, 11, v3\nv_lshrrev_b32 v5, 5, v1\nv_lshl_add_u32 v3, v5, 8, v3")
        a("v_and_b32 v5, 15, v1\nv_lshl_add_u32 v3, v5, 4, v3")
        a(f"buffer_store_dwordx4 v[{AV}:{AV+3}], v3, {SRD_WS}, s75 offen offset:1024 sc1", tag="KVst")
        a(f"buffer_store_dwordx4 v[{AV+4}:{AV+7}], v3, {SRD_WS}, s75 offen offset:1536 sc1", tag="KVst")

    def kv_epilogue_l1(self):
        a = self.a
        AK, AV = self.AK, self.AV
        self.stamp(2)
        for i in range(16):
            a(f"v_mul_f32 v{AK+i}, v27, v{AK+i}")
        for k in range(8):
            a(f"v_cvt_pk_bf16_f32 v{AK+k}, v{AK+2*k}, v{AK+2*k+1}")
        self.k_store()
        for i in range(16):
            a(f"v_mul_f32 v{AV+i}, v{240+i}, v{AV+i}")
        for k in range(8):
            a(f"v_cvt_pk_bf16_f32 v{AV+k}, v{AV+2*k}, v{AV+2*k+1}")
        self.v_store()

    def q_phase(self, layer):
        a = self.a
        first = layer == 0
        XF, WF, AK, AV, AQ = self.XF, self.WF, self.AK, self.AV, self.AQ
        waddr, stage_sync = self.waddr, self.stage_sync
        if first:
            self.stamp(2)
            a("v_and_b32 v3, 31, v1")
            a(f"s_lshl_b32 s72, {sP}, 1\ns_add_u32 s72, s72, {sTB}\ns_mul_i32 s72, s72, 384\ns_add_u32 s72, s72, {L_CP}")
            a("v_lshl_add_u32 v9, v3, 2, s72")
            a("v_mov_b32 v26, v24\nv_mov_b32 v27, v25\nv_permlane32_swap_b32 v24, v26\nv_permlane32_swap_b32 v25, v27")
            a("v_add_f32 v24, v24, v26\nv_add_f32 v25, v25, v27")
            a("ds_write_b32 v9, v24\nds_write_b32 v9, v25 offset:128")
            a("s_waitcnt lgkmcnt(0)\ns_barrier")
            self.row_stats()
            a(f"s_mul_i32 s72, {sP}, 768\ns_add_u32 s72, s72, {L_CP}")
            a("v_lshrrev_b32 v5, 5, v1\nv_lshl_add_u32 v56, v5, 4, s72")
            for q in range(4):
                a(f"ds_read_b128 v[{240+4*q}:{243+4*q}], v56 offset:{32*q}")
            for q in range(4):
                a(f"ds_read_b128 v[{32+4*q}:{35+4*q}], v56 offset:{384 + 32*q}")
            a("v_lshl_add_u32 v57, v3, 2, s72\nds_read_b32 v58, v57 offset:128\nds_read_b32 v59, v57 offset:512")
            a(f"s_lshl_b32 s72, {sWV}, 8\ns_add_u32 s72, s72, {L_MR}\nv_lshl_add_u32 v4, v3, 2, s72")
            a("ds_write_b32 v4, v26\nds_write_b32 v4, v27 offset:128")
            for i in range(16):
                a(f"v_add_f32 v{240+i}, v{240+i}, v{32+i}")
            a("v_add_f32 v58, v58, v59")
            a(f"v_lshl_add_u32 v4, v5, 4, s72")
            a("s_waitcnt lgkmcnt(0)")
            for q in range(4):
                a(f"ds_read_b128 v[{32+4*q}:{35+4*q}], v4 offset:{32*q}")
            for q in range(2):
                a(f"ds_read_b128 v[{48+4*q}:{51+4*q}], v4 offset:{128 + 32*q}")
            for i in range(16):
                a(f"v_fma_f32 v{AK+i}, -v26, v{240+i}, v{AK+i}")
            for i in range(16):
                a(f"v_mul_f32 v{AK+i}, v27, v{AK+i}")
            for k in range(8):
                a(f"v_cvt_pk_bf16_f32 v{AK+k}, v{AK+2*k}, v{AK+2*k+1}")
            self.k_store()
            for q in range(2, 4):
                a(f"ds_read_b128 v[{240+4*q}:{243+4*q}], v4 offset:{128 + 32*q}")
            rs = lambda i: (48 + i) if i < 8 else (240 + i)
            for i in range(16):
                a(f"v_fma_f32 v{AV+i}, -v{32+i}, v58, v{AV+i}")
            for i in range(16):
                a(f"v_mul_f32 v{AV+i}, v{rs(i)}, v{AV+i}")
            for k in range(8):
                a(f"v_cvt_pk_bf16_f32 v{AV+k}, v{AV+2*k}, v{AV+2*k+1}")
            self.v_store()
        else:
            self.kv_epilogue_l1()
        self.stamp(3)

        def reads_q(n):
            s, k = 8 + (n >> 3), n & 7
            reg, off = waddr(s, k & 1)
            wf = WF + (n % 3) * 8
            for rd in range(2):
                a(f"ds_read_b64_tr_b16 v[{wf+2*rd}:{wf+2*rd+1}], {reg} offset:{off + (k >> 1)*4096 + rd*512}")
        self.w_dma_setup()
        stage_sync(8)
        reads_q(0); reads_q(1)
        for n in range(32):
            wf = WF + (n % 3) * 8
            cq = "0" if n == 0 and first else f"v[{AQ}:{AQ+15}]"
            a(f"v_mfma_f32_32x32x16_bf16 v[{AQ}:{AQ+15}], v[{wf}:{wf+3}], v[{XF+4*n}:{XF+4*n+3}], {cq}")
            if n + 2 < 32:
                if (n + 2) % 8 == 0:
                    last = (n + 2) == 24
                    if last:
                        a.wait_tag("KVst")
                    stage_sync(8 + ((n + 2) >> 3))
                    if last:
                        self.flag_store(PH_KV)
                reads_q(n + 2)
            if n < 4:
                self.w_dma(11, only=n)
            if first and n % 2 == 0:
                for i in range(4):
                    a(f"v_dot2c_f32_bf16 v21, s74, v{wf+i}")
        if first:
            a("v_mov_b32 v28, v21\nv_permlane32_swap_b32 v21, v28\nv_add_f32 v21, v21, v28")
            a("ds_write_b32 v9, v21 offset:256")
        a("s_waitcnt lgkmcnt(0)\ns_barrier")
        self.stamp(4)
        if first:
            for q in range(4):
                a(f"ds_read_b128 v[{240+4*q}:{243+4*q}], v56 offset:{256 + 32*q}")
            for q in range(4):
                a(f"ds_read_b128 v[{32+4*q}:{35+4*q}], v56 offset:{384 + 256 + 32*q}")
            for i in range(16):
                a(f"v_add_f32 v{240+i}, v{240+i}, v{32+i}")
            for i in range(16):
                a(f"v_fma_f32 v{AQ+i}, -v26, v{240+i}, v{AQ+i}")
        a(f"v_mul_f32 v27, {f32(0.25*LOG2E)}, v27")
        for i in range(16):
            a(f"v_mul_f32 v{AQ+i}, v27, v{AQ+i}")
        for k in range(8):
            a(f"v_cvt_pk_bf16_f32 v{AQ+k}, v{AQ+2*k}, v{AQ+2*k+1}")

    def wo_dma(self):
        a = self.a
        a("v_lshrrev_b32 v3, 3, v1\nv_lshlrev_b32 v3, 10, v3\nv_bfe_u32 v4, v1, 1, 2\nv_bfe_u32 v5, v1, 4, 2\nv_xor_b32 v4, v4, v5")
        a("v_lshlrev_b32 v4, 1, v4\nv_and_b32 v5, 1, v1\nv_add_u32 v4, v4, v5\nv_lshl_add_u32 v19, v4, 4, v3")
        a(f"s_lshl_b32 s78, {sWV}, 17\ns_lshl_b32 s73, {sCQ}, 7\ns_add_u32 s78, s78, s73\ns_lshl_b32 s79, {sWV}, 14")

        def one(n):
            return (f"s_add_u32 m0, s79, {L_X + n*1024}\ns_add_u32 s72, s78, {n*8192}\n"
                    f"buffer_load_dwordx4 v19, {SRD_WO}, s72 offen lds")
        return one

    def build(self):
        a = self.a
        self.prologue()
        from gen2 import rest, finish
        for layer in range(2):
            self.layer = layer
            if layer == 1:
                a.label("L_layer1", reset=False)
            self.q_entry(layer)
            self.kv_pass(layer == 0)
            self.q_phase(layer)
            if self.stop("q") or rest(self):
                break
        finish(self)
        a.label("L_fail", reset=False)
        self.srd(32, P_DBG, 256)
        a("v_mov_b32 v4, 0xdead\nv_mov_b32 v5, 0\ns_mov_b64 exec, 1")
        a(f"buffer_store_dword v4, v5, {SRD_T}, 0 offen")
        a.label("L_end", reset=False)
        a("s_endpgm")
        a.label("L_code_end", reset=False)
        body = a.finalize()
        head = open("interleave_layers__sliding_block__mixer_token_mlp__prompt.s.ref").read().split("\n")
        hdr = [l for l in head if l.startswith(";") and "@launch" not in l and "Override launch" not in l and "grid=ceil" not in l]
        hdr = hdr[:hdr.index(next(l for l in hdr if "d_ws" in l)) + 1]
        out = "\n".join(hdr) + f"\n; @launch grid=(256,1,1) block=(256,1,1) lds={LDS_SIZE}\n"
        out += '.amdgcn_target "amdgcn-amd-amdhsa--gfx950"\n.text\n'
        out += f".globl {KNAME}\n.p2align 8\n.type {KNAME},@function\n{KNAME}:\n"
        out += body
        out += f'''.section .rodata,"a"
.p2align 6
.amdhsa_kernel {KNAME}
  .amdhsa_next_free_vgpr 512
  .amdhsa_next_free_sgpr 102
  .amdhsa_accum_offset 256
  .amdhsa_group_segment_fixed_size 0
  .amdhsa_kernarg_size 88
  .amdhsa_user_sgpr_count 2
  .amdhsa_user_sgpr_kernarg_segment_ptr 1
  .amdhsa_system_sgpr_workgroup_id_x 1
.end_amdhsa_kernel
'''
        return out


if __name__ == "__main__":
    import argparse
    ap = argparse.ArgumentParser()
    ap.add_argument("--stop", default=None)
    ap.add_argument("--diag", action="store_true")
    ap.add_argument("-o", default="interleave_layers__sliding_block__mixer_token_mlp__prompt.s")
    args = ap.parse_args()
    g = Gen(stop_after=args.stop, diag=args.diag)
    src = g.build()
    open(args.o, "w").write(src)
    print("written", args.o, g.a.stats, "bytes", len(src))
```

```python
import math
from gen import *

NEG = f32(-1e30)
import os
OPT = set(os.environ.get("KOPT", "").split(","))
INB = "inb" in OPT
sHB, sUO, sACC, sREDO = "s36", 37, "s[40:41]", "s42"


def ar(b, n=4):
    return f"a[{b}:{b+n-1}]"


def vr(b, n=4):
    return f"v[{b}:{b+n-1}]"


QA, QB = 224, 228
SBUF = (64, 80, 96, 112)
NEGM = {"A": 128, "B": 144}
OACC = {"A": 160, "B": 176}
PBUF = {"A": 192, "B": 200}
CDIAG, CFAR, ANDD, ANDF = 208, 232, 32, 40
AK0, AV0 = 0, 72
L_KV = L_RING


def kfrag(b):
    return AK0 + b * 4


def vfrag(b, half):
    return AV0 + ((b & 1) * 2 + half) * 4


def attn_setup(g):
    a = g.a
    a.c("======== attention constants")
    a("v_and_b32 v3, 31, v1\nv_lshrrev_b32 v4, 5, v1\nv_lshlrev_b32 v4, 2, v4\nv_sub_u32 v3, v3, v4")
    a(f"v_mov_b32 v48, 0\nv_mov_b32 v49, {NEG}\nv_mov_b32 v50, 0xffff\nv_mov_b32 v51, 0xffff0000")
    for i in range(16):
        ci = (i & 3) + 8 * (i >> 2)
        sp = f"s[{72 + 2*(i % 4)}:{73 + 2*(i % 4)}]"
        a(f"v_cmp_le_i32 {sp}, {ci}, v3")
        a(f"v_mov_b32 v{OACC['A']+i}, 0\nv_mov_b32 v{OACC['B']+i}, 0")
        a(f"v_cndmask_b32 v{CDIAG+i}, v49, v48, {sp}\nv_cndmask_b32 v{CFAR+i}, v48, v49, {sp}")
        a(f"v_cndmask_b32 v{52 + (i & 1)}, v48, v{50 + (i & 1)}, {sp}")
        if i & 1:
            a(f"v_or_b32 v{ANDD + i//2}, v52, v53\nv_not_b32 v{ANDF + i//2}, v{ANDD + i//2}")
    for i in range(8):
        a(f"v_mov_b32 v{PBUF['A']+i}, 0\nv_mov_b32 v{PBUF['B']+i}, 0")
    for k in range(AV0, AV0 + 16):
        a(f"v_accvgpr_write_b32 a{k}, v48")
    a("v_mov_b32 v54, 0x3f803f80\ns_mov_b32 exec_lo, 0x00110000\ns_mov_b32 exec_hi, 0x00110000")
    for k in range(AV0, AV0 + 16):
        a(f"v_accvgpr_write_b32 a{k}, v54")
    a("s_mov_b64 exec, -1")


def warmup_text(srd, dst):
    return (f"s_lshl_b32 s72, s2, 2\ns_add_u32 s72, s72, {sWV}\ns_mul_i32 s73, s72, {43*128}\nv_lshlrev_b32 v7, 7, v1\n"
            f"s_mov_b32 exec_lo, -1\ns_mov_b32 exec_hi, 0x7ff\n"
            f"buffer_load_dword {dst}, v7, {srd}, s73 offen\ns_mov_b64 exec, -1")


def warmup(g, srd, dst):
    g.a(warmup_text(srd, dst))


def team_check(g):
    a = g.a
    top, ok = g.lab("tc"), g.lab("tco")
    a(f"s_lshl_b32 s72, {sR}, 7\ns_add_u32 s72, s72, {WS_XC}\nv_lshlrev_b32 v3, 4, v1\ns_mov_b32 {sCNT}, 0\ns_mov_b64 exec, 0xff")
    a.label(top, reset=False)
    a(f"buffer_load_dwordx4 v[24:27], v3, {SRD_WS}, s72 offen sc1\ns_waitcnt vmcnt(0)")
    a(f"v_cmp_ne_u64 vcc, {sNP}, v[26:27]\ns_cbranch_vccz {ok}")
    a(f"s_add_u32 {sCNT}, {sCNT}, 1\ns_cmp_lt_u32 {sCNT}, {POLL_LIMIT}\ns_cbranch_scc1 {top}\ns_branch L_fail")
    a.label(ok, reset=False)
    a(f"v_cmp_ne_u32 vcc, s1, v24\ns_cmp_eq_u64 vcc, 0\ns_cselect_b32 {sFAST}, 1, 0\ns_mov_b64 exec, -1")


def x2_touch_text():
    return ("v_lshrrev_b32 v6, 3, v0\nv_and_b32 v3, 7, v0\nv_lshlrev_b32 v6, 10, v6\nv_lshl_add_u32 v6, v3, 4, v6\n"
            f"s_lshl_b32 s72, {sR}, 16\ns_lshl_b32 s73, {sCQ}, 7\ns_add_u32 s72, s72, s73\n"
            f"s_add_u32 s73, s72, 32768\n"
            f"buffer_load_dword v23, v6, {SRD_DST}, s72 offen sc1\nbuffer_load_dword v24, v6, {SRD_DST}, s73 offen sc1\n"
            f"s_add_u32 s72, {sR}, 32\ns_lshl_b32 s72, s72, 3\ns_add_u32 s72, s72, {sCQ}\ns_lshl_b32 s72, s72, 10\ns_add_u32 s72, s72, {WS_ST2}\n"
            f"buffer_load_dword v25, v2, {SRD_WS}, s72 offen sc1")


def u_offsets(g, dst):
    a = g.a
    a(f"s_mul_i32 s76, {sWV}, 3\ns_mul_i32 s77, {sC1}, {UC}\ns_lshl_b32 s73, {sL}, 21\ns_add_u32 s77, s77, s73\ns_add_u32 s77, s77, {WS_U}")
    for i in range(3):
        a(f"s_add_u32 s72, s76, {i}\ns_lshr_b32 s73, s72, 1\ns_and_b32 s72, s72, 1")
        a(f"s_mul_i32 s74, {sJ1}, 6\ns_add_u32 s74, s74, s73\ns_lshr_b32 s75, s74, 2\ns_and_b32 s79, s74, 3")
        a(f"s_lshl_b32 s75, s75, 12\ns_lshl_b32 s79, s79, 8\ns_add_u32 s75, s75, s79\ns_lshl_b32 s72, s72, 11\ns_add_u32 s75, s75, s72")
        a(f"s_add_u32 s75, s75, s77\ns_cmp_ge_u32 s74, 172\ns_cselect_b32 s79, 0x70000000, 0\ns_or_b32 s75, s75, s79")
        a(f"s_cmp_eq_u32 {sM1}, 0\ns_cselect_b32 s{dst+i}, 0x70000000, s75")


def inband_addresses(g):
    a = g.a
    a(f"s_lshl_b32 s72, {sCQ}, 6\ns_lshl_b32 s73, {sR}, 1\ns_add_u32 s72, s72, s73\ns_add_u32 s72, s72, {sTB}\ns_lshl_b32 s72, s72, 2")
    a(f"s_lshl_b32 s73, {sP}, 1\ns_add_u32 s72, s72, s73\ns_lshl_b32 s72, s72, 10\ns_lshl_b32 s73, {sL}, 21\ns_add_u32 s72, s72, s73\ns_add_u32 {sHB}, s72, {WS_H}")
    a("s_mov_b64 s[44:45], s[74:75]")
    u_offsets(g, sUO)
    a("s_mov_b64 s[74:75], s[44:45]")
    a("v_lshrrev_b32 v25, 5, v1\nv_lshlrev_b32 v25, 10, v25\nv_bfe_u32 v7, v1, 1, 4\nv_lshl_add_u32 v25, v7, 4, v25")
    a("v_mov_b32 v28, -1\nv_mov_b32 v29, -1\nv_mov_b32 v30, -1\nv_mov_b32 v31, -1")


def attn(g):
    a = g.a
    a.c("======== attention")
    a(f"s_sub_u32 s72, {sR}, 4\nv_add_u32 v8, s72, v1\nv_cmp_le_i32 s[74:75], 0, v8")
    g.wg_of("v9", "v8", sCQ)
    g.vflag("v9", PH_KV)
    a("s_and_b64 s[74:75], s[74:75], 0xf")
    a(f"s_lshl_b32 s76, {sR}, 1\ns_add_u32 s76, s76, {sTB}\ns_sub_u32 s77, 8, s76\ns_max_i32 s77, s77, 0")
    a(f"s_lshl_b32 s78, {sCQ}, 1\ns_add_u32 s78, s78, {sP}\ns_lshl_b32 s78, s78, 18\ns_lshl_b32 s79, {sL}, 22")
    a(f"s_add_u32 s78, s78, s79\ns_add_u32 s78, s78, {WS_KV}")
    a(f"s_lshl_b32 s79, {sTB}, 2\ns_lshl_b32 s80, {sR}, 1\ns_add_u32 s80, s80, s79\ns_sub_u32 s80, s80, 8")
    for i in range(4):
        a(f"s_add_i32 s{81+i}, s80, {i}\ns_max_i32 s{81+i}, s{81+i}, 0\ns_lshl_b32 s{81+i}, s{81+i}, 12\ns_add_u32 s{81+i}, s{81+i}, s78")
    a(f"s_lshl_b32 s85, {sR}, 1\ns_add_u32 s85, s85, {sTB}\ns_lshl_b32 s85, s85, 12\ns_add_u32 s85, s85, s78")
    a(f"s_mul_i32 s86, {sP}, 40960\ns_lshl_b32 s87, {sTB}, 14\ns_add_u32 s87, s87, s86\ns_add_u32 s87, s87, {L_KV}")
    a(f"s_lshl_b32 s79, {sTB}, 12\ns_add_u32 s79, s79, s86\ns_add_u32 s79, s79, {L_KV + 8*4096}")
    for q4 in range(4):
        a(f"s_add_u32 m0, s79, {q4*1024}\ns_add_u32 s72, s85, {q4*1024}")
        a(f"buffer_load_dwordx4 v2, {SRD_WS}, s72 offen sc1 lds", tag="Kd")
    a(f"s_lshl_b32 s88, {sTB}, 12\ns_add_u32 s88, s88, s86\ns_add_u32 s88, s88, {L_KV}\nv_add_u32 v10, s88, v2")
    a("v_and_b32 v8, 15, v1\nv_lshlrev_b32 v8, 4, v8\nv_lshrrev_b32 v7, 5, v1\nv_lshl_add_u32 v8, v7, 8, v8\nv_add_u32 v11, s88, v8")
    a("s_mov_b32 s90, 0xffff\ns_mov_b32 s91, 0xffff")
    a("v_bfe_u32 v20, v1, 4, 1\nv_lshlrev_b32 v20, 14, v20\nv_and_b32 v7, 15, v1\nv_lshl_add_u32 v20, v7, 4, v20")
    a("v_lshrrev_b32 v7, 5, v1\nv_lshl_add_u32 v20, v7, 8, v20")
    a(f"s_lshl_b32 s72, {sR}, 2\ns_lshl_b32 s73, {sTB}, 1\ns_add_u32 s72, s72, s73\ns_lshl_b32 s72, s72, 4")
    a(f"s_lshl_b32 s73, {sCQ}, 1\ns_add_u32 s72, s72, s73\ns_add_u32 s72, s72, {sP}\ns_lshl_b32 s72, s72, 10")
    a(f"s_lshl_b32 s73, {sL}, 21\ns_add_u32 s72, s72, s73\ns_add_u32 s89, s72, {WS_OF}")
    if INB:
        inband_addresses(g)
    a("s_mov_b64 s[76:77], s[74:75]")
    l0_only(g, "l0p", lambda: (team_check(g), p1_setup(g)))
    wo = g.wo_dma()
    g.poll("v9", "s[76:77]")
    a(f"s_lshl_b32 s76, {sR}, 1\ns_add_u32 s76, s76, {sTB}\ns_sub_u32 s77, 8, s76\ns_max_i32 s77, s77, 0")
    g.stamp(6)
    def kvdma(i, h, part):
        return (f"s_add_u32 m0, s87, {i*4096 + h*2048 + part}\ns_add_u32 s72, s{81+i}, {h*2048 + part}\n"
                f"buffer_load_dwordx4 v2, {SRD_WS}, s72 offen sc1 lds")
    for i in range(4):
        for h in range(2):
            a(kvdma(i, h, 0), tag="Kd")
    vd = [kvdma(i, h, 1024) for i in range(4) for h in range(2)]
    heads = ("A", "B")
    q = {"A": QA, "B": QB}
    mx = {"A": (48, 49), "B": (50, 51)}

    def kread(b):
        t, h = b >> 1, b & 1
        return f"ds_read_b128 {ar(kfrag(b))}, v10 offset:{t*4096 + h*2048}"

    def vread(b, half):
        t, h = b >> 1, b & 1
        return f"ds_read_b128 {ar(vfrag(b, half))}, v11 offset:{t*4096 + h*2048 + 1024 + half*512}"

    def qk(b, c):
        return f"v_mfma_f32_32x32x16_bf16 {vr(SBUF[b & 3],16)}, {ar(kfrag(b))}, {vr(q[heads[b & 1]])}, {c}"

    def cmask(t):
        return vr(CFAR, 16) if t == 0 else vr(CDIAG, 16) if t == 8 else "0"

    for h in heads:
        a(f"v_mov_b32 v{mx[h][0]}, {NEG}\nv_mov_b32 v{mx[h][1]}, {NEG}")
    a.wait_tag("Kd")
    a("s_barrier")
    a.c("pass 1: true row maximum over the masked window")
    for b in range(4):
        a(kread(b))
    a(qk(0, cmask(0)))
    a(kread(4))
    a(qk(1, cmask(0)))
    for b in range(18):
        t, s_, h = b >> 1, SBUF[b & 3], heads[b & 1]
        if b == 8 and g.layer == 0:
            p1_loads(g)
        if t < 8 and b % 2 == 0:
            stub, back = g.lab("p1s"), g.lab("p1b")
            always = [x for bb in (b, b + 1) for x in ([kread(bb + 5)] if bb + 5 < 18 else []) + ([qk(bb + 2, cmask((bb + 2) >> 1))] if bb + 2 < 18 else [])
                      + ([vd[bb]] if bb < 8 else []) + ([wo(bb - 2)] if bb >= 2 and g.layer == 1 else [])]
            a(f"s_cmp_gt_u32 s77, {t}\ns_cbranch_scc1 {stub}")
        if b + 5 < 18:
            a(kread(b + 5))
        if b + 2 < 18:
            a(qk(b + 2, cmask((b + 2) >> 1)))
        if b < 8:
            a(vd[b], tag="Vd")
        for i in range(8):
            m = mx[h][i & 1]
            a(f"v_max3_f32 v{m}, v{m}, v{s_+2*i}, v{s_+2*i+1}")
            if i == 3 and b >= 2 and g.layer == 1:
                a(wo(b - 2))
        if t < 8 and b % 2 == 1:
            a.label(back, reset=False)
            g.stubs.append((stub, back, ["s_waitcnt lgkmcnt(0)"] + [y for x in always for y in (x, "s_waitcnt lgkmcnt(0)")]))
    for h in heads:
        m0, m1 = mx[h]
        a(f"v_max_f32 v{m0}, v{m0}, v{m1}\nv_mov_b32 v{m1}, v{m0}")
    for h in heads:
        m0, m1 = mx[h]
        a(f"v_permlane32_swap_b32 v{m0}, v{m1}")
    for h in heads:
        m0, m1 = mx[h]
        a(f"v_max_f32 v{m0}, v{m0}, v{m1}\nv_xor_b32 v{m0}, 0x80000000, v{m0}")
    for i in range(16):
        a(f"v_mov_b32 v{NEGM['A']+i}, v{mx['A'][0]}")
    a(qk(0, vr(NEGM["A"], 16)))
    for i in range(16):
        a(f"v_mov_b32 v{NEGM['B']+i}, v{mx['B'][0]}")
    a.wait_tag("Vd")
    a("s_barrier")
    a(f"buffer_load_dword v21, v20, {SRD_WS}, s89 offen sc1\nbuffer_load_dword v23, v20, {SRD_WS}, s89 offen offset:512 sc1")
    a(f"s_lshl_b32 s72, {sL}, 5\ns_add_u32 s72, s72, {sR}\ns_lshl_b32 s72, s72, 3\ns_add_u32 s72, s72, {sCQ}\ns_lshl_b32 s72, s72, 10")
    a(f"s_lshl_b32 s73, {sWV}, 8\ns_add_u32 s72, s72, s73\ns_add_u32 s72, s72, {WS_ST}")
    a(f"s_mov_b64 exec, 0xffff\nbuffer_load_dword v22, v2, {SRD_WS}, s72 offen sc1\ns_mov_b64 exec, -1")
    g.stamp(7)
    a.c("pass 2: P = exp2(S - m), O += V^T P; block b exponentiates S_b, starts S_{b+1} and finishes block b-1")

    def s2(b):
        return SBUF[b & 1]

    def qk2(b):
        h = heads[b & 1]
        return f"v_mfma_f32_32x32x16_bf16 {vr(s2(b),16)}, {ar(kfrag(b))}, {vr(q[h])}, {vr(NEGM[h],16)}"

    def pv(b, half):
        h = heads[b & 1]
        o, p = OACC[h], PBUF[h]
        return f"v_mfma_f32_32x32x16_bf16 {vr(o,16)}, {ar(vfrag(b, half))}, {vr(p+4*half)}, {vr(o,16)}"

    wd_cur = []
    for b in range(18):
        t, h = b >> 1, heads[b & 1]
        nxt = [qk2(b + 1)] if b + 1 < 18 else []
        prv = [pv(b - 1, 0), pv(b - 1, 1)] if b >= 1 else []
        vl = ["s_mov_b64 exec, s[90:91]\n" + vread(b, 0) + "\n" + vread(b, 1) + "\ns_mov_b64 exec, -1"]
        if g.layer == 0 and b == 12:
            p1_finish(g)
        wd = [wo(i) for i in range(3 * (b - 12), min(3 * (b - 12) + 3, 16))] if g.layer == 0 and b >= 12 else []
        if INB and b == 2:
            for e in range(2):
                a(f"buffer_store_dwordx4 v[28:31], v2, {SRD_WS}, {sHB} offen offset:{e*1024} sc1")
        if INB and b == 4:
            a("s_mov_b32 exec_lo, 0x55555555\ns_mov_b32 exec_hi, 0x55555555")
            for i in range(3):
                a(f"buffer_store_dwordx4 v[28:31], v25, {SRD_WS}, s{sUO+i} offen sc1")
            a("s_mov_b64 exec, -1")
        if t < 8 and b % 2 == 0:
            stub, back = g.lab("sk"), g.lab("bk")
            a(f"s_cmp_gt_u32 s77, {t}\ns_cbranch_scc1 {stub}")
        s_, p = s2(b), PBUF[h]
        extra = {1: nxt[:1], 2: wd[:1], 4: prv[:1], 7: wd[1:2], 9: prv[1:2], 11: vl, 13: wd[2:3]}
        wd_prev, wd_cur = (wd_cur if b else []), wd
        for i in range(16):
            a(f"v_exp_f32 v{s_+i}, v{s_+i}")
            if i >= 2 and i % 2 == 0:
                k = i // 2 - 1
                a(f"v_cvt_pk_bf16_f32 v{p+k}, v{s_+2*k}, v{s_+2*k+1}")
            for x in extra.get(i, []):
                a(x)
        a(f"s_nop 0\nv_cvt_pk_bf16_f32 v{p+7}, v{s_+14}, v{s_+15}")
        if t in (0, 8):
            msk = ANDF if t == 0 else ANDD
            for k in range(8):
                a(f"v_and_b32 v{p+k}, v{msk+k}, v{p+k}")
        if t < 8 and b % 2 == 1:
            a.label(back, reset=False)
            g.stubs.append((stub, back, nxt + wd_prev + wd_cur))
    a(pv(17, 0)); a(pv(17, 1))
    g.stamp(8)
    for hi, h in enumerate(heads):
        o = OACC[h]
        a(f"v_rcp_f32 v52, v{o+8}")
        for i in range(8):
            a(f"v_mul_f32 v{o+i}, v52, v{o+i}")
        for k in range(4):
            a(f"v_cvt_pk_bf16_f32 v{o+k}, v{o+2*k}, v{o+2*k+1}")

    def ost(m):
        for hi, h in enumerate(heads):
            a(f"buffer_store_dwordx4 {vr(OACC[h])}, v20, {SRD_WS}, s89 offen offset:{hi*512} {m}", tag="Ost")
    g.dual(ost)


L_STG = L_RING + 10240
L_STG2 = L_RING
V_W1D, V_W1R, V_W2D, V_W2R = 52, 56, 40, 42


PA1 = 96
V_P1 = 12


def p1_setup(g):
    a = g.a
    a("s_lshr_b32 s72, s2, 2\ns_and_b32 s73, s2, 3")
    a("s_mul_i32 s74, s73, 7\ns_min_u32 s75, s73, 1\ns_add_u32 s74, s74, s75")
    a("s_cmp_eq_u32 s73, 0\ns_cselect_b32 s75, 8, 7")
    a(f"s_mul_i32 s101, s72, {32*2752}\ns_mul_i32 s73, s74, 96\ns_add_u32 s101, s101, s73\ns_mul_i32 s75, s75, 6")
    a("s_mov_b32 s72, 1311\ns_mov_b32 s73, 2752")
    for n in range(7):
        a(f"s_lshl_b32 s74, {sWV}, 6\ns_add_u32 s74, s74, {256*n}\nv_add_u32 v3, s74, v1")
        a("v_mul_lo_u32 v4, v3, s72\nv_lshrrev_b32 v4, 16, v4\nv_mul_u32_u24 v5, 50, v4\nv_sub_u32 v5, v3, v5")
        a("v_mul_lo_u32 v6, v4, s73\nv_lshl_add_u32 v6, v5, 4, v6")
        a("v_cmp_gt_u32 vcc, s75, v5\nv_cmp_gt_u32 s[78:79], 32, v4\ns_and_b64 vcc, vcc, s[78:79]")
        a(f"v_mov_b32 v5, 0x7ff00000\nv_cndmask_b32 v{V_P1+n}, v5, v6, vcc")


def p1_loads(g):
    a = g.a
    for n in range(7):
        a(f"buffer_load_dwordx4 {ar(PA1+4*n)}, v{V_P1+n}, {SRD_W1}, s101 offen")


def p1_finish(g):
    a = g.a
    L1 = L_X
    a("s_lshr_b32 s72, s2, 2\ns_and_b32 s73, s2, 3")
    a("s_mul_i32 s74, s73, 7\ns_min_u32 s75, s73, 1\ns_add_u32 s74, s74, s75")
    a("s_cmp_eq_u32 s73, 0\ns_cselect_b32 s75, 8, 7")
    a(f"s_lshl_b32 s80, {sWV}, 10\ns_add_u32 s80, s80, {L1}\nv_add_u32 v120, s80, v2")
    for n in range(7):
        a(f"ds_write_b128 v120, {ar(PA1+4*n)} offset:{n*4096}")
    a("v_lshrrev_b32 v121, 4, v1\nv_lshlrev_b32 v121, 3, v121\nv_bfe_u32 v122, v1, 2, 2\nv_add_u32 v121, v121, v122\nv_and_b32 v122, 3, v1")
    a(f"v_mul_u32_u24 v123, 800, v121\nv_lshl_add_u32 v123, v122, 3, v123\ns_lshl_b32 s80, {sWV}, 5\ns_add_u32 s80, s80, {L1}\nv_add_u32 v123, s80, v123")
    a("s_waitcnt lgkmcnt(0)\ns_barrier")
    for n in range(6):
        for rd in range(2):
            a(f"ds_read_b64_tr_b16 v[{96+4*n+2*rd}:{97+4*n+2*rd}], v123 offset:{128*n + rd*3200}")
    for n in range(6):
        a(f"s_add_u32 s80, {sWV}, {4*n}\ns_mul_i32 s81, s80, 43\ns_lshr_b32 s81, s81, 7\ns_mul_i32 s82, s81, 3\ns_sub_u32 s82, s80, s82")
        a("s_cmp_lt_u32 s81, s75\ns_cselect_b32 s85, 0, 0x70000000")
        a("s_add_u32 s81, s81, s74\ns_lshl_b32 s81, s81, 6\ns_add_u32 s81, s81, s72\ns_mul_i32 s81, s81, 3\ns_add_u32 s81, s81, s82")
        a(f"s_lshl_b32 s81, s81, 10\ns_add_u32 s81, s81, {WS_W1P}\ns_or_b32 s81, s81, s85")
        a(f"buffer_store_dwordx4 {vr(96+4*n)}, v2, {SRD_WS}, s81 offen sc1")
    a("s_waitcnt lgkmcnt(0)\ns_barrier")


def early_w1(g, i0, i1, check=False):
    a = g.a
    skip = g.lab("e1")
    a(f"s_cmp_eq_u32 {sM1}, 0\ns_cbranch_scc1 {skip}")
    with a.cond("m1"):
        if check:
            l0_only(g, "l0c", lambda: (p1_check(g), w1_loads(g, 0, i0)))
        w1_loads(g, i0, i1)
    a.label(skip, reset=False)


def l0_only(g, name, fn):
    if g.layer == 0:
        fn()


def p1_check(g):
    a = g.a
    a(f"s_cmp_ge_u32 {sJ1}, 8\ns_cselect_b32 s72, 1, 0\ns_cmp_ge_u32 {sJ1}, 15\ns_addc_u32 s72, s72, 0")
    a(f"s_cmp_ge_u32 {sJ1}, 22\ns_addc_u32 s72, s72, 0")
    a(f"s_lshl_b32 s73, {sWV}, 4\nv_add_u32 v9, s73, v1\nv_lshl_add_u32 v9, v9, 2, s72")
    a(f"v_lshlrev_b32 v9, 7, v9\nv_add_u32 v9, {WS_FLAG + PH_P*2*256*128}, v9")
    g.poll("v9", "0xffff")


def w1_loads(g, i0, i1):
    a = g.a
    a(f"s_lshl_b32 s72, {sJ1}, 6\ns_lshl_b32 s73, {sWV}, 4\ns_add_u32 s72, s72, s73\ns_mul_i32 s72, s72, 3072\ns_add_u32 s72, s72, {WS_W1P}")
    for i in range(i0, i1):
        st, ft = divmod(i, 3)
        a(f"s_add_u32 s73, s72, {st*3072}")
        a(f"buffer_load_dwordx4 {ar(4*i)}, v2, {SRD_WS}, s73 offen offset:{ft*1024} sc1")


def m1_only(g, fn):
    a = g.a
    skip = g.lab("m1s")
    a(f"s_cmp_eq_u32 {sM1}, 0\ns_cbranch_scc1 {skip}")
    with a.cond("m1"):
        fn()
    a.label(skip, reset=False)


def w2_setup(g):
    a = g.a
    a("v_lshrrev_b32 v3, 3, v1\nv_lshlrev_b32 v3, 12, v3\nv_bfe_u32 v4, v1, 1, 2\nv_bfe_u32 v5, v1, 4, 1\nv_and_b32 v6, 1, v1")
    for e in range(2):
        a(f"v_or_b32 v7, {2*e}, v5\nv_xor_b32 v7, v4, v7\nv_lshl_add_u32 v7, v7, 1, v6\nv_lshl_add_u32 v{V_W2D+e}, v7, 4, v3")
    a("v_lshrrev_b32 v3, 4, v1\nv_lshlrev_b32 v4, 3, v3\nv_bfe_u32 v5, v1, 2, 2\nv_add_u32 v4, v4, v5\nv_lshlrev_b32 v4, 7, v4")
    a("v_and_b32 v5, 3, v1\nv_lshl_add_u32 v4, v5, 3, v4\nv_and_b32 v3, 1, v3\nv_lshlrev_b32 v3, 1, v3\nv_bfe_u32 v5, v1, 3, 1\nv_or_b32 v3, v3, v5")
    for k in range(4):
        a(f"v_xor_b32 v5, {k}, v3\nv_lshl_add_u32 v{V_W2R+k}, v5, 5, v4")
    a(f"s_mul_i32 s89, {sWV}, {11*32*4096}\ns_lshl_b32 s88, {sR}, 7\ns_add_u32 s89, s89, s88")


def w2_lds(st):
    if st < 5:
        return ("s86", st * 4096)
    if st < 9:
        return ("s87", (st - 5) * 4096)
    return ("s86", (st - 9) * 4096)


def w2_bases(g):
    g.a(f"s_mul_i32 s86, {sWV}, 20480\ns_add_u32 s86, s86, {L_STG2}\ns_lshl_b32 s87, {sWV}, 14\ns_add_u32 s87, s87, {L_X}")


def w2_dma_text(st, m):
    base, off = w2_lds(st)
    return (f"s_add_u32 m0, {base}, {off + m*1024}\ns_add_u32 s88, s89, {(st*32 + 8*m)*4096}",
            f"buffer_load_dwordx4 v{V_W2D + (m & 1)}, {SRD_W2P}, s88 offen lds")


def w2_dma(g, st, m, uncond=False):
    pre, ld = w2_dma_text(st, m)
    g.a(pre)
    (g.a.uncond if uncond else g.a)(ld, tag=f"D2_{0 if st < 5 else 5 if st < 9 else 9}")
    return pre + "\n" + ld


def w2_tr(g, s0, s1):
    a = g.a
    base, _ = w2_lds(s0)
    for k in range(4):
        a(f"v_add_u32 v{32+k}, {base}, v{V_W2R+k}")
    for st in range(s0, s1):
        _, off = w2_lds(st)
        for k in range(4):
            for rd in range(2):
                b = (st*4 + k) * 4 + 2*rd
                a(f"ds_read_b64_tr_b16 a[{b}:{b+1}], v{32+k} offset:{off + rd*512}")


def u_producers(g, dst, lane0):
    a = g.a
    a(f"s_mul_i32 s72, {sWV}, 352\ns_mul_hi_u32 s72, s72, {(1 << 32)//48 + 1}\ns_sub_u32 s72, s72, {lane0}\nv_add_u32 v8, s72, v1\nv_max_i32 v8, 0, v8\nv_min_u32 v8, 28, v8")
    a("v_cmp_le_u32 vcc, 8, v8\nv_cndmask_b32 v6, 0, 1, vcc\nv_cmp_le_u32 vcc, 15, v8\nv_addc_co_u32 v6, vcc, 0, v6, vcc")
    a("v_cmp_le_u32 vcc, 22, v8\nv_addc_co_u32 v6, vcc, 0, v6, vcc")
    a("v_mul_u32_u24 v7, 7, v6\nv_min_u32 v9, 1, v6\nv_add_u32 v7, v7, v9\nv_sub_u32 v7, v8, v7")
    a(f"s_and_b32 s72, {sCQ}, 3\ns_lshr_b32 s73, {sCQ}, 2\nv_lshl_add_u32 v7, v7, 2, s72\nv_lshlrev_b32 v7, 3, v7")
    a(f"v_lshl_add_u32 {dst}, v6, 1, v7\nv_add_u32 {dst}, s73, {dst}")


def sentinel(g, loads, srd):
    a = g.a
    top, ok = g.lab("sn"), g.lab("sno")
    a(f"s_mov_b32 {sCNT}, 0")
    a.label(top, reset=False)
    with a.cond(top):
        for k, (addr, soff) in enumerate(loads):
            a(f"buffer_load_dword v{4+k}, {addr}, {srd}, {soff} offen sc1")
        a("s_waitcnt vmcnt(0)")
        a("v_cmp_eq_u32 vcc, -1, v4")
        for k in range(1, len(loads)):
            a(f"v_cmp_eq_u32 s[72:73], -1, v{4+k}\ns_or_b64 vcc, vcc, s[72:73]")
        a(f"s_cbranch_vccz {ok}")
        a(f"s_add_u32 {sCNT}, {sCNT}, 1\ns_cmp_lt_u32 {sCNT}, {POLL_LIMIT}\ns_cbranch_scc1 {top}")
    a.label(ok, reset=False)


def redo_end(g, redo):
    a = g.a
    done = g.lab("rd")
    a(f"s_cmp_eq_u64 {sACC}, 0\ns_cbranch_scc1 {done}")
    if g.diag:
        g.srd(32, P_DBG, 256)
        a(f"v_mov_b32 v4, 1\nv_mov_b32 v5, 4\ns_mov_b64 exec, 1\nbuffer_atomic_add v4, v5, {SRD_T}, 0 offen\ns_mov_b64 exec, -1")
    a(f"s_add_u32 {sREDO}, {sREDO}, 1\ns_cmp_lt_u32 {sREDO}, 64\ns_cbranch_scc1 {redo}")
    a.label(done, reset=False)


def o_flags(g):
    a = g.a
    a(f"v_mov_b32 v8, {sR}\nv_and_b32 v9, 3, v8\nv_lshlrev_b32 v9, 3, v9\nv_add_u32 v9, v1, v9\nv_lshlrev_b32 v9, 3, v9")
    a("v_lshrrev_b32 v7, 2, v8\nv_add_u32 v9, v9, v7")
    g.vflag("v9", PH_O)
    a("s_mov_b32 s76, 0xff\ns_mov_b32 s77, 0")
    if g.layer == 0:
        a(f"s_cmp_ge_u32 {sJ1}, 8\ns_cselect_b32 s72, 1, 0\ns_cmp_ge_u32 {sJ1}, 15\ns_addc_u32 s72, s72, 0")
        a(f"s_cmp_ge_u32 {sJ1}, 22\ns_addc_u32 s72, s72, 0")
        a(f"s_lshl_b32 s73, {sWV}, 4\ns_sub_u32 s73, s73, 8\nv_add_u32 v8, s73, v1\nv_lshl_add_u32 v8, v8, 2, s72\nv_and_b32 v8, 255, v8")
        a(f"v_lshlrev_b32 v8, 7, v8\nv_add_u32 v8, {WS_FLAG + PH_P*2*256*128}, v8")
        a("v_cmp_le_u32 vcc, 8, v1\nv_cndmask_b32 v9, v9, v8, vcc")
        a(f"s_cmp_eq_u32 {sM1}, 0\ns_cselect_b32 s76, s76, 0xffffff")


def oproj(g):
    a = g.a
    a.c("======== output projection, residual, double LayerNorm")
    OFR, WPRE, WFR, ACC = 64, 128, 14, 46
    a("v_lshrrev_b32 v3, 5, v1\nv_lshlrev_b32 v3, 4, v3\nv_bfe_u32 v4, v1, 4, 1\nv_lshl_add_u32 v3, v4, 2, v3")
    a("v_bfe_u32 v5, v1, 2, 2\nv_add_u32 v3, v3, v5\nv_bfe_u32 v5, v3, 1, 2\nv_and_b32 v6, 3, v1\nv_lshlrev_b32 v6, 3, v6")
    a("v_lshl_add_u32 v6, v3, 7, v6")
    for nt in range(4):
        a(f"v_xor_b32 v7, {nt}, v5\nv_lshl_add_u32 v{10+nt}, v7, 5, v6")

    def wreg(ks, nt):
        return WPRE + ks * 16 + nt * 4 if ks < 8 else WFR + (ks & 1) * 16 + nt * 4

    def wread(ks, nt):
        b = wreg(ks, nt)
        for rd in range(2):
            a(f"ds_read_b64_tr_b16 v[{b+2*rd}:{b+2*rd+1}], v{10+nt} offset:{L_X + ks*4096 + rd*1024}")
    for ks in range(8):
        for nt in range(4):
            wread(ks, nt)
    g.poll("v9", "s[76:77]")
    a("s_waitcnt vmcnt(0) lgkmcnt(0)")
    g.stamp(10)
    a(f"s_lshl_b32 s72, {sR}, 2\ns_add_u32 s72, s72, {sWV}\ns_lshl_b32 s72, s72, 14\ns_lshl_b32 s73, {sL}, 21")
    a(f"s_add_u32 s72, s72, s73\ns_add_u32 s74, s72, {WS_OF}")

    def oload(ks):
        a(f"s_add_u32 s73, s74, {(ks >> 2)*4096}")
        a(f"buffer_load_dwordx4 {vr(OFR+4*ks)}, v2, {SRD_WS}, s73 offen offset:{(ks & 3)*1024} sc1")
    OD = 11
    for ks in range(OD):
        oload(ks)
    g.stamp(25)

    def main(w1):
        if w1:
            a(f"s_lshl_b32 s76, {sJ1}, 6\ns_lshl_b32 s77, {sWV}, 4\ns_add_u32 s76, s76, s77\ns_mul_i32 s76, s76, 3072\ns_add_u32 s76, s76, {WS_W1P}")
        for ks in range(16):
            if ks + OD < 16:
                oload(ks + OD)
            for nt in range(4):
                c = "0" if ks == 0 else vr(ACC + 4*nt)
                a(f"v_mfma_f32_16x16x32_bf16 {vr(ACC+4*nt)}, {vr(wreg(ks, nt))}, {vr(OFR+4*ks)}, {c}")
                if 6 <= ks <= 13:
                    wread(ks + 2, nt)
                if w1 and nt == 1 and ks >= 4:
                    for i in ((ks - 4) * 2, (ks - 4) * 2 + 1) if ks < 12 else ():
                        st, ft = divmod(i, 3)
                        a(f"s_add_u32 s77, s76, {st*3072}")
                        a(f"buffer_load_dwordx4 {ar(4*i)}, v2, {SRD_WS}, s77 offen offset:{ft*1024} sc1")
            if ks == 0:
                g.stamp(28)
            if ks == 7:
                g.stamp(29)
    la, lb = g.lab("oa"), g.lab("ob")
    a(f"s_cmp_eq_u32 {sM1}, 0\ns_cbranch_scc1 {la}")
    a.snap(la)
    main(True)
    a.label(lb, reset=False)
    g.late.append((la, lb, lambda: (a.restore(la), main(False))))
    g.stamp(11)
    a(f"v_and_b32 v3, 15, v1\ns_lshl_b32 s72, {sWV}, 4\nv_add_u32 v14, s72, v3\nv_lshrrev_b32 v4, 4, v1")
    a(f"v_mul_u32_u24 v5, 144, v14\nv_lshl_add_u32 v5, v4, 3, v5\nv_add_u32 v15, {L_R}, v5")
    for nt in range(4):
        a(f"ds_read_b64 v[{176+2*nt}:{177+2*nt}], v15 offset:{32*nt}")
    X1 = 192
    for nt in range(4):
        for k in range(2):
            a(f"v_lshlrev_b32 v{X1+4*nt+2*k}, 16, v{176+2*nt+k}\nv_and_b32 v{X1+4*nt+2*k+1}, 0xffff0000, v{176+2*nt+k}")
    for i in range(16):
        a(f"v_add_f32 v{X1+i}, v{X1+i}, v{ACC+i}")
    for k in range(8):
        a(f"v_cvt_pk_bf16_f32 v{176+k}, v{X1+2*k}, v{X1+2*k+1}")
    for nt in range(4):
        a(f"ds_write_b64 v15, v[{176+2*nt}:{177+2*nt}] offset:{32*nt}")
    a(f"v_add_f32 v16, v{X1}, v{X1+1}\nv_mul_f32 v17, v{X1}, v{X1}\nv_fmac_f32 v17, v{X1+1}, v{X1+1}")
    for i in range(2, 16):
        a(f"v_add_f32 v16, v16, v{X1+i}\nv_fmac_f32 v17, v{X1+i}, v{X1+i}")

    def fold_groups(r0, r1):
        for sw in ("16", "32"):
            a(f"v_mov_b32 v20, v{r0}\nv_mov_b32 v21, v{r1}")
            a(f"v_permlane{sw}_swap_b32 v{r0}, v20\nv_permlane{sw}_swap_b32 v{r1}, v21")
            a(f"v_add_f32 v{r0}, v{r0}, v20\nv_add_f32 v{r1}, v{r1}, v21")
    fold_groups(16, 17)
    a(f"v_mov_b32 v18, {sN}\nv_mov_b32 v19, {sNN}")
    a(f"s_lshl_b32 s72, {sL}, 5\ns_add_u32 s72, s72, {sR}\ns_lshl_b32 s72, s72, 13\ns_add_u32 s72, s72, {WS_ST}")
    a(f"s_lshl_b32 s73, {sCQ}, 10\ns_add_u32 s73, s73, s72\nv_lshlrev_b32 v22, 4, v14")
    a("s_mov_b64 exec, 0xffff")
    g.dual(lambda m: a(f"buffer_store_dwordx4 v[16:19], v22, {SRD_WS}, s73 offen {m}"))
    a("s_mov_b64 exec, -1")
    g.stamp(26)
    if INB:
        a(f"s_lshl_b32 s73, {sWV}, 3\nv_add_u32 v34, s73, v1")
        g.wg_of("v35", "v34", sC1)
        u_producers(g, "v36", 8)
        a("v_cmp_le_u32 vcc, 8, v1\nv_cndmask_b32 v35, v35, v36, vcc\nv_and_b32 v35, 255, v35")
        g.vflag("v35", PH_PD)
        a(f"s_lshl_b32 s44, {sM1}, 8\ns_sub_u32 s44, s44, {sM1}\ns_or_b32 s44, s44, 0xff00\ns_mov_b32 s45, 0")
        a(f"s_mov_b64 exec, s[44:45]\nbuffer_load_dwordx2 v[32:33], v35, {SRD_WS}, 0 offen sc1\ns_mov_b64 exec, -1")
    early_w1(g, 16, 28)
    a("v_lshrrev_b32 v4, 4, v1")
    g.stamp(27)
    a(f"s_lshl_b32 s72, {sL}, 5\ns_add_u32 s72, s72, {sR}\ns_lshl_b32 s72, s72, 13\ns_add_u32 s72, s72, {WS_ST}")
    a("v_lshl_add_u32 v23, v4, 11, v22\ns_mov_b32 s100, 0")
    top, ok = g.lab("stp"), g.lab("sto")
    a.label(top, reset=False)
    a(f"buffer_load_dwordx4 v[24:27], v23, {SRD_WS}, s72 offen sc1")
    a(f"buffer_load_dwordx4 v[28:31], v23, {SRD_WS}, s72 offen offset:1024 sc1")
    a("s_waitcnt vmcnt(0)")
    a(f"v_cmp_ne_u64 vcc, {sNP}, v[26:27]\nv_cmp_ne_u64 s[74:75], {sNP}, v[30:31]\ns_or_b64 vcc, vcc, s[74:75]")
    a(f"s_cbranch_vccz {ok}")
    a(f"s_add_u32 s100, s100, 1\ns_cmp_lt_u32 s100, {POLL_LIMIT}\ns_cbranch_scc1 {top}\ns_branch L_fail")
    a.label(ok, reset=False)
    if INB:
        pd = g.lab("pd")
        a(f"s_mov_b64 exec, s[44:45]\nv_cmp_ne_u64 vcc, {sNP}, v[32:33]\ns_mov_b64 exec, -1\ns_cbranch_vccz {pd}")
        with a.cond(pd):
            a("v_mov_b32 v36, v4\nv_mov_b32 v37, v5")
            g.poll("v35", "s[44:45]")
            a("v_mov_b32 v4, v36\nv_mov_b32 v5, v37")
        a.label(pd, reset=False)
    g.stamp(12)
    a("v_add_f32 v16, v24, v28\nv_add_f32 v17, v25, v29")
    fold_groups(16, 17)
    a(f"v_mul_f32 v16, {f32(1/512)}, v16\nv_mul_f32 v17, {f32(1/512)}, v17\nv_fma_f32 v17, -v16, v16, v17\nv_max_f32 v17, 0, v17")
    a(f"v_add_f32 v18, {f32(1e-5)}, v17\nv_rsq_f32 v18, v18")
    a(f"v_mul_f32 v19, v18, v18\nv_mul_f32 v19, v19, v17\nv_add_f32 v19, {f32(1e-5)}, v19\nv_rsq_f32 v19, v19\nv_mul_f32 v18, v18, v19")
    for i in range(16):
        a(f"v_sub_f32 v{X1+i}, v{X1+i}, v16")
    for i in range(16):
        a(f"v_mul_f32 v{X1+i}, v18, v{X1+i}")
    for k in range(8):
        a(f"v_cvt_pk_bf16_f32 v{176+k}, v{X1+2*k}, v{X1+2*k+1}")
    HT = L_RING
    a(f"v_mul_u32_u24 v5, 160, v14\nv_lshl_add_u32 v5, v4, 3, v5\nv_add_u32 v5, {HT}, v5")
    for nt in range(4):
        a(f"ds_write_b64 v5, v[{176+2*nt}:{177+2*nt}] offset:{32*nt}")
    a("v_lshrrev_b32 v3, 4, v1\nv_lshlrev_b32 v3, 3, v3\nv_bfe_u32 v6, v1, 2, 2\nv_add_u32 v3, v3, v6")
    a(f"s_lshl_b32 s72, {sTB}, 5\nv_add_u32 v3, s72, v3\nv_mul_u32_u24 v3, 160, v3\nv_and_b32 v6, 3, v1\nv_lshl_add_u32 v3, v6, 3, v3")
    a(f"s_lshl_b32 s72, {sP}, 6\ns_add_u32 s72, s72, {HT}\nv_add_u32 v3, s72, v3")
    a("s_waitcnt lgkmcnt(0)\ns_barrier")
    for e in range(2):
        for rd in range(2):
            a(f"ds_read_b64_tr_b16 v[{184+4*e+2*rd}:{185+4*e+2*rd}], v3 offset:{32*e + rd*640}")
    if INB:
        a(f"s_mov_b32 s72, {sHB}")
    else:
        a(f"s_lshl_b32 s72, {sCQ}, 6\ns_lshl_b32 s73, {sR}, 1\ns_add_u32 s72, s72, s73\ns_add_u32 s72, s72, {sTB}\ns_lshl_b32 s72, s72, 2")
        a(f"s_lshl_b32 s73, {sP}, 1\ns_add_u32 s72, s72, s73\ns_lshl_b32 s72, s72, 10\ns_lshl_b32 s73, {sL}, 21\ns_add_u32 s72, s72, s73\ns_add_u32 s72, s72, {WS_H}")
    for e in range(2):
        a(f"buffer_store_dwordx4 {vr(184+4*e)}, v2, {SRD_WS}, s72 offen offset:{e*1024} sc1", tag="Hst")


def mix1(g):
    a = g.a
    a.c("======== token mixing 1: u = gelu(h^T W1 + b1)")
    skip, other = g.lab("m1"), g.lab("m1o")
    w2_setup(g)
    w2_bases(g)
    a(f"s_cmp_eq_u32 {sM1}, 0\ns_cbranch_scc1 {other}")
    w2_text = []

    def w2(i):
        return w2_dma(g, i >> 2, i & 3, uncond=True)
    with a.cond("m1"):
        g.srd(32, P_B1, 2752)
        a(f"s_mul_i32 s72, {sJ1}, 96\nv_and_b32 v3, 1, v1\nv_lshlrev_b32 v3, 3, v3\ns_mul_i32 s73, {sWV}, 3")
        for i in range(3):
            a(f"s_add_u32 s74, s73, {i}\ns_lshr_b32 s74, s74, 1\ns_lshl_b32 s74, s74, 4\ns_add_u32 s74, s74, s72")
            a(f"buffer_load_dwordx2 v[{14+2*i}:{15+2*i}], v3, {SRD_T}, s74 offen")
        if not INB:
            a(f"s_lshl_b32 s73, {sWV}, 3\nv_add_u32 v8, s73, v1")
            g.wg_of("v9", "v8", sC1)
            g.vflag("v9", PH_H)
        c0 = -2 * math.log2(math.e) * math.sqrt(2 / math.pi)
        c1 = c0 * 0.044715
        a(f"v_and_b32 v3, 15, v1\nv_mul_u32_u24 v3, 208, v3\nv_lshrrev_b32 v4, 4, v1\nv_lshl_add_u32 v3, v4, 4, v3")
        a(f"s_mul_i32 s72, {sWV}, 13312\nv_add_u32 v13, s72, v3")
        a("v_lshrrev_b32 v3, 1, v1\nv_mul_u32_u24 v10, 208, v3\nv_and_b32 v4, 1, v1\nv_lshl_add_u32 v10, v4, 4, v10")
        a("v_lshrrev_b32 v5, 5, v1\nv_lshlrev_b32 v11, 10, v5\nv_and_b32 v3, 15, v3\nv_lshl_add_u32 v11, v3, 4, v11")
        if not INB:
            a("v_lshl_add_u32 v11, v4, 3, v11")
        a(f"s_mul_i32 s76, {sWV}, 3\ns_mov_b32 s84, {f32(c1)}\ns_mov_b32 s85, {f32(c0)}")
        for i in range(3):
            a(f"s_add_u32 s72, s76, {i}\ns_lshr_b32 s73, s72, 1\ns_and_b32 s72, s72, 1")
            a(f"s_mul_i32 s74, s72, {32*208}\ns_lshl_b32 s75, s73, 5\ns_add_u32 s74, s74, s75\nv_add_u32 v{20+i}, s74, v10")
        if INB:
            for i in range(3):
                a(f"s_mov_b32 s{80+i}, s{sUO+i}")
        else:
            u_offsets(g, 80)
        HB, NS, ACC, HD = 64, 24, 192, 15
        a(f"s_lshl_b32 s72, {sC1}, 6\ns_lshl_b32 s73, {sWV}, 4\ns_add_u32 s72, s72, s73\ns_lshl_b32 s72, s72, 12")
        a(f"s_lshl_b32 s73, {sL}, 21\ns_add_u32 s72, s72, s73\ns_add_u32 s43, s72, {WS_H}")
        if INB:
            a(f"v_lshlrev_b32 v9, 10, v1\nv_add_u32 v9, 1008, v9\ns_mov_b32 {sREDO}, 0")
            redo = g.lab("m1r")
            a.label(redo, reset=False)
            sentinel(g, [("v9", "s43")], SRD_WS)
            a(f"s_mov_b64 {sACC}, 0")
        else:
            g.poll("v9", "0xff")
        g.stamp(14)
        a("s_mov_b32 s72, s43")
        nload = [0]

        def hload():
            n = nload[0]
            a(f"buffer_load_dwordx4 {vr(HB + 4*(n % NS))}, v2, {SRD_WS}, s72 offen offset:{(n & 3)*1024} sc1")
            if n & 3 == 3:
                a("s_add_u32 s72, s72, 4096")
            nload[0] += 1
        for _ in range(HD):
            hload()
        for st in range(16):
            for dt in range(4):
                hb = HB + 4 * ((st*4 + dt) % NS)
                for ft in range(3):
                    acc = ACC + (ft*4 + dt) * 4
                    c = "0" if st == 0 else ar(acc)
                    a(f"v_mfma_f32_16x16x32_bf16 {ar(acc)}, {ar((st*3+ft)*4)}, {vr(hb)}, {c}")
                    if INB and ft == 0:
                        a(f"v_cmp_eq_u32 vcc, -1, v{hb}\ns_or_b64 {sACC}, {sACC}, vcc")
                if nload[0] < 64:
                    hload()
        if INB:
            redo_end(g, redo)
        l0_only(g, "l0t", lambda: (warmup(g, SRD_W2P, "v60") if "now2wu" not in OPT else None, a(x2_touch_text())))
        g.stamp(15)
        nw2 = 0
        for dt in range(4):
            for ft in range(3):
                a(f"ds_write_b128 v13, {ar(ACC + (ft*4+dt)*4)} offset:{L_X + dt*16*208 + ft*64}")
        a("s_waitcnt lgkmcnt(0)\ns_barrier")
        for i in range(3):
            for k in range(4):
                a(f"ds_read_b128 {vr(64 + 16*i + 4*k)}, v{20+i} offset:{L_X + k*13312}")
        if g.layer == 0:
            sk3 = g.lab("ep")
            a(f"s_or_b32 s72, s2, {sWV}\ns_cmp_eq_u32 s72, 0\ns_cbranch_scc0 {sk3}")
            with a.cond(sk3):
                a(f"v_mov_b32 v4, {sN}\nv_mov_b32 v5, {WS_EPOCH}\ns_mov_b64 exec, 1")
                a(f"buffer_store_dword v4, v5, {SRD_WS}, 0 offen sc1")
                a("s_mov_b64 exec, -1")
            a.label(sk3, reset=False)
        if "udrain" not in OPT:
            pass
        else:
            a("s_waitcnt lgkmcnt(0)\ns_barrier")
        for i in range(3):
            B = 64 + 16 * i
            bb = 14 + 2 * i

            def w2x(k=1):
                nonlocal nw2
                for _ in range(k):
                    if nw2 < 18:
                        w2_text.append(w2(nw2)); nw2 += 1
            for e in range(4):
                a(f"v_add_f32 v{B+e}, v{B+e}, v{B+4+e}\nv_add_f32 v{B+8+e}, v{B+8+e}, v{B+12+e}")
            w2x()
            a(f"v_lshlrev_b32 v{B+4}, 16, v{bb}\nv_and_b32 v{B+5}, 0xffff0000, v{bb}\nv_lshlrev_b32 v{B+6}, 16, v{bb+1}\nv_and_b32 v{B+7}, 0xffff0000, v{bb+1}")
            for e in range(4):
                a(f"v_add_f32 v{B+e}, v{B+e}, v{B+8+e}")
            w2x()
            for e in range(4):
                a(f"v_add_f32 v{B+e}, v{B+e}, v{B+4+e}")
            for e in range(4):
                a(f"v_mul_f32 v{B+4+e}, v{B+e}, v{B+e}\nv_mov_b32 v{B+8+e}, s85")
            w2x()
            for e in range(4):
                a(f"v_fmac_f32 v{B+8+e}, s84, v{B+4+e}")
            for e in range(4):
                a(f"v_mul_f32 v{B+8+e}, v{B+8+e}, v{B+e}")
            for e in range(4):
                a(f"v_exp_f32 v{B+8+e}, v{B+8+e}")
            w2x()
            for e in range(4):
                a(f"v_add_f32 v{B+8+e}, 1.0, v{B+8+e}")
            for e in range(4):
                a(f"v_rcp_f32 v{B+8+e}, v{B+8+e}")
            for e in range(4):
                a(f"v_mul_f32 v{B+e}, v{B+e}, v{B+8+e}")
            a(f"v_cvt_pk_bf16_f32 v{B+4}, v{B}, v{B+1}\nv_cvt_pk_bf16_f32 v{B+5}, v{B+2}, v{B+3}")
            if INB:
                a(f"v_mov_b32_dpp v{B+6}, v{B+4} quad_perm:[1,0,3,2] row_mask:0xf bank_mask:0xf")
                a(f"v_mov_b32_dpp v{B+7}, v{B+5} quad_perm:[1,0,3,2] row_mask:0xf bank_mask:0xf")
                a("s_mov_b32 exec_lo, 0x55555555\ns_mov_b32 exec_hi, 0x55555555")
                a(f"buffer_store_dwordx4 v[{B+4}:{B+7}], v11, {SRD_WS}, s{80+i} offen sc1", tag="Ust")
                a("s_mov_b64 exec, -1")
            else:
                a(f"buffer_store_dwordx2 v[{B+4}:{B+5}], v11, {SRD_WS}, s{80+i} offen sc1", tag="Ust")
        while nw2 < (36 if "udrain" in OPT else 20):
            w2_text.append(w2(nw2)); nw2 += 1
        if INB:
            a("s_barrier")
        else:
            a.wait_tag("Ust")
            g.publish(PH_U)
    a.label(skip, reset=False)
    pre = [warmup_text(SRD_W2P, "v60"), x2_touch_text()] if g.layer == 0 else []
    g.tails.append((other, skip, pre + w2_text))
    for i in range(20, 36) if "udrain" not in OPT else ():
        w2_dma(g, i >> 2, i & 3)
    a.wait_tag("D2_0")
    w2_tr(g, 0, 5)
    a("s_waitcnt lgkmcnt(0)")
    for i in range(36, 44):
        w2_dma(g, i >> 2, i & 3)


def mix2(g):
    a = g.a
    a.c("======== token mixing 2: x += (u W2 + b2)^T")
    if g.layer == 0 and "code2" in OPT and g.stop_after is None:
        g.code_warmup2()
    g.srd(32, P_B2, 4096)
    a(f"v_lshrrev_b32 v10, 3, v0\ns_lshl_b32 s72, {sR}, 7\nv_lshl_add_u32 v11, v10, 1, s72")
    a(f"buffer_load_ushort v12, v11, {SRD_T}, 0 offen\nbuffer_load_ushort v13, v11, {SRD_T}, 0 offen offset:64")
    a(f"s_mul_i32 s72, {sCQ}, {UC}\ns_lshl_b32 s73, {sL}, 21\ns_add_u32 s72, s72, s73\ns_add_u32 s72, s72, {WS_U}")
    g.srd(24, P_WS, UC, "s72")
    if INB:
        a(f"s_mul_i32 s85, {sWV}, {11*4096}\nv_lshlrev_b32 v9, 8, v1\nv_add_u32 v9, 240, v9")
        a(f"s_add_u32 s43, s85, 16384\ns_add_u32 s48, s85, 32768\ns_mov_b32 {sREDO}, 0")
        a("v_cmp_gt_u32 vcc, 48, v1\nv_mov_b32 v8, 0x7ff00000\nv_cndmask_b32 v8, v8, v9, vcc")
        redo = g.lab("m2r")
        a.label(redo, reset=False)
        sentinel(g, [("v9", "s85"), ("v9", "s43"), ("v8", "s48")], SRD_U)
        a(f"s_mov_b64 {sACC}, 0")
    else:
        u_producers(g, "v9", 0)
        g.vflag("v9", PH_U)
        g.poll("v9", "0xff")
    g.stamp(17)
    UB, ACC, UD = 64, 192, 14
    a(f"s_mul_i32 s85, {sWV}, {11*4096}")

    def uload(i):
        st, dt = i >> 2, i & 3
        a(f"s_add_u32 s72, s85, {st*4096}")
        a(f"buffer_load_dwordx4 {vr(UB + 4*i)}, v2, {SRD_U}, s72 offen offset:{dt*1024} sc1")
    for i in range(UD):
        uload(i)
    a.wait_tag("D2_5")
    w2_tr(g, 5, 9)
    a.wait_tag("D2_9")
    w2_tr(g, 9, 11)
    for st in range(11):
        for dt in range(4):
            for k in range(4):
                acc = ACC + (dt*4 + k) * 4
                c = "0" if st == 0 else ar(acc)
                a(f"v_mfma_f32_16x16x32_bf16 {ar(acc)}, {vr(UB + (st*4+dt)*4)}, {ar((st*4+k)*4)}, {c}")
                if INB and k == 0:
                    a(f"v_cmp_eq_u32 vcc, -1, v{UB + (st*4+dt)*4}\ns_or_b64 {sACC}, {sACC}, vcc")
                if k == 1 and st*4 + dt + UD < 44:
                    uload(st*4 + dt + UD)
    if INB:
        redo_end(g, redo)
    g.stamp(18)
    a("v_and_b32 v3, 15, v1\nv_lshrrev_b32 v4, 4, v1\nv_and_b32 v5, 7, v1")
    a(f"s_lshl_b32 s72, {sWV}, 14")
    for dt in range(4):
        a(f"v_add_u32 v6, {4*dt}, v4\nv_xor_b32 v6, v6, v5\nv_lshlrev_b32 v6, 4, v6\nv_lshl_add_u32 v6, v3, 8, v6\nv_add_u32 v{14+dt}, s72, v6")
    for dt in range(4):
        for k in range(4):
            a(f"ds_write_b128 v{14+dt}, {ar(ACC + (dt*4+k)*4)} offset:{L_X + k*4096}")
    a("s_waitcnt lgkmcnt(0)\ns_barrier")
    a("v_and_b32 v3, 7, v0\nv_and_b32 v4, 7, v10\nv_lshlrev_b32 v5, 1, v3")
    for e in range(2):
        a(f"v_add_u32 v6, {e}, v5\nv_xor_b32 v6, v6, v4\nv_lshlrev_b32 v6, 4, v6\nv_lshl_add_u32 v{18+e}, v10, 8, v6")
    a(f"v_mul_u32_u24 v20, 144, v10\nv_lshl_add_u32 v20, v3, 4, v20\nv_add_u32 v20, {L_R}, v20")
    a(f"v_lshlrev_b32 v21, 10, v10\nv_lshl_add_u32 v21, v3, 4, v21")
    a(f"s_lshl_b32 s72, {sR}, 16\ns_lshl_b32 s73, {sCQ}, 7\ns_add_u32 s72, s72, s73")
    for half in range(2):
        B = 64 + half * 48
        for k in range(4):
            for e in range(2):
                a(f"ds_read_b128 {vr(B + k*8 + e*4)}, v{18+e} offset:{L_X + k*16384 + half*8192}")
        a(f"ds_read_b128 {vr(B+32)}, v20 offset:{half*4608}")
    def epilogue(first):
        ring = []
        if first:
            g.q_addr_w(46)
            g.w_dma_setup("s80", "s81", "s82")
            ring = [(s_, n) for s_ in range(5) for n in range(4)]

        def ringdma(k=1):
            for _ in range(k):
                if ring:
                    s_, n = ring.pop(0)
                    g.w_dma(s_, only=n, sg="s80", sl="s81", st="s82", va="v46")
        for half in range(2):
            B = 64 + half * 48
            a(f"v_lshlrev_b32 v22, 16, v{12+half}")
            for i in range(8):
                a(f"v_add_f32 v{B+i}, v{B+i}, v{B+8+i}\nv_add_f32 v{B+16+i}, v{B+16+i}, v{B+24+i}")
                if i % 2 == 1:
                    ringdma()
            for i in range(8):
                a(f"v_add_f32 v{B+i}, v{B+i}, v{B+16+i}")
            ringdma()
            for i in range(8):
                a(f"v_add_f32 v{B+i}, v{B+i}, v22")
            ringdma()
            for k in range(4):
                a(f"v_lshlrev_b32 v{B+8+2*k}, 16, v{B+32+k}\nv_and_b32 v{B+9+2*k}, 0xffff0000, v{B+32+k}")
            ringdma()
            for i in range(8):
                a(f"v_add_f32 v{B+i}, v{B+i}, v{B+8+i}")
            ringdma()
            for k in range(4):
                a(f"v_cvt_pk_bf16_f32 v{B+36+k}, v{B+2*k}, v{B+2*k+1}")
            if first:
                a(f"ds_write_b128 v20, {vr(B+36)} offset:{half*4608}")
                g.dual(lambda m, B=B: a(f"buffer_store_dwordx4 {vr(B+36)}, v21, {SRD_DST}, s72 offen {m}", tag="Xst"))
            else:
                om = "" if "outplain" in OPT else "sc1"
                a(f"buffer_store_dwordx4 {vr(B+36)}, v21, {SRD_DST}, s72 offen {om}")
            if half == 0:
                a("s_add_u32 s72, s72, 32768")
            if first:
                a(f"v_add_f32 v{B+40}, v{B}, v{B+1}\nv_mul_f32 v{B+41}, v{B}, v{B}\nv_fmac_f32 v{B+41}, v{B+1}, v{B+1}")
                for i in range(2, 8):
                    a(f"v_add_f32 v{B+40}, v{B+40}, v{B+i}\nv_fmac_f32 v{B+41}, v{B+i}, v{B+i}")
                ringdma(2)
        if first:
            ringdma(20)
            a("v_mov_b32 v12, v46")
            g.row_stats_store([104, 152], 1, local=True)
    epilogue(g.layer == 0)


def drain(g, tag, n, sreg, val):
    a = g.a
    lw = g.lab("dr")
    a(f"s_cmp_eq_u32 {sreg}, {val}\ns_cbranch_scc1 {lw}")
    a.raw("  s_waitcnt vmcnt(0)")
    a.label(lw, reset=False)
    a.raw(f"  s_waitcnt vmcnt({n})")
    a.wait_tag(tag, emit=False)


def o_drain_publish(g):
    a = g.a
    a.wait_tag("Ost")
    g.publish(PH_O, local=True, also=PH_P if g.layer == 0 else None)


def rest(g):
    a = g.a
    attn_setup(g)
    g.stamp(5)
    attn(g)
    a("s_barrier")
    o_drain_publish(g)
    g.stamp(9)
    if g.stop("a"):
        return True
    o_flags(g)
    oproj(g)
    early_w1(g, 28, 40)
    if not INB:
        drain(g, "Hst", 12, sM1, 1)
        g.publish(PH_H)
    g.stamp(13)
    if g.stop("o"):
        return True
    m1_only(g, lambda: w1_loads(g, 40, 48))
    mix1(g)
    g.stamp(16)
    if g.stop("m1"):
        return True
    mix2(g)
    g.stamp(19)
    if g.stop("m2"):
        return True
    if g.layer == 1:
        a("s_endpgm")
        a.assume_clean()
        return True
    g.srd(4, P_WS, 2 << 20, WS_X2)
    g.srd(20, P_OUT, 2 << 20)
    a(f"s_mov_b32 {sL}, 1")
    a("s_waitcnt lgkmcnt(0)")
    return False


def finish(g):
    a = g.a
    a("s_branch L_end")
    a.assume_clean()
    for lab, back, fn in g.late:
        a.label(lab, reset=False)
        fn()
        a(f"s_branch {back}")
        a.assume_clean()
    for stub, back, always in g.stubs:
        a.label(stub, reset=False)
        a("s_nop 7")
        for x in always:
            a(x)
        a(f"s_nop 11\ns_branch {back}")
        a.assume_clean()
    for lab, back, texts in g.tails:
        a.label(lab, reset=False)
        for x in texts:
            for line in x.split("\n"):
                if line.startswith("@"):
                    a.label(line[1:], reset=False)
                else:
                    a(line)
        a(f"s_branch {back}")
        a.assume_clean()
```

```python
import math
from gen import *

NEG = f32(-1e30)
import os
OPT = set(os.environ.get("KOPT", "").split(","))
INB = "inb" in OPT
sHB, sUO, sACC, sREDO = "s36", 37, "s[40:41]", "s42"


def ar(b, n=4):
    return f"a[{b}:{b+n-1}]"


def vr(b, n=4):
    return f"v[{b}:{b+n-1}]"


QA, QB = 224, 228
SBUF = (64, 80, 96, 112)
NEGM = {"A": 128, "B": 144}
OACC = {"A": 160, "B": 176}
PBUF = {"A": 192, "B": 200}
CDIAG, CFAR, ANDD, ANDF = 208, 232, 32, 40
AK0, AV0 = 0, 72
L_KV = L_RING


def kfrag(b):
    return AK0 + b * 4


def vfrag(b, half):
    return AV0 + ((b & 1) * 2 + half) * 4


def attn_setup(g):
    a = g.a
    a.c("======== attention constants")
    a("v_and_b32 v3, 31, v1\nv_lshrrev_b32 v4, 5, v1\nv_lshlrev_b32 v4, 2, v4\nv_sub_u32 v3, v3, v4")
    a(f"v_mov_b32 v48, 0\nv_mov_b32 v49, {NEG}\nv_mov_b32 v50, 0xffff\nv_mov_b32 v51, 0xffff0000")
    for i in range(16):
        ci = (i & 3) + 8 * (i >> 2)
        sp = f"s[{72 + 2*(i % 4)}:{73 + 2*(i % 4)}]"
        a(f"v_cmp_le_i32 {sp}, {ci}, v3")
        a(f"v_mov_b32 v{OACC['A']+i}, 0\nv_mov_b32 v{OACC['B']+i}, 0")
        a(f"v_cndmask_b32 v{CDIAG+i}, v49, v48, {sp}\nv_cndmask_b32 v{CFAR+i}, v48, v49, {sp}")
        a(f"v_cndmask_b32 v{52 + (i & 1)}, v48, v{50 + (i & 1)}, {sp}")
        if i & 1:
            a(f"v_or_b32 v{ANDD + i//2}, v52, v53\nv_not_b32 v{ANDF + i//2}, v{ANDD + i//2}")
    for i in range(8):
        a(f"v_mov_b32 v{PBUF['A']+i}, 0\nv_mov_b32 v{PBUF['B']+i}, 0")
    for k in range(AV0, AV0 + 16):
        a(f"v_accvgpr_write_b32 a{k}, v48")
    a("v_mov_b32 v54, 0x3f803f80\ns_mov_b32 exec_lo, 0x00110000\ns_mov_b32 exec_hi, 0x00110000")
    for k in range(AV0, AV0 + 16):
        a(f"v_accvgpr_write_b32 a{k}, v54")
    a("s_mov_b64 exec, -1")


def warmup_text(srd, dst):
    return (f"s_lshl_b32 s72, s2, 2\ns_add_u32 s72, s72, {sWV}\ns_mul_i32 s73, s72, {43*128}\nv_lshlrev_b32 v7, 7, v1\n"
            f"s_mov_b32 exec_lo, -1\ns_mov_b32 exec_hi, 0x7ff\n"
            f"buffer_load_dword {dst}, v7, {srd}, s73 offen\ns_mov_b64 exec, -1")


def warmup(g, srd, dst):
    g.a(warmup_text(srd, dst))


def team_check(g):
    a = g.a
    top, ok = g.lab("tc"), g.lab("tco")
    a(f"s_lshl_b32 s72, {sR}, 7\ns_add_u32 s72, s72, {WS_XC}\nv_lshlrev_b32 v3, 4, v1\ns_mov_b32 {sCNT}, 0\ns_mov_b64 exec, 0xff")
    a.label(top, reset=False)
    a(f"buffer_load_dwordx4 v[24:27], v3, {SRD_WS}, s72 offen sc1\ns_waitcnt vmcnt(0)")
    a(f"v_cmp_ne_u64 vcc, {sNP}, v[26:27]\ns_cbranch_vccz {ok}")
    a(f"s_add_u32 {sCNT}, {sCNT}, 1\ns_cmp_lt_u32 {sCNT}, {POLL_LIMIT}\ns_cbranch_scc1 {top}\ns_branch L_fail")
    a.label(ok, reset=False)
    a(f"v_cmp_ne_u32 vcc, s1, v24\ns_cmp_eq_u64 vcc, 0\ns_cselect_b32 {sFAST}, 1, 0\ns_mov_b64 exec, -1")


def x2_touch_text():
    return ("v_lshrrev_b32 v6, 3, v0\nv_and_b32 v3, 7, v0\nv_lshlrev_b32 v6, 10, v6\nv_lshl_add_u32 v6, v3, 4, v6\n"
            f"s_lshl_b32 s72, {sR}, 16\ns_lshl_b32 s73, {sCQ}, 7\ns_add_u32 s72, s72, s73\n"
            f"s_add_u32 s73, s72, 32768\n"
            f"buffer_load_dword v23, v6, {SRD_DST}, s72 offen sc1\nbuffer_load_dword v24, v6, {SRD_DST}, s73 offen sc1\n"
            f"s_add_u32 s72, {sR}, 32\ns_lshl_b32 s72, s72, 3\ns_add_u32 s72, s72, {sCQ}\ns_lshl_b32 s72, s72, 10\ns_add_u32 s72, s72, {WS_ST2}\n"
            f"buffer_load_dword v25, v2, {SRD_WS}, s72 offen sc1")


def u_offsets(g, dst):
    a = g.a
    a(f"s_mul_i32 s76, {sWV}, 3\ns_mul_i32 s77, {sC1}, {UC}\ns_lshl_b32 s73, {sL}, 21\ns_add_u32 s77, s77, s73\ns_add_u32 s77, s77, {WS_U}")
    for i in range(3):
        a(f"s_add_u32 s72, s76, {i}\ns_lshr_b32 s73, s72, 1\ns_and_b32 s72, s72, 1")
        a(f"s_mul_i32 s74, {sJ1}, 6\ns_add_u32 s74, s74, s73\ns_lshr_b32 s75, s74, 2\ns_and_b32 s79, s74, 3")
        a(f"s_lshl_b32 s75, s75, 12\ns_lshl_b32 s79, s79, 8\ns_add_u32 s75, s75, s79\ns_lshl_b32 s72, s72, 11\ns_add_u32 s75, s75, s72")
        a(f"s_add_u32 s75, s75, s77\ns_cmp_ge_u32 s74, 172\ns_cselect_b32 s79, 0x70000000, 0\ns_or_b32 s75, s75, s79")
        a(f"s_cmp_eq_u32 {sM1}, 0\ns_cselect_b32 s{dst+i}, 0x70000000, s75")


def inband_addresses(g):
    a = g.a
    a(f"s_lshl_b32 s72, {sCQ}, 6\ns_lshl_b32 s73, {sR}, 1\ns_add_u32 s72, s72, s73\ns_add_u32 s72, s72, {sTB}\ns_lshl_b32 s72, s72, 2")
    a(f"s_lshl_b32 s73, {sP}, 1\ns_add_u32 s72, s72, s73\ns_lshl_b32 s72, s72, 10\ns_lshl_b32 s73, {sL}, 21\ns_add_u32 s72, s72, s73\ns_add_u32 {sHB}, s72, {WS_H}")
    a("s_mov_b64 s[44:45], s[74:75]")
    u_offsets(g, sUO)
    a("s_mov_b64 s[74:75], s[44:45]")
    a("v_lshrrev_b32 v25, 5, v1\nv_lshlrev_b32 v25, 10, v25\nv_bfe_u32 v7, v1, 1, 4\nv_lshl_add_u32 v25, v7, 4, v25")
    a("v_mov_b32 v28, -1\nv_mov_b32 v29, -1\nv_mov_b32 v30, -1\nv_mov_b32 v31, -1")


def attn(g):
    a = g.a
    a.c("======== attention")
    a(f"s_sub_u32 s72, {sR}, 4\nv_add_u32 v8, s72, v1\nv_cmp_le_i32 s[74:75], 0, v8")
    g.wg_of("v9", "v8", sCQ)
    g.vflag("v9", PH_KV)
    a("s_and_b64 s[74:75], s[74:75], 0xf")
    a(f"s_lshl_b32 s76, {sR}, 1\ns_add_u32 s76, s76, {sTB}\ns_sub_u32 s77, 8, s76\ns_max_i32 s77, s77, 0")
    a(f"s_lshl_b32 s78, {sCQ}, 1\ns_add_u32 s78, s78, {sP}\ns_lshl_b32 s78, s78, 18\ns_lshl_b32 s79, {sL}, 22")
    a(f"s_add_u32 s78, s78, s79\ns_add_u32 s78, s78, {WS_KV}")
    a(f"s_lshl_b32 s79, {sTB}, 2\ns_lshl_b32 s80, {sR}, 1\ns_add_u32 s80, s80, s79\ns_sub_u32 s80, s80, 8")
    for i in range(4):
        a(f"s_add_i32 s{81+i}, s80, {i}\ns_max_i32 s{81+i}, s{81+i}, 0\ns_lshl_b32 s{81+i}, s{81+i}, 12\ns_add_u32 s{81+i}, s{81+i}, s78")
    a(f"s_lshl_b32 s85, {sR}, 1\ns_add_u32 s85, s85, {sTB}\ns_lshl_b32 s85, s85, 12\ns_add_u32 s85, s85, s78")
    a(f"s_mul_i32 s86, {sP}, 40960\ns_lshl_b32 s87, {sTB}, 14\ns_add_u32 s87, s87, s86\ns_add_u32 s87, s87, {L_KV}")
    a(f"s_lshl_b32 s79, {sTB}, 12\ns_add_u32 s79, s79, s86\ns_add_u32 s79, s79, {L_KV + 8*4096}")
    for q4 in range(4):
        a(f"s_add_u32 m0, s79, {q4*1024}\ns_add_u32 s72, s85, {q4*1024}")
        a(f"buffer_load_dwordx4 v2, {SRD_WS}, s72 offen sc1 lds", tag="Kd")
    a(f"s_lshl_b32 s88, {sTB}, 12\ns_add_u32 s88, s88, s86\ns_add_u32 s88, s88, {L_KV}\nv_add_u32 v10, s88, v2")
    a("v_and_b32 v8, 15, v1\nv_lshlrev_b32 v8, 4, v8\nv_lshrrev_b32 v7, 5, v1\nv_lshl_add_u32 v8, v7, 8, v8\nv_add_u32 v11, s88, v8")
    a("s_mov_b32 s90, 0xffff\ns_mov_b32 s91, 0xffff")
    a("v_bfe_u32 v20, v1, 4, 1\nv_lshlrev_b32 v20, 14, v20\nv_and_b32 v7, 15, v1\nv_lshl_add_u32 v20, v7, 4, v20")
    a("v_lshrrev_b32 v7, 5, v1\nv_lshl_add_u32 v20, v7, 8, v20")
    a(f"s_lshl_b32 s72, {sR}, 2\ns_lshl_b32 s73, {sTB}, 1\ns_add_u32 s72, s72, s73\ns_lshl_b32 s72, s72, 4")
    a(f"s_lshl_b32 s73, {sCQ}, 1\ns_add_u32 s72, s72, s73\ns_add_u32 s72, s72, {sP}\ns_lshl_b32 s72, s72, 10")
    a(f"s_lshl_b32 s73, {sL}, 21\ns_add_u32 s72, s72, s73\ns_add_u32 s89, s72, {WS_OF}")
    if INB:
        inband_addresses(g)
    a("s_mov_b64 s[76:77], s[74:75]")
    l0_only(g, "l0p", lambda: (team_check(g), p1_setup(g)))
    wo = g.wo_dma()
    g.poll("v9", "s[76:77]")
    a(f"s_lshl_b32 s76, {sR}, 1\ns_add_u32 s76, s76, {sTB}\ns_sub_u32 s77, 8, s76\ns_max_i32 s77, s77, 0")
    g.stamp(6)
    def kvdma(i, h, part):
        return (f"s_add_u32 m0, s87, {i*4096 + h*2048 + part}\ns_add_u32 s72, s{81+i}, {h*2048 + part}\n"
                f"buffer_load_dwordx4 v2, {SRD_WS}, s72 offen sc1 lds")
    for i in range(4):
        for h in range(2):
            a(kvdma(i, h, 0), tag="Kd")
    vd = [kvdma(i, h, 1024) for i in range(4) for h in range(2)]
    early = g.layer == 0 and "plate" not in OPT
    if early:
        for x in vd:
            a(x, tag="Vd")
        p1_loads(g)
    heads = ("A", "B")
    q = {"A": QA, "B": QB}
    mx = {"A": (48, 49), "B": (50, 51)}

    def kread(b):
        t, h = b >> 1, b & 1
        return f"ds_read_b128 {ar(kfrag(b))}, v10 offset:{t*4096 + h*2048}"

    def vread(b, half):
        t, h = b >> 1, b & 1
        return f"ds_read_b128 {ar(vfrag(b, half))}, v11 offset:{t*4096 + h*2048 + 1024 + half*512}"

    def qk(b, c):
        return f"v_mfma_f32_32x32x16_bf16 {vr(SBUF[b & 3],16)}, {ar(kfrag(b))}, {vr(q[heads[b & 1]])}, {c}"

    def cmask(t):
        return vr(CFAR, 16) if t == 0 else vr(CDIAG, 16) if t == 8 else "0"

    for h in heads:
        a(f"v_mov_b32 v{mx[h][0]}, {NEG}\nv_mov_b32 v{mx[h][1]}, {NEG}")
    a.wait_tag("Kd")
    a("s_barrier")
    a.c("pass 1: true row maximum over the masked window")
    for b in range(4):
        a(kread(b))
    a(qk(0, cmask(0)))
    a(kread(4))
    a(qk(1, cmask(0)))
    for b in range(18):
        t, s_, h = b >> 1, SBUF[b & 3], heads[b & 1]
        if b == 8 and g.layer == 0 and not early:
            p1_loads(g)
        if t < 8 and b % 2 == 0:
            stub, back = g.lab("p1s"), g.lab("p1b")
            always = [x for bb in (b, b + 1) for x in ([kread(bb + 5)] if bb + 5 < 18 else []) + ([qk(bb + 2, cmask((bb + 2) >> 1))] if bb + 2 < 18 else [])
                      + ([vd[bb]] if bb < 8 and not early else []) + ([wo(bb - 2)] if bb >= 2 and g.layer == 1 else [])]
            a(f"s_cmp_gt_u32 s77, {t}\ns_cbranch_scc1 {stub}")
        if b + 5 < 18:
            a(kread(b + 5))
        if b + 2 < 18:
            a(qk(b + 2, cmask((b + 2) >> 1)))
        if b < 8 and not early:
            a(vd[b], tag="Vd")
        for i in range(8):
            m = mx[h][i & 1]
            a(f"v_max3_f32 v{m}, v{m}, v{s_+2*i}, v{s_+2*i+1}")
            if i == 3 and b >= 2 and g.layer == 1:
                a(wo(b - 2))
        if t < 8 and b % 2 == 1:
            a.label(back, reset=False)
            g.stubs.append((stub, back, ["s_waitcnt lgkmcnt(0)"] + [y for x in always for y in (x, "s_waitcnt lgkmcnt(0)")]))
    for h in heads:
        m0, m1 = mx[h]
        a(f"v_max_f32 v{m0}, v{m0}, v{m1}\nv_mov_b32 v{m1}, v{m0}")
    for h in heads:
        m0, m1 = mx[h]
        a(f"v_permlane32_swap_b32 v{m0}, v{m1}")
    for h in heads:
        m0, m1 = mx[h]
        a(f"v_max_f32 v{m0}, v{m0}, v{m1}\nv_xor_b32 v{m0}, 0x80000000, v{m0}")
    for i in range(16):
        a(f"v_mov_b32 v{NEGM['A']+i}, v{mx['A'][0]}")
    a(qk(0, vr(NEGM["A"], 16)))
    for i in range(16):
        a(f"v_mov_b32 v{NEGM['B']+i}, v{mx['B'][0]}")
    a.wait_tag("Vd")
    a("s_barrier")
    a(f"buffer_load_dword v21, v20, {SRD_WS}, s89 offen sc1\nbuffer_load_dword v23, v20, {SRD_WS}, s89 offen offset:512 sc1")
    a(f"s_lshl_b32 s72, {sL}, 5\ns_add_u32 s72, s72, {sR}\ns_lshl_b32 s72, s72, 3\ns_add_u32 s72, s72, {sCQ}\ns_lshl_b32 s72, s72, 10")
    a(f"s_lshl_b32 s73, {sWV}, 8\ns_add_u32 s72, s72, s73\ns_add_u32 s72, s72, {WS_ST}")
    a(f"s_mov_b64 exec, 0xffff\nbuffer_load_dword v22, v2, {SRD_WS}, s72 offen sc1\ns_mov_b64 exec, -1")
    g.stamp(7)
    a.c("pass 2: P = exp2(S - m), O += V^T P; block b exponentiates S_b, starts S_{b+1} and finishes block b-1")

    def s2(b):
        return SBUF[b & 1]

    def qk2(b):
        h = heads[b & 1]
        return f"v_mfma_f32_32x32x16_bf16 {vr(s2(b),16)}, {ar(kfrag(b))}, {vr(q[h])}, {vr(NEGM[h],16)}"

    def pv(b, half):
        h = heads[b & 1]
        o, p = OACC[h], PBUF[h]
        return f"v_mfma_f32_32x32x16_bf16 {vr(o,16)}, {ar(vfrag(b, half))}, {vr(p+4*half)}, {vr(o,16)}"

    wd_cur = []
    for b in range(18):
        t, h = b >> 1, heads[b & 1]
        nxt = [qk2(b + 1)] if b + 1 < 18 else []
        prv = [pv(b - 1, 0), pv(b - 1, 1)] if b >= 1 else []
        vl = ["s_mov_b64 exec, s[90:91]\n" + vread(b, 0) + "\n" + vread(b, 1) + "\ns_mov_b64 exec, -1"]
        TB0 = next((int(o[2:]) for o in OPT if o.startswith("pt")), 8 if early else 12)
        if g.layer == 0 and b == TB0:
            p1_finish(g)
        per = 3 if TB0 >= 12 else 2
        wd = [wo(i) for i in range(per * (b - TB0), min(per * (b - TB0) + per, 16))] if g.layer == 0 and b >= TB0 else []
        if INB and b == 2:
            for e in range(2):
                a(f"buffer_store_dwordx4 v[28:31], v2, {SRD_WS}, {sHB} offen offset:{e*1024} sc1")
        if INB and b == 4:
            a("s_mov_b32 exec_lo, 0x55555555\ns_mov_b32 exec_hi, 0x55555555")
            for i in range(3):
                a(f"buffer_store_dwordx4 v[28:31], v25, {SRD_WS}, s{sUO+i} offen sc1")
            a("s_mov_b64 exec, -1")
        if t < 8 and b % 2 == 0:
            stub, back = g.lab("sk"), g.lab("bk")
            a(f"s_cmp_gt_u32 s77, {t}\ns_cbranch_scc1 {stub}")
        s_, p = s2(b), PBUF[h]
        extra = {1: nxt[:1], 2: wd[:1], 4: prv[:1], 7: wd[1:2], 9: prv[1:2], 11: vl, 13: wd[2:3]}
        wd_prev, wd_cur = (wd_cur if b else []), wd
        for i in range(16):
            a(f"v_exp_f32 v{s_+i}, v{s_+i}")
            if i >= 2 and i % 2 == 0:
                k = i // 2 - 1
                a(f"v_cvt_pk_bf16_f32 v{p+k}, v{s_+2*k}, v{s_+2*k+1}")
            for x in extra.get(i, []):
                a(x)
        a(f"s_nop 0\nv_cvt_pk_bf16_f32 v{p+7}, v{s_+14}, v{s_+15}")
        if t in (0, 8):
            msk = ANDF if t == 0 else ANDD
            for k in range(8):
                a(f"v_and_b32 v{p+k}, v{msk+k}, v{p+k}")
        if t < 8 and b % 2 == 1:
            a.label(back, reset=False)
            g.stubs.append((stub, back, nxt + wd_prev + wd_cur))
    a(pv(17, 0)); a(pv(17, 1))
    g.stamp(8)
    for hi, h in enumerate(heads):
        o = OACC[h]
        a(f"v_rcp_f32 v52, v{o+8}")
        for i in range(8):
            a(f"v_mul_f32 v{o+i}, v52, v{o+i}")
        for k in range(4):
            a(f"v_cvt_pk_bf16_f32 v{o+k}, v{o+2*k}, v{o+2*k+1}")

    def ost(m):
        for hi, h in enumerate(heads):
            a(f"buffer_store_dwordx4 {vr(OACC[h])}, v20, {SRD_WS}, s89 offen offset:{hi*512} {m}", tag="Ost")
    g.dual(ost)


L_STG = L_RING + 10240
L_STG2 = L_RING
V_W1D, V_W1R, V_W2D, V_W2R = 52, 56, 40, 42


PA1 = 96
V_P1 = 12


def p1_setup(g):
    a = g.a
    a("s_lshr_b32 s72, s2, 2\ns_and_b32 s73, s2, 3")
    a("s_mul_i32 s74, s73, 7\ns_min_u32 s75, s73, 1\ns_add_u32 s74, s74, s75")
    a("s_cmp_eq_u32 s73, 0\ns_cselect_b32 s75, 8, 7")
    a(f"s_mul_i32 s101, s72, {32*2752}\ns_mul_i32 s73, s74, 96\ns_add_u32 s101, s101, s73\ns_mul_i32 s75, s75, 6")
    a("s_mov_b32 s72, 1311\ns_mov_b32 s73, 2752")
    for n in range(7):
        a(f"s_lshl_b32 s74, {sWV}, 6\ns_add_u32 s74, s74, {256*n}\nv_add_u32 v3, s74, v1")
        a("v_mul_lo_u32 v4, v3, s72\nv_lshrrev_b32 v4, 16, v4\nv_mul_u32_u24 v5, 50, v4\nv_sub_u32 v5, v3, v5")
        a("v_mul_lo_u32 v6, v4, s73\nv_lshl_add_u32 v6, v5, 4, v6")
        a("v_cmp_gt_u32 vcc, s75, v5\nv_cmp_gt_u32 s[78:79], 32, v4\ns_and_b64 vcc, vcc, s[78:79]")
        a(f"v_mov_b32 v5, 0x7ff00000\nv_cndmask_b32 v{V_P1+n}, v5, v6, vcc")


def p1_loads(g):
    a = g.a
    for n in range(7):
        a(f"buffer_load_dwordx4 {ar(PA1+4*n)}, v{V_P1+n}, {SRD_W1}, s101 offen")


def p1_finish(g):
    a = g.a
    L1 = L_X
    a("s_lshr_b32 s72, s2, 2\ns_and_b32 s73, s2, 3")
    a("s_mul_i32 s74, s73, 7\ns_min_u32 s75, s73, 1\ns_add_u32 s74, s74, s75")
    a("s_cmp_eq_u32 s73, 0\ns_cselect_b32 s75, 8, 7")
    a(f"s_lshl_b32 s80, {sWV}, 10\ns_add_u32 s80, s80, {L1}\nv_add_u32 v120, s80, v2")
    for n in range(7):
        a(f"ds_write_b128 v120, {ar(PA1+4*n)} offset:{n*4096}")
    a("v_lshrrev_b32 v121, 4, v1\nv_lshlrev_b32 v121, 3, v121\nv_bfe_u32 v122, v1, 2, 2\nv_add_u32 v121, v121, v122\nv_and_b32 v122, 3, v1")
    a(f"v_mul_u32_u24 v123, 800, v121\nv_lshl_add_u32 v123, v122, 3, v123\ns_lshl_b32 s80, {sWV}, 5\ns_add_u32 s80, s80, {L1}\nv_add_u32 v123, s80, v123")
    a("s_waitcnt lgkmcnt(0)\ns_barrier")
    for n in range(6):
        for rd in range(2):
            a(f"ds_read_b64_tr_b16 v[{96+4*n+2*rd}:{97+4*n+2*rd}], v123 offset:{128*n + rd*3200}")
    for n in range(6):
        a(f"s_add_u32 s80, {sWV}, {4*n}\ns_mul_i32 s81, s80, 43\ns_lshr_b32 s81, s81, 7\ns_mul_i32 s82, s81, 3\ns_sub_u32 s82, s80, s82")
        a("s_cmp_lt_u32 s81, s75\ns_cselect_b32 s85, 0, 0x70000000")
        a("s_add_u32 s81, s81, s74\ns_lshl_b32 s81, s81, 6\ns_add_u32 s81, s81, s72\ns_mul_i32 s81, s81, 3\ns_add_u32 s81, s81, s82")
        a(f"s_lshl_b32 s81, s81, 10\ns_add_u32 s81, s81, {WS_W1P}\ns_or_b32 s81, s81, s85")
        a(f"buffer_store_dwordx4 {vr(96+4*n)}, v2, {SRD_WS}, s81 offen sc1")
    a("s_waitcnt lgkmcnt(0)\ns_barrier")


def early_w1(g, i0, i1, check=False):
    a = g.a
    skip = g.lab("e1")
    a(f"s_cmp_eq_u32 {sM1}, 0\ns_cbranch_scc1 {skip}")
    with a.cond("m1"):
        if check:
            l0_only(g, "l0c", lambda: (p1_check(g), w1_loads(g, 0, i0)))
        w1_loads(g, i0, i1)
    a.label(skip, reset=False)


def l0_only(g, name, fn):
    if g.layer == 0:
        fn()


def p1_check(g):
    a = g.a
    a(f"s_cmp_ge_u32 {sJ1}, 8\ns_cselect_b32 s72, 1, 0\ns_cmp_ge_u32 {sJ1}, 15\ns_addc_u32 s72, s72, 0")
    a(f"s_cmp_ge_u32 {sJ1}, 22\ns_addc_u32 s72, s72, 0")
    a(f"s_lshl_b32 s73, {sWV}, 4\nv_add_u32 v9, s73, v1\nv_lshl_add_u32 v9, v9, 2, s72")
    a(f"v_lshlrev_b32 v9, 7, v9\nv_add_u32 v9, {WS_FLAG + PH_P*2*256*128}, v9")
    g.poll("v9", "0xffff")


def w1_loads(g, i0, i1):
    a = g.a
    a(f"s_lshl_b32 s72, {sJ1}, 6\ns_lshl_b32 s73, {sWV}, 4\ns_add_u32 s72, s72, s73\ns_mul_i32 s72, s72, 3072\ns_add_u32 s72, s72, {WS_W1P}")
    for i in range(i0, i1):
        st, ft = divmod(i, 3)
        a(f"s_add_u32 s73, s72, {st*3072}")
        a(f"buffer_load_dwordx4 {ar(4*i)}, v2, {SRD_WS}, s73 offen offset:{ft*1024} sc1")


def m1_only(g, fn):
    a = g.a
    skip = g.lab("m1s")
    a(f"s_cmp_eq_u32 {sM1}, 0\ns_cbranch_scc1 {skip}")
    with a.cond("m1"):
        fn()
    a.label(skip, reset=False)


def w2_setup(g):
    a = g.a
    a("v_lshrrev_b32 v3, 3, v1\nv_lshlrev_b32 v3, 12, v3\nv_bfe_u32 v4, v1, 1, 2\nv_bfe_u32 v5, v1, 4, 1\nv_and_b32 v6, 1, v1")
    for e in range(2):
        a(f"v_or_b32 v7, {2*e}, v5\nv_xor_b32 v7, v4, v7\nv_lshl_add_u32 v7, v7, 1, v6\nv_lshl_add_u32 v{V_W2D+e}, v7, 4, v3")
    a("v_lshrrev_b32 v3, 4, v1\nv_lshlrev_b32 v4, 3, v3\nv_bfe_u32 v5, v1, 2, 2\nv_add_u32 v4, v4, v5\nv_lshlrev_b32 v4, 7, v4")
    a("v_and_b32 v5, 3, v1\nv_lshl_add_u32 v4, v5, 3, v4\nv_and_b32 v3, 1, v3\nv_lshlrev_b32 v3, 1, v3\nv_bfe_u32 v5, v1, 3, 1\nv_or_b32 v3, v3, v5")
    for k in range(4):
        a(f"v_xor_b32 v5, {k}, v3\nv_lshl_add_u32 v{V_W2R+k}, v5, 5, v4")
    a(f"s_mul_i32 s89, {sWV}, {11*32*4096}\ns_lshl_b32 s88, {sR}, 7\ns_add_u32 s89, s89, s88")


def w2_lds(st):
    if st < 5:
        return ("s86", st * 4096)
    if st < 9:
        return ("s87", (st - 5) * 4096)
    return ("s86", (st - 9) * 4096)


def w2_bases(g):
    g.a(f"s_mul_i32 s86, {sWV}, 20480\ns_add_u32 s86, s86, {L_STG2}\ns_lshl_b32 s87, {sWV}, 14\ns_add_u32 s87, s87, {L_X}")


def w2_dma_text(st, m):
    base, off = w2_lds(st)
    return (f"s_add_u32 m0, {base}, {off + m*1024}\ns_add_u32 s88, s89, {(st*32 + 8*m)*4096}",
            f"buffer_load_dwordx4 v{V_W2D + (m & 1)}, {SRD_W2P}, s88 offen lds")


def w2_dma(g, st, m, uncond=False):
    pre, ld = w2_dma_text(st, m)
    g.a(pre)
    (g.a.uncond if uncond else g.a)(ld, tag=f"D2_{0 if st < 5 else 5 if st < 9 else 9}")
    return pre + "\n" + ld


def w2_tr(g, s0, s1):
    a = g.a
    base, _ = w2_lds(s0)
    for k in range(4):
        a(f"v_add_u32 v{32+k}, {base}, v{V_W2R+k}")
    for st in range(s0, s1):
        _, off = w2_lds(st)
        for k in range(4):
            for rd in range(2):
                b = (st*4 + k) * 4 + 2*rd
                a(f"ds_read_b64_tr_b16 a[{b}:{b+1}], v{32+k} offset:{off + rd*512}")


def u_producers(g, dst, lane0):
    a = g.a
    a(f"s_mul_i32 s72, {sWV}, 352\ns_mul_hi_u32 s72, s72, {(1 << 32)//48 + 1}\ns_sub_u32 s72, s72, {lane0}\nv_add_u32 v8, s72, v1\nv_max_i32 v8, 0, v8\nv_min_u32 v8, 28, v8")
    a("v_cmp_le_u32 vcc, 8, v8\nv_cndmask_b32 v6, 0, 1, vcc\nv_cmp_le_u32 vcc, 15, v8\nv_addc_co_u32 v6, vcc, 0, v6, vcc")
    a("v_cmp_le_u32 vcc, 22, v8\nv_addc_co_u32 v6, vcc, 0, v6, vcc")
    a("v_mul_u32_u24 v7, 7, v6\nv_min_u32 v9, 1, v6\nv_add_u32 v7, v7, v9\nv_sub_u32 v7, v8, v7")
    a(f"s_and_b32 s72, {sCQ}, 3\ns_lshr_b32 s73, {sCQ}, 2\nv_lshl_add_u32 v7, v7, 2, s72\nv_lshlrev_b32 v7, 3, v7")
    a(f"v_lshl_add_u32 {dst}, v6, 1, v7\nv_add_u32 {dst}, s73, {dst}")


def sentinel(g, loads, srd):
    a = g.a
    top, ok = g.lab("sn"), g.lab("sno")
    a(f"s_mov_b32 {sCNT}, 0")
    a.label(top, reset=False)
    with a.cond(top):
        for k, (addr, soff) in enumerate(loads):
            a(f"buffer_load_dword v{4+k}, {addr}, {srd}, {soff} offen sc1")
        a("s_waitcnt vmcnt(0)")
        a("v_cmp_eq_u32 vcc, -1, v4")
        for k in range(1, len(loads)):
            a(f"v_cmp_eq_u32 s[72:73], -1, v{4+k}\ns_or_b64 vcc, vcc, s[72:73]")
        a(f"s_cbranch_vccz {ok}")
        a(f"s_add_u32 {sCNT}, {sCNT}, 1\ns_cmp_lt_u32 {sCNT}, {POLL_LIMIT}\ns_cbranch_scc1 {top}")
    a.label(ok, reset=False)


def redo_end(g, redo):
    a = g.a
    done = g.lab("rd")
    a(f"s_cmp_eq_u64 {sACC}, 0\ns_cbranch_scc1 {done}")
    if g.diag:
        g.srd(32, P_DBG, 256)
        a(f"v_mov_b32 v4, 1\nv_mov_b32 v5, 4\ns_mov_b64 exec, 1\nbuffer_atomic_add v4, v5, {SRD_T}, 0 offen\ns_mov_b64 exec, -1")
    a(f"s_add_u32 {sREDO}, {sREDO}, 1\ns_cmp_lt_u32 {sREDO}, 64\ns_cbranch_scc1 {redo}")
    a.label(done, reset=False)


def o_flags(g):
    a = g.a
    a(f"v_mov_b32 v8, {sR}\nv_and_b32 v9, 3, v8\nv_lshlrev_b32 v9, 3, v9\nv_add_u32 v9, v1, v9\nv_lshlrev_b32 v9, 3, v9")
    a("v_lshrrev_b32 v7, 2, v8\nv_add_u32 v9, v9, v7")
    g.vflag("v9", PH_O)
    a("s_mov_b32 s76, 0xff\ns_mov_b32 s77, 0")
    if g.layer == 0:
        a(f"s_cmp_ge_u32 {sJ1}, 8\ns_cselect_b32 s72, 1, 0\ns_cmp_ge_u32 {sJ1}, 15\ns_addc_u32 s72, s72, 0")
        a(f"s_cmp_ge_u32 {sJ1}, 22\ns_addc_u32 s72, s72, 0")
        a(f"s_lshl_b32 s73, {sWV}, 4\ns_sub_u32 s73, s73, 8\nv_add_u32 v8, s73, v1\nv_lshl_add_u32 v8, v8, 2, s72\nv_and_b32 v8, 255, v8")
        a(f"v_lshlrev_b32 v8, 7, v8\nv_add_u32 v8, {WS_FLAG + PH_P*2*256*128}, v8")
        a("v_cmp_le_u32 vcc, 8, v1\nv_cndmask_b32 v9, v9, v8, vcc")
        a(f"s_cmp_eq_u32 {sM1}, 0\ns_cselect_b32 s76, s76, 0xffffff")


def oproj(g):
    a = g.a
    a.c("======== output projection, residual, double LayerNorm")
    OFR, WPRE, WFR, ACC = 64, 128, 14, 46
    a("v_lshrrev_b32 v3, 5, v1\nv_lshlrev_b32 v3, 4, v3\nv_bfe_u32 v4, v1, 4, 1\nv_lshl_add_u32 v3, v4, 2, v3")
    a("v_bfe_u32 v5, v1, 2, 2\nv_add_u32 v3, v3, v5\nv_bfe_u32 v5, v3, 1, 2\nv_and_b32 v6, 3, v1\nv_lshlrev_b32 v6, 3, v6")
    a("v_lshl_add_u32 v6, v3, 7, v6")
    for nt in range(4):
        a(f"v_xor_b32 v7, {nt}, v5\nv_lshl_add_u32 v{10+nt}, v7, 5, v6")

    def wreg(ks, nt):
        return WPRE + ks * 16 + nt * 4 if ks < 8 else WFR + (ks & 1) * 16 + nt * 4

    def wread(ks, nt):
        b = wreg(ks, nt)
        for rd in range(2):
            a(f"ds_read_b64_tr_b16 v[{b+2*rd}:{b+2*rd+1}], v{10+nt} offset:{L_X + ks*4096 + rd*1024}")
    for ks in range(8):
        for nt in range(4):
            wread(ks, nt)
    g.poll("v9", "s[76:77]")
    a("s_waitcnt vmcnt(0) lgkmcnt(0)")
    g.stamp(10)
    a(f"s_lshl_b32 s72, {sR}, 2\ns_add_u32 s72, s72, {sWV}\ns_lshl_b32 s72, s72, 14\ns_lshl_b32 s73, {sL}, 21")
    a(f"s_add_u32 s72, s72, s73\ns_add_u32 s74, s72, {WS_OF}")

    def oload(ks):
        a(f"s_add_u32 s73, s74, {(ks >> 2)*4096}")
        a(f"buffer_load_dwordx4 {vr(OFR+4*ks)}, v2, {SRD_WS}, s73 offen offset:{(ks & 3)*1024} sc1")
    OD = 11
    for ks in range(OD):
        oload(ks)
    g.stamp(25)

    def main(w1):
        if w1:
            a(f"s_lshl_b32 s76, {sJ1}, 6\ns_lshl_b32 s77, {sWV}, 4\ns_add_u32 s76, s76, s77\ns_mul_i32 s76, s76, 3072\ns_add_u32 s76, s76, {WS_W1P}")
        for ks in range(16):
            if ks + OD < 16:
                oload(ks + OD)
            for nt in range(4):
                c = "0" if ks == 0 else vr(ACC + 4*nt)
                a(f"v_mfma_f32_16x16x32_bf16 {vr(ACC+4*nt)}, {vr(wreg(ks, nt))}, {vr(OFR+4*ks)}, {c}")
                if 6 <= ks <= 13:
                    wread(ks + 2, nt)
                if w1 and nt == 1 and ks >= 4:
                    for i in ((ks - 4) * 2, (ks - 4) * 2 + 1) if ks < 12 else ():
                        st, ft = divmod(i, 3)
                        a(f"s_add_u32 s77, s76, {st*3072}")
                        a(f"buffer_load_dwordx4 {ar(4*i)}, v2, {SRD_WS}, s77 offen offset:{ft*1024} sc1")
            if ks == 0:
                g.stamp(28)
            if ks == 7:
                g.stamp(29)
    la, lb = g.lab("oa"), g.lab("ob")
    a(f"s_cmp_eq_u32 {sM1}, 0\ns_cbranch_scc1 {la}")
    a.snap(la)
    main(True)
    a.label(lb, reset=False)
    g.late.append((la, lb, lambda: (a.restore(la), main(False))))
    g.stamp(11)
    a(f"v_and_b32 v3, 15, v1\ns_lshl_b32 s72, {sWV}, 4\nv_add_u32 v14, s72, v3\nv_lshrrev_b32 v4, 4, v1")
    a(f"v_mul_u32_u24 v5, 144, v14\nv_lshl_add_u32 v5, v4, 3, v5\nv_add_u32 v15, {L_R}, v5")
    for nt in range(4):
        a(f"ds_read_b64 v[{176+2*nt}:{177+2*nt}], v15 offset:{32*nt}")
    X1 = 192
    for nt in range(4):
        for k in range(2):
            a(f"v_lshlrev_b32 v{X1+4*nt+2*k}, 16, v{176+2*nt+k}\nv_and_b32 v{X1+4*nt+2*k+1}, 0xffff0000, v{176+2*nt+k}")
    for i in range(16):
        a(f"v_add_f32 v{X1+i}, v{X1+i}, v{ACC+i}")
    for k in range(8):
        a(f"v_cvt_pk_bf16_f32 v{176+k}, v{X1+2*k}, v{X1+2*k+1}")
    for nt in range(4):
        a(f"ds_write_b64 v15, v[{176+2*nt}:{177+2*nt}] offset:{32*nt}")
    a(f"v_add_f32 v16, v{X1}, v{X1+1}\nv_mul_f32 v17, v{X1}, v{X1}\nv_fmac_f32 v17, v{X1+1}, v{X1+1}")
    for i in range(2, 16):
        a(f"v_add_f32 v16, v16, v{X1+i}\nv_fmac_f32 v17, v{X1+i}, v{X1+i}")

    def fold_groups(r0, r1):
        for sw in ("16", "32"):
            a(f"v_mov_b32 v20, v{r0}\nv_mov_b32 v21, v{r1}")
            a(f"v_permlane{sw}_swap_b32 v{r0}, v20\nv_permlane{sw}_swap_b32 v{r1}, v21")
            a(f"v_add_f32 v{r0}, v{r0}, v20\nv_add_f32 v{r1}, v{r1}, v21")
    fold_groups(16, 17)
    a(f"v_mov_b32 v18, {sN}\nv_mov_b32 v19, {sNN}")
    a(f"s_lshl_b32 s72, {sL}, 5\ns_add_u32 s72, s72, {sR}\ns_lshl_b32 s72, s72, 13\ns_add_u32 s72, s72, {WS_ST}")
    a(f"s_lshl_b32 s73, {sCQ}, 10\ns_add_u32 s73, s73, s72\nv_lshlrev_b32 v22, 4, v14")
    a("s_mov_b64 exec, 0xffff")
    g.dual(lambda m: a(f"buffer_store_dwordx4 v[16:19], v22, {SRD_WS}, s73 offen {m}"))
    a("s_mov_b64 exec, -1")
    g.stamp(26)
    if INB:
        a(f"s_lshl_b32 s73, {sWV}, 3\nv_add_u32 v34, s73, v1")
        g.wg_of("v35", "v34", sC1)
        u_producers(g, "v36", 8)
        a("v_cmp_le_u32 vcc, 8, v1\nv_cndmask_b32 v35, v35, v36, vcc\nv_and_b32 v35, 255, v35")
        g.vflag("v35", PH_PD)
        a(f"s_lshl_b32 s44, {sM1}, 8\ns_sub_u32 s44, s44, {sM1}\ns_or_b32 s44, s44, 0xff00\ns_mov_b32 s45, 0")
        a(f"s_mov_b64 exec, s[44:45]\nbuffer_load_dwordx2 v[32:33], v35, {SRD_WS}, 0 offen sc1\ns_mov_b64 exec, -1")
    early_w1(g, 16, 28)
    a("v_lshrrev_b32 v4, 4, v1")
    g.stamp(27)
    a(f"s_lshl_b32 s72, {sL}, 5\ns_add_u32 s72, s72, {sR}\ns_lshl_b32 s72, s72, 13\ns_add_u32 s72, s72, {WS_ST}")
    a("v_lshl_add_u32 v23, v4, 11, v22\ns_mov_b32 s100, 0")
    top, ok = g.lab("stp"), g.lab("sto")
    a.label(top, reset=False)
    a(f"buffer_load_dwordx4 v[24:27], v23, {SRD_WS}, s72 offen sc1")
    a(f"buffer_load_dwordx4 v[28:31], v23, {SRD_WS}, s72 offen offset:1024 sc1")
    a("s_waitcnt vmcnt(0)")
    a(f"v_cmp_ne_u64 vcc, {sNP}, v[26:27]\nv_cmp_ne_u64 s[74:75], {sNP}, v[30:31]\ns_or_b64 vcc, vcc, s[74:75]")
    a(f"s_cbranch_vccz {ok}")
    a(f"s_add_u32 s100, s100, 1\ns_cmp_lt_u32 s100, {POLL_LIMIT}\ns_cbranch_scc1 {top}\ns_branch L_fail")
    a.label(ok, reset=False)
    if INB:
        pd = g.lab("pd")
        a(f"s_mov_b64 exec, s[44:45]\nv_cmp_ne_u64 vcc, {sNP}, v[32:33]\ns_mov_b64 exec, -1\ns_cbranch_vccz {pd}")
        with a.cond(pd):
            a("v_mov_b32 v36, v4\nv_mov_b32 v37, v5")
            g.poll("v35", "s[44:45]")
            a("v_mov_b32 v4, v36\nv_mov_b32 v5, v37")
        a.label(pd, reset=False)
    g.stamp(12)
    a("v_add_f32 v16, v24, v28\nv_add_f32 v17, v25, v29")
    fold_groups(16, 17)
    a(f"v_mul_f32 v16, {f32(1/512)}, v16\nv_mul_f32 v17, {f32(1/512)}, v17\nv_fma_f32 v17, -v16, v16, v17\nv_max_f32 v17, 0, v17")
    a(f"v_add_f32 v18, {f32(1e-5)}, v17\nv_rsq_f32 v18, v18")
    a(f"v_mul_f32 v19, v18, v18\nv_mul_f32 v19, v19, v17\nv_add_f32 v19, {f32(1e-5)}, v19\nv_rsq_f32 v19, v19\nv_mul_f32 v18, v18, v19")
    for i in range(16):
        a(f"v_sub_f32 v{X1+i}, v{X1+i}, v16")
    for i in range(16):
        a(f"v_mul_f32 v{X1+i}, v18, v{X1+i}")
    for k in range(8):
        a(f"v_cvt_pk_bf16_f32 v{176+k}, v{X1+2*k}, v{X1+2*k+1}")
    HT = L_RING
    a(f"v_mul_u32_u24 v5, 160, v14\nv_lshl_add_u32 v5, v4, 3, v5\nv_add_u32 v5, {HT}, v5")
    for nt in range(4):
        a(f"ds_write_b64 v5, v[{176+2*nt}:{177+2*nt}] offset:{32*nt}")
    a("v_lshrrev_b32 v3, 4, v1\nv_lshlrev_b32 v3, 3, v3\nv_bfe_u32 v6, v1, 2, 2\nv_add_u32 v3, v3, v6")
    a(f"s_lshl_b32 s72, {sTB}, 5\nv_add_u32 v3, s72, v3\nv_mul_u32_u24 v3, 160, v3\nv_and_b32 v6, 3, v1\nv_lshl_add_u32 v3, v6, 3, v3")
    a(f"s_lshl_b32 s72, {sP}, 6\ns_add_u32 s72, s72, {HT}\nv_add_u32 v3, s72, v3")
    a("s_waitcnt lgkmcnt(0)\ns_barrier")
    for e in range(2):
        for rd in range(2):
            a(f"ds_read_b64_tr_b16 v[{184+4*e+2*rd}:{185+4*e+2*rd}], v3 offset:{32*e + rd*640}")
    if INB:
        a(f"s_mov_b32 s72, {sHB}")
    else:
        a(f"s_lshl_b32 s72, {sCQ}, 6\ns_lshl_b32 s73, {sR}, 1\ns_add_u32 s72, s72, s73\ns_add_u32 s72, s72, {sTB}\ns_lshl_b32 s72, s72, 2")
        a(f"s_lshl_b32 s73, {sP}, 1\ns_add_u32 s72, s72, s73\ns_lshl_b32 s72, s72, 10\ns_lshl_b32 s73, {sL}, 21\ns_add_u32 s72, s72, s73\ns_add_u32 s72, s72, {WS_H}")
    for e in range(2):
        a(f"buffer_store_dwordx4 {vr(184+4*e)}, v2, {SRD_WS}, s72 offen offset:{e*1024} sc1", tag="Hst")


def mix1(g):
    a = g.a
    a.c("======== token mixing 1: u = gelu(h^T W1 + b1)")
    skip, other = g.lab("m1"), g.lab("m1o")
    w2_setup(g)
    w2_bases(g)
    a(f"s_cmp_eq_u32 {sM1}, 0\ns_cbranch_scc1 {other}")
    w2_text = []

    def w2(i):
        return w2_dma(g, i >> 2, i & 3, uncond=True)
    with a.cond("m1"):
        g.srd(32, P_B1, 2752)
        a(f"s_mul_i32 s72, {sJ1}, 96\nv_and_b32 v3, 1, v1\nv_lshlrev_b32 v3, 3, v3\ns_mul_i32 s73, {sWV}, 3")
        for i in range(3):
            a(f"s_add_u32 s74, s73, {i}\ns_lshr_b32 s74, s74, 1\ns_lshl_b32 s74, s74, 4\ns_add_u32 s74, s74, s72")
            a(f"buffer_load_dwordx2 v[{14+2*i}:{15+2*i}], v3, {SRD_T}, s74 offen")
        if not INB:
            a(f"s_lshl_b32 s73, {sWV}, 3\nv_add_u32 v8, s73, v1")
            g.wg_of("v9", "v8", sC1)
            g.vflag("v9", PH_H)
        c0 = -2 * math.log2(math.e) * math.sqrt(2 / math.pi)
        c1 = c0 * 0.044715
        a(f"v_and_b32 v3, 15, v1\nv_mul_u32_u24 v3, 208, v3\nv_lshrrev_b32 v4, 4, v1\nv_lshl_add_u32 v3, v4, 4, v3")
        a(f"s_mul_i32 s72, {sWV}, 13312\nv_add_u32 v13, s72, v3")
        a("v_lshrrev_b32 v3, 1, v1\nv_mul_u32_u24 v10, 208, v3\nv_and_b32 v4, 1, v1\nv_lshl_add_u32 v10, v4, 4, v10")
        a("v_lshrrev_b32 v5, 5, v1\nv_lshlrev_b32 v11, 10, v5\nv_and_b32 v3, 15, v3\nv_lshl_add_u32 v11, v3, 4, v11")
        if not INB:
            a("v_lshl_add_u32 v11, v4, 3, v11")
        a(f"s_mul_i32 s76, {sWV}, 3\ns_mov_b32 s84, {f32(c1)}\ns_mov_b32 s85, {f32(c0)}")
        for i in range(3):
            a(f"s_add_u32 s72, s76, {i}\ns_lshr_b32 s73, s72, 1\ns_and_b32 s72, s72, 1")
            a(f"s_mul_i32 s74, s72, {32*208}\ns_lshl_b32 s75, s73, 5\ns_add_u32 s74, s74, s75\nv_add_u32 v{20+i}, s74, v10")
        if INB:
            for i in range(3):
                a(f"s_mov_b32 s{80+i}, s{sUO+i}")
        else:
            u_offsets(g, 80)
        HB, NS, ACC, HD = 64, 24, 192, 15
        a(f"s_lshl_b32 s72, {sC1}, 6\ns_lshl_b32 s73, {sWV}, 4\ns_add_u32 s72, s72, s73\ns_lshl_b32 s72, s72, 12")
        a(f"s_lshl_b32 s73, {sL}, 21\ns_add_u32 s72, s72, s73\ns_add_u32 s43, s72, {WS_H}")
        if INB:
            a(f"v_lshlrev_b32 v9, 10, v1\nv_add_u32 v9, 1008, v9\ns_mov_b32 {sREDO}, 0")
            redo = g.lab("m1r")
            a.label(redo, reset=False)
            sentinel(g, [("v9", "s43")], SRD_WS)
            a(f"s_mov_b64 {sACC}, 0")
        else:
            g.poll("v9", "0xff")
        g.stamp(14)
        a("s_mov_b32 s72, s43")
        nload = [0]

        def hload():
            n = nload[0]
            a(f"buffer_load_dwordx4 {vr(HB + 4*(n % NS))}, v2, {SRD_WS}, s72 offen offset:{(n & 3)*1024} sc1")
            if n & 3 == 3:
                a("s_add_u32 s72, s72, 4096")
            nload[0] += 1
        for _ in range(HD):
            hload()
        for st in range(16):
            for dt in range(4):
                hb = HB + 4 * ((st*4 + dt) % NS)
                for ft in range(3):
                    acc = ACC + (ft*4 + dt) * 4
                    c = "0" if st == 0 else ar(acc)
                    a(f"v_mfma_f32_16x16x32_bf16 {ar(acc)}, {ar((st*3+ft)*4)}, {vr(hb)}, {c}")
                    if INB and ft == 0:
                        a(f"v_cmp_eq_u32 vcc, -1, v{hb}\ns_or_b64 {sACC}, {sACC}, vcc")
                if nload[0] < 64:
                    hload()
        if INB:
            redo_end(g, redo)
        l0_only(g, "l0t", lambda: (warmup(g, SRD_W2P, "v60") if "now2wu" not in OPT else None, a(x2_touch_text())))
        g.stamp(15)
        nw2 = 0
        for dt in range(4):
            for ft in range(3):
                a(f"ds_write_b128 v13, {ar(ACC + (ft*4+dt)*4)} offset:{L_X + dt*16*208 + ft*64}")
        a("s_waitcnt lgkmcnt(0)\ns_barrier")
        for i in range(3):
            for k in range(4):
                a(f"ds_read_b128 {vr(64 + 16*i + 4*k)}, v{20+i} offset:{L_X + k*13312}")
        if g.layer == 0:
            sk3 = g.lab("ep")
            a(f"s_or_b32 s72, s2, {sWV}\ns_cmp_eq_u32 s72, 0\ns_cbranch_scc0 {sk3}")
            with a.cond(sk3):
                a(f"v_mov_b32 v4, {sN}\nv_mov_b32 v5, {WS_EPOCH}\ns_mov_b64 exec, 1")
                a(f"buffer_store_dword v4, v5, {SRD_WS}, 0 offen sc1")
                a("s_mov_b64 exec, -1")
            a.label(sk3, reset=False)
        if "udrain" not in OPT:
            pass
        else:
            a("s_waitcnt lgkmcnt(0)\ns_barrier")
        for i in range(3):
            B = 64 + 16 * i
            bb = 14 + 2 * i

            def w2x(k=1):
                nonlocal nw2
                for _ in range(k):
                    if nw2 < 18:
                        w2_text.append(w2(nw2)); nw2 += 1
            for e in range(4):
                a(f"v_add_f32 v{B+e}, v{B+e}, v{B+4+e}\nv_add_f32 v{B+8+e}, v{B+8+e}, v{B+12+e}")
            w2x()
            a(f"v_lshlrev_b32 v{B+4}, 16, v{bb}\nv_and_b32 v{B+5}, 0xffff0000, v{bb}\nv_lshlrev_b32 v{B+6}, 16, v{bb+1}\nv_and_b32 v{B+7}, 0xffff0000, v{bb+1}")
            for e in range(4):
                a(f"v_add_f32 v{B+e}, v{B+e}, v{B+8+e}")
            w2x()
            for e in range(4):
                a(f"v_add_f32 v{B+e}, v{B+e}, v{B+4+e}")
            for e in range(4):
                a(f"v_mul_f32 v{B+4+e}, v{B+e}, v{B+e}\nv_mov_b32 v{B+8+e}, s85")
            w2x()
            for e in range(4):
                a(f"v_fmac_f32 v{B+8+e}, s84, v{B+4+e}")
            for e in range(4):
                a(f"v_mul_f32 v{B+8+e}, v{B+8+e}, v{B+e}")
            for e in range(4):
                a(f"v_exp_f32 v{B+8+e}, v{B+8+e}")
            w2x()
            for e in range(4):
                a(f"v_add_f32 v{B+8+e}, 1.0, v{B+8+e}")
            for e in range(4):
                a(f"v_rcp_f32 v{B+8+e}, v{B+8+e}")
            for e in range(4):
                a(f"v_mul_f32 v{B+e}, v{B+e}, v{B+8+e}")
            a(f"v_cvt_pk_bf16_f32 v{B+4}, v{B}, v{B+1}\nv_cvt_pk_bf16_f32 v{B+5}, v{B+2}, v{B+3}")
            if INB:
                a(f"v_mov_b32_dpp v{B+6}, v{B+4} quad_perm:[1,0,3,2] row_mask:0xf bank_mask:0xf")
                a(f"v_mov_b32_dpp v{B+7}, v{B+5} quad_perm:[1,0,3,2] row_mask:0xf bank_mask:0xf")
                a("s_mov_b32 exec_lo, 0x55555555\ns_mov_b32 exec_hi, 0x55555555")
                a(f"buffer_store_dwordx4 v[{B+4}:{B+7}], v11, {SRD_WS}, s{80+i} offen sc1", tag="Ust")
                a("s_mov_b64 exec, -1")
            else:
                a(f"buffer_store_dwordx2 v[{B+4}:{B+5}], v11, {SRD_WS}, s{80+i} offen sc1", tag="Ust")
        while nw2 < (36 if "udrain" in OPT else 20):
            w2_text.append(w2(nw2)); nw2 += 1
        if INB:
            a("s_barrier")
        else:
            a.wait_tag("Ust")
            g.publish(PH_U)
    a.label(skip, reset=False)
    pre = [warmup_text(SRD_W2P, "v60"), x2_touch_text()] if g.layer == 0 else []
    g.tails.append((other, skip, pre + w2_text))
    for i in range(20, 36) if "udrain" not in OPT else ():
        w2_dma(g, i >> 2, i & 3)
    a.wait_tag("D2_0")
    w2_tr(g, 0, 5)
    a("s_waitcnt lgkmcnt(0)")
    for i in range(36, 44):
        w2_dma(g, i >> 2, i & 3)


def mix2(g):
    a = g.a
    a.c("======== token mixing 2: x += (u W2 + b2)^T")
    if g.layer == 0 and "code2" in OPT and g.stop_after is None:
        g.code_warmup2()
    g.srd(32, P_B2, 4096)
    a(f"v_lshrrev_b32 v10, 3, v0\ns_lshl_b32 s72, {sR}, 7\nv_lshl_add_u32 v11, v10, 1, s72")
    a(f"buffer_load_ushort v12, v11, {SRD_T}, 0 offen\nbuffer_load_ushort v13, v11, {SRD_T}, 0 offen offset:64")
    a(f"s_mul_i32 s72, {sCQ}, {UC}\ns_lshl_b32 s73, {sL}, 21\ns_add_u32 s72, s72, s73\ns_add_u32 s72, s72, {WS_U}")
    g.srd(24, P_WS, UC, "s72")
    if INB:
        a(f"s_mul_i32 s85, {sWV}, {11*4096}\nv_lshlrev_b32 v9, 8, v1\nv_add_u32 v9, 240, v9")
        a(f"s_add_u32 s43, s85, 16384\ns_add_u32 s48, s85, 32768\ns_mov_b32 {sREDO}, 0")
        a("v_cmp_gt_u32 vcc, 48, v1\nv_mov_b32 v8, 0x7ff00000\nv_cndmask_b32 v8, v8, v9, vcc")
        redo = g.lab("m2r")
        a.label(redo, reset=False)
        sentinel(g, [("v9", "s85"), ("v9", "s43"), ("v8", "s48")], SRD_U)
        a(f"s_mov_b64 {sACC}, 0")
    else:
        u_producers(g, "v9", 0)
        g.vflag("v9", PH_U)
        g.poll("v9", "0xff")
    g.stamp(17)
    UB, ACC, UD = 64, 192, 14
    a(f"s_mul_i32 s85, {sWV}, {11*4096}")

    def uload(i):
        st, dt = i >> 2, i & 3
        a(f"s_add_u32 s72, s85, {st*4096}")
        a(f"buffer_load_dwordx4 {vr(UB + 4*i)}, v2, {SRD_U}, s72 offen offset:{dt*1024} sc1")
    for i in range(UD):
        uload(i)
    a.wait_tag("D2_5")
    w2_tr(g, 5, 9)
    a.wait_tag("D2_9")
    w2_tr(g, 9, 11)
    for st in range(11):
        for dt in range(4):
            for k in range(4):
                acc = ACC + (dt*4 + k) * 4
                c = "0" if st == 0 else ar(acc)
                a(f"v_mfma_f32_16x16x32_bf16 {ar(acc)}, {vr(UB + (st*4+dt)*4)}, {ar((st*4+k)*4)}, {c}")
                if INB and k == 0:
                    a(f"v_cmp_eq_u32 vcc, -1, v{UB + (st*4+dt)*4}\ns_or_b64 {sACC}, {sACC}, vcc")
                if k == 1 and st*4 + dt + UD < 44:
                    uload(st*4 + dt + UD)
    if INB:
        redo_end(g, redo)
    g.stamp(18)
    a("v_and_b32 v3, 15, v1\nv_lshrrev_b32 v4, 4, v1\nv_and_b32 v5, 7, v1")
    a(f"s_lshl_b32 s72, {sWV}, 14")
    for dt in range(4):
        a(f"v_add_u32 v6, {4*dt}, v4\nv_xor_b32 v6, v6, v5\nv_lshlrev_b32 v6, 4, v6\nv_lshl_add_u32 v6, v3, 8, v6\nv_add_u32 v{14+dt}, s72, v6")
    for dt in range(4):
        for k in range(4):
            a(f"ds_write_b128 v{14+dt}, {ar(ACC + (dt*4+k)*4)} offset:{L_X + k*4096}")
    a("s_waitcnt lgkmcnt(0)\ns_barrier")
    a("v_and_b32 v3, 7, v0\nv_and_b32 v4, 7, v10\nv_lshlrev_b32 v5, 1, v3")
    for e in range(2):
        a(f"v_add_u32 v6, {e}, v5\nv_xor_b32 v6, v6, v4\nv_lshlrev_b32 v6, 4, v6\nv_lshl_add_u32 v{18+e}, v10, 8, v6")
    a(f"v_mul_u32_u24 v20, 144, v10\nv_lshl_add_u32 v20, v3, 4, v20\nv_add_u32 v20, {L_R}, v20")
    a(f"v_lshlrev_b32 v21, 10, v10\nv_lshl_add_u32 v21, v3, 4, v21")
    a(f"s_lshl_b32 s72, {sR}, 16\ns_lshl_b32 s73, {sCQ}, 7\ns_add_u32 s72, s72, s73")
    for half in range(2):
        B = 64 + half * 48
        for k in range(4):
            for e in range(2):
                a(f"ds_read_b128 {vr(B + k*8 + e*4)}, v{18+e} offset:{L_X + k*16384 + half*8192}")
        a(f"ds_read_b128 {vr(B+32)}, v20 offset:{half*4608}")
    def epilogue(first):
        ring = []
        if first:
            g.q_addr_w(46)
            g.w_dma_setup("s80", "s81", "s82")
            ring = [(s_, n) for s_ in range(5) for n in range(4)]

        def ringdma(k=1):
            for _ in range(k):
                if ring:
                    s_, n = ring.pop(0)
                    g.w_dma(s_, only=n, sg="s80", sl="s81", st="s82", va="v46")
        for half in range(2):
            B = 64 + half * 48
            a(f"v_lshlrev_b32 v22, 16, v{12+half}")
            for i in range(8):
                a(f"v_add_f32 v{B+i}, v{B+i}, v{B+8+i}\nv_add_f32 v{B+16+i}, v{B+16+i}, v{B+24+i}")
                if i % 2 == 1:
                    ringdma()
            for i in range(8):
                a(f"v_add_f32 v{B+i}, v{B+i}, v{B+16+i}")
            ringdma()
            for i in range(8):
                a(f"v_add_f32 v{B+i}, v{B+i}, v22")
            ringdma()
            for k in range(4):
                a(f"v_lshlrev_b32 v{B+8+2*k}, 16, v{B+32+k}\nv_and_b32 v{B+9+2*k}, 0xffff0000, v{B+32+k}")
            ringdma()
            for i in range(8):
                a(f"v_add_f32 v{B+i}, v{B+i}, v{B+8+i}")
            ringdma()
            for k in range(4):
                a(f"v_cvt_pk_bf16_f32 v{B+36+k}, v{B+2*k}, v{B+2*k+1}")
            if first:
                a(f"ds_write_b128 v20, {vr(B+36)} offset:{half*4608}")
                g.dual(lambda m, B=B: a(f"buffer_store_dwordx4 {vr(B+36)}, v21, {SRD_DST}, s72 offen {m}", tag="Xst"))
            else:
                om = "" if "outplain" in OPT else "sc1"
                a(f"buffer_store_dwordx4 {vr(B+36)}, v21, {SRD_DST}, s72 offen {om}")
            if half == 0:
                a("s_add_u32 s72, s72, 32768")
            if first:
                a(f"v_add_f32 v{B+40}, v{B}, v{B+1}\nv_mul_f32 v{B+41}, v{B}, v{B}\nv_fmac_f32 v{B+41}, v{B+1}, v{B+1}")
                for i in range(2, 8):
                    a(f"v_add_f32 v{B+40}, v{B+40}, v{B+i}\nv_fmac_f32 v{B+41}, v{B+i}, v{B+i}")
                ringdma(2)
        if first:
            ringdma(20)
            a("v_mov_b32 v12, v46")
            g.row_stats_store([104, 152], 1, local=True)
    epilogue(g.layer == 0)


def drain(g, tag, n, sreg, val):
    a = g.a
    lw = g.lab("dr")
    a(f"s_cmp_eq_u32 {sreg}, {val}\ns_cbranch_scc1 {lw}")
    a.raw("  s_waitcnt vmcnt(0)")
    a.label(lw, reset=False)
    a.raw(f"  s_waitcnt vmcnt({n})")
    a.wait_tag(tag, emit=False)


def o_drain_publish(g):
    a = g.a
    a.wait_tag("Ost")
    g.publish(PH_O, local=True, also=PH_P if g.layer == 0 else None)


def rest(g):
    a = g.a
    attn_setup(g)
    g.stamp(5)
    attn(g)
    a("s_barrier")
    o_drain_publish(g)
    g.stamp(9)
    if g.stop("a"):
        return True
    o_flags(g)
    oproj(g)
    early_w1(g, 28, 40)
    if not INB:
        drain(g, "Hst", 12, sM1, 1)
        g.publish(PH_H)
    g.stamp(13)
    if g.stop("o"):
        return True
    m1_only(g, lambda: w1_loads(g, 40, 48))
    mix1(g)
    g.stamp(16)
    if g.stop("m1"):
        return True
    mix2(g)
    g.stamp(19)
    if g.stop("m2"):
        return True
    if g.layer == 1:
        a("s_endpgm")
        a.assume_clean()
        return True
    g.srd(4, P_WS, 2 << 20, WS_X2)
    g.srd(20, P_OUT, 2 << 20)
    a(f"s_mov_b32 {sL}, 1")
    a("s_waitcnt lgkmcnt(0)")
    return False


def finish(g):
    a = g.a
    a("s_branch L_end")
    a.assume_clean()
    for lab, back, fn in g.late:
        a.label(lab, reset=False)
        fn()
        a(f"s_branch {back}")
        a.assume_clean()
    for stub, back, always in g.stubs:
        a.label(stub, reset=False)
        a("s_nop 7")
        for x in always:
            a(x)
        a(f"s_nop 11\ns_branch {back}")
        a.assume_clean()
    for lab, back, texts in g.tails:
        a.label(lab, reset=False)
        for x in texts:
            for line in x.split("\n"):
                if line.startswith("@"):
                    a.label(line[1:], reset=False)
                else:
                    a(line)
        a(f"s_branch {back}")
        a.assume_clean()
```

```python
import os, sys
OPT = set(os.environ.get("KOPT", "").split(","))
sys.path.insert(0, "tools")
from asmfw import Asm

KNAME = "interleave_layers__sliding_block__mixer_token_mlp__prompt_kernel"

WS_EPOCH = 0x0
WS_FLAG = 0x1000
WS_ST = 0x80000
WS_KV = 0x100000
WS_OF = 0x900000
WS_H = 0xD00000
WS_U = 0x1100000
WS_X2 = 0x1500000
WS_W1P = 0x1700000
WS_W2P = 0x1D00000
WS_ST2 = 0x2300000
WS_XC = 0x2380000
WS_DIAG = 0x2400000
WS_SIZE = 0x4000000
UC = 43 * 4096
PH_KV, PH_O, PH_H, PH_U, PH_X, PH_P, PH_PD = range(7)

L_X = 0
L_RING = 65536
L_R = 147456
L_MISC = 156672
L_SP = L_MISC
L_CP = L_MISC + 1024
L_MR = L_MISC + 2560
LDS_SIZE = 163840

SRD_X, SRD_WQ, SRD_WO, SRD_WS = "s[4:7]", "s[8:11]", "s[12:15]", "s[16:19]"
SRD_DST, SRD_U, SRD_W2P, SRD_T = "s[20:23]", "s[24:27]", "s[28:31]", "s[32:35]"
P_X, P_WQ, P_WO, P_W1, P_B1, P_W2, P_B2, P_OUT, P_DBG, P_WS = 36, 38, 40, 44, 46, 48, 50, 52, 54, 56
sR, sCQ, sWV, sL = "s58", "s59", "s60", "s61"
sN, sNN, sNP = "s62", "s63", "s[62:63]"
sC1, sJ1, sM1 = "s64", "s65", "s66"
sP, sTB, sB = "s67", "s68", "s69"
sCNT = "s100"
sFAST = "s0"
SRD_W1 = "s[96:99]"
POLL_LIMIT = 400000

LOG2E = 1.4426950408889634


def f32(x):
    import struct
    return "0x%08x" % struct.unpack("<I", struct.pack("<f", x))[0]


class Gen:
    def __init__(self, stop_after=None, diag=False):
        self.a = Asm()
        self.stop_after = stop_after
        self.diag = diag
        self.uid = 0
        self.stubs = []
        self.nstamp = 0
        self.layer = 0
        self.tails = []
        self.late = []

    def lab(self, base):
        self.uid += 1
        return f"L_{base}_{self.uid}"

    def srd(self, name, ptr, size, off=None):
        a = self.a
        if off is None:
            a(f"s_mov_b32 s{name}, s{ptr}\ns_mov_b32 s{name+1}, s{ptr+1}")
        else:
            a(f"s_add_u32 s{name}, s{ptr}, {off}\ns_addc_u32 s{name+1}, s{ptr+1}, 0")
        a(f"s_mov_b32 s{name+2}, {size}\ns_mov_b32 s{name+3}, 0x20000")

    def stamp(self, idx):
        if not self.diag:
            return
        a = self.a
        skip = self.lab("st")
        a(f"s_memrealtime s[92:93]\ns_waitcnt lgkmcnt(0)")
        a(f"s_cmp_eq_u32 {sWV}, 0\ns_cbranch_scc0 {skip}")
        with a.cond(skip):
            a(f"s_lshl_b32 s94, s2, 8\ns_lshl_b32 s95, {sL}, 7\ns_add_u32 s94, s94, s95\ns_add_u32 s94, s94, {WS_DIAG + idx*4}")
            a("v_mov_b32 v62, s92\nv_mov_b32 v63, s94\ns_mov_b64 exec, 1")
            a(f"buffer_store_dword v62, v63, {SRD_WS}, 0 offen")
            a("s_mov_b64 exec, -1")
        a.label(skip, reset=False)

    def flag_addr(self, dst, phase, wg):
        a = self.a
        a(f"s_lshl_b32 {dst}, {sL}, 8\ns_add_u32 {dst}, {dst}, {wg}\ns_lshl_b32 {dst}, {dst}, 7")
        a(f"s_add_u32 {dst}, {dst}, {WS_FLAG + phase*2*256*128}")

    def dual(self, fn, sel=sFAST):
        a = self.a
        slow, j = self.lab("slow"), self.lab("dj")
        a(f"s_cmp_eq_u32 {sel}, 0\ns_cbranch_scc1 {slow}")
        a.fork()
        fn("")
        a(f"s_branch {j}")
        a.label(slow, reset=False)
        a.alt()
        fn("sc1")
        a.endfork()
        a.label(j, reset=False)

    def publish(self, phase, wg="s2", also=None, local=False):
        a = self.a
        skip = self.lab("pub")
        a("s_barrier")
        a(f"s_cmp_eq_u32 {sWV}, 0\ns_cbranch_scc0 {skip}")
        with a.cond(skip):
            self.flag_addr("s70", phase, wg)
            a(f"v_mov_b32 v4, {sN}\nv_mov_b32 v5, {sNN}\nv_mov_b32 v6, s70\ns_mov_b64 exec, 1")
            if local:
                self.dual(lambda m: a(f"buffer_store_dwordx2 v[4:5], v6, {SRD_WS}, 0 offen {m}"))
            else:
                a(f"buffer_store_dwordx2 v[4:5], v6, {SRD_WS}, 0 offen sc1")
            if also is not None:
                self.flag_addr("s70", also, wg)
                a(f"v_mov_b32 v6, s70\nbuffer_store_dwordx2 v[4:5], v6, {SRD_WS}, 0 offen sc1")
            a("s_mov_b64 exec, -1")
        a.label(skip, reset=False)

    def flag_store(self, phase):
        a = self.a
        skip = self.lab("fs")
        a(f"s_cmp_eq_u32 {sWV}, 0\ns_cbranch_scc0 {skip}")
        with a.cond(skip):
            self.flag_addr("s78", phase, "s2")
            a(f"v_mov_b32 v4, {sN}\nv_mov_b32 v5, {sNN}\nv_mov_b32 v6, s78\ns_mov_b64 exec, 1")
            a(f"buffer_store_dwordx2 v[4:5], v6, {SRD_WS}, 0 offen sc1")
            a("s_mov_b64 exec, -1")
        a.label(skip, reset=False)

    def poll(self, vaddr, mask):
        a = self.a
        top, ok = self.lab("poll"), self.lab("pok")
        a(f"s_mov_b64 exec, {mask}\ns_mov_b32 {sCNT}, 0")
        a(f"s_cbranch_execz {ok}")
        a.label(top, reset=False)
        with a.cond(top):
            a(f"buffer_load_dwordx2 v[4:5], {vaddr}, {SRD_WS}, 0 offen sc1")
            a("s_waitcnt vmcnt(0)")
            a(f"v_cmp_ne_u64 vcc, {sNP}, v[4:5]")
            a(f"s_cbranch_vccz {ok}")
            for o in OPT:
                if o.startswith("sleep"):
                    a(f"s_sleep {o[5:]}")
            a(f"s_add_u32 {sCNT}, {sCNT}, 1\ns_cmp_lt_u32 {sCNT}, {POLL_LIMIT}\ns_cbranch_scc1 {top}")
            a("s_branch L_fail")
        a.label(ok, reset=False)
        a("s_mov_b64 exec, -1")

    def wg_of(self, dst, r, cq):
        a = self.a
        a(f"v_and_b32 {dst}, 3, {r}\nv_lshlrev_b32 {dst}, 3, {dst}\nv_add_u32 {dst}, {cq}, {dst}\nv_lshlrev_b32 {dst}, 3, {dst}")
        a(f"v_lshrrev_b32 v7, 2, {r}\nv_add_u32 {dst}, {dst}, v7")

    def vflag(self, dst, phase):
        a = self.a
        a(f"s_lshl_b32 s70, {sL}, 15\ns_add_u32 s70, s70, {WS_FLAG + phase*2*256*128}")
        a(f"v_lshlrev_b32 {dst}, 7, {dst}\nv_add_u32 {dst}, s70, {dst}")

    def row_stats_store(self, sums, layer, local=False):
        a = self.a
        for ctl in ("quad_perm:[1,0,3,2]", "quad_perm:[2,3,0,1]", "row_half_mirror"):
            for r0 in sums:
                for k in range(2):
                    a(f"v_add_f32_dpp v{r0+k}, v{r0+k}, v{r0+k} {ctl} row_mask:0xf bank_mask:0xf")
        for r0 in sums:
            a(f"v_mov_b32 v{r0+2}, {sN}\nv_mov_b32 v{r0+3}, {sNN}")
        if isinstance(layer, int):
            a(f"s_add_u32 s72, {sR}, {layer*32}")
        else:
            a(f"s_lshl_b32 s72, {layer}, 5\ns_add_u32 s72, s72, {sR}")
        a(f"s_lshl_b32 s72, s72, 3\ns_add_u32 s72, s72, {sCQ}\ns_lshl_b32 s72, s72, 10\ns_add_u32 s72, s72, {WS_ST2}")
        a("v_lshrrev_b32 v3, 3, v0\nv_lshlrev_b32 v3, 4, v3\nv_and_b32 v4, 7, v0\nv_cmp_eq_u32 vcc, 0, v4\ns_mov_b64 exec, vcc")
        def st(m):
            for i, r0 in enumerate(sums):
                a(f"buffer_store_dwordx4 v[{r0}:{r0+3}], v3, {SRD_WS}, s72 offen offset:{i*512} {m}")
        if local:
            self.dual(st)
        else:
            st("sc1")
        a("s_mov_b64 exec, -1")

    def stop(self, name):
        if self.stop_after == name:
            self.a("s_waitcnt vmcnt(0) lgkmcnt(0)\ns_branch L_end")
            self.a.assume_clean()
            return True
        return False

    def prologue(self):
        a = self.a
        a("s_cmp_ge_u32 s2, 256\ns_cbranch_scc1 L_end")
        if "nocode" not in OPT and "codelate" not in OPT:
            self.code_warmup()
        a("s_load_dwordx16 s[36:51], s[0:1], 0\ns_load_dwordx4 s[52:55], s[0:1], 64\ns_load_dwordx2 s[56:57], s[0:1], 80")
        a("v_and_b32 v1, 63, v0\nv_lshlrev_b32 v2, 4, v1\nv_lshrrev_b32 v3, 6, v0")
        a(f"v_readfirstlane_b32 {sWV}, v3")
        a(f"s_and_b32 s70, s2, 7\ns_lshr_b32 s71, s2, 3")
        a(f"s_lshr_b32 s72, s71, 3\ns_lshl_b32 {sR}, s70, 2\ns_add_u32 {sR}, {sR}, s72\ns_and_b32 {sCQ}, s71, 7")
        a(f"s_and_b32 s72, s70, 1\ns_lshl_b32 s72, s72, 2\ns_and_b32 s73, s71, 3\ns_add_u32 {sC1}, s72, s73")
        a("s_lshr_b32 s72, s70, 1\ns_lshr_b32 s73, s71, 2")
        a("s_mul_i32 s74, s72, 7\ns_min_u32 s75, s72, 1\ns_add_u32 s74, s74, s75")
        a(f"s_add_u32 {sJ1}, s74, s73")
        a("s_cmp_eq_u32 s72, 0\ns_cselect_b32 s75, 8, 7")
        a(f"s_cmp_lt_u32 s73, s75\ns_cselect_b32 {sM1}, 1, 0")
        a(f"s_and_b32 {sP}, {sWV}, 1\ns_lshr_b32 {sTB}, {sWV}, 1\ns_xor_b32 {sB}, {sP}, {sTB}")
        a(f"s_mov_b32 {sL}, 0")
        a("s_waitcnt lgkmcnt(0)")
        self.srd(4, P_X, 2 << 20)
        self.srd(8, P_WQ, 512 * 1536 * 2)
        if "nowq" not in OPT:
            a(f"s_lshl_b32 s70, s2, 2\ns_add_u32 s70, s70, {sWV}\ns_mul_i32 s70, s70, 1536\nv_lshlrev_b32 v3, 7, v1")
            a(f"s_mov_b64 exec, 0xfff\nbuffer_load_dword v248, v3, {SRD_WQ}, s70 offen\ns_mov_b64 exec, -1")
        self.srd(12, P_WO, 512 * 512 * 2)
        self.srd(16, P_WS, WS_SIZE)
        if "noctl" not in OPT:
            a(f"s_lshl_b32 s70, s2, 2\ns_add_u32 s70, s70, {sWV}\nv_lshlrev_b32 v3, 7, v1")
            a(f"s_lshl_b32 s71, s70, 10\ns_mov_b64 exec, 0xff\nbuffer_load_dword v247, v3, {SRD_WS}, s71 offen sc1")
            a(f"s_mul_i32 s71, s70, 640\ns_add_u32 s71, s71, {WS_ST2}\ns_mov_b64 exec, 0x1f\nbuffer_load_dword v246, v3, {SRD_WS}, s71 offen sc1")
            a(f"s_lshl_b32 s71, s70, 9\ns_mov_b64 exec, 0xf\nbuffer_load_dword v245, v3, {SRD_WO}, s71 offen")
            a("s_and_b32 s71, s70, 31\ns_lshl_b32 s71, s71, 7\ns_mov_b64 exec, 1")
            self.srd(32, P_B1, 2752)
            a(f"buffer_load_dword v239, v3, {SRD_T}, s71 offen")
            self.srd(32, P_B2, 4096)
            a(f"buffer_load_dword v238, v3, {SRD_T}, s71 offen\ns_mov_b64 exec, -1")
        self.srd(28, P_W2, 1376 * 4096)
        self.srd(96, P_W1, 2048 * 2752)
        self.srd(20, P_WS, 2 << 20, WS_X2)
        a(f"v_mov_b32 v3, {WS_EPOCH}")
        a(f"buffer_load_dword v250, v3, {SRD_WS}, 0 offen sc1")
        a("v_lshrrev_b32 v3, 3, v0\nv_and_b32 v4, 7, v0")
        a(f"s_lshl_b32 s70, {sR}, 16\ns_lshl_b32 s71, {sCQ}, 7\ns_add_u32 s70, s70, s71")
        a("v_lshlrev_b32 v5, 10, v3\nv_lshl_add_u32 v5, v4, 4, v5")
        a(f"buffer_load_dwordx4 v[240:243], v5, {SRD_X}, s70 offen")
        a("s_add_u32 s70, s70, 32768")
        a(f"buffer_load_dwordx4 v[244:247], v5, {SRD_X}, s70 offen")

    def code_warmup(self):
        a = self.a
        a("s_getpc_b64 s[32:33]")
        a.label("L_pc", reset=False)
        a(f"s_sub_u32 s32, s32, L_pc-{KNAME}\ns_subb_u32 s33, s33, 0\ns_mov_b32 s34, L_code_end-{KNAME}\ns_mov_b32 s35, 0x20000")
        a("v_and_b32 v3, 63, v0\nv_lshrrev_b32 v4, 6, v0\nv_mul_u32_u24 v4, 640, v4\nv_lshl_add_u32 v3, v3, 7, v4")
        a("s_lshr_b32 s72, s2, 3\ns_mul_i32 s72, s72, 2560")
        a(f"s_mov_b64 exec, 0x1f\nbuffer_load_dword v249, v3, {SRD_T}, s72 offen\ns_mov_b64 exec, -1")

    def code_warmup2(self):
        a = self.a
        lab = self.lab("pc")
        a("s_getpc_b64 s[32:33]")
        a.label(lab, reset=False)
        a(f"s_add_u32 s32, s32, L_layer1-{lab}\ns_addc_u32 s33, s33, 0\ns_mov_b32 s34, L_code_end-L_layer1\ns_mov_b32 s35, 0x20000")
        a("v_lshrrev_b32 v4, 6, v0\nv_mul_u32_u24 v4, 384, v4\nv_lshl_add_u32 v3, v1, 7, v4")
        a("s_lshr_b32 s72, s2, 3\ns_mul_i32 s72, s72, 1536")
        a(f"s_mov_b64 exec, 7\nbuffer_load_dword v61, v3, {SRD_T}, s72 offen\ns_mov_b64 exec, -1")

    def prologue_tail(self):
        a = self.a
        a(f"v_lshlrev_b32 v3, 21, v1\ns_mov_b64 exec, 0x3ffff\nbuffer_load_dword v251, v3, {SRD_WS}, 0 offen\ns_mov_b64 exec, -1")
        if "tlb" in OPT:
            a(f"s_mov_b64 exec, 7\nbuffer_load_dword v253, v3, {SRD_W1}, 0 offen\nbuffer_load_dword v254, v3, {SRD_W2P}, 0 offen\ns_mov_b64 exec, 1")
            self.srd(32, P_OUT, 2 << 20)
            a(f"buffer_load_dword v255, v3, {SRD_T}, 0 offen")
            self.srd(32, P_B1, 2752)
            a(f"buffer_load_dword v249, v3, {SRD_T}, 0 offen")
            self.srd(32, P_B2, 4096)
            a(f"buffer_load_dword v248, v3, {SRD_T}, 0 offen\ns_mov_b64 exec, -1")
        if "noctl" in OPT:
            a(f"s_lshl_b32 s72, s2, 2\ns_add_u32 s72, s72, {sWV}\ns_lshl_b32 s72, s72, 9\nv_lshlrev_b32 v3, 7, v1")
            a(f"s_mov_b64 exec, 0xf\nbuffer_load_dword v252, v3, {SRD_WO}, s72 offen\ns_mov_b64 exec, -1")
        if "codelate" in OPT:
            self.code_warmup()
        a("v_lshrrev_b32 v3, 3, v0\nv_and_b32 v4, 7, v0")
        a("v_mul_u32_u24 v6, 144, v3\nv_lshl_add_u32 v6, v4, 4, v6")
        a(f"v_add_u32 v6, {L_R}, v6")
        a(f"v_readfirstlane_b32 {sN}, v250")
        a(f"s_add_u32 {sN}, {sN}, 1\ns_not_b32 {sNN}, {sN}")
        a("ds_write_b128 v6, v[240:243]\nds_write_b128 v6, v[244:247] offset:4608")
        for h, (src, dst) in enumerate(((240, 232), (244, 236))):
            a(f"v_mov_b32 v{dst}, 0\nv_mov_b32 v{dst+1}, 0")
            for k in range(4):
                a(f"v_lshlrev_b32 v8, 16, v{src+k}\nv_and_b32 v9, 0xffff0000, v{src+k}")
                a(f"v_add_f32 v{dst}, v{dst}, v8\nv_fmac_f32 v{dst+1}, v8, v8\nv_add_f32 v{dst}, v{dst}, v9\nv_fmac_f32 v{dst+1}, v9, v9")
        self.row_stats_store([232, 236], 0)
        a(f"s_getreg_b32 s72, hwreg(HW_REG_XCC_ID)\ns_and_b32 s1, s72, 15\ns_mov_b32 {sFAST}, 0")
        a(f"s_lshl_b32 s72, {sR}, 3\ns_add_u32 s72, s72, {sCQ}\ns_lshl_b32 s72, s72, 4\ns_add_u32 s72, s72, {WS_XC}")
        a(f"v_mov_b32 v232, s1\nv_mov_b32 v233, 0\nv_mov_b32 v234, {sN}\nv_mov_b32 v235, {sNN}\nv_mov_b32 v3, s72")
        sk = self.lab("xc")
        a(f"s_cmp_eq_u32 {sWV}, 0\ns_cbranch_scc0 {sk}")
        with a.cond(sk):
            a(f"s_mov_b64 exec, 1\nbuffer_store_dwordx4 v[232:235], v3, {SRD_WS}, 0 offen sc1\ns_mov_b64 exec, -1")
        a.label(sk, reset=False)

    def w_dma(self, s, only=None, sg="s70", sl="s71", st="s72", va="v12"):
        a = self.a
        slot = L_RING + (s % 5) * 16384
        for n in range(4):
            if only is not None and n != only:
                continue
            if s < 8:
                part = n >> 1
                krow = 64 * s + (n & 1) * 32
                col = 1024 * (1 + part)
                lds = slot + part * 8192 + (n & 1) * 4096
            else:
                krow = 128 * (s - 8) + 32 * n
                col = 0
                lds = slot + n * 4096
            a(f"s_add_u32 m0, {sl}, {lds}\ns_add_u32 {st}, {sg}, {krow*3072 + col}")
            a(f"buffer_load_dwordx4 {va}, {SRD_WQ}, {st} offen lds", tag=f"W{s}")

    def w_dma_setup(self, sg="s70", sl="s71", st="s72"):
        a = self.a
        a(f"s_mul_i32 {sg}, {sWV}, {8*3072}\ns_lshl_b32 {st}, {sCQ}, 7\ns_add_u32 {sg}, {sg}, {st}\ns_lshl_b32 {sl}, {sWV}, 10")

    def q_addr_w(self, dst=12):
        a = self.a
        a(f"v_lshrrev_b32 v3, 3, v1\nv_mul_u32_u24 v{dst}, 3072, v3\nv_bfe_u32 v4, v1, 4, 1\nv_lshlrev_b32 v4, 2, v4")
        a(f"v_and_b32 v5, 7, v1\nv_xor_b32 v5, v5, v4\nv_lshl_add_u32 v{dst}, v5, 4, v{dst}")

    def q_addr_x(self):
        a = self.a
        a("v_lshrrev_b32 v3, 3, v1")
        for e in range(2):
            a(f"s_lshl_b32 s72, {sWV}, 4\ns_add_u32 s72, s72, {8*e}\nv_add_u32 v6, s72, v3")
            a(f"v_bfe_u32 v7, v6, 1, 3\nv_and_b32 v5, 7, v1\nv_xor_b32 v5, v5, v7\nv_lshlrev_b32 v6, 10, v6\nv_lshl_add_u32 v{10+e}, v5, 4, v6")

    def q_addr(self):
        self.q_addr_w()
        self.q_addr_x()
        self.w_dma_setup()

    def q_addr2(self):
        a = self.a
        a(f"v_and_b32 v3, 31, v1\ns_lshl_b32 s72, {sTB}, 5\nv_add_u32 v3, s72, v3\nv_bfe_u32 v4, v3, 1, 3\nv_lshrrev_b32 v5, 5, v1")
        for k in range(4):
            a(f"s_xor_b32 s72, {sB}, {k}\ns_lshl_b32 s72, s72, 1\nv_add_u32 v6, s72, v5\nv_xor_b32 v6, v6, v4")
            a(f"v_lshlrev_b32 v6, 4, v6\nv_lshl_add_u32 v{13+k}, v3, 7, v6")
        a("v_and_b32 v3, 15, v1\nv_lshrrev_b32 v4, 2, v3\nv_lshrrev_b32 v5, 5, v1\nv_lshl_add_u32 v4, v5, 3, v4")
        a(f"v_bfe_u32 v5, v1, 4, 1\nv_lshlrev_b32 v5, 1, v5\nv_bfe_u32 v6, v1, 1, 1\nv_add_u32 v5, v5, v6")
        a(f"s_lshl_b32 s72, {sP}, 2\nv_add_u32 v5, s72, v5\nv_bfe_u32 v6, v1, 3, 1\nv_lshlrev_b32 v6, 2, v6\nv_xor_b32 v5, v5, v6")
        a("v_lshlrev_b32 v5, 4, v5\nv_lshl_add_u32 v5, v4, 7, v5\nv_and_b32 v6, 1, v1\nv_lshl_add_u32 v5, v6, 3, v5")
        for e in range(2):
            a(f"s_xor_b32 s72, {sB}, {e}\ns_lshl_b32 s72, s72, 11\ns_add_u32 s72, s72, {L_RING}")
            a(f"v_add_u32 v{17+e}, s72, v5\nv_add_u32 v{19+e}, 49152, v{17+e}")
        a("v_mov_b32 v21, 0\nv_mov_b32 v24, 0\nv_mov_b32 v25, 0")
        a("s_mov_b32 s74, 0x3f803f80")
        a(f"s_lshl_b32 s72, {sL}, 5\ns_add_u32 s72, s72, {sR}\ns_lshl_b32 s75, s72, 13\ns_add_u32 s75, s75, {WS_ST2}")
        a(f"v_and_b32 v3, 31, v1\ns_lshl_b32 s72, {sTB}, 5\nv_add_u32 v3, s72, v3\nv_lshlrev_b32 v3, 4, v3\nv_lshrrev_b32 v4, 5, v1\nv_lshl_add_u32 v61, v4, 12, v3")

    def x_dma(self, kc):
        a = self.a
        for e in range(2):
            a(f"s_add_u32 m0, s77, {L_X + kc*8192 + e*1024}\ns_add_u32 s72, s76, {kc*128}")
            a(f"buffer_load_dwordx4 v{10+e}, {SRD_X}, s72 offen sc1 lds", tag=f"X{kc}")

    def q_entry(self, layer):
        a = self.a
        a.c(f"======== QKV phase entry, layer {layer}")
        if layer == 0:
            self.q_addr()
        else:
            self.q_addr_x()
        a(f"s_lshl_b32 s76, {sR}, 16\ns_lshl_b32 s77, {sWV}, 11")
        if layer == 0:
            for s_ in range(5):
                self.w_dma(s_)
                self.x_dma(s_)
            for kc in range(5, 8):
                self.x_dma(kc)
            self.stamp(0)
            self.prologue_tail()
            self.q_addr2()
            self.stamp(1)
        else:
            self.q_addr2()
            a(f"v_mov_b32 v8, {sR}")
            a(f"v_and_b32 v9, 3, v8\nv_lshlrev_b32 v9, 3, v9\nv_add_u32 v9, v1, v9\nv_lshlrev_b32 v9, 3, v9")
            a(f"v_lshrrev_b32 v7, 2, v8\nv_add_u32 v9, v9, v7")
            a(f"v_lshlrev_b32 v9, 7, v9\nv_add_u32 v9, {WS_FLAG + PH_X*2*256*128}, v9")
            self.stamp(0)
            a.wait_tag("Xst")
            a(f"s_mov_b32 {sL}, 0")
            self.publish(PH_X, local=True)
            a(f"s_mov_b32 {sL}, 1")
            self.stat_loads()
            a("v_mov_b32 v30, v9")
            self.ln_init()
            self.poll("v30", "0xff")
            self.stamp(1)
            for kc in range(8):
                self.x_dma(kc)

    XF, WF, AK, AV, AQ = 64, 32, 192, 208, 224

    def row_stats(self):
        a = self.a
        top, ok = self.lab("s2p"), self.lab("s2o")
        a(f"s_mov_b32 {sCNT}, 0")
        a.label(top, reset=False)
        a(f"v_cmp_ne_u64 vcc, {sNP}, v[242:243]")
        for k in range(1, 4):
            a(f"v_cmp_ne_u64 s[72:73], {sNP}, v[{242+4*k}:{243+4*k}]\ns_or_b64 vcc, vcc, s[72:73]")
        a(f"s_cbranch_vccz {ok}")
        with a.cond(top):
            self.stat_loads()
            a("s_waitcnt vmcnt(0)")
            a(f"s_add_u32 {sCNT}, {sCNT}, 1\ns_cmp_lt_u32 {sCNT}, {POLL_LIMIT}\ns_cbranch_scc1 {top}\ns_branch L_fail")
        a.label(ok, reset=False)
        a("v_add_f32 v26, v240, v244\nv_add_f32 v27, v241, v245\nv_add_f32 v28, v248, v252\nv_add_f32 v29, v249, v253")
        a("v_add_f32 v26, v26, v28\nv_add_f32 v27, v27, v29\nv_mov_b32 v28, v26\nv_mov_b32 v29, v27")
        a("v_permlane32_swap_b32 v26, v28\nv_permlane32_swap_b32 v27, v29\nv_add_f32 v26, v26, v28\nv_add_f32 v27, v27, v29")
        a(f"v_mul_f32 v26, {f32(1/512)}, v26\nv_mul_f32 v27, {f32(1/512)}, v27")
        a(f"v_fma_f32 v27, -v26, v26, v27\nv_max_f32 v27, 0, v27\nv_add_f32 v27, {f32(1e-5)}, v27\nv_rsq_f32 v27, v27")

    def ln_init(self):
        a = self.a
        AK, AV, AQ = self.AK, self.AV, self.AQ
        a("v_and_b32 v3, 31, v1\nv_lshrrev_b32 v5, 5, v1")
        a(f"s_mul_i32 s73, {sP}, 768\ns_add_u32 s73, s73, {L_CP}")
        a("v_lshl_add_u32 v56, v5, 4, s73\nv_lshl_add_u32 v57, v3, 2, s73")
        for part, dst in ((0, AK), (384, 32), (256, AQ), (384 + 256, AV)):
            for q in range(4):
                a(f"ds_read_b128 v[{dst+4*q}:{dst+4*q+3}], v56 offset:{part + 32*q}")
        a("ds_read_b32 v58, v57 offset:128\nds_read_b32 v59, v57 offset:512")
        self.row_stats()
        a(f"s_lshl_b32 s72, {sWV}, 8\ns_add_u32 s72, s72, {L_MR}\nv_lshl_add_u32 v4, v3, 2, s72")
        a("ds_write_b32 v4, v26\nds_write_b32 v4, v27 offset:128")
        a("v_lshl_add_u32 v60, v5, 4, s72")
        for i in range(16):
            a(f"v_add_f32 v{AK+i}, v{AK+i}, v{32+i}\nv_add_f32 v{AQ+i}, v{AQ+i}, v{AV+i}")
        a("v_add_f32 v58, v58, v59\ns_waitcnt lgkmcnt(0)")
        for q in range(4):
            a(f"ds_read_b128 v[{AV+4*q}:{AV+4*q+3}], v60 offset:{32*q}")
        for i in range(16):
            a(f"v_mul_f32 v{AK+i}, -v26, v{AK+i}\nv_mul_f32 v{AQ+i}, -v26, v{AQ+i}")
        for i in range(16):
            a(f"v_mul_f32 v{AV+i}, -v58, v{AV+i}")

    def waddr(self, s, e):
        slot = s % 5
        return (f"v{17+e}", slot * 16384) if slot < 3 else (f"v{19+e}", (slot - 3) * 16384)

    def stage_sync(self, s):
        a = self.a
        a.wait_tag(f"W{s}", f"X{s}") if s < 8 else a.wait_tag(f"W{s}")
        a("s_barrier")

    def stat_loads(self):
        for k in range(4):
            self.a(f"buffer_load_dwordx4 v[{240+4*k}:{243+4*k}], v61, {SRD_WS}, s75 offen offset:{k*1024} sc1")

    def kv_pass(self, first):
        a = self.a
        XF, WF, AK, AV = self.XF, self.WF, self.AK, self.AV
        a.c("======== K/V projection" + (" (layer 0)" if first else " (layer 1)"))

        def reads_kv(n, part=None):
            s, k = n >> 2, n & 3
            reg, off = self.waddr(s, k & 1)
            wf = WF + (n % 3) * 8
            for pt in range(2):
                if part is not None and pt != part:
                    continue
                if pt == 0:
                    a(f"ds_read_b128 v[{XF+4*n}:{XF+4*n+3}], v{13+k} offset:{L_X + s*8192}")
                for rd in range(2):
                    a(f"ds_read_b64_tr_b16 v[{wf+4*pt+2*rd}:{wf+4*pt+2*rd+1}], {reg} offset:{off + pt*8192 + (k >> 1)*4096 + rd*512}")
        self.w_dma_setup()
        self.stamp(20)
        self.stage_sync(0)
        self.stamp(21)
        reads_kv(0); reads_kv(1)
        for n in range(32):
            wf = WF + (n % 3) * 8
            x = f"v[{XF+4*n}:{XF+4*n+3}]"
            ck = "0" if n == 0 and first else f"v[{AK}:{AK+15}]"
            cv = "0" if n == 0 and first else f"v[{AV}:{AV+15}]"
            a(f"v_mfma_f32_32x32x16_bf16 v[{AK}:{AK+15}], v[{wf}:{wf+3}], {x}, {ck}")
            if n + 2 < 32:
                if (n + 2) % 4 == 0:
                    self.stage_sync((n + 2) >> 2)
                reads_kv(n + 2, 0)
            a(f"v_mfma_f32_32x32x16_bf16 v[{AV}:{AV+15}], {x}, v[{wf+4}:{wf+7}], {cv}")
            if n + 2 < 32:
                reads_kv(n + 2, 1)
            sfree = (n + 2) >> 2
            if n >= 6 and sfree + 3 < 11:
                self.w_dma(sfree + 3, only=(n + 2) & 3)
            if n == 24 and first:
                self.stat_loads()
            if n == 28 and not first:
                for q in range(4):
                    a(f"ds_read_b128 v[{240+4*q}:{243+4*q}], v60 offset:{128 + 32*q}")
            if first and n % 2 == 0:
                for i in range(4):
                    a(f"v_dot2c_f32_bf16 v24, s74, v{wf+i}\nv_dot2c_f32_bf16 v25, s74, v{wf+4+i}")

    def k_store(self):
        a = self.a
        AK = self.AK
        a(f"s_lshl_b32 s75, {sCQ}, 1\ns_add_u32 s75, s75, {sP}\ns_lshl_b32 s75, s75, 6\ns_lshl_b32 s76, {sR}, 1\ns_add_u32 s75, s75, s76")
        a(f"s_add_u32 s75, s75, {sTB}\ns_lshl_b32 s75, s75, 12\ns_lshl_b32 s76, {sL}, 22\ns_add_u32 s75, s75, s76\ns_add_u32 s75, s75, {WS_KV}")
        a(f"buffer_store_dwordx4 v[{AK}:{AK+3}], v2, {SRD_WS}, s75 offen sc1", tag="KVst")
        a(f"buffer_store_dwordx4 v[{AK+4}:{AK+7}], v2, {SRD_WS}, s75 offen offset:2048 sc1", tag="KVst")

    def v_store(self):
        a = self.a
        AV = self.AV
        a("v_bfe_u32 v3, v1, 4, 1\nv_lshlrev_b32 v3, 11, v3\nv_lshrrev_b32 v5, 5, v1\nv_lshl_add_u32 v3, v5, 8, v3")
        a("v_and_b32 v5, 15, v1\nv_lshl_add_u32 v3, v5, 4, v3")
        a(f"buffer_store_dwordx4 v[{AV}:{AV+3}], v3, {SRD_WS}, s75 offen offset:1024 sc1", tag="KVst")
        a(f"buffer_store_dwordx4 v[{AV+4}:{AV+7}], v3, {SRD_WS}, s75 offen offset:1536 sc1", tag="KVst")

    def kv_epilogue_l1(self):
        a = self.a
        AK, AV = self.AK, self.AV
        self.stamp(2)
        for i in range(16):
            a(f"v_mul_f32 v{AK+i}, v27, v{AK+i}")
        for k in range(8):
            a(f"v_cvt_pk_bf16_f32 v{AK+k}, v{AK+2*k}, v{AK+2*k+1}")
        self.k_store()
        for i in range(16):
            a(f"v_mul_f32 v{AV+i}, v{240+i}, v{AV+i}")
        for k in range(8):
            a(f"v_cvt_pk_bf16_f32 v{AV+k}, v{AV+2*k}, v{AV+2*k+1}")
        self.v_store()

    def q_phase(self, layer):
        a = self.a
        first = layer == 0
        XF, WF, AK, AV, AQ = self.XF, self.WF, self.AK, self.AV, self.AQ
        waddr, stage_sync = self.waddr, self.stage_sync
        if first:
            self.stamp(2)
            a("v_and_b32 v3, 31, v1")
            a(f"s_lshl_b32 s72, {sP}, 1\ns_add_u32 s72, s72, {sTB}\ns_mul_i32 s72, s72, 384\ns_add_u32 s72, s72, {L_CP}")
            a("v_lshl_add_u32 v9, v3, 2, s72")
            a("v_mov_b32 v26, v24\nv_mov_b32 v27, v25\nv_permlane32_swap_b32 v24, v26\nv_permlane32_swap_b32 v25, v27")
            a("v_add_f32 v24, v24, v26\nv_add_f32 v25, v25, v27")
            a("ds_write_b32 v9, v24\nds_write_b32 v9, v25 offset:128")
            a("s_waitcnt lgkmcnt(0)\ns_barrier")
            self.row_stats()
            a(f"s_mul_i32 s72, {sP}, 768\ns_add_u32 s72, s72, {L_CP}")
            a("v_lshrrev_b32 v5, 5, v1\nv_lshl_add_u32 v56, v5, 4, s72")
            for q in range(4):
                a(f"ds_read_b128 v[{240+4*q}:{243+4*q}], v56 offset:{32*q}")
            for q in range(4):
                a(f"ds_read_b128 v[{32+4*q}:{35+4*q}], v56 offset:{384 + 32*q}")
            a("v_lshl_add_u32 v57, v3, 2, s72\nds_read_b32 v58, v57 offset:128\nds_read_b32 v59, v57 offset:512")
            a(f"s_lshl_b32 s72, {sWV}, 8\ns_add_u32 s72, s72, {L_MR}\nv_lshl_add_u32 v4, v3, 2, s72")
            a("ds_write_b32 v4, v26\nds_write_b32 v4, v27 offset:128")
            for i in range(16):
                a(f"v_add_f32 v{240+i}, v{240+i}, v{32+i}")
            a("v_add_f32 v58, v58, v59")
            a(f"v_lshl_add_u32 v4, v5, 4, s72")
            a("s_waitcnt lgkmcnt(0)")
            for q in range(4):
                a(f"ds_read_b128 v[{32+4*q}:{35+4*q}], v4 offset:{32*q}")
            for q in range(2):
                a(f"ds_read_b128 v[{48+4*q}:{51+4*q}], v4 offset:{128 + 32*q}")
            for i in range(16):
                a(f"v_fma_f32 v{AK+i}, -v26, v{240+i}, v{AK+i}")
            for i in range(16):
                a(f"v_mul_f32 v{AK+i}, v27, v{AK+i}")
            for k in range(8):
                a(f"v_cvt_pk_bf16_f32 v{AK+k}, v{AK+2*k}, v{AK+2*k+1}")
            self.k_store()
            for q in range(2, 4):
                a(f"ds_read_b128 v[{240+4*q}:{243+4*q}], v4 offset:{128 + 32*q}")
            rs = lambda i: (48 + i) if i < 8 else (240 + i)
            for i in range(16):
                a(f"v_fma_f32 v{AV+i}, -v{32+i}, v58, v{AV+i}")
            for i in range(16):
                a(f"v_mul_f32 v{AV+i}, v{rs(i)}, v{AV+i}")
            for k in range(8):
                a(f"v_cvt_pk_bf16_f32 v{AV+k}, v{AV+2*k}, v{AV+2*k+1}")
            self.v_store()
        else:
            self.kv_epilogue_l1()
        self.stamp(3)

        def reads_q(n):
            s, k = 8 + (n >> 3), n & 7
            reg, off = waddr(s, k & 1)
            wf = WF + (n % 3) * 8
            for rd in range(2):
                a(f"ds_read_b64_tr_b16 v[{wf+2*rd}:{wf+2*rd+1}], {reg} offset:{off + (k >> 1)*4096 + rd*512}")
        self.w_dma_setup()
        stage_sync(8)
        reads_q(0); reads_q(1)
        for n in range(32):
            wf = WF + (n % 3) * 8
            cq = "0" if n == 0 and first else f"v[{AQ}:{AQ+15}]"
            a(f"v_mfma_f32_32x32x16_bf16 v[{AQ}:{AQ+15}], v[{wf}:{wf+3}], v[{XF+4*n}:{XF+4*n+3}], {cq}")
            if n + 2 < 32:
                if (n + 2) % 8 == 0:
                    last = (n + 2) == 24
                    if last:
                        a.wait_tag("KVst")
                    stage_sync(8 + ((n + 2) >> 3))
                    if last:
                        self.flag_store(PH_KV)
                reads_q(n + 2)
            if n < 4:
                self.w_dma(11, only=n)
            if first and n % 2 == 0:
                for i in range(4):
                    a(f"v_dot2c_f32_bf16 v21, s74, v{wf+i}")
        if first:
            a("v_mov_b32 v28, v21\nv_permlane32_swap_b32 v21, v28\nv_add_f32 v21, v21, v28")
            a("ds_write_b32 v9, v21 offset:256")
        a("s_waitcnt lgkmcnt(0)\ns_barrier")
        self.stamp(4)
        if first:
            for q in range(4):
                a(f"ds_read_b128 v[{240+4*q}:{243+4*q}], v56 offset:{256 + 32*q}")
            for q in range(4):
                a(f"ds_read_b128 v[{32+4*q}:{35+4*q}], v56 offset:{384 + 256 + 32*q}")
            for i in range(16):
                a(f"v_add_f32 v{240+i}, v{240+i}, v{32+i}")
            for i in range(16):
                a(f"v_fma_f32 v{AQ+i}, -v26, v{240+i}, v{AQ+i}")
        a(f"v_mul_f32 v27, {f32(0.25*LOG2E)}, v27")
        for i in range(16):
            a(f"v_mul_f32 v{AQ+i}, v27, v{AQ+i}")
        for k in range(8):
            a(f"v_cvt_pk_bf16_f32 v{AQ+k}, v{AQ+2*k}, v{AQ+2*k+1}")

    def wo_dma(self):
        a = self.a
        a("v_lshrrev_b32 v3, 3, v1\nv_lshlrev_b32 v3, 10, v3\nv_bfe_u32 v4, v1, 1, 2\nv_bfe_u32 v5, v1, 4, 2\nv_xor_b32 v4, v4, v5")
        a("v_lshlrev_b32 v4, 1, v4\nv_and_b32 v5, 1, v1\nv_add_u32 v4, v4, v5\nv_lshl_add_u32 v19, v4, 4, v3")
        a(f"s_lshl_b32 s78, {sWV}, 17\ns_lshl_b32 s73, {sCQ}, 7\ns_add_u32 s78, s78, s73\ns_lshl_b32 s79, {sWV}, 14")

        def one(n):
            return (f"s_add_u32 m0, s79, {L_X + n*1024}\ns_add_u32 s72, s78, {n*8192}\n"
                    f"buffer_load_dwordx4 v19, {SRD_WO}, s72 offen lds")
        return one

    def build(self):
        a = self.a
        self.prologue()
        from gen2 import rest, finish
        for layer in range(2):
            self.layer = layer
            if layer == 1:
                a.label("L_layer1", reset=False)
            self.q_entry(layer)
            self.kv_pass(layer == 0)
            self.q_phase(layer)
            if self.stop("q") or rest(self):
                break
        finish(self)
        a.label("L_fail", reset=False)
        self.srd(32, P_DBG, 256)
        a("v_mov_b32 v4, 0xdead\nv_mov_b32 v5, 0\ns_mov_b64 exec, 1")
        a(f"buffer_store_dword v4, v5, {SRD_T}, 0 offen")
        a.label("L_end", reset=False)
        a("s_endpgm")
        a.label("L_code_end", reset=False)
        body = a.finalize()
        head = open("interleave_layers__sliding_block__mixer_token_mlp__prompt.s.ref").read().split("\n")
        hdr = [l for l in head if l.startswith(";") and "@launch" not in l and "Override launch" not in l and "grid=ceil" not in l]
        hdr = hdr[:hdr.index(next(l for l in hdr if "d_ws" in l)) + 1]
        out = "\n".join(hdr) + f"\n; @launch grid=(256,1,1) block=(256,1,1) lds={LDS_SIZE}\n"
        out += '.amdgcn_target "amdgcn-amd-amdhsa--gfx950"\n.text\n'
        out += f".globl {KNAME}\n.p2align 8\n.type {KNAME},@function\n{KNAME}:\n"
        out += body
        out += f'''.section .rodata,"a"
.p2align 6
.amdhsa_kernel {KNAME}
  .amdhsa_next_free_vgpr 512
  .amdhsa_next_free_sgpr 102
  .amdhsa_accum_offset 256
  .amdhsa_group_segment_fixed_size 0
  .amdhsa_kernarg_size 88
  .amdhsa_user_sgpr_count 2
  .amdhsa_user_sgpr_kernarg_segment_ptr 1
  .amdhsa_system_sgpr_workgroup_id_x 1
.end_amdhsa_kernel
'''
        return out


if __name__ == "__main__":
    import argparse
    ap = argparse.ArgumentParser()
    ap.add_argument("--stop", default=None)
    ap.add_argument("--diag", action="store_true")
    ap.add_argument("-o", default="interleave_layers__sliding_block__mixer_token_mlp__prompt.s")
    args = ap.parse_args()
    g = Gen(stop_after=args.stop, diag=args.diag)
    src = g.build()
    open(args.o, "w").write(src)
    print("written", args.o, g.a.stats, "bytes", len(src))
```

```python
import math
from gen import *

NEG = f32(-1e30)
import os
OPT = set(os.environ.get("KOPT", "").split(","))
INB = "inb" in OPT
sHB, sUO, sACC, sREDO = "s36", 37, "s[40:41]", "s42"


def ar(b, n=4):
    return f"a[{b}:{b+n-1}]"


def vr(b, n=4):
    return f"v[{b}:{b+n-1}]"


QA, QB = 224, 228
SBUF = (64, 80, 96, 112)
NEGM = {"A": 128, "B": 144}
OACC = {"A": 160, "B": 176}
PBUF = {"A": 192, "B": 200}
CDIAG, CFAR, ANDD, ANDF = 208, 232, 32, 40
AK0, AV0 = 0, 72
L_KV = L_RING


def kfrag(b):
    return AK0 + b * 4


def vfrag(b, half):
    return AV0 + ((b & 1) * 2 + half) * 4


def attn_setup(g):
    a = g.a
    a.c("======== attention constants")
    a("v_and_b32 v3, 31, v1\nv_lshrrev_b32 v4, 5, v1\nv_lshlrev_b32 v4, 2, v4\nv_sub_u32 v3, v3, v4")
    a(f"v_mov_b32 v48, 0\nv_mov_b32 v49, {NEG}\nv_mov_b32 v50, 0xffff\nv_mov_b32 v51, 0xffff0000")
    for i in range(16):
        ci = (i & 3) + 8 * (i >> 2)
        sp = f"s[{72 + 2*(i % 4)}:{73 + 2*(i % 4)}]"
        a(f"v_cmp_le_i32 {sp}, {ci}, v3")
        a(f"v_mov_b32 v{OACC['A']+i}, 0\nv_mov_b32 v{OACC['B']+i}, 0")
        a(f"v_cndmask_b32 v{CDIAG+i}, v49, v48, {sp}\nv_cndmask_b32 v{CFAR+i}, v48, v49, {sp}")
        a(f"v_cndmask_b32 v{52 + (i & 1)}, v48, v{50 + (i & 1)}, {sp}")
        if i & 1:
            a(f"v_or_b32 v{ANDD + i//2}, v52, v53\nv_not_b32 v{ANDF + i//2}, v{ANDD + i//2}")
    for i in range(8):
        a(f"v_mov_b32 v{PBUF['A']+i}, 0\nv_mov_b32 v{PBUF['B']+i}, 0")
    for k in range(AV0, AV0 + 16):
        a(f"v_accvgpr_write_b32 a{k}, v48")
    a("v_mov_b32 v54, 0x3f803f80\ns_mov_b32 exec_lo, 0x00110000\ns_mov_b32 exec_hi, 0x00110000")
    for k in range(AV0, AV0 + 16):
        a(f"v_accvgpr_write_b32 a{k}, v54")
    a("s_mov_b64 exec, -1")


def warmup_text(srd, dst):
    return (f"s_lshl_b32 s72, s2, 2\ns_add_u32 s72, s72, {sWV}\ns_mul_i32 s73, s72, {43*128}\nv_lshlrev_b32 v7, 7, v1\n"
            f"s_mov_b32 exec_lo, -1\ns_mov_b32 exec_hi, 0x7ff\n"
            f"buffer_load_dword {dst}, v7, {srd}, s73 offen\ns_mov_b64 exec, -1")


def warmup(g, srd, dst):
    g.a(warmup_text(srd, dst))


def team_check(g):
    a = g.a
    top, ok = g.lab("tc"), g.lab("tco")
    a(f"s_lshl_b32 s72, {sR}, 7\ns_add_u32 s72, s72, {WS_XC}\nv_lshlrev_b32 v3, 4, v1\ns_mov_b32 {sCNT}, 0\ns_mov_b64 exec, 0xff")
    a.label(top, reset=False)
    a(f"buffer_load_dwordx4 v[24:27], v3, {SRD_WS}, s72 offen sc1\ns_waitcnt vmcnt(0)")
    a(f"v_cmp_ne_u64 vcc, {sNP}, v[26:27]\ns_cbranch_vccz {ok}")
    a(f"s_add_u32 {sCNT}, {sCNT}, 1\ns_cmp_lt_u32 {sCNT}, {POLL_LIMIT}\ns_cbranch_scc1 {top}\ns_branch L_fail")
    a.label(ok, reset=False)
    a(f"v_cmp_ne_u32 vcc, s1, v24\ns_cmp_eq_u64 vcc, 0\ns_cselect_b32 {sFAST}, 1, 0\ns_mov_b64 exec, -1")


def x2_touch_text():
    return ("v_lshrrev_b32 v6, 3, v0\nv_and_b32 v3, 7, v0\nv_lshlrev_b32 v6, 10, v6\nv_lshl_add_u32 v6, v3, 4, v6\n"
            f"s_lshl_b32 s72, {sR}, 16\ns_lshl_b32 s73, {sCQ}, 7\ns_add_u32 s72, s72, s73\n"
            f"s_add_u32 s73, s72, 32768\n"
            f"buffer_load_dword v23, v6, {SRD_DST}, s72 offen sc1\nbuffer_load_dword v24, v6, {SRD_DST}, s73 offen sc1\n"
            f"s_add_u32 s72, {sR}, 32\ns_lshl_b32 s72, s72, 3\ns_add_u32 s72, s72, {sCQ}\ns_lshl_b32 s72, s72, 10\ns_add_u32 s72, s72, {WS_ST2}\n"
            f"buffer_load_dword v25, v2, {SRD_WS}, s72 offen sc1")


def u_offsets(g, dst):
    a = g.a
    a(f"s_mul_i32 s76, {sWV}, 3\ns_mul_i32 s77, {sC1}, {UC}\ns_lshl_b32 s73, {sL}, 21\ns_add_u32 s77, s77, s73\ns_add_u32 s77, s77, {WS_U}")
    for i in range(3):
        a(f"s_add_u32 s72, s76, {i}\ns_lshr_b32 s73, s72, 1\ns_and_b32 s72, s72, 1")
        a(f"s_mul_i32 s74, {sJ1}, 6\ns_add_u32 s74, s74, s73\ns_lshr_b32 s75, s74, 2\ns_and_b32 s79, s74, 3")
        a(f"s_lshl_b32 s75, s75, 12\ns_lshl_b32 s79, s79, 8\ns_add_u32 s75, s75, s79\ns_lshl_b32 s72, s72, 11\ns_add_u32 s75, s75, s72")
        a(f"s_add_u32 s75, s75, s77\ns_cmp_ge_u32 s74, 172\ns_cselect_b32 s79, 0x70000000, 0\ns_or_b32 s75, s75, s79")
        a(f"s_cmp_eq_u32 {sM1}, 0\ns_cselect_b32 s{dst+i}, 0x70000000, s75")


def inband_addresses(g):
    a = g.a
    a(f"s_lshl_b32 s72, {sCQ}, 6\ns_lshl_b32 s73, {sR}, 1\ns_add_u32 s72, s72, s73\ns_add_u32 s72, s72, {sTB}\ns_lshl_b32 s72, s72, 2")
    a(f"s_lshl_b32 s73, {sP}, 1\ns_add_u32 s72, s72, s73\ns_lshl_b32 s72, s72, 10\ns_lshl_b32 s73, {sL}, 21\ns_add_u32 s72, s72, s73\ns_add_u32 {sHB}, s72, {WS_H}")
    a("s_mov_b64 s[44:45], s[74:75]")
    u_offsets(g, sUO)
    a("s_mov_b64 s[74:75], s[44:45]")
    a("v_lshrrev_b32 v25, 5, v1\nv_lshlrev_b32 v25, 10, v25\nv_bfe_u32 v7, v1, 1, 4\nv_lshl_add_u32 v25, v7, 4, v25")
    a("v_mov_b32 v28, -1\nv_mov_b32 v29, -1\nv_mov_b32 v30, -1\nv_mov_b32 v31, -1")


def attn(g):
    a = g.a
    a.c("======== attention")
    a(f"s_sub_u32 s72, {sR}, 4\nv_add_u32 v8, s72, v1\nv_cmp_le_i32 s[74:75], 0, v8")
    g.wg_of("v9", "v8", sCQ)
    g.vflag("v9", PH_KV)
    a("s_and_b64 s[74:75], s[74:75], 0xf")
    a(f"s_lshl_b32 s76, {sR}, 1\ns_add_u32 s76, s76, {sTB}\ns_sub_u32 s77, 8, s76\ns_max_i32 s77, s77, 0")
    a(f"s_lshl_b32 s78, {sCQ}, 1\ns_add_u32 s78, s78, {sP}\ns_lshl_b32 s78, s78, 18\ns_lshl_b32 s79, {sL}, 22")
    a(f"s_add_u32 s78, s78, s79\ns_add_u32 s78, s78, {WS_KV}")
    a(f"s_lshl_b32 s79, {sTB}, 2\ns_lshl_b32 s80, {sR}, 1\ns_add_u32 s80, s80, s79\ns_sub_u32 s80, s80, 8")
    for i in range(4):
        a(f"s_add_i32 s{81+i}, s80, {i}\ns_max_i32 s{81+i}, s{81+i}, 0\ns_lshl_b32 s{81+i}, s{81+i}, 12\ns_add_u32 s{81+i}, s{81+i}, s78")
    a(f"s_lshl_b32 s85, {sR}, 1\ns_add_u32 s85, s85, {sTB}\ns_lshl_b32 s85, s85, 12\ns_add_u32 s85, s85, s78")
    a(f"s_mul_i32 s86, {sP}, 40960\ns_lshl_b32 s87, {sTB}, 14\ns_add_u32 s87, s87, s86\ns_add_u32 s87, s87, {L_KV}")
    a(f"s_lshl_b32 s79, {sTB}, 12\ns_add_u32 s79, s79, s86\ns_add_u32 s79, s79, {L_KV + 8*4096}")
    for q4 in range(4):
        a(f"s_add_u32 m0, s79, {q4*1024}\ns_add_u32 s72, s85, {q4*1024}")
        a(f"buffer_load_dwordx4 v2, {SRD_WS}, s72 offen sc1 lds", tag="Kd")
    a(f"s_lshl_b32 s88, {sTB}, 12\ns_add_u32 s88, s88, s86\ns_add_u32 s88, s88, {L_KV}\nv_add_u32 v10, s88, v2")
    a("v_and_b32 v8, 15, v1\nv_lshlrev_b32 v8, 4, v8\nv_lshrrev_b32 v7, 5, v1\nv_lshl_add_u32 v8, v7, 8, v8\nv_add_u32 v11, s88, v8")
    a("s_mov_b32 s90, 0xffff\ns_mov_b32 s91, 0xffff")
    a("v_bfe_u32 v20, v1, 4, 1\nv_lshlrev_b32 v20, 14, v20\nv_and_b32 v7, 15, v1\nv_lshl_add_u32 v20, v7, 4, v20")
    a("v_lshrrev_b32 v7, 5, v1\nv_lshl_add_u32 v20, v7, 8, v20")
    a(f"s_lshl_b32 s72, {sR}, 2\ns_lshl_b32 s73, {sTB}, 1\ns_add_u32 s72, s72, s73\ns_lshl_b32 s72, s72, 4")
    a(f"s_lshl_b32 s73, {sCQ}, 1\ns_add_u32 s72, s72, s73\ns_add_u32 s72, s72, {sP}\ns_lshl_b32 s72, s72, 10")
    a(f"s_lshl_b32 s73, {sL}, 21\ns_add_u32 s72, s72, s73\ns_add_u32 s89, s72, {WS_OF}")
    if INB:
        inband_addresses(g)
    a("s_mov_b64 s[76:77], s[74:75]")
    l0_only(g, "l0p", lambda: (team_check(g), p1_setup(g)))
    wo = g.wo_dma()
    g.poll("v9", "s[76:77]")
    a(f"s_lshl_b32 s76, {sR}, 1\ns_add_u32 s76, s76, {sTB}\ns_sub_u32 s77, 8, s76\ns_max_i32 s77, s77, 0")
    g.stamp(6)
    def kvdma(i, h, part):
        return (f"s_add_u32 m0, s87, {i*4096 + h*2048 + part}\ns_add_u32 s72, s{81+i}, {h*2048 + part}\n"
                f"buffer_load_dwordx4 v2, {SRD_WS}, s72 offen sc1 lds")
    for i in range(4):
        for h in range(2):
            a(kvdma(i, h, 0), tag="Kd")
    vd = [kvdma(i, h, 1024) for i in range(4) for h in range(2)]
    early = g.layer == 0 and "plate" not in OPT
    if early:
        for x in vd:
            a(x, tag="Vd")
        p1_loads(g)
    heads = ("A", "B")
    q = {"A": QA, "B": QB}
    mx = {"A": (48, 49), "B": (50, 51)}

    def kread(b):
        t, h = b >> 1, b & 1
        return f"ds_read_b128 {ar(kfrag(b))}, v10 offset:{t*4096 + h*2048}"

    def vread(b, half):
        t, h = b >> 1, b & 1
        return f"ds_read_b128 {ar(vfrag(b, half))}, v11 offset:{t*4096 + h*2048 + 1024 + half*512}"

    def qk(b, c):
        return f"v_mfma_f32_32x32x16_bf16 {vr(SBUF[b & 3],16)}, {ar(kfrag(b))}, {vr(q[heads[b & 1]])}, {c}"

    def cmask(t):
        return vr(CFAR, 16) if t == 0 else vr(CDIAG, 16) if t == 8 else "0"

    for h in heads:
        a(f"v_mov_b32 v{mx[h][0]}, {NEG}\nv_mov_b32 v{mx[h][1]}, {NEG}")
    a.wait_tag("Kd")
    a("s_barrier")
    a.c("pass 1: true row maximum over the masked window")
    for b in range(4):
        a(kread(b))
    a(qk(0, cmask(0)))
    a(kread(4))
    a(qk(1, cmask(0)))
    for b in range(18):
        t, s_, h = b >> 1, SBUF[b & 3], heads[b & 1]
        if b == 8 and g.layer == 0 and not early:
            p1_loads(g)
        if t < 8 and b % 2 == 0:
            stub, back = g.lab("p1s"), g.lab("p1b")
            always = [x for bb in (b, b + 1) for x in ([kread(bb + 5)] if bb + 5 < 18 else []) + ([qk(bb + 2, cmask((bb + 2) >> 1))] if bb + 2 < 18 else [])
                      + ([vd[bb]] if bb < 8 and not early else []) + ([wo(bb - 2)] if bb >= 2 and g.layer == 1 else [])]
            a(f"s_cmp_gt_u32 s77, {t}\ns_cbranch_scc1 {stub}")
        if b + 5 < 18:
            a(kread(b + 5))
        if b + 2 < 18:
            a(qk(b + 2, cmask((b + 2) >> 1)))
        if b < 8 and not early:
            a(vd[b], tag="Vd")
        for i in range(8):
            m = mx[h][i & 1]
            a(f"v_max3_f32 v{m}, v{m}, v{s_+2*i}, v{s_+2*i+1}")
            if i == 3 and b >= 2 and g.layer == 1:
                a(wo(b - 2))
        if t < 8 and b % 2 == 1:
            a.label(back, reset=False)
            g.stubs.append((stub, back, ["s_waitcnt lgkmcnt(0)"] + [y for x in always for y in (x, "s_waitcnt lgkmcnt(0)")]))
    for h in heads:
        m0, m1 = mx[h]
        a(f"v_max_f32 v{m0}, v{m0}, v{m1}\nv_mov_b32 v{m1}, v{m0}")
    for h in heads:
        m0, m1 = mx[h]
        a(f"v_permlane32_swap_b32 v{m0}, v{m1}")
    for h in heads:
        m0, m1 = mx[h]
        a(f"v_max_f32 v{m0}, v{m0}, v{m1}\nv_xor_b32 v{m0}, 0x80000000, v{m0}")
    for i in range(16):
        a(f"v_mov_b32 v{NEGM['A']+i}, v{mx['A'][0]}")
    a(qk(0, vr(NEGM["A"], 16)))
    for i in range(16):
        a(f"v_mov_b32 v{NEGM['B']+i}, v{mx['B'][0]}")
    a.wait_tag("Vd")
    a("s_barrier")
    a(f"buffer_load_dword v21, v20, {SRD_WS}, s89 offen sc1\nbuffer_load_dword v23, v20, {SRD_WS}, s89 offen offset:512 sc1")
    a(f"s_lshl_b32 s72, {sL}, 5\ns_add_u32 s72, s72, {sR}\ns_lshl_b32 s72, s72, 3\ns_add_u32 s72, s72, {sCQ}\ns_lshl_b32 s72, s72, 10")
    a(f"s_lshl_b32 s73, {sWV}, 8\ns_add_u32 s72, s72, s73\ns_add_u32 s72, s72, {WS_ST}")
    a(f"s_mov_b64 exec, 0xffff\nbuffer_load_dword v22, v2, {SRD_WS}, s72 offen sc1\ns_mov_b64 exec, -1")
    g.stamp(7)
    a.c("pass 2: P = exp2(S - m), O += V^T P; block b exponentiates S_b, starts S_{b+1} and finishes block b-1")

    def s2(b):
        return SBUF[b & 1]

    def qk2(b):
        h = heads[b & 1]
        return f"v_mfma_f32_32x32x16_bf16 {vr(s2(b),16)}, {ar(kfrag(b))}, {vr(q[h])}, {vr(NEGM[h],16)}"

    def pv(b, half):
        h = heads[b & 1]
        o, p = OACC[h], PBUF[h]
        return f"v_mfma_f32_32x32x16_bf16 {vr(o,16)}, {ar(vfrag(b, half))}, {vr(p+4*half)}, {vr(o,16)}"

    wd_cur = []
    for b in range(18):
        t, h = b >> 1, heads[b & 1]
        nxt = [qk2(b + 1)] if b + 1 < 18 else []
        prv = [pv(b - 1, 0), pv(b - 1, 1)] if b >= 1 else []
        vl = ["s_mov_b64 exec, s[90:91]\n" + vread(b, 0) + "\n" + vread(b, 1) + "\ns_mov_b64 exec, -1"]
        TB0 = next((int(o[2:]) for o in OPT if o.startswith("pt")), 8 if early else 12)
        if g.layer == 0 and b == TB0:
            p1_finish(g)
        per = 3 if TB0 >= 12 else 2
        wd = [wo(i) for i in range(per * (b - TB0), min(per * (b - TB0) + per, 16))] if g.layer == 0 and b >= TB0 else []
        if INB and b == 2:
            for e in range(2):
                a(f"buffer_store_dwordx4 v[28:31], v2, {SRD_WS}, {sHB} offen offset:{e*1024} sc1")
        if INB and b == 4:
            a("s_mov_b32 exec_lo, 0x55555555\ns_mov_b32 exec_hi, 0x55555555")
            for i in range(3):
                a(f"buffer_store_dwordx4 v[28:31], v25, {SRD_WS}, s{sUO+i} offen sc1")
            a("s_mov_b64 exec, -1")
        if t < 8 and b % 2 == 0:
            stub, back = g.lab("sk"), g.lab("bk")
            a(f"s_cmp_gt_u32 s77, {t}\ns_cbranch_scc1 {stub}")
        s_, p = s2(b), PBUF[h]
        extra = {1: nxt[:1], 2: wd[:1], 4: prv[:1], 7: wd[1:2], 9: prv[1:2], 11: vl, 13: wd[2:3]}
        wd_prev, wd_cur = (wd_cur if b else []), wd
        for i in range(16):
            a(f"v_exp_f32 v{s_+i}, v{s_+i}")
            if i >= 2 and i % 2 == 0:
                k = i // 2 - 1
                a(f"v_cvt_pk_bf16_f32 v{p+k}, v{s_+2*k}, v{s_+2*k+1}")
            for x in extra.get(i, []):
                a(x)
        a(f"s_nop 0\nv_cvt_pk_bf16_f32 v{p+7}, v{s_+14}, v{s_+15}")
        if t in (0, 8):
            msk = ANDF if t == 0 else ANDD
            for k in range(8):
                a(f"v_and_b32 v{p+k}, v{msk+k}, v{p+k}")
        if t < 8 and b % 2 == 1:
            a.label(back, reset=False)
            g.stubs.append((stub, back, nxt + wd_prev + wd_cur))
    a(pv(17, 0)); a(pv(17, 1))
    g.stamp(8)
    for hi, h in enumerate(heads):
        o = OACC[h]
        a(f"v_rcp_f32 v52, v{o+8}")
        for i in range(8):
            a(f"v_mul_f32 v{o+i}, v52, v{o+i}")
        for k in range(4):
            a(f"v_cvt_pk_bf16_f32 v{o+k}, v{o+2*k}, v{o+2*k+1}")

    def ost(m):
        for hi, h in enumerate(heads):
            a(f"buffer_store_dwordx4 {vr(OACC[h])}, v20, {SRD_WS}, s89 offen offset:{hi*512} {m}", tag="Ost")
    g.dual(ost)


L_STG = L_RING + 10240
L_STG2 = L_RING
V_W1D, V_W1R, V_W2D, V_W2R = 52, 56, 40, 42


PA1 = 96
V_P1 = 12


def p1_setup(g):
    a = g.a
    a("s_lshr_b32 s72, s2, 2\ns_and_b32 s73, s2, 3")
    a("s_mul_i32 s74, s73, 7\ns_min_u32 s75, s73, 1\ns_add_u32 s74, s74, s75")
    a("s_cmp_eq_u32 s73, 0\ns_cselect_b32 s75, 8, 7")
    a(f"s_mul_i32 s101, s72, {32*2752}\ns_mul_i32 s73, s74, 96\ns_add_u32 s101, s101, s73\ns_mul_i32 s75, s75, 6")
    a("s_mov_b32 s72, 1311\ns_mov_b32 s73, 2752")
    for n in range(7):
        a(f"s_lshl_b32 s74, {sWV}, 6\ns_add_u32 s74, s74, {256*n}\nv_add_u32 v3, s74, v1")
        a("v_mul_lo_u32 v4, v3, s72\nv_lshrrev_b32 v4, 16, v4\nv_mul_u32_u24 v5, 50, v4\nv_sub_u32 v5, v3, v5")
        a("v_mul_lo_u32 v6, v4, s73\nv_lshl_add_u32 v6, v5, 4, v6")
        a("v_cmp_gt_u32 vcc, s75, v5\nv_cmp_gt_u32 s[78:79], 32, v4\ns_and_b64 vcc, vcc, s[78:79]")
        a(f"v_mov_b32 v5, 0x7ff00000\nv_cndmask_b32 v{V_P1+n}, v5, v6, vcc")


def p1_loads(g):
    a = g.a
    for n in range(7):
        a(f"buffer_load_dwordx4 {ar(PA1+4*n)}, v{V_P1+n}, {SRD_W1}, s101 offen")


def p1_finish(g):
    a = g.a
    L1 = L_X
    a("s_lshr_b32 s72, s2, 2\ns_and_b32 s73, s2, 3")
    a("s_mul_i32 s74, s73, 7\ns_min_u32 s75, s73, 1\ns_add_u32 s74, s74, s75")
    a("s_cmp_eq_u32 s73, 0\ns_cselect_b32 s75, 8, 7")
    a(f"s_lshl_b32 s80, {sWV}, 10\ns_add_u32 s80, s80, {L1}\nv_add_u32 v120, s80, v2")
    for n in range(7):
        a(f"ds_write_b128 v120, {ar(PA1+4*n)} offset:{n*4096}")
    a("v_lshrrev_b32 v121, 4, v1\nv_lshlrev_b32 v121, 3, v121\nv_bfe_u32 v122, v1, 2, 2\nv_add_u32 v121, v121, v122\nv_and_b32 v122, 3, v1")
    a(f"v_mul_u32_u24 v123, 800, v121\nv_lshl_add_u32 v123, v122, 3, v123\ns_lshl_b32 s80, {sWV}, 5\ns_add_u32 s80, s80, {L1}\nv_add_u32 v123, s80, v123")
    a("s_waitcnt lgkmcnt(0)\ns_barrier")
    for n in range(6):
        for rd in range(2):
            a(f"ds_read_b64_tr_b16 v[{96+4*n+2*rd}:{97+4*n+2*rd}], v123 offset:{128*n + rd*3200}")
    for n in range(6):
        a(f"s_add_u32 s80, {sWV}, {4*n}\ns_mul_i32 s81, s80, 43\ns_lshr_b32 s81, s81, 7\ns_mul_i32 s82, s81, 3\ns_sub_u32 s82, s80, s82")
        a("s_cmp_lt_u32 s81, s75\ns_cselect_b32 s85, 0, 0x70000000")
        a("s_add_u32 s81, s81, s74\ns_lshl_b32 s81, s81, 6\ns_add_u32 s81, s81, s72\ns_mul_i32 s81, s81, 3\ns_add_u32 s81, s81, s82")
        a(f"s_lshl_b32 s81, s81, 10\ns_add_u32 s81, s81, {WS_W1P}\ns_or_b32 s81, s81, s85")
        a(f"buffer_store_dwordx4 {vr(96+4*n)}, v2, {SRD_WS}, s81 offen sc1")
    a("s_waitcnt lgkmcnt(0)\ns_barrier")


def early_w1(g, i0, i1, check=False):
    a = g.a
    skip = g.lab("e1")
    a(f"s_cmp_eq_u32 {sM1}, 0\ns_cbranch_scc1 {skip}")
    with a.cond("m1"):
        if check:
            l0_only(g, "l0c", lambda: (p1_check(g), w1_loads(g, 0, i0)))
        w1_loads(g, i0, i1)
    a.label(skip, reset=False)


def l0_only(g, name, fn):
    if g.layer == 0:
        fn()


def p1_check(g):
    a = g.a
    a(f"s_cmp_ge_u32 {sJ1}, 8\ns_cselect_b32 s72, 1, 0\ns_cmp_ge_u32 {sJ1}, 15\ns_addc_u32 s72, s72, 0")
    a(f"s_cmp_ge_u32 {sJ1}, 22\ns_addc_u32 s72, s72, 0")
    a(f"s_lshl_b32 s73, {sWV}, 4\nv_add_u32 v9, s73, v1\nv_lshl_add_u32 v9, v9, 2, s72")
    a(f"v_lshlrev_b32 v9, 7, v9\nv_add_u32 v9, {WS_FLAG + PH_P*2*256*128}, v9")
    g.poll("v9", "0xffff")


def w1_loads(g, i0, i1):
    a = g.a
    a(f"s_lshl_b32 s72, {sJ1}, 6\ns_lshl_b32 s73, {sWV}, 4\ns_add_u32 s72, s72, s73\ns_mul_i32 s72, s72, 3072\ns_add_u32 s72, s72, {WS_W1P}")
    for i in range(i0, i1):
        st, ft = divmod(i, 3)
        if ft == 0 or i == i0:
            a(f"s_add_u32 s73, s72, {st*3072}")
        a(f"buffer_load_dwordx4 {ar(4*i)}, v2, {SRD_WS}, s73 offen offset:{ft*1024} sc1")


def m1_only(g, fn):
    a = g.a
    skip = g.lab("m1s")
    a(f"s_cmp_eq_u32 {sM1}, 0\ns_cbranch_scc1 {skip}")
    with a.cond("m1"):
        fn()
    a.label(skip, reset=False)


def w2_setup(g):
    a = g.a
    a("v_lshrrev_b32 v3, 3, v1\nv_lshlrev_b32 v3, 12, v3\nv_bfe_u32 v4, v1, 1, 2\nv_bfe_u32 v5, v1, 4, 1\nv_and_b32 v6, 1, v1")
    for e in range(2):
        a(f"v_or_b32 v7, {2*e}, v5\nv_xor_b32 v7, v4, v7\nv_lshl_add_u32 v7, v7, 1, v6\nv_lshl_add_u32 v{V_W2D+e}, v7, 4, v3")
    a("v_lshrrev_b32 v3, 4, v1\nv_lshlrev_b32 v4, 3, v3\nv_bfe_u32 v5, v1, 2, 2\nv_add_u32 v4, v4, v5\nv_lshlrev_b32 v4, 7, v4")
    a("v_and_b32 v5, 3, v1\nv_lshl_add_u32 v4, v5, 3, v4\nv_and_b32 v3, 1, v3\nv_lshlrev_b32 v3, 1, v3\nv_bfe_u32 v5, v1, 3, 1\nv_or_b32 v3, v3, v5")
    for k in range(4):
        a(f"v_xor_b32 v5, {k}, v3\nv_lshl_add_u32 v{V_W2R+k}, v5, 5, v4")
    a(f"s_mul_i32 s89, {sWV}, {11*32*4096}\ns_lshl_b32 s88, {sR}, 7\ns_add_u32 s89, s89, s88")


def w2_lds(st):
    if st < 5:
        return ("s86", st * 4096)
    if st < 9:
        return ("s87", (st - 5) * 4096)
    return ("s86", (st - 9) * 4096)


def w2_bases(g):
    g.a(f"s_mul_i32 s86, {sWV}, 20480\ns_add_u32 s86, s86, {L_STG2}\ns_lshl_b32 s87, {sWV}, 14\ns_add_u32 s87, s87, {L_X}")


def w2_dma_text(st, m):
    base, off = w2_lds(st)
    return (f"s_add_u32 m0, {base}, {off + m*1024}\ns_add_u32 s88, s89, {(st*32 + 8*m)*4096}",
            f"buffer_load_dwordx4 v{V_W2D + (m & 1)}, {SRD_W2P}, s88 offen lds")


def w2_dma(g, st, m, uncond=False):
    pre, ld = w2_dma_text(st, m)
    g.a(pre)
    (g.a.uncond if uncond else g.a)(ld, tag=f"D2_{0 if st < 5 else 5 if st < 9 else 9}")
    return pre + "\n" + ld


def w2_tr(g, s0, s1):
    a = g.a
    base, _ = w2_lds(s0)
    for k in range(4):
        a(f"v_add_u32 v{32+k}, {base}, v{V_W2R+k}")
    for st in range(s0, s1):
        _, off = w2_lds(st)
        for k in range(4):
            for rd in range(2):
                b = (st*4 + k) * 4 + 2*rd
                a(f"ds_read_b64_tr_b16 a[{b}:{b+1}], v{32+k} offset:{off + rd*512}")


def u_producers(g, dst, lane0):
    a = g.a
    a(f"s_mul_i32 s72, {sWV}, 352\ns_mul_hi_u32 s72, s72, {(1 << 32)//48 + 1}\ns_sub_u32 s72, s72, {lane0}\nv_add_u32 v8, s72, v1\nv_max_i32 v8, 0, v8\nv_min_u32 v8, 28, v8")
    a("v_cmp_le_u32 vcc, 8, v8\nv_cndmask_b32 v6, 0, 1, vcc\nv_cmp_le_u32 vcc, 15, v8\nv_addc_co_u32 v6, vcc, 0, v6, vcc")
    a("v_cmp_le_u32 vcc, 22, v8\nv_addc_co_u32 v6, vcc, 0, v6, vcc")
    a("v_mul_u32_u24 v7, 7, v6\nv_min_u32 v9, 1, v6\nv_add_u32 v7, v7, v9\nv_sub_u32 v7, v8, v7")
    a(f"s_and_b32 s72, {sCQ}, 3\ns_lshr_b32 s73, {sCQ}, 2\nv_lshl_add_u32 v7, v7, 2, s72\nv_lshlrev_b32 v7, 3, v7")
    a(f"v_lshl_add_u32 {dst}, v6, 1, v7\nv_add_u32 {dst}, s73, {dst}")


def sentinel(g, loads, srd):
    a = g.a
    top, ok = g.lab("sn"), g.lab("sno")
    a(f"s_mov_b32 {sCNT}, 0")
    a.label(top, reset=False)
    with a.cond(top):
        for k, (addr, soff) in enumerate(loads):
            a(f"buffer_load_dword v{4+k}, {addr}, {srd}, {soff} offen sc1")
        a("s_waitcnt vmcnt(0)")
        a("v_cmp_eq_u32 vcc, -1, v4")
        for k in range(1, len(loads)):
            a(f"v_cmp_eq_u32 s[72:73], -1, v{4+k}\ns_or_b64 vcc, vcc, s[72:73]")
        a(f"s_cbranch_vccz {ok}")
        a(f"s_add_u32 {sCNT}, {sCNT}, 1\ns_cmp_lt_u32 {sCNT}, {POLL_LIMIT}\ns_cbranch_scc1 {top}")
    a.label(ok, reset=False)


def redo_end(g, redo):
    a = g.a
    done = g.lab("rd")
    a(f"s_cmp_eq_u64 {sACC}, 0\ns_cbranch_scc1 {done}")
    if g.diag:
        g.srd(32, P_DBG, 256)
        a(f"v_mov_b32 v4, 1\nv_mov_b32 v5, 4\ns_mov_b64 exec, 1\nbuffer_atomic_add v4, v5, {SRD_T}, 0 offen\ns_mov_b64 exec, -1")
    a(f"s_add_u32 {sREDO}, {sREDO}, 1\ns_cmp_lt_u32 {sREDO}, 64\ns_cbranch_scc1 {redo}")
    a.label(done, reset=False)


def o_flags(g):
    a = g.a
    a(f"v_mov_b32 v8, {sR}\nv_and_b32 v9, 3, v8\nv_lshlrev_b32 v9, 3, v9\nv_add_u32 v9, v1, v9\nv_lshlrev_b32 v9, 3, v9")
    a("v_lshrrev_b32 v7, 2, v8\nv_add_u32 v9, v9, v7")
    g.vflag("v9", PH_O)
    a("s_mov_b32 s76, 0xff\ns_mov_b32 s77, 0")
    if g.layer == 0:
        a(f"s_cmp_ge_u32 {sJ1}, 8\ns_cselect_b32 s72, 1, 0\ns_cmp_ge_u32 {sJ1}, 15\ns_addc_u32 s72, s72, 0")
        a(f"s_cmp_ge_u32 {sJ1}, 22\ns_addc_u32 s72, s72, 0")
        a(f"s_lshl_b32 s73, {sWV}, 4\ns_sub_u32 s73, s73, 8\nv_add_u32 v8, s73, v1\nv_lshl_add_u32 v8, v8, 2, s72\nv_and_b32 v8, 255, v8")
        a(f"v_lshlrev_b32 v8, 7, v8\nv_add_u32 v8, {WS_FLAG + PH_P*2*256*128}, v8")
        a("v_cmp_le_u32 vcc, 8, v1\nv_cndmask_b32 v9, v9, v8, vcc")
        a(f"s_cmp_eq_u32 {sM1}, 0\ns_cselect_b32 s76, s76, 0xffffff")


def oproj(g):
    a = g.a
    a.c("======== output projection, residual, double LayerNorm")
    OFR, WPRE, WFR, ACC = 64, 128, 14, 46
    a("v_lshrrev_b32 v3, 5, v1\nv_lshlrev_b32 v3, 4, v3\nv_bfe_u32 v4, v1, 4, 1\nv_lshl_add_u32 v3, v4, 2, v3")
    a("v_bfe_u32 v5, v1, 2, 2\nv_add_u32 v3, v3, v5\nv_bfe_u32 v5, v3, 1, 2\nv_and_b32 v6, 3, v1\nv_lshlrev_b32 v6, 3, v6")
    a("v_lshl_add_u32 v6, v3, 7, v6")
    for nt in range(4):
        a(f"v_xor_b32 v7, {nt}, v5\nv_lshl_add_u32 v{10+nt}, v7, 5, v6")

    def wreg(ks, nt):
        return WPRE + ks * 16 + nt * 4 if ks < 8 else WFR + (ks & 1) * 16 + nt * 4

    def wread(ks, nt):
        b = wreg(ks, nt)
        for rd in range(2):
            a(f"ds_read_b64_tr_b16 v[{b+2*rd}:{b+2*rd+1}], v{10+nt} offset:{L_X + ks*4096 + rd*1024}")
    for ks in range(8):
        for nt in range(4):
            wread(ks, nt)
    g.poll("v9", "s[76:77]")
    a("s_waitcnt vmcnt(0) lgkmcnt(0)")
    g.stamp(10)
    a(f"s_lshl_b32 s72, {sR}, 2\ns_add_u32 s72, s72, {sWV}\ns_lshl_b32 s72, s72, 14\ns_lshl_b32 s73, {sL}, 21")
    a(f"s_add_u32 s72, s72, s73\ns_add_u32 s74, s72, {WS_OF}")

    def oload(ks):
        if ks & 3 == 0 or ks == OD:
            a(f"s_add_u32 s73, s74, {(ks >> 2)*4096}")
        a(f"buffer_load_dwordx4 {vr(OFR+4*ks)}, v2, {SRD_WS}, s73 offen offset:{(ks & 3)*1024} sc1")
    OD = 11
    for ks in range(OD):
        oload(ks)
    g.stamp(25)

    def main(w1):
        if w1:
            a(f"s_lshl_b32 s76, {sJ1}, 6\ns_lshl_b32 s77, {sWV}, 4\ns_add_u32 s76, s76, s77\ns_mul_i32 s76, s76, 3072\ns_add_u32 s76, s76, {WS_W1P}")
        for ks in range(16):
            if ks + OD < 16:
                oload(ks + OD)
            for nt in range(4):
                c = "0" if ks == 0 else vr(ACC + 4*nt)
                a(f"v_mfma_f32_16x16x32_bf16 {vr(ACC+4*nt)}, {vr(wreg(ks, nt))}, {vr(OFR+4*ks)}, {c}")
                if 6 <= ks <= 13:
                    wread(ks + 2, nt)
                if w1 and nt == 1 and ks >= 4:
                    for i in ((ks - 4) * 2, (ks - 4) * 2 + 1) if ks < 12 else ():
                        st, ft = divmod(i, 3)
                        a(f"s_add_u32 s77, s76, {st*3072}")
                        a(f"buffer_load_dwordx4 {ar(4*i)}, v2, {SRD_WS}, s77 offen offset:{ft*1024} sc1")
            if ks == 0:
                g.stamp(28)
            if ks == 7:
                g.stamp(29)
    la, lb = g.lab("oa"), g.lab("ob")
    a(f"s_cmp_eq_u32 {sM1}, 0\ns_cbranch_scc1 {la}")
    a.snap(la)
    main(True)
    a.label(lb, reset=False)
    g.late.append((la, lb, lambda: (a.restore(la), main(False))))
    g.stamp(11)
    a(f"v_and_b32 v3, 15, v1\ns_lshl_b32 s72, {sWV}, 4\nv_add_u32 v14, s72, v3\nv_lshrrev_b32 v4, 4, v1")
    a(f"v_mul_u32_u24 v5, 144, v14\nv_lshl_add_u32 v5, v4, 3, v5\nv_add_u32 v15, {L_R}, v5")
    for nt in range(4):
        a(f"ds_read_b64 v[{176+2*nt}:{177+2*nt}], v15 offset:{32*nt}")
    X1 = 192
    for nt in range(4):
        for k in range(2):
            a(f"v_lshlrev_b32 v{X1+4*nt+2*k}, 16, v{176+2*nt+k}\nv_and_b32 v{X1+4*nt+2*k+1}, 0xffff0000, v{176+2*nt+k}")
    for i in range(16):
        a(f"v_add_f32 v{X1+i}, v{X1+i}, v{ACC+i}")
    for k in range(8):
        a(f"v_cvt_pk_bf16_f32 v{176+k}, v{X1+2*k}, v{X1+2*k+1}")
    for nt in range(4):
        a(f"ds_write_b64 v15, v[{176+2*nt}:{177+2*nt}] offset:{32*nt}")
    a(f"v_add_f32 v16, v{X1}, v{X1+1}\nv_mul_f32 v17, v{X1}, v{X1}\nv_fmac_f32 v17, v{X1+1}, v{X1+1}")
    for i in range(2, 16):
        a(f"v_add_f32 v16, v16, v{X1+i}\nv_fmac_f32 v17, v{X1+i}, v{X1+i}")

    def fold_groups(r0, r1):
        for sw in ("16", "32"):
            a(f"v_mov_b32 v20, v{r0}\nv_mov_b32 v21, v{r1}")
            a(f"v_permlane{sw}_swap_b32 v{r0}, v20\nv_permlane{sw}_swap_b32 v{r1}, v21")
            a(f"v_add_f32 v{r0}, v{r0}, v20\nv_add_f32 v{r1}, v{r1}, v21")
    fold_groups(16, 17)
    a(f"v_mov_b32 v18, {sN}\nv_mov_b32 v19, {sNN}")
    a(f"s_lshl_b32 s72, {sL}, 5\ns_add_u32 s72, s72, {sR}\ns_lshl_b32 s72, s72, 13\ns_add_u32 s72, s72, {WS_ST}")
    a(f"s_lshl_b32 s73, {sCQ}, 10\ns_add_u32 s73, s73, s72\nv_lshlrev_b32 v22, 4, v14")
    a("s_mov_b64 exec, 0xffff")
    g.dual(lambda m: a(f"buffer_store_dwordx4 v[16:19], v22, {SRD_WS}, s73 offen {m}"))
    a("s_mov_b64 exec, -1")
    g.stamp(26)
    if INB:
        a(f"s_lshl_b32 s73, {sWV}, 3\nv_add_u32 v34, s73, v1")
        g.wg_of("v35", "v34", sC1)
        u_producers(g, "v36", 8)
        a("v_cmp_le_u32 vcc, 8, v1\nv_cndmask_b32 v35, v35, v36, vcc\nv_and_b32 v35, 255, v35")
        g.vflag("v35", PH_PD)
        a(f"s_lshl_b32 s44, {sM1}, 8\ns_sub_u32 s44, s44, {sM1}\ns_or_b32 s44, s44, 0xff00\ns_mov_b32 s45, 0")
        a(f"s_mov_b64 exec, s[44:45]\nbuffer_load_dwordx2 v[32:33], v35, {SRD_WS}, 0 offen sc1\ns_mov_b64 exec, -1")
    early_w1(g, 16, 28)
    a("v_lshrrev_b32 v4, 4, v1")
    g.stamp(27)
    a(f"s_lshl_b32 s72, {sL}, 5\ns_add_u32 s72, s72, {sR}\ns_lshl_b32 s72, s72, 13\ns_add_u32 s72, s72, {WS_ST}")
    a("v_lshl_add_u32 v23, v4, 11, v22\ns_mov_b32 s100, 0")
    top, ok = g.lab("stp"), g.lab("sto")
    a.label(top, reset=False)
    a(f"buffer_load_dwordx4 v[24:27], v23, {SRD_WS}, s72 offen sc1")
    a(f"buffer_load_dwordx4 v[28:31], v23, {SRD_WS}, s72 offen offset:1024 sc1")
    a("s_waitcnt vmcnt(0)")
    a(f"v_cmp_ne_u64 vcc, {sNP}, v[26:27]\nv_cmp_ne_u64 s[74:75], {sNP}, v[30:31]\ns_or_b64 vcc, vcc, s[74:75]")
    a(f"s_cbranch_vccz {ok}")
    a(f"s_add_u32 s100, s100, 1\ns_cmp_lt_u32 s100, {POLL_LIMIT}\ns_cbranch_scc1 {top}\ns_branch L_fail")
    a.label(ok, reset=False)
    if INB:
        pd = g.lab("pd")
        a(f"s_mov_b64 exec, s[44:45]\nv_cmp_ne_u64 vcc, {sNP}, v[32:33]\ns_mov_b64 exec, -1\ns_cbranch_vccz {pd}")
        with a.cond(pd):
            a("v_mov_b32 v36, v4\nv_mov_b32 v37, v5")
            g.poll("v35", "s[44:45]")
            a("v_mov_b32 v4, v36\nv_mov_b32 v5, v37")
        a.label(pd, reset=False)
    g.stamp(12)
    a("v_add_f32 v16, v24, v28\nv_add_f32 v17, v25, v29")
    fold_groups(16, 17)
    a(f"v_mul_f32 v16, {f32(1/512)}, v16\nv_mul_f32 v17, {f32(1/512)}, v17\nv_fma_f32 v17, -v16, v16, v17\nv_max_f32 v17, 0, v17")
    a(f"v_add_f32 v18, {f32(1e-5)}, v17\nv_rsq_f32 v18, v18")
    a(f"v_mul_f32 v19, v18, v18\nv_mul_f32 v19, v19, v17\nv_add_f32 v19, {f32(1e-5)}, v19\nv_rsq_f32 v19, v19\nv_mul_f32 v18, v18, v19")
    for i in range(16):
        a(f"v_sub_f32 v{X1+i}, v{X1+i}, v16")
    for i in range(16):
        a(f"v_mul_f32 v{X1+i}, v18, v{X1+i}")
    for k in range(8):
        a(f"v_cvt_pk_bf16_f32 v{176+k}, v{X1+2*k}, v{X1+2*k+1}")
    HT = L_RING
    a(f"v_mul_u32_u24 v5, 160, v14\nv_lshl_add_u32 v5, v4, 3, v5\nv_add_u32 v5, {HT}, v5")
    for nt in range(4):
        a(f"ds_write_b64 v5, v[{176+2*nt}:{177+2*nt}] offset:{32*nt}")
    a("v_lshrrev_b32 v3, 4, v1\nv_lshlrev_b32 v3, 3, v3\nv_bfe_u32 v6, v1, 2, 2\nv_add_u32 v3, v3, v6")
    a(f"s_lshl_b32 s72, {sTB}, 5\nv_add_u32 v3, s72, v3\nv_mul_u32_u24 v3, 160, v3\nv_and_b32 v6, 3, v1\nv_lshl_add_u32 v3, v6, 3, v3")
    a(f"s_lshl_b32 s72, {sP}, 6\ns_add_u32 s72, s72, {HT}\nv_add_u32 v3, s72, v3")
    a("s_waitcnt lgkmcnt(0)\ns_barrier")
    for e in range(2):
        for rd in range(2):
            a(f"ds_read_b64_tr_b16 v[{184+4*e+2*rd}:{185+4*e+2*rd}], v3 offset:{32*e + rd*640}")
    if INB:
        a(f"s_mov_b32 s72, {sHB}")
    else:
        a(f"s_lshl_b32 s72, {sCQ}, 6\ns_lshl_b32 s73, {sR}, 1\ns_add_u32 s72, s72, s73\ns_add_u32 s72, s72, {sTB}\ns_lshl_b32 s72, s72, 2")
        a(f"s_lshl_b32 s73, {sP}, 1\ns_add_u32 s72, s72, s73\ns_lshl_b32 s72, s72, 10\ns_lshl_b32 s73, {sL}, 21\ns_add_u32 s72, s72, s73\ns_add_u32 s72, s72, {WS_H}")
    for e in range(2):
        a(f"buffer_store_dwordx4 {vr(184+4*e)}, v2, {SRD_WS}, s72 offen offset:{e*1024} sc1", tag="Hst")


def mix1(g):
    a = g.a
    a.c("======== token mixing 1: u = gelu(h^T W1 + b1)")
    skip, other = g.lab("m1"), g.lab("m1o")
    w2_setup(g)
    w2_bases(g)
    a(f"s_cmp_eq_u32 {sM1}, 0\ns_cbranch_scc1 {other}")
    w2_text = []

    def w2(i):
        return w2_dma(g, i >> 2, i & 3, uncond=True)
    with a.cond("m1"):
        g.srd(32, P_B1, 2752)
        a(f"s_mul_i32 s72, {sJ1}, 96\nv_and_b32 v3, 1, v1\nv_lshlrev_b32 v3, 3, v3\ns_mul_i32 s73, {sWV}, 3")
        for i in range(3):
            a(f"s_add_u32 s74, s73, {i}\ns_lshr_b32 s74, s74, 1\ns_lshl_b32 s74, s74, 4\ns_add_u32 s74, s74, s72")
            a(f"buffer_load_dwordx2 v[{14+2*i}:{15+2*i}], v3, {SRD_T}, s74 offen")
        if not INB:
            a(f"s_lshl_b32 s73, {sWV}, 3\nv_add_u32 v8, s73, v1")
            g.wg_of("v9", "v8", sC1)
            g.vflag("v9", PH_H)
        c0 = -2 * math.log2(math.e) * math.sqrt(2 / math.pi)
        c1 = c0 * 0.044715
        a(f"v_and_b32 v3, 15, v1\nv_mul_u32_u24 v3, 208, v3\nv_lshrrev_b32 v4, 4, v1\nv_lshl_add_u32 v3, v4, 4, v3")
        a(f"s_mul_i32 s72, {sWV}, 13312\nv_add_u32 v13, s72, v3")
        a("v_lshrrev_b32 v3, 1, v1\nv_mul_u32_u24 v10, 208, v3\nv_and_b32 v4, 1, v1\nv_lshl_add_u32 v10, v4, 4, v10")
        a("v_lshrrev_b32 v5, 5, v1\nv_lshlrev_b32 v11, 10, v5\nv_and_b32 v3, 15, v3\nv_lshl_add_u32 v11, v3, 4, v11")
        if not INB:
            a("v_lshl_add_u32 v11, v4, 3, v11")
        a(f"s_mul_i32 s76, {sWV}, 3\ns_mov_b32 s84, {f32(c1)}\ns_mov_b32 s85, {f32(c0)}")
        for i in range(3):
            a(f"s_add_u32 s72, s76, {i}\ns_lshr_b32 s73, s72, 1\ns_and_b32 s72, s72, 1")
            a(f"s_mul_i32 s74, s72, {32*208}\ns_lshl_b32 s75, s73, 5\ns_add_u32 s74, s74, s75\nv_add_u32 v{20+i}, s74, v10")
        if INB:
            for i in range(3):
                a(f"s_mov_b32 s{80+i}, s{sUO+i}")
        else:
            u_offsets(g, 80)
        HB, NS, ACC, HD = 64, 24, 192, 15
        a(f"s_lshl_b32 s72, {sC1}, 6\ns_lshl_b32 s73, {sWV}, 4\ns_add_u32 s72, s72, s73\ns_lshl_b32 s72, s72, 12")
        a(f"s_lshl_b32 s73, {sL}, 21\ns_add_u32 s72, s72, s73\ns_add_u32 s43, s72, {WS_H}")
        if INB:
            a(f"v_lshlrev_b32 v9, 10, v1\nv_add_u32 v9, 1008, v9\ns_mov_b32 {sREDO}, 0")
            redo = g.lab("m1r")
            a.label(redo, reset=False)
            sentinel(g, [("v9", "s43")], SRD_WS)
            a(f"s_mov_b64 {sACC}, 0")
        else:
            g.poll("v9", "0xff")
        g.stamp(14)
        a("s_mov_b32 s72, s43")
        nload = [0]

        def hload():
            n = nload[0]
            a(f"buffer_load_dwordx4 {vr(HB + 4*(n % NS))}, v2, {SRD_WS}, s72 offen offset:{(n & 3)*1024} sc1")
            if n & 3 == 3:
                a("s_add_u32 s72, s72, 4096")
            nload[0] += 1
        for _ in range(HD):
            hload()
        for st in range(16):
            for dt in range(4):
                hb = HB + 4 * ((st*4 + dt) % NS)
                for ft in range(3):
                    acc = ACC + (ft*4 + dt) * 4
                    c = "0" if st == 0 else ar(acc)
                    a(f"v_mfma_f32_16x16x32_bf16 {ar(acc)}, {ar((st*3+ft)*4)}, {vr(hb)}, {c}")
                    if INB and ft == 0:
                        a(f"v_cmp_eq_u32 vcc, -1, v{hb}\ns_or_b64 {sACC}, {sACC}, vcc")
                if nload[0] < 64:
                    hload()
        if INB:
            redo_end(g, redo)
        l0_only(g, "l0t", lambda: (warmup(g, SRD_W2P, "v60") if "now2wu" not in OPT else None, a(x2_touch_text())))
        g.stamp(15)
        nw2 = 0
        for dt in range(4):
            for ft in range(3):
                a(f"ds_write_b128 v13, {ar(ACC + (ft*4+dt)*4)} offset:{L_X + dt*16*208 + ft*64}")
        a("s_waitcnt lgkmcnt(0)\ns_barrier")
        for i in range(3):
            for k in range(4):
                a(f"ds_read_b128 {vr(64 + 16*i + 4*k)}, v{20+i} offset:{L_X + k*13312}")
        if g.layer == 0:
            sk3 = g.lab("ep")
            a(f"s_or_b32 s72, s2, {sWV}\ns_cmp_eq_u32 s72, 0\ns_cbranch_scc0 {sk3}")
            with a.cond(sk3):
                a(f"v_mov_b32 v4, {sN}\nv_mov_b32 v5, {WS_EPOCH}\ns_mov_b64 exec, 1")
                a(f"buffer_store_dword v4, v5, {SRD_WS}, 0 offen sc1")
                a("s_mov_b64 exec, -1")
            a.label(sk3, reset=False)
        if "udrain" not in OPT:
            pass
        else:
            a("s_waitcnt lgkmcnt(0)\ns_barrier")
        for i in range(3):
            B = 64 + 16 * i
            bb = 14 + 2 * i

            def w2x(k=1):
                nonlocal nw2
                for _ in range(k):
                    if nw2 < 18:
                        w2_text.append(w2(nw2)); nw2 += 1
            for e in range(4):
                a(f"v_add_f32 v{B+e}, v{B+e}, v{B+4+e}\nv_add_f32 v{B+8+e}, v{B+8+e}, v{B+12+e}")
            w2x()
            a(f"v_lshlrev_b32 v{B+4}, 16, v{bb}\nv_and_b32 v{B+5}, 0xffff0000, v{bb}\nv_lshlrev_b32 v{B+6}, 16, v{bb+1}\nv_and_b32 v{B+7}, 0xffff0000, v{bb+1}")
            for e in range(4):
                a(f"v_add_f32 v{B+e}, v{B+e}, v{B+8+e}")
            w2x()
            for e in range(4):
                a(f"v_add_f32 v{B+e}, v{B+e}, v{B+4+e}")
            for e in range(4):
                a(f"v_mul_f32 v{B+4+e}, v{B+e}, v{B+e}\nv_mov_b32 v{B+8+e}, s85")
            w2x()
            for e in range(4):
                a(f"v_fmac_f32 v{B+8+e}, s84, v{B+4+e}")
            for e in range(4):
                a(f"v_mul_f32 v{B+8+e}, v{B+8+e}, v{B+e}")
            for e in range(4):
                a(f"v_exp_f32 v{B+8+e}, v{B+8+e}")
            w2x()
            for e in range(4):
                a(f"v_add_f32 v{B+8+e}, 1.0, v{B+8+e}")
            for e in range(4):
                a(f"v_rcp_f32 v{B+8+e}, v{B+8+e}")
            for e in range(4):
                a(f"v_mul_f32 v{B+e}, v{B+e}, v{B+8+e}")
            a(f"v_cvt_pk_bf16_f32 v{B+4}, v{B}, v{B+1}\nv_cvt_pk_bf16_f32 v{B+5}, v{B+2}, v{B+3}")
            if INB:
                a(f"v_mov_b32_dpp v{B+6}, v{B+4} quad_perm:[1,0,3,2] row_mask:0xf bank_mask:0xf")
                a(f"v_mov_b32_dpp v{B+7}, v{B+5} quad_perm:[1,0,3,2] row_mask:0xf bank_mask:0xf")
                a("s_mov_b32 exec_lo, 0x55555555\ns_mov_b32 exec_hi, 0x55555555")
                a(f"buffer_store_dwordx4 v[{B+4}:{B+7}], v11, {SRD_WS}, s{80+i} offen sc1", tag="Ust")
                a("s_mov_b64 exec, -1")
            else:
                a(f"buffer_store_dwordx2 v[{B+4}:{B+5}], v11, {SRD_WS}, s{80+i} offen sc1", tag="Ust")
        while nw2 < (36 if "udrain" in OPT else 20):
            w2_text.append(w2(nw2)); nw2 += 1
        if INB:
            a("s_barrier")
        else:
            a.wait_tag("Ust")
            g.publish(PH_U)
    a.label(skip, reset=False)
    pre = [warmup_text(SRD_W2P, "v60"), x2_touch_text()] if g.layer == 0 else []
    g.tails.append((other, skip, pre + w2_text))
    for i in range(20, 36) if "udrain" not in OPT else ():
        w2_dma(g, i >> 2, i & 3)
    a.wait_tag("D2_0")
    w2_tr(g, 0, 5)
    a("s_waitcnt lgkmcnt(0)")
    for i in range(36, 44):
        w2_dma(g, i >> 2, i & 3)


def mix2(g):
    a = g.a
    a.c("======== token mixing 2: x += (u W2 + b2)^T")
    if g.layer == 0 and "code2" in OPT and g.stop_after is None:
        g.code_warmup2()
    g.srd(32, P_B2, 4096)
    a(f"v_lshrrev_b32 v10, 3, v0\ns_lshl_b32 s72, {sR}, 7\nv_lshl_add_u32 v11, v10, 1, s72")
    a(f"buffer_load_ushort v12, v11, {SRD_T}, 0 offen\nbuffer_load_ushort v13, v11, {SRD_T}, 0 offen offset:64")
    a(f"s_mul_i32 s72, {sCQ}, {UC}\ns_lshl_b32 s73, {sL}, 21\ns_add_u32 s72, s72, s73\ns_add_u32 s72, s72, {WS_U}")
    g.srd(24, P_WS, UC, "s72")
    a("v_and_b32 v3, 15, v1\nv_lshrrev_b32 v4, 4, v1\nv_and_b32 v5, 7, v1")
    a(f"s_lshl_b32 s72, {sWV}, 14")
    for dt in range(4):
        a(f"v_add_u32 v6, {4*dt}, v4\nv_xor_b32 v6, v6, v5\nv_lshlrev_b32 v6, 4, v6\nv_lshl_add_u32 v6, v3, 8, v6\nv_add_u32 v{14+dt}, s72, v6")
    a("v_and_b32 v3, 7, v0\nv_and_b32 v4, 7, v10\nv_lshlrev_b32 v5, 1, v3")
    for e in range(2):
        a(f"v_add_u32 v6, {e}, v5\nv_xor_b32 v6, v6, v4\nv_lshlrev_b32 v6, 4, v6\nv_lshl_add_u32 v{18+e}, v10, 8, v6")
    a(f"v_mul_u32_u24 v20, 144, v10\nv_lshl_add_u32 v20, v3, 4, v20\nv_add_u32 v20, {L_R}, v20")
    a(f"v_lshlrev_b32 v21, 10, v10\nv_lshl_add_u32 v21, v3, 4, v21")
    if INB:
        a(f"s_mul_i32 s85, {sWV}, {11*4096}\nv_lshlrev_b32 v9, 8, v1\nv_add_u32 v9, 240, v9")
        a(f"s_add_u32 s43, s85, 16384\ns_add_u32 s48, s85, 32768\ns_mov_b32 {sREDO}, 0")
        a("v_cmp_gt_u32 vcc, 48, v1\nv_mov_b32 v8, 0x7ff00000\nv_cndmask_b32 v8, v8, v9, vcc")
        redo = g.lab("m2r")
        a.label(redo, reset=False)
        sentinel(g, [("v9", "s85"), ("v9", "s43"), ("v8", "s48")], SRD_U)
        a(f"s_mov_b64 {sACC}, 0")
    else:
        u_producers(g, "v9", 0)
        g.vflag("v9", PH_U)
        g.poll("v9", "0xff")
    g.stamp(17)
    UB, ACC, UD = 64, 192, 14
    a(f"s_mul_i32 s85, {sWV}, {11*4096}")

    def uload(i):
        st, dt = i >> 2, i & 3
        if dt == 0:
            a(f"s_add_u32 s84, s85, {st*4096}")
        a(f"buffer_load_dwordx4 {vr(UB + 4*i)}, v2, {SRD_U}, s84 offen offset:{dt*1024} sc1")
    for i in range(UD):
        uload(i)
    a.wait_tag("D2_5")
    w2_tr(g, 5, 9)
    a.wait_tag("D2_9")
    w2_tr(g, 9, 11)
    for st in range(11):
        for dt in range(4):
            for k in range(4):
                acc = ACC + (dt*4 + k) * 4
                c = "0" if st == 0 else ar(acc)
                a(f"v_mfma_f32_16x16x32_bf16 {ar(acc)}, {vr(UB + (st*4+dt)*4)}, {ar((st*4+k)*4)}, {c}")
                if INB and k == 0:
                    a(f"v_cmp_eq_u32 vcc, -1, v{UB + (st*4+dt)*4}\ns_or_b64 {sACC}, {sACC}, vcc")
                if k == 1 and st*4 + dt + UD < 44:
                    uload(st*4 + dt + UD)
    if INB:
        redo_end(g, redo)
    g.stamp(18)
    for dt in range(4):
        for k in range(4):
            a(f"ds_write_b128 v{14+dt}, {ar(ACC + (dt*4+k)*4)} offset:{L_X + k*4096}")
    a("s_waitcnt lgkmcnt(0)\ns_barrier")
    a(f"s_lshl_b32 s72, {sR}, 16\ns_lshl_b32 s73, {sCQ}, 7\ns_add_u32 s72, s72, s73")
    for half in range(2):
        B = 64 + half * 48
        for k in range(4):
            for e in range(2):
                a(f"ds_read_b128 {vr(B + k*8 + e*4)}, v{18+e} offset:{L_X + k*16384 + half*8192}")
        a(f"ds_read_b128 {vr(B+32)}, v20 offset:{half*4608}")
    def epilogue(first):
        ring = []
        if first:
            g.q_addr_w(46)
            g.w_dma_setup("s80", "s81", "s82")
            ring = [(s_, n) for s_ in range(5) for n in range(4)]

        def ringdma(k=1):
            for _ in range(k):
                if ring:
                    s_, n = ring.pop(0)
                    g.w_dma(s_, only=n, sg="s80", sl="s81", st="s82", va="v46")
        for half in range(2):
            B = 64 + half * 48
            a(f"v_lshlrev_b32 v22, 16, v{12+half}")
            for i in range(8):
                a(f"v_add_f32 v{B+i}, v{B+i}, v{B+8+i}\nv_add_f32 v{B+16+i}, v{B+16+i}, v{B+24+i}")
                if i % 2 == 1:
                    ringdma()
            for i in range(8):
                a(f"v_add_f32 v{B+i}, v{B+i}, v{B+16+i}")
            ringdma()
            for i in range(8):
                a(f"v_add_f32 v{B+i}, v{B+i}, v22")
            ringdma()
            for k in range(4):
                a(f"v_lshlrev_b32 v{B+8+2*k}, 16, v{B+32+k}\nv_and_b32 v{B+9+2*k}, 0xffff0000, v{B+32+k}")
            ringdma()
            for i in range(8):
                a(f"v_add_f32 v{B+i}, v{B+i}, v{B+8+i}")
            ringdma()
            for k in range(4):
                a(f"v_cvt_pk_bf16_f32 v{B+36+k}, v{B+2*k}, v{B+2*k+1}")
            if first:
                a(f"ds_write_b128 v20, {vr(B+36)} offset:{half*4608}")
                g.dual(lambda m, B=B: a(f"buffer_store_dwordx4 {vr(B+36)}, v21, {SRD_DST}, s72 offen {m}", tag="Xst"))
            else:
                om = "" if "outplain" in OPT else "sc1"
                a(f"buffer_store_dwordx4 {vr(B+36)}, v21, {SRD_DST}, s72 offen {om}")
            if half == 0:
                a("s_add_u32 s72, s72, 32768")
            if first:
                a(f"v_add_f32 v{B+40}, v{B}, v{B+1}\nv_mul_f32 v{B+41}, v{B}, v{B}\nv_fmac_f32 v{B+41}, v{B+1}, v{B+1}")
                for i in range(2, 8):
                    a(f"v_add_f32 v{B+40}, v{B+40}, v{B+i}\nv_fmac_f32 v{B+41}, v{B+i}, v{B+i}")
                ringdma(2)
        if first:
            ringdma(20)
            a("v_mov_b32 v12, v46")
            g.row_stats_store([104, 152], 1, local=True)
    epilogue(g.layer == 0)


def drain(g, tag, n, sreg, val):
    a = g.a
    lw = g.lab("dr")
    a(f"s_cmp_eq_u32 {sreg}, {val}\ns_cbranch_scc1 {lw}")
    a.raw("  s_waitcnt vmcnt(0)")
    a.label(lw, reset=False)
    a.raw(f"  s_waitcnt vmcnt({n})")
    a.wait_tag(tag, emit=False)


def o_drain_publish(g):
    a = g.a
    a.wait_tag("Ost")
    g.publish(PH_O, local=True, also=PH_P if g.layer == 0 else None)


def rest(g):
    a = g.a
    attn_setup(g)
    g.stamp(5)
    attn(g)
    a("s_barrier")
    o_drain_publish(g)
    g.stamp(9)
    if g.stop("a"):
        return True
    o_flags(g)
    oproj(g)
    early_w1(g, 28, 40)
    if not INB:
        drain(g, "Hst", 12, sM1, 1)
        g.publish(PH_H)
    g.stamp(13)
    if g.stop("o"):
        return True
    m1_only(g, lambda: w1_loads(g, 40, 48))
    mix1(g)
    g.stamp(16)
    if g.stop("m1"):
        return True
    mix2(g)
    g.stamp(19)
    if g.stop("m2"):
        return True
    if g.layer == 1:
        a("s_endpgm")
        a.assume_clean()
        return True
    g.srd(4, P_WS, 2 << 20, WS_X2)
    g.srd(20, P_OUT, 2 << 20)
    a(f"s_mov_b32 {sL}, 1")
    a("s_waitcnt lgkmcnt(0)")
    return False


def finish(g):
    a = g.a
    a("s_branch L_end")
    a.assume_clean()
    for lab, back, fn in g.late:
        a.label(lab, reset=False)
        fn()
        a(f"s_branch {back}")
        a.assume_clean()
    for stub, back, always in g.stubs:
        a.label(stub, reset=False)
        a("s_nop 7")
        for x in always:
            a(x)
        a(f"s_nop 11\ns_branch {back}")
        a.assume_clean()
    for lab, back, texts in g.tails:
        a.label(lab, reset=False)
        for x in texts:
            for line in x.split("\n"):
                if line.startswith("@"):
                    a.label(line[1:], reset=False)
                else:
                    a(line)
        a(f"s_branch {back}")
        a.assume_clean()
```

```python
import os, sys
OPT = set(os.environ.get("KOPT", "").split(","))
sys.path.insert(0, "tools")
from asmfw import Asm

KNAME = "interleave_layers__sliding_block__mixer_token_mlp__prompt_kernel"

WS_EPOCH = 0x0
WS_FLAG = 0x1000
WS_ST = 0x80000
WS_KV = 0x100000
WS_OF = 0x900000
WS_H = 0xD00000
WS_U = 0x1100000
WS_X2 = 0x1500000
WS_W1P = 0x1700000
WS_W2P = 0x1D00000
WS_ST2 = 0x2300000
WS_XC = 0x2380000
WS_DIAG = 0x2400000
WS_SIZE = 0x4000000
UC = 43 * 4096
PH_KV, PH_O, PH_H, PH_U, PH_X, PH_P, PH_PD = range(7)

L_X = 0
L_RING = 65536
L_R = 147456
L_MISC = 156672
L_SP = L_MISC
L_CP = L_MISC + 1024
L_MR = L_MISC + 2560
LDS_SIZE = 163840

SRD_X, SRD_WQ, SRD_WO, SRD_WS = "s[4:7]", "s[8:11]", "s[12:15]", "s[16:19]"
SRD_DST, SRD_U, SRD_W2P, SRD_T = "s[20:23]", "s[24:27]", "s[28:31]", "s[32:35]"
P_X, P_WQ, P_WO, P_W1, P_B1, P_W2, P_B2, P_OUT, P_DBG, P_WS = 36, 38, 40, 44, 46, 48, 50, 52, 54, 56
sR, sCQ, sWV, sL = "s58", "s59", "s60", "s61"
sN, sNN, sNP = "s62", "s63", "s[62:63]"
sC1, sJ1, sM1 = "s64", "s65", "s66"
sP, sTB, sB = "s67", "s68", "s69"
sCNT = "s100"
sFAST = "s0"
SRD_W1 = "s[96:99]"
POLL_LIMIT = 400000

LOG2E = 1.4426950408889634


def f32(x):
    import struct
    return "0x%08x" % struct.unpack("<I", struct.pack("<f", x))[0]


class Gen:
    def __init__(self, stop_after=None, diag=False):
        self.a = Asm()
        self.stop_after = stop_after
        self.diag = diag
        self.uid = 0
        self.stubs = []
        self.nstamp = 0
        self.layer = 0
        self.tails = []
        self.late = []

    def lab(self, base):
        self.uid += 1
        return f"L_{base}_{self.uid}"

    def srd(self, name, ptr, size, off=None):
        a = self.a
        if off is None:
            a(f"s_mov_b32 s{name}, s{ptr}\ns_mov_b32 s{name+1}, s{ptr+1}")
        else:
            a(f"s_add_u32 s{name}, s{ptr}, {off}\ns_addc_u32 s{name+1}, s{ptr+1}, 0")
        a(f"s_mov_b32 s{name+2}, {size}\ns_mov_b32 s{name+3}, 0x20000")

    def stamp(self, idx):
        if not self.diag:
            return
        a = self.a
        skip = self.lab("st")
        a(f"s_memrealtime s[92:93]\ns_waitcnt lgkmcnt(0)")
        a(f"s_cmp_eq_u32 {sWV}, 0\ns_cbranch_scc0 {skip}")
        with a.cond(skip):
            a(f"s_lshl_b32 s94, s2, 8\ns_lshl_b32 s95, {sL}, 7\ns_add_u32 s94, s94, s95\ns_add_u32 s94, s94, {WS_DIAG + idx*4}")
            a("v_mov_b32 v62, s92\nv_mov_b32 v63, s94\ns_mov_b64 exec, 1")
            a(f"buffer_store_dword v62, v63, {SRD_WS}, 0 offen")
            a("s_mov_b64 exec, -1")
        a.label(skip, reset=False)

    def flag_addr(self, dst, phase, wg):
        a = self.a
        a(f"s_lshl_b32 {dst}, {sL}, 8\ns_add_u32 {dst}, {dst}, {wg}\ns_lshl_b32 {dst}, {dst}, 7")
        a(f"s_add_u32 {dst}, {dst}, {WS_FLAG + phase*2*256*128}")

    def dual(self, fn, sel=sFAST):
        a = self.a
        slow, j = self.lab("slow"), self.lab("dj")
        a(f"s_cmp_eq_u32 {sel}, 0\ns_cbranch_scc1 {slow}")
        a.fork()
        fn("")
        a(f"s_branch {j}")
        a.label(slow, reset=False)
        a.alt()
        fn("sc1")
        a.endfork()
        a.label(j, reset=False)

    def publish(self, phase, wg="s2", also=None, local=False):
        a = self.a
        skip = self.lab("pub")
        a("s_barrier")
        a(f"s_cmp_eq_u32 {sWV}, 0\ns_cbranch_scc0 {skip}")
        with a.cond(skip):
            self.flag_addr("s70", phase, wg)
            a(f"v_mov_b32 v4, {sN}\nv_mov_b32 v5, {sNN}\nv_mov_b32 v6, s70\ns_mov_b64 exec, 1")
            if local:
                self.dual(lambda m: a(f"buffer_store_dwordx2 v[4:5], v6, {SRD_WS}, 0 offen {m}"))
            else:
                a(f"buffer_store_dwordx2 v[4:5], v6, {SRD_WS}, 0 offen sc1")
            if also is not None:
                self.flag_addr("s70", also, wg)
                a(f"v_mov_b32 v6, s70\nbuffer_store_dwordx2 v[4:5], v6, {SRD_WS}, 0 offen sc1")
            a("s_mov_b64 exec, -1")
        a.label(skip, reset=False)

    def flag_store(self, phase):
        a = self.a
        skip = self.lab("fs")
        a(f"s_cmp_eq_u32 {sWV}, 0\ns_cbranch_scc0 {skip}")
        with a.cond(skip):
            self.flag_addr("s78", phase, "s2")
            a(f"v_mov_b32 v4, {sN}\nv_mov_b32 v5, {sNN}\nv_mov_b32 v6, s78\ns_mov_b64 exec, 1")
            a(f"buffer_store_dwordx2 v[4:5], v6, {SRD_WS}, 0 offen sc1")
            a("s_mov_b64 exec, -1")
        a.label(skip, reset=False)

    def poll(self, vaddr, mask):
        a = self.a
        top, ok = self.lab("poll"), self.lab("pok")
        a(f"s_mov_b64 exec, {mask}\ns_mov_b32 {sCNT}, 0")
        a(f"s_cbranch_execz {ok}")
        a.label(top, reset=False)
        with a.cond(top):
            a(f"buffer_load_dwordx2 v[4:5], {vaddr}, {SRD_WS}, 0 offen sc1")
            a("s_waitcnt vmcnt(0)")
            a(f"v_cmp_ne_u64 vcc, {sNP}, v[4:5]")
            a(f"s_cbranch_vccz {ok}")
            for o in OPT:
                if o.startswith("sleep"):
                    a(f"s_sleep {o[5:]}")
            a(f"s_add_u32 {sCNT}, {sCNT}, 1\ns_cmp_lt_u32 {sCNT}, {POLL_LIMIT}\ns_cbranch_scc1 {top}")
            a("s_branch L_fail")
        a.label(ok, reset=False)
        a("s_mov_b64 exec, -1")

    def wg_of(self, dst, r, cq):
        a = self.a
        a(f"v_and_b32 {dst}, 3, {r}\nv_lshlrev_b32 {dst}, 3, {dst}\nv_add_u32 {dst}, {cq}, {dst}\nv_lshlrev_b32 {dst}, 3, {dst}")
        a(f"v_lshrrev_b32 v7, 2, {r}\nv_add_u32 {dst}, {dst}, v7")

    def vflag(self, dst, phase):
        a = self.a
        a(f"s_lshl_b32 s70, {sL}, 15\ns_add_u32 s70, s70, {WS_FLAG + phase*2*256*128}")
        a(f"v_lshlrev_b32 {dst}, 7, {dst}\nv_add_u32 {dst}, s70, {dst}")

    def row_stats_store(self, sums, layer, local=False):
        a = self.a
        for ctl in ("quad_perm:[1,0,3,2]", "quad_perm:[2,3,0,1]", "row_half_mirror"):
            for r0 in sums:
                for k in range(2):
                    a(f"v_add_f32_dpp v{r0+k}, v{r0+k}, v{r0+k} {ctl} row_mask:0xf bank_mask:0xf")
        for r0 in sums:
            a(f"v_mov_b32 v{r0+2}, {sN}\nv_mov_b32 v{r0+3}, {sNN}")
        if isinstance(layer, int):
            a(f"s_add_u32 s72, {sR}, {layer*32}")
        else:
            a(f"s_lshl_b32 s72, {layer}, 5\ns_add_u32 s72, s72, {sR}")
        a(f"s_lshl_b32 s72, s72, 3\ns_add_u32 s72, s72, {sCQ}\ns_lshl_b32 s72, s72, 10\ns_add_u32 s72, s72, {WS_ST2}")
        a("v_lshrrev_b32 v3, 3, v0\nv_lshlrev_b32 v3, 4, v3\nv_and_b32 v4, 7, v0\nv_cmp_eq_u32 vcc, 0, v4\ns_mov_b64 exec, vcc")
        def st(m):
            for i, r0 in enumerate(sums):
                a(f"buffer_store_dwordx4 v[{r0}:{r0+3}], v3, {SRD_WS}, s72 offen offset:{i*512} {m}")
        if local:
            self.dual(st)
        else:
            st("sc1")
        a("s_mov_b64 exec, -1")

    def stop(self, name):
        if self.stop_after == name:
            self.a("s_waitcnt vmcnt(0) lgkmcnt(0)\ns_branch L_end")
            self.a.assume_clean()
            return True
        return False

    def prologue(self):
        a = self.a
        a("s_cmp_ge_u32 s2, 256\ns_cbranch_scc1 L_end")
        if "nocode" not in OPT and "codelate" not in OPT:
            self.code_warmup()
        a("s_load_dwordx16 s[36:51], s[0:1], 0\ns_load_dwordx4 s[52:55], s[0:1], 64\ns_load_dwordx2 s[56:57], s[0:1], 80")
        a("v_and_b32 v1, 63, v0\nv_lshlrev_b32 v2, 4, v1\nv_lshrrev_b32 v3, 6, v0")
        a(f"v_readfirstlane_b32 {sWV}, v3")
        a(f"s_and_b32 s70, s2, 7\ns_lshr_b32 s71, s2, 3")
        a(f"s_lshr_b32 s72, s71, 3\ns_lshl_b32 {sR}, s70, 2\ns_add_u32 {sR}, {sR}, s72\ns_and_b32 {sCQ}, s71, 7")
        a(f"s_and_b32 s72, s70, 1\ns_lshl_b32 s72, s72, 2\ns_and_b32 s73, s71, 3\ns_add_u32 {sC1}, s72, s73")
        a("s_lshr_b32 s72, s70, 1\ns_lshr_b32 s73, s71, 2")
        a("s_mul_i32 s74, s72, 7\ns_min_u32 s75, s72, 1\ns_add_u32 s74, s74, s75")
        a(f"s_add_u32 {sJ1}, s74, s73")
        a("s_cmp_eq_u32 s72, 0\ns_cselect_b32 s75, 8, 7")
        a(f"s_cmp_lt_u32 s73, s75\ns_cselect_b32 {sM1}, 1, 0")
        a(f"s_and_b32 {sP}, {sWV}, 1\ns_lshr_b32 {sTB}, {sWV}, 1\ns_xor_b32 {sB}, {sP}, {sTB}")
        a(f"s_mov_b32 {sL}, 0")
        a("s_waitcnt lgkmcnt(0)")
        self.srd(4, P_X, 2 << 20)
        self.srd(8, P_WQ, 512 * 1536 * 2)
        a("v_lshlrev_b32 v3, 7, v1")
        if "noxw" not in OPT:
            a(f"s_lshl_b32 s70, {sCQ}, 2\ns_add_u32 s70, s70, {sWV}\ns_lshl_b32 s70, s70, 11\ns_lshl_b32 s71, {sR}, 16\ns_add_u32 s70, s70, s71")
            a(f"s_mov_b64 exec, 0xffff\nbuffer_load_dword v231, v3, {SRD_X}, s70 offen\ns_mov_b64 exec, -1")
        if "wq2" in OPT:
            a(f"s_lshr_b32 s70, s2, 3\ns_lshl_b32 s70, s70, 2\ns_add_u32 s70, s70, {sWV}\ns_mul_i32 s70, s70, {96*128}")
            a(f"buffer_load_dword v248, v3, {SRD_WQ}, s70 offen\ns_add_u32 s70, s70, 8192\ns_mov_b32 exec_hi, 0\nbuffer_load_dword v230, v3, {SRD_WQ}, s70 offen\ns_mov_b64 exec, -1")
        elif "nowq" not in OPT:
            a(f"s_lshl_b32 s70, s2, 2\ns_add_u32 s70, s70, {sWV}\ns_mul_i32 s70, s70, 1536")
            a(f"s_mov_b64 exec, 0xfff\nbuffer_load_dword v248, v3, {SRD_WQ}, s70 offen\ns_mov_b64 exec, -1")
        self.srd(12, P_WO, 512 * 512 * 2)
        if "bias" in OPT:
            a(f"s_lshl_b32 s70, s2, 2\ns_add_u32 s70, s70, {sWV}\ns_lshl_b32 s71, s70, 9\ns_mov_b64 exec, 0xf\nbuffer_load_dword v226, v3, {SRD_WO}, s71 offen")
            a("s_and_b32 s71, s70, 31\ns_lshl_b32 s71, s71, 7\ns_mov_b64 exec, 1")
            self.srd(32, P_B1, 2752)
            a(f"buffer_load_dword v227, v3, {SRD_T}, s71 offen")
            self.srd(32, P_B2, 4096)
            a(f"buffer_load_dword v228, v3, {SRD_T}, s71 offen\ns_mov_b64 exec, -1")
        self.srd(16, P_WS, WS_SIZE)
        if "ctl" in OPT:
            a(f"s_lshl_b32 s70, s2, 2\ns_add_u32 s70, s70, {sWV}\nv_lshlrev_b32 v3, 7, v1")
            a(f"s_lshl_b32 s71, s70, 10\ns_mov_b64 exec, 0xff\nbuffer_load_dword v224, v3, {SRD_WS}, s71 offen sc1")
            a(f"s_mul_i32 s71, s70, 640\ns_add_u32 s71, s71, {WS_ST2}\ns_mov_b64 exec, 0x1f\nbuffer_load_dword v225, v3, {SRD_WS}, s71 offen sc1")
            a(f"s_lshl_b32 s71, s70, 9\ns_mov_b64 exec, 0xf\nbuffer_load_dword v226, v3, {SRD_WO}, s71 offen")
            a("s_and_b32 s71, s70, 31\ns_lshl_b32 s71, s71, 7\ns_mov_b64 exec, 1")
            self.srd(32, P_B1, 2752)
            a(f"buffer_load_dword v227, v3, {SRD_T}, s71 offen")
            self.srd(32, P_B2, 4096)
            a(f"buffer_load_dword v228, v3, {SRD_T}, s71 offen\ns_mov_b64 exec, -1")
        self.srd(28, P_W2, 1376 * 4096)
        self.srd(96, P_W1, 2048 * 2752)
        self.srd(20, P_WS, 2 << 20, WS_X2)
        if "wuA" in OPT:
            self.mix_warmup("v229", "v230")
        if "wuA1" in OPT:
            self.mix_warmup("v229", None)
        a(f"v_mov_b32 v3, {WS_EPOCH}")
        a(f"buffer_load_dword v250, v3, {SRD_WS}, 0 offen sc1")
        a("v_lshrrev_b32 v3, 3, v0\nv_and_b32 v4, 7, v0")
        a(f"s_lshl_b32 s70, {sR}, 16\ns_lshl_b32 s71, {sCQ}, 7\ns_add_u32 s70, s70, s71")
        a("v_lshlrev_b32 v5, 10, v3\nv_lshl_add_u32 v5, v4, 4, v5")
        a(f"buffer_load_dwordx4 v[240:243], v5, {SRD_X}, s70 offen")
        a("s_add_u32 s70, s70, 32768")
        a(f"buffer_load_dwordx4 v[244:247], v5, {SRD_X}, s70 offen")

    def mix_warmup(self, d1, d2, tmp="s70"):
        a = self.a
        a(f"s_lshl_b32 {tmp}, s2, 2\ns_add_u32 {tmp}, {tmp}, {sWV}\ns_mul_i32 {tmp}, {tmp}, {43*128}\nv_lshlrev_b32 v3, 7, v1")
        a("s_mov_b32 exec_lo, -1\ns_mov_b32 exec_hi, 0x7ff")
        if d1:
            a(f"buffer_load_dword {d1}, v3, {SRD_W1}, {tmp} offen")
        if d2:
            a(f"buffer_load_dword {d2}, v3, {SRD_W2P}, {tmp} offen")
        a("s_mov_b64 exec, -1")

    def code_warmup(self):
        a = self.a
        a("s_getpc_b64 s[32:33]")
        a.label("L_pc", reset=False)
        a(f"s_sub_u32 s32, s32, L_pc-{KNAME}\ns_subb_u32 s33, s33, 0\ns_mov_b32 s34, L_code_end-{KNAME}\ns_mov_b32 s35, 0x20000")
        a("v_and_b32 v3, 63, v0\nv_lshrrev_b32 v4, 6, v0\nv_mul_u32_u24 v4, 640, v4\nv_lshl_add_u32 v3, v3, 7, v4")
        a("s_lshr_b32 s72, s2, 3\ns_mul_i32 s72, s72, 2560")
        a(f"s_mov_b64 exec, 0x1f\nbuffer_load_dword v249, v3, {SRD_T}, s72 offen\ns_mov_b64 exec, -1")

    def code_warmup2(self):
        a = self.a
        lab = self.lab("pc")
        a("s_getpc_b64 s[32:33]")
        a.label(lab, reset=False)
        a(f"s_add_u32 s32, s32, L_layer1-{lab}\ns_addc_u32 s33, s33, 0\ns_mov_b32 s34, L_code_end-L_layer1\ns_mov_b32 s35, 0x20000")
        a("v_lshrrev_b32 v4, 6, v0\nv_mul_u32_u24 v4, 384, v4\nv_lshl_add_u32 v3, v1, 7, v4")
        a("s_lshr_b32 s72, s2, 3\ns_mul_i32 s72, s72, 1536")
        a(f"s_mov_b64 exec, 7\nbuffer_load_dword v61, v3, {SRD_T}, s72 offen\ns_mov_b64 exec, -1")

    def prologue_tail(self):
        a = self.a
        if "wuB" in OPT:
            self.mix_warmup("v229", "v230")
        a(f"v_lshlrev_b32 v3, 21, v1\ns_mov_b64 exec, 0x3ffff\nbuffer_load_dword v251, v3, {SRD_WS}, 0 offen\ns_mov_b64 exec, -1")
        if "tlb" in OPT:
            a(f"s_mov_b64 exec, 7\nbuffer_load_dword v253, v3, {SRD_W1}, 0 offen\nbuffer_load_dword v254, v3, {SRD_W2P}, 0 offen\ns_mov_b64 exec, 1")
            self.srd(32, P_OUT, 2 << 20)
            a(f"buffer_load_dword v255, v3, {SRD_T}, 0 offen")
            self.srd(32, P_B1, 2752)
            a(f"buffer_load_dword v249, v3, {SRD_T}, 0 offen")
            self.srd(32, P_B2, 4096)
            a(f"buffer_load_dword v248, v3, {SRD_T}, 0 offen\ns_mov_b64 exec, -1")
        if "ctl" not in OPT:
            a(f"s_lshl_b32 s72, s2, 2\ns_add_u32 s72, s72, {sWV}\ns_lshl_b32 s72, s72, 9\nv_lshlrev_b32 v3, 7, v1")
            a(f"s_mov_b64 exec, 0xf\nbuffer_load_dword v252, v3, {SRD_WO}, s72 offen\ns_mov_b64 exec, -1")
        if "codelate" in OPT:
            self.code_warmup()
        a("v_lshrrev_b32 v3, 3, v0\nv_and_b32 v4, 7, v0")
        a("v_mul_u32_u24 v6, 144, v3\nv_lshl_add_u32 v6, v4, 4, v6")
        a(f"v_add_u32 v6, {L_R}, v6")
        a(f"v_readfirstlane_b32 {sN}, v250")
        a(f"s_add_u32 {sN}, {sN}, 1\ns_not_b32 {sNN}, {sN}")
        a("ds_write_b128 v6, v[240:243]\nds_write_b128 v6, v[244:247] offset:4608")
        for h, (src, dst) in enumerate(((240, 232), (244, 236))):
            a(f"v_mov_b32 v{dst}, 0\nv_mov_b32 v{dst+1}, 0")
            for k in range(4):
                a(f"v_lshlrev_b32 v8, 16, v{src+k}\nv_and_b32 v9, 0xffff0000, v{src+k}")
                a(f"v_add_f32 v{dst}, v{dst}, v8\nv_fmac_f32 v{dst+1}, v8, v8\nv_add_f32 v{dst}, v{dst}, v9\nv_fmac_f32 v{dst+1}, v9, v9")
        self.row_stats_store([232, 236], 0)
        a(f"s_getreg_b32 s72, hwreg(HW_REG_XCC_ID)\ns_and_b32 s1, s72, 15\ns_mov_b32 {sFAST}, 0")
        a(f"s_lshl_b32 s72, {sR}, 3\ns_add_u32 s72, s72, {sCQ}\ns_lshl_b32 s72, s72, 4\ns_add_u32 s72, s72, {WS_XC}")
        a(f"v_mov_b32 v232, s1\nv_mov_b32 v233, 0\nv_mov_b32 v234, {sN}\nv_mov_b32 v235, {sNN}\nv_mov_b32 v3, s72")
        sk = self.lab("xc")
        a(f"s_cmp_eq_u32 {sWV}, 0\ns_cbranch_scc0 {sk}")
        with a.cond(sk):
            a(f"s_mov_b64 exec, 1\nbuffer_store_dwordx4 v[232:235], v3, {SRD_WS}, 0 offen sc1\ns_mov_b64 exec, -1")
        a.label(sk, reset=False)

    def w_dma(self, s, only=None, sg="s70", sl="s71", st="s72", va="v12"):
        a = self.a
        slot = L_RING + (s % 5) * 16384
        for n in range(4):
            if only is not None and n != only:
                continue
            if s < 8:
                part = n >> 1
                krow = 64 * s + (n & 1) * 32
                col = 1024 * (1 + part)
                lds = slot + part * 8192 + (n & 1) * 4096
            else:
                krow = 128 * (s - 8) + 32 * n
                col = 0
                lds = slot + n * 4096
            a(f"s_add_u32 m0, {sl}, {lds}\ns_add_u32 {st}, {sg}, {krow*3072 + col}")
            a(f"buffer_load_dwordx4 {va}, {SRD_WQ}, {st} offen lds", tag=f"W{s}")

    def w_dma_setup(self, sg="s70", sl="s71", st="s72"):
        a = self.a
        a(f"s_mul_i32 {sg}, {sWV}, {8*3072}\ns_lshl_b32 {st}, {sCQ}, 7\ns_add_u32 {sg}, {sg}, {st}\ns_lshl_b32 {sl}, {sWV}, 10")

    def q_addr_w(self, dst=12):
        a = self.a
        a(f"v_lshrrev_b32 v3, 3, v1\nv_mul_u32_u24 v{dst}, 3072, v3\nv_bfe_u32 v4, v1, 4, 1\nv_lshlrev_b32 v4, 2, v4")
        a(f"v_and_b32 v5, 7, v1\nv_xor_b32 v5, v5, v4\nv_lshl_add_u32 v{dst}, v5, 4, v{dst}")

    def q_addr_x(self):
        a = self.a
        a("v_lshrrev_b32 v3, 3, v1")
        for e in range(2):
            a(f"s_lshl_b32 s72, {sWV}, 4\ns_add_u32 s72, s72, {8*e}\nv_add_u32 v6, s72, v3")
            a(f"v_bfe_u32 v7, v6, 1, 3\nv_and_b32 v5, 7, v1\nv_xor_b32 v5, v5, v7\nv_lshlrev_b32 v6, 10, v6\nv_lshl_add_u32 v{10+e}, v5, 4, v6")

    def q_addr(self):
        self.q_addr_w()
        self.q_addr_x()
        self.w_dma_setup()

    def q_addr2(self):
        a = self.a
        a(f"v_and_b32 v3, 31, v1\ns_lshl_b32 s72, {sTB}, 5\nv_add_u32 v3, s72, v3\nv_bfe_u32 v4, v3, 1, 3\nv_lshrrev_b32 v5, 5, v1")
        for k in range(4):
            a(f"s_xor_b32 s72, {sB}, {k}\ns_lshl_b32 s72, s72, 1\nv_add_u32 v6, s72, v5\nv_xor_b32 v6, v6, v4")
            a(f"v_lshlrev_b32 v6, 4, v6\nv_lshl_add_u32 v{13+k}, v3, 7, v6")
        a("v_and_b32 v3, 15, v1\nv_lshrrev_b32 v4, 2, v3\nv_lshrrev_b32 v5, 5, v1\nv_lshl_add_u32 v4, v5, 3, v4")
        a(f"v_bfe_u32 v5, v1, 4, 1\nv_lshlrev_b32 v5, 1, v5\nv_bfe_u32 v6, v1, 1, 1\nv_add_u32 v5, v5, v6")
        a(f"s_lshl_b32 s72, {sP}, 2\nv_add_u32 v5, s72, v5\nv_bfe_u32 v6, v1, 3, 1\nv_lshlrev_b32 v6, 2, v6\nv_xor_b32 v5, v5, v6")
        a("v_lshlrev_b32 v5, 4, v5\nv_lshl_add_u32 v5, v4, 7, v5\nv_and_b32 v6, 1, v1\nv_lshl_add_u32 v5, v6, 3, v5")
        for e in range(2):
            a(f"s_xor_b32 s72, {sB}, {e}\ns_lshl_b32 s72, s72, 11\ns_add_u32 s72, s72, {L_RING}")
            a(f"v_add_u32 v{17+e}, s72, v5\nv_add_u32 v{19+e}, 49152, v{17+e}")
        a("v_mov_b32 v21, 0\nv_mov_b32 v24, 0\nv_mov_b32 v25, 0")
        a("s_mov_b32 s74, 0x3f803f80")
        a(f"s_lshl_b32 s72, {sL}, 5\ns_add_u32 s72, s72, {sR}\ns_lshl_b32 s75, s72, 13\ns_add_u32 s75, s75, {WS_ST2}")
        a(f"v_and_b32 v3, 31, v1\ns_lshl_b32 s72, {sTB}, 5\nv_add_u32 v3, s72, v3\nv_lshlrev_b32 v3, 4, v3\nv_lshrrev_b32 v4, 5, v1\nv_lshl_add_u32 v61, v4, 12, v3")

    def x_dma(self, kc):
        a = self.a
        for e in range(2):
            a(f"s_add_u32 m0, s77, {L_X + kc*8192 + e*1024}\ns_add_u32 s72, s76, {kc*128}")
            a(f"buffer_load_dwordx4 v{10+e}, {SRD_X}, s72 offen sc1 lds", tag=f"X{kc}")

    def q_entry(self, layer):
        a = self.a
        a.c(f"======== QKV phase entry, layer {layer}")
        if layer == 0:
            self.q_addr()
        else:
            self.q_addr_x()
        a(f"s_lshl_b32 s76, {sR}, 16\ns_lshl_b32 s77, {sWV}, 11")
        if layer == 0:
            for s_ in range(5):
                self.w_dma(s_)
                self.x_dma(s_)
            for kc in range(5, 8):
                self.x_dma(kc)
            self.stamp(0)
            self.prologue_tail()
            self.q_addr2()
            self.stamp(1)
        else:
            self.q_addr2()
            a(f"v_mov_b32 v8, {sR}")
            a(f"v_and_b32 v9, 3, v8\nv_lshlrev_b32 v9, 3, v9\nv_add_u32 v9, v1, v9\nv_lshlrev_b32 v9, 3, v9")
            a(f"v_lshrrev_b32 v7, 2, v8\nv_add_u32 v9, v9, v7")
            a(f"v_lshlrev_b32 v9, 7, v9\nv_add_u32 v9, {WS_FLAG + PH_X*2*256*128}, v9")
            self.stamp(0)
            a.wait_tag("Xst")
            a(f"s_mov_b32 {sL}, 0")
            self.publish(PH_X, local=True)
            a(f"s_mov_b32 {sL}, 1")
            self.stat_loads()
            a("v_mov_b32 v30, v9")
            self.ln_init()
            self.poll("v30", "0xff")
            self.stamp(1)
            for kc in range(8):
                self.x_dma(kc)

    XF, WF, AK, AV, AQ = 64, 32, 192, 208, 224

    def row_stats(self):
        a = self.a
        top, ok = self.lab("s2p"), self.lab("s2o")
        a(f"s_mov_b32 {sCNT}, 0")
        a.label(top, reset=False)
        a(f"v_cmp_ne_u64 vcc, {sNP}, v[242:243]")
        for k in range(1, 4):
            a(f"v_cmp_ne_u64 s[72:73], {sNP}, v[{242+4*k}:{243+4*k}]\ns_or_b64 vcc, vcc, s[72:73]")
        a(f"s_cbranch_vccz {ok}")
        with a.cond(top):
            self.stat_loads()
            a("s_waitcnt vmcnt(0)")
            a(f"s_add_u32 {sCNT}, {sCNT}, 1\ns_cmp_lt_u32 {sCNT}, {POLL_LIMIT}\ns_cbranch_scc1 {top}\ns_branch L_fail")
        a.label(ok, reset=False)
        a("v_add_f32 v26, v240, v244\nv_add_f32 v27, v241, v245\nv_add_f32 v28, v248, v252\nv_add_f32 v29, v249, v253")
        a("v_add_f32 v26, v26, v28\nv_add_f32 v27, v27, v29\nv_mov_b32 v28, v26\nv_mov_b32 v29, v27")
        a("v_permlane32_swap_b32 v26, v28\nv_permlane32_swap_b32 v27, v29\nv_add_f32 v26, v26, v28\nv_add_f32 v27, v27, v29")
        a(f"v_mul_f32 v26, {f32(1/512)}, v26\nv_mul_f32 v27, {f32(1/512)}, v27")
        a(f"v_fma_f32 v27, -v26, v26, v27\nv_max_f32 v27, 0, v27\nv_add_f32 v27, {f32(1e-5)}, v27\nv_rsq_f32 v27, v27")

    def ln_init(self):
        a = self.a
        AK, AV, AQ = self.AK, self.AV, self.AQ
        a("v_and_b32 v3, 31, v1\nv_lshrrev_b32 v5, 5, v1")
        a(f"s_mul_i32 s73, {sP}, 768\ns_add_u32 s73, s73, {L_CP}")
        a("v_lshl_add_u32 v56, v5, 4, s73\nv_lshl_add_u32 v57, v3, 2, s73")
        for part, dst in ((0, AK), (384, 32), (256, AQ), (384 + 256, AV)):
            for q in range(4):
                a(f"ds_read_b128 v[{dst+4*q}:{dst+4*q+3}], v56 offset:{part + 32*q}")
        a("ds_read_b32 v58, v57 offset:128\nds_read_b32 v59, v57 offset:512")
        self.row_stats()
        a(f"s_lshl_b32 s72, {sWV}, 8\ns_add_u32 s72, s72, {L_MR}\nv_lshl_add_u32 v4, v3, 2, s72")
        a("ds_write_b32 v4, v26\nds_write_b32 v4, v27 offset:128")
        a("v_lshl_add_u32 v60, v5, 4, s72")
        for i in range(16):
            a(f"v_add_f32 v{AK+i}, v{AK+i}, v{32+i}\nv_add_f32 v{AQ+i}, v{AQ+i}, v{AV+i}")
        a("v_add_f32 v58, v58, v59\ns_waitcnt lgkmcnt(0)")
        for q in range(4):
            a(f"ds_read_b128 v[{AV+4*q}:{AV+4*q+3}], v60 offset:{32*q}")
        for i in range(16):
            a(f"v_mul_f32 v{AK+i}, -v26, v{AK+i}\nv_mul_f32 v{AQ+i}, -v26, v{AQ+i}")
        for i in range(16):
            a(f"v_mul_f32 v{AV+i}, -v58, v{AV+i}")

    def waddr(self, s, e):
        slot = s % 5
        return (f"v{17+e}", slot * 16384) if slot < 3 else (f"v{19+e}", (slot - 3) * 16384)

    def stage_sync(self, s):
        a = self.a
        a.wait_tag(f"W{s}", f"X{s}") if s < 8 else a.wait_tag(f"W{s}")
        a("s_barrier")

    def stat_loads(self):
        for k in range(4):
            self.a(f"buffer_load_dwordx4 v[{240+4*k}:{243+4*k}], v61, {SRD_WS}, s75 offen offset:{k*1024} sc1")

    def kv_pass(self, first):
        a = self.a
        XF, WF, AK, AV = self.XF, self.WF, self.AK, self.AV
        a.c("======== K/V projection" + (" (layer 0)" if first else " (layer 1)"))

        def reads_kv(n, part=None):
            s, k = n >> 2, n & 3
            reg, off = self.waddr(s, k & 1)
            wf = WF + (n % 3) * 8
            for pt in range(2):
                if part is not None and pt != part:
                    continue
                if pt == 0:
                    a(f"ds_read_b128 v[{XF+4*n}:{XF+4*n+3}], v{13+k} offset:{L_X + s*8192}")
                for rd in range(2):
                    a(f"ds_read_b64_tr_b16 v[{wf+4*pt+2*rd}:{wf+4*pt+2*rd+1}], {reg} offset:{off + pt*8192 + (k >> 1)*4096 + rd*512}")
        self.w_dma_setup()
        self.stamp(20)
        self.stage_sync(0)
        self.stamp(21)
        reads_kv(0); reads_kv(1)
        for n in range(32):
            wf = WF + (n % 3) * 8
            x = f"v[{XF+4*n}:{XF+4*n+3}]"
            ck = "0" if n == 0 and first else f"v[{AK}:{AK+15}]"
            cv = "0" if n == 0 and first else f"v[{AV}:{AV+15}]"
            a(f"v_mfma_f32_32x32x16_bf16 v[{AK}:{AK+15}], v[{wf}:{wf+3}], {x}, {ck}")
            if n + 2 < 32:
                if (n + 2) % 4 == 0:
                    self.stage_sync((n + 2) >> 2)
                reads_kv(n + 2, 0)
            a(f"v_mfma_f32_32x32x16_bf16 v[{AV}:{AV+15}], {x}, v[{wf+4}:{wf+7}], {cv}")
            if n + 2 < 32:
                reads_kv(n + 2, 1)
            sfree = (n + 2) >> 2
            if n >= 6 and sfree + 3 < 11:
                self.w_dma(sfree + 3, only=(n + 2) & 3)
            if n == 24 and first:
                self.stat_loads()
            if n == 28 and not first:
                for q in range(4):
                    a(f"ds_read_b128 v[{240+4*q}:{243+4*q}], v60 offset:{128 + 32*q}")
            if first and n % 2 == 0:
                for i in range(4):
                    a(f"v_dot2c_f32_bf16 v24, s74, v{wf+i}\nv_dot2c_f32_bf16 v25, s74, v{wf+4+i}")

    def k_store(self):
        a = self.a
        AK = self.AK
        a(f"s_lshl_b32 s75, {sCQ}, 1\ns_add_u32 s75, s75, {sP}\ns_lshl_b32 s75, s75, 6\ns_lshl_b32 s76, {sR}, 1\ns_add_u32 s75, s75, s76")
        a(f"s_add_u32 s75, s75, {sTB}\ns_lshl_b32 s75, s75, 12\ns_lshl_b32 s76, {sL}, 22\ns_add_u32 s75, s75, s76\ns_add_u32 s75, s75, {WS_KV}")
        a(f"buffer_store_dwordx4 v[{AK}:{AK+3}], v2, {SRD_WS}, s75 offen sc1", tag="KVst")
        a(f"buffer_store_dwordx4 v[{AK+4}:{AK+7}], v2, {SRD_WS}, s75 offen offset:2048 sc1", tag="KVst")

    def v_store(self):
        a = self.a
        AV = self.AV
        a("v_bfe_u32 v3, v1, 4, 1\nv_lshlrev_b32 v3, 11, v3\nv_lshrrev_b32 v5, 5, v1\nv_lshl_add_u32 v3, v5, 8, v3")
        a("v_and_b32 v5, 15, v1\nv_lshl_add_u32 v3, v5, 4, v3")
        a(f"buffer_store_dwordx4 v[{AV}:{AV+3}], v3, {SRD_WS}, s75 offen offset:1024 sc1", tag="KVst")
        a(f"buffer_store_dwordx4 v[{AV+4}:{AV+7}], v3, {SRD_WS}, s75 offen offset:1536 sc1", tag="KVst")

    def kv_epilogue_l1(self):
        a = self.a
        AK, AV = self.AK, self.AV
        self.stamp(2)
        for i in range(16):
            a(f"v_mul_f32 v{AK+i}, v27, v{AK+i}")
        for k in range(8):
            a(f"v_cvt_pk_bf16_f32 v{AK+k}, v{AK+2*k}, v{AK+2*k+1}")
        self.k_store()
        for i in range(16):
            a(f"v_mul_f32 v{AV+i}, v{240+i}, v{AV+i}")
        for k in range(8):
            a(f"v_cvt_pk_bf16_f32 v{AV+k}, v{AV+2*k}, v{AV+2*k+1}")
        self.v_store()

    def q_phase(self, layer):
        a = self.a
        first = layer == 0
        XF, WF, AK, AV, AQ = self.XF, self.WF, self.AK, self.AV, self.AQ
        waddr, stage_sync = self.waddr, self.stage_sync
        if first:
            self.stamp(2)
            a("v_and_b32 v3, 31, v1")
            a(f"s_lshl_b32 s72, {sP}, 1\ns_add_u32 s72, s72, {sTB}\ns_mul_i32 s72, s72, 384\ns_add_u32 s72, s72, {L_CP}")
            a("v_lshl_add_u32 v9, v3, 2, s72")
            a("v_mov_b32 v26, v24\nv_mov_b32 v27, v25\nv_permlane32_swap_b32 v24, v26\nv_permlane32_swap_b32 v25, v27")
            a("v_add_f32 v24, v24, v26\nv_add_f32 v25, v25, v27")
            a("ds_write_b32 v9, v24\nds_write_b32 v9, v25 offset:128")
            a("s_waitcnt lgkmcnt(0)\ns_barrier")
            self.row_stats()
            a(f"s_mul_i32 s72, {sP}, 768\ns_add_u32 s72, s72, {L_CP}")
            a("v_lshrrev_b32 v5, 5, v1\nv_lshl_add_u32 v56, v5, 4, s72")
            for q in range(4):
                a(f"ds_read_b128 v[{240+4*q}:{243+4*q}], v56 offset:{32*q}")
            for q in range(4):
                a(f"ds_read_b128 v[{32+4*q}:{35+4*q}], v56 offset:{384 + 32*q}")
            a("v_lshl_add_u32 v57, v3, 2, s72\nds_read_b32 v58, v57 offset:128\nds_read_b32 v59, v57 offset:512")
            a(f"s_lshl_b32 s72, {sWV}, 8\ns_add_u32 s72, s72, {L_MR}\nv_lshl_add_u32 v4, v3, 2, s72")
            a("ds_write_b32 v4, v26\nds_write_b32 v4, v27 offset:128")
            for i in range(16):
                a(f"v_add_f32 v{240+i}, v{240+i}, v{32+i}")
            a("v_add_f32 v58, v58, v59")
            a(f"v_lshl_add_u32 v4, v5, 4, s72")
            a("s_waitcnt lgkmcnt(0)")
            for q in range(4):
                a(f"ds_read_b128 v[{32+4*q}:{35+4*q}], v4 offset:{32*q}")
            for q in range(2):
                a(f"ds_read_b128 v[{48+4*q}:{51+4*q}], v4 offset:{128 + 32*q}")
            for i in range(16):
                a(f"v_fma_f32 v{AK+i}, -v26, v{240+i}, v{AK+i}")
            for i in range(16):
                a(f"v_mul_f32 v{AK+i}, v27, v{AK+i}")
            for k in range(8):
                a(f"v_cvt_pk_bf16_f32 v{AK+k}, v{AK+2*k}, v{AK+2*k+1}")
            self.k_store()
            for q in range(2, 4):
                a(f"ds_read_b128 v[{240+4*q}:{243+4*q}], v4 offset:{128 + 32*q}")
            rs = lambda i: (48 + i) if i < 8 else (240 + i)
            for i in range(16):
                a(f"v_fma_f32 v{AV+i}, -v{32+i}, v58, v{AV+i}")
            for i in range(16):
                a(f"v_mul_f32 v{AV+i}, v{rs(i)}, v{AV+i}")
            for k in range(8):
                a(f"v_cvt_pk_bf16_f32 v{AV+k}, v{AV+2*k}, v{AV+2*k+1}")
            self.v_store()
        else:
            self.kv_epilogue_l1()
        self.stamp(3)

        def reads_q(n):
            s, k = 8 + (n >> 3), n & 7
            reg, off = waddr(s, k & 1)
            wf = WF + (n % 3) * 8
            for rd in range(2):
                a(f"ds_read_b64_tr_b16 v[{wf+2*rd}:{wf+2*rd+1}], {reg} offset:{off + (k >> 1)*4096 + rd*512}")
        self.w_dma_setup()
        stage_sync(8)
        reads_q(0); reads_q(1)
        for n in range(32):
            wf = WF + (n % 3) * 8
            cq = "0" if n == 0 and first else f"v[{AQ}:{AQ+15}]"
            a(f"v_mfma_f32_32x32x16_bf16 v[{AQ}:{AQ+15}], v[{wf}:{wf+3}], v[{XF+4*n}:{XF+4*n+3}], {cq}")
            if n + 2 < 32:
                if (n + 2) % 8 == 0:
                    last = (n + 2) == 24
                    if last:
                        a.wait_tag("KVst")
                    stage_sync(8 + ((n + 2) >> 3))
                    if last:
                        self.flag_store(PH_KV)
                reads_q(n + 2)
            if n < 4:
                self.w_dma(11, only=n)
            if n == 4 and first and "wuD" in OPT:
                self.mix_warmup("v22", "v23", tmp="s77")
            if n == 4 and first and "wuD2" in OPT:
                self.mix_warmup(None, "v23", tmp="s77")
            if first and n % 2 == 0:
                for i in range(4):
                    a(f"v_dot2c_f32_bf16 v21, s74, v{wf+i}")
        if first:
            a("v_mov_b32 v28, v21\nv_permlane32_swap_b32 v21, v28\nv_add_f32 v21, v21, v28")
            a("ds_write_b32 v9, v21 offset:256")
        a("s_waitcnt lgkmcnt(0)\ns_barrier")
        self.stamp(4)
        if first:
            for q in range(4):
                a(f"ds_read_b128 v[{240+4*q}:{243+4*q}], v56 offset:{256 + 32*q}")
            for q in range(4):
                a(f"ds_read_b128 v[{32+4*q}:{35+4*q}], v56 offset:{384 + 256 + 32*q}")
            for i in range(16):
                a(f"v_add_f32 v{240+i}, v{240+i}, v{32+i}")
            for i in range(16):
                a(f"v_fma_f32 v{AQ+i}, -v26, v{240+i}, v{AQ+i}")
        a(f"v_mul_f32 v27, {f32(0.25*LOG2E)}, v27")
        for i in range(16):
            a(f"v_mul_f32 v{AQ+i}, v27, v{AQ+i}")
        for k in range(8):
            a(f"v_cvt_pk_bf16_f32 v{AQ+k}, v{AQ+2*k}, v{AQ+2*k+1}")

    def wo_dma(self):
        a = self.a
        a("v_lshrrev_b32 v3, 3, v1\nv_lshlrev_b32 v3, 10, v3\nv_bfe_u32 v4, v1, 1, 2\nv_bfe_u32 v5, v1, 4, 2\nv_xor_b32 v4, v4, v5")
        a("v_lshlrev_b32 v4, 1, v4\nv_and_b32 v5, 1, v1\nv_add_u32 v4, v4, v5\nv_lshl_add_u32 v19, v4, 4, v3")
        a(f"s_lshl_b32 s78, {sWV}, 17\ns_lshl_b32 s73, {sCQ}, 7\ns_add_u32 s78, s78, s73\ns_lshl_b32 s79, {sWV}, 14")

        def one(n):
            return (f"s_add_u32 m0, s79, {L_X + n*1024}\ns_add_u32 s72, s78, {n*8192}\n"
                    f"buffer_load_dwordx4 v19, {SRD_WO}, s72 offen lds")
        return one

    def build(self):
        a = self.a
        self.prologue()
        from gen2 import rest, finish
        for layer in range(2):
            self.layer = layer
            if layer == 1:
                a.label("L_layer1", reset=False)
            self.q_entry(layer)
            self.kv_pass(layer == 0)
            self.q_phase(layer)
            if self.stop("q") or rest(self):
                break
        finish(self)
        a.label("L_fail", reset=False)
        self.srd(32, P_DBG, 256)
        a("v_mov_b32 v4, 0xdead\nv_mov_b32 v5, 0\ns_mov_b64 exec, 1")
        a(f"buffer_store_dword v4, v5, {SRD_T}, 0 offen")
        a.label("L_end", reset=False)
        a("s_endpgm")
        a.label("L_code_end", reset=False)
        body = a.finalize()
        head = open("interleave_layers__sliding_block__mixer_token_mlp__prompt.s.ref").read().split("\n")
        hdr = [l for l in head if l.startswith(";") and "@launch" not in l and "Override launch" not in l and "grid=ceil" not in l]
        hdr = hdr[:hdr.index(next(l for l in hdr if "d_ws" in l)) + 1]
        out = "\n".join(hdr) + f"\n; @launch grid=(256,1,1) block=(256,1,1) lds={LDS_SIZE}\n"
        out += '.amdgcn_target "amdgcn-amd-amdhsa--gfx950"\n.text\n'
        out += f".globl {KNAME}\n.p2align 8\n.type {KNAME},@function\n{KNAME}:\n"
        out += body
        out += f'''.section .rodata,"a"
.p2align 6
.amdhsa_kernel {KNAME}
  .amdhsa_next_free_vgpr 512
  .amdhsa_next_free_sgpr 102
  .amdhsa_accum_offset 256
  .amdhsa_group_segment_fixed_size 0
  .amdhsa_kernarg_size 88
  .amdhsa_user_sgpr_count 2
  .amdhsa_user_sgpr_kernarg_segment_ptr 1
  .amdhsa_system_sgpr_workgroup_id_x 1
.end_amdhsa_kernel
'''
        return out


if __name__ == "__main__":
    import argparse
    ap = argparse.ArgumentParser()
    ap.add_argument("--stop", default=None)
    ap.add_argument("--diag", action="store_true")
    ap.add_argument("-o", default="interleave_layers__sliding_block__mixer_token_mlp__prompt.s")
    args = ap.parse_args()
    g = Gen(stop_after=args.stop, diag=args.diag)
    src = g.build()
    open(args.o, "w").write(src)
    print("written", args.o, g.a.stats, "bytes", len(src))
```

```python
import re

REG_RE = re.compile(r"^(-|\|)?(abs\()?([vas])(\d+)\)?\|?$")
RANGE_RE = re.compile(r"^(-)?([vas])\[(\d+):(\d+)\]$")


def parse_regs(tok):
    tok = tok.strip()
    m = RANGE_RE.match(tok)
    if m:
        return [(m.group(2), i) for i in range(int(m.group(3)), int(m.group(4)) + 1)]
    m = REG_RE.match(tok)
    if m:
        return [(m.group(3), int(m.group(4)))]
    if tok == "vcc":
        return [("s", "vcc_lo"), ("s", "vcc_hi")]
    if tok in ("vcc_lo", "vcc_hi"):
        return [("s", tok)]
    if tok == "exec":
        return [("s", "exec_lo"), ("s", "exec_hi")]
    if tok in ("exec_lo", "exec_hi"):
        return [("s", tok)]
    if tok == "m0":
        return [("s", "m0")]
    return []


def split_ops(rest):
    toks, depth, cur = [], 0, ""
    for ch in rest:
        if ch in "[(":
            depth += 1
        elif ch in "])":
            depth -= 1
        if ch == "," and depth == 0:
            toks.append(cur.strip()); cur = ""
        else:
            cur += ch
    toks.append(cur.strip())
    return toks


TRANS = ("v_exp_f32", "v_log_f32", "v_rcp_f32", "v_rsq_f32", "v_sqrt_f32", "v_sin_f32", "v_cos_f32",
         "v_rcp_iflag_f32")
RMW = ("v_fmac_f32", "v_dot2c_f32_bf16", "v_pk_fmac_f16", "v_fmac_f16")


class Ins:
    __slots__ = ("text", "op", "ops", "mods", "kind", "rd", "wr", "passes", "srcc", "srcab", "cnt", "lds_dma",
                 "wide_store", "dpp", "comment")

    def __init__(self, text):
        self.text = text
        body = text.split(";")[0].strip()
        parts = body.split(None, 1)
        self.op = parts[0]
        rest = parts[1] if len(parts) > 1 else ""
        toks = split_ops(rest) if rest else []
        self.mods = []
        if toks:
            last = toks[-1].split()
            toks[-1] = last[0] if last else ""
            self.mods = last[1:]
        self.ops = toks
        self.rd, self.wr = set(), set()
        self.kind = "other"
        self.passes = 0
        self.srcc, self.srcab = set(), set()
        self.cnt = None
        self.lds_dma = False
        self.wide_store = False
        self.dpp = False
        self._classify()

    def R(self, i):
        return set(parse_regs(self.ops[i])) if i < len(self.ops) else set()

    def _classify(self):
        op, n = self.op, len(self.ops)
        op = re.sub(r"_(e32|e64|dpp|sdwa)$", "", op)
        if self.op.endswith("_dpp") or any(m.startswith(("quad_perm", "row_", "wave_")) for m in self.mods):
            self.dpp = True
        if op.startswith("v_mfma"):
            self.kind = "mfma"
            self.passes = 8 if "32x32" in op else 4
            self.wr = self.R(0)
            self.srcab = self.R(1) | self.R(2)
            self.srcc = self.R(3)
            self.rd = self.srcab | self.srcc
        elif op.startswith("v_"):
            self.kind = "valu"
            if op.startswith("v_cmp"):
                self.wr = self.R(0)
                for i in range(1, n):
                    self.rd |= self.R(i)
            elif op.startswith("v_permlane") and "swap" in op:
                self.wr = self.R(0) | self.R(1)
                self.rd = set(self.wr)
            elif op in ("v_add_co_u32", "v_sub_co_u32", "v_subrev_co_u32"):
                self.wr = self.R(0) | self.R(1)
                for i in range(2, n):
                    self.rd |= self.R(i)
            elif op in ("v_addc_co_u32", "v_subb_co_u32"):
                self.wr = self.R(0) | self.R(1)
                for i in range(2, n):
                    self.rd |= self.R(i)
            else:
                self.wr = self.R(0)
                for i in range(1, n):
                    self.rd |= self.R(i)
                if op in RMW or op == "v_writelane_b32":
                    self.rd |= self.R(0)
                if op == "v_cndmask_b32" and n == 3:
                    self.rd |= set(parse_regs("vcc"))
            if self.dpp:
                self.rd |= self.R(0)
        elif op.startswith("ds_"):
            self.kind = "ds"
            self.cnt = "lgkm"
            if op.startswith(("ds_read", "ds_bpermute", "ds_permute", "ds_swizzle")):
                self.wr = self.R(0)
                for i in range(1, n):
                    self.rd |= self.R(i)
            else:
                for i in range(n):
                    self.rd |= self.R(i)
        elif op.startswith("buffer_"):
            self.kind = "vmem"
            self.cnt = "vm"
            if "lds" in self.mods:
                self.lds_dma = True
                for i in range(n):
                    self.rd |= self.R(i)
                self.rd.add(("s", "m0"))
            elif op.startswith("buffer_load"):
                self.wr = self.R(0)
                for i in range(1, n):
                    self.rd |= self.R(i)
            else:
                for i in range(n):
                    self.rd |= self.R(i)
                if op.startswith("buffer_atomic") and "sc0" in self.mods:
                    self.wr = self.R(0)
                self.wide_store = op.endswith(("x3", "x4"))
        elif op.startswith("s_"):
            self.kind = "salu"
            if op.startswith(("s_load", "s_memtime", "s_memrealtime")):
                self.kind = "smem"
                self.cnt = "smem"
                self.wr = self.R(0)
                for i in range(1, n):
                    self.rd |= self.R(i)
            elif op.startswith(("s_cmp", "s_bitcmp")):
                for i in range(n):
                    self.rd |= self.R(i)
            elif op.startswith(("s_cbranch", "s_branch", "s_waitcnt", "s_barrier", "s_nop", "s_endpgm", "s_sleep",
                                "s_setprio")):
                self.kind = "ctl"
                if op == "s_cbranch_vccz" or op == "s_cbranch_vccnz":
                    self.rd = set(parse_regs("vcc"))
                if op.startswith("s_cbranch_exec"):
                    self.rd = set(parse_regs("exec"))
            elif "saveexec" in op:
                self.wr = self.R(0) | set(parse_regs("exec"))
                self.rd = self.R(1) | set(parse_regs("exec"))
            else:
                self.wr = self.R(0)
                for i in range(1, n):
                    self.rd |= self.R(i)
                if op in ("s_addk_i32", "s_mulk_i32"):
                    self.rd |= self.R(0)
        else:
            raise ValueError("unknown instruction: " + self.text)


def vreg(s):
    return {r for r in s if r[0] in "va"}


def sreg(s):
    return {r for r in s if r[0] == "s"}


class Asm:
    def __init__(self):
        self.items = []
        self.ctx = ()

    def __call__(self, text, tag=None):
        for line in text.split("\n"):
            line = line.strip()
            if not line:
                continue
            if line.startswith(";"):
                self.items.append(("c", line))
            else:
                self.items.append(("i", line, tag, self.ctx))

    def cond(self, name):
        outer = self

        class _C:
            def __enter__(s_):
                s_.old = outer.ctx
                outer.ctx = outer.ctx + (name,)
                outer.items.append(("cin", name))

            def __exit__(s_, *e):
                outer.ctx = s_.old
                outer.items.append(("cout", name))
        return _C()

    def uncond(self, text, tag=None):
        old, self.ctx = self.ctx, ()
        self(text, tag)
        self.ctx = old

    def wait_tag(self, *tags, emit=True):
        self.items.append(("w", tags, self.ctx, emit))

    def c(self, text):
        self.items.append(("c", "; " + text))

    def label(self, name, reset=True):
        self.items.append(("l", name, reset))

    def raw(self, text):
        self.items.append(("raw", text))

    def fork(self):
        self.items.append(("fork",))

    def alt(self):
        self.items.append(("alt",))

    def endfork(self):
        self.items.append(("endfork",))

    def note_vm(self):
        self.items.append(("notevm", self.ctx))

    def dropfork(self):
        self.items.append(("dropfork",))

    def snap(self, name):
        self.items.append(("snap", name))

    def restore(self, name):
        self.items.append(("restore", name))

    def capture(self, fn):
        n = len(self.items)
        fn()
        got = self.items[n:]
        del self.items[n:]
        return got

    def weave(self, groups, filler):
        for it in filler:
            assert it[0] in ("i", "c", "cin", "cout"), it
            if it[0] == "i":
                assert "exec" not in it[1] and not it[1].startswith(("s_cbranch", "s_branch", "s_barrier")), it[1]
        uses_scc = lambda it: it[0] == "i" and it[1].startswith(("s_addc", "s_subb", "s_cselect", "s_cmov"))
        per = -(-len(filler) // max(len(groups), 1))
        k = 0
        for gr in groups:
            self.items += gr
            e = min(k + per, len(filler))
            while e < len(filler) and uses_scc(filler[e]):
                e += 1
            self.items += filler[k:e]
            k = e
        self.items += filler[k:]

    def assume_clean(self):
        self.items.append(("reset",))

    def finalize(self, check_only=False):
        out = []
        hist = []
        pos = 0
        vm, lg = [], []
        smem = set()
        nnop = nwait = 0
        forks = []
        conds = []
        snaps = {}

        def emit(text):
            out.append("  " + text)

        def last_gap(pred):
            for (p, ins) in reversed(hist):
                if pos - p > 24:
                    break
                if pred(ins):
                    return pos - p - 1
            return None

        def trim(lst, nkeep, ctx):
            if nkeep == 0:
                return []
            seen = 0
            for i in range(len(lst) - 1, -1, -1):
                if set(lst[i][2]) <= set(ctx):
                    seen += 1
                    if seen > nkeep:
                        return lst[i + 1:]
            return lst

        def younger(lst, i, ctx):
            return sum(1 for e in lst[i + 1:] if set(e[2]) <= set(ctx))

        for it in self.items:
            if it[0] == "w":
                idx = [i for i, e in enumerate(vm) if e[1] in it[1]]
                if idx:
                    i = idx[-1]
                    n = min(younger(vm, i, it[2]), 63)
                    if it[3]:
                        t = f"s_waitcnt vmcnt({n})"
                        emit(t); hist.append((pos, Ins(t))); pos += 1
                    vm = vm[i + 1:]
                continue
            if it[0] == "snap":
                snaps[it[1]] = (list(vm), list(lg), set(smem)); continue
            if it[0] == "restore":
                vm, lg, smem = list(snaps[it[1]][0]), list(snaps[it[1]][1]), set(snaps[it[1]][2]); continue
            if it[0] == "dropfork":
                forks.pop(); continue
            if it[0] == "notevm":
                vm.append((set(), None, it[1])); continue
            if it[0] == "cin":
                conds.append((list(vm), list(lg), set(smem))); continue
            if it[0] == "cout":
                v0, l0, s0 = conds.pop()
                ids = {id(e) for e in vm}
                vm = [e for e in v0 if id(e) not in ids and it[1] not in e[2]] + vm
                ids = {id(e) for e in lg}
                lg = [e for e in l0 if id(e) not in ids and it[1] not in e[2]] + lg
                smem |= s0
                continue
            if it[0] == "fork":
                forks.append((list(vm), list(lg), set(smem), list(hist))); continue
            if it[0] == "alt":
                s0 = forks.pop()
                forks.append((list(vm), list(lg), set(smem), list(hist)))
                vm, lg, smem = list(s0[0]), list(s0[1]), set(s0[2])
                continue
            if it[0] == "endfork":
                sa = forks.pop()
                vm, lg, smem = list(sa[0]), list(sa[1]) if len(sa[1]) >= len(lg) else lg, set(sa[2]) | smem
                continue
            if it[0] == "c":
                out.append(it[1]); continue
            if it[0] == "raw":
                out.append(it[1]); continue
            if it[0] == "reset":
                vm, lg, smem = [], [], set(); continue
            if it[0] == "l":
                out.append(it[1] + ":")
                if it[2]:
                    pend = [e[0] for e in vm if e[0]] + [e[0] for e in lg if e[0]]
                    if pend or smem:
                        raise RuntimeError(f"label {it[1]}: register loads still outstanding: {pend} {smem}")
                    vm = []
                    lg = []
                continue
            ins = Ins(it[1])
            op = ins.op
            ctx = it[3]
            if op == "s_waitcnt":
                t = ins.text
                m = re.search(r"vmcnt\((\d+)\)", t)
                if m:
                    vm = trim(vm, int(m.group(1)), ctx)
                m = re.search(r"lgkmcnt\((\d+)\)", t)
                if m:
                    nkeep = int(m.group(1))
                    if nkeep == 0:
                        lg = []; smem = set()
                    elif not smem:
                        lg = trim(lg, nkeep, ctx)
                emit(t); hist.append((pos, ins)); pos += 1
                continue
            touched = ins.rd | ins.wr
            iv = [i for i, e in enumerate(vm) if e[0] & touched]
            il = [i for i, e in enumerate(lg) if e[0] & touched]
            w = []
            if iv:
                n = min(younger(vm, iv[-1], ctx), 63)
                w.append(f"vmcnt({n})")
                vm = vm[iv[-1] + 1:]
            if (smem & touched) or (il and smem):
                w.append("lgkmcnt(0)")
                lg = []; smem = set()
            elif il:
                n = min(younger(lg, il[-1], ctx), 15)
                w.append(f"lgkmcnt({n})")
                lg = lg[il[-1] + 1:]
            if w:
                t = "s_waitcnt " + " ".join(w)
                emit(t); hist.append((pos, Ins(t))); pos += 1; nwait += 1
            need = 0

            def req(n, pred):
                nonlocal need
                g = last_gap(pred)
                if g is not None and g < n:
                    need = max(need, n - g)

            rv, wv = vreg(ins.rd), vreg(ins.wr)
            rs = sreg(ins.rd)
            if ins.kind == "mfma":
                req(2, lambda p: p.kind == "valu" and vreg(p.wr) & rv)
                req(8, lambda p: p.kind == "mfma" and p.passes == 4 and p.wr & ins.srcab)
                req(12, lambda p: p.kind == "mfma" and p.passes == 8 and p.wr & ins.srcab)
                for ps, n in ((4, 6), (8, 10)):
                    req(n, lambda p, ps=ps: p.kind == "mfma" and p.passes == ps and (p.wr & ins.srcc)
                        and not (p.wr == ins.srcc and p.passes == ins.passes))
                for ps, n in ((4, 6), (8, 10)):
                    req(n, lambda p, ps=ps: p.kind == "mfma" and p.passes == ps and (p.wr & ins.wr)
                        and not (p.wr == ins.wr and p.wr == ins.srcc and p.passes == ins.passes))
            if ins.kind in ("valu", "ds", "vmem"):
                tv = rv | wv
                req(8, lambda p: p.kind == "mfma" and p.passes == 4 and p.wr & tv)
                req(12, lambda p: p.kind == "mfma" and p.passes == 8 and p.wr & tv)
            if ins.kind == "valu":
                req(3, lambda p: p.kind == "mfma" and p.passes == 4 and p.srcc & wv)
                req(7, lambda p: p.kind == "mfma" and p.passes == 8 and p.srcc & wv)
                base = re.sub(r"_(e32|e64)$", "", op)
                if base not in TRANS:
                    req(1, lambda p: p.kind == "valu" and re.sub(r"_(e32|e64)$", "", p.op) in TRANS and p.wr & (rv | wv))
                if "permlane" in op:
                    req(2, lambda p: p.kind == "valu" and vreg(p.wr) & rv)
                if op.startswith(("v_readfirstlane", "v_readlane")):
                    req(1, lambda p: p.kind == "valu" and vreg(p.wr) & rv)
                if op.startswith(("v_readlane", "v_writelane")):
                    req(4, lambda p: p.kind == "valu" and sreg(p.wr) & rs)
                req(2, lambda p: p.kind == "valu" and sreg(p.wr) & rs)
                if ins.dpp:
                    req(2, lambda p: p.kind == "valu" and vreg(p.wr) & rv)
                req(2, lambda p: p.kind == "vmem" and p.wide_store and vreg(p.R(0)) & wv)
            if ins.kind in ("ds", "vmem") and wv:
                req(1, lambda p: p.kind == "vmem" and p.wide_store and vreg(p.R(0)) & wv)
            if ins.kind == "vmem":
                req(5, lambda p: p.kind == "valu" and sreg(p.wr) & rs)
                if ins.lds_dma:
                    req(1, lambda p: p.kind == "salu" and ("s", "m0") in p.wr)
            if ins.kind == "ctl" and op in ("s_cbranch_vccz", "s_cbranch_vccnz"):
                req(1, lambda p: p.kind == "valu" and sreg(p.wr) & set(parse_regs("vcc")))
            while need > 0:
                k = min(need, 16)
                t = f"s_nop {k - 1}"
                emit(t); hist.append((pos, Ins("s_nop 0"))); pos += k; need -= k; nnop += 1
            emit(ins.text)
            hist.append((pos, ins))
            pos += 1
            if op == "s_nop":
                pos += int(ins.ops[0])
            if len(hist) > 64:
                hist = hist[-48:]
            if ins.cnt == "vm":
                vm.append((set(ins.wr), it[2], ctx))
            elif ins.cnt == "lgkm":
                lg.append((set(ins.wr), it[2], ctx))
            elif ins.cnt == "smem":
                smem |= ins.wr
        self.stats = dict(nops=nnop, waits=nwait, lines=len(out))
        return "\n".join(out) + "\n"
```

```python
import math
from gen import *

NEG = f32(-1e30)
import os
OPT = set(os.environ.get("KOPT", "").split(","))
ROT = "rot" in OPT
INB = "inb" in OPT
sHB, sUO, sACC, sREDO = "s36", 37, "s[40:41]", "s42"


def ar(b, n=4):
    return f"a[{b}:{b+n-1}]"


def vr(b, n=4):
    return f"v[{b}:{b+n-1}]"


QA, QB = 224, 228
SBUF = (64, 80, 96, 112)
NEGM = {"A": 128, "B": 144}
OACC = {"A": 160, "B": 176}
PBUF = {"A": 192, "B": 200}
CDIAG, CFAR, ANDD, ANDF = 208, 232, 32, 40
AK0, AV0 = 0, 72
L_KV = L_RING


def kfrag(b):
    return AK0 + b * 4


def vfrag(b, half):
    return AV0 + ((b & 1) * 2 + half) * 4


def attn_setup(g):
    a = g.a
    a.c("======== attention constants")
    a("v_and_b32 v3, 31, v1\nv_lshrrev_b32 v4, 5, v1\nv_lshlrev_b32 v4, 2, v4\nv_sub_u32 v3, v3, v4")
    a(f"v_mov_b32 v48, 0\nv_mov_b32 v49, {NEG}\nv_mov_b32 v50, 0xffff\nv_mov_b32 v51, 0xffff0000")
    for i in range(16):
        ci = (i & 3) + 8 * (i >> 2)
        sp = f"s[{72 + 2*(i % 4)}:{73 + 2*(i % 4)}]"
        a(f"v_cmp_le_i32 {sp}, {ci}, v3")
        a(f"v_mov_b32 v{OACC['A']+i}, 0\nv_mov_b32 v{OACC['B']+i}, 0")
        a(f"v_cndmask_b32 v{CDIAG+i}, v49, v48, {sp}\nv_cndmask_b32 v{CFAR+i}, v48, v49, {sp}")
        a(f"v_cndmask_b32 v{52 + (i & 1)}, v48, v{50 + (i & 1)}, {sp}")
        if i & 1:
            a(f"v_or_b32 v{ANDD + i//2}, v52, v53\nv_not_b32 v{ANDF + i//2}, v{ANDD + i//2}")
    for i in range(8):
        a(f"v_mov_b32 v{PBUF['A']+i}, 0\nv_mov_b32 v{PBUF['B']+i}, 0")
    for k in range(AV0, AV0 + 16):
        a(f"v_accvgpr_write_b32 a{k}, v48")
    a("v_mov_b32 v54, 0x3f803f80\ns_mov_b32 exec_lo, 0x00110000\ns_mov_b32 exec_hi, 0x00110000")
    for k in range(AV0, AV0 + 16):
        a(f"v_accvgpr_write_b32 a{k}, v54")
    a("s_mov_b64 exec, -1")


def warmup_text(srd, dst):
    return (f"s_lshl_b32 s72, s2, 2\ns_add_u32 s72, s72, {sWV}\ns_mul_i32 s73, s72, {43*128}\nv_lshlrev_b32 v7, 7, v1\n"
            f"s_mov_b32 exec_lo, -1\ns_mov_b32 exec_hi, 0x7ff\n"
            f"buffer_load_dword {dst}, v7, {srd}, s73 offen\ns_mov_b64 exec, -1")


def warmup(g, srd, dst):
    g.a(warmup_text(srd, dst))


def team_check(g):
    a = g.a
    top, ok = g.lab("tc"), g.lab("tco")
    a(f"s_lshl_b32 s72, {sR}, 7\ns_add_u32 s72, s72, {WS_XC}\nv_lshlrev_b32 v3, 4, v1\ns_mov_b32 {sCNT}, 0\ns_mov_b64 exec, 0xff")
    a.label(top, reset=False)
    a(f"buffer_load_dwordx4 v[24:27], v3, {SRD_WS}, s72 offen sc1\ns_waitcnt vmcnt(0)")
    a(f"v_cmp_ne_u64 vcc, {sNP}, v[26:27]\ns_cbranch_vccz {ok}")
    a(f"s_add_u32 {sCNT}, {sCNT}, 1\ns_cmp_lt_u32 {sCNT}, {POLL_LIMIT}\ns_cbranch_scc1 {top}\ns_branch L_fail")
    a.label(ok, reset=False)
    a(f"v_cmp_ne_u32 vcc, s1, v24\ns_cmp_eq_u64 vcc, 0\ns_cselect_b32 {sFAST}, 1, 0\ns_mov_b64 exec, -1")


def x2_touch_text():
    return ("v_lshrrev_b32 v6, 3, v0\nv_and_b32 v3, 7, v0\nv_lshlrev_b32 v6, 10, v6\nv_lshl_add_u32 v6, v3, 4, v6\n"
            f"s_lshl_b32 s72, {sR}, 16\ns_lshl_b32 s73, {sCQ}, 7\ns_add_u32 s72, s72, s73\n"
            f"s_add_u32 s73, s72, 32768\n"
            f"buffer_load_dword v23, v6, {SRD_DST}, s72 offen sc1\nbuffer_load_dword v24, v6, {SRD_DST}, s73 offen sc1\n"
            f"s_add_u32 s72, {sR}, 32\ns_lshl_b32 s72, s72, 3\ns_add_u32 s72, s72, {sCQ}\ns_lshl_b32 s72, s72, 10\ns_add_u32 s72, s72, {WS_ST2}\n"
            f"buffer_load_dword v25, v2, {SRD_WS}, s72 offen sc1")


def u_offsets(g, dst):
    a = g.a
    a(f"s_mul_i32 s76, {sWV}, 3\ns_mul_i32 s77, {sC1}, {UC}\ns_lshl_b32 s73, {sL}, 21\ns_add_u32 s77, s77, s73\ns_add_u32 s77, s77, {WS_U}")
    for i in range(3):
        a(f"s_add_u32 s72, s76, {i}\ns_lshr_b32 s73, s72, 1\ns_and_b32 s72, s72, 1")
        a(f"s_mul_i32 s74, {sJ1}, 6\ns_add_u32 s74, s74, s73\ns_lshr_b32 s75, s74, 2\ns_and_b32 s79, s74, 3")
        a(f"s_lshl_b32 s75, s75, 12\ns_lshl_b32 s79, s79, 8\ns_add_u32 s75, s75, s79\ns_lshl_b32 s72, s72, 11\ns_add_u32 s75, s75, s72")
        a(f"s_add_u32 s75, s75, s77\ns_cmp_ge_u32 s74, 172\ns_cselect_b32 s79, 0x70000000, 0\ns_or_b32 s75, s75, s79")
        a(f"s_cmp_eq_u32 {sM1}, 0\ns_cselect_b32 s{dst+i}, 0x70000000, s75")


def inband_addresses(g):
    a = g.a
    a(f"s_lshl_b32 s72, {sCQ}, 6\ns_lshl_b32 s73, {sR}, 1\ns_add_u32 s72, s72, s73\ns_add_u32 s72, s72, {sTB}\ns_lshl_b32 s72, s72, 2")
    a(f"s_lshl_b32 s73, {sP}, 1\ns_add_u32 s72, s72, s73\ns_lshl_b32 s72, s72, 10\ns_lshl_b32 s73, {sL}, 21\ns_add_u32 s72, s72, s73\ns_add_u32 {sHB}, s72, {WS_H}")
    a("s_mov_b64 s[44:45], s[74:75]")
    u_offsets(g, sUO)
    a("s_mov_b64 s[74:75], s[44:45]")
    a("v_lshrrev_b32 v25, 5, v1\nv_lshlrev_b32 v25, 10, v25\nv_bfe_u32 v7, v1, 1, 4\nv_lshl_add_u32 v25, v7, 4, v25")
    a("v_mov_b32 v28, -1\nv_mov_b32 v29, -1\nv_mov_b32 v30, -1\nv_mov_b32 v31, -1")


def attn(g):
    a = g.a
    a.c("======== attention")
    a(f"s_sub_u32 s72, {sR}, 4\nv_add_u32 v8, s72, v1\nv_cmp_le_i32 s[74:75], 0, v8")
    g.wg_of("v9", "v8", sCQ)
    g.vflag("v9", PH_KV)
    a("s_and_b64 s[74:75], s[74:75], 0xf")
    a(f"s_lshl_b32 s76, {sR}, 1\ns_add_u32 s76, s76, {sTB}\ns_sub_u32 s77, 8, s76\ns_max_i32 s77, s77, 0")
    a(f"s_lshl_b32 s78, {sCQ}, 1\ns_add_u32 s78, s78, {sP}\ns_lshl_b32 s78, s78, 18\ns_lshl_b32 s79, {sL}, 22")
    a(f"s_add_u32 s78, s78, s79\ns_add_u32 s78, s78, {WS_KV}")
    a(f"s_lshl_b32 s79, {sTB}, 2\ns_lshl_b32 s80, {sR}, 1\ns_add_u32 s80, s80, s79\ns_sub_u32 s80, s80, 8")
    for i in range(4):
        a(f"s_add_i32 s{81+i}, s80, {i}\ns_max_i32 s{81+i}, s{81+i}, 0\ns_lshl_b32 s{81+i}, s{81+i}, 12\ns_add_u32 s{81+i}, s{81+i}, s78")
    a(f"s_lshl_b32 s85, {sR}, 1\ns_add_u32 s85, s85, {sTB}\ns_lshl_b32 s85, s85, 12\ns_add_u32 s85, s85, s78")
    a(f"s_mul_i32 s86, {sP}, 40960\ns_lshl_b32 s87, {sTB}, 14\ns_add_u32 s87, s87, s86\ns_add_u32 s87, s87, {L_KV}")
    a(f"s_lshl_b32 s79, {sTB}, 12\ns_add_u32 s79, s79, s86\ns_add_u32 s79, s79, {L_KV + 8*4096}")
    for q4 in range(4):
        a(f"s_add_u32 m0, s79, {q4*1024}\ns_add_u32 s72, s85, {q4*1024}")
        a(f"buffer_load_dwordx4 v2, {SRD_WS}, s72 offen sc1 lds", tag="Kd")
    a(f"s_lshl_b32 s88, {sTB}, 12\ns_add_u32 s88, s88, s86\ns_add_u32 s88, s88, {L_KV}\nv_add_u32 v10, s88, v2")
    a("v_and_b32 v8, 15, v1\nv_lshlrev_b32 v8, 4, v8\nv_lshrrev_b32 v7, 5, v1\nv_lshl_add_u32 v8, v7, 8, v8\nv_add_u32 v11, s88, v8")
    a("s_mov_b32 s90, 0xffff\ns_mov_b32 s91, 0xffff")
    a("v_bfe_u32 v20, v1, 4, 1\nv_lshlrev_b32 v20, 14, v20\nv_and_b32 v7, 15, v1\nv_lshl_add_u32 v20, v7, 4, v20")
    a("v_lshrrev_b32 v7, 5, v1\nv_lshl_add_u32 v20, v7, 8, v20")
    a(f"s_lshl_b32 s72, {sR}, 2\ns_lshl_b32 s73, {sTB}, 1\ns_add_u32 s72, s72, s73\ns_lshl_b32 s72, s72, 4")
    a(f"s_lshl_b32 s73, {sCQ}, 1\ns_add_u32 s72, s72, s73\ns_add_u32 s72, s72, {sP}\ns_lshl_b32 s72, s72, 10")
    a(f"s_lshl_b32 s73, {sL}, 21\ns_add_u32 s72, s72, s73\ns_add_u32 s89, s72, {WS_OF}")
    if INB:
        inband_addresses(g)
    a("s_mov_b64 s[76:77], s[74:75]")
    l0_only(g, "l0p", lambda: (team_check(g), p1_setup(g)))
    wo = g.wo_dma()
    g.poll("v9", "s[76:77]")
    a(f"s_lshl_b32 s76, {sR}, 1\ns_add_u32 s76, s76, {sTB}\ns_sub_u32 s77, 8, s76\ns_max_i32 s77, s77, 0")
    g.stamp(6)
    def kvdma(i, h, part):
        return (f"s_add_u32 m0, s87, {i*4096 + h*2048 + part}\ns_add_u32 s72, s{81+i}, {h*2048 + part}\n"
                f"buffer_load_dwordx4 v2, {SRD_WS}, s72 offen sc1 lds")
    for i in range(4):
        for h in range(2):
            a(kvdma(i, h, 0), tag="Kd")
    vd = [kvdma(i, h, 1024) for i in range(4) for h in range(2)]
    early = g.layer == 0 and "plate" not in OPT
    if early:
        for x in vd:
            a(x, tag="Vd")
        p1_loads(g)
    heads = ("A", "B")
    q = {"A": QA, "B": QB}
    mx = {"A": (48, 49), "B": (50, 51)}

    def kread(b):
        t, h = b >> 1, b & 1
        return f"ds_read_b128 {ar(kfrag(b))}, v10 offset:{t*4096 + h*2048}"

    def vread(b, half):
        t, h = b >> 1, b & 1
        return f"ds_read_b128 {ar(vfrag(b, half))}, v11 offset:{t*4096 + h*2048 + 1024 + half*512}"

    def qk(b, c):
        return f"v_mfma_f32_32x32x16_bf16 {vr(SBUF[b & 3],16)}, {ar(kfrag(b))}, {vr(q[heads[b & 1]])}, {c}"

    def cmask(t):
        return vr(CFAR, 16) if t == 0 else vr(CDIAG, 16) if t == 8 else "0"

    for h in heads:
        a(f"v_mov_b32 v{mx[h][0]}, {NEG}\nv_mov_b32 v{mx[h][1]}, {NEG}")
    a.wait_tag("Kd")
    a("s_barrier")
    a.c("pass 1: true row maximum over the masked window")
    for b in range(4):
        a(kread(b))
    a(qk(0, cmask(0)))
    a(kread(4))
    a(qk(1, cmask(0)))
    for b in range(18):
        t, s_, h = b >> 1, SBUF[b & 3], heads[b & 1]
        if b == 8 and g.layer == 0 and not early:
            p1_loads(g)
        if t < 8 and b % 2 == 0:
            stub, back = g.lab("p1s"), g.lab("p1b")
            always = [x for bb in (b, b + 1) for x in ([kread(bb + 5)] if bb + 5 < 18 else []) + ([qk(bb + 2, cmask((bb + 2) >> 1))] if bb + 2 < 18 else [])
                      + ([vd[bb]] if bb < 8 and not early else []) + ([wo(bb - 2)] if bb >= 2 and g.layer == 1 else [])]
            a(f"s_cmp_gt_u32 s77, {t}\ns_cbranch_scc1 {stub}")
        if b + 5 < 18:
            a(kread(b + 5))
        if b + 2 < 18:
            a(qk(b + 2, cmask((b + 2) >> 1)))
        if b < 8 and not early:
            a(vd[b], tag="Vd")
        for i in range(8):
            m = mx[h][i & 1]
            a(f"v_max3_f32 v{m}, v{m}, v{s_+2*i}, v{s_+2*i+1}")
            if i == 3 and b >= 2 and g.layer == 1:
                a(wo(b - 2))
        if t < 8 and b % 2 == 1:
            a.label(back, reset=False)
            g.stubs.append((stub, back, ["s_waitcnt lgkmcnt(0)"] + [y for x in always for y in (x, "s_waitcnt lgkmcnt(0)")]))
    for h in heads:
        m0, m1 = mx[h]
        a(f"v_max_f32 v{m0}, v{m0}, v{m1}\nv_mov_b32 v{m1}, v{m0}")
    for h in heads:
        m0, m1 = mx[h]
        a(f"v_permlane32_swap_b32 v{m0}, v{m1}")
    for h in heads:
        m0, m1 = mx[h]
        a(f"v_max_f32 v{m0}, v{m0}, v{m1}\nv_xor_b32 v{m0}, 0x80000000, v{m0}")
    for i in range(16):
        a(f"v_mov_b32 v{NEGM['A']+i}, v{mx['A'][0]}")
    a(qk(0, vr(NEGM["A"], 16)))
    for i in range(16):
        a(f"v_mov_b32 v{NEGM['B']+i}, v{mx['B'][0]}")
    a.wait_tag("Vd")
    a("s_barrier")
    a(f"buffer_load_dword v21, v20, {SRD_WS}, s89 offen sc1\nbuffer_load_dword v23, v20, {SRD_WS}, s89 offen offset:512 sc1")
    a(f"s_lshl_b32 s72, {sL}, 5\ns_add_u32 s72, s72, {sR}\ns_lshl_b32 s72, s72, 3\ns_add_u32 s72, s72, {sCQ}\ns_lshl_b32 s72, s72, 10")
    a(f"s_lshl_b32 s73, {sWV}, 8\ns_add_u32 s72, s72, s73\ns_add_u32 s72, s72, {WS_ST}")
    a(f"s_mov_b64 exec, 0xffff\nbuffer_load_dword v22, v2, {SRD_WS}, s72 offen sc1\ns_mov_b64 exec, -1")
    g.stamp(7)
    a.c("pass 2: P = exp2(S - m), O += V^T P; block b exponentiates S_b, starts S_{b+1} and finishes block b-1")

    def s2(b):
        return SBUF[b & 1]

    def qk2(b):
        h = heads[b & 1]
        return f"v_mfma_f32_32x32x16_bf16 {vr(s2(b),16)}, {ar(kfrag(b))}, {vr(q[h])}, {vr(NEGM[h],16)}"

    def pv(b, half):
        h = heads[b & 1]
        o, p = OACC[h], PBUF[h]
        return f"v_mfma_f32_32x32x16_bf16 {vr(o,16)}, {ar(vfrag(b, half))}, {vr(p+4*half)}, {vr(o,16)}"

    wd_cur = []
    for b in range(18):
        t, h = b >> 1, heads[b & 1]
        nxt = [qk2(b + 1)] if b + 1 < 18 else []
        prv = [pv(b - 1, 0), pv(b - 1, 1)] if b >= 1 else []
        vl = ["s_mov_b64 exec, s[90:91]\n" + vread(b, 0) + "\n" + vread(b, 1) + "\ns_mov_b64 exec, -1"]
        TB0 = next((int(o[2:]) for o in OPT if o.startswith("pt")), 8 if early else 12)
        if g.layer == 0 and b == TB0:
            p1_finish(g)
        per = 3 if TB0 >= 12 else 2
        wd = [wo(i) for i in range(per * (b - TB0), min(per * (b - TB0) + per, 16))] if g.layer == 0 and b >= TB0 else []
        if INB and b == 2:
            for e in range(2):
                a(f"buffer_store_dwordx4 v[28:31], v2, {SRD_WS}, {sHB} offen offset:{e*1024} sc1")
        if INB and b == 4:
            a("s_mov_b32 exec_lo, 0x55555555\ns_mov_b32 exec_hi, 0x55555555")
            for i in range(3):
                a(f"buffer_store_dwordx4 v[28:31], v25, {SRD_WS}, s{sUO+i} offen sc1")
            a("s_mov_b64 exec, -1")
        if t < 8 and b % 2 == 0:
            stub, back = g.lab("sk"), g.lab("bk")
            a(f"s_cmp_gt_u32 s77, {t}\ns_cbranch_scc1 {stub}")
        s_, p = s2(b), PBUF[h]
        extra = {1: nxt[:1], 2: wd[:1], 4: prv[:1], 7: wd[1:2], 9: prv[1:2], 11: vl, 13: wd[2:3]}
        wd_prev, wd_cur = (wd_cur if b else []), wd
        for i in range(16):
            a(f"v_exp_f32 v{s_+i}, v{s_+i}")
            if i >= 2 and i % 2 == 0:
                k = i // 2 - 1
                a(f"v_cvt_pk_bf16_f32 v{p+k}, v{s_+2*k}, v{s_+2*k+1}")
            for x in extra.get(i, []):
                a(x)
        a(f"s_nop 0\nv_cvt_pk_bf16_f32 v{p+7}, v{s_+14}, v{s_+15}")
        if t in (0, 8):
            msk = ANDF if t == 0 else ANDD
            for k in range(8):
                a(f"v_and_b32 v{p+k}, v{msk+k}, v{p+k}")
        if t < 8 and b % 2 == 1:
            a.label(back, reset=False)
            g.stubs.append((stub, back, nxt + wd_prev + wd_cur))
    a(pv(17, 0)); a(pv(17, 1))
    g.stamp(8)
    for hi, h in enumerate(heads):
        o = OACC[h]
        a(f"v_rcp_f32 v52, v{o+8}")
        for i in range(8):
            a(f"v_mul_f32 v{o+i}, v52, v{o+i}")
        for k in range(4):
            a(f"v_cvt_pk_bf16_f32 v{o+k}, v{o+2*k}, v{o+2*k+1}")

    def ost(m):
        for hi, h in enumerate(heads):
            a(f"buffer_store_dwordx4 {vr(OACC[h])}, v20, {SRD_WS}, s89 offen offset:{hi*512} {m}", tag="Ost")
    g.dual(ost)


L_STG = L_RING + 10240
L_STG2 = L_RING
V_W1D, V_W1R, V_W2D, V_W2R = 52, 56, 40, 42


PA1 = 96
V_P1 = 12


def p1_setup(g):
    a = g.a
    a("s_lshr_b32 s72, s2, 2\ns_and_b32 s73, s2, 3")
    a("s_mul_i32 s74, s73, 7\ns_min_u32 s75, s73, 1\ns_add_u32 s74, s74, s75")
    a("s_cmp_eq_u32 s73, 0\ns_cselect_b32 s75, 8, 7")
    a(f"s_mul_i32 s101, s72, {32*2752}\ns_mul_i32 s73, s74, 96\ns_add_u32 s101, s101, s73\ns_mul_i32 s75, s75, 6")
    a("s_mov_b32 s72, 1311\ns_mov_b32 s73, 2752")
    for n in range(7):
        a(f"s_lshl_b32 s74, {sWV}, 6\ns_add_u32 s74, s74, {256*n}\nv_add_u32 v3, s74, v1")
        a("v_mul_lo_u32 v4, v3, s72\nv_lshrrev_b32 v4, 16, v4\nv_mul_u32_u24 v5, 50, v4\nv_sub_u32 v5, v3, v5")
        a("v_mul_lo_u32 v6, v4, s73\nv_lshl_add_u32 v6, v5, 4, v6")
        a("v_cmp_gt_u32 vcc, s75, v5\nv_cmp_gt_u32 s[78:79], 32, v4\ns_and_b64 vcc, vcc, s[78:79]")
        a(f"v_mov_b32 v5, 0x7ff00000\nv_cndmask_b32 v{V_P1+n}, v5, v6, vcc")


def p1_loads(g):
    a = g.a
    for n in range(7):
        a(f"buffer_load_dwordx4 {ar(PA1+4*n)}, v{V_P1+n}, {SRD_W1}, s101 offen")


def p1_finish(g):
    a = g.a
    L1 = L_X
    a("s_lshr_b32 s72, s2, 2\ns_and_b32 s73, s2, 3")
    a("s_mul_i32 s74, s73, 7\ns_min_u32 s75, s73, 1\ns_add_u32 s74, s74, s75")
    a("s_cmp_eq_u32 s73, 0\ns_cselect_b32 s75, 8, 7")
    a(f"s_lshl_b32 s80, {sWV}, 10\ns_add_u32 s80, s80, {L1}\nv_add_u32 v120, s80, v2")
    for n in range(7):
        a(f"ds_write_b128 v120, {ar(PA1+4*n)} offset:{n*4096}")
    a("v_lshrrev_b32 v121, 4, v1\nv_lshlrev_b32 v121, 3, v121\nv_bfe_u32 v122, v1, 2, 2\nv_add_u32 v121, v121, v122\nv_and_b32 v122, 3, v1")
    a(f"v_mul_u32_u24 v123, 800, v121\nv_lshl_add_u32 v123, v122, 3, v123\ns_lshl_b32 s80, {sWV}, 5\ns_add_u32 s80, s80, {L1}\nv_add_u32 v123, s80, v123")
    a("s_waitcnt lgkmcnt(0)\ns_barrier")
    for n in range(6):
        for rd in range(2):
            a(f"ds_read_b64_tr_b16 v[{96+4*n+2*rd}:{97+4*n+2*rd}], v123 offset:{128*n + rd*3200}")
    for n in range(6):
        a(f"s_add_u32 s80, {sWV}, {4*n}\ns_mul_i32 s81, s80, 43\ns_lshr_b32 s81, s81, 7\ns_mul_i32 s82, s81, 3\ns_sub_u32 s82, s80, s82")
        a("s_cmp_lt_u32 s81, s75\ns_cselect_b32 s85, 0, 0x70000000")
        a("s_add_u32 s81, s81, s74\ns_lshl_b32 s81, s81, 6\ns_add_u32 s81, s81, s72\ns_mul_i32 s81, s81, 3\ns_add_u32 s81, s81, s82")
        a(f"s_lshl_b32 s81, s81, 10\ns_add_u32 s81, s81, {WS_W1P}\ns_or_b32 s81, s81, s85")
        a(f"buffer_store_dwordx4 {vr(96+4*n)}, v2, {SRD_WS}, s81 offen sc1")
    a("s_waitcnt lgkmcnt(0)\ns_barrier")


def early_w1(g, i0, i1, check=False):
    a = g.a
    skip = g.lab("e1")
    a(f"s_cmp_eq_u32 {sM1}, 0\ns_cbranch_scc1 {skip}")
    with a.cond("m1"):
        if check:
            l0_only(g, "l0c", lambda: (p1_check(g), w1_loads(g, 0, i0)))
        w1_loads(g, i0, i1)
    a.label(skip, reset=False)


def l0_only(g, name, fn):
    if g.layer == 0:
        fn()


def p1_check(g):
    a = g.a
    a(f"s_cmp_ge_u32 {sJ1}, 8\ns_cselect_b32 s72, 1, 0\ns_cmp_ge_u32 {sJ1}, 15\ns_addc_u32 s72, s72, 0")
    a(f"s_cmp_ge_u32 {sJ1}, 22\ns_addc_u32 s72, s72, 0")
    a(f"s_lshl_b32 s73, {sWV}, 4\nv_add_u32 v9, s73, v1\nv_lshl_add_u32 v9, v9, 2, s72")
    a(f"v_lshlrev_b32 v9, 7, v9\nv_add_u32 v9, {WS_FLAG + PH_P*2*256*128}, v9")
    g.poll("v9", "0xffff")


def w1_step_addr(g, dst, base, st):
    a = g.a
    if ROT:
        a(f"s_lshr_b32 {dst}, s2, 5\ns_lshl_b32 {dst}, {dst}, 1\ns_add_u32 {dst}, {dst}, {st}\ns_and_b32 {dst}, {dst}, 15\ns_mul_i32 {dst}, {dst}, 3072\ns_add_u32 {dst}, {dst}, {base}")
    else:
        a(f"s_add_u32 {dst}, {base}, {st*3072}")


def w1_loads(g, i0, i1):
    a = g.a
    a(f"s_lshl_b32 s72, {sJ1}, 6\ns_lshl_b32 s73, {sWV}, 4\ns_add_u32 s72, s72, s73\ns_mul_i32 s72, s72, 3072\ns_add_u32 s72, s72, {WS_W1P}")
    for i in range(i0, i1):
        st, ft = divmod(i, 3)
        if ft == 0 or i == i0:
            w1_step_addr(g, "s73", "s72", st)
        a(f"buffer_load_dwordx4 {ar(4*i)}, v2, {SRD_WS}, s73 offen offset:{ft*1024} sc1")


def m1_only(g, fn):
    a = g.a
    skip = g.lab("m1s")
    a(f"s_cmp_eq_u32 {sM1}, 0\ns_cbranch_scc1 {skip}")
    with a.cond("m1"):
        fn()
    a.label(skip, reset=False)


def w2_setup(g):
    a = g.a
    a("v_lshrrev_b32 v3, 3, v1\nv_lshlrev_b32 v3, 12, v3\nv_bfe_u32 v4, v1, 1, 2\nv_bfe_u32 v5, v1, 4, 1\nv_and_b32 v6, 1, v1")
    for e in range(2):
        a(f"v_or_b32 v7, {2*e}, v5\nv_xor_b32 v7, v4, v7\nv_lshl_add_u32 v7, v7, 1, v6\nv_lshl_add_u32 v{V_W2D+e}, v7, 4, v3")
    a("v_lshrrev_b32 v3, 4, v1\nv_lshlrev_b32 v4, 3, v3\nv_bfe_u32 v5, v1, 2, 2\nv_add_u32 v4, v4, v5\nv_lshlrev_b32 v4, 7, v4")
    a("v_and_b32 v5, 3, v1\nv_lshl_add_u32 v4, v5, 3, v4\nv_and_b32 v3, 1, v3\nv_lshlrev_b32 v3, 1, v3\nv_bfe_u32 v5, v1, 3, 1\nv_or_b32 v3, v3, v5")
    for k in range(4):
        a(f"v_xor_b32 v5, {k}, v3\nv_lshl_add_u32 v{V_W2R+k}, v5, 5, v4")
    a(f"s_mul_i32 s89, {sWV}, {11*32*4096}\ns_lshl_b32 s88, {sR}, 7\ns_add_u32 s89, s89, s88")


def w2_lds(st):
    if st < 5:
        return ("s86", st * 4096)
    if st < 9:
        return ("s87", (st - 5) * 4096)
    return ("s86", (st - 9) * 4096)


def w2_bases(g):
    g.a(f"s_mul_i32 s86, {sWV}, 20480\ns_add_u32 s86, s86, {L_STG2}\ns_lshl_b32 s87, {sWV}, 14\ns_add_u32 s87, s87, {L_X}")


def w2_dma_text(st, m):
    base, off = w2_lds(st)
    return (f"s_add_u32 m0, {base}, {off + m*1024}\ns_add_u32 s88, s89, {(st*32 + 8*m)*4096}",
            f"buffer_load_dwordx4 v{V_W2D + (m & 1)}, {SRD_W2P}, s88 offen lds")


def w2_dma(g, st, m, uncond=False):
    pre, ld = w2_dma_text(st, m)
    g.a(pre)
    (g.a.uncond if uncond else g.a)(ld, tag=f"D2_{0 if st < 5 else 5 if st < 9 else 9}")
    return pre + "\n" + ld


def w2_tr(g, s0, s1):
    a = g.a
    base, _ = w2_lds(s0)
    for k in range(4):
        a(f"v_add_u32 v{32+k}, {base}, v{V_W2R+k}")
    for st in range(s0, s1):
        _, off = w2_lds(st)
        for k in range(4):
            for rd in range(2):
                b = (st*4 + k) * 4 + 2*rd
                a(f"ds_read_b64_tr_b16 a[{b}:{b+1}], v{32+k} offset:{off + rd*512}")


def u_producers(g, dst, lane0):
    a = g.a
    a(f"s_mul_i32 s72, {sWV}, 352\ns_mul_hi_u32 s72, s72, {(1 << 32)//48 + 1}\ns_sub_u32 s72, s72, {lane0}\nv_add_u32 v8, s72, v1\nv_max_i32 v8, 0, v8\nv_min_u32 v8, 28, v8")
    a("v_cmp_le_u32 vcc, 8, v8\nv_cndmask_b32 v6, 0, 1, vcc\nv_cmp_le_u32 vcc, 15, v8\nv_addc_co_u32 v6, vcc, 0, v6, vcc")
    a("v_cmp_le_u32 vcc, 22, v8\nv_addc_co_u32 v6, vcc, 0, v6, vcc")
    a("v_mul_u32_u24 v7, 7, v6\nv_min_u32 v9, 1, v6\nv_add_u32 v7, v7, v9\nv_sub_u32 v7, v8, v7")
    a(f"s_and_b32 s72, {sCQ}, 3\ns_lshr_b32 s73, {sCQ}, 2\nv_lshl_add_u32 v7, v7, 2, s72\nv_lshlrev_b32 v7, 3, v7")
    a(f"v_lshl_add_u32 {dst}, v6, 1, v7\nv_add_u32 {dst}, s73, {dst}")


def sentinel(g, loads, srd):
    a = g.a
    top, ok = g.lab("sn"), g.lab("sno")
    a(f"s_mov_b32 {sCNT}, 0")
    a.label(top, reset=False)
    with a.cond(top):
        for k, (addr, soff) in enumerate(loads):
            a(f"buffer_load_dword v{4+k}, {addr}, {srd}, {soff} offen sc1")
        a("s_waitcnt vmcnt(0)")
        a("v_cmp_eq_u32 vcc, -1, v4")
        for k in range(1, len(loads)):
            a(f"v_cmp_eq_u32 s[72:73], -1, v{4+k}\ns_or_b64 vcc, vcc, s[72:73]")
        a(f"s_cbranch_vccz {ok}")
        a(f"s_add_u32 {sCNT}, {sCNT}, 1\ns_cmp_lt_u32 {sCNT}, {POLL_LIMIT}\ns_cbranch_scc1 {top}")
    a.label(ok, reset=False)


def redo_end(g, redo):
    a = g.a
    done = g.lab("rd")
    a(f"s_cmp_eq_u64 {sACC}, 0\ns_cbranch_scc1 {done}")
    if g.diag:
        g.srd(32, P_DBG, 256)
        a(f"v_mov_b32 v4, 1\nv_mov_b32 v5, 4\ns_mov_b64 exec, 1\nbuffer_atomic_add v4, v5, {SRD_T}, 0 offen\ns_mov_b64 exec, -1")
    a(f"s_add_u32 {sREDO}, {sREDO}, 1\ns_cmp_lt_u32 {sREDO}, 64\ns_cbranch_scc1 {redo}")
    a.label(done, reset=False)


def o_flags(g):
    a = g.a
    a(f"v_mov_b32 v8, {sR}\nv_and_b32 v9, 3, v8\nv_lshlrev_b32 v9, 3, v9\nv_add_u32 v9, v1, v9\nv_lshlrev_b32 v9, 3, v9")
    a("v_lshrrev_b32 v7, 2, v8\nv_add_u32 v9, v9, v7")
    g.vflag("v9", PH_O)
    a("s_mov_b32 s76, 0xff\ns_mov_b32 s77, 0")
    if g.layer == 0:
        a(f"s_cmp_ge_u32 {sJ1}, 8\ns_cselect_b32 s72, 1, 0\ns_cmp_ge_u32 {sJ1}, 15\ns_addc_u32 s72, s72, 0")
        a(f"s_cmp_ge_u32 {sJ1}, 22\ns_addc_u32 s72, s72, 0")
        a(f"s_lshl_b32 s73, {sWV}, 4\ns_sub_u32 s73, s73, 8\nv_add_u32 v8, s73, v1\nv_lshl_add_u32 v8, v8, 2, s72\nv_and_b32 v8, 255, v8")
        a(f"v_lshlrev_b32 v8, 7, v8\nv_add_u32 v8, {WS_FLAG + PH_P*2*256*128}, v8")
        a("v_cmp_le_u32 vcc, 8, v1\nv_cndmask_b32 v9, v9, v8, vcc")
        a(f"s_cmp_eq_u32 {sM1}, 0\ns_cselect_b32 s76, s76, 0xffffff")


def oproj(g):
    a = g.a
    a.c("======== output projection, residual, double LayerNorm")
    OFR, WPRE, WFR, ACC = 64, 128, 14, 46
    a("v_lshrrev_b32 v3, 5, v1\nv_lshlrev_b32 v3, 4, v3\nv_bfe_u32 v4, v1, 4, 1\nv_lshl_add_u32 v3, v4, 2, v3")
    a("v_bfe_u32 v5, v1, 2, 2\nv_add_u32 v3, v3, v5\nv_bfe_u32 v5, v3, 1, 2\nv_and_b32 v6, 3, v1\nv_lshlrev_b32 v6, 3, v6")
    a("v_lshl_add_u32 v6, v3, 7, v6")
    for nt in range(4):
        a(f"v_xor_b32 v7, {nt}, v5\nv_lshl_add_u32 v{10+nt}, v7, 5, v6")

    def wreg(ks, nt):
        return WPRE + ks * 16 + nt * 4 if ks < 8 else WFR + (ks & 1) * 16 + nt * 4

    def wread(ks, nt):
        b = wreg(ks, nt)
        for rd in range(2):
            a(f"ds_read_b64_tr_b16 v[{b+2*rd}:{b+2*rd+1}], v{10+nt} offset:{L_X + ks*4096 + rd*1024}")
    for ks in range(8):
        for nt in range(4):
            wread(ks, nt)
    g.poll("v9", "s[76:77]")
    a("s_waitcnt vmcnt(0) lgkmcnt(0)")
    g.stamp(10)
    a(f"s_lshl_b32 s72, {sR}, 2\ns_add_u32 s72, s72, {sWV}\ns_lshl_b32 s72, s72, 14\ns_lshl_b32 s73, {sL}, 21")
    a(f"s_add_u32 s72, s72, s73\ns_add_u32 s74, s72, {WS_OF}")

    def oload(ks):
        if ks & 3 == 0 or ks == OD:
            a(f"s_add_u32 s73, s74, {(ks >> 2)*4096}")
        a(f"buffer_load_dwordx4 {vr(OFR+4*ks)}, v2, {SRD_WS}, s73 offen offset:{(ks & 3)*1024} sc1")
    OD = 11
    for ks in range(OD):
        oload(ks)
    g.stamp(25)

    def main(w1):
        if w1:
            a(f"s_lshl_b32 s76, {sJ1}, 6\ns_lshl_b32 s77, {sWV}, 4\ns_add_u32 s76, s76, s77\ns_mul_i32 s76, s76, 3072\ns_add_u32 s76, s76, {WS_W1P}")
        for ks in range(16):
            if ks + OD < 16:
                oload(ks + OD)
            for nt in range(4):
                c = "0" if ks == 0 else vr(ACC + 4*nt)
                a(f"v_mfma_f32_16x16x32_bf16 {vr(ACC+4*nt)}, {vr(wreg(ks, nt))}, {vr(OFR+4*ks)}, {c}")
                if 6 <= ks <= 13:
                    wread(ks + 2, nt)
                if w1 and nt == 1 and ks >= 4:
                    for i in ((ks - 4) * 2, (ks - 4) * 2 + 1) if ks < 12 else ():
                        st, ft = divmod(i, 3)
                        w1_step_addr(g, "s77", "s76", st)
                        a(f"buffer_load_dwordx4 {ar(4*i)}, v2, {SRD_WS}, s77 offen offset:{ft*1024} sc1")
            if ks == 0:
                g.stamp(28)
            if ks == 7:
                g.stamp(29)
    la, lb = g.lab("oa"), g.lab("ob")
    a(f"s_cmp_eq_u32 {sM1}, 0\ns_cbranch_scc1 {la}")
    a.snap(la)
    main(True)
    a.label(lb, reset=False)
    g.late.append((la, lb, lambda: (a.restore(la), main(False))))
    g.stamp(11)
    a(f"v_and_b32 v3, 15, v1\ns_lshl_b32 s72, {sWV}, 4\nv_add_u32 v14, s72, v3\nv_lshrrev_b32 v4, 4, v1")
    a(f"v_mul_u32_u24 v5, 144, v14\nv_lshl_add_u32 v5, v4, 3, v5\nv_add_u32 v15, {L_R}, v5")
    for nt in range(4):
        a(f"ds_read_b64 v[{176+2*nt}:{177+2*nt}], v15 offset:{32*nt}")
    X1 = 192
    for nt in range(4):
        for k in range(2):
            a(f"v_lshlrev_b32 v{X1+4*nt+2*k}, 16, v{176+2*nt+k}\nv_and_b32 v{X1+4*nt+2*k+1}, 0xffff0000, v{176+2*nt+k}")
    for i in range(16):
        a(f"v_add_f32 v{X1+i}, v{X1+i}, v{ACC+i}")
    for k in range(8):
        a(f"v_cvt_pk_bf16_f32 v{176+k}, v{X1+2*k}, v{X1+2*k+1}")
    for nt in range(4):
        a(f"ds_write_b64 v15, v[{176+2*nt}:{177+2*nt}] offset:{32*nt}")
    a(f"v_add_f32 v16, v{X1}, v{X1+1}\nv_mul_f32 v17, v{X1}, v{X1}\nv_fmac_f32 v17, v{X1+1}, v{X1+1}")
    for i in range(2, 16):
        a(f"v_add_f32 v16, v16, v{X1+i}\nv_fmac_f32 v17, v{X1+i}, v{X1+i}")

    def fold_groups(r0, r1):
        for sw in ("16", "32"):
            a(f"v_mov_b32 v20, v{r0}\nv_mov_b32 v21, v{r1}")
            a(f"v_permlane{sw}_swap_b32 v{r0}, v20\nv_permlane{sw}_swap_b32 v{r1}, v21")
            a(f"v_add_f32 v{r0}, v{r0}, v20\nv_add_f32 v{r1}, v{r1}, v21")
    fold_groups(16, 17)
    a(f"v_mov_b32 v18, {sN}\nv_mov_b32 v19, {sNN}")
    a(f"s_lshl_b32 s72, {sL}, 5\ns_add_u32 s72, s72, {sR}\ns_lshl_b32 s72, s72, 13\ns_add_u32 s72, s72, {WS_ST}")
    a(f"s_lshl_b32 s73, {sCQ}, 10\ns_add_u32 s73, s73, s72\nv_lshlrev_b32 v22, 4, v14")
    a("s_mov_b64 exec, 0xffff")
    g.dual(lambda m: a(f"buffer_store_dwordx4 v[16:19], v22, {SRD_WS}, s73 offen {m}"))
    a("s_mov_b64 exec, -1")
    g.stamp(26)
    if INB:
        a(f"s_lshl_b32 s73, {sWV}, 3\nv_add_u32 v34, s73, v1")
        g.wg_of("v35", "v34", sC1)
        u_producers(g, "v36", 8)
        a("v_cmp_le_u32 vcc, 8, v1\nv_cndmask_b32 v35, v35, v36, vcc\nv_and_b32 v35, 255, v35")
        g.vflag("v35", PH_PD)
        a(f"s_lshl_b32 s44, {sM1}, 8\ns_sub_u32 s44, s44, {sM1}\ns_or_b32 s44, s44, 0xff00\ns_mov_b32 s45, 0")
        a(f"s_mov_b64 exec, s[44:45]\nbuffer_load_dwordx2 v[32:33], v35, {SRD_WS}, 0 offen sc1\ns_mov_b64 exec, -1")
    early_w1(g, 16, 28)
    a("v_lshrrev_b32 v4, 4, v1")
    g.stamp(27)
    a(f"s_lshl_b32 s72, {sL}, 5\ns_add_u32 s72, s72, {sR}\ns_lshl_b32 s72, s72, 13\ns_add_u32 s72, s72, {WS_ST}")
    a("v_lshl_add_u32 v23, v4, 11, v22\ns_mov_b32 s100, 0")
    top, ok = g.lab("stp"), g.lab("sto")
    a.label(top, reset=False)
    a(f"buffer_load_dwordx4 v[24:27], v23, {SRD_WS}, s72 offen sc1")
    a(f"buffer_load_dwordx4 v[28:31], v23, {SRD_WS}, s72 offen offset:1024 sc1")
    a("s_waitcnt vmcnt(0)")
    a(f"v_cmp_ne_u64 vcc, {sNP}, v[26:27]\nv_cmp_ne_u64 s[74:75], {sNP}, v[30:31]\ns_or_b64 vcc, vcc, s[74:75]")
    a(f"s_cbranch_vccz {ok}")
    a(f"s_add_u32 s100, s100, 1\ns_cmp_lt_u32 s100, {POLL_LIMIT}\ns_cbranch_scc1 {top}\ns_branch L_fail")
    a.label(ok, reset=False)
    if INB:
        pd = g.lab("pd")
        a(f"s_mov_b64 exec, s[44:45]\nv_cmp_ne_u64 vcc, {sNP}, v[32:33]\ns_mov_b64 exec, -1\ns_cbranch_vccz {pd}")
        with a.cond(pd):
            a("v_mov_b32 v36, v4\nv_mov_b32 v37, v5")
            g.poll("v35", "s[44:45]")
            a("v_mov_b32 v4, v36\nv_mov_b32 v5, v37")
        a.label(pd, reset=False)
    g.stamp(12)
    a("v_add_f32 v16, v24, v28\nv_add_f32 v17, v25, v29")
    fold_groups(16, 17)
    a(f"v_mul_f32 v16, {f32(1/512)}, v16\nv_mul_f32 v17, {f32(1/512)}, v17\nv_fma_f32 v17, -v16, v16, v17\nv_max_f32 v17, 0, v17")
    a(f"v_add_f32 v18, {f32(1e-5)}, v17\nv_rsq_f32 v18, v18")
    a(f"v_mul_f32 v19, v18, v18\nv_mul_f32 v19, v19, v17\nv_add_f32 v19, {f32(1e-5)}, v19\nv_rsq_f32 v19, v19\nv_mul_f32 v18, v18, v19")
    for i in range(16):
        a(f"v_sub_f32 v{X1+i}, v{X1+i}, v16")
    for i in range(16):
        a(f"v_mul_f32 v{X1+i}, v18, v{X1+i}")
    for k in range(8):
        a(f"v_cvt_pk_bf16_f32 v{176+k}, v{X1+2*k}, v{X1+2*k+1}")
    HT = L_RING
    a(f"v_mul_u32_u24 v5, 160, v14\nv_lshl_add_u32 v5, v4, 3, v5\nv_add_u32 v5, {HT}, v5")
    for nt in range(4):
        a(f"ds_write_b64 v5, v[{176+2*nt}:{177+2*nt}] offset:{32*nt}")
    a("v_lshrrev_b32 v3, 4, v1\nv_lshlrev_b32 v3, 3, v3\nv_bfe_u32 v6, v1, 2, 2\nv_add_u32 v3, v3, v6")
    a(f"s_lshl_b32 s72, {sTB}, 5\nv_add_u32 v3, s72, v3\nv_mul_u32_u24 v3, 160, v3\nv_and_b32 v6, 3, v1\nv_lshl_add_u32 v3, v6, 3, v3")
    a(f"s_lshl_b32 s72, {sP}, 6\ns_add_u32 s72, s72, {HT}\nv_add_u32 v3, s72, v3")
    a("s_waitcnt lgkmcnt(0)\ns_barrier")
    for e in range(2):
        for rd in range(2):
            a(f"ds_read_b64_tr_b16 v[{184+4*e+2*rd}:{185+4*e+2*rd}], v3 offset:{32*e + rd*640}")
    if INB:
        a(f"s_mov_b32 s72, {sHB}")
    else:
        a(f"s_lshl_b32 s72, {sCQ}, 6\ns_lshl_b32 s73, {sR}, 1\ns_add_u32 s72, s72, s73\ns_add_u32 s72, s72, {sTB}\ns_lshl_b32 s72, s72, 2")
        a(f"s_lshl_b32 s73, {sP}, 1\ns_add_u32 s72, s72, s73\ns_lshl_b32 s72, s72, 10\ns_lshl_b32 s73, {sL}, 21\ns_add_u32 s72, s72, s73\ns_add_u32 s72, s72, {WS_H}")
    for e in range(2):
        a(f"buffer_store_dwordx4 {vr(184+4*e)}, v2, {SRD_WS}, s72 offen offset:{e*1024} sc1", tag="Hst")


def mix1(g):
    a = g.a
    a.c("======== token mixing 1: u = gelu(h^T W1 + b1)")
    skip, other = g.lab("m1"), g.lab("m1o")
    w2_setup(g)
    w2_bases(g)
    a(f"s_cmp_eq_u32 {sM1}, 0\ns_cbranch_scc1 {other}")
    w2_text = []

    def w2(i):
        return w2_dma(g, i >> 2, i & 3, uncond=True)
    with a.cond("m1"):
        def m1_setup():
            g.srd(32, P_B1, 2752)
            a(f"s_mul_i32 s72, {sJ1}, 96\nv_and_b32 v3, 1, v1\nv_lshlrev_b32 v3, 3, v3\ns_mul_i32 s73, {sWV}, 3")
            for i in range(3):
                a(f"s_add_u32 s74, s73, {i}\ns_lshr_b32 s74, s74, 1\ns_lshl_b32 s74, s74, 4\ns_add_u32 s74, s74, s72")
                a(f"buffer_load_dwordx2 v[{14+2*i}:{15+2*i}], v3, {SRD_T}, s74 offen")
            if not INB:
                a(f"s_lshl_b32 s73, {sWV}, 3\nv_add_u32 v8, s73, v1")
                g.wg_of("v9", "v8", sC1)
                g.vflag("v9", PH_H)
            c0 = -2 * math.log2(math.e) * math.sqrt(2 / math.pi)
            c1 = c0 * 0.044715
            a(f"v_and_b32 v3, 15, v1\nv_mul_u32_u24 v3, 208, v3\nv_lshrrev_b32 v4, 4, v1\nv_lshl_add_u32 v3, v4, 4, v3")
            a(f"s_mul_i32 s72, {sWV}, 13312\nv_add_u32 v13, s72, v3")
            a("v_lshrrev_b32 v3, 1, v1\nv_mul_u32_u24 v10, 208, v3\nv_and_b32 v4, 1, v1\nv_lshl_add_u32 v10, v4, 4, v10")
            a("v_lshrrev_b32 v5, 5, v1\nv_lshlrev_b32 v11, 10, v5\nv_and_b32 v3, 15, v3\nv_lshl_add_u32 v11, v3, 4, v11")
            if not INB:
                a("v_lshl_add_u32 v11, v4, 3, v11")
            a(f"s_mul_i32 s76, {sWV}, 3\ns_mov_b32 s84, {f32(c1)}\ns_mov_b32 s85, {f32(c0)}")
            for i in range(3):
                a(f"s_add_u32 s72, s76, {i}\ns_lshr_b32 s73, s72, 1\ns_and_b32 s72, s72, 1")
                a(f"s_mul_i32 s74, s72, {32*208}\ns_lshl_b32 s75, s73, 5\ns_add_u32 s74, s74, s75\nv_add_u32 v{20+i}, s74, v10")
            if INB:
                for i in range(3):
                    a(f"s_mov_b32 s{80+i}, s{sUO+i}")
            else:
                u_offsets(g, 80)

        def w1_one(i):
            st, ft = divmod(i, 3)
            if ft == 0 or i == 40:
                a(f"s_add_u32 s91, s90, {st*3072}")
            a(f"buffer_load_dwordx4 {ar(4*i)}, v2, {SRD_WS}, s91 offen offset:{ft*1024} sc1")
        a(f"s_lshl_b32 s90, {sJ1}, 6\ns_lshl_b32 s91, {sWV}, 4\ns_add_u32 s90, s90, s91\ns_mul_i32 s90, s90, 3072\ns_add_u32 s90, s90, {WS_W1P}")
        a.weave([a.capture(lambda i=i: w1_one(i)) for i in range(40, 48)], a.capture(m1_setup))
        HD = next((int(o[2:]) for o in OPT if o.startswith("hd")), 15)
        HB, NS, ACC = 64, HD + 9, 192
        a(f"s_lshl_b32 s72, {sC1}, 6\ns_lshl_b32 s73, {sWV}, 4\ns_add_u32 s72, s72, s73\ns_lshl_b32 s72, s72, 12")
        a(f"s_lshl_b32 s73, {sL}, 21\ns_add_u32 s72, s72, s73\ns_add_u32 s43, s72, {WS_H}")
        if INB:
            a(f"v_lshlrev_b32 v9, 10, v1\nv_add_u32 v9, 1008, v9\ns_mov_b32 {sREDO}, 0")
            redo = g.lab("m1r")
            a.label(redo, reset=False)
            sentinel(g, [("v9", "s43")], SRD_WS)
            a(f"s_mov_b64 {sACC}, 0")
        else:
            g.poll("v9", "0xff")
        g.stamp(14)
        a("s_mov_b32 s72, s43")
        nload = [0]

        def hload():
            n = nload[0]
            if ROT:
                if n & 3 == 0:
                    a(f"s_lshr_b32 s72, s2, 5\ns_lshl_b32 s72, s72, 1\ns_add_u32 s72, s72, {n >> 2}\ns_and_b32 s72, s72, 15\ns_lshl_b32 s72, s72, 12\ns_add_u32 s72, s72, s43")
                a(f"buffer_load_dwordx4 {vr(HB + 4*(n % NS))}, v2, {SRD_WS}, s72 offen offset:{(n & 3)*1024} sc1")
            else:
                a(f"buffer_load_dwordx4 {vr(HB + 4*(n % NS))}, v2, {SRD_WS}, s72 offen offset:{(n & 3)*1024} sc1")
                if n & 3 == 3:
                    a("s_add_u32 s72, s72, 4096")
            nload[0] += 1
        for _ in range(HD):
            hload()
        for st in range(16):
            for dt in range(4):
                hb = HB + 4 * ((st*4 + dt) % NS)
                for ft in range(3):
                    acc = ACC + (ft*4 + dt) * 4
                    c = "0" if st == 0 else ar(acc)
                    a(f"v_mfma_f32_16x16x32_bf16 {ar(acc)}, {ar((st*3+ft)*4)}, {vr(hb)}, {c}")
                    if INB and ft == 0:
                        a(f"v_cmp_eq_u32 vcc, -1, v{hb}\ns_or_b64 {sACC}, {sACC}, vcc")
                if nload[0] < 64:
                    hload()
                if st == 0 and dt == 0:
                    g.stamp(30)
                if st == 7 and dt == 3:
                    g.stamp(31)
        if INB:
            redo_end(g, redo)
        l0_only(g, "l0t", lambda: (warmup(g, SRD_W2P, "v60") if "now2wu" not in OPT else None, a(x2_touch_text())))
        g.stamp(15)
        nw2 = 0
        for dt in range(4):
            for ft in range(3):
                a(f"ds_write_b128 v13, {ar(ACC + (ft*4+dt)*4)} offset:{L_X + dt*16*208 + ft*64}")
        a("s_waitcnt lgkmcnt(0)\ns_barrier")
        for i in range(3):
            for k in range(4):
                a(f"ds_read_b128 {vr(64 + 16*i + 4*k)}, v{20+i} offset:{L_X + k*13312}")
        if g.layer == 0:
            sk3 = g.lab("ep")
            a(f"s_or_b32 s72, s2, {sWV}\ns_cmp_eq_u32 s72, 0\ns_cbranch_scc0 {sk3}")
            with a.cond(sk3):
                a(f"v_mov_b32 v4, {sN}\nv_mov_b32 v5, {WS_EPOCH}\ns_mov_b64 exec, 1")
                a(f"buffer_store_dword v4, v5, {SRD_WS}, 0 offen sc1")
                a("s_mov_b64 exec, -1")
            a.label(sk3, reset=False)
        if "udrain" not in OPT:
            pass
        else:
            a("s_waitcnt lgkmcnt(0)\ns_barrier")
        for i in range(3):
            B = 64 + 16 * i
            bb = 14 + 2 * i

            def w2x(k=1):
                nonlocal nw2
                for _ in range(k):
                    if nw2 < 18:
                        w2_text.append(w2(nw2)); nw2 += 1
            for e in range(4):
                a(f"v_add_f32 v{B+e}, v{B+e}, v{B+4+e}\nv_add_f32 v{B+8+e}, v{B+8+e}, v{B+12+e}")
            w2x()
            a(f"v_lshlrev_b32 v{B+4}, 16, v{bb}\nv_and_b32 v{B+5}, 0xffff0000, v{bb}\nv_lshlrev_b32 v{B+6}, 16, v{bb+1}\nv_and_b32 v{B+7}, 0xffff0000, v{bb+1}")
            for e in range(4):
                a(f"v_add_f32 v{B+e}, v{B+e}, v{B+8+e}")
            w2x()
            for e in range(4):
                a(f"v_add_f32 v{B+e}, v{B+e}, v{B+4+e}")
            for e in range(4):
                a(f"v_mul_f32 v{B+4+e}, v{B+e}, v{B+e}\nv_mov_b32 v{B+8+e}, s85")
            w2x()
            for e in range(4):
                a(f"v_fmac_f32 v{B+8+e}, s84, v{B+4+e}")
            for e in range(4):
                a(f"v_mul_f32 v{B+8+e}, v{B+8+e}, v{B+e}")
            for e in range(4):
                a(f"v_exp_f32 v{B+8+e}, v{B+8+e}")
            w2x()
            for e in range(4):
                a(f"v_add_f32 v{B+8+e}, 1.0, v{B+8+e}")
            for e in range(4):
                a(f"v_rcp_f32 v{B+8+e}, v{B+8+e}")
            for e in range(4):
                a(f"v_mul_f32 v{B+e}, v{B+e}, v{B+8+e}")
            a(f"v_cvt_pk_bf16_f32 v{B+4}, v{B}, v{B+1}\nv_cvt_pk_bf16_f32 v{B+5}, v{B+2}, v{B+3}")
            if INB:
                a(f"v_mov_b32_dpp v{B+6}, v{B+4} quad_perm:[1,0,3,2] row_mask:0xf bank_mask:0xf")
                a(f"v_mov_b32_dpp v{B+7}, v{B+5} quad_perm:[1,0,3,2] row_mask:0xf bank_mask:0xf")
                a("s_mov_b32 exec_lo, 0x55555555\ns_mov_b32 exec_hi, 0x55555555")
                a(f"buffer_store_dwordx4 v[{B+4}:{B+7}], v11, {SRD_WS}, s{80+i} offen sc1", tag="Ust")
                a("s_mov_b64 exec, -1")
            else:
                a(f"buffer_store_dwordx2 v[{B+4}:{B+5}], v11, {SRD_WS}, s{80+i} offen sc1", tag="Ust")
        while nw2 < (36 if "udrain" in OPT else 20):
            w2_text.append(w2(nw2)); nw2 += 1
        if INB:
            a("s_barrier")
        else:
            a.wait_tag("Ust")
            g.publish(PH_U)
    a.label(skip, reset=False)
    pre = [warmup_text(SRD_W2P, "v60"), x2_touch_text()] if g.layer == 0 else []
    g.tails.append((other, skip, pre + w2_text))
    if "noweave2" in OPT:
        for i in range(20, 36):
            w2_dma(g, i >> 2, i & 3)
        a.wait_tag("D2_0")
        w2_tr(g, 0, 5)
        a("s_waitcnt lgkmcnt(0)")
        for i in range(36, 44):
            w2_dma(g, i >> 2, i & 3)
    else:
        a.wait_tag("D2_0")
        d1 = [a.capture(lambda i=i: w2_dma(g, i >> 2, i & 3)) for i in range(20, 36)]
        setup = a.capture(lambda: mix2_setup(g))
        half = len(setup) // 2
        while setup[half][0] != "i" or setup[half][1].startswith(("s_addc", "s_subb", "s_cselect")):
            half += 1
        a.weave(d1, a.capture(lambda: w2_tr(g, 0, 5)) + setup[:half])
        a("s_waitcnt lgkmcnt(0)")
        d2 = [a.capture(lambda i=i: w2_dma(g, i >> 2, i & 3)) for i in range(36, 44)]
        a.weave(d2, setup[half:])


def mix2_setup(g):
    a = g.a
    g.srd(32, P_B2, 4096)
    a(f"v_lshrrev_b32 v10, 3, v0\ns_lshl_b32 s72, {sR}, 7\nv_lshl_add_u32 v11, v10, 1, s72")
    a(f"buffer_load_ushort v12, v11, {SRD_T}, 0 offen\nbuffer_load_ushort v13, v11, {SRD_T}, 0 offen offset:64")
    a(f"s_mul_i32 s72, {sCQ}, {UC}\ns_lshl_b32 s73, {sL}, 21\ns_add_u32 s72, s72, s73\ns_add_u32 s72, s72, {WS_U}")
    g.srd(24, P_WS, UC, "s72")
    a("v_and_b32 v3, 15, v1\nv_lshrrev_b32 v4, 4, v1\nv_and_b32 v5, 7, v1")
    a(f"s_lshl_b32 s72, {sWV}, 14")
    for dt in range(4):
        a(f"v_add_u32 v6, {4*dt}, v4\nv_xor_b32 v6, v6, v5\nv_lshlrev_b32 v6, 4, v6\nv_lshl_add_u32 v6, v3, 8, v6\nv_add_u32 v{14+dt}, s72, v6")
    a("v_and_b32 v3, 7, v0\nv_and_b32 v4, 7, v10\nv_lshlrev_b32 v5, 1, v3")
    for e in range(2):
        a(f"v_add_u32 v6, {e}, v5\nv_xor_b32 v6, v6, v4\nv_lshlrev_b32 v6, 4, v6\nv_lshl_add_u32 v{18+e}, v10, 8, v6")
    a(f"v_mul_u32_u24 v20, 144, v10\nv_lshl_add_u32 v20, v3, 4, v20\nv_add_u32 v20, {L_R}, v20")
    a(f"v_lshlrev_b32 v21, 10, v10\nv_lshl_add_u32 v21, v3, 4, v21")
    if not INB:
        u_producers(g, "v9", 0)
        g.vflag("v9", PH_U)


def mix2(g):
    a = g.a
    a.c("======== token mixing 2: x += (u W2 + b2)^T")
    if g.layer == 0 and "code2" in OPT and g.stop_after is None:
        g.code_warmup2()
    if "noweave2" in OPT:
        mix2_setup(g)
    if INB:
        a(f"s_mul_i32 s85, {sWV}, {11*4096}\nv_lshlrev_b32 v9, 8, v1\nv_add_u32 v9, 240, v9")
        a(f"s_add_u32 s43, s85, 16384\ns_add_u32 s48, s85, 32768\ns_mov_b32 {sREDO}, 0")
        a("v_cmp_gt_u32 vcc, 48, v1\nv_mov_b32 v8, 0x7ff00000\nv_cndmask_b32 v8, v8, v9, vcc")
        redo = g.lab("m2r")
        a.label(redo, reset=False)
        sentinel(g, [("v9", "s85"), ("v9", "s43"), ("v8", "s48")], SRD_U)
        a(f"s_mov_b64 {sACC}, 0")
    else:
        g.poll("v9", "0xff")
    g.stamp(17)
    UD = next((int(o[2:]) for o in OPT if o.startswith("ud")), 14)
    UB, ACC = 64, 192
    a(f"s_mul_i32 s85, {sWV}, {11*4096}")

    def uload(i):
        st, dt = i >> 2, i & 3
        if dt == 0:
            a(f"s_add_u32 s84, s85, {st*4096}")
        a(f"buffer_load_dwordx4 {vr(UB + 4*i)}, v2, {SRD_U}, s84 offen offset:{dt*1024} sc1")
    a.wait_tag("D2_5", "D2_9", emit=False)
    a.weave([a.capture(lambda i=i: uload(i)) for i in range(UD)], a.capture(lambda: (w2_tr(g, 5, 9), w2_tr(g, 9, 11))))
    for st in range(11):
        for dt in range(4):
            for k in range(4):
                acc = ACC + (dt*4 + k) * 4
                c = "0" if st == 0 else ar(acc)
                a(f"v_mfma_f32_16x16x32_bf16 {ar(acc)}, {vr(UB + (st*4+dt)*4)}, {ar((st*4+k)*4)}, {c}")
                if INB and k == 0:
                    a(f"v_cmp_eq_u32 vcc, -1, v{UB + (st*4+dt)*4}\ns_or_b64 {sACC}, {sACC}, vcc")
                if k == 1 and st*4 + dt + UD < 44:
                    uload(st*4 + dt + UD)
    if INB:
        redo_end(g, redo)
    g.stamp(18)
    for dt in range(4):
        for k in range(4):
            a(f"ds_write_b128 v{14+dt}, {ar(ACC + (dt*4+k)*4)} offset:{L_X + k*4096}")
    a("s_waitcnt lgkmcnt(0)\ns_barrier")
    a(f"s_lshl_b32 s72, {sR}, 16\ns_lshl_b32 s73, {sCQ}, 7\ns_add_u32 s72, s72, s73")
    for half in range(2):
        B = 64 + half * 48
        for k in range(4):
            for e in range(2):
                a(f"ds_read_b128 {vr(B + k*8 + e*4)}, v{18+e} offset:{L_X + k*16384 + half*8192}")
        a(f"ds_read_b128 {vr(B+32)}, v20 offset:{half*4608}")
    def epilogue(first):
        ring = []
        if first:
            g.q_addr_w(46)
            g.w_dma_setup("s80", "s81", "s82")
            ring = [(s_, n) for s_ in range(5) for n in range(4)]

        def ringdma(k=1):
            for _ in range(k):
                if ring:
                    s_, n = ring.pop(0)
                    g.w_dma(s_, only=n, sg="s80", sl="s81", st="s82", va="v46")
        for half in range(2):
            B = 64 + half * 48
            a(f"v_lshlrev_b32 v22, 16, v{12+half}")
            for i in range(8):
                a(f"v_add_f32 v{B+i}, v{B+i}, v{B+8+i}\nv_add_f32 v{B+16+i}, v{B+16+i}, v{B+24+i}")
                if i % 2 == 1:
                    ringdma()
            for i in range(8):
                a(f"v_add_f32 v{B+i}, v{B+i}, v{B+16+i}")
            ringdma()
            for i in range(8):
                a(f"v_add_f32 v{B+i}, v{B+i}, v22")
            ringdma()
            for k in range(4):
                a(f"v_lshlrev_b32 v{B+8+2*k}, 16, v{B+32+k}\nv_and_b32 v{B+9+2*k}, 0xffff0000, v{B+32+k}")
            ringdma()
            for i in range(8):
                a(f"v_add_f32 v{B+i}, v{B+i}, v{B+8+i}")
            ringdma()
            for k in range(4):
                a(f"v_cvt_pk_bf16_f32 v{B+36+k}, v{B+2*k}, v{B+2*k+1}")
            if first:
                a(f"ds_write_b128 v20, {vr(B+36)} offset:{half*4608}")
                g.dual(lambda m, B=B: a(f"buffer_store_dwordx4 {vr(B+36)}, v21, {SRD_DST}, s72 offen {m}", tag="Xst"))
            else:
                om = "" if "outplain" in OPT else "sc1"
                a(f"buffer_store_dwordx4 {vr(B+36)}, v21, {SRD_DST}, s72 offen {om}")
            if half == 0:
                a("s_add_u32 s72, s72, 32768")
            if first:
                a(f"v_add_f32 v{B+40}, v{B}, v{B+1}\nv_mul_f32 v{B+41}, v{B}, v{B}\nv_fmac_f32 v{B+41}, v{B+1}, v{B+1}")
                for i in range(2, 8):
                    a(f"v_add_f32 v{B+40}, v{B+40}, v{B+i}\nv_fmac_f32 v{B+41}, v{B+i}, v{B+i}")
                ringdma(2)
        if first:
            ringdma(20)
            a("v_mov_b32 v12, v46")
            g.row_stats_store([104, 152], 1, local=True)
    epilogue(g.layer == 0)


def drain(g, tag, n, sreg, val):
    a = g.a
    lw = g.lab("dr")
    a(f"s_cmp_eq_u32 {sreg}, {val}\ns_cbranch_scc1 {lw}")
    a.raw("  s_waitcnt vmcnt(0)")
    a.label(lw, reset=False)
    a.raw(f"  s_waitcnt vmcnt({n})")
    a.wait_tag(tag, emit=False)


def o_drain_publish(g):
    a = g.a
    a.wait_tag("Ost")
    g.publish(PH_O, local=True, also=PH_P if g.layer == 0 else None)


def rest(g):
    a = g.a
    attn_setup(g)
    g.stamp(5)
    attn(g)
    a("s_barrier")
    o_drain_publish(g)
    g.stamp(9)
    if g.stop("a"):
        return True
    o_flags(g)
    oproj(g)
    early_w1(g, 28, 40)
    if not INB:
        drain(g, "Hst", 12, sM1, 1)
        g.publish(PH_H)
    g.stamp(13)
    if g.stop("o"):
        return True
    mix1(g)
    g.stamp(16)
    if g.stop("m1"):
        return True
    mix2(g)
    g.stamp(19)
    if g.stop("m2"):
        return True
    if g.layer == 1:
        a("s_endpgm")
        a.assume_clean()
        return True
    g.srd(4, P_WS, 2 << 20, WS_X2)
    g.srd(20, P_OUT, 2 << 20)
    a(f"s_mov_b32 {sL}, 1")
    a("s_waitcnt lgkmcnt(0)")
    return False


def finish(g):
    a = g.a
    a("s_branch L_end")
    a.assume_clean()
    for lab, back, fn in g.late:
        a.label(lab, reset=False)
        fn()
        a(f"s_branch {back}")
        a.assume_clean()
    for stub, back, always in g.stubs:
        a.label(stub, reset=False)
        a("s_nop 7")
        for x in always:
            a(x)
        a(f"s_nop 11\ns_branch {back}")
        a.assume_clean()
    for lab, back, texts in g.tails:
        a.label(lab, reset=False)
        for x in texts:
            for line in x.split("\n"):
                if line.startswith("@"):
                    a.label(line[1:], reset=False)
                else:
                    a(line)
        a(f"s_branch {back}")
        a.assume_clean()
```

```python
import os, sys
OPT = set(os.environ.get("KOPT", "").split(","))
sys.path.insert(0, "tools")
from asmfw import Asm

KNAME = "interleave_layers__sliding_block__mixer_token_mlp__prompt_kernel"

WS_EPOCH = 0x0
WS_FLAG = 0x1000
WS_ST = 0x80000
WS_KV = 0x100000
WS_OF = 0x900000
WS_H = 0xD00000
WS_U = 0x1100000
WS_X2 = 0x1500000
WS_W1P = 0x1700000
WS_W2P = 0x1D00000
WS_ST2 = 0x2300000
WS_XC = 0x2380000
WS_DIAG = 0x2400000
WS_SIZE = 0x4000000
UC = 43 * 4096
PH_KV, PH_O, PH_H, PH_U, PH_X, PH_P, PH_PD = range(7)

L_X = 0
L_RING = 65536
L_R = 147456
L_MISC = 156672
L_SP = L_MISC
L_CP = L_MISC + 1024
L_MR = L_MISC + 2560
LDS_SIZE = 163840

SRD_X, SRD_WQ, SRD_WO, SRD_WS = "s[4:7]", "s[8:11]", "s[12:15]", "s[16:19]"
SRD_DST, SRD_U, SRD_W2P, SRD_T = "s[20:23]", "s[24:27]", "s[28:31]", "s[32:35]"
P_X, P_WQ, P_WO, P_W1, P_B1, P_W2, P_B2, P_OUT, P_DBG, P_WS = 36, 38, 40, 44, 46, 48, 50, 52, 54, 56
sR, sCQ, sWV, sL = "s58", "s59", "s60", "s61"
sN, sNN, sNP = "s62", "s63", "s[62:63]"
sC1, sJ1, sM1 = "s64", "s65", "s66"
sP, sTB, sB = "s67", "s68", "s69"
sCNT = "s100"
sFAST = "s0"
SRD_W1 = "s[96:99]"
POLL_LIMIT = 400000

LOG2E = 1.4426950408889634


def f32(x):
    import struct
    return "0x%08x" % struct.unpack("<I", struct.pack("<f", x))[0]


class Gen:
    def __init__(self, stop_after=None, diag=False):
        self.a = Asm()
        self.stop_after = stop_after
        self.diag = diag
        self.uid = 0
        self.stubs = []
        self.nstamp = 0
        self.layer = 0
        self.tails = []
        self.late = []

    def lab(self, base):
        self.uid += 1
        return f"L_{base}_{self.uid}"

    def srd(self, name, ptr, size, off=None):
        a = self.a
        if off is None:
            a(f"s_mov_b32 s{name}, s{ptr}\ns_mov_b32 s{name+1}, s{ptr+1}")
        else:
            a(f"s_add_u32 s{name}, s{ptr}, {off}\ns_addc_u32 s{name+1}, s{ptr+1}, 0")
        a(f"s_mov_b32 s{name+2}, {size}\ns_mov_b32 s{name+3}, 0x20000")

    def stamp(self, idx):
        if not self.diag:
            return
        a = self.a
        skip = self.lab("st")
        a(f"s_memrealtime s[92:93]\ns_waitcnt lgkmcnt(0)")
        a(f"s_cmp_eq_u32 {sWV}, 0\ns_cbranch_scc0 {skip}")
        with a.cond(skip):
            a(f"s_lshl_b32 s94, s2, 8\ns_lshl_b32 s95, {sL}, 7\ns_add_u32 s94, s94, s95\ns_add_u32 s94, s94, {WS_DIAG + idx*4}")
            a("v_mov_b32 v62, s92\nv_mov_b32 v63, s94\ns_mov_b64 exec, 1")
            a(f"buffer_store_dword v62, v63, {SRD_WS}, 0 offen")
            a("s_mov_b64 exec, -1")
        a.label(skip, reset=False)

    def flag_addr(self, dst, phase, wg):
        a = self.a
        a(f"s_lshl_b32 {dst}, {sL}, 8\ns_add_u32 {dst}, {dst}, {wg}\ns_lshl_b32 {dst}, {dst}, 7")
        a(f"s_add_u32 {dst}, {dst}, {WS_FLAG + phase*2*256*128}")

    def dual(self, fn, sel=sFAST):
        a = self.a
        slow, j = self.lab("slow"), self.lab("dj")
        a(f"s_cmp_eq_u32 {sel}, 0\ns_cbranch_scc1 {slow}")
        a.fork()
        fn("")
        a(f"s_branch {j}")
        a.label(slow, reset=False)
        a.alt()
        fn("sc1")
        a.endfork()
        a.label(j, reset=False)

    def publish(self, phase, wg="s2", also=None, local=False):
        a = self.a
        skip = self.lab("pub")
        a("s_barrier")
        a(f"s_cmp_eq_u32 {sWV}, 0\ns_cbranch_scc0 {skip}")
        with a.cond(skip):
            self.flag_addr("s70", phase, wg)
            a(f"v_mov_b32 v4, {sN}\nv_mov_b32 v5, {sNN}\nv_mov_b32 v6, s70\ns_mov_b64 exec, 1")
            if local:
                self.dual(lambda m: a(f"buffer_store_dwordx2 v[4:5], v6, {SRD_WS}, 0 offen {m}"))
            else:
                a(f"buffer_store_dwordx2 v[4:5], v6, {SRD_WS}, 0 offen sc1")
            if also is not None:
                self.flag_addr("s70", also, wg)
                a(f"v_mov_b32 v6, s70\nbuffer_store_dwordx2 v[4:5], v6, {SRD_WS}, 0 offen sc1")
            a("s_mov_b64 exec, -1")
        a.label(skip, reset=False)

    def flag_store(self, phase):
        a = self.a
        skip = self.lab("fs")
        a(f"s_cmp_eq_u32 {sWV}, 0\ns_cbranch_scc0 {skip}")
        with a.cond(skip):
            self.flag_addr("s78", phase, "s2")
            a(f"v_mov_b32 v4, {sN}\nv_mov_b32 v5, {sNN}\nv_mov_b32 v6, s78\ns_mov_b64 exec, 1")
            a(f"buffer_store_dwordx2 v[4:5], v6, {SRD_WS}, 0 offen sc1")
            a("s_mov_b64 exec, -1")
        a.label(skip, reset=False)

    def poll(self, vaddr, mask):
        a = self.a
        top, ok = self.lab("poll"), self.lab("pok")
        a(f"s_mov_b64 exec, {mask}\ns_mov_b32 {sCNT}, 0")
        a(f"s_cbranch_execz {ok}")
        a.label(top, reset=False)
        with a.cond(top):
            a(f"buffer_load_dwordx2 v[4:5], {vaddr}, {SRD_WS}, 0 offen sc1")
            a("s_waitcnt vmcnt(0)")
            a(f"v_cmp_ne_u64 vcc, {sNP}, v[4:5]")
            a(f"s_cbranch_vccz {ok}")
            for o in OPT:
                if o.startswith("sleep"):
                    a(f"s_sleep {o[5:]}")
            a(f"s_add_u32 {sCNT}, {sCNT}, 1\ns_cmp_lt_u32 {sCNT}, {POLL_LIMIT}\ns_cbranch_scc1 {top}")
            a("s_branch L_fail")
        a.label(ok, reset=False)
        a("s_mov_b64 exec, -1")

    def wg_of(self, dst, r, cq):
        a = self.a
        a(f"v_and_b32 {dst}, 3, {r}\nv_lshlrev_b32 {dst}, 3, {dst}\nv_add_u32 {dst}, {cq}, {dst}\nv_lshlrev_b32 {dst}, 3, {dst}")
        a(f"v_lshrrev_b32 v7, 2, {r}\nv_add_u32 {dst}, {dst}, v7")

    def vflag(self, dst, phase):
        a = self.a
        a(f"s_lshl_b32 s70, {sL}, 15\ns_add_u32 s70, s70, {WS_FLAG + phase*2*256*128}")
        a(f"v_lshlrev_b32 {dst}, 7, {dst}\nv_add_u32 {dst}, s70, {dst}")

    def row_stats_store(self, sums, layer, local=False):
        a = self.a
        for ctl in ("quad_perm:[1,0,3,2]", "quad_perm:[2,3,0,1]", "row_half_mirror"):
            for r0 in sums:
                for k in range(2):
                    a(f"v_add_f32_dpp v{r0+k}, v{r0+k}, v{r0+k} {ctl} row_mask:0xf bank_mask:0xf")
        for r0 in sums:
            a(f"v_mov_b32 v{r0+2}, {sN}\nv_mov_b32 v{r0+3}, {sNN}")
        if isinstance(layer, int):
            a(f"s_add_u32 s72, {sR}, {layer*32}")
        else:
            a(f"s_lshl_b32 s72, {layer}, 5\ns_add_u32 s72, s72, {sR}")
        a(f"s_lshl_b32 s72, s72, 3\ns_add_u32 s72, s72, {sCQ}\ns_lshl_b32 s72, s72, 10\ns_add_u32 s72, s72, {WS_ST2}")
        a("v_lshrrev_b32 v3, 3, v0\nv_lshlrev_b32 v3, 4, v3\nv_and_b32 v4, 7, v0\nv_cmp_eq_u32 vcc, 0, v4\ns_mov_b64 exec, vcc")
        def st(m):
            for i, r0 in enumerate(sums):
                a(f"buffer_store_dwordx4 v[{r0}:{r0+3}], v3, {SRD_WS}, s72 offen offset:{i*512} {m}")
        if local:
            self.dual(st)
        else:
            st("sc1")
        a("s_mov_b64 exec, -1")

    def stop(self, name):
        if self.stop_after == name:
            self.a("s_waitcnt vmcnt(0) lgkmcnt(0)\ns_branch L_end")
            self.a.assume_clean()
            return True
        return False

    def prologue(self):
        a = self.a
        a("s_cmp_ge_u32 s2, 256\ns_cbranch_scc1 L_end")
        if "nocode" not in OPT and "codelate" not in OPT:
            self.code_warmup()
        a("s_load_dwordx16 s[36:51], s[0:1], 0\ns_load_dwordx4 s[52:55], s[0:1], 64\ns_load_dwordx2 s[56:57], s[0:1], 80")
        a("v_and_b32 v1, 63, v0\nv_lshlrev_b32 v2, 4, v1\nv_lshrrev_b32 v3, 6, v0")
        a(f"v_readfirstlane_b32 {sWV}, v3")
        a(f"s_and_b32 s70, s2, 7\ns_lshr_b32 s71, s2, 3")
        a(f"s_lshr_b32 s72, s71, 3\ns_lshl_b32 {sR}, s70, 2\ns_add_u32 {sR}, {sR}, s72\ns_and_b32 {sCQ}, s71, 7")
        a(f"s_and_b32 s72, s70, 1\ns_lshl_b32 s72, s72, 2\ns_and_b32 s73, s71, 3\ns_add_u32 {sC1}, s72, s73")
        a("s_lshr_b32 s72, s70, 1\ns_lshr_b32 s73, s71, 2")
        a("s_mul_i32 s74, s72, 7\ns_min_u32 s75, s72, 1\ns_add_u32 s74, s74, s75")
        a(f"s_add_u32 {sJ1}, s74, s73")
        a("s_cmp_eq_u32 s72, 0\ns_cselect_b32 s75, 8, 7")
        a(f"s_cmp_lt_u32 s73, s75\ns_cselect_b32 {sM1}, 1, 0")
        a(f"s_and_b32 {sP}, {sWV}, 1\ns_lshr_b32 {sTB}, {sWV}, 1\ns_xor_b32 {sB}, {sP}, {sTB}")
        a(f"s_mov_b32 {sL}, 0")
        a("s_waitcnt lgkmcnt(0)")
        self.srd(4, P_X, 2 << 20)
        self.srd(8, P_WQ, 512 * 1536 * 2)
        a("v_lshlrev_b32 v3, 7, v1")
        if "noxw" not in OPT:
            a(f"s_lshl_b32 s70, {sCQ}, 2\ns_add_u32 s70, s70, {sWV}\ns_lshl_b32 s70, s70, 11\ns_lshl_b32 s71, {sR}, 16\ns_add_u32 s70, s70, s71")
            a(f"s_mov_b64 exec, 0xffff\nbuffer_load_dword v231, v3, {SRD_X}, s70 offen\ns_mov_b64 exec, -1")
        if "wq2" in OPT:
            a(f"s_lshr_b32 s70, s2, 3\ns_lshl_b32 s70, s70, 2\ns_add_u32 s70, s70, {sWV}\ns_mul_i32 s70, s70, {96*128}")
            a(f"buffer_load_dword v248, v3, {SRD_WQ}, s70 offen\ns_add_u32 s70, s70, 8192\ns_mov_b32 exec_hi, 0\nbuffer_load_dword v230, v3, {SRD_WQ}, s70 offen\ns_mov_b64 exec, -1")
        elif "nowq" not in OPT:
            a(f"s_lshl_b32 s70, s2, 2\ns_add_u32 s70, s70, {sWV}\ns_mul_i32 s70, s70, 1536")
            a(f"s_mov_b64 exec, 0xfff\nbuffer_load_dword v248, v3, {SRD_WQ}, s70 offen\ns_mov_b64 exec, -1")
        self.srd(12, P_WO, 512 * 512 * 2)
        if "bias" in OPT:
            a(f"s_lshl_b32 s70, s2, 2\ns_add_u32 s70, s70, {sWV}\ns_lshl_b32 s71, s70, 9\ns_mov_b64 exec, 0xf\nbuffer_load_dword v226, v3, {SRD_WO}, s71 offen")
            a("s_and_b32 s71, s70, 31\ns_lshl_b32 s71, s71, 7\ns_mov_b64 exec, 1")
            self.srd(32, P_B1, 2752)
            a(f"buffer_load_dword v227, v3, {SRD_T}, s71 offen")
            self.srd(32, P_B2, 4096)
            a(f"buffer_load_dword v228, v3, {SRD_T}, s71 offen\ns_mov_b64 exec, -1")
        self.srd(16, P_WS, WS_SIZE)
        if "ctl" in OPT:
            a(f"s_lshl_b32 s70, s2, 2\ns_add_u32 s70, s70, {sWV}\nv_lshlrev_b32 v3, 7, v1")
            a(f"s_lshl_b32 s71, s70, 10\ns_mov_b64 exec, 0xff\nbuffer_load_dword v224, v3, {SRD_WS}, s71 offen sc1")
            a(f"s_mul_i32 s71, s70, 640\ns_add_u32 s71, s71, {WS_ST2}\ns_mov_b64 exec, 0x1f\nbuffer_load_dword v225, v3, {SRD_WS}, s71 offen sc1")
            a(f"s_lshl_b32 s71, s70, 9\ns_mov_b64 exec, 0xf\nbuffer_load_dword v226, v3, {SRD_WO}, s71 offen")
            a("s_and_b32 s71, s70, 31\ns_lshl_b32 s71, s71, 7\ns_mov_b64 exec, 1")
            self.srd(32, P_B1, 2752)
            a(f"buffer_load_dword v227, v3, {SRD_T}, s71 offen")
            self.srd(32, P_B2, 4096)
            a(f"buffer_load_dword v228, v3, {SRD_T}, s71 offen\ns_mov_b64 exec, -1")
        self.srd(28, P_W2, 1376 * 4096)
        self.srd(96, P_W1, 2048 * 2752)
        self.srd(20, P_WS, 2 << 20, WS_X2)
        if "wuA" in OPT:
            self.mix_warmup("v229", "v230")
        if "wuA1" in OPT:
            self.mix_warmup("v229", None)
        a(f"v_mov_b32 v3, {WS_EPOCH}")
        a(f"buffer_load_dword v250, v3, {SRD_WS}, 0 offen sc1")
        a("v_lshrrev_b32 v3, 3, v0\nv_and_b32 v4, 7, v0")
        a(f"s_lshl_b32 s70, {sR}, 16\ns_lshl_b32 s71, {sCQ}, 7\ns_add_u32 s70, s70, s71")
        a("v_lshlrev_b32 v5, 10, v3\nv_lshl_add_u32 v5, v4, 4, v5")
        a(f"buffer_load_dwordx4 v[240:243], v5, {SRD_X}, s70 offen")
        a("s_add_u32 s70, s70, 32768")
        a(f"buffer_load_dwordx4 v[244:247], v5, {SRD_X}, s70 offen")

    def mix_warmup(self, d1, d2, tmp="s70"):
        a = self.a
        a(f"s_lshl_b32 {tmp}, s2, 2\ns_add_u32 {tmp}, {tmp}, {sWV}\ns_mul_i32 {tmp}, {tmp}, {43*128}\nv_lshlrev_b32 v3, 7, v1")
        a("s_mov_b32 exec_lo, -1\ns_mov_b32 exec_hi, 0x7ff")
        if d1:
            a(f"buffer_load_dword {d1}, v3, {SRD_W1}, {tmp} offen")
        if d2:
            a(f"buffer_load_dword {d2}, v3, {SRD_W2P}, {tmp} offen")
        a("s_mov_b64 exec, -1")

    def code_warmup(self):
        a = self.a
        a("s_getpc_b64 s[32:33]")
        a.label("L_pc", reset=False)
        a(f"s_sub_u32 s32, s32, L_pc-{KNAME}\ns_subb_u32 s33, s33, 0\ns_mov_b32 s34, L_code_end-{KNAME}\ns_mov_b32 s35, 0x20000")
        a("v_and_b32 v3, 63, v0\nv_lshrrev_b32 v4, 6, v0\nv_mul_u32_u24 v4, 640, v4\nv_lshl_add_u32 v3, v3, 7, v4")
        a("s_lshr_b32 s72, s2, 3\ns_mul_i32 s72, s72, 2560")
        a(f"s_mov_b64 exec, 0x1f\nbuffer_load_dword v249, v3, {SRD_T}, s72 offen\ns_mov_b64 exec, -1")

    def code_warmup2(self):
        a = self.a
        lab = self.lab("pc")
        a("s_getpc_b64 s[32:33]")
        a.label(lab, reset=False)
        a(f"s_add_u32 s32, s32, L_layer1-{lab}\ns_addc_u32 s33, s33, 0\ns_mov_b32 s34, L_code_end-L_layer1\ns_mov_b32 s35, 0x20000")
        a("v_lshrrev_b32 v4, 6, v0\nv_mul_u32_u24 v4, 384, v4\nv_lshl_add_u32 v3, v1, 7, v4")
        a("s_lshr_b32 s72, s2, 3\ns_mul_i32 s72, s72, 1536")
        a(f"s_mov_b64 exec, 7\nbuffer_load_dword v61, v3, {SRD_T}, s72 offen\ns_mov_b64 exec, -1")

    def prologue_tail(self):
        a = self.a
        if "wuB" in OPT:
            self.mix_warmup("v229", "v230")
        a(f"v_lshlrev_b32 v3, 21, v1\ns_mov_b64 exec, 0x3ffff\nbuffer_load_dword v251, v3, {SRD_WS}, 0 offen\ns_mov_b64 exec, -1")
        if "tlb" in OPT:
            a(f"s_mov_b64 exec, 7\nbuffer_load_dword v253, v3, {SRD_W1}, 0 offen\nbuffer_load_dword v254, v3, {SRD_W2P}, 0 offen\ns_mov_b64 exec, 1")
            self.srd(32, P_OUT, 2 << 20)
            a(f"buffer_load_dword v255, v3, {SRD_T}, 0 offen")
            self.srd(32, P_B1, 2752)
            a(f"buffer_load_dword v249, v3, {SRD_T}, 0 offen")
            self.srd(32, P_B2, 4096)
            a(f"buffer_load_dword v248, v3, {SRD_T}, 0 offen\ns_mov_b64 exec, -1")
        if "ctl" not in OPT:
            a(f"s_lshl_b32 s72, s2, 2\ns_add_u32 s72, s72, {sWV}\ns_lshl_b32 s72, s72, 9\nv_lshlrev_b32 v3, 7, v1")
            a(f"s_mov_b64 exec, 0xf\nbuffer_load_dword v252, v3, {SRD_WO}, s72 offen\ns_mov_b64 exec, -1")
        if "codelate" in OPT:
            self.code_warmup()
        a("v_lshrrev_b32 v3, 3, v0\nv_and_b32 v4, 7, v0")
        a("v_mul_u32_u24 v6, 144, v3\nv_lshl_add_u32 v6, v4, 4, v6")
        a(f"v_add_u32 v6, {L_R}, v6")
        a(f"v_readfirstlane_b32 {sN}, v250")
        a(f"s_add_u32 {sN}, {sN}, 1\ns_not_b32 {sNN}, {sN}")
        a("ds_write_b128 v6, v[240:243]\nds_write_b128 v6, v[244:247] offset:4608")
        for h, (src, dst) in enumerate(((240, 232), (244, 236))):
            a(f"v_mov_b32 v{dst}, 0\nv_mov_b32 v{dst+1}, 0")
            for k in range(4):
                a(f"v_lshlrev_b32 v8, 16, v{src+k}\nv_and_b32 v9, 0xffff0000, v{src+k}")
                a(f"v_add_f32 v{dst}, v{dst}, v8\nv_fmac_f32 v{dst+1}, v8, v8\nv_add_f32 v{dst}, v{dst}, v9\nv_fmac_f32 v{dst+1}, v9, v9")
        self.row_stats_store([232, 236], 0)
        a(f"s_getreg_b32 s72, hwreg(HW_REG_XCC_ID)\ns_and_b32 s1, s72, 15\ns_mov_b32 {sFAST}, 0")
        a(f"s_lshl_b32 s72, {sR}, 3\ns_add_u32 s72, s72, {sCQ}\ns_lshl_b32 s72, s72, 4\ns_add_u32 s72, s72, {WS_XC}")
        a(f"v_mov_b32 v232, s1\nv_mov_b32 v233, 0\nv_mov_b32 v234, {sN}\nv_mov_b32 v235, {sNN}\nv_mov_b32 v3, s72")
        sk = self.lab("xc")
        a(f"s_cmp_eq_u32 {sWV}, 0\ns_cbranch_scc0 {sk}")
        with a.cond(sk):
            a(f"s_mov_b64 exec, 1\nbuffer_store_dwordx4 v[232:235], v3, {SRD_WS}, 0 offen sc1\ns_mov_b64 exec, -1")
        a.label(sk, reset=False)

    def w_dma(self, s, only=None, sg="s70", sl="s71", st="s72", va="v12"):
        a = self.a
        slot = L_RING + (s % 5) * 16384
        for n in range(4):
            if only is not None and n != only:
                continue
            if s < 8:
                part = n >> 1
                krow = 64 * s + (n & 1) * 32
                col = 1024 * (1 + part)
                lds = slot + part * 8192 + (n & 1) * 4096
            else:
                krow = 128 * (s - 8) + 32 * n
                col = 0
                lds = slot + n * 4096
            a(f"s_add_u32 m0, {sl}, {lds}\ns_add_u32 {st}, {sg}, {krow*3072 + col}")
            a(f"buffer_load_dwordx4 {va}, {SRD_WQ}, {st} offen lds", tag=f"W{s}")

    def w_dma_setup(self, sg="s70", sl="s71", st="s72"):
        a = self.a
        a(f"s_mul_i32 {sg}, {sWV}, {8*3072}\ns_lshl_b32 {st}, {sCQ}, 7\ns_add_u32 {sg}, {sg}, {st}\ns_lshl_b32 {sl}, {sWV}, 10")

    def q_addr_w(self, dst=12):
        a = self.a
        a(f"v_lshrrev_b32 v3, 3, v1\nv_mul_u32_u24 v{dst}, 3072, v3\nv_bfe_u32 v4, v1, 4, 1\nv_lshlrev_b32 v4, 2, v4")
        a(f"v_and_b32 v5, 7, v1\nv_xor_b32 v5, v5, v4\nv_lshl_add_u32 v{dst}, v5, 4, v{dst}")

    def q_addr_x(self):
        a = self.a
        a("v_lshrrev_b32 v3, 3, v1")
        for e in range(2):
            a(f"s_lshl_b32 s72, {sWV}, 4\ns_add_u32 s72, s72, {8*e}\nv_add_u32 v6, s72, v3")
            a(f"v_bfe_u32 v7, v6, 1, 3\nv_and_b32 v5, 7, v1\nv_xor_b32 v5, v5, v7\nv_lshlrev_b32 v6, 10, v6\nv_lshl_add_u32 v{10+e}, v5, 4, v6")

    def q_addr(self):
        self.q_addr_w()
        self.q_addr_x()
        self.w_dma_setup()

    def q_addr2(self):
        a = self.a
        a(f"v_and_b32 v3, 31, v1\ns_lshl_b32 s72, {sTB}, 5\nv_add_u32 v3, s72, v3\nv_bfe_u32 v4, v3, 1, 3\nv_lshrrev_b32 v5, 5, v1")
        for k in range(4):
            a(f"s_xor_b32 s72, {sB}, {k}\ns_lshl_b32 s72, s72, 1\nv_add_u32 v6, s72, v5\nv_xor_b32 v6, v6, v4")
            a(f"v_lshlrev_b32 v6, 4, v6\nv_lshl_add_u32 v{13+k}, v3, 7, v6")
        a("v_and_b32 v3, 15, v1\nv_lshrrev_b32 v4, 2, v3\nv_lshrrev_b32 v5, 5, v1\nv_lshl_add_u32 v4, v5, 3, v4")
        a(f"v_bfe_u32 v5, v1, 4, 1\nv_lshlrev_b32 v5, 1, v5\nv_bfe_u32 v6, v1, 1, 1\nv_add_u32 v5, v5, v6")
        a(f"s_lshl_b32 s72, {sP}, 2\nv_add_u32 v5, s72, v5\nv_bfe_u32 v6, v1, 3, 1\nv_lshlrev_b32 v6, 2, v6\nv_xor_b32 v5, v5, v6")
        a("v_lshlrev_b32 v5, 4, v5\nv_lshl_add_u32 v5, v4, 7, v5\nv_and_b32 v6, 1, v1\nv_lshl_add_u32 v5, v6, 3, v5")
        for e in range(2):
            a(f"s_xor_b32 s72, {sB}, {e}\ns_lshl_b32 s72, s72, 11\ns_add_u32 s72, s72, {L_RING}")
            a(f"v_add_u32 v{17+e}, s72, v5\nv_add_u32 v{19+e}, 49152, v{17+e}")
        a("v_mov_b32 v21, 0\nv_mov_b32 v24, 0\nv_mov_b32 v25, 0")
        a("s_mov_b32 s74, 0x3f803f80")
        a(f"s_lshl_b32 s72, {sL}, 5\ns_add_u32 s72, s72, {sR}\ns_lshl_b32 s75, s72, 13\ns_add_u32 s75, s75, {WS_ST2}")
        a(f"v_and_b32 v3, 31, v1\ns_lshl_b32 s72, {sTB}, 5\nv_add_u32 v3, s72, v3\nv_lshlrev_b32 v3, 4, v3\nv_lshrrev_b32 v4, 5, v1\nv_lshl_add_u32 v61, v4, 12, v3")

    def x_dma(self, kc, only=None, st="s72"):
        a = self.a
        for e in range(2):
            if only is not None and e != only:
                continue
            a(f"s_add_u32 m0, s77, {L_X + kc*8192 + e*1024}\ns_add_u32 {st}, s76, {kc*128}")
            a(f"buffer_load_dwordx4 v{10+e}, {SRD_X}, {st} offen sc1 lds", tag=f"X{kc}")

    def q_entry(self, layer):
        a = self.a
        a.c(f"======== QKV phase entry, layer {layer}")
        if layer == 0:
            self.q_addr()
        else:
            self.q_addr_x()
        a(f"s_lshl_b32 s76, {sR}, 16\ns_lshl_b32 s77, {sWV}, 11")
        if layer == 0:
            dm = []
            for s_ in range(5):
                dm += [a.capture(lambda s_=s_, n=n: self.w_dma(s_, only=n, st="s78")) for n in range(4)]
                dm += [a.capture(lambda s_=s_, e=e: self.x_dma(s_, only=e, st="s78")) for e in range(2)]
            for kc in range(5, 8):
                dm += [a.capture(lambda kc=kc, e=e: self.x_dma(kc, only=e, st="s78")) for e in range(2)]
            a.weave(dm, a.capture(self.q_addr2))
            self.stamp(0)
            self.prologue_tail()
            self.stamp(1)
        else:
            self.q_addr2()
            a(f"v_mov_b32 v8, {sR}")
            a(f"v_and_b32 v9, 3, v8\nv_lshlrev_b32 v9, 3, v9\nv_add_u32 v9, v1, v9\nv_lshlrev_b32 v9, 3, v9")
            a(f"v_lshrrev_b32 v7, 2, v8\nv_add_u32 v9, v9, v7")
            a(f"v_lshlrev_b32 v9, 7, v9\nv_add_u32 v9, {WS_FLAG + PH_X*2*256*128}, v9")
            self.stamp(0)
            a.wait_tag("Xst")
            a(f"s_mov_b32 {sL}, 0")
            self.publish(PH_X, local=True)
            a(f"s_mov_b32 {sL}, 1")
            if "noweave" in OPT:
                self.stat_loads()
                a("v_mov_b32 v30, v9")
                self.ln_init_a(); self.row_stats(); self.ln_init_b()
                self.poll("v30", "0xff")
                self.stamp(1)
                for kc in range(8):
                    self.x_dma(kc)
            else:
                self.poll("v9", "0xff")
                self.stamp(1)
                self.stat_loads()
                dmas = [a.capture(lambda kc=kc, e=e: self.x_dma(kc, only=e)) for kc in range(8) for e in range(2)]
                a.weave(dmas[:4], a.capture(self.ln_init_a))
                self.row_stats()
                a.weave(dmas[4:], a.capture(self.ln_init_b))

    XF, WF, AK, AV, AQ = 64, 32, 192, 208, 224

    def row_stats(self):
        a = self.a
        top, ok = self.lab("s2p"), self.lab("s2o")
        a(f"s_mov_b32 {sCNT}, 0")
        a.label(top, reset=False)
        a(f"v_cmp_ne_u64 vcc, {sNP}, v[242:243]")
        for k in range(1, 4):
            a(f"v_cmp_ne_u64 s[72:73], {sNP}, v[{242+4*k}:{243+4*k}]\ns_or_b64 vcc, vcc, s[72:73]")
        a(f"s_cbranch_vccz {ok}")
        with a.cond(top):
            self.stat_loads()
            a("s_waitcnt vmcnt(0)")
            a(f"s_add_u32 {sCNT}, {sCNT}, 1\ns_cmp_lt_u32 {sCNT}, {POLL_LIMIT}\ns_cbranch_scc1 {top}\ns_branch L_fail")
        a.label(ok, reset=False)
        a("v_add_f32 v26, v240, v244\nv_add_f32 v27, v241, v245\nv_add_f32 v28, v248, v252\nv_add_f32 v29, v249, v253")
        a("v_add_f32 v26, v26, v28\nv_add_f32 v27, v27, v29\nv_mov_b32 v28, v26\nv_mov_b32 v29, v27")
        a("v_permlane32_swap_b32 v26, v28\nv_permlane32_swap_b32 v27, v29\nv_add_f32 v26, v26, v28\nv_add_f32 v27, v27, v29")
        a(f"v_mul_f32 v26, {f32(1/512)}, v26\nv_mul_f32 v27, {f32(1/512)}, v27")
        a(f"v_fma_f32 v27, -v26, v26, v27\nv_max_f32 v27, 0, v27\nv_add_f32 v27, {f32(1e-5)}, v27\nv_rsq_f32 v27, v27")

    def ln_init_a(self):
        a = self.a
        AK, AV, AQ = self.AK, self.AV, self.AQ
        a("v_and_b32 v3, 31, v1\nv_lshrrev_b32 v5, 5, v1")
        a(f"s_mul_i32 s73, {sP}, 768\ns_add_u32 s73, s73, {L_CP}")
        a("v_lshl_add_u32 v56, v5, 4, s73\nv_lshl_add_u32 v57, v3, 2, s73")
        for part, dst in ((0, AK), (384, 32), (256, AQ), (384 + 256, AV)):
            for q in range(4):
                a(f"ds_read_b128 v[{dst+4*q}:{dst+4*q+3}], v56 offset:{part + 32*q}")
        a("ds_read_b32 v58, v57 offset:128\nds_read_b32 v59, v57 offset:512")

    def ln_init_b(self):
        a = self.a
        AK, AV, AQ = self.AK, self.AV, self.AQ
        a(f"s_lshl_b32 s73, {sWV}, 8\ns_add_u32 s73, s73, {L_MR}\nv_lshl_add_u32 v4, v3, 2, s73")
        a("ds_write_b32 v4, v26\nds_write_b32 v4, v27 offset:128")
        a("v_lshl_add_u32 v60, v5, 4, s73")
        for i in range(16):
            a(f"v_add_f32 v{AK+i}, v{AK+i}, v{32+i}\nv_add_f32 v{AQ+i}, v{AQ+i}, v{AV+i}")
        a("v_add_f32 v58, v58, v59\ns_waitcnt lgkmcnt(0)")
        for q in range(4):
            a(f"ds_read_b128 v[{AV+4*q}:{AV+4*q+3}], v60 offset:{32*q}")
        for i in range(16):
            a(f"v_mul_f32 v{AK+i}, -v26, v{AK+i}\nv_mul_f32 v{AQ+i}, -v26, v{AQ+i}")
        for i in range(16):
            a(f"v_mul_f32 v{AV+i}, -v58, v{AV+i}")

    def waddr(self, s, e):
        slot = s % 5
        return (f"v{17+e}", slot * 16384) if slot < 3 else (f"v{19+e}", (slot - 3) * 16384)

    def stage_sync(self, s):
        a = self.a
        a.wait_tag(f"W{s}", f"X{s}") if s < 8 else a.wait_tag(f"W{s}")
        a("s_barrier")

    def stat_loads(self):
        for k in range(4):
            self.a(f"buffer_load_dwordx4 v[{240+4*k}:{243+4*k}], v61, {SRD_WS}, s75 offen offset:{k*1024} sc1")

    def kv_pass(self, first):
        a = self.a
        XF, WF, AK, AV = self.XF, self.WF, self.AK, self.AV
        a.c("======== K/V projection" + (" (layer 0)" if first else " (layer 1)"))

        def reads_kv(n, part=None):
            s, k = n >> 2, n & 3
            reg, off = self.waddr(s, k & 1)
            wf = WF + (n % 3) * 8
            for pt in range(2):
                if part is not None and pt != part:
                    continue
                if pt == 0:
                    a(f"ds_read_b128 v[{XF+4*n}:{XF+4*n+3}], v{13+k} offset:{L_X + s*8192}")
                for rd in range(2):
                    a(f"ds_read_b64_tr_b16 v[{wf+4*pt+2*rd}:{wf+4*pt+2*rd+1}], {reg} offset:{off + pt*8192 + (k >> 1)*4096 + rd*512}")
        self.w_dma_setup()
        self.stamp(20)
        self.stage_sync(0)
        self.stamp(21)
        reads_kv(0); reads_kv(1)
        for n in range(32):
            wf = WF + (n % 3) * 8
            x = f"v[{XF+4*n}:{XF+4*n+3}]"
            ck = "0" if n == 0 and first else f"v[{AK}:{AK+15}]"
            cv = "0" if n == 0 and first else f"v[{AV}:{AV+15}]"
            a(f"v_mfma_f32_32x32x16_bf16 v[{AK}:{AK+15}], v[{wf}:{wf+3}], {x}, {ck}")
            if n + 2 < 32:
                if (n + 2) % 4 == 0:
                    self.stage_sync((n + 2) >> 2)
                reads_kv(n + 2, 0)
            a(f"v_mfma_f32_32x32x16_bf16 v[{AV}:{AV+15}], {x}, v[{wf+4}:{wf+7}], {cv}")
            if n + 2 < 32:
                reads_kv(n + 2, 1)
            sfree = (n + 2) >> 2
            if n >= 6 and sfree + 3 < 11:
                self.w_dma(sfree + 3, only=(n + 2) & 3)
            if n == 24 and first:
                self.stat_loads()
            if n == 28 and not first:
                for q in range(4):
                    a(f"ds_read_b128 v[{240+4*q}:{243+4*q}], v60 offset:{128 + 32*q}")
            if first and n % 2 == 0:
                for i in range(4):
                    a(f"v_dot2c_f32_bf16 v24, s74, v{wf+i}\nv_dot2c_f32_bf16 v25, s74, v{wf+4+i}")

    def k_store(self):
        a = self.a
        AK = self.AK
        a(f"s_lshl_b32 s75, {sCQ}, 1\ns_add_u32 s75, s75, {sP}\ns_lshl_b32 s75, s75, 6\ns_lshl_b32 s76, {sR}, 1\ns_add_u32 s75, s75, s76")
        a(f"s_add_u32 s75, s75, {sTB}\ns_lshl_b32 s75, s75, 12\ns_lshl_b32 s76, {sL}, 22\ns_add_u32 s75, s75, s76\ns_add_u32 s75, s75, {WS_KV}")
        a(f"buffer_store_dwordx4 v[{AK}:{AK+3}], v2, {SRD_WS}, s75 offen sc1", tag="KVst")
        a(f"buffer_store_dwordx4 v[{AK+4}:{AK+7}], v2, {SRD_WS}, s75 offen offset:2048 sc1", tag="KVst")

    def v_store(self):
        a = self.a
        AV = self.AV
        a("v_bfe_u32 v3, v1, 4, 1\nv_lshlrev_b32 v3, 11, v3\nv_lshrrev_b32 v5, 5, v1\nv_lshl_add_u32 v3, v5, 8, v3")
        a("v_and_b32 v5, 15, v1\nv_lshl_add_u32 v3, v5, 4, v3")
        a(f"buffer_store_dwordx4 v[{AV}:{AV+3}], v3, {SRD_WS}, s75 offen offset:1024 sc1", tag="KVst")
        a(f"buffer_store_dwordx4 v[{AV+4}:{AV+7}], v3, {SRD_WS}, s75 offen offset:1536 sc1", tag="KVst")

    def kv_epilogue_l1(self):
        a = self.a
        AK, AV = self.AK, self.AV
        self.stamp(2)
        for i in range(16):
            a(f"v_mul_f32 v{AK+i}, v27, v{AK+i}")
        for k in range(8):
            a(f"v_cvt_pk_bf16_f32 v{AK+k}, v{AK+2*k}, v{AK+2*k+1}")
        self.k_store()
        for i in range(16):
            a(f"v_mul_f32 v{AV+i}, v{240+i}, v{AV+i}")
        for k in range(8):
            a(f"v_cvt_pk_bf16_f32 v{AV+k}, v{AV+2*k}, v{AV+2*k+1}")
        self.v_store()

    def q_phase(self, layer):
        a = self.a
        first = layer == 0
        XF, WF, AK, AV, AQ = self.XF, self.WF, self.AK, self.AV, self.AQ
        waddr, stage_sync = self.waddr, self.stage_sync
        if first:
            self.stamp(2)
            a("v_and_b32 v3, 31, v1")
            a(f"s_lshl_b32 s72, {sP}, 1\ns_add_u32 s72, s72, {sTB}\ns_mul_i32 s72, s72, 384\ns_add_u32 s72, s72, {L_CP}")
            a("v_lshl_add_u32 v9, v3, 2, s72")
            a("v_mov_b32 v26, v24\nv_mov_b32 v27, v25\nv_permlane32_swap_b32 v24, v26\nv_permlane32_swap_b32 v25, v27")
            a("v_add_f32 v24, v24, v26\nv_add_f32 v25, v25, v27")
            a("ds_write_b32 v9, v24\nds_write_b32 v9, v25 offset:128")
            a("s_waitcnt lgkmcnt(0)\ns_barrier")
            self.row_stats()
            a(f"s_mul_i32 s72, {sP}, 768\ns_add_u32 s72, s72, {L_CP}")
            a("v_lshrrev_b32 v5, 5, v1\nv_lshl_add_u32 v56, v5, 4, s72")
            for q in range(4):
                a(f"ds_read_b128 v[{240+4*q}:{243+4*q}], v56 offset:{32*q}")
            for q in range(4):
                a(f"ds_read_b128 v[{32+4*q}:{35+4*q}], v56 offset:{384 + 32*q}")
            a("v_lshl_add_u32 v57, v3, 2, s72\nds_read_b32 v58, v57 offset:128\nds_read_b32 v59, v57 offset:512")
            a(f"s_lshl_b32 s72, {sWV}, 8\ns_add_u32 s72, s72, {L_MR}\nv_lshl_add_u32 v4, v3, 2, s72")
            a("ds_write_b32 v4, v26\nds_write_b32 v4, v27 offset:128")
            for i in range(16):
                a(f"v_add_f32 v{240+i}, v{240+i}, v{32+i}")
            a("v_add_f32 v58, v58, v59")
            a(f"v_lshl_add_u32 v4, v5, 4, s72")
            a("s_waitcnt lgkmcnt(0)")
            for q in range(4):
                a(f"ds_read_b128 v[{32+4*q}:{35+4*q}], v4 offset:{32*q}")
            for q in range(2):
                a(f"ds_read_b128 v[{48+4*q}:{51+4*q}], v4 offset:{128 + 32*q}")
            for i in range(16):
                a(f"v_fma_f32 v{AK+i}, -v26, v{240+i}, v{AK+i}")
            for i in range(16):
                a(f"v_mul_f32 v{AK+i}, v27, v{AK+i}")
            for k in range(8):
                a(f"v_cvt_pk_bf16_f32 v{AK+k}, v{AK+2*k}, v{AK+2*k+1}")
            self.k_store()
            for q in range(2, 4):
                a(f"ds_read_b128 v[{240+4*q}:{243+4*q}], v4 offset:{128 + 32*q}")
            rs = lambda i: (48 + i) if i < 8 else (240 + i)
            for i in range(16):
                a(f"v_fma_f32 v{AV+i}, -v{32+i}, v58, v{AV+i}")
            for i in range(16):
                a(f"v_mul_f32 v{AV+i}, v{rs(i)}, v{AV+i}")
            for k in range(8):
                a(f"v_cvt_pk_bf16_f32 v{AV+k}, v{AV+2*k}, v{AV+2*k+1}")
            self.v_store()
        else:
            self.kv_epilogue_l1()
        self.stamp(3)

        def reads_q(n):
            s, k = 8 + (n >> 3), n & 7
            reg, off = waddr(s, k & 1)
            wf = WF + (n % 3) * 8
            for rd in range(2):
                a(f"ds_read_b64_tr_b16 v[{wf+2*rd}:{wf+2*rd+1}], {reg} offset:{off + (k >> 1)*4096 + rd*512}")
        self.w_dma_setup()
        stage_sync(8)
        reads_q(0); reads_q(1)
        for n in range(32):
            wf = WF + (n % 3) * 8
            cq = "0" if n == 0 and first else f"v[{AQ}:{AQ+15}]"
            a(f"v_mfma_f32_32x32x16_bf16 v[{AQ}:{AQ+15}], v[{wf}:{wf+3}], v[{XF+4*n}:{XF+4*n+3}], {cq}")
            if n + 2 < 32:
                if (n + 2) % 8 == 0:
                    last = (n + 2) == 24
                    if last:
                        a.wait_tag("KVst")
                    stage_sync(8 + ((n + 2) >> 3))
                    if last:
                        self.flag_store(PH_KV)
                reads_q(n + 2)
            if n < 4:
                self.w_dma(11, only=n)
            if n == 4 and first and "wuD" in OPT:
                self.mix_warmup("v22", "v23", tmp="s77")
            if n == 4 and first and "wuD2" in OPT:
                self.mix_warmup(None, "v23", tmp="s77")
            if first and n % 2 == 0:
                for i in range(4):
                    a(f"v_dot2c_f32_bf16 v21, s74, v{wf+i}")
        if first:
            a("v_mov_b32 v28, v21\nv_permlane32_swap_b32 v21, v28\nv_add_f32 v21, v21, v28")
            a("ds_write_b32 v9, v21 offset:256")
        a("s_waitcnt lgkmcnt(0)\ns_barrier")
        self.stamp(4)
        if "ownlate" not in OPT and self.stop_after != "q":
            from gen2 import own_tile_dma
            own_tile_dma(self)
        if first:
            for q in range(4):
                a(f"ds_read_b128 v[{240+4*q}:{243+4*q}], v56 offset:{256 + 32*q}")
            for q in range(4):
                a(f"ds_read_b128 v[{32+4*q}:{35+4*q}], v56 offset:{384 + 256 + 32*q}")
            for i in range(16):
                a(f"v_add_f32 v{240+i}, v{240+i}, v{32+i}")
            for i in range(16):
                a(f"v_fma_f32 v{AQ+i}, -v26, v{240+i}, v{AQ+i}")
        a(f"v_mul_f32 v27, {f32(0.25*LOG2E)}, v27")
        for i in range(16):
            a(f"v_mul_f32 v{AQ+i}, v27, v{AQ+i}")
        for k in range(8):
            a(f"v_cvt_pk_bf16_f32 v{AQ+k}, v{AQ+2*k}, v{AQ+2*k+1}")

    def wo_dma(self):
        a = self.a
        a("v_lshrrev_b32 v3, 3, v1\nv_lshlrev_b32 v3, 10, v3\nv_bfe_u32 v4, v1, 1, 2\nv_bfe_u32 v5, v1, 4, 2\nv_xor_b32 v4, v4, v5")
        a("v_lshlrev_b32 v4, 1, v4\nv_and_b32 v5, 1, v1\nv_add_u32 v4, v4, v5\nv_lshl_add_u32 v19, v4, 4, v3")
        a(f"s_lshl_b32 s78, {sWV}, 17\ns_lshl_b32 s73, {sCQ}, 7\ns_add_u32 s78, s78, s73\ns_lshl_b32 s79, {sWV}, 14")

        def one(n):
            return (f"s_add_u32 m0, s79, {L_X + n*1024}\ns_add_u32 s72, s78, {n*8192}\n"
                    f"buffer_load_dwordx4 v19, {SRD_WO}, s72 offen lds")
        return one

    def build(self):
        a = self.a
        self.prologue()
        from gen2 import rest, finish
        for layer in range(2):
            self.layer = layer
            if layer == 1:
                a.label("L_layer1", reset=False)
            self.q_entry(layer)
            self.kv_pass(layer == 0)
            self.q_phase(layer)
            if self.stop("q") or rest(self):
                break
        finish(self)
        a.label("L_fail", reset=False)
        self.srd(32, P_DBG, 256)
        a("v_mov_b32 v4, 0xdead\nv_mov_b32 v5, 0\ns_mov_b64 exec, 1")
        a(f"buffer_store_dword v4, v5, {SRD_T}, 0 offen")
        a.label("L_end", reset=False)
        a("s_endpgm")
        a.label("L_code_end", reset=False)
        body = a.finalize()
        head = open("interleave_layers__sliding_block__mixer_token_mlp__prompt.s.ref").read().split("\n")
        hdr = [l for l in head if l.startswith(";") and "@launch" not in l and "Override launch" not in l and "grid=ceil" not in l]
        hdr = hdr[:hdr.index(next(l for l in hdr if "d_ws" in l)) + 1]
        out = "\n".join(hdr) + f"\n; @launch grid=(256,1,1) block=(256,1,1) lds={LDS_SIZE}\n"
        out += '.amdgcn_target "amdgcn-amd-amdhsa--gfx950"\n.text\n'
        out += f".globl {KNAME}\n.p2align 8\n.type {KNAME},@function\n{KNAME}:\n"
        out += body
        out += f'''.section .rodata,"a"
.p2align 6
.amdhsa_kernel {KNAME}
  .amdhsa_next_free_vgpr 512
  .amdhsa_next_free_sgpr 102
  .amdhsa_accum_offset 256
  .amdhsa_group_segment_fixed_size 0
  .amdhsa_kernarg_size 88
  .amdhsa_user_sgpr_count 2
  .amdhsa_user_sgpr_kernarg_segment_ptr 1
  .amdhsa_system_sgpr_workgroup_id_x 1
.end_amdhsa_kernel
'''
        return out


if __name__ == "__main__":
    import argparse
    ap = argparse.ArgumentParser()
    ap.add_argument("--stop", default=None)
    ap.add_argument("--diag", action="store_true")
    ap.add_argument("-o", default="interleave_layers__sliding_block__mixer_token_mlp__prompt.s")
    args = ap.parse_args()
    g = Gen(stop_after=args.stop, diag=args.diag)
    src = g.build()
    open(args.o, "w").write(src)
    print("written", args.o, g.a.stats, "bytes", len(src))
```

```python
import math
from gen import *

NEG = f32(-1e30)
import os
OPT = set(os.environ.get("KOPT", "").split(","))
NOW2 = "now2wu" in OPT or any(o.startswith("w2p2") for o in OPT)
ROT = "rot" in OPT
INB = "inb" in OPT
sHB, sUO, sACC, sREDO = "s36", 37, "s[40:41]", "s42"


def ar(b, n=4):
    return f"a[{b}:{b+n-1}]"


def vr(b, n=4):
    return f"v[{b}:{b+n-1}]"


QA, QB = 224, 228
SBUF = (64, 80, 96, 112)
NEGM = {"A": 128, "B": 144}
OACC = {"A": 160, "B": 176}
PBUF = {"A": 192, "B": 200}
CDIAG, CFAR, ANDD, ANDF = 208, 232, 32, 40
AK0, AV0 = 0, 72
L_KV = L_RING


def kfrag(b):
    return AK0 + b * 4


def vfrag(b, half):
    return AV0 + ((b & 1) * 2 + half) * 4


def attn_setup(g):
    a = g.a
    a.c("======== attention constants")
    a("v_and_b32 v3, 31, v1\nv_lshrrev_b32 v4, 5, v1\nv_lshlrev_b32 v4, 2, v4\nv_sub_u32 v3, v3, v4")
    a(f"v_mov_b32 v48, 0\nv_mov_b32 v49, {NEG}\nv_mov_b32 v50, 0xffff\nv_mov_b32 v51, 0xffff0000")
    for i in range(16):
        ci = (i & 3) + 8 * (i >> 2)
        sp = f"s[{72 + 2*(i % 4)}:{73 + 2*(i % 4)}]"
        a(f"v_cmp_le_i32 {sp}, {ci}, v3")
        a(f"v_mov_b32 v{OACC['A']+i}, 0\nv_mov_b32 v{OACC['B']+i}, 0")
        a(f"v_cndmask_b32 v{CDIAG+i}, v49, v48, {sp}\nv_cndmask_b32 v{CFAR+i}, v48, v49, {sp}")
        a(f"v_cndmask_b32 v{52 + (i & 1)}, v48, v{50 + (i & 1)}, {sp}")
        if i & 1:
            a(f"v_or_b32 v{ANDD + i//2}, v52, v53\nv_not_b32 v{ANDF + i//2}, v{ANDD + i//2}")
    for i in range(8):
        a(f"v_mov_b32 v{PBUF['A']+i}, 0\nv_mov_b32 v{PBUF['B']+i}, 0")
    for k in range(AV0, AV0 + 16):
        a(f"v_accvgpr_write_b32 a{k}, v48")
    a("v_mov_b32 v54, 0x3f803f80\ns_mov_b32 exec_lo, 0x00110000\ns_mov_b32 exec_hi, 0x00110000")
    for k in range(AV0, AV0 + 16):
        a(f"v_accvgpr_write_b32 a{k}, v54")
    a("s_mov_b64 exec, -1")


def warmup_text(srd, dst):
    return (f"s_lshl_b32 s72, s2, 2\ns_add_u32 s72, s72, {sWV}\ns_mul_i32 s73, s72, {43*128}\nv_lshlrev_b32 v7, 7, v1\n"
            f"s_mov_b32 exec_lo, -1\ns_mov_b32 exec_hi, 0x7ff\n"
            f"buffer_load_dword {dst}, v7, {srd}, s73 offen\ns_mov_b64 exec, -1")


def warmup(g, srd, dst):
    g.a(warmup_text(srd, dst))


def team_check(g):
    a = g.a
    top, ok = g.lab("tc"), g.lab("tco")
    a(f"s_lshl_b32 s72, {sR}, 7\ns_add_u32 s72, s72, {WS_XC}\nv_lshlrev_b32 v3, 4, v1\ns_mov_b32 {sCNT}, 0\ns_mov_b64 exec, 0xff")
    a.label(top, reset=False)
    a(f"buffer_load_dwordx4 v[24:27], v3, {SRD_WS}, s72 offen sc1\ns_waitcnt vmcnt(0)")
    a(f"v_cmp_ne_u64 vcc, {sNP}, v[26:27]\ns_cbranch_vccz {ok}")
    a(f"s_add_u32 {sCNT}, {sCNT}, 1\ns_cmp_lt_u32 {sCNT}, {POLL_LIMIT}\ns_cbranch_scc1 {top}\ns_branch L_fail")
    a.label(ok, reset=False)
    a(f"v_cmp_ne_u32 vcc, s1, v24\ns_cmp_eq_u64 vcc, 0\ns_cselect_b32 {sFAST}, 1, 0\ns_mov_b64 exec, -1")


def x2_touch_text():
    return ("v_lshrrev_b32 v6, 3, v0\nv_and_b32 v3, 7, v0\nv_lshlrev_b32 v6, 10, v6\nv_lshl_add_u32 v6, v3, 4, v6\n"
            f"s_lshl_b32 s72, {sR}, 16\ns_lshl_b32 s73, {sCQ}, 7\ns_add_u32 s72, s72, s73\n"
            f"s_add_u32 s73, s72, 32768\n"
            f"buffer_load_dword v23, v6, {SRD_DST}, s72 offen sc1\nbuffer_load_dword v24, v6, {SRD_DST}, s73 offen sc1\n"
            f"s_add_u32 s72, {sR}, 32\ns_lshl_b32 s72, s72, 3\ns_add_u32 s72, s72, {sCQ}\ns_lshl_b32 s72, s72, 10\ns_add_u32 s72, s72, {WS_ST2}\n"
            f"buffer_load_dword v25, v2, {SRD_WS}, s72 offen sc1")


def u_offsets(g, dst):
    a = g.a
    a(f"s_mul_i32 s76, {sWV}, 3\ns_mul_i32 s77, {sC1}, {UC}\ns_lshl_b32 s73, {sL}, 21\ns_add_u32 s77, s77, s73\ns_add_u32 s77, s77, {WS_U}")
    for i in range(3):
        a(f"s_add_u32 s72, s76, {i}\ns_lshr_b32 s73, s72, 1\ns_and_b32 s72, s72, 1")
        a(f"s_mul_i32 s74, {sJ1}, 6\ns_add_u32 s74, s74, s73\ns_lshr_b32 s75, s74, 2\ns_and_b32 s79, s74, 3")
        a(f"s_lshl_b32 s75, s75, 12\ns_lshl_b32 s79, s79, 8\ns_add_u32 s75, s75, s79\ns_lshl_b32 s72, s72, 11\ns_add_u32 s75, s75, s72")
        a(f"s_add_u32 s75, s75, s77\ns_cmp_ge_u32 s74, 172\ns_cselect_b32 s79, 0x70000000, 0\ns_or_b32 s75, s75, s79")
        a(f"s_cmp_eq_u32 {sM1}, 0\ns_cselect_b32 s{dst+i}, 0x70000000, s75")


def inband_addresses(g):
    a = g.a
    a(f"s_lshl_b32 s72, {sCQ}, 6\ns_lshl_b32 s73, {sR}, 1\ns_add_u32 s72, s72, s73\ns_add_u32 s72, s72, {sTB}\ns_lshl_b32 s72, s72, 2")
    a(f"s_lshl_b32 s73, {sP}, 1\ns_add_u32 s72, s72, s73\ns_lshl_b32 s72, s72, 10\ns_lshl_b32 s73, {sL}, 21\ns_add_u32 s72, s72, s73\ns_add_u32 {sHB}, s72, {WS_H}")
    a("s_mov_b64 s[44:45], s[74:75]")
    u_offsets(g, sUO)
    a("s_mov_b64 s[74:75], s[44:45]")
    a("v_lshrrev_b32 v25, 5, v1\nv_lshlrev_b32 v25, 10, v25\nv_bfe_u32 v7, v1, 1, 4\nv_lshl_add_u32 v25, v7, 4, v25")
    a("v_mov_b32 v28, -1\nv_mov_b32 v29, -1\nv_mov_b32 v30, -1\nv_mov_b32 v31, -1")


def attn(g):
    a = g.a
    a.c("======== attention")
    a(f"s_sub_u32 s72, {sR}, 4\nv_add_u32 v8, s72, v1\nv_cmp_le_i32 s[74:75], 0, v8")
    g.wg_of("v9", "v8", sCQ)
    g.vflag("v9", PH_KV)
    a("s_and_b64 s[74:75], s[74:75], 0xf")
    a(f"s_lshl_b32 s76, {sR}, 1\ns_add_u32 s76, s76, {sTB}\ns_sub_u32 s77, 8, s76\ns_max_i32 s77, s77, 0")
    a(f"s_lshl_b32 s78, {sCQ}, 1\ns_add_u32 s78, s78, {sP}\ns_lshl_b32 s78, s78, 18\ns_lshl_b32 s79, {sL}, 22")
    a(f"s_add_u32 s78, s78, s79\ns_add_u32 s78, s78, {WS_KV}")
    a(f"s_lshl_b32 s79, {sTB}, 2\ns_lshl_b32 s80, {sR}, 1\ns_add_u32 s80, s80, s79\ns_sub_u32 s80, s80, 8")
    for i in range(4):
        a(f"s_add_i32 s{81+i}, s80, {i}\ns_max_i32 s{81+i}, s{81+i}, 0\ns_lshl_b32 s{81+i}, s{81+i}, 12\ns_add_u32 s{81+i}, s{81+i}, s78")
    a(f"s_lshl_b32 s85, {sR}, 1\ns_add_u32 s85, s85, {sTB}\ns_lshl_b32 s85, s85, 12\ns_add_u32 s85, s85, s78")
    a(f"s_mul_i32 s86, {sP}, 40960\ns_lshl_b32 s87, {sTB}, 14\ns_add_u32 s87, s87, s86\ns_add_u32 s87, s87, {L_KV}")
    a(f"s_lshl_b32 s79, {sTB}, 12\ns_add_u32 s79, s79, s86\ns_add_u32 s79, s79, {L_KV + 8*4096}")
    for q4 in range(4):
        a(f"s_add_u32 m0, s79, {q4*1024}\ns_add_u32 s72, s85, {q4*1024}")
        a(f"buffer_load_dwordx4 v2, {SRD_WS}, s72 offen sc1 lds", tag="Kd")
    a(f"s_lshl_b32 s88, {sTB}, 12\ns_add_u32 s88, s88, s86\ns_add_u32 s88, s88, {L_KV}\nv_add_u32 v10, s88, v2")
    a("v_and_b32 v8, 15, v1\nv_lshlrev_b32 v8, 4, v8\nv_lshrrev_b32 v7, 5, v1\nv_lshl_add_u32 v8, v7, 8, v8\nv_add_u32 v11, s88, v8")
    a("s_mov_b32 s90, 0xffff\ns_mov_b32 s91, 0xffff")
    a("v_bfe_u32 v20, v1, 4, 1\nv_lshlrev_b32 v20, 14, v20\nv_and_b32 v7, 15, v1\nv_lshl_add_u32 v20, v7, 4, v20")
    a("v_lshrrev_b32 v7, 5, v1\nv_lshl_add_u32 v20, v7, 8, v20")
    a(f"s_lshl_b32 s72, {sR}, 2\ns_lshl_b32 s73, {sTB}, 1\ns_add_u32 s72, s72, s73\ns_lshl_b32 s72, s72, 4")
    a(f"s_lshl_b32 s73, {sCQ}, 1\ns_add_u32 s72, s72, s73\ns_add_u32 s72, s72, {sP}\ns_lshl_b32 s72, s72, 10")
    a(f"s_lshl_b32 s73, {sL}, 21\ns_add_u32 s72, s72, s73\ns_add_u32 s89, s72, {WS_OF}")
    if INB:
        inband_addresses(g)
    a("s_mov_b64 s[76:77], s[74:75]")
    l0_only(g, "l0p", lambda: (team_check(g), p1_setup(g)))
    wo = g.wo_dma()
    wo_early = g.layer == 1 and "wokv" in OPT
    if wo_early:
        for n in range(16):
            a(wo(n))
    g.poll("v9", "s[76:77]")
    a(f"s_lshl_b32 s76, {sR}, 1\ns_add_u32 s76, s76, {sTB}\ns_sub_u32 s77, 8, s76\ns_max_i32 s77, s77, 0")
    g.stamp(6)
    def kvdma(i, h, part):
        return (f"s_add_u32 m0, s87, {i*4096 + h*2048 + part}\ns_add_u32 s72, s{81+i}, {h*2048 + part}\n"
                f"buffer_load_dwordx4 v2, {SRD_WS}, s72 offen sc1 lds")
    for i in range(4):
        for h in range(2):
            a(kvdma(i, h, 0), tag="Kd")
    vd = [kvdma(i, h, 1024) for i in range(4) for h in range(2)]
    early = "plate" not in OPT and (g.layer == 0 or "vp1" not in OPT)
    if early:
        for x in vd:
            a(x, tag="Vd")
        if g.layer == 0:
            p1_loads(g)
    heads = ("A", "B")
    q = {"A": QA, "B": QB}
    mx = {"A": (48, 49), "B": (50, 51)}

    def kread(b):
        t, h = b >> 1, b & 1
        return f"ds_read_b128 {ar(kfrag(b))}, v10 offset:{t*4096 + h*2048}"

    def vread(b, half):
        t, h = b >> 1, b & 1
        return f"ds_read_b128 {ar(vfrag(b, half))}, v11 offset:{t*4096 + h*2048 + 1024 + half*512}"

    def qk(b, c):
        return f"v_mfma_f32_32x32x16_bf16 {vr(SBUF[b & 3],16)}, {ar(kfrag(b))}, {vr(q[heads[b & 1]])}, {c}"

    def cmask(t):
        return vr(CFAR, 16) if t == 0 else vr(CDIAG, 16) if t == 8 else "0"

    for h in heads:
        a(f"v_mov_b32 v{mx[h][0]}, {NEG}\nv_mov_b32 v{mx[h][1]}, {NEG}")
    a.wait_tag("Kd")
    a("s_barrier")
    a.c("pass 1: true row maximum over the masked window")
    for b in range(4):
        a(kread(b))
    a(qk(0, cmask(0)))
    a(kread(4))
    a(qk(1, cmask(0)))
    for b in range(18):
        t, s_, h = b >> 1, SBUF[b & 3], heads[b & 1]
        if b == 8 and g.layer == 0 and not early:
            p1_loads(g)
        if t < 8 and b % 2 == 0:
            stub, back = g.lab("p1s"), g.lab("p1b")
            always = [x for bb in (b, b + 1) for x in ([kread(bb + 5)] if bb + 5 < 18 else []) + ([qk(bb + 2, cmask((bb + 2) >> 1))] if bb + 2 < 18 else [])
                      + ([vd[bb]] if bb < 8 and not early else []) + ([wo(bb - 2)] if bb >= 2 and g.layer == 1 and not wo_early else [])]
            a(f"s_cmp_gt_u32 s77, {t}\ns_cbranch_scc1 {stub}")
        if b + 5 < 18:
            a(kread(b + 5))
        if b + 2 < 18:
            a(qk(b + 2, cmask((b + 2) >> 1)))
        if b < 8 and not early:
            a(vd[b], tag="Vd")
        for i in range(8):
            m = mx[h][i & 1]
            a(f"v_max3_f32 v{m}, v{m}, v{s_+2*i}, v{s_+2*i+1}")
            if i == 3 and b >= 2 and g.layer == 1 and not wo_early:
                a(wo(b - 2))
        if t < 8 and b % 2 == 1:
            a.label(back, reset=False)
            g.stubs.append((stub, back, ["s_waitcnt lgkmcnt(0)"] + [y for x in always for y in (x, "s_waitcnt lgkmcnt(0)")]))
    for h in heads:
        m0, m1 = mx[h]
        a(f"v_max_f32 v{m0}, v{m0}, v{m1}\nv_mov_b32 v{m1}, v{m0}")
    for h in heads:
        m0, m1 = mx[h]
        a(f"v_permlane32_swap_b32 v{m0}, v{m1}")
    for h in heads:
        m0, m1 = mx[h]
        a(f"v_max_f32 v{m0}, v{m0}, v{m1}\nv_xor_b32 v{m0}, 0x80000000, v{m0}")
    for i in range(16):
        a(f"v_mov_b32 v{NEGM['A']+i}, v{mx['A'][0]}")
    a(qk(0, vr(NEGM["A"], 16)))
    for i in range(16):
        a(f"v_mov_b32 v{NEGM['B']+i}, v{mx['B'][0]}")
    a.wait_tag("Vd")
    a("s_barrier")
    a(f"buffer_load_dword v21, v20, {SRD_WS}, s89 offen sc1\nbuffer_load_dword v23, v20, {SRD_WS}, s89 offen offset:512 sc1")
    a(f"s_lshl_b32 s72, {sL}, 5\ns_add_u32 s72, s72, {sR}\ns_lshl_b32 s72, s72, 3\ns_add_u32 s72, s72, {sCQ}\ns_lshl_b32 s72, s72, 10")
    a(f"s_lshl_b32 s73, {sWV}, 8\ns_add_u32 s72, s72, s73\ns_add_u32 s72, s72, {WS_ST}")
    a(f"s_mov_b64 exec, 0xffff\nbuffer_load_dword v22, v2, {SRD_WS}, s72 offen sc1\ns_mov_b64 exec, -1")
    g.stamp(7)
    a.c("pass 2: P = exp2(S - m), O += V^T P; block b exponentiates S_b, starts S_{b+1} and finishes block b-1")

    def s2(b):
        return SBUF[b & 1]

    def qk2(b):
        h = heads[b & 1]
        return f"v_mfma_f32_32x32x16_bf16 {vr(s2(b),16)}, {ar(kfrag(b))}, {vr(q[h])}, {vr(NEGM[h],16)}"

    def pv(b, half):
        h = heads[b & 1]
        o, p = OACC[h], PBUF[h]
        return f"v_mfma_f32_32x32x16_bf16 {vr(o,16)}, {ar(vfrag(b, half))}, {vr(p+4*half)}, {vr(o,16)}"

    wd_cur = []
    for b in range(18):
        t, h = b >> 1, heads[b & 1]
        nxt = [qk2(b + 1)] if b + 1 < 18 else []
        prv = [pv(b - 1, 0), pv(b - 1, 1)] if b >= 1 else []
        vl = ["s_mov_b64 exec, s[90:91]\n" + vread(b, 0) + "\n" + vread(b, 1) + "\ns_mov_b64 exec, -1"]
        TB0 = next((int(o[2:]) for o in OPT if o.startswith("pt")), 8 if early else 12)
        if g.layer == 0 and b == TB0:
            p1_finish(g)
        W2B = next((int(o[4:]) for o in OPT if o.startswith("w2p2")), None)
        if g.layer == 0 and b == W2B:
            a(warmup_text(SRD_W2P, "v24"))
        per = 3 if TB0 >= 12 else 2
        wd = [wo(i) for i in range(per * (b - TB0), min(per * (b - TB0) + per, 16))] if g.layer == 0 and b >= TB0 else []
        if INB and b == 2:
            for e in range(2):
                a(f"buffer_store_dwordx4 v[28:31], v2, {SRD_WS}, {sHB} offen offset:{e*1024} sc1")
        if INB and b == 4:
            a("s_mov_b32 exec_lo, 0x55555555\ns_mov_b32 exec_hi, 0x55555555")
            for i in range(3):
                a(f"buffer_store_dwordx4 v[28:31], v25, {SRD_WS}, s{sUO+i} offen sc1")
            a("s_mov_b64 exec, -1")
        if t < 8 and b % 2 == 0:
            stub, back = g.lab("sk"), g.lab("bk")
            a(f"s_cmp_gt_u32 s77, {t}\ns_cbranch_scc1 {stub}")
        s_, p = s2(b), PBUF[h]
        extra = {1: nxt[:1], 2: wd[:1], 4: prv[:1], 7: wd[1:2], 9: prv[1:2], 11: vl, 13: wd[2:3]}
        wd_prev, wd_cur = (wd_cur if b else []), wd
        for i in range(16):
            a(f"v_exp_f32 v{s_+i}, v{s_+i}")
            if i >= 2 and i % 2 == 0:
                k = i // 2 - 1
                a(f"v_cvt_pk_bf16_f32 v{p+k}, v{s_+2*k}, v{s_+2*k+1}")
            for x in extra.get(i, []):
                a(x)
        a(f"s_nop 0\nv_cvt_pk_bf16_f32 v{p+7}, v{s_+14}, v{s_+15}")
        if t in (0, 8):
            msk = ANDF if t == 0 else ANDD
            for k in range(8):
                a(f"v_and_b32 v{p+k}, v{msk+k}, v{p+k}")
        if t < 8 and b % 2 == 1:
            a.label(back, reset=False)
            g.stubs.append((stub, back, nxt + wd_prev + wd_cur))
    a(pv(17, 0)); a(pv(17, 1))
    g.stamp(8)
    for hi, h in enumerate(heads):
        o = OACC[h]
        a(f"v_rcp_f32 v52, v{o+8}")
        for i in range(8):
            a(f"v_mul_f32 v{o+i}, v52, v{o+i}")
        for k in range(4):
            a(f"v_cvt_pk_bf16_f32 v{o+k}, v{o+2*k}, v{o+2*k+1}")

    def ost(m):
        for hi, h in enumerate(heads):
            a(f"buffer_store_dwordx4 {vr(OACC[h])}, v20, {SRD_WS}, s89 offen offset:{hi*512} {m}", tag="Ost")
    g.dual(ost)


L_STG = L_RING + 10240
L_STG2 = L_RING
V_W1D, V_W1R, V_W2D, V_W2R = 52, 56, 40, 42


PA1 = 96
V_P1 = 12


def p1_setup(g):
    a = g.a
    a("s_lshr_b32 s72, s2, 2\ns_and_b32 s73, s2, 3")
    a("s_mul_i32 s74, s73, 7\ns_min_u32 s75, s73, 1\ns_add_u32 s74, s74, s75")
    a("s_cmp_eq_u32 s73, 0\ns_cselect_b32 s75, 8, 7")
    a(f"s_mul_i32 s101, s72, {32*2752}\ns_mul_i32 s73, s74, 96\ns_add_u32 s101, s101, s73\ns_mul_i32 s75, s75, 6")
    a("s_mov_b32 s72, 1311\ns_mov_b32 s73, 2752")
    for n in range(7):
        a(f"s_lshl_b32 s74, {sWV}, 6\ns_add_u32 s74, s74, {256*n}\nv_add_u32 v3, s74, v1")
        a("v_mul_lo_u32 v4, v3, s72\nv_lshrrev_b32 v4, 16, v4\nv_mul_u32_u24 v5, 50, v4\nv_sub_u32 v5, v3, v5")
        a("v_mul_lo_u32 v6, v4, s73\nv_lshl_add_u32 v6, v5, 4, v6")
        a("v_cmp_gt_u32 vcc, s75, v5\nv_cmp_gt_u32 s[78:79], 32, v4\ns_and_b64 vcc, vcc, s[78:79]")
        a(f"v_mov_b32 v5, 0x7ff00000\nv_cndmask_b32 v{V_P1+n}, v5, v6, vcc")


def p1_loads(g):
    a = g.a
    for n in range(7):
        a(f"buffer_load_dwordx4 {ar(PA1+4*n)}, v{V_P1+n}, {SRD_W1}, s101 offen")


def p1_finish(g):
    a = g.a
    L1 = L_X
    a("s_lshr_b32 s72, s2, 2\ns_and_b32 s73, s2, 3")
    a("s_mul_i32 s74, s73, 7\ns_min_u32 s75, s73, 1\ns_add_u32 s74, s74, s75")
    a("s_cmp_eq_u32 s73, 0\ns_cselect_b32 s75, 8, 7")
    a(f"s_lshl_b32 s80, {sWV}, 10\ns_add_u32 s80, s80, {L1}\nv_add_u32 v120, s80, v2")
    for n in range(7):
        a(f"ds_write_b128 v120, {ar(PA1+4*n)} offset:{n*4096}")
    a("v_lshrrev_b32 v121, 4, v1\nv_lshlrev_b32 v121, 3, v121\nv_bfe_u32 v122, v1, 2, 2\nv_add_u32 v121, v121, v122\nv_and_b32 v122, 3, v1")
    a(f"v_mul_u32_u24 v123, 800, v121\nv_lshl_add_u32 v123, v122, 3, v123\ns_lshl_b32 s80, {sWV}, 5\ns_add_u32 s80, s80, {L1}\nv_add_u32 v123, s80, v123")
    a("s_waitcnt lgkmcnt(0)\ns_barrier")
    for n in range(6):
        for rd in range(2):
            a(f"ds_read_b64_tr_b16 v[{96+4*n+2*rd}:{97+4*n+2*rd}], v123 offset:{128*n + rd*3200}")
    for n in range(6):
        a(f"s_add_u32 s80, {sWV}, {4*n}\ns_mul_i32 s81, s80, 43\ns_lshr_b32 s81, s81, 7\ns_mul_i32 s82, s81, 3\ns_sub_u32 s82, s80, s82")
        a("s_cmp_lt_u32 s81, s75\ns_cselect_b32 s85, 0, 0x70000000")
        a("s_add_u32 s81, s81, s74\ns_lshl_b32 s81, s81, 6\ns_add_u32 s81, s81, s72\ns_mul_i32 s81, s81, 3\ns_add_u32 s81, s81, s82")
        a(f"s_lshl_b32 s81, s81, 10\ns_add_u32 s81, s81, {WS_W1P}\ns_or_b32 s81, s81, s85")
        a(f"buffer_store_dwordx4 {vr(96+4*n)}, v2, {SRD_WS}, s81 offen sc1")
    a("s_waitcnt lgkmcnt(0)\ns_barrier")


def early_w1(g, i0, i1, check=False):
    a = g.a
    skip = g.lab("e1")
    a(f"s_cmp_eq_u32 {sM1}, 0\ns_cbranch_scc1 {skip}")
    with a.cond("m1"):
        if check:
            l0_only(g, "l0c", lambda: (p1_check(g), w1_loads(g, 0, i0)))
        w1_loads(g, i0, i1)
    a.label(skip, reset=False)


def l0_only(g, name, fn):
    if g.layer == 0:
        fn()


def p1_check(g):
    a = g.a
    a(f"s_cmp_ge_u32 {sJ1}, 8\ns_cselect_b32 s72, 1, 0\ns_cmp_ge_u32 {sJ1}, 15\ns_addc_u32 s72, s72, 0")
    a(f"s_cmp_ge_u32 {sJ1}, 22\ns_addc_u32 s72, s72, 0")
    a(f"s_lshl_b32 s73, {sWV}, 4\nv_add_u32 v9, s73, v1\nv_lshl_add_u32 v9, v9, 2, s72")
    a(f"v_lshlrev_b32 v9, 7, v9\nv_add_u32 v9, {WS_FLAG + PH_P*2*256*128}, v9")
    g.poll("v9", "0xffff")


def w1_step_addr(g, dst, base, st):
    a = g.a
    if ROT:
        a(f"s_lshr_b32 {dst}, s2, 5\ns_lshl_b32 {dst}, {dst}, 1\ns_add_u32 {dst}, {dst}, {st}\ns_and_b32 {dst}, {dst}, 15\ns_mul_i32 {dst}, {dst}, 3072\ns_add_u32 {dst}, {dst}, {base}")
    else:
        a(f"s_add_u32 {dst}, {base}, {st*3072}")


def w1_loads(g, i0, i1):
    a = g.a
    a(f"s_lshl_b32 s72, {sJ1}, 6\ns_lshl_b32 s73, {sWV}, 4\ns_add_u32 s72, s72, s73\ns_mul_i32 s72, s72, 3072\ns_add_u32 s72, s72, {WS_W1P}")
    for i in range(i0, i1):
        st, ft = divmod(i, 3)
        if ft == 0 or i == i0:
            w1_step_addr(g, "s73", "s72", st)
        a(f"buffer_load_dwordx4 {ar(4*i)}, v2, {SRD_WS}, s73 offen offset:{ft*1024} sc1")


def m1_only(g, fn):
    a = g.a
    skip = g.lab("m1s")
    a(f"s_cmp_eq_u32 {sM1}, 0\ns_cbranch_scc1 {skip}")
    with a.cond("m1"):
        fn()
    a.label(skip, reset=False)


def w2_setup(g):
    a = g.a
    a("v_lshrrev_b32 v3, 3, v1\nv_lshlrev_b32 v3, 12, v3\nv_bfe_u32 v4, v1, 1, 2\nv_bfe_u32 v5, v1, 4, 1\nv_and_b32 v6, 1, v1")
    for e in range(2):
        a(f"v_or_b32 v7, {2*e}, v5\nv_xor_b32 v7, v4, v7\nv_lshl_add_u32 v7, v7, 1, v6\nv_lshl_add_u32 v{V_W2D+e}, v7, 4, v3")
    a("v_lshrrev_b32 v3, 4, v1\nv_lshlrev_b32 v4, 3, v3\nv_bfe_u32 v5, v1, 2, 2\nv_add_u32 v4, v4, v5\nv_lshlrev_b32 v4, 7, v4")
    a("v_and_b32 v5, 3, v1\nv_lshl_add_u32 v4, v5, 3, v4\nv_and_b32 v3, 1, v3\nv_lshlrev_b32 v3, 1, v3\nv_bfe_u32 v5, v1, 3, 1\nv_or_b32 v3, v3, v5")
    for k in range(4):
        a(f"v_xor_b32 v5, {k}, v3\nv_lshl_add_u32 v{V_W2R+k}, v5, 5, v4")
    a(f"s_mul_i32 s89, {sWV}, {11*32*4096}\ns_lshl_b32 s88, {sR}, 7\ns_add_u32 s89, s89, s88")


def w2_lds(st):
    if st < 5:
        return ("s86", st * 4096)
    if st < 9:
        return ("s87", (st - 5) * 4096)
    return ("s86", (st - 9) * 4096)


def w2_bases(g):
    g.a(f"s_mul_i32 s86, {sWV}, 20480\ns_add_u32 s86, s86, {L_STG2}\ns_lshl_b32 s87, {sWV}, 14\ns_add_u32 s87, s87, {L_X}")


def w2_dma_text(st, m):
    base, off = w2_lds(st)
    return (f"s_add_u32 m0, {base}, {off + m*1024}\ns_add_u32 s88, s89, {(st*32 + 8*m)*4096}",
            f"buffer_load_dwordx4 v{V_W2D + (m & 1)}, {SRD_W2P}, s88 offen lds")


def w2_dma(g, st, m, uncond=False):
    pre, ld = w2_dma_text(st, m)
    g.a(pre)
    (g.a.uncond if uncond else g.a)(ld, tag=f"D2_{0 if st < 5 else 5 if st < 9 else 9}")
    return pre + "\n" + ld


def w2_tr(g, s0, s1):
    a = g.a
    base, _ = w2_lds(s0)
    for k in range(4):
        a(f"v_add_u32 v{32+k}, {base}, v{V_W2R+k}")
    for st in range(s0, s1):
        _, off = w2_lds(st)
        for k in range(4):
            for rd in range(2):
                b = (st*4 + k) * 4 + 2*rd
                a(f"ds_read_b64_tr_b16 a[{b}:{b+1}], v{32+k} offset:{off + rd*512}")


def u_producers(g, dst, lane0):
    a = g.a
    a(f"s_mul_i32 s72, {sWV}, 352\ns_mul_hi_u32 s72, s72, {(1 << 32)//48 + 1}\ns_sub_u32 s72, s72, {lane0}\nv_add_u32 v8, s72, v1\nv_max_i32 v8, 0, v8\nv_min_u32 v8, 28, v8")
    a("v_cmp_le_u32 vcc, 8, v8\nv_cndmask_b32 v6, 0, 1, vcc\nv_cmp_le_u32 vcc, 15, v8\nv_addc_co_u32 v6, vcc, 0, v6, vcc")
    a("v_cmp_le_u32 vcc, 22, v8\nv_addc_co_u32 v6, vcc, 0, v6, vcc")
    a("v_mul_u32_u24 v7, 7, v6\nv_min_u32 v9, 1, v6\nv_add_u32 v7, v7, v9\nv_sub_u32 v7, v8, v7")
    a(f"s_and_b32 s72, {sCQ}, 3\ns_lshr_b32 s73, {sCQ}, 2\nv_lshl_add_u32 v7, v7, 2, s72\nv_lshlrev_b32 v7, 3, v7")
    a(f"v_lshl_add_u32 {dst}, v6, 1, v7\nv_add_u32 {dst}, s73, {dst}")


def sentinel(g, loads, srd):
    a = g.a
    top, ok = g.lab("sn"), g.lab("sno")
    a(f"s_mov_b32 {sCNT}, 0")
    a.label(top, reset=False)
    with a.cond(top):
        for k, (addr, soff) in enumerate(loads):
            a(f"buffer_load_dword v{4+k}, {addr}, {srd}, {soff} offen sc1")
        a("s_waitcnt vmcnt(0)")
        a("v_cmp_eq_u32 vcc, -1, v4")
        for k in range(1, len(loads)):
            a(f"v_cmp_eq_u32 s[72:73], -1, v{4+k}\ns_or_b64 vcc, vcc, s[72:73]")
        a(f"s_cbranch_vccz {ok}")
        a(f"s_add_u32 {sCNT}, {sCNT}, 1\ns_cmp_lt_u32 {sCNT}, {POLL_LIMIT}\ns_cbranch_scc1 {top}")
    a.label(ok, reset=False)


def redo_end(g, redo):
    a = g.a
    done = g.lab("rd")
    a(f"s_cmp_eq_u64 {sACC}, 0\ns_cbranch_scc1 {done}")
    if g.diag:
        g.srd(32, P_DBG, 256)
        a(f"v_mov_b32 v4, 1\nv_mov_b32 v5, 4\ns_mov_b64 exec, 1\nbuffer_atomic_add v4, v5, {SRD_T}, 0 offen\ns_mov_b64 exec, -1")
    a(f"s_add_u32 {sREDO}, {sREDO}, 1\ns_cmp_lt_u32 {sREDO}, 64\ns_cbranch_scc1 {redo}")
    a.label(done, reset=False)


def o_flags(g):
    a = g.a
    a(f"v_mov_b32 v8, {sR}\nv_and_b32 v9, 3, v8\nv_lshlrev_b32 v9, 3, v9\nv_add_u32 v9, v1, v9\nv_lshlrev_b32 v9, 3, v9")
    a("v_lshrrev_b32 v7, 2, v8\nv_add_u32 v9, v9, v7")
    g.vflag("v9", PH_O)
    a("s_mov_b32 s76, 0xff\ns_mov_b32 s77, 0")
    if g.layer == 0:
        a(f"s_cmp_ge_u32 {sJ1}, 8\ns_cselect_b32 s72, 1, 0\ns_cmp_ge_u32 {sJ1}, 15\ns_addc_u32 s72, s72, 0")
        a(f"s_cmp_ge_u32 {sJ1}, 22\ns_addc_u32 s72, s72, 0")
        a(f"s_lshl_b32 s73, {sWV}, 4\ns_sub_u32 s73, s73, 8\nv_add_u32 v8, s73, v1\nv_lshl_add_u32 v8, v8, 2, s72\nv_and_b32 v8, 255, v8")
        a(f"v_lshlrev_b32 v8, 7, v8\nv_add_u32 v8, {WS_FLAG + PH_P*2*256*128}, v8")
        a("v_cmp_le_u32 vcc, 8, v1\nv_cndmask_b32 v9, v9, v8, vcc")
        a(f"s_cmp_eq_u32 {sM1}, 0\ns_cselect_b32 s76, s76, 0xffffff")


def oproj(g):
    a = g.a
    a.c("======== output projection, residual, double LayerNorm")
    OFR, WPRE, WFR, ACC = 64, 128, 14, 46
    a("v_lshrrev_b32 v3, 5, v1\nv_lshlrev_b32 v3, 4, v3\nv_bfe_u32 v4, v1, 4, 1\nv_lshl_add_u32 v3, v4, 2, v3")
    a("v_bfe_u32 v5, v1, 2, 2\nv_add_u32 v3, v3, v5\nv_bfe_u32 v5, v3, 1, 2\nv_and_b32 v6, 3, v1\nv_lshlrev_b32 v6, 3, v6")
    a("v_lshl_add_u32 v6, v3, 7, v6")
    for nt in range(4):
        a(f"v_xor_b32 v7, {nt}, v5\nv_lshl_add_u32 v{10+nt}, v7, 5, v6")

    def wreg(ks, nt):
        return WPRE + ks * 16 + nt * 4 if ks < 8 else WFR + (ks & 1) * 16 + nt * 4

    def wread(ks, nt):
        b = wreg(ks, nt)
        for rd in range(2):
            a(f"ds_read_b64_tr_b16 v[{b+2*rd}:{b+2*rd+1}], v{10+nt} offset:{L_X + ks*4096 + rd*1024}")
    for ks in range(8):
        for nt in range(4):
            wread(ks, nt)
    g.poll("v9", "s[76:77]")
    a("s_waitcnt vmcnt(0) lgkmcnt(0)")
    g.stamp(10)
    a(f"s_lshl_b32 s72, {sR}, 2\ns_add_u32 s72, s72, {sWV}\ns_lshl_b32 s72, s72, 14\ns_lshl_b32 s73, {sL}, 21")
    a(f"s_add_u32 s72, s72, s73\ns_add_u32 s74, s72, {WS_OF}")

    def oload(ks):
        if ks & 3 == 0 or ks == OD:
            a(f"s_add_u32 s73, s74, {(ks >> 2)*4096}")
        a(f"buffer_load_dwordx4 {vr(OFR+4*ks)}, v2, {SRD_WS}, s73 offen offset:{(ks & 3)*1024} sc1")
    OD = 11
    for ks in range(OD):
        oload(ks)
    g.stamp(25)

    def main(w1):
        if w1:
            a(f"s_lshl_b32 s76, {sJ1}, 6\ns_lshl_b32 s77, {sWV}, 4\ns_add_u32 s76, s76, s77\ns_mul_i32 s76, s76, 3072\ns_add_u32 s76, s76, {WS_W1P}")
        for ks in range(16):
            if ks + OD < 16:
                oload(ks + OD)
            for nt in range(4):
                c = "0" if ks == 0 else vr(ACC + 4*nt)
                a(f"v_mfma_f32_16x16x32_bf16 {vr(ACC+4*nt)}, {vr(wreg(ks, nt))}, {vr(OFR+4*ks)}, {c}")
                if 6 <= ks <= 13:
                    wread(ks + 2, nt)
                if w1 and nt == 1 and ks >= 4:
                    for i in ((ks - 4) * 2, (ks - 4) * 2 + 1) if ks < 12 else ():
                        st, ft = divmod(i, 3)
                        w1_step_addr(g, "s77", "s76", st)
                        a(f"buffer_load_dwordx4 {ar(4*i)}, v2, {SRD_WS}, s77 offen offset:{ft*1024} sc1")
            if ks == 0:
                g.stamp(28)
            if ks == 7:
                g.stamp(29)
    la, lb = g.lab("oa"), g.lab("ob")
    a(f"s_cmp_eq_u32 {sM1}, 0\ns_cbranch_scc1 {la}")
    a.snap(la)
    main(True)
    a.label(lb, reset=False)
    g.late.append((la, lb, lambda: (a.restore(la), main(False))))
    g.stamp(11)
    a(f"v_and_b32 v3, 15, v1\ns_lshl_b32 s72, {sWV}, 4\nv_add_u32 v14, s72, v3\nv_lshrrev_b32 v4, 4, v1")
    a(f"v_mul_u32_u24 v5, 144, v14\nv_lshl_add_u32 v5, v4, 3, v5\nv_add_u32 v15, {L_R}, v5")
    for nt in range(4):
        a(f"ds_read_b64 v[{176+2*nt}:{177+2*nt}], v15 offset:{32*nt}")
    X1 = 192
    for nt in range(4):
        for k in range(2):
            a(f"v_lshlrev_b32 v{X1+4*nt+2*k}, 16, v{176+2*nt+k}\nv_and_b32 v{X1+4*nt+2*k+1}, 0xffff0000, v{176+2*nt+k}")
    for i in range(16):
        a(f"v_add_f32 v{X1+i}, v{X1+i}, v{ACC+i}")
    for k in range(8):
        a(f"v_cvt_pk_bf16_f32 v{176+k}, v{X1+2*k}, v{X1+2*k+1}")
    for nt in range(4):
        a(f"ds_write_b64 v15, v[{176+2*nt}:{177+2*nt}] offset:{32*nt}")
    a(f"v_add_f32 v16, v{X1}, v{X1+1}\nv_mul_f32 v17, v{X1}, v{X1}\nv_fmac_f32 v17, v{X1+1}, v{X1+1}")
    for i in range(2, 16):
        a(f"v_add_f32 v16, v16, v{X1+i}\nv_fmac_f32 v17, v{X1+i}, v{X1+i}")

    def fold_groups(r0, r1):
        for sw in ("16", "32"):
            a(f"v_mov_b32 v20, v{r0}\nv_mov_b32 v21, v{r1}")
            a(f"v_permlane{sw}_swap_b32 v{r0}, v20\nv_permlane{sw}_swap_b32 v{r1}, v21")
            a(f"v_add_f32 v{r0}, v{r0}, v20\nv_add_f32 v{r1}, v{r1}, v21")
    fold_groups(16, 17)
    a(f"v_mov_b32 v18, {sN}\nv_mov_b32 v19, {sNN}")
    a(f"s_lshl_b32 s72, {sL}, 5\ns_add_u32 s72, s72, {sR}\ns_lshl_b32 s72, s72, 13\ns_add_u32 s72, s72, {WS_ST}")
    a(f"s_lshl_b32 s73, {sCQ}, 10\ns_add_u32 s73, s73, s72\nv_lshlrev_b32 v22, 4, v14")
    a("s_mov_b64 exec, 0xffff")
    g.dual(lambda m: a(f"buffer_store_dwordx4 v[16:19], v22, {SRD_WS}, s73 offen {m}"))
    a("s_mov_b64 exec, -1")
    g.stamp(26)
    if INB:
        a(f"s_lshl_b32 s73, {sWV}, 3\nv_add_u32 v34, s73, v1")
        g.wg_of("v35", "v34", sC1)
        u_producers(g, "v36", 8)
        a("v_cmp_le_u32 vcc, 8, v1\nv_cndmask_b32 v35, v35, v36, vcc\nv_and_b32 v35, 255, v35")
        g.vflag("v35", PH_PD)
        a(f"s_lshl_b32 s44, {sM1}, 8\ns_sub_u32 s44, s44, {sM1}\ns_or_b32 s44, s44, 0xff00\ns_mov_b32 s45, 0")
        a(f"s_mov_b64 exec, s[44:45]\nbuffer_load_dwordx2 v[32:33], v35, {SRD_WS}, 0 offen sc1\ns_mov_b64 exec, -1")
    early_w1(g, 16, 28)
    a("v_lshrrev_b32 v4, 4, v1")
    g.stamp(27)
    a(f"s_lshl_b32 s72, {sL}, 5\ns_add_u32 s72, s72, {sR}\ns_lshl_b32 s72, s72, 13\ns_add_u32 s72, s72, {WS_ST}")
    a("v_lshl_add_u32 v23, v4, 11, v22\ns_mov_b32 s100, 0")
    top, ok = g.lab("stp"), g.lab("sto")
    a.label(top, reset=False)
    a(f"buffer_load_dwordx4 v[24:27], v23, {SRD_WS}, s72 offen sc1")
    a(f"buffer_load_dwordx4 v[28:31], v23, {SRD_WS}, s72 offen offset:1024 sc1")
    a("s_waitcnt vmcnt(0)")
    a(f"v_cmp_ne_u64 vcc, {sNP}, v[26:27]\nv_cmp_ne_u64 s[74:75], {sNP}, v[30:31]\ns_or_b64 vcc, vcc, s[74:75]")
    a(f"s_cbranch_vccz {ok}")
    a(f"s_add_u32 s100, s100, 1\ns_cmp_lt_u32 s100, {POLL_LIMIT}\ns_cbranch_scc1 {top}\ns_branch L_fail")
    a.label(ok, reset=False)
    if INB:
        pd = g.lab("pd")
        a(f"s_mov_b64 exec, s[44:45]\nv_cmp_ne_u64 vcc, {sNP}, v[32:33]\ns_mov_b64 exec, -1\ns_cbranch_vccz {pd}")
        with a.cond(pd):
            a("v_mov_b32 v36, v4\nv_mov_b32 v37, v5")
            g.poll("v35", "s[44:45]")
            a("v_mov_b32 v4, v36\nv_mov_b32 v5, v37")
        a.label(pd, reset=False)
    g.stamp(12)
    a("v_add_f32 v16, v24, v28\nv_add_f32 v17, v25, v29")
    fold_groups(16, 17)
    a(f"v_mul_f32 v16, {f32(1/512)}, v16\nv_mul_f32 v17, {f32(1/512)}, v17\nv_fma_f32 v17, -v16, v16, v17\nv_max_f32 v17, 0, v17")
    a(f"v_add_f32 v18, {f32(1e-5)}, v17\nv_rsq_f32 v18, v18")
    a(f"v_mul_f32 v19, v18, v18\nv_mul_f32 v19, v19, v17\nv_add_f32 v19, {f32(1e-5)}, v19\nv_rsq_f32 v19, v19\nv_mul_f32 v18, v18, v19")
    for i in range(16):
        a(f"v_sub_f32 v{X1+i}, v{X1+i}, v16")
    for i in range(16):
        a(f"v_mul_f32 v{X1+i}, v18, v{X1+i}")
    for k in range(8):
        a(f"v_cvt_pk_bf16_f32 v{176+k}, v{X1+2*k}, v{X1+2*k+1}")
    HT = L_RING
    a(f"v_mul_u32_u24 v5, 160, v14\nv_lshl_add_u32 v5, v4, 3, v5\nv_add_u32 v5, {HT}, v5")
    for nt in range(4):
        a(f"ds_write_b64 v5, v[{176+2*nt}:{177+2*nt}] offset:{32*nt}")
    a("v_lshrrev_b32 v3, 4, v1\nv_lshlrev_b32 v3, 3, v3\nv_bfe_u32 v6, v1, 2, 2\nv_add_u32 v3, v3, v6")
    a(f"s_lshl_b32 s72, {sTB}, 5\nv_add_u32 v3, s72, v3\nv_mul_u32_u24 v3, 160, v3\nv_and_b32 v6, 3, v1\nv_lshl_add_u32 v3, v6, 3, v3")
    a(f"s_lshl_b32 s72, {sP}, 6\ns_add_u32 s72, s72, {HT}\nv_add_u32 v3, s72, v3")
    a("s_waitcnt lgkmcnt(0)\ns_barrier")
    for e in range(2):
        for rd in range(2):
            a(f"ds_read_b64_tr_b16 v[{184+4*e+2*rd}:{185+4*e+2*rd}], v3 offset:{32*e + rd*640}")
    if INB:
        a(f"s_mov_b32 s72, {sHB}")
    else:
        a(f"s_lshl_b32 s72, {sCQ}, 6\ns_lshl_b32 s73, {sR}, 1\ns_add_u32 s72, s72, s73\ns_add_u32 s72, s72, {sTB}\ns_lshl_b32 s72, s72, 2")
        a(f"s_lshl_b32 s73, {sP}, 1\ns_add_u32 s72, s72, s73\ns_lshl_b32 s72, s72, 10\ns_lshl_b32 s73, {sL}, 21\ns_add_u32 s72, s72, s73\ns_add_u32 s72, s72, {WS_H}")
    for e in range(2):
        a(f"buffer_store_dwordx4 {vr(184+4*e)}, v2, {SRD_WS}, s72 offen offset:{e*1024} sc1", tag="Hst")


def mix1(g):
    a = g.a
    a.c("======== token mixing 1: u = gelu(h^T W1 + b1)")
    skip, other = g.lab("m1"), g.lab("m1o")
    w2_setup(g)
    w2_bases(g)
    a(f"s_cmp_eq_u32 {sM1}, 0\ns_cbranch_scc1 {other}")
    w2_text = []

    def w2(i):
        return w2_dma(g, i >> 2, i & 3, uncond=True)
    with a.cond("m1"):
        def m1_setup():
            g.srd(32, P_B1, 2752)
            a(f"s_mul_i32 s72, {sJ1}, 96\nv_and_b32 v3, 1, v1\nv_lshlrev_b32 v3, 3, v3\ns_mul_i32 s73, {sWV}, 3")
            for i in range(3):
                a(f"s_add_u32 s74, s73, {i}\ns_lshr_b32 s74, s74, 1\ns_lshl_b32 s74, s74, 4\ns_add_u32 s74, s74, s72")
                a(f"buffer_load_dwordx2 v[{14+2*i}:{15+2*i}], v3, {SRD_T}, s74 offen")
            if not INB:
                a(f"s_lshl_b32 s73, {sWV}, 3\nv_add_u32 v8, s73, v1")
                g.wg_of("v9", "v8", sC1)
                g.vflag("v9", PH_H)
            c0 = -2 * math.log2(math.e) * math.sqrt(2 / math.pi)
            c1 = c0 * 0.044715
            a(f"v_and_b32 v3, 15, v1\nv_mul_u32_u24 v3, 208, v3\nv_lshrrev_b32 v4, 4, v1\nv_lshl_add_u32 v3, v4, 4, v3")
            a(f"s_mul_i32 s72, {sWV}, 13312\nv_add_u32 v13, s72, v3")
            a("v_lshrrev_b32 v3, 1, v1\nv_mul_u32_u24 v10, 208, v3\nv_and_b32 v4, 1, v1\nv_lshl_add_u32 v10, v4, 4, v10")
            a("v_lshrrev_b32 v5, 5, v1\nv_lshlrev_b32 v11, 10, v5\nv_and_b32 v3, 15, v3\nv_lshl_add_u32 v11, v3, 4, v11")
            if not INB:
                a("v_lshl_add_u32 v11, v4, 3, v11")
            a(f"s_mul_i32 s76, {sWV}, 3\ns_mov_b32 s84, {f32(c1)}\ns_mov_b32 s85, {f32(c0)}")
            for i in range(3):
                a(f"s_add_u32 s72, s76, {i}\ns_lshr_b32 s73, s72, 1\ns_and_b32 s72, s72, 1")
                a(f"s_mul_i32 s74, s72, {32*208}\ns_lshl_b32 s75, s73, 5\ns_add_u32 s74, s74, s75\nv_add_u32 v{20+i}, s74, v10")
            if INB:
                for i in range(3):
                    a(f"s_mov_b32 s{80+i}, s{sUO+i}")
            else:
                u_offsets(g, 80)

        def w1_one(i):
            st, ft = divmod(i, 3)
            if ft == 0 or i == 40:
                a(f"s_add_u32 s91, s90, {st*3072}")
            a(f"buffer_load_dwordx4 {ar(4*i)}, v2, {SRD_WS}, s91 offen offset:{ft*1024} sc1")
        a(f"s_lshl_b32 s90, {sJ1}, 6\ns_lshl_b32 s91, {sWV}, 4\ns_add_u32 s90, s90, s91\ns_mul_i32 s90, s90, 3072\ns_add_u32 s90, s90, {WS_W1P}")
        a.weave([a.capture(lambda i=i: w1_one(i)) for i in range(40, 48)], a.capture(m1_setup))
        HD = next((int(o[2:]) for o in OPT if o.startswith("hd")), 15)
        HB, NS, ACC = 64, HD + 9, 192
        a(f"s_lshl_b32 s72, {sC1}, 6\ns_lshl_b32 s73, {sWV}, 4\ns_add_u32 s72, s72, s73\ns_lshl_b32 s72, s72, 12")
        a(f"s_lshl_b32 s73, {sL}, 21\ns_add_u32 s72, s72, s73\ns_add_u32 s43, s72, {WS_H}")
        if INB:
            a(f"v_lshlrev_b32 v9, 10, v1\nv_add_u32 v9, 1008, v9\ns_mov_b32 {sREDO}, 0")
            redo = g.lab("m1r")
            a.label(redo, reset=False)
            sentinel(g, [("v9", "s43")], SRD_WS)
            a(f"s_mov_b64 {sACC}, 0")
        else:
            g.poll("v9", "0xff")
        g.stamp(14)
        a("s_mov_b32 s72, s43")
        nload = [0]

        def hload():
            n = nload[0]
            if ROT:
                if n & 3 == 0:
                    a(f"s_lshr_b32 s72, s2, 5\ns_lshl_b32 s72, s72, 1\ns_add_u32 s72, s72, {n >> 2}\ns_and_b32 s72, s72, 15\ns_lshl_b32 s72, s72, 12\ns_add_u32 s72, s72, s43")
                a(f"buffer_load_dwordx4 {vr(HB + 4*(n % NS))}, v2, {SRD_WS}, s72 offen offset:{(n & 3)*1024} sc1")
            else:
                a(f"buffer_load_dwordx4 {vr(HB + 4*(n % NS))}, v2, {SRD_WS}, s72 offen offset:{(n & 3)*1024} sc1")
                if n & 3 == 3:
                    a("s_add_u32 s72, s72, 4096")
            nload[0] += 1
        for _ in range(HD):
            hload()
        for st in range(16):
            for dt in range(4):
                hb = HB + 4 * ((st*4 + dt) % NS)
                for ft in range(3):
                    acc = ACC + (ft*4 + dt) * 4
                    c = "0" if st == 0 else ar(acc)
                    a(f"v_mfma_f32_16x16x32_bf16 {ar(acc)}, {ar((st*3+ft)*4)}, {vr(hb)}, {c}")
                    if INB and ft == 0:
                        a(f"v_cmp_eq_u32 vcc, -1, v{hb}\ns_or_b64 {sACC}, {sACC}, vcc")
                if nload[0] < 64:
                    hload()
                if st == 0 and dt == 0:
                    g.stamp(30)
                if st == 7 and dt == 3:
                    g.stamp(31)
        if INB:
            redo_end(g, redo)
        l0_only(g, "l0t", lambda: (warmup(g, SRD_W2P, "v60") if not NOW2 else None, a(x2_touch_text())))
        g.stamp(15)
        nw2 = 0
        for dt in range(4):
            for ft in range(3):
                a(f"ds_write_b128 v13, {ar(ACC + (ft*4+dt)*4)} offset:{L_X + dt*16*208 + ft*64}")
        a("s_waitcnt lgkmcnt(0)\ns_barrier")
        for i in range(3):
            for k in range(4):
                a(f"ds_read_b128 {vr(64 + 16*i + 4*k)}, v{20+i} offset:{L_X + k*13312}")
        if g.layer == 0:
            sk3 = g.lab("ep")
            a(f"s_or_b32 s72, s2, {sWV}\ns_cmp_eq_u32 s72, 0\ns_cbranch_scc0 {sk3}")
            with a.cond(sk3):
                a(f"v_mov_b32 v4, {sN}\nv_mov_b32 v5, {WS_EPOCH}\ns_mov_b64 exec, 1")
                a(f"buffer_store_dword v4, v5, {SRD_WS}, 0 offen sc1")
                a("s_mov_b64 exec, -1")
            a.label(sk3, reset=False)
        if "udrain" not in OPT:
            pass
        else:
            a("s_waitcnt lgkmcnt(0)\ns_barrier")
        for i in range(3):
            B = 64 + 16 * i
            bb = 14 + 2 * i

            def w2x(k=1):
                nonlocal nw2
                for _ in range(k):
                    if nw2 < 18:
                        w2_text.append(w2(nw2)); nw2 += 1
            for e in range(4):
                a(f"v_add_f32 v{B+e}, v{B+e}, v{B+4+e}\nv_add_f32 v{B+8+e}, v{B+8+e}, v{B+12+e}")
            w2x()
            a(f"v_lshlrev_b32 v{B+4}, 16, v{bb}\nv_and_b32 v{B+5}, 0xffff0000, v{bb}\nv_lshlrev_b32 v{B+6}, 16, v{bb+1}\nv_and_b32 v{B+7}, 0xffff0000, v{bb+1}")
            for e in range(4):
                a(f"v_add_f32 v{B+e}, v{B+e}, v{B+8+e}")
            w2x()
            for e in range(4):
                a(f"v_add_f32 v{B+e}, v{B+e}, v{B+4+e}")
            for e in range(4):
                a(f"v_mul_f32 v{B+4+e}, v{B+e}, v{B+e}\nv_mov_b32 v{B+8+e}, s85")
            w2x()
            for e in range(4):
                a(f"v_fmac_f32 v{B+8+e}, s84, v{B+4+e}")
            for e in range(4):
                a(f"v_mul_f32 v{B+8+e}, v{B+8+e}, v{B+e}")
            for e in range(4):
                a(f"v_exp_f32 v{B+8+e}, v{B+8+e}")
            w2x()
            for e in range(4):
                a(f"v_add_f32 v{B+8+e}, 1.0, v{B+8+e}")
            for e in range(4):
                a(f"v_rcp_f32 v{B+8+e}, v{B+8+e}")
            for e in range(4):
                a(f"v_mul_f32 v{B+e}, v{B+e}, v{B+8+e}")
            a(f"v_cvt_pk_bf16_f32 v{B+4}, v{B}, v{B+1}\nv_cvt_pk_bf16_f32 v{B+5}, v{B+2}, v{B+3}")
            if INB:
                a(f"v_mov_b32_dpp v{B+6}, v{B+4} quad_perm:[1,0,3,2] row_mask:0xf bank_mask:0xf")
                a(f"v_mov_b32_dpp v{B+7}, v{B+5} quad_perm:[1,0,3,2] row_mask:0xf bank_mask:0xf")
                a("s_mov_b32 exec_lo, 0x55555555\ns_mov_b32 exec_hi, 0x55555555")
                a(f"buffer_store_dwordx4 v[{B+4}:{B+7}], v11, {SRD_WS}, s{80+i} offen sc1", tag="Ust")
                a("s_mov_b64 exec, -1")
            else:
                a(f"buffer_store_dwordx2 v[{B+4}:{B+5}], v11, {SRD_WS}, s{80+i} offen sc1", tag="Ust")
        while nw2 < (36 if "udrain" in OPT else 20):
            w2_text.append(w2(nw2)); nw2 += 1
        if INB:
            a("s_barrier")
        else:
            a.wait_tag("Ust")
            g.publish(PH_U)
    a.label(skip, reset=False)
    pre = ([warmup_text(SRD_W2P, "v60")] if not NOW2 else []) + [x2_touch_text()] if g.layer == 0 else []
    g.tails.append((other, skip, pre + w2_text))
    if "noweave2" in OPT:
        for i in range(20, 36):
            w2_dma(g, i >> 2, i & 3)
        a.wait_tag("D2_0")
        w2_tr(g, 0, 5)
        a("s_waitcnt lgkmcnt(0)")
        for i in range(36, 44):
            w2_dma(g, i >> 2, i & 3)
    else:
        a.wait_tag("D2_0")
        d1 = [a.capture(lambda i=i: w2_dma(g, i >> 2, i & 3)) for i in range(20, 36)]
        setup = a.capture(lambda: mix2_setup(g))
        half = len(setup) // 2
        while setup[half][0] != "i" or setup[half][1].startswith(("s_addc", "s_subb", "s_cselect")):
            half += 1
        a.weave(d1, a.capture(lambda: w2_tr(g, 0, 5)) + setup[:half])
        a("s_waitcnt lgkmcnt(0)")
        d2 = [a.capture(lambda i=i: w2_dma(g, i >> 2, i & 3)) for i in range(36, 44)]
        a.weave(d2, setup[half:])


def mix2_setup(g):
    a = g.a
    g.srd(32, P_B2, 4096)
    a(f"v_lshrrev_b32 v10, 3, v0\ns_lshl_b32 s72, {sR}, 7\nv_lshl_add_u32 v11, v10, 1, s72")
    a(f"buffer_load_ushort v12, v11, {SRD_T}, 0 offen\nbuffer_load_ushort v13, v11, {SRD_T}, 0 offen offset:64")
    a(f"s_mul_i32 s72, {sCQ}, {UC}\ns_lshl_b32 s73, {sL}, 21\ns_add_u32 s72, s72, s73\ns_add_u32 s72, s72, {WS_U}")
    g.srd(24, P_WS, UC, "s72")
    a("v_and_b32 v3, 15, v1\nv_lshrrev_b32 v4, 4, v1\nv_and_b32 v5, 7, v1")
    a(f"s_lshl_b32 s72, {sWV}, 14")
    for dt in range(4):
        a(f"v_add_u32 v6, {4*dt}, v4\nv_xor_b32 v6, v6, v5\nv_lshlrev_b32 v6, 4, v6\nv_lshl_add_u32 v6, v3, 8, v6\nv_add_u32 v{14+dt}, s72, v6")
    a("v_and_b32 v3, 7, v0\nv_and_b32 v4, 7, v10\nv_lshlrev_b32 v5, 1, v3")
    for e in range(2):
        a(f"v_add_u32 v6, {e}, v5\nv_xor_b32 v6, v6, v4\nv_lshlrev_b32 v6, 4, v6\nv_lshl_add_u32 v{18+e}, v10, 8, v6")
    a(f"v_mul_u32_u24 v20, 144, v10\nv_lshl_add_u32 v20, v3, 4, v20\nv_add_u32 v20, {L_R}, v20")
    a(f"v_lshlrev_b32 v21, 10, v10\nv_lshl_add_u32 v21, v3, 4, v21")
    if not INB:
        u_producers(g, "v9", 0)
        g.vflag("v9", PH_U)


def mix2(g):
    a = g.a
    a.c("======== token mixing 2: x += (u W2 + b2)^T")
    if g.layer == 0 and "code2" in OPT and g.stop_after is None:
        g.code_warmup2()
    if "noweave2" in OPT:
        mix2_setup(g)
    if INB:
        a(f"s_mul_i32 s85, {sWV}, {11*4096}\nv_lshlrev_b32 v9, 8, v1\nv_add_u32 v9, 240, v9")
        a(f"s_add_u32 s43, s85, 16384\ns_add_u32 s48, s85, 32768\ns_mov_b32 {sREDO}, 0")
        a("v_cmp_gt_u32 vcc, 48, v1\nv_mov_b32 v8, 0x7ff00000\nv_cndmask_b32 v8, v8, v9, vcc")
        redo = g.lab("m2r")
        a.label(redo, reset=False)
        sentinel(g, [("v9", "s85"), ("v9", "s43"), ("v8", "s48")], SRD_U)
        a(f"s_mov_b64 {sACC}, 0")
    else:
        g.poll("v9", "0xff")
    g.stamp(17)
    UD = next((int(o[2:]) for o in OPT if o.startswith("ud")), 14)
    UB, ACC = 64, 192
    a(f"s_mul_i32 s85, {sWV}, {11*4096}")

    def uload(i):
        st, dt = i >> 2, i & 3
        if dt == 0:
            a(f"s_add_u32 s84, s85, {st*4096}")
        a(f"buffer_load_dwordx4 {vr(UB + 4*i)}, v2, {SRD_U}, s84 offen offset:{dt*1024} sc1")
    a.wait_tag("D2_5", "D2_9", emit=False)
    a.weave([a.capture(lambda i=i: uload(i)) for i in range(UD)], a.capture(lambda: (w2_tr(g, 5, 9), w2_tr(g, 9, 11))))
    for st in range(11):
        for dt in range(4):
            for k in range(4):
                acc = ACC + (dt*4 + k) * 4
                c = "0" if st == 0 else ar(acc)
                a(f"v_mfma_f32_16x16x32_bf16 {ar(acc)}, {vr(UB + (st*4+dt)*4)}, {ar((st*4+k)*4)}, {c}")
                if INB and k == 0:
                    a(f"v_cmp_eq_u32 vcc, -1, v{UB + (st*4+dt)*4}\ns_or_b64 {sACC}, {sACC}, vcc")
                if k == 1 and st*4 + dt + UD < 44:
                    uload(st*4 + dt + UD)
    if INB:
        redo_end(g, redo)
    g.stamp(18)
    for dt in range(4):
        for k in range(4):
            a(f"ds_write_b128 v{14+dt}, {ar(ACC + (dt*4+k)*4)} offset:{L_X + k*4096}")
    a("s_waitcnt lgkmcnt(0)\ns_barrier")
    a(f"s_lshl_b32 s72, {sR}, 16\ns_lshl_b32 s73, {sCQ}, 7\ns_add_u32 s72, s72, s73")
    for half in range(2):
        B = 64 + half * 48
        for k in range(4):
            for e in range(2):
                a(f"ds_read_b128 {vr(B + k*8 + e*4)}, v{18+e} offset:{L_X + k*16384 + half*8192}")
        a(f"ds_read_b128 {vr(B+32)}, v20 offset:{half*4608}")
    def epilogue(first):
        ring = []
        if first:
            g.q_addr_w(46)
            g.w_dma_setup("s80", "s81", "s82")
            ring = [(s_, n) for s_ in range(5) for n in range(4)]

        def ringdma(k=1):
            for _ in range(k):
                if ring:
                    s_, n = ring.pop(0)
                    g.w_dma(s_, only=n, sg="s80", sl="s81", st="s82", va="v46")
        for half in range(2):
            B = 64 + half * 48
            a(f"v_lshlrev_b32 v22, 16, v{12+half}")
            for i in range(8):
                a(f"v_add_f32 v{B+i}, v{B+i}, v{B+8+i}\nv_add_f32 v{B+16+i}, v{B+16+i}, v{B+24+i}")
                if i % 2 == 1:
                    ringdma()
            for i in range(8):
                a(f"v_add_f32 v{B+i}, v{B+i}, v{B+16+i}")
            ringdma()
            for i in range(8):
                a(f"v_add_f32 v{B+i}, v{B+i}, v22")
            ringdma()
            for k in range(4):
                a(f"v_lshlrev_b32 v{B+8+2*k}, 16, v{B+32+k}\nv_and_b32 v{B+9+2*k}, 0xffff0000, v{B+32+k}")
            ringdma()
            for i in range(8):
                a(f"v_add_f32 v{B+i}, v{B+i}, v{B+8+i}")
            ringdma()
            for k in range(4):
                a(f"v_cvt_pk_bf16_f32 v{B+36+k}, v{B+2*k}, v{B+2*k+1}")
            if first:
                a(f"ds_write_b128 v20, {vr(B+36)} offset:{half*4608}")
                g.dual(lambda m, B=B: a(f"buffer_store_dwordx4 {vr(B+36)}, v21, {SRD_DST}, s72 offen {m}", tag="Xst"))
            else:
                om = "" if "outplain" in OPT else "sc1"
                a(f"buffer_store_dwordx4 {vr(B+36)}, v21, {SRD_DST}, s72 offen {om}")
            if half == 0:
                a("s_add_u32 s72, s72, 32768")
            if first:
                a(f"v_add_f32 v{B+40}, v{B}, v{B+1}\nv_mul_f32 v{B+41}, v{B}, v{B}\nv_fmac_f32 v{B+41}, v{B+1}, v{B+1}")
                for i in range(2, 8):
                    a(f"v_add_f32 v{B+40}, v{B+40}, v{B+i}\nv_fmac_f32 v{B+41}, v{B+i}, v{B+i}")
                ringdma(2)
        if first:
            ringdma(20)
            a("v_mov_b32 v12, v46")
            g.row_stats_store([104, 152], 1, local=True)
    epilogue(g.layer == 0)


def drain(g, tag, n, sreg, val):
    a = g.a
    lw = g.lab("dr")
    a(f"s_cmp_eq_u32 {sreg}, {val}\ns_cbranch_scc1 {lw}")
    a.raw("  s_waitcnt vmcnt(0)")
    a.label(lw, reset=False)
    a.raw(f"  s_waitcnt vmcnt({n})")
    a.wait_tag(tag, emit=False)


def o_drain_publish(g):
    a = g.a
    a.wait_tag("Ost")
    g.publish(PH_O, local=True, also=PH_P if g.layer == 0 else None)


def rest(g):
    a = g.a
    attn_setup(g)
    g.stamp(5)
    attn(g)
    a("s_barrier")
    o_drain_publish(g)
    g.stamp(9)
    if g.stop("a"):
        return True
    o_flags(g)
    oproj(g)
    early_w1(g, 28, 40)
    if not INB:
        drain(g, "Hst", 12, sM1, 1)
        g.publish(PH_H)
    g.stamp(13)
    if g.stop("o"):
        return True
    mix1(g)
    g.stamp(16)
    if g.stop("m1"):
        return True
    mix2(g)
    g.stamp(19)
    if g.stop("m2"):
        return True
    if g.layer == 1:
        a("s_endpgm")
        a.assume_clean()
        return True
    g.srd(4, P_WS, 2 << 20, WS_X2)
    g.srd(20, P_OUT, 2 << 20)
    a(f"s_mov_b32 {sL}, 1")
    a("s_waitcnt lgkmcnt(0)")
    return False


def finish(g):
    a = g.a
    a("s_branch L_end")
    a.assume_clean()
    for lab, back, fn in g.late:
        a.label(lab, reset=False)
        fn()
        a(f"s_branch {back}")
        a.assume_clean()
    for stub, back, always in g.stubs:
        a.label(stub, reset=False)
        a("s_nop 7")
        for x in always:
            a(x)
        a(f"s_nop 11\ns_branch {back}")
        a.assume_clean()
    for lab, back, texts in g.tails:
        a.label(lab, reset=False)
        for x in texts:
            for line in x.split("\n"):
                if line.startswith("@"):
                    a.label(line[1:], reset=False)
                else:
                    a(line)
        a(f"s_branch {back}")
        a.assume_clean()
```

```python
import math
from gen import *

NEG = f32(-1e30)
import os
OPT = set(os.environ.get("KOPT", "").split(","))
UDW = next((int(o[3:]) for o in OPT if o.startswith("w2e")), 20)
NOW2 = "now2wu" in OPT or any(o.startswith("w2p2") for o in OPT)
ROT = "rot" in OPT
INB = "inb" in OPT
sHB, sUO, sACC, sREDO = "s36", 37, "s[40:41]", "s42"


def ar(b, n=4):
    return f"a[{b}:{b+n-1}]"


def vr(b, n=4):
    return f"v[{b}:{b+n-1}]"


QA, QB = 224, 228
SBUF = (64, 80, 96, 112)
NEGM = {"A": 128, "B": 144}
OACC = {"A": 160, "B": 176}
PBUF = {"A": 192, "B": 200}
CDIAG, CFAR, ANDD, ANDF = 208, 232, 32, 40
AK0, AV0 = 0, 72
L_KV = L_RING


def kfrag(b):
    return AK0 + b * 4


def vfrag(b, half):
    return AV0 + ((b & 1) * 2 + half) * 4


def attn_setup(g):
    a = g.a
    a.c("======== attention constants")
    a("v_and_b32 v3, 31, v1\nv_lshrrev_b32 v4, 5, v1\nv_lshlrev_b32 v4, 2, v4\nv_sub_u32 v3, v3, v4")
    a(f"v_mov_b32 v48, 0\nv_mov_b32 v49, {NEG}\nv_mov_b32 v50, 0xffff\nv_mov_b32 v51, 0xffff0000")
    for i in range(16):
        ci = (i & 3) + 8 * (i >> 2)
        sp = f"s[{72 + 2*(i % 4)}:{73 + 2*(i % 4)}]"
        a(f"v_cmp_le_i32 {sp}, {ci}, v3")
        a(f"v_mov_b32 v{OACC['A']+i}, 0\nv_mov_b32 v{OACC['B']+i}, 0")
        a(f"v_cndmask_b32 v{CDIAG+i}, v49, v48, {sp}\nv_cndmask_b32 v{CFAR+i}, v48, v49, {sp}")
        a(f"v_cndmask_b32 v{52 + (i & 1)}, v48, v{50 + (i & 1)}, {sp}")
        if i & 1:
            a(f"v_or_b32 v{ANDD + i//2}, v52, v53\nv_not_b32 v{ANDF + i//2}, v{ANDD + i//2}")
    for i in range(8):
        a(f"v_mov_b32 v{PBUF['A']+i}, 0\nv_mov_b32 v{PBUF['B']+i}, 0")
    for k in range(AV0, AV0 + 16):
        a(f"v_accvgpr_write_b32 a{k}, v48")
    a("v_mov_b32 v54, 0x3f803f80\ns_mov_b32 exec_lo, 0x00110000\ns_mov_b32 exec_hi, 0x00110000")
    for k in range(AV0, AV0 + 16):
        a(f"v_accvgpr_write_b32 a{k}, v54")
    a("s_mov_b64 exec, -1")


def warmup_text(srd, dst):
    return (f"s_lshl_b32 s72, s2, 2\ns_add_u32 s72, s72, {sWV}\ns_mul_i32 s73, s72, {43*128}\nv_lshlrev_b32 v7, 7, v1\n"
            f"s_mov_b32 exec_lo, -1\ns_mov_b32 exec_hi, 0x7ff\n"
            f"buffer_load_dword {dst}, v7, {srd}, s73 offen\ns_mov_b64 exec, -1")


def warmup(g, srd, dst):
    g.a(warmup_text(srd, dst))


def team_check(g):
    a = g.a
    top, ok = g.lab("tc"), g.lab("tco")
    a(f"s_lshl_b32 s72, {sR}, 7\ns_add_u32 s72, s72, {WS_XC}\nv_lshlrev_b32 v3, 4, v1\ns_mov_b32 {sCNT}, 0\ns_mov_b64 exec, 0xff")
    a.label(top, reset=False)
    a(f"buffer_load_dwordx4 v[24:27], v3, {SRD_WS}, s72 offen sc1\ns_waitcnt vmcnt(0)")
    a(f"v_cmp_ne_u64 vcc, {sNP}, v[26:27]\ns_cbranch_vccz {ok}")
    a(f"s_add_u32 {sCNT}, {sCNT}, 1\ns_cmp_lt_u32 {sCNT}, {POLL_LIMIT}\ns_cbranch_scc1 {top}\ns_branch L_fail")
    a.label(ok, reset=False)
    a(f"v_cmp_ne_u32 vcc, s1, v24\ns_cmp_eq_u64 vcc, 0\ns_cselect_b32 {sFAST}, 1, 0\ns_mov_b64 exec, -1")


def x2_touch_text():
    return ("v_lshrrev_b32 v6, 3, v0\nv_and_b32 v3, 7, v0\nv_lshlrev_b32 v6, 10, v6\nv_lshl_add_u32 v6, v3, 4, v6\n"
            f"s_lshl_b32 s72, {sR}, 16\ns_lshl_b32 s73, {sCQ}, 7\ns_add_u32 s72, s72, s73\n"
            f"s_add_u32 s73, s72, 32768\n"
            f"buffer_load_dword v23, v6, {SRD_DST}, s72 offen sc1\nbuffer_load_dword v24, v6, {SRD_DST}, s73 offen sc1\n"
            f"s_add_u32 s72, {sR}, 32\ns_lshl_b32 s72, s72, 3\ns_add_u32 s72, s72, {sCQ}\ns_lshl_b32 s72, s72, 10\ns_add_u32 s72, s72, {WS_ST2}\n"
            f"buffer_load_dword v25, v2, {SRD_WS}, s72 offen sc1")


def u_offsets(g, dst):
    a = g.a
    a(f"s_mul_i32 s76, {sWV}, 3\ns_mul_i32 s77, {sC1}, {UC}\ns_lshl_b32 s73, {sL}, 21\ns_add_u32 s77, s77, s73\ns_add_u32 s77, s77, {WS_U}")
    for i in range(3):
        a(f"s_add_u32 s72, s76, {i}\ns_lshr_b32 s73, s72, 1\ns_and_b32 s72, s72, 1")
        a(f"s_mul_i32 s74, {sJ1}, 6\ns_add_u32 s74, s74, s73\ns_lshr_b32 s75, s74, 2\ns_and_b32 s79, s74, 3")
        a(f"s_lshl_b32 s75, s75, 12\ns_lshl_b32 s79, s79, 8\ns_add_u32 s75, s75, s79\ns_lshl_b32 s72, s72, 11\ns_add_u32 s75, s75, s72")
        a(f"s_add_u32 s75, s75, s77\ns_cmp_ge_u32 s74, 172\ns_cselect_b32 s79, 0x70000000, 0\ns_or_b32 s75, s75, s79")
        a(f"s_cmp_eq_u32 {sM1}, 0\ns_cselect_b32 s{dst+i}, 0x70000000, s75")


def inband_addresses(g):
    a = g.a
    a(f"s_lshl_b32 s72, {sCQ}, 6\ns_lshl_b32 s73, {sR}, 1\ns_add_u32 s72, s72, s73\ns_add_u32 s72, s72, {sTB}\ns_lshl_b32 s72, s72, 2")
    a(f"s_lshl_b32 s73, {sP}, 1\ns_add_u32 s72, s72, s73\ns_lshl_b32 s72, s72, 10\ns_lshl_b32 s73, {sL}, 21\ns_add_u32 s72, s72, s73\ns_add_u32 {sHB}, s72, {WS_H}")
    a("s_mov_b64 s[44:45], s[74:75]")
    u_offsets(g, sUO)
    a("s_mov_b64 s[74:75], s[44:45]")
    a("v_lshrrev_b32 v25, 5, v1\nv_lshlrev_b32 v25, 10, v25\nv_bfe_u32 v7, v1, 1, 4\nv_lshl_add_u32 v25, v7, 4, v25")
    a("v_mov_b32 v28, -1\nv_mov_b32 v29, -1\nv_mov_b32 v30, -1\nv_mov_b32 v31, -1")


def own_tile_dma(g):
    a = g.a
    a(f"s_lshl_b32 s92, {sCQ}, 1\ns_add_u32 s92, s92, {sP}\ns_lshl_b32 s92, s92, 6\ns_lshl_b32 s93, {sR}, 1\ns_add_u32 s92, s92, s93")
    a(f"s_add_u32 s92, s92, {sTB}\ns_lshl_b32 s92, s92, 12\ns_add_u32 s92, s92, {WS_KV + g.layer * (4 << 20)}")
    a(f"s_mul_i32 s93, {sP}, 40960\ns_lshl_b32 s94, {sTB}, 12\ns_add_u32 s93, s93, s94\ns_add_u32 s93, s93, {L_KV + 8*4096}")
    for q4 in range(4):
        a(f"s_add_u32 m0, s93, {q4*1024}\ns_add_u32 s94, s92, {q4*1024}")
        a(f"buffer_load_dwordx4 v2, {SRD_WS}, s94 offen sc1 lds", tag="Kd")


def attn(g):
    a = g.a
    a.c("======== attention")
    a(f"s_sub_u32 s72, {sR}, 4\nv_add_u32 v8, s72, v1\nv_cmp_le_i32 s[74:75], 0, v8")
    g.wg_of("v9", "v8", sCQ)
    g.vflag("v9", PH_KV)
    a("s_and_b64 s[74:75], s[74:75], 0xf")
    a(f"s_lshl_b32 s76, {sR}, 1\ns_add_u32 s76, s76, {sTB}\ns_sub_u32 s77, 8, s76\ns_max_i32 s77, s77, 0")
    a(f"s_lshl_b32 s78, {sCQ}, 1\ns_add_u32 s78, s78, {sP}\ns_lshl_b32 s78, s78, 18\ns_lshl_b32 s79, {sL}, 22")
    a(f"s_add_u32 s78, s78, s79\ns_add_u32 s78, s78, {WS_KV}")
    a(f"s_lshl_b32 s79, {sTB}, 2\ns_lshl_b32 s80, {sR}, 1\ns_add_u32 s80, s80, s79\ns_sub_u32 s80, s80, 8")
    for i in range(4):
        a(f"s_add_i32 s{81+i}, s80, {i}\ns_max_i32 s{81+i}, s{81+i}, 0\ns_lshl_b32 s{81+i}, s{81+i}, 12\ns_add_u32 s{81+i}, s{81+i}, s78")
    a(f"s_mul_i32 s86, {sP}, 40960\ns_lshl_b32 s87, {sTB}, 14\ns_add_u32 s87, s87, s86\ns_add_u32 s87, s87, {L_KV}")
    if "ownlate" in OPT:
        own_tile_dma(g)
    a(f"s_lshl_b32 s88, {sTB}, 12\ns_add_u32 s88, s88, s86\ns_add_u32 s88, s88, {L_KV}\nv_add_u32 v10, s88, v2")
    a("v_and_b32 v8, 15, v1\nv_lshlrev_b32 v8, 4, v8\nv_lshrrev_b32 v7, 5, v1\nv_lshl_add_u32 v8, v7, 8, v8\nv_add_u32 v11, s88, v8")
    a("s_mov_b32 s90, 0xffff\ns_mov_b32 s91, 0xffff")
    a("v_bfe_u32 v20, v1, 4, 1\nv_lshlrev_b32 v20, 14, v20\nv_and_b32 v7, 15, v1\nv_lshl_add_u32 v20, v7, 4, v20")
    a("v_lshrrev_b32 v7, 5, v1\nv_lshl_add_u32 v20, v7, 8, v20")
    a(f"s_lshl_b32 s72, {sR}, 2\ns_lshl_b32 s73, {sTB}, 1\ns_add_u32 s72, s72, s73\ns_lshl_b32 s72, s72, 4")
    a(f"s_lshl_b32 s73, {sCQ}, 1\ns_add_u32 s72, s72, s73\ns_add_u32 s72, s72, {sP}\ns_lshl_b32 s72, s72, 10")
    a(f"s_lshl_b32 s73, {sL}, 21\ns_add_u32 s72, s72, s73\ns_add_u32 s89, s72, {WS_OF}")
    if INB:
        inband_addresses(g)
    a("s_mov_b64 s[76:77], s[74:75]")
    l0_only(g, "l0p", lambda: (team_check(g), p1_setup(g)))
    wo = g.wo_dma()
    wo_early = g.layer == 1 and "wokv" in OPT
    if wo_early:
        for n in range(16):
            a(wo(n))
    g.poll("v9", "s[76:77]")
    a(f"s_lshl_b32 s76, {sR}, 1\ns_add_u32 s76, s76, {sTB}\ns_sub_u32 s77, 8, s76\ns_max_i32 s77, s77, 0")
    g.stamp(6)
    def kvdma(i, h, part):
        return (f"s_add_u32 m0, s87, {i*4096 + h*2048 + part}\ns_add_u32 s72, s{81+i}, {h*2048 + part}\n"
                f"buffer_load_dwordx4 v2, {SRD_WS}, s72 offen sc1 lds")
    for i in range(4):
        for h in range(2):
            a(kvdma(i, h, 0), tag="Kd")
    vd = [kvdma(i, h, 1024) for i in range(4) for h in range(2)]
    PB = next((int(o[2:]) for o in OPT if o.startswith("pb")), 4)
    early = "plate" not in OPT and (g.layer == 0 or "vp1" not in OPT)
    if early:
        for x in vd:
            a(x, tag="Vd")
        if g.layer == 0 and PB is None:
            p1_loads(g)
    heads = ("A", "B")
    q = {"A": QA, "B": QB}
    mx = {"A": (48, 49), "B": (50, 51)}

    def kread(b):
        t, h = b >> 1, b & 1
        return f"ds_read_b128 {ar(kfrag(b))}, v10 offset:{t*4096 + h*2048}"

    def vread(b, half):
        t, h = b >> 1, b & 1
        return f"ds_read_b128 {ar(vfrag(b, half))}, v11 offset:{t*4096 + h*2048 + 1024 + half*512}"

    def qk(b, c):
        return f"v_mfma_f32_32x32x16_bf16 {vr(SBUF[b & 3],16)}, {ar(kfrag(b))}, {vr(q[heads[b & 1]])}, {c}"

    def cmask(t):
        return vr(CFAR, 16) if t == 0 else vr(CDIAG, 16) if t == 8 else "0"

    for h in heads:
        a(f"v_mov_b32 v{mx[h][0]}, {NEG}\nv_mov_b32 v{mx[h][1]}, {NEG}")
    a.wait_tag("Kd")
    a("s_barrier")
    def passes(skips, layer=g.layer):
        keep, g.layer = g.layer, layer
        a.c("pass 1: true row maximum over the masked window")
        for b in range(4):
            a(kread(b))
        a(qk(0, cmask(0)))
        a(kread(4))
        a(qk(1, cmask(0)))
        for b in range(18):
            t, s_, h = b >> 1, SBUF[b & 3], heads[b & 1]
            if g.layer == 0 and ((b == 8 and not early) or (early and b == PB)):
                p1_loads(g)
            if skips and t < 8 and b % 2 == 0:
                stub, back = g.lab("p1s"), g.lab("p1b")
                always = [x for bb in (b, b + 1) for x in ([kread(bb + 5)] if bb + 5 < 18 else []) + ([qk(bb + 2, cmask((bb + 2) >> 1))] if bb + 2 < 18 else [])
                          + ([vd[bb]] if bb < 8 and not early else []) + ([wo(bb - 2)] if bb >= 2 and g.layer == 1 and not wo_early else [])]
                a(f"s_cmp_gt_u32 s77, {t}\ns_cbranch_scc1 {stub}")
            if b + 5 < 18:
                a(kread(b + 5))
            if b + 2 < 18:
                a(qk(b + 2, cmask((b + 2) >> 1)))
            if b < 8 and not early:
                a(vd[b], tag="Vd")
            for i in range(8):
                m = mx[h][i & 1]
                a(f"v_max3_f32 v{m}, v{m}, v{s_+2*i}, v{s_+2*i+1}")
                if i == 3 and b >= 2 and g.layer == 1 and not wo_early:
                    a(wo(b - 2))
            if skips and t < 8 and b % 2 == 1:
                a.label(back, reset=False)
                g.stubs.append((stub, back, ["s_waitcnt lgkmcnt(0)"] + [y for x in always for y in (x, "s_waitcnt lgkmcnt(0)")]))
        for h in heads:
            m0, m1 = mx[h]
            a(f"v_max_f32 v{m0}, v{m0}, v{m1}\nv_mov_b32 v{m1}, v{m0}")
        for h in heads:
            m0, m1 = mx[h]
            a(f"v_permlane32_swap_b32 v{m0}, v{m1}")
        for h in heads:
            m0, m1 = mx[h]
            a(f"v_max_f32 v{m0}, v{m0}, v{m1}\nv_xor_b32 v{m0}, 0x80000000, v{m0}")
        for i in range(16):
            a(f"v_mov_b32 v{NEGM['A']+i}, v{mx['A'][0]}")
        a(qk(0, vr(NEGM["A"], 16)))
        for i in range(16):
            a(f"v_mov_b32 v{NEGM['B']+i}, v{mx['B'][0]}")
        a.wait_tag("Vd")
        a("s_barrier")
        a(f"buffer_load_dword v21, v20, {SRD_WS}, s89 offen sc1\nbuffer_load_dword v23, v20, {SRD_WS}, s89 offen offset:512 sc1")
        a(f"s_lshl_b32 s72, {sL}, 5\ns_add_u32 s72, s72, {sR}\ns_lshl_b32 s72, s72, 3\ns_add_u32 s72, s72, {sCQ}\ns_lshl_b32 s72, s72, 10")
        a(f"s_lshl_b32 s73, {sWV}, 8\ns_add_u32 s72, s72, s73\ns_add_u32 s72, s72, {WS_ST}")
        a(f"s_mov_b64 exec, 0xffff\nbuffer_load_dword v22, v2, {SRD_WS}, s72 offen sc1\ns_mov_b64 exec, -1")
        g.stamp(7)
        a.c("pass 2: P = exp2(S - m), O += V^T P; block b exponentiates S_b, starts S_{b+1} and finishes block b-1")

        def s2(b):
            return SBUF[b & 1]

        def qk2(b):
            h = heads[b & 1]
            return f"v_mfma_f32_32x32x16_bf16 {vr(s2(b),16)}, {ar(kfrag(b))}, {vr(q[h])}, {vr(NEGM[h],16)}"

        def pv(b, half):
            h = heads[b & 1]
            o, p = OACC[h], PBUF[h]
            return f"v_mfma_f32_32x32x16_bf16 {vr(o,16)}, {ar(vfrag(b, half))}, {vr(p+4*half)}, {vr(o,16)}"

        wd_cur = []
        for b in range(18):
            t, h = b >> 1, heads[b & 1]
            nxt = [qk2(b + 1)] if b + 1 < 18 else []
            prv = [pv(b - 1, 0), pv(b - 1, 1)] if b >= 1 else []
            vl = ["s_mov_b64 exec, s[90:91]\n" + vread(b, 0) + "\n" + vread(b, 1) + "\ns_mov_b64 exec, -1"]
            TB0 = next((int(o[2:]) for o in OPT if o.startswith("pt")), 10 if early else 12)
            if g.layer == 0 and b == TB0:
                p1_finish(g)
            W2B = next((int(o[4:]) for o in OPT if o.startswith("w2p2")), None)
            if g.layer == 0 and b == W2B:
                a(warmup_text(SRD_W2P, "v24"))
            per = 3 if TB0 >= 12 else 2
            wd = [wo(i) for i in range(per * (b - TB0), min(per * (b - TB0) + per, 16))] if g.layer == 0 and b >= TB0 else []
            if INB and b == 2:
                for e in range(2):
                    a(f"buffer_store_dwordx4 v[28:31], v2, {SRD_WS}, {sHB} offen offset:{e*1024} sc1")
            if INB and b == 4:
                a("s_mov_b32 exec_lo, 0x55555555\ns_mov_b32 exec_hi, 0x55555555")
                for i in range(3):
                    a(f"buffer_store_dwordx4 v[28:31], v25, {SRD_WS}, s{sUO+i} offen sc1")
                a("s_mov_b64 exec, -1")
            if skips and t < 8 and b % 2 == 0:
                stub, back = g.lab("sk"), g.lab("bk")
                a(f"s_cmp_gt_u32 s77, {t}\ns_cbranch_scc1 {stub}")
            s_, p = s2(b), PBUF[h]
            extra = {1: nxt[:1], 2: wd[:1], 4: prv[:1], 7: wd[1:2], 9: prv[1:2], 11: vl, 13: wd[2:3]}
            wd_prev, wd_cur = (wd_cur if b else []), wd
            for i in range(16):
                a(f"v_exp_f32 v{s_+i}, v{s_+i}")
                if i >= 2 and i % 2 == 0:
                    k = i // 2 - 1
                    a(f"v_cvt_pk_bf16_f32 v{p+k}, v{s_+2*k}, v{s_+2*k+1}")
                for x in extra.get(i, []):
                    a(x)
            a(f"s_nop 0\nv_cvt_pk_bf16_f32 v{p+7}, v{s_+14}, v{s_+15}")
            if t in (0, 8):
                msk = ANDF if t == 0 else ANDD
                for k in range(8):
                    a(f"v_and_b32 v{p+k}, v{msk+k}, v{p+k}")
            if skips and t < 8 and b % 2 == 1:
                a.label(back, reset=False)
                g.stubs.append((stub, back, nxt + wd_prev + wd_cur))
        a(pv(17, 0)); a(pv(17, 1))
        g.layer = keep
    if "fastattn" not in OPT:
        passes(True)
    else:
        gen_, join = g.lab("ag"), g.lab("aj")
        a(f"s_cmp_lt_u32 {sR}, 4\ns_cbranch_scc1 {gen_}")
        a.snap(gen_)
        passes(False)
        a.label(join, reset=False)
        g.late.append((gen_, join, lambda: (a.restore(gen_), passes(True))))
    g.stamp(8)
    for hi, h in enumerate(heads):
        o = OACC[h]
        a(f"v_rcp_f32 v52, v{o+8}")
        for i in range(8):
            a(f"v_mul_f32 v{o+i}, v52, v{o+i}")
        for k in range(4):
            a(f"v_cvt_pk_bf16_f32 v{o+k}, v{o+2*k}, v{o+2*k+1}")

    def ost(m):
        for hi, h in enumerate(heads):
            a(f"buffer_store_dwordx4 {vr(OACC[h])}, v20, {SRD_WS}, s89 offen offset:{hi*512} {m}", tag="Ost")
    g.dual(ost)


L_STG = L_RING + 10240
L_STG2 = L_RING
V_W1D, V_W1R, V_W2D, V_W2R = 52, 56, 40, 42


PA1 = 96
V_P1 = 12


def p1_setup(g):
    a = g.a
    a("s_lshr_b32 s72, s2, 2\ns_and_b32 s73, s2, 3")
    a("s_mul_i32 s74, s73, 7\ns_min_u32 s75, s73, 1\ns_add_u32 s74, s74, s75")
    a("s_cmp_eq_u32 s73, 0\ns_cselect_b32 s75, 8, 7")
    a(f"s_mul_i32 s101, s72, {32*2752}\ns_mul_i32 s73, s74, 96\ns_add_u32 s101, s101, s73\ns_mul_i32 s75, s75, 6")
    a("s_mov_b32 s72, 1311\ns_mov_b32 s73, 2752")
    for n in range(7):
        a(f"s_lshl_b32 s74, {sWV}, 6\ns_add_u32 s74, s74, {256*n}\nv_add_u32 v3, s74, v1")
        a("v_mul_lo_u32 v4, v3, s72\nv_lshrrev_b32 v4, 16, v4\nv_mul_u32_u24 v5, 50, v4\nv_sub_u32 v5, v3, v5")
        a("v_mul_lo_u32 v6, v4, s73\nv_lshl_add_u32 v6, v5, 4, v6")
        a("v_cmp_gt_u32 vcc, s75, v5\nv_cmp_gt_u32 s[78:79], 32, v4\ns_and_b64 vcc, vcc, s[78:79]")
        a(f"v_mov_b32 v5, 0x7ff00000\nv_cndmask_b32 v{V_P1+n}, v5, v6, vcc")


def p1_loads(g):
    a = g.a
    for n in range(7):
        a(f"buffer_load_dwordx4 {ar(PA1+4*n)}, v{V_P1+n}, {SRD_W1}, s101 offen")


def p1_finish(g):
    a = g.a
    L1 = L_X
    a("s_lshr_b32 s72, s2, 2\ns_and_b32 s73, s2, 3")
    a("s_mul_i32 s74, s73, 7\ns_min_u32 s75, s73, 1\ns_add_u32 s74, s74, s75")
    a("s_cmp_eq_u32 s73, 0\ns_cselect_b32 s75, 8, 7")
    a(f"s_lshl_b32 s80, {sWV}, 10\ns_add_u32 s80, s80, {L1}\nv_add_u32 v120, s80, v2")
    for n in range(7):
        a(f"ds_write_b128 v120, {ar(PA1+4*n)} offset:{n*4096}")
    a("v_lshrrev_b32 v121, 4, v1\nv_lshlrev_b32 v121, 3, v121\nv_bfe_u32 v122, v1, 2, 2\nv_add_u32 v121, v121, v122\nv_and_b32 v122, 3, v1")
    a(f"v_mul_u32_u24 v123, 800, v121\nv_lshl_add_u32 v123, v122, 3, v123\ns_lshl_b32 s80, {sWV}, 5\ns_add_u32 s80, s80, {L1}\nv_add_u32 v123, s80, v123")
    a("s_waitcnt lgkmcnt(0)\ns_barrier")
    for n in range(6):
        for rd in range(2):
            a(f"ds_read_b64_tr_b16 v[{96+4*n+2*rd}:{97+4*n+2*rd}], v123 offset:{128*n + rd*3200}")
    for n in range(6):
        a(f"s_add_u32 s80, {sWV}, {4*n}\ns_mul_i32 s81, s80, 43\ns_lshr_b32 s81, s81, 7\ns_mul_i32 s82, s81, 3\ns_sub_u32 s82, s80, s82")
        a("s_cmp_lt_u32 s81, s75\ns_cselect_b32 s85, 0, 0x70000000")
        a("s_add_u32 s81, s81, s74\ns_lshl_b32 s81, s81, 6\ns_add_u32 s81, s81, s72\ns_mul_i32 s81, s81, 3\ns_add_u32 s81, s81, s82")
        a(f"s_lshl_b32 s81, s81, 10\ns_add_u32 s81, s81, {WS_W1P}\ns_or_b32 s81, s81, s85")
        a(f"buffer_store_dwordx4 {vr(96+4*n)}, v2, {SRD_WS}, s81 offen sc1")
    a("s_waitcnt lgkmcnt(0)\ns_barrier")


def early_w1(g, i0, i1, check=False):
    a = g.a
    skip = g.lab("e1")
    a(f"s_cmp_eq_u32 {sM1}, 0\ns_cbranch_scc1 {skip}")
    with a.cond("m1"):
        if check:
            l0_only(g, "l0c", lambda: (p1_check(g), w1_loads(g, 0, i0)))
        w1_loads(g, i0, i1)
    a.label(skip, reset=False)


def l0_only(g, name, fn):
    if g.layer == 0:
        fn()


def p1_check(g):
    a = g.a
    a(f"s_cmp_ge_u32 {sJ1}, 8\ns_cselect_b32 s72, 1, 0\ns_cmp_ge_u32 {sJ1}, 15\ns_addc_u32 s72, s72, 0")
    a(f"s_cmp_ge_u32 {sJ1}, 22\ns_addc_u32 s72, s72, 0")
    a(f"s_lshl_b32 s73, {sWV}, 4\nv_add_u32 v9, s73, v1\nv_lshl_add_u32 v9, v9, 2, s72")
    a(f"v_lshlrev_b32 v9, 7, v9\nv_add_u32 v9, {WS_FLAG + PH_P*2*256*128}, v9")
    g.poll("v9", "0xffff")


def w1_step_addr(g, dst, base, st):
    a = g.a
    if ROT:
        a(f"s_lshr_b32 {dst}, s2, 5\ns_lshl_b32 {dst}, {dst}, 1\ns_add_u32 {dst}, {dst}, {st}\ns_and_b32 {dst}, {dst}, 15\ns_mul_i32 {dst}, {dst}, 3072\ns_add_u32 {dst}, {dst}, {base}")
    else:
        a(f"s_add_u32 {dst}, {base}, {st*3072}")


def w1_loads(g, i0, i1):
    a = g.a
    a(f"s_lshl_b32 s72, {sJ1}, 6\ns_lshl_b32 s73, {sWV}, 4\ns_add_u32 s72, s72, s73\ns_mul_i32 s72, s72, 3072\ns_add_u32 s72, s72, {WS_W1P}")
    for i in range(i0, i1):
        st, ft = divmod(i, 3)
        if ft == 0 or i == i0:
            w1_step_addr(g, "s73", "s72", st)
        a(f"buffer_load_dwordx4 {ar(4*i)}, v2, {SRD_WS}, s73 offen offset:{ft*1024} sc1")


def m1_only(g, fn):
    a = g.a
    skip = g.lab("m1s")
    a(f"s_cmp_eq_u32 {sM1}, 0\ns_cbranch_scc1 {skip}")
    with a.cond("m1"):
        fn()
    a.label(skip, reset=False)


def w2_setup(g):
    a = g.a
    a("v_lshrrev_b32 v3, 3, v1\nv_lshlrev_b32 v3, 12, v3\nv_bfe_u32 v4, v1, 1, 2\nv_bfe_u32 v5, v1, 4, 1\nv_and_b32 v6, 1, v1")
    for e in range(2):
        a(f"v_or_b32 v7, {2*e}, v5\nv_xor_b32 v7, v4, v7\nv_lshl_add_u32 v7, v7, 1, v6\nv_lshl_add_u32 v{V_W2D+e}, v7, 4, v3")
    a("v_lshrrev_b32 v3, 4, v1\nv_lshlrev_b32 v4, 3, v3\nv_bfe_u32 v5, v1, 2, 2\nv_add_u32 v4, v4, v5\nv_lshlrev_b32 v4, 7, v4")
    a("v_and_b32 v5, 3, v1\nv_lshl_add_u32 v4, v5, 3, v4\nv_and_b32 v3, 1, v3\nv_lshlrev_b32 v3, 1, v3\nv_bfe_u32 v5, v1, 3, 1\nv_or_b32 v3, v3, v5")
    for k in range(4):
        a(f"v_xor_b32 v5, {k}, v3\nv_lshl_add_u32 v{V_W2R+k}, v5, 5, v4")
    a(f"s_mul_i32 s89, {sWV}, {11*32*4096}\ns_lshl_b32 s88, {sR}, 7\ns_add_u32 s89, s89, s88")


def w2_lds(st):
    if st < 5:
        return ("s86", st * 4096)
    if st < 9:
        return ("s87", (st - 5) * 4096)
    return ("s86", (st - 9) * 4096)


def w2_bases(g):
    g.a(f"s_mul_i32 s86, {sWV}, 20480\ns_add_u32 s86, s86, {L_STG2}\ns_lshl_b32 s87, {sWV}, 14\ns_add_u32 s87, s87, {L_X}")


def w2_dma_text(st, m):
    base, off = w2_lds(st)
    return (f"s_add_u32 m0, {base}, {off + m*1024}\ns_add_u32 s88, s89, {(st*32 + 8*m)*4096}",
            f"buffer_load_dwordx4 v{V_W2D + (m & 1)}, {SRD_W2P}, s88 offen lds")


def w2_dma(g, st, m, uncond=False):
    pre, ld = w2_dma_text(st, m)
    g.a(pre)
    (g.a.uncond if uncond else g.a)(ld, tag=f"D2_{0 if st < 5 else 5 if st < 9 else 9}")
    return pre + "\n" + ld


def w2_tr(g, s0, s1):
    a = g.a
    base, _ = w2_lds(s0)
    for k in range(4):
        a(f"v_add_u32 v{32+k}, {base}, v{V_W2R+k}")
    for st in range(s0, s1):
        _, off = w2_lds(st)
        for k in range(4):
            for rd in range(2):
                b = (st*4 + k) * 4 + 2*rd
                a(f"ds_read_b64_tr_b16 a[{b}:{b+1}], v{32+k} offset:{off + rd*512}")


def u_producers(g, dst, lane0):
    a = g.a
    a(f"s_mul_i32 s72, {sWV}, 352\ns_mul_hi_u32 s72, s72, {(1 << 32)//48 + 1}\ns_sub_u32 s72, s72, {lane0}\nv_add_u32 v8, s72, v1\nv_max_i32 v8, 0, v8\nv_min_u32 v8, 28, v8")
    a("v_cmp_le_u32 vcc, 8, v8\nv_cndmask_b32 v6, 0, 1, vcc\nv_cmp_le_u32 vcc, 15, v8\nv_addc_co_u32 v6, vcc, 0, v6, vcc")
    a("v_cmp_le_u32 vcc, 22, v8\nv_addc_co_u32 v6, vcc, 0, v6, vcc")
    a("v_mul_u32_u24 v7, 7, v6\nv_min_u32 v9, 1, v6\nv_add_u32 v7, v7, v9\nv_sub_u32 v7, v8, v7")
    a(f"s_and_b32 s72, {sCQ}, 3\ns_lshr_b32 s73, {sCQ}, 2\nv_lshl_add_u32 v7, v7, 2, s72\nv_lshlrev_b32 v7, 3, v7")
    a(f"v_lshl_add_u32 {dst}, v6, 1, v7\nv_add_u32 {dst}, s73, {dst}")


def sentinel(g, loads, srd):
    a = g.a
    top, ok = g.lab("sn"), g.lab("sno")
    a(f"s_mov_b32 {sCNT}, 0")
    a.label(top, reset=False)
    with a.cond(top):
        for k, (addr, soff) in enumerate(loads):
            a(f"buffer_load_dword v{4+k}, {addr}, {srd}, {soff} offen sc1")
        a("s_waitcnt vmcnt(0)")
        a("v_cmp_eq_u32 vcc, -1, v4")
        for k in range(1, len(loads)):
            a(f"v_cmp_eq_u32 s[72:73], -1, v{4+k}\ns_or_b64 vcc, vcc, s[72:73]")
        a(f"s_cbranch_vccz {ok}")
        a(f"s_add_u32 {sCNT}, {sCNT}, 1\ns_cmp_lt_u32 {sCNT}, {POLL_LIMIT}\ns_cbranch_scc1 {top}")
    a.label(ok, reset=False)


def redo_end(g, redo):
    a = g.a
    done = g.lab("rd")
    a(f"s_cmp_eq_u64 {sACC}, 0\ns_cbranch_scc1 {done}")
    if g.diag:
        g.srd(32, P_DBG, 256)
        a(f"v_mov_b32 v4, 1\nv_mov_b32 v5, 4\ns_mov_b64 exec, 1\nbuffer_atomic_add v4, v5, {SRD_T}, 0 offen\ns_mov_b64 exec, -1")
    a(f"s_add_u32 {sREDO}, {sREDO}, 1\ns_cmp_lt_u32 {sREDO}, 64\ns_cbranch_scc1 {redo}")
    a.label(done, reset=False)


def o_flags(g):
    a = g.a
    a(f"v_mov_b32 v8, {sR}\nv_and_b32 v9, 3, v8\nv_lshlrev_b32 v9, 3, v9\nv_add_u32 v9, v1, v9\nv_lshlrev_b32 v9, 3, v9")
    a("v_lshrrev_b32 v7, 2, v8\nv_add_u32 v9, v9, v7")
    g.vflag("v9", PH_O)
    a("s_mov_b32 s76, 0xff\ns_mov_b32 s77, 0")
    if g.layer == 0:
        a(f"s_cmp_ge_u32 {sJ1}, 8\ns_cselect_b32 s72, 1, 0\ns_cmp_ge_u32 {sJ1}, 15\ns_addc_u32 s72, s72, 0")
        a(f"s_cmp_ge_u32 {sJ1}, 22\ns_addc_u32 s72, s72, 0")
        a(f"s_lshl_b32 s73, {sWV}, 4\ns_sub_u32 s73, s73, 8\nv_add_u32 v8, s73, v1\nv_lshl_add_u32 v8, v8, 2, s72\nv_and_b32 v8, 255, v8")
        a(f"v_lshlrev_b32 v8, 7, v8\nv_add_u32 v8, {WS_FLAG + PH_P*2*256*128}, v8")
        a("v_cmp_le_u32 vcc, 8, v1\nv_cndmask_b32 v9, v9, v8, vcc")
        a(f"s_cmp_eq_u32 {sM1}, 0\ns_cselect_b32 s76, s76, 0xffffff")


def oproj(g):
    a = g.a
    a.c("======== output projection, residual, double LayerNorm")
    OFR, WPRE, WFR, ACC = 64, 128, 14, 46
    a("v_lshrrev_b32 v3, 5, v1\nv_lshlrev_b32 v3, 4, v3\nv_bfe_u32 v4, v1, 4, 1\nv_lshl_add_u32 v3, v4, 2, v3")
    a("v_bfe_u32 v5, v1, 2, 2\nv_add_u32 v3, v3, v5\nv_bfe_u32 v5, v3, 1, 2\nv_and_b32 v6, 3, v1\nv_lshlrev_b32 v6, 3, v6")
    a("v_lshl_add_u32 v6, v3, 7, v6")
    for nt in range(4):
        a(f"v_xor_b32 v7, {nt}, v5\nv_lshl_add_u32 v{10+nt}, v7, 5, v6")

    def wreg(ks, nt):
        return WPRE + ks * 16 + nt * 4 if ks < 8 else WFR + (ks & 1) * 16 + nt * 4

    def wread(ks, nt):
        b = wreg(ks, nt)
        for rd in range(2):
            a(f"ds_read_b64_tr_b16 v[{b+2*rd}:{b+2*rd+1}], v{10+nt} offset:{L_X + ks*4096 + rd*1024}")
    for ks in range(8):
        for nt in range(4):
            wread(ks, nt)
    g.poll("v9", "s[76:77]")
    a("s_waitcnt vmcnt(0) lgkmcnt(0)")
    g.stamp(10)
    a(f"s_lshl_b32 s72, {sR}, 2\ns_add_u32 s72, s72, {sWV}\ns_lshl_b32 s72, s72, 14\ns_lshl_b32 s73, {sL}, 21")
    a(f"s_add_u32 s72, s72, s73\ns_add_u32 s74, s72, {WS_OF}")

    def oload(ks):
        if ks & 3 == 0 or ks == OD:
            a(f"s_add_u32 s73, s74, {(ks >> 2)*4096}")
        a(f"buffer_load_dwordx4 {vr(OFR+4*ks)}, v2, {SRD_WS}, s73 offen offset:{(ks & 3)*1024} sc1")
    OD = 11
    for ks in range(OD):
        oload(ks)
    g.stamp(25)

    def main(w1):
        if w1:
            a(f"s_lshl_b32 s76, {sJ1}, 6\ns_lshl_b32 s77, {sWV}, 4\ns_add_u32 s76, s76, s77\ns_mul_i32 s76, s76, 3072\ns_add_u32 s76, s76, {WS_W1P}")
        for ks in range(16):
            if ks + OD < 16:
                oload(ks + OD)
            for nt in range(4):
                c = "0" if ks == 0 else vr(ACC + 4*nt)
                a(f"v_mfma_f32_16x16x32_bf16 {vr(ACC+4*nt)}, {vr(wreg(ks, nt))}, {vr(OFR+4*ks)}, {c}")
                if 6 <= ks <= 13:
                    wread(ks + 2, nt)
                if w1 and nt == 1 and ks >= 4:
                    for i in ((ks - 4) * 2, (ks - 4) * 2 + 1) if ks < 12 else ():
                        st, ft = divmod(i, 3)
                        w1_step_addr(g, "s77", "s76", st)
                        a(f"buffer_load_dwordx4 {ar(4*i)}, v2, {SRD_WS}, s77 offen offset:{ft*1024} sc1")
            if ks == 0:
                g.stamp(28)
            if ks == 7:
                g.stamp(29)
    la, lb = g.lab("oa"), g.lab("ob")
    a(f"s_cmp_eq_u32 {sM1}, 0\ns_cbranch_scc1 {la}")
    a.snap(la)
    main(True)
    a.label(lb, reset=False)
    g.late.append((la, lb, lambda: (a.restore(la), main(False))))
    g.stamp(11)
    a(f"v_and_b32 v3, 15, v1\ns_lshl_b32 s72, {sWV}, 4\nv_add_u32 v14, s72, v3\nv_lshrrev_b32 v4, 4, v1")
    a(f"v_mul_u32_u24 v5, 144, v14\nv_lshl_add_u32 v5, v4, 3, v5\nv_add_u32 v15, {L_R}, v5")
    for nt in range(4):
        a(f"ds_read_b64 v[{176+2*nt}:{177+2*nt}], v15 offset:{32*nt}")
    X1 = 192
    for nt in range(4):
        for k in range(2):
            a(f"v_lshlrev_b32 v{X1+4*nt+2*k}, 16, v{176+2*nt+k}\nv_and_b32 v{X1+4*nt+2*k+1}, 0xffff0000, v{176+2*nt+k}")
    for i in range(16):
        a(f"v_add_f32 v{X1+i}, v{X1+i}, v{ACC+i}")
    for k in range(8):
        a(f"v_cvt_pk_bf16_f32 v{176+k}, v{X1+2*k}, v{X1+2*k+1}")
    for nt in range(4):
        a(f"ds_write_b64 v15, v[{176+2*nt}:{177+2*nt}] offset:{32*nt}")
    a(f"v_add_f32 v16, v{X1}, v{X1+1}\nv_mul_f32 v17, v{X1}, v{X1}\nv_fmac_f32 v17, v{X1+1}, v{X1+1}")
    for i in range(2, 16):
        a(f"v_add_f32 v16, v16, v{X1+i}\nv_fmac_f32 v17, v{X1+i}, v{X1+i}")

    def fold_groups(r0, r1):
        for sw in ("16", "32"):
            a(f"v_mov_b32 v20, v{r0}\nv_mov_b32 v21, v{r1}")
            a(f"v_permlane{sw}_swap_b32 v{r0}, v20\nv_permlane{sw}_swap_b32 v{r1}, v21")
            a(f"v_add_f32 v{r0}, v{r0}, v20\nv_add_f32 v{r1}, v{r1}, v21")
    fold_groups(16, 17)
    a(f"v_mov_b32 v18, {sN}\nv_mov_b32 v19, {sNN}")
    a(f"s_lshl_b32 s72, {sL}, 5\ns_add_u32 s72, s72, {sR}\ns_lshl_b32 s72, s72, 13\ns_add_u32 s72, s72, {WS_ST}")
    a(f"s_lshl_b32 s73, {sCQ}, 10\ns_add_u32 s73, s73, s72\nv_lshlrev_b32 v22, 4, v14")
    a("s_mov_b64 exec, 0xffff")
    g.dual(lambda m: a(f"buffer_store_dwordx4 v[16:19], v22, {SRD_WS}, s73 offen {m}"))
    a("s_mov_b64 exec, -1")
    g.stamp(26)
    if INB:
        a(f"s_lshl_b32 s73, {sWV}, 3\nv_add_u32 v34, s73, v1")
        g.wg_of("v35", "v34", sC1)
        u_producers(g, "v36", 8)
        a("v_cmp_le_u32 vcc, 8, v1\nv_cndmask_b32 v35, v35, v36, vcc\nv_and_b32 v35, 255, v35")
        g.vflag("v35", PH_PD)
        a(f"s_lshl_b32 s44, {sM1}, 8\ns_sub_u32 s44, s44, {sM1}\ns_or_b32 s44, s44, 0xff00\ns_mov_b32 s45, 0")
        a(f"s_mov_b64 exec, s[44:45]\nbuffer_load_dwordx2 v[32:33], v35, {SRD_WS}, 0 offen sc1\ns_mov_b64 exec, -1")
    early_w1(g, 16, 28)
    a("v_lshrrev_b32 v4, 4, v1")
    g.stamp(27)
    a(f"s_lshl_b32 s72, {sL}, 5\ns_add_u32 s72, s72, {sR}\ns_lshl_b32 s72, s72, 13\ns_add_u32 s72, s72, {WS_ST}")
    a("v_lshl_add_u32 v23, v4, 11, v22\ns_mov_b32 s100, 0")
    top, ok = g.lab("stp"), g.lab("sto")
    a.label(top, reset=False)
    a(f"buffer_load_dwordx4 v[24:27], v23, {SRD_WS}, s72 offen sc1")
    a(f"buffer_load_dwordx4 v[28:31], v23, {SRD_WS}, s72 offen offset:1024 sc1")
    a("s_waitcnt vmcnt(0)")
    a(f"v_cmp_ne_u64 vcc, {sNP}, v[26:27]\nv_cmp_ne_u64 s[74:75], {sNP}, v[30:31]\ns_or_b64 vcc, vcc, s[74:75]")
    a(f"s_cbranch_vccz {ok}")
    a(f"s_add_u32 s100, s100, 1\ns_cmp_lt_u32 s100, {POLL_LIMIT}\ns_cbranch_scc1 {top}\ns_branch L_fail")
    a.label(ok, reset=False)
    if INB:
        pd = g.lab("pd")
        a(f"s_mov_b64 exec, s[44:45]\nv_cmp_ne_u64 vcc, {sNP}, v[32:33]\ns_mov_b64 exec, -1\ns_cbranch_vccz {pd}")
        with a.cond(pd):
            a("v_mov_b32 v36, v4\nv_mov_b32 v37, v5")
            g.poll("v35", "s[44:45]")
            a("v_mov_b32 v4, v36\nv_mov_b32 v5, v37")
        a.label(pd, reset=False)
    g.stamp(12)
    a("v_add_f32 v16, v24, v28\nv_add_f32 v17, v25, v29")
    fold_groups(16, 17)
    a(f"v_mul_f32 v16, {f32(1/512)}, v16\nv_mul_f32 v17, {f32(1/512)}, v17\nv_fma_f32 v17, -v16, v16, v17\nv_max_f32 v17, 0, v17")
    a(f"v_add_f32 v18, {f32(1e-5)}, v17\nv_rsq_f32 v18, v18")
    a(f"v_mul_f32 v19, v18, v18\nv_mul_f32 v19, v19, v17\nv_add_f32 v19, {f32(1e-5)}, v19\nv_rsq_f32 v19, v19\nv_mul_f32 v18, v18, v19")
    for i in range(16):
        a(f"v_sub_f32 v{X1+i}, v{X1+i}, v16")
    for i in range(16):
        a(f"v_mul_f32 v{X1+i}, v18, v{X1+i}")
    for k in range(8):
        a(f"v_cvt_pk_bf16_f32 v{176+k}, v{X1+2*k}, v{X1+2*k+1}")
    HT = L_RING
    a(f"v_mul_u32_u24 v5, 160, v14\nv_lshl_add_u32 v5, v4, 3, v5\nv_add_u32 v5, {HT}, v5")
    for nt in range(4):
        a(f"ds_write_b64 v5, v[{176+2*nt}:{177+2*nt}] offset:{32*nt}")
    a("v_lshrrev_b32 v3, 4, v1\nv_lshlrev_b32 v3, 3, v3\nv_bfe_u32 v6, v1, 2, 2\nv_add_u32 v3, v3, v6")
    a(f"s_lshl_b32 s72, {sTB}, 5\nv_add_u32 v3, s72, v3\nv_mul_u32_u24 v3, 160, v3\nv_and_b32 v6, 3, v1\nv_lshl_add_u32 v3, v6, 3, v3")
    a(f"s_lshl_b32 s72, {sP}, 6\ns_add_u32 s72, s72, {HT}\nv_add_u32 v3, s72, v3")
    a("s_waitcnt lgkmcnt(0)\ns_barrier")
    for e in range(2):
        for rd in range(2):
            a(f"ds_read_b64_tr_b16 v[{184+4*e+2*rd}:{185+4*e+2*rd}], v3 offset:{32*e + rd*640}")
    if INB:
        a(f"s_mov_b32 s72, {sHB}")
    else:
        a(f"s_lshl_b32 s72, {sCQ}, 6\ns_lshl_b32 s73, {sR}, 1\ns_add_u32 s72, s72, s73\ns_add_u32 s72, s72, {sTB}\ns_lshl_b32 s72, s72, 2")
        a(f"s_lshl_b32 s73, {sP}, 1\ns_add_u32 s72, s72, s73\ns_lshl_b32 s72, s72, 10\ns_lshl_b32 s73, {sL}, 21\ns_add_u32 s72, s72, s73\ns_add_u32 s72, s72, {WS_H}")
    for e in range(2):
        a(f"buffer_store_dwordx4 {vr(184+4*e)}, v2, {SRD_WS}, s72 offen offset:{e*1024} sc1", tag="Hst")


def mix1(g):
    a = g.a
    a.c("======== token mixing 1: u = gelu(h^T W1 + b1)")
    skip, other = g.lab("m1"), g.lab("m1o")
    w2_setup(g)
    w2_bases(g)
    a(f"s_cmp_eq_u32 {sM1}, 0\ns_cbranch_scc1 {other}")
    w2_text = []

    def w2(i):
        return w2_dma(g, i >> 2, i & 3, uncond=True)
    with a.cond("m1"):
        def m1_setup():
            g.srd(32, P_B1, 2752)
            a(f"s_mul_i32 s72, {sJ1}, 96\nv_and_b32 v3, 1, v1\nv_lshlrev_b32 v3, 3, v3\ns_mul_i32 s73, {sWV}, 3")
            for i in range(3):
                a(f"s_add_u32 s74, s73, {i}\ns_lshr_b32 s74, s74, 1\ns_lshl_b32 s74, s74, 4\ns_add_u32 s74, s74, s72")
                a(f"buffer_load_dwordx2 v[{14+2*i}:{15+2*i}], v3, {SRD_T}, s74 offen")
            if not INB:
                a(f"s_lshl_b32 s73, {sWV}, 3\nv_add_u32 v8, s73, v1")
                g.wg_of("v9", "v8", sC1)
                g.vflag("v9", PH_H)
            c0 = -2 * math.log2(math.e) * math.sqrt(2 / math.pi)
            c1 = c0 * 0.044715
            a(f"v_and_b32 v3, 15, v1\nv_mul_u32_u24 v3, 208, v3\nv_lshrrev_b32 v4, 4, v1\nv_lshl_add_u32 v3, v4, 4, v3")
            a(f"s_mul_i32 s72, {sWV}, 13312\nv_add_u32 v13, s72, v3")
            a("v_lshrrev_b32 v3, 1, v1\nv_mul_u32_u24 v10, 208, v3\nv_and_b32 v4, 1, v1\nv_lshl_add_u32 v10, v4, 4, v10")
            a("v_lshrrev_b32 v5, 5, v1\nv_lshlrev_b32 v11, 10, v5\nv_and_b32 v3, 15, v3\nv_lshl_add_u32 v11, v3, 4, v11")
            if not INB:
                a("v_lshl_add_u32 v11, v4, 3, v11")
            a(f"s_mul_i32 s76, {sWV}, 3\ns_mov_b32 s84, {f32(c1)}\ns_mov_b32 s85, {f32(c0)}")
            for i in range(3):
                a(f"s_add_u32 s72, s76, {i}\ns_lshr_b32 s73, s72, 1\ns_and_b32 s72, s72, 1")
                a(f"s_mul_i32 s74, s72, {32*208}\ns_lshl_b32 s75, s73, 5\ns_add_u32 s74, s74, s75\nv_add_u32 v{20+i}, s74, v10")
            if INB:
                for i in range(3):
                    a(f"s_mov_b32 s{80+i}, s{sUO+i}")
            else:
                u_offsets(g, 80)

        def w1_one(i):
            st, ft = divmod(i, 3)
            if ft == 0 or i == 40:
                a(f"s_add_u32 s91, s90, {st*3072}")
            a(f"buffer_load_dwordx4 {ar(4*i)}, v2, {SRD_WS}, s91 offen offset:{ft*1024} sc1")
        a(f"s_lshl_b32 s90, {sJ1}, 6\ns_lshl_b32 s91, {sWV}, 4\ns_add_u32 s90, s90, s91\ns_mul_i32 s90, s90, 3072\ns_add_u32 s90, s90, {WS_W1P}")
        a.weave([a.capture(lambda i=i: w1_one(i)) for i in range(40, 48)], a.capture(m1_setup))
        HD = next((int(o[2:]) for o in OPT if o.startswith("hd")), 15)
        HB, NS, ACC = 64, HD + 9, 192
        a(f"s_lshl_b32 s72, {sC1}, 6\ns_lshl_b32 s73, {sWV}, 4\ns_add_u32 s72, s72, s73\ns_lshl_b32 s72, s72, 12")
        a(f"s_lshl_b32 s73, {sL}, 21\ns_add_u32 s72, s72, s73\ns_add_u32 s43, s72, {WS_H}")
        if INB:
            a(f"v_lshlrev_b32 v9, 10, v1\nv_add_u32 v9, 1008, v9\ns_mov_b32 {sREDO}, 0")
            redo = g.lab("m1r")
            a.label(redo, reset=False)
            sentinel(g, [("v9", "s43")], SRD_WS)
            a(f"s_mov_b64 {sACC}, 0")
        else:
            g.poll("v9", "0xff")
        g.stamp(14)
        a("s_mov_b32 s72, s43")
        nload = [0]

        def hload():
            n = nload[0]
            if ROT:
                if n & 3 == 0:
                    a(f"s_lshr_b32 s72, s2, 5\ns_lshl_b32 s72, s72, 1\ns_add_u32 s72, s72, {n >> 2}\ns_and_b32 s72, s72, 15\ns_lshl_b32 s72, s72, 12\ns_add_u32 s72, s72, s43")
                a(f"buffer_load_dwordx4 {vr(HB + 4*(n % NS))}, v2, {SRD_WS}, s72 offen offset:{(n & 3)*1024} sc1")
            else:
                a(f"buffer_load_dwordx4 {vr(HB + 4*(n % NS))}, v2, {SRD_WS}, s72 offen offset:{(n & 3)*1024} sc1")
                if n & 3 == 3:
                    a("s_add_u32 s72, s72, 4096")
            nload[0] += 1
        for _ in range(HD):
            hload()
        for st in range(16):
            for dt in range(4):
                hb = HB + 4 * ((st*4 + dt) % NS)
                for ft in range(3):
                    acc = ACC + (ft*4 + dt) * 4
                    c = "0" if st == 0 else ar(acc)
                    a(f"v_mfma_f32_16x16x32_bf16 {ar(acc)}, {ar((st*3+ft)*4)}, {vr(hb)}, {c}")
                    if INB and ft == 0:
                        a(f"v_cmp_eq_u32 vcc, -1, v{hb}\ns_or_b64 {sACC}, {sACC}, vcc")
                if nload[0] < 64:
                    hload()
                if st == 0 and dt == 0:
                    g.stamp(30)
                if st == 7 and dt == 3:
                    g.stamp(31)
        if INB:
            redo_end(g, redo)
        l0_only(g, "l0t", lambda: (warmup(g, SRD_W2P, "v60") if not NOW2 else None, a(x2_touch_text())))
        g.stamp(15)
        nw2 = 0
        for dt in range(4):
            for ft in range(3):
                a(f"ds_write_b128 v13, {ar(ACC + (ft*4+dt)*4)} offset:{L_X + dt*16*208 + ft*64}")
        a("s_waitcnt lgkmcnt(0)\ns_barrier")
        for i in range(3):
            for k in range(4):
                a(f"ds_read_b128 {vr(64 + 16*i + 4*k)}, v{20+i} offset:{L_X + k*13312}")
        if g.layer == 0:
            sk3 = g.lab("ep")
            a(f"s_or_b32 s72, s2, {sWV}\ns_cmp_eq_u32 s72, 0\ns_cbranch_scc0 {sk3}")
            with a.cond(sk3):
                a(f"v_mov_b32 v4, {sN}\nv_mov_b32 v5, {WS_EPOCH}\ns_mov_b64 exec, 1")
                a(f"buffer_store_dword v4, v5, {SRD_WS}, 0 offen sc1")
                a("s_mov_b64 exec, -1")
            a.label(sk3, reset=False)
        if UDW == 20:
            pass
        else:
            a("s_waitcnt lgkmcnt(0)\ns_barrier")
        for i in range(3):
            B = 64 + 16 * i
            bb = 14 + 2 * i

            def w2x(k=1):
                nonlocal nw2
                for _ in range(k):
                    if nw2 < 18:
                        w2_text.append(w2(nw2)); nw2 += 1
            for e in range(4):
                a(f"v_add_f32 v{B+e}, v{B+e}, v{B+4+e}\nv_add_f32 v{B+8+e}, v{B+8+e}, v{B+12+e}")
            w2x()
            a(f"v_lshlrev_b32 v{B+4}, 16, v{bb}\nv_and_b32 v{B+5}, 0xffff0000, v{bb}\nv_lshlrev_b32 v{B+6}, 16, v{bb+1}\nv_and_b32 v{B+7}, 0xffff0000, v{bb+1}")
            for e in range(4):
                a(f"v_add_f32 v{B+e}, v{B+e}, v{B+8+e}")
            w2x()
            for e in range(4):
                a(f"v_add_f32 v{B+e}, v{B+e}, v{B+4+e}")
            for e in range(4):
                a(f"v_mul_f32 v{B+4+e}, v{B+e}, v{B+e}\nv_mov_b32 v{B+8+e}, s85")
            w2x()
            for e in range(4):
                a(f"v_fmac_f32 v{B+8+e}, s84, v{B+4+e}")
            for e in range(4):
                a(f"v_mul_f32 v{B+8+e}, v{B+8+e}, v{B+e}")
            for e in range(4):
                a(f"v_exp_f32 v{B+8+e}, v{B+8+e}")
            w2x()
            for e in range(4):
                a(f"v_add_f32 v{B+8+e}, 1.0, v{B+8+e}")
            for e in range(4):
                a(f"v_rcp_f32 v{B+8+e}, v{B+8+e}")
            for e in range(4):
                a(f"v_mul_f32 v{B+e}, v{B+e}, v{B+8+e}")
            a(f"v_cvt_pk_bf16_f32 v{B+4}, v{B}, v{B+1}\nv_cvt_pk_bf16_f32 v{B+5}, v{B+2}, v{B+3}")
            if INB:
                a(f"v_mov_b32_dpp v{B+6}, v{B+4} quad_perm:[1,0,3,2] row_mask:0xf bank_mask:0xf")
                a(f"v_mov_b32_dpp v{B+7}, v{B+5} quad_perm:[1,0,3,2] row_mask:0xf bank_mask:0xf")
                a("s_mov_b32 exec_lo, 0x55555555\ns_mov_b32 exec_hi, 0x55555555")
                a(f"buffer_store_dwordx4 v[{B+4}:{B+7}], v11, {SRD_WS}, s{80+i} offen sc1", tag="Ust")
                a("s_mov_b64 exec, -1")
            else:
                a(f"buffer_store_dwordx2 v[{B+4}:{B+5}], v11, {SRD_WS}, s{80+i} offen sc1", tag="Ust")
        while nw2 < UDW:
            w2_text.append(w2(nw2)); nw2 += 1
        if INB:
            a("s_barrier")
        else:
            a.wait_tag("Ust")
            g.publish(PH_U)
    a.label(skip, reset=False)
    pre = ([warmup_text(SRD_W2P, "v60")] if not NOW2 else []) + [x2_touch_text()] if g.layer == 0 else []
    g.tails.append((other, skip, pre + w2_text))
    if "noweave2" in OPT:
        for i in range(20, 36):
            w2_dma(g, i >> 2, i & 3)
        a.wait_tag("D2_0")
        w2_tr(g, 0, 5)
        a("s_waitcnt lgkmcnt(0)")
        for i in range(36, 44):
            w2_dma(g, i >> 2, i & 3)
    else:
        a.wait_tag("D2_0")
        d1 = [a.capture(lambda i=i: w2_dma(g, i >> 2, i & 3)) for i in range(UDW, 36)]
        setup = a.capture(lambda: mix2_setup(g))
        half = len(setup) // 2
        while setup[half][0] != "i" or setup[half][1].startswith(("s_addc", "s_subb", "s_cselect")):
            half += 1
        a.weave(d1, a.capture(lambda: w2_tr(g, 0, 5)) + setup[:half])
        a("s_waitcnt lgkmcnt(0)")
        d2 = [a.capture(lambda i=i: w2_dma(g, i >> 2, i & 3)) for i in range(36, 44)]
        a.weave(d2, setup[half:])


def mix2_setup(g):
    a = g.a
    g.srd(32, P_B2, 4096)
    a(f"v_lshrrev_b32 v10, 3, v0\ns_lshl_b32 s72, {sR}, 7\nv_lshl_add_u32 v11, v10, 1, s72")
    a(f"buffer_load_ushort v12, v11, {SRD_T}, 0 offen\nbuffer_load_ushort v13, v11, {SRD_T}, 0 offen offset:64")
    a(f"s_mul_i32 s72, {sCQ}, {UC}\ns_lshl_b32 s73, {sL}, 21\ns_add_u32 s72, s72, s73\ns_add_u32 s72, s72, {WS_U}")
    g.srd(24, P_WS, UC, "s72")
    a("v_and_b32 v3, 15, v1\nv_lshrrev_b32 v4, 4, v1\nv_and_b32 v5, 7, v1")
    a(f"s_lshl_b32 s72, {sWV}, 14")
    for dt in range(4):
        a(f"v_add_u32 v6, {4*dt}, v4\nv_xor_b32 v6, v6, v5\nv_lshlrev_b32 v6, 4, v6\nv_lshl_add_u32 v6, v3, 8, v6\nv_add_u32 v{14+dt}, s72, v6")
    a("v_and_b32 v3, 7, v0\nv_and_b32 v4, 7, v10\nv_lshlrev_b32 v5, 1, v3")
    for e in range(2):
        a(f"v_add_u32 v6, {e}, v5\nv_xor_b32 v6, v6, v4\nv_lshlrev_b32 v6, 4, v6\nv_lshl_add_u32 v{18+e}, v10, 8, v6")
    a(f"v_mul_u32_u24 v20, 144, v10\nv_lshl_add_u32 v20, v3, 4, v20\nv_add_u32 v20, {L_R}, v20")
    a(f"v_lshlrev_b32 v21, 10, v10\nv_lshl_add_u32 v21, v3, 4, v21")
    if not INB:
        u_producers(g, "v9", 0)
        g.vflag("v9", PH_U)


def mix2(g):
    a = g.a
    a.c("======== token mixing 2: x += (u W2 + b2)^T")
    if g.layer == 0 and "code2" in OPT and g.stop_after is None:
        g.code_warmup2()
    if "noweave2" in OPT:
        mix2_setup(g)
    if INB:
        a(f"s_mul_i32 s85, {sWV}, {11*4096}\nv_lshlrev_b32 v9, 8, v1\nv_add_u32 v9, 240, v9")
        a(f"s_add_u32 s43, s85, 16384\ns_add_u32 s48, s85, 32768\ns_mov_b32 {sREDO}, 0")
        a("v_cmp_gt_u32 vcc, 48, v1\nv_mov_b32 v8, 0x7ff00000\nv_cndmask_b32 v8, v8, v9, vcc")
        redo = g.lab("m2r")
        a.label(redo, reset=False)
        sentinel(g, [("v9", "s85"), ("v9", "s43"), ("v8", "s48")], SRD_U)
        a(f"s_mov_b64 {sACC}, 0")
    else:
        g.poll("v9", "0xff")
    g.stamp(17)
    UD = next((int(o[2:]) for o in OPT if o.startswith("ud")), 14)
    UB, ACC = 64, 192
    a(f"s_mul_i32 s85, {sWV}, {11*4096}")

    def uload(i):
        st, dt = i >> 2, i & 3
        if dt == 0:
            a(f"s_add_u32 s84, s85, {st*4096}")
        a(f"buffer_load_dwordx4 {vr(UB + 4*i)}, v2, {SRD_U}, s84 offen offset:{dt*1024} sc1")
    a.wait_tag("D2_5", "D2_9", emit=False)
    a.weave([a.capture(lambda i=i: uload(i)) for i in range(UD)], a.capture(lambda: (w2_tr(g, 5, 9), w2_tr(g, 9, 11))))
    for st in range(11):
        for dt in range(4):
            for k in range(4):
                acc = ACC + (dt*4 + k) * 4
                c = "0" if st == 0 else ar(acc)
                a(f"v_mfma_f32_16x16x32_bf16 {ar(acc)}, {vr(UB + (st*4+dt)*4)}, {ar((st*4+k)*4)}, {c}")
                if INB and k == 0:
                    a(f"v_cmp_eq_u32 vcc, -1, v{UB + (st*4+dt)*4}\ns_or_b64 {sACC}, {sACC}, vcc")
                if k == 1 and st*4 + dt + UD < 44:
                    uload(st*4 + dt + UD)
    if INB:
        redo_end(g, redo)
    g.stamp(18)
    for dt in range(4):
        for k in range(4):
            a(f"ds_write_b128 v{14+dt}, {ar(ACC + (dt*4+k)*4)} offset:{L_X + k*4096}")
    a("s_waitcnt lgkmcnt(0)\ns_barrier")
    a(f"s_lshl_b32 s72, {sR}, 16\ns_lshl_b32 s73, {sCQ}, 7\ns_add_u32 s72, s72, s73")
    for half in range(2):
        B = 64 + half * 48
        for k in range(4):
            for e in range(2):
                a(f"ds_read_b128 {vr(B + k*8 + e*4)}, v{18+e} offset:{L_X + k*16384 + half*8192}")
        a(f"ds_read_b128 {vr(B+32)}, v20 offset:{half*4608}")
    def epilogue(first):
        ring = []
        if first:
            g.q_addr_w(46)
            g.w_dma_setup("s80", "s81", "s82")
            ring = [(s_, n) for s_ in range(5) for n in range(4)]

        def ringdma(k=1):
            for _ in range(k):
                if ring:
                    s_, n = ring.pop(0)
                    g.w_dma(s_, only=n, sg="s80", sl="s81", st="s82", va="v46")
        for half in range(2):
            B = 64 + half * 48
            a(f"v_lshlrev_b32 v22, 16, v{12+half}")
            for i in range(8):
                a(f"v_add_f32 v{B+i}, v{B+i}, v{B+8+i}\nv_add_f32 v{B+16+i}, v{B+16+i}, v{B+24+i}")
                if i % 2 == 1:
                    ringdma()
            for i in range(8):
                a(f"v_add_f32 v{B+i}, v{B+i}, v{B+16+i}")
            ringdma()
            for i in range(8):
                a(f"v_add_f32 v{B+i}, v{B+i}, v22")
            ringdma()
            for k in range(4):
                a(f"v_lshlrev_b32 v{B+8+2*k}, 16, v{B+32+k}\nv_and_b32 v{B+9+2*k}, 0xffff0000, v{B+32+k}")
            ringdma()
            for i in range(8):
                a(f"v_add_f32 v{B+i}, v{B+i}, v{B+8+i}")
            ringdma()
            for k in range(4):
                a(f"v_cvt_pk_bf16_f32 v{B+36+k}, v{B+2*k}, v{B+2*k+1}")
            if first:
                a(f"ds_write_b128 v20, {vr(B+36)} offset:{half*4608}")
                g.dual(lambda m, B=B: a(f"buffer_store_dwordx4 {vr(B+36)}, v21, {SRD_DST}, s72 offen {m}", tag="Xst"))
            else:
                om = "" if "outplain" in OPT else "sc1"
                a(f"buffer_store_dwordx4 {vr(B+36)}, v21, {SRD_DST}, s72 offen {om}")
            if half == 0:
                a("s_add_u32 s72, s72, 32768")
            if first:
                a(f"v_add_f32 v{B+40}, v{B}, v{B+1}\nv_mul_f32 v{B+41}, v{B}, v{B}\nv_fmac_f32 v{B+41}, v{B+1}, v{B+1}")
                for i in range(2, 8):
                    a(f"v_add_f32 v{B+40}, v{B+40}, v{B+i}\nv_fmac_f32 v{B+41}, v{B+i}, v{B+i}")
                ringdma(2)
        if first:
            ringdma(20)
            a("v_mov_b32 v12, v46")
            g.row_stats_store([104, 152], 1, local=True)
    epilogue(g.layer == 0)


def drain(g, tag, n, sreg, val):
    a = g.a
    lw = g.lab("dr")
    a(f"s_cmp_eq_u32 {sreg}, {val}\ns_cbranch_scc1 {lw}")
    a.raw("  s_waitcnt vmcnt(0)")
    a.label(lw, reset=False)
    a.raw(f"  s_waitcnt vmcnt({n})")
    a.wait_tag(tag, emit=False)


def o_drain_publish(g):
    a = g.a
    a.wait_tag("Ost")
    g.publish(PH_O, local=True, also=PH_P if g.layer == 0 else None)


def rest(g):
    a = g.a
    attn_setup(g)
    g.stamp(5)
    attn(g)
    a("s_barrier")
    o_drain_publish(g)
    g.stamp(9)
    if g.stop("a"):
        return True
    o_flags(g)
    oproj(g)
    early_w1(g, 28, 40)
    if not INB:
        drain(g, "Hst", 12, sM1, 1)
        g.publish(PH_H)
    g.stamp(13)
    if g.stop("o"):
        return True
    mix1(g)
    g.stamp(16)
    if g.stop("m1"):
        return True
    mix2(g)
    g.stamp(19)
    if g.stop("m2"):
        return True
    if g.layer == 1:
        a("s_endpgm")
        a.assume_clean()
        return True
    g.srd(4, P_WS, 2 << 20, WS_X2)
    g.srd(20, P_OUT, 2 << 20)
    a(f"s_mov_b32 {sL}, 1")
    a("s_waitcnt lgkmcnt(0)")
    return False


def finish(g):
    a = g.a
    a("s_branch L_end")
    a.assume_clean()
    for lab, back, fn in g.late:
        a.label(lab, reset=False)
        fn()
        a(f"s_branch {back}")
        a.assume_clean()
    for stub, back, always in g.stubs:
        a.label(stub, reset=False)
        a("s_nop 7")
        for x in always:
            a(x)
        a(f"s_nop 11\ns_branch {back}")
        a.assume_clean()
    for lab, back, texts in g.tails:
        a.label(lab, reset=False)
        for x in texts:
            for line in x.split("\n"):
                if line.startswith("@"):
                    a.label(line[1:], reset=False)
                else:
                    a(line)
        a(f"s_branch {back}")
        a.assume_clean()
```

```python
import math
from gen import *

NEG = f32(-1e30)
import os
OPT = set(os.environ.get("KOPT", "").split(","))
UDW = next((int(o[3:]) for o in OPT if o.startswith("w2e")), 20)
NOW2 = "now2wu" in OPT or any(o.startswith("w2p2") for o in OPT)
ROT = "rot" in OPT
INB = "inb" in OPT
sHB, sUO, sACC, sREDO = "s36", 37, "s[40:41]", "s42"


def ar(b, n=4):
    return f"a[{b}:{b+n-1}]"


def vr(b, n=4):
    return f"v[{b}:{b+n-1}]"


QA, QB = 224, 228
SBUF = (64, 80, 96, 112)
NEGM = {"A": 128, "B": 144}
OACC = {"A": 160, "B": 176}
PBUF = {"A": 192, "B": 200}
CDIAG, CFAR, ANDD, ANDF = 208, 232, 32, 40
AK0, AV0 = 0, 72
L_KV = L_RING


def kfrag(b):
    return AK0 + b * 4


def vfrag(b, half):
    return AV0 + ((b & 1) * 2 + half) * 4


def attn_setup(g):
    a = g.a
    a.c("======== attention constants")
    a("v_and_b32 v3, 31, v1\nv_lshrrev_b32 v4, 5, v1\nv_lshlrev_b32 v4, 2, v4\nv_sub_u32 v3, v3, v4")
    a(f"v_mov_b32 v48, 0\nv_mov_b32 v49, {NEG}\nv_mov_b32 v50, 0xffff\nv_mov_b32 v51, 0xffff0000")
    for i in range(16):
        ci = (i & 3) + 8 * (i >> 2)
        sp = f"s[{72 + 2*(i % 4)}:{73 + 2*(i % 4)}]"
        a(f"v_cmp_le_i32 {sp}, {ci}, v3")
        a(f"v_mov_b32 v{OACC['A']+i}, 0\nv_mov_b32 v{OACC['B']+i}, 0")
        a(f"v_cndmask_b32 v{CDIAG+i}, v49, v48, {sp}\nv_cndmask_b32 v{CFAR+i}, v48, v49, {sp}")
        a(f"v_cndmask_b32 v{52 + (i & 1)}, v48, v{50 + (i & 1)}, {sp}")
        if i & 1:
            a(f"v_or_b32 v{ANDD + i//2}, v52, v53\nv_not_b32 v{ANDF + i//2}, v{ANDD + i//2}")
    for i in range(8):
        a(f"v_mov_b32 v{PBUF['A']+i}, 0\nv_mov_b32 v{PBUF['B']+i}, 0")
    for k in range(AV0, AV0 + 16):
        a(f"v_accvgpr_write_b32 a{k}, v48")
    a("v_mov_b32 v54, 0x3f803f80\ns_mov_b32 exec_lo, 0x00110000\ns_mov_b32 exec_hi, 0x00110000")
    for k in range(AV0, AV0 + 16):
        a(f"v_accvgpr_write_b32 a{k}, v54")
    a("s_mov_b64 exec, -1")


def warmup_text(srd, dst):
    return (f"s_lshl_b32 s72, s2, 2\ns_add_u32 s72, s72, {sWV}\ns_mul_i32 s73, s72, {43*128}\nv_lshlrev_b32 v7, 7, v1\n"
            f"s_mov_b32 exec_lo, -1\ns_mov_b32 exec_hi, 0x7ff\n"
            f"buffer_load_dword {dst}, v7, {srd}, s73 offen\ns_mov_b64 exec, -1")


def warmup(g, srd, dst):
    g.a(warmup_text(srd, dst))


def team_check(g):
    a = g.a
    top, ok = g.lab("tc"), g.lab("tco")
    a(f"s_lshl_b32 s72, {sR}, 7\ns_add_u32 s72, s72, {WS_XC}\nv_lshlrev_b32 v3, 4, v1\ns_mov_b32 {sCNT}, 0\ns_mov_b64 exec, 0xff")
    a.label(top, reset=False)
    a(f"buffer_load_dwordx4 v[24:27], v3, {SRD_WS}, s72 offen sc1\ns_waitcnt vmcnt(0)")
    a(f"v_cmp_ne_u64 vcc, {sNP}, v[26:27]\ns_cbranch_vccz {ok}")
    a(f"s_add_u32 {sCNT}, {sCNT}, 1\ns_cmp_lt_u32 {sCNT}, {POLL_LIMIT}\ns_cbranch_scc1 {top}\ns_branch L_fail")
    a.label(ok, reset=False)
    a(f"v_cmp_ne_u32 vcc, s1, v24\ns_cmp_eq_u64 vcc, 0\ns_cselect_b32 {sFAST}, 1, 0\ns_mov_b64 exec, -1")


def x2_touch_text():
    return ("v_lshrrev_b32 v6, 3, v0\nv_and_b32 v3, 7, v0\nv_lshlrev_b32 v6, 10, v6\nv_lshl_add_u32 v6, v3, 4, v6\n"
            f"s_lshl_b32 s72, {sR}, 16\ns_lshl_b32 s73, {sCQ}, 7\ns_add_u32 s72, s72, s73\n"
            f"s_add_u32 s73, s72, 32768\n"
            f"buffer_load_dword v23, v6, {SRD_DST}, s72 offen sc1\nbuffer_load_dword v24, v6, {SRD_DST}, s73 offen sc1\n"
            f"s_add_u32 s72, {sR}, 32\ns_lshl_b32 s72, s72, 3\ns_add_u32 s72, s72, {sCQ}\ns_lshl_b32 s72, s72, 10\ns_add_u32 s72, s72, {WS_ST2}\n"
            f"buffer_load_dword v25, v2, {SRD_WS}, s72 offen sc1")


def u_offsets(g, dst):
    a = g.a
    a(f"s_mul_i32 s76, {sWV}, 3\ns_mul_i32 s77, {sC1}, {UC}\ns_lshl_b32 s73, {sL}, 21\ns_add_u32 s77, s77, s73\ns_add_u32 s77, s77, {WS_U}")
    for i in range(3):
        a(f"s_add_u32 s72, s76, {i}\ns_lshr_b32 s73, s72, 1\ns_and_b32 s72, s72, 1")
        a(f"s_mul_i32 s74, {sJ1}, 6\ns_add_u32 s74, s74, s73\ns_lshr_b32 s75, s74, 2\ns_and_b32 s79, s74, 3")
        a(f"s_lshl_b32 s75, s75, 12\ns_lshl_b32 s79, s79, 8\ns_add_u32 s75, s75, s79\ns_lshl_b32 s72, s72, 11\ns_add_u32 s75, s75, s72")
        a(f"s_add_u32 s75, s75, s77\ns_cmp_ge_u32 s74, 172\ns_cselect_b32 s79, 0x70000000, 0\ns_or_b32 s75, s75, s79")
        a(f"s_cmp_eq_u32 {sM1}, 0\ns_cselect_b32 s{dst+i}, 0x70000000, s75")


def inband_addresses(g):
    a = g.a
    a(f"s_lshl_b32 s72, {sCQ}, 6\ns_lshl_b32 s73, {sR}, 1\ns_add_u32 s72, s72, s73\ns_add_u32 s72, s72, {sTB}\ns_lshl_b32 s72, s72, 2")
    a(f"s_lshl_b32 s73, {sP}, 1\ns_add_u32 s72, s72, s73\ns_lshl_b32 s72, s72, 10\ns_lshl_b32 s73, {sL}, 21\ns_add_u32 s72, s72, s73\ns_add_u32 {sHB}, s72, {WS_H}")
    a("s_mov_b64 s[44:45], s[74:75]")
    u_offsets(g, sUO)
    a("s_mov_b64 s[74:75], s[44:45]")
    a("v_lshrrev_b32 v25, 5, v1\nv_lshlrev_b32 v25, 10, v25\nv_bfe_u32 v7, v1, 1, 4\nv_lshl_add_u32 v25, v7, 4, v25")
    a("v_mov_b32 v28, -1\nv_mov_b32 v29, -1\nv_mov_b32 v30, -1\nv_mov_b32 v31, -1")


def own_tile_dma(g):
    a = g.a
    a(f"s_lshl_b32 s92, {sCQ}, 1\ns_add_u32 s92, s92, {sP}\ns_lshl_b32 s92, s92, 6\ns_lshl_b32 s93, {sR}, 1\ns_add_u32 s92, s92, s93")
    a(f"s_add_u32 s92, s92, {sTB}\ns_lshl_b32 s92, s92, 12\ns_add_u32 s92, s92, {WS_KV + g.layer * (4 << 20)}")
    a(f"s_mul_i32 s93, {sP}, 40960\ns_lshl_b32 s94, {sTB}, 12\ns_add_u32 s93, s93, s94\ns_add_u32 s93, s93, {L_KV + 8*4096}")
    for q4 in range(4):
        a(f"s_add_u32 m0, s93, {q4*1024}\ns_add_u32 s94, s92, {q4*1024}")
        a(f"buffer_load_dwordx4 v2, {SRD_WS}, s94 offen sc1 lds", tag="Kd")


def attn(g):
    a = g.a
    a.c("======== attention")
    a(f"s_sub_u32 s72, {sR}, 4\nv_add_u32 v8, s72, v1\nv_cmp_le_i32 s[74:75], 0, v8")
    g.wg_of("v9", "v8", sCQ)
    g.vflag("v9", PH_KV)
    a("s_and_b64 s[74:75], s[74:75], 0xf")
    a(f"s_lshl_b32 s76, {sR}, 1\ns_add_u32 s76, s76, {sTB}\ns_sub_u32 s77, 8, s76\ns_max_i32 s77, s77, 0")
    a(f"s_lshl_b32 s78, {sCQ}, 1\ns_add_u32 s78, s78, {sP}\ns_lshl_b32 s78, s78, 18\ns_lshl_b32 s79, {sL}, 22")
    a(f"s_add_u32 s78, s78, s79\ns_add_u32 s78, s78, {WS_KV}")
    a(f"s_lshl_b32 s79, {sTB}, 2\ns_lshl_b32 s80, {sR}, 1\ns_add_u32 s80, s80, s79\ns_sub_u32 s80, s80, 8")
    for i in range(4):
        a(f"s_add_i32 s{81+i}, s80, {i}\ns_max_i32 s{81+i}, s{81+i}, 0\ns_lshl_b32 s{81+i}, s{81+i}, 12\ns_add_u32 s{81+i}, s{81+i}, s78")
    a(f"s_mul_i32 s86, {sP}, 40960\ns_lshl_b32 s87, {sTB}, 14\ns_add_u32 s87, s87, s86\ns_add_u32 s87, s87, {L_KV}")
    if "ownlate" in OPT:
        own_tile_dma(g)
    a(f"s_lshl_b32 s88, {sTB}, 12\ns_add_u32 s88, s88, s86\ns_add_u32 s88, s88, {L_KV}\nv_add_u32 v10, s88, v2")
    a("v_and_b32 v8, 15, v1\nv_lshlrev_b32 v8, 4, v8\nv_lshrrev_b32 v7, 5, v1\nv_lshl_add_u32 v8, v7, 8, v8\nv_add_u32 v11, s88, v8")
    a("s_mov_b32 s90, 0xffff\ns_mov_b32 s91, 0xffff")
    a("v_bfe_u32 v20, v1, 4, 1\nv_lshlrev_b32 v20, 14, v20\nv_and_b32 v7, 15, v1\nv_lshl_add_u32 v20, v7, 4, v20")
    a("v_lshrrev_b32 v7, 5, v1\nv_lshl_add_u32 v20, v7, 8, v20")
    a(f"s_lshl_b32 s72, {sR}, 2\ns_lshl_b32 s73, {sTB}, 1\ns_add_u32 s72, s72, s73\ns_lshl_b32 s72, s72, 4")
    a(f"s_lshl_b32 s73, {sCQ}, 1\ns_add_u32 s72, s72, s73\ns_add_u32 s72, s72, {sP}\ns_lshl_b32 s72, s72, 10")
    a(f"s_lshl_b32 s73, {sL}, 21\ns_add_u32 s72, s72, s73\ns_add_u32 s89, s72, {WS_OF}")
    if INB:
        inband_addresses(g)
    a("s_mov_b64 s[76:77], s[74:75]")
    l0_only(g, "l0p", lambda: (team_check(g), p1_setup(g)))
    wo = g.wo_dma()
    wo_early = g.layer == 1 and "wokv" in OPT
    if wo_early:
        for n in range(16):
            a(wo(n))
    g.poll("v9", "s[76:77]")
    a(f"s_lshl_b32 s76, {sR}, 1\ns_add_u32 s76, s76, {sTB}\ns_sub_u32 s77, 8, s76\ns_max_i32 s77, s77, 0")
    g.stamp(6)
    def kvdma(i, h, part):
        return (f"s_add_u32 m0, s87, {i*4096 + h*2048 + part}\ns_add_u32 s72, s{81+i}, {h*2048 + part}\n"
                f"buffer_load_dwordx4 v2, {SRD_WS}, s72 offen sc1 lds")
    for i in range(4):
        for h in range(2):
            a(kvdma(i, h, 0), tag="Kd")
    vd = [kvdma(i, h, 1024) for i in range(4) for h in range(2)]
    PB = next((int(o[2:]) for o in OPT if o.startswith("pb")), 4)
    early = "plate" not in OPT and (g.layer == 0 or "vp1" not in OPT)
    if early:
        for x in vd:
            a(x, tag="Vd")
        if g.layer == 0 and PB is None:
            p1_loads(g)
    heads = ("A", "B")
    q = {"A": QA, "B": QB}
    mx = {"A": (48, 49), "B": (50, 51)}

    def kread(b):
        t, h = b >> 1, b & 1
        return f"ds_read_b128 {ar(kfrag(b))}, v10 offset:{t*4096 + h*2048}"

    def vread(b, half):
        t, h = b >> 1, b & 1
        return f"ds_read_b128 {ar(vfrag(b, half))}, v11 offset:{t*4096 + h*2048 + 1024 + half*512}"

    def qk(b, c):
        return f"v_mfma_f32_32x32x16_bf16 {vr(SBUF[b & 3],16)}, {ar(kfrag(b))}, {vr(q[heads[b & 1]])}, {c}"

    def cmask(t):
        return vr(CFAR, 16) if t == 0 else vr(CDIAG, 16) if t == 8 else "0"

    for h in heads:
        a(f"v_mov_b32 v{mx[h][0]}, {NEG}\nv_mov_b32 v{mx[h][1]}, {NEG}")
    a.wait_tag("Kd")
    a("s_barrier")
    def passes(skips, layer=g.layer):
        keep, g.layer = g.layer, layer
        a.c("pass 1: true row maximum over the masked window")
        for b in range(4):
            a(kread(b))
        a(qk(0, cmask(0)))
        a(kread(4))
        a(qk(1, cmask(0)))
        for b in range(18):
            t, s_, h = b >> 1, SBUF[b & 3], heads[b & 1]
            if g.layer == 0 and ((b == 8 and not early) or (early and b == PB)):
                p1_loads(g)
            if skips and t < 8 and b % 2 == 0:
                stub, back = g.lab("p1s"), g.lab("p1b")
                always = [x for bb in (b, b + 1) for x in ([kread(bb + 5)] if bb + 5 < 18 else []) + ([qk(bb + 2, cmask((bb + 2) >> 1))] if bb + 2 < 18 else [])
                          + ([vd[bb]] if bb < 8 and not early else []) + ([wo(bb - 2)] if bb >= 2 and g.layer == 1 and not wo_early else [])]
                a(f"s_cmp_gt_u32 s77, {t}\ns_cbranch_scc1 {stub}")
            if b + 5 < 18:
                a(kread(b + 5))
            if b + 2 < 18:
                a(qk(b + 2, cmask((b + 2) >> 1)))
            if b < 8 and not early:
                a(vd[b], tag="Vd")
            for i in range(8):
                m = mx[h][i & 1]
                a(f"v_max3_f32 v{m}, v{m}, v{s_+2*i}, v{s_+2*i+1}")
                if i == 3 and b >= 2 and g.layer == 1 and not wo_early:
                    a(wo(b - 2))
            if skips and t < 8 and b % 2 == 1:
                a.label(back, reset=False)
                g.stubs.append((stub, back, ["s_waitcnt lgkmcnt(0)"] + [y for x in always for y in (x, "s_waitcnt lgkmcnt(0)")]))
        for h in heads:
            m0, m1 = mx[h]
            a(f"v_max_f32 v{m0}, v{m0}, v{m1}\nv_mov_b32 v{m1}, v{m0}")
        for h in heads:
            m0, m1 = mx[h]
            a(f"v_permlane32_swap_b32 v{m0}, v{m1}")
        for h in heads:
            m0, m1 = mx[h]
            a(f"v_max_f32 v{m0}, v{m0}, v{m1}\nv_xor_b32 v{m0}, 0x80000000, v{m0}")
        for i in range(16):
            a(f"v_mov_b32 v{NEGM['A']+i}, v{mx['A'][0]}")
        a(qk(0, vr(NEGM["A"], 16)))
        for i in range(16):
            a(f"v_mov_b32 v{NEGM['B']+i}, v{mx['B'][0]}")
        a.wait_tag("Vd")
        a("s_barrier")
        a(f"buffer_load_dword v21, v20, {SRD_WS}, s89 offen sc1\nbuffer_load_dword v23, v20, {SRD_WS}, s89 offen offset:512 sc1")
        a(f"s_lshl_b32 s72, {sL}, 5\ns_add_u32 s72, s72, {sR}\ns_lshl_b32 s72, s72, 3\ns_add_u32 s72, s72, {sCQ}\ns_lshl_b32 s72, s72, 10")
        a(f"s_lshl_b32 s73, {sWV}, 8\ns_add_u32 s72, s72, s73\ns_add_u32 s72, s72, {WS_ST}")
        a(f"s_mov_b64 exec, 0xffff\nbuffer_load_dword v22, v2, {SRD_WS}, s72 offen sc1\ns_mov_b64 exec, -1")
        g.stamp(7)
        a.c("pass 2: P = exp2(S - m), O += V^T P; block b exponentiates S_b, starts S_{b+1} and finishes block b-1")

        def s2(b):
            return SBUF[b & 1]

        def qk2(b):
            h = heads[b & 1]
            return f"v_mfma_f32_32x32x16_bf16 {vr(s2(b),16)}, {ar(kfrag(b))}, {vr(q[h])}, {vr(NEGM[h],16)}"

        def pv(b, half):
            h = heads[b & 1]
            o, p = OACC[h], PBUF[h]
            return f"v_mfma_f32_32x32x16_bf16 {vr(o,16)}, {ar(vfrag(b, half))}, {vr(p+4*half)}, {vr(o,16)}"

        wd_cur = []
        for b in range(18):
            t, h = b >> 1, heads[b & 1]
            nxt = [qk2(b + 1)] if b + 1 < 18 else []
            prv = [pv(b - 1, 0), pv(b - 1, 1)] if b >= 1 else []
            vl = ["s_mov_b64 exec, s[90:91]\n" + vread(b, 0) + "\n" + vread(b, 1) + "\ns_mov_b64 exec, -1"]
            TB0 = next((int(o[2:]) for o in OPT if o.startswith("pt")), 10 if early else 12)
            if g.layer == 0 and b == TB0:
                p1_finish(g)
            W2B = next((int(o[4:]) for o in OPT if o.startswith("w2p2")), None)
            if g.layer == 0 and b == W2B:
                a(warmup_text(SRD_W2P, "v24"))
            per = 3 if TB0 >= 12 else 2
            wd = [wo(i) for i in range(per * (b - TB0), min(per * (b - TB0) + per, 16))] if g.layer == 0 and b >= TB0 else []
            if INB and b == 2:
                for e in range(2):
                    a(f"buffer_store_dwordx4 v[28:31], v2, {SRD_WS}, {sHB} offen offset:{e*1024} sc1")
            if INB and b == 4:
                a("s_mov_b32 exec_lo, 0x55555555\ns_mov_b32 exec_hi, 0x55555555")
                for i in range(3):
                    a(f"buffer_store_dwordx4 v[28:31], v25, {SRD_WS}, s{sUO+i} offen sc1")
                a("s_mov_b64 exec, -1")
            if skips and t < 8 and b % 2 == 0:
                stub, back = g.lab("sk"), g.lab("bk")
                a(f"s_cmp_gt_u32 s77, {t}\ns_cbranch_scc1 {stub}")
            s_, p = s2(b), PBUF[h]
            extra = {1: nxt[:1], 2: wd[:1], 4: prv[:1], 7: wd[1:2], 9: prv[1:2], 11: vl, 13: wd[2:3]}
            wd_prev, wd_cur = (wd_cur if b else []), wd
            for i in range(16):
                a(f"v_exp_f32 v{s_+i}, v{s_+i}")
                if i >= 2 and i % 2 == 0:
                    k = i // 2 - 1
                    a(f"v_cvt_pk_bf16_f32 v{p+k}, v{s_+2*k}, v{s_+2*k+1}")
                for x in extra.get(i, []):
                    a(x)
            a(f"s_nop 0\nv_cvt_pk_bf16_f32 v{p+7}, v{s_+14}, v{s_+15}")
            if t in (0, 8):
                msk = ANDF if t == 0 else ANDD
                for k in range(8):
                    a(f"v_and_b32 v{p+k}, v{msk+k}, v{p+k}")
            if skips and t < 8 and b % 2 == 1:
                a.label(back, reset=False)
                g.stubs.append((stub, back, nxt + wd_prev + wd_cur))
        a(pv(17, 0)); a(pv(17, 1))
        g.layer = keep
    if "fastattn" not in OPT:
        passes(True)
    else:
        gen_, join = g.lab("ag"), g.lab("aj")
        a(f"s_cmp_lt_u32 {sR}, 4\ns_cbranch_scc1 {gen_}")
        a.snap(gen_)
        passes(False)
        a.label(join, reset=False)
        g.late.append((gen_, join, lambda: (a.restore(gen_), passes(True))))
    g.stamp(8)
    for hi, h in enumerate(heads):
        o = OACC[h]
        a(f"v_rcp_f32 v52, v{o+8}")
        for i in range(8):
            a(f"v_mul_f32 v{o+i}, v52, v{o+i}")
        for k in range(4):
            a(f"v_cvt_pk_bf16_f32 v{o+k}, v{o+2*k}, v{o+2*k+1}")

    def ost(m):
        for hi, h in enumerate(heads):
            a(f"buffer_store_dwordx4 {vr(OACC[h])}, v20, {SRD_WS}, s89 offen offset:{hi*512} {m}", tag="Ost")
    g.dual(ost)


L_STG = L_RING + 10240
L_STG2 = L_RING
V_W1D, V_W1R, V_W2D, V_W2R = 52, 56, 40, 42


PA1 = 96
V_P1 = 12


def p1_setup(g):
    a = g.a
    a("s_lshr_b32 s72, s2, 2\ns_and_b32 s73, s2, 3")
    a("s_mul_i32 s74, s73, 7\ns_min_u32 s75, s73, 1\ns_add_u32 s74, s74, s75")
    a("s_cmp_eq_u32 s73, 0\ns_cselect_b32 s75, 8, 7")
    a(f"s_mul_i32 s101, s72, {32*2752}\ns_mul_i32 s73, s74, 96\ns_add_u32 s101, s101, s73\ns_mul_i32 s75, s75, 6")
    a("s_mov_b32 s72, 1311\ns_mov_b32 s73, 2752")
    for n in range(7):
        a(f"s_lshl_b32 s74, {sWV}, 6\ns_add_u32 s74, s74, {256*n}\nv_add_u32 v3, s74, v1")
        a("v_mul_lo_u32 v4, v3, s72\nv_lshrrev_b32 v4, 16, v4\nv_mul_u32_u24 v5, 50, v4\nv_sub_u32 v5, v3, v5")
        a("v_mul_lo_u32 v6, v4, s73\nv_lshl_add_u32 v6, v5, 4, v6")
        a("v_cmp_gt_u32 vcc, s75, v5\nv_cmp_gt_u32 s[78:79], 32, v4\ns_and_b64 vcc, vcc, s[78:79]")
        a(f"v_mov_b32 v5, 0x7ff00000\nv_cndmask_b32 v{V_P1+n}, v5, v6, vcc")


def p1_loads(g):
    a = g.a
    for n in range(7):
        a(f"buffer_load_dwordx4 {ar(PA1+4*n)}, v{V_P1+n}, {SRD_W1}, s101 offen")


def p1_finish(g):
    a = g.a
    L1 = L_X
    a("s_lshr_b32 s72, s2, 2\ns_and_b32 s73, s2, 3")
    a("s_mul_i32 s74, s73, 7\ns_min_u32 s75, s73, 1\ns_add_u32 s74, s74, s75")
    a("s_cmp_eq_u32 s73, 0\ns_cselect_b32 s75, 8, 7")
    a(f"s_lshl_b32 s80, {sWV}, 10\ns_add_u32 s80, s80, {L1}\nv_add_u32 v120, s80, v2")
    for n in range(7):
        a(f"ds_write_b128 v120, {ar(PA1+4*n)} offset:{n*4096}")
    a("v_lshrrev_b32 v121, 4, v1\nv_lshlrev_b32 v121, 3, v121\nv_bfe_u32 v122, v1, 2, 2\nv_add_u32 v121, v121, v122\nv_and_b32 v122, 3, v1")
    a(f"v_mul_u32_u24 v123, 800, v121\nv_lshl_add_u32 v123, v122, 3, v123\ns_lshl_b32 s80, {sWV}, 5\ns_add_u32 s80, s80, {L1}\nv_add_u32 v123, s80, v123")
    a("s_waitcnt lgkmcnt(0)\ns_barrier")
    for n in range(6):
        for rd in range(2):
            a(f"ds_read_b64_tr_b16 v[{96+4*n+2*rd}:{97+4*n+2*rd}], v123 offset:{128*n + rd*3200}")
    for n in range(6):
        a(f"s_add_u32 s80, {sWV}, {4*n}\ns_mul_i32 s81, s80, 43\ns_lshr_b32 s81, s81, 7\ns_mul_i32 s82, s81, 3\ns_sub_u32 s82, s80, s82")
        a("s_cmp_lt_u32 s81, s75\ns_cselect_b32 s85, 0, 0x70000000")
        a("s_add_u32 s81, s81, s74\ns_lshl_b32 s81, s81, 6\ns_add_u32 s81, s81, s72\ns_mul_i32 s81, s81, 3\ns_add_u32 s81, s81, s82")
        a(f"s_lshl_b32 s81, s81, 10\ns_add_u32 s81, s81, {WS_W1P}\ns_or_b32 s81, s81, s85")
        a(f"buffer_store_dwordx4 {vr(96+4*n)}, v2, {SRD_WS}, s81 offen sc1")
    a("s_waitcnt lgkmcnt(0)\ns_barrier")


def early_w1(g, i0, i1, check=False):
    a = g.a
    skip = g.lab("e1")
    a(f"s_cmp_eq_u32 {sM1}, 0\ns_cbranch_scc1 {skip}")
    with a.cond("m1"):
        if check:
            l0_only(g, "l0c", lambda: (p1_check(g), w1_loads(g, 0, i0)))
        w1_loads(g, i0, i1)
    a.label(skip, reset=False)


def l0_only(g, name, fn):
    if g.layer == 0:
        fn()


def p1_check(g):
    a = g.a
    a(f"s_cmp_ge_u32 {sJ1}, 8\ns_cselect_b32 s72, 1, 0\ns_cmp_ge_u32 {sJ1}, 15\ns_addc_u32 s72, s72, 0")
    a(f"s_cmp_ge_u32 {sJ1}, 22\ns_addc_u32 s72, s72, 0")
    a(f"s_lshl_b32 s73, {sWV}, 4\nv_add_u32 v9, s73, v1\nv_lshl_add_u32 v9, v9, 2, s72")
    a(f"v_lshlrev_b32 v9, 7, v9\nv_add_u32 v9, {WS_FLAG + PH_P*2*256*128}, v9")
    g.poll("v9", "0xffff")


def w1_step_addr(g, dst, base, st):
    a = g.a
    if ROT:
        a(f"s_lshr_b32 {dst}, s2, 5\ns_lshl_b32 {dst}, {dst}, 1\ns_add_u32 {dst}, {dst}, {st}\ns_and_b32 {dst}, {dst}, 15\ns_mul_i32 {dst}, {dst}, 3072\ns_add_u32 {dst}, {dst}, {base}")
    else:
        a(f"s_add_u32 {dst}, {base}, {st*3072}")


def w1_loads(g, i0, i1):
    a = g.a
    a(f"s_lshl_b32 s72, {sJ1}, 6\ns_lshl_b32 s73, {sWV}, 4\ns_add_u32 s72, s72, s73\ns_mul_i32 s72, s72, 3072\ns_add_u32 s72, s72, {WS_W1P}")
    for i in range(i0, i1):
        st, ft = divmod(i, 3)
        if ft == 0 or i == i0:
            w1_step_addr(g, "s73", "s72", st)
        a(f"buffer_load_dwordx4 {ar(4*i)}, v2, {SRD_WS}, s73 offen offset:{ft*1024} sc1")


def m1_only(g, fn):
    a = g.a
    skip = g.lab("m1s")
    a(f"s_cmp_eq_u32 {sM1}, 0\ns_cbranch_scc1 {skip}")
    with a.cond("m1"):
        fn()
    a.label(skip, reset=False)


def w2_setup(g):
    a = g.a
    a("v_lshrrev_b32 v3, 3, v1\nv_lshlrev_b32 v3, 12, v3\nv_bfe_u32 v4, v1, 1, 2\nv_bfe_u32 v5, v1, 4, 1\nv_and_b32 v6, 1, v1")
    for e in range(2):
        a(f"v_or_b32 v7, {2*e}, v5\nv_xor_b32 v7, v4, v7\nv_lshl_add_u32 v7, v7, 1, v6\nv_lshl_add_u32 v{V_W2D+e}, v7, 4, v3")
    a("v_lshrrev_b32 v3, 4, v1\nv_lshlrev_b32 v4, 3, v3\nv_bfe_u32 v5, v1, 2, 2\nv_add_u32 v4, v4, v5\nv_lshlrev_b32 v4, 7, v4")
    a("v_and_b32 v5, 3, v1\nv_lshl_add_u32 v4, v5, 3, v4\nv_and_b32 v3, 1, v3\nv_lshlrev_b32 v3, 1, v3\nv_bfe_u32 v5, v1, 3, 1\nv_or_b32 v3, v3, v5")
    for k in range(4):
        a(f"v_xor_b32 v5, {k}, v3\nv_lshl_add_u32 v{V_W2R+k}, v5, 5, v4")
    a(f"s_mul_i32 s89, {sWV}, {11*32*4096}\ns_lshl_b32 s88, {sR}, 7\ns_add_u32 s89, s89, s88")


def w2_lds(st):
    if st < 5:
        return ("s86", st * 4096)
    if st < 9:
        return ("s87", (st - 5) * 4096)
    return ("s86", (st - 9) * 4096)


def w2_bases(g):
    g.a(f"s_mul_i32 s86, {sWV}, 20480\ns_add_u32 s86, s86, {L_STG2}\ns_lshl_b32 s87, {sWV}, 14\ns_add_u32 s87, s87, {L_X}")


def w2_dma_text(st, m):
    base, off = w2_lds(st)
    return (f"s_add_u32 m0, {base}, {off + m*1024}\ns_add_u32 s88, s89, {(st*32 + 8*m)*4096}",
            f"buffer_load_dwordx4 v{V_W2D + (m & 1)}, {SRD_W2P}, s88 offen lds")


def w2_dma(g, st, m, uncond=False):
    pre, ld = w2_dma_text(st, m)
    g.a(pre)
    (g.a.uncond if uncond else g.a)(ld, tag=f"D2_{0 if st < 5 else 5 if st < 9 else 9}")
    return pre + "\n" + ld


def w2_tr(g, s0, s1):
    a = g.a
    base, _ = w2_lds(s0)
    for k in range(4):
        a(f"v_add_u32 v{32+k}, {base}, v{V_W2R+k}")
    for st in range(s0, s1):
        _, off = w2_lds(st)
        for k in range(4):
            for rd in range(2):
                b = (st*4 + k) * 4 + 2*rd
                a(f"ds_read_b64_tr_b16 a[{b}:{b+1}], v{32+k} offset:{off + rd*512}")


def u_producers(g, dst, lane0):
    a = g.a
    a(f"s_mul_i32 s72, {sWV}, 352\ns_mul_hi_u32 s72, s72, {(1 << 32)//48 + 1}\ns_sub_u32 s72, s72, {lane0}\nv_add_u32 v8, s72, v1\nv_max_i32 v8, 0, v8\nv_min_u32 v8, 28, v8")
    a("v_cmp_le_u32 vcc, 8, v8\nv_cndmask_b32 v6, 0, 1, vcc\nv_cmp_le_u32 vcc, 15, v8\nv_addc_co_u32 v6, vcc, 0, v6, vcc")
    a("v_cmp_le_u32 vcc, 22, v8\nv_addc_co_u32 v6, vcc, 0, v6, vcc")
    a("v_mul_u32_u24 v7, 7, v6\nv_min_u32 v9, 1, v6\nv_add_u32 v7, v7, v9\nv_sub_u32 v7, v8, v7")
    a(f"s_and_b32 s72, {sCQ}, 3\ns_lshr_b32 s73, {sCQ}, 2\nv_lshl_add_u32 v7, v7, 2, s72\nv_lshlrev_b32 v7, 3, v7")
    a(f"v_lshl_add_u32 {dst}, v6, 1, v7\nv_add_u32 {dst}, s73, {dst}")


def sentinel(g, loads, srd):
    a = g.a
    top, ok = g.lab("sn"), g.lab("sno")
    a(f"s_mov_b32 {sCNT}, 0")
    a.label(top, reset=False)
    with a.cond(top):
        for k, (addr, soff) in enumerate(loads):
            a(f"buffer_load_dword v{4+k}, {addr}, {srd}, {soff} offen sc1")
        a("s_waitcnt vmcnt(0)")
        a("v_cmp_eq_u32 vcc, -1, v4")
        for k in range(1, len(loads)):
            a(f"v_cmp_eq_u32 s[72:73], -1, v{4+k}\ns_or_b64 vcc, vcc, s[72:73]")
        a(f"s_cbranch_vccz {ok}")
        a(f"s_add_u32 {sCNT}, {sCNT}, 1\ns_cmp_lt_u32 {sCNT}, {POLL_LIMIT}\ns_cbranch_scc1 {top}")
    a.label(ok, reset=False)


def redo_end(g, redo):
    a = g.a
    done = g.lab("rd")
    a(f"s_cmp_eq_u64 {sACC}, 0\ns_cbranch_scc1 {done}")
    if g.diag:
        g.srd(32, P_DBG, 256)
        a(f"v_mov_b32 v4, 1\nv_mov_b32 v5, 4\ns_mov_b64 exec, 1\nbuffer_atomic_add v4, v5, {SRD_T}, 0 offen\ns_mov_b64 exec, -1")
    a(f"s_add_u32 {sREDO}, {sREDO}, 1\ns_cmp_lt_u32 {sREDO}, 64\ns_cbranch_scc1 {redo}")
    a.label(done, reset=False)


def o_flags(g):
    a = g.a
    a(f"v_mov_b32 v8, {sR}\nv_and_b32 v9, 3, v8\nv_lshlrev_b32 v9, 3, v9\nv_add_u32 v9, v1, v9\nv_lshlrev_b32 v9, 3, v9")
    a("v_lshrrev_b32 v7, 2, v8\nv_add_u32 v9, v9, v7")
    g.vflag("v9", PH_O)
    a("s_mov_b32 s76, 0xff\ns_mov_b32 s77, 0")
    if g.layer == 0:
        a(f"s_cmp_ge_u32 {sJ1}, 8\ns_cselect_b32 s72, 1, 0\ns_cmp_ge_u32 {sJ1}, 15\ns_addc_u32 s72, s72, 0")
        a(f"s_cmp_ge_u32 {sJ1}, 22\ns_addc_u32 s72, s72, 0")
        a(f"s_lshl_b32 s73, {sWV}, 4\ns_sub_u32 s73, s73, 8\nv_add_u32 v8, s73, v1\nv_lshl_add_u32 v8, v8, 2, s72\nv_and_b32 v8, 255, v8")
        a(f"v_lshlrev_b32 v8, 7, v8\nv_add_u32 v8, {WS_FLAG + PH_P*2*256*128}, v8")
        a("v_cmp_le_u32 vcc, 8, v1\nv_cndmask_b32 v9, v9, v8, vcc")
        a(f"s_cmp_eq_u32 {sM1}, 0\ns_cselect_b32 s76, s76, 0xffffff")


def oproj(g):
    a = g.a
    a.c("======== output projection, residual, double LayerNorm")
    OFR, WPRE, WFR, ACC = 64, 128, 14, 46
    a("v_lshrrev_b32 v3, 5, v1\nv_lshlrev_b32 v3, 4, v3\nv_bfe_u32 v4, v1, 4, 1\nv_lshl_add_u32 v3, v4, 2, v3")
    a("v_bfe_u32 v5, v1, 2, 2\nv_add_u32 v3, v3, v5\nv_bfe_u32 v5, v3, 1, 2\nv_and_b32 v6, 3, v1\nv_lshlrev_b32 v6, 3, v6")
    a("v_lshl_add_u32 v6, v3, 7, v6")
    for nt in range(4):
        a(f"v_xor_b32 v7, {nt}, v5\nv_lshl_add_u32 v{10+nt}, v7, 5, v6")

    def wreg(ks, nt):
        return WPRE + ks * 16 + nt * 4 if ks < 8 else WFR + (ks & 1) * 16 + nt * 4

    def wread(ks, nt):
        b = wreg(ks, nt)
        for rd in range(2):
            a(f"ds_read_b64_tr_b16 v[{b+2*rd}:{b+2*rd+1}], v{10+nt} offset:{L_X + ks*4096 + rd*1024}")
    for ks in range(8):
        for nt in range(4):
            wread(ks, nt)
    g.poll("v9", "s[76:77]")
    a("s_waitcnt vmcnt(0) lgkmcnt(0)")
    g.stamp(10)
    a(f"s_lshl_b32 s72, {sR}, 2\ns_add_u32 s72, s72, {sWV}\ns_lshl_b32 s72, s72, 14\ns_lshl_b32 s73, {sL}, 21")
    a(f"s_add_u32 s72, s72, s73\ns_add_u32 s74, s72, {WS_OF}")

    def oload(ks):
        if ks & 3 == 0 or ks == OD:
            a(f"s_add_u32 s73, s74, {(ks >> 2)*4096}")
        a(f"buffer_load_dwordx4 {vr(OFR+4*ks)}, v2, {SRD_WS}, s73 offen offset:{(ks & 3)*1024} sc1")
    OD = 11
    for ks in range(OD):
        oload(ks)
    g.stamp(25)

    def main(w1):
        if w1:
            a(f"s_lshl_b32 s76, {sJ1}, 6\ns_lshl_b32 s77, {sWV}, 4\ns_add_u32 s76, s76, s77\ns_mul_i32 s76, s76, 3072\ns_add_u32 s76, s76, {WS_W1P}")
        for ks in range(16):
            if ks + OD < 16:
                oload(ks + OD)
            for nt in range(4):
                c = "0" if ks == 0 else vr(ACC + 4*nt)
                a(f"v_mfma_f32_16x16x32_bf16 {vr(ACC+4*nt)}, {vr(wreg(ks, nt))}, {vr(OFR+4*ks)}, {c}")
                if 6 <= ks <= 13:
                    wread(ks + 2, nt)
                if w1 and nt == 1 and ks >= 4:
                    for i in ((ks - 4) * 2, (ks - 4) * 2 + 1) if ks < 12 else ():
                        st, ft = divmod(i, 3)
                        w1_step_addr(g, "s77", "s76", st)
                        a(f"buffer_load_dwordx4 {ar(4*i)}, v2, {SRD_WS}, s77 offen offset:{ft*1024} sc1")
            if ks == 0:
                g.stamp(28)
            if ks == 7:
                g.stamp(29)
    la, lb = g.lab("oa"), g.lab("ob")
    a(f"s_cmp_eq_u32 {sM1}, 0\ns_cbranch_scc1 {la}")
    a.snap(la)
    main(True)
    a.label(lb, reset=False)
    g.late.append((la, lb, lambda: (a.restore(la), main(False))))
    g.stamp(11)
    a(f"v_and_b32 v3, 15, v1\ns_lshl_b32 s72, {sWV}, 4\nv_add_u32 v14, s72, v3\nv_lshrrev_b32 v4, 4, v1")
    a(f"v_mul_u32_u24 v5, 144, v14\nv_lshl_add_u32 v5, v4, 3, v5\nv_add_u32 v15, {L_R}, v5")
    for nt in range(4):
        a(f"ds_read_b64 v[{176+2*nt}:{177+2*nt}], v15 offset:{32*nt}")
    X1 = 192
    for nt in range(4):
        for k in range(2):
            a(f"v_lshlrev_b32 v{X1+4*nt+2*k}, 16, v{176+2*nt+k}\nv_and_b32 v{X1+4*nt+2*k+1}, 0xffff0000, v{176+2*nt+k}")
    for i in range(16):
        a(f"v_add_f32 v{X1+i}, v{X1+i}, v{ACC+i}")
    for k in range(8):
        a(f"v_cvt_pk_bf16_f32 v{176+k}, v{X1+2*k}, v{X1+2*k+1}")
    for nt in range(4):
        a(f"ds_write_b64 v15, v[{176+2*nt}:{177+2*nt}] offset:{32*nt}")
    a(f"v_add_f32 v16, v{X1}, v{X1+1}\nv_mul_f32 v17, v{X1}, v{X1}\nv_fmac_f32 v17, v{X1+1}, v{X1+1}")
    for i in range(2, 16):
        a(f"v_add_f32 v16, v16, v{X1+i}\nv_fmac_f32 v17, v{X1+i}, v{X1+i}")

    def fold_groups(r0, r1):
        for sw in ("16", "32"):
            a(f"v_mov_b32 v20, v{r0}\nv_mov_b32 v21, v{r1}")
            a(f"v_permlane{sw}_swap_b32 v{r0}, v20\nv_permlane{sw}_swap_b32 v{r1}, v21")
            a(f"v_add_f32 v{r0}, v{r0}, v20\nv_add_f32 v{r1}, v{r1}, v21")
    fold_groups(16, 17)
    a(f"v_mov_b32 v18, {sN}\nv_mov_b32 v19, {sNN}")
    a(f"s_lshl_b32 s72, {sL}, 5\ns_add_u32 s72, s72, {sR}\ns_lshl_b32 s72, s72, 13\ns_add_u32 s72, s72, {WS_ST}")
    a(f"s_lshl_b32 s73, {sCQ}, 10\ns_add_u32 s73, s73, s72\nv_lshlrev_b32 v22, 4, v14")
    a("s_mov_b64 exec, 0xffff")
    g.dual(lambda m: a(f"buffer_store_dwordx4 v[16:19], v22, {SRD_WS}, s73 offen {m}"))
    a("s_mov_b64 exec, -1")
    g.stamp(26)
    if INB:
        a(f"s_lshl_b32 s73, {sWV}, 3\nv_add_u32 v34, s73, v1")
        g.wg_of("v35", "v34", sC1)
        u_producers(g, "v36", 8)
        a("v_cmp_le_u32 vcc, 8, v1\nv_cndmask_b32 v35, v35, v36, vcc\nv_and_b32 v35, 255, v35")
        g.vflag("v35", PH_PD)
        a(f"s_lshl_b32 s44, {sM1}, 8\ns_sub_u32 s44, s44, {sM1}\ns_or_b32 s44, s44, 0xff00\ns_mov_b32 s45, 0")
        a(f"s_mov_b64 exec, s[44:45]\nbuffer_load_dwordx2 v[32:33], v35, {SRD_WS}, 0 offen sc1\ns_mov_b64 exec, -1")
    if "w1st" in OPT:
        early_w1(g, 16, 28)
    a("v_lshrrev_b32 v4, 4, v1")
    g.stamp(27)
    a(f"s_lshl_b32 s72, {sL}, 5\ns_add_u32 s72, s72, {sR}\ns_lshl_b32 s72, s72, 13\ns_add_u32 s72, s72, {WS_ST}")
    a("v_lshl_add_u32 v23, v4, 11, v22\ns_mov_b32 s100, 0")
    top, ok = g.lab("stp"), g.lab("sto")
    a.label(top, reset=False)
    a(f"buffer_load_dwordx4 v[24:27], v23, {SRD_WS}, s72 offen sc1")
    a(f"buffer_load_dwordx4 v[28:31], v23, {SRD_WS}, s72 offen offset:1024 sc1")
    a("s_waitcnt vmcnt(0)")
    a(f"v_cmp_ne_u64 vcc, {sNP}, v[26:27]\nv_cmp_ne_u64 s[74:75], {sNP}, v[30:31]\ns_or_b64 vcc, vcc, s[74:75]")
    a(f"s_cbranch_vccz {ok}")
    a(f"s_add_u32 s100, s100, 1\ns_cmp_lt_u32 s100, {POLL_LIMIT}\ns_cbranch_scc1 {top}\ns_branch L_fail")
    a.label(ok, reset=False)
    if INB:
        pd = g.lab("pd")
        a(f"s_mov_b64 exec, s[44:45]\nv_cmp_ne_u64 vcc, {sNP}, v[32:33]\ns_mov_b64 exec, -1\ns_cbranch_vccz {pd}")
        with a.cond(pd):
            a("v_mov_b32 v36, v4\nv_mov_b32 v37, v5")
            g.poll("v35", "s[44:45]")
            a("v_mov_b32 v4, v36\nv_mov_b32 v5, v37")
        a.label(pd, reset=False)
    g.stamp(12)
    HT = L_RING

    def normalise():
        a("v_add_f32 v16, v24, v28\nv_add_f32 v17, v25, v29")
        fold_groups(16, 17)
        a(f"v_mul_f32 v16, {f32(1/512)}, v16\nv_mul_f32 v17, {f32(1/512)}, v17\nv_fma_f32 v17, -v16, v16, v17\nv_max_f32 v17, 0, v17")
        a(f"v_add_f32 v18, {f32(1e-5)}, v17\nv_rsq_f32 v18, v18")
        a(f"v_mul_f32 v19, v18, v18\nv_mul_f32 v19, v19, v17\nv_add_f32 v19, {f32(1e-5)}, v19\nv_rsq_f32 v19, v19\nv_mul_f32 v18, v18, v19")
        for i in range(16):
            a(f"v_sub_f32 v{X1+i}, v{X1+i}, v16")
        for i in range(16):
            a(f"v_mul_f32 v{X1+i}, v18, v{X1+i}")
        for k in range(8):
            a(f"v_cvt_pk_bf16_f32 v{176+k}, v{X1+2*k}, v{X1+2*k+1}")
        a(f"v_mul_u32_u24 v5, 160, v14\nv_lshl_add_u32 v5, v4, 3, v5\nv_add_u32 v5, {HT}, v5")
        for nt in range(4):
            a(f"ds_write_b64 v5, v[{176+2*nt}:{177+2*nt}] offset:{32*nt}")
        a("v_lshrrev_b32 v3, 4, v1\nv_lshlrev_b32 v3, 3, v3\nv_bfe_u32 v6, v1, 2, 2\nv_add_u32 v3, v3, v6")
        a(f"s_lshl_b32 s72, {sTB}, 5\nv_add_u32 v3, s72, v3\nv_mul_u32_u24 v3, 160, v3\nv_and_b32 v6, 3, v1\nv_lshl_add_u32 v3, v6, 3, v3")
        a(f"s_lshl_b32 s72, {sP}, 6\ns_add_u32 s72, s72, {HT}\nv_add_u32 v3, s72, v3")

    if "w1st" in OPT:
        normalise()
    else:
        a(f"s_lshl_b32 s90, {sJ1}, 6\ns_lshl_b32 s91, {sWV}, 4\ns_add_u32 s90, s90, s91\ns_mul_i32 s90, s90, 3072\ns_add_u32 s90, s90, {WS_W1P}")
        a(f"s_cmp_eq_u32 {sM1}, 0\ns_cselect_b32 s90, 0x70000000, s90")

        def w1_n(i):
            st, ft = divmod(i, 3)
            if ft == 0 or i == 16:
                a(f"s_add_u32 s91, s90, {st*3072}")
            a(f"buffer_load_dwordx4 {ar(4*i)}, v2, {SRD_WS}, s91 offen offset:{ft*1024} sc1")
        a.weave([a.capture(lambda i=i: w1_n(i)) for i in range(16, 28)], a.capture(normalise))
    a("s_waitcnt lgkmcnt(0)\ns_barrier")
    for e in range(2):
        for rd in range(2):
            a(f"ds_read_b64_tr_b16 v[{184+4*e+2*rd}:{185+4*e+2*rd}], v3 offset:{32*e + rd*640}")
    if INB:
        a(f"s_mov_b32 s72, {sHB}")
    else:
        a(f"s_lshl_b32 s72, {sCQ}, 6\ns_lshl_b32 s73, {sR}, 1\ns_add_u32 s72, s72, s73\ns_add_u32 s72, s72, {sTB}\ns_lshl_b32 s72, s72, 2")
        a(f"s_lshl_b32 s73, {sP}, 1\ns_add_u32 s72, s72, s73\ns_lshl_b32 s72, s72, 10\ns_lshl_b32 s73, {sL}, 21\ns_add_u32 s72, s72, s73\ns_add_u32 s72, s72, {WS_H}")
    for e in range(2):
        a(f"buffer_store_dwordx4 {vr(184+4*e)}, v2, {SRD_WS}, s72 offen offset:{e*1024} sc1", tag="Hst")


def mix1(g):
    a = g.a
    a.c("======== token mixing 1: u = gelu(h^T W1 + b1)")
    skip, other = g.lab("m1"), g.lab("m1o")
    w2_setup(g)
    w2_bases(g)
    a(f"s_cmp_eq_u32 {sM1}, 0\ns_cbranch_scc1 {other}")
    w2_text = []

    def w2(i):
        return w2_dma(g, i >> 2, i & 3, uncond=True)
    with a.cond("m1"):
        def m1_setup():
            g.srd(32, P_B1, 2752)
            a(f"s_mul_i32 s72, {sJ1}, 96\nv_and_b32 v3, 1, v1\nv_lshlrev_b32 v3, 3, v3\ns_mul_i32 s73, {sWV}, 3")
            for i in range(3):
                a(f"s_add_u32 s74, s73, {i}\ns_lshr_b32 s74, s74, 1\ns_lshl_b32 s74, s74, 4\ns_add_u32 s74, s74, s72")
                a(f"buffer_load_dwordx2 v[{14+2*i}:{15+2*i}], v3, {SRD_T}, s74 offen")
            if not INB:
                a(f"s_lshl_b32 s73, {sWV}, 3\nv_add_u32 v8, s73, v1")
                g.wg_of("v9", "v8", sC1)
                g.vflag("v9", PH_H)
            c0 = -2 * math.log2(math.e) * math.sqrt(2 / math.pi)
            c1 = c0 * 0.044715
            a(f"v_and_b32 v3, 15, v1\nv_mul_u32_u24 v3, 208, v3\nv_lshrrev_b32 v4, 4, v1\nv_lshl_add_u32 v3, v4, 4, v3")
            a(f"s_mul_i32 s72, {sWV}, 13312\nv_add_u32 v13, s72, v3")
            a("v_lshrrev_b32 v3, 1, v1\nv_mul_u32_u24 v10, 208, v3\nv_and_b32 v4, 1, v1\nv_lshl_add_u32 v10, v4, 4, v10")
            a("v_lshrrev_b32 v5, 5, v1\nv_lshlrev_b32 v11, 10, v5\nv_and_b32 v3, 15, v3\nv_lshl_add_u32 v11, v3, 4, v11")
            if not INB:
                a("v_lshl_add_u32 v11, v4, 3, v11")
            a(f"s_mul_i32 s76, {sWV}, 3\ns_mov_b32 s84, {f32(c1)}\ns_mov_b32 s85, {f32(c0)}")
            for i in range(3):
                a(f"s_add_u32 s72, s76, {i}\ns_lshr_b32 s73, s72, 1\ns_and_b32 s72, s72, 1")
                a(f"s_mul_i32 s74, s72, {32*208}\ns_lshl_b32 s75, s73, 5\ns_add_u32 s74, s74, s75\nv_add_u32 v{20+i}, s74, v10")
            if INB:
                for i in range(3):
                    a(f"s_mov_b32 s{80+i}, s{sUO+i}")
            else:
                u_offsets(g, 80)

        def w1_one(i):
            st, ft = divmod(i, 3)
            if ft == 0 or i == 40:
                a(f"s_add_u32 s91, s90, {st*3072}")
            a(f"buffer_load_dwordx4 {ar(4*i)}, v2, {SRD_WS}, s91 offen offset:{ft*1024} sc1")
        a(f"s_lshl_b32 s90, {sJ1}, 6\ns_lshl_b32 s91, {sWV}, 4\ns_add_u32 s90, s90, s91\ns_mul_i32 s90, s90, 3072\ns_add_u32 s90, s90, {WS_W1P}")
        a.weave([a.capture(lambda i=i: w1_one(i)) for i in range(40, 48)], a.capture(m1_setup))
        HD = next((int(o[2:]) for o in OPT if o.startswith("hd")), 15)
        HB, NS, ACC = 64, HD + 9, 192
        a(f"s_lshl_b32 s72, {sC1}, 6\ns_lshl_b32 s73, {sWV}, 4\ns_add_u32 s72, s72, s73\ns_lshl_b32 s72, s72, 12")
        a(f"s_lshl_b32 s73, {sL}, 21\ns_add_u32 s72, s72, s73\ns_add_u32 s43, s72, {WS_H}")
        if INB:
            a(f"v_lshlrev_b32 v9, 10, v1\nv_add_u32 v9, 1008, v9\ns_mov_b32 {sREDO}, 0")
            redo = g.lab("m1r")
            a.label(redo, reset=False)
            sentinel(g, [("v9", "s43")], SRD_WS)
            a(f"s_mov_b64 {sACC}, 0")
        else:
            g.poll("v9", "0xff")
        g.stamp(14)
        a("s_mov_b32 s72, s43")
        nload = [0]

        def hload():
            n = nload[0]
            if ROT:
                if n & 3 == 0:
                    a(f"s_lshr_b32 s72, s2, 5\ns_lshl_b32 s72, s72, 1\ns_add_u32 s72, s72, {n >> 2}\ns_and_b32 s72, s72, 15\ns_lshl_b32 s72, s72, 12\ns_add_u32 s72, s72, s43")
                a(f"buffer_load_dwordx4 {vr(HB + 4*(n % NS))}, v2, {SRD_WS}, s72 offen offset:{(n & 3)*1024} sc1")
            else:
                a(f"buffer_load_dwordx4 {vr(HB + 4*(n % NS))}, v2, {SRD_WS}, s72 offen offset:{(n & 3)*1024} sc1")
                if n & 3 == 3:
                    a("s_add_u32 s72, s72, 4096")
            nload[0] += 1
        for _ in range(HD):
            hload()
        for st in range(16):
            for dt in range(4):
                hb = HB + 4 * ((st*4 + dt) % NS)
                for ft in range(3):
                    acc = ACC + (ft*4 + dt) * 4
                    c = "0" if st == 0 else ar(acc)
                    a(f"v_mfma_f32_16x16x32_bf16 {ar(acc)}, {ar((st*3+ft)*4)}, {vr(hb)}, {c}")
                    if INB and ft == 0:
                        a(f"v_cmp_eq_u32 vcc, -1, v{hb}\ns_or_b64 {sACC}, {sACC}, vcc")
                if nload[0] < 64:
                    hload()
                if st == 0 and dt == 0:
                    g.stamp(30)
                if st == 7 and dt == 3:
                    g.stamp(31)
        if INB:
            redo_end(g, redo)
        l0_only(g, "l0t", lambda: (warmup(g, SRD_W2P, "v60") if not NOW2 else None, a(x2_touch_text())))
        g.stamp(15)
        nw2 = 0
        for dt in range(4):
            for ft in range(3):
                a(f"ds_write_b128 v13, {ar(ACC + (ft*4+dt)*4)} offset:{L_X + dt*16*208 + ft*64}")
        a("s_waitcnt lgkmcnt(0)\ns_barrier")
        for i in range(3):
            for k in range(4):
                a(f"ds_read_b128 {vr(64 + 16*i + 4*k)}, v{20+i} offset:{L_X + k*13312}")
        if g.layer == 0:
            sk3 = g.lab("ep")
            a(f"s_or_b32 s72, s2, {sWV}\ns_cmp_eq_u32 s72, 0\ns_cbranch_scc0 {sk3}")
            with a.cond(sk3):
                a(f"v_mov_b32 v4, {sN}\nv_mov_b32 v5, {WS_EPOCH}\ns_mov_b64 exec, 1")
                a(f"buffer_store_dword v4, v5, {SRD_WS}, 0 offen sc1")
                a("s_mov_b64 exec, -1")
            a.label(sk3, reset=False)
        if UDW == 20:
            pass
        else:
            a("s_waitcnt lgkmcnt(0)\ns_barrier")
        for i in range(3):
            B = 64 + 16 * i
            bb = 14 + 2 * i

            def w2x(k=1):
                nonlocal nw2
                for _ in range(k):
                    if nw2 < 18:
                        w2_text.append(w2(nw2)); nw2 += 1
            for e in range(4):
                a(f"v_add_f32 v{B+e}, v{B+e}, v{B+4+e}\nv_add_f32 v{B+8+e}, v{B+8+e}, v{B+12+e}")
            w2x()
            a(f"v_lshlrev_b32 v{B+4}, 16, v{bb}\nv_and_b32 v{B+5}, 0xffff0000, v{bb}\nv_lshlrev_b32 v{B+6}, 16, v{bb+1}\nv_and_b32 v{B+7}, 0xffff0000, v{bb+1}")
            for e in range(4):
                a(f"v_add_f32 v{B+e}, v{B+e}, v{B+8+e}")
            w2x()
            for e in range(4):
                a(f"v_add_f32 v{B+e}, v{B+e}, v{B+4+e}")
            for e in range(4):
                a(f"v_mul_f32 v{B+4+e}, v{B+e}, v{B+e}\nv_mov_b32 v{B+8+e}, s85")
            w2x()
            for e in range(4):
                a(f"v_fmac_f32 v{B+8+e}, s84, v{B+4+e}")
            for e in range(4):
                a(f"v_mul_f32 v{B+8+e}, v{B+8+e}, v{B+e}")
            for e in range(4):
                a(f"v_exp_f32 v{B+8+e}, v{B+8+e}")
            w2x()
            for e in range(4):
                a(f"v_add_f32 v{B+8+e}, 1.0, v{B+8+e}")
            for e in range(4):
                a(f"v_rcp_f32 v{B+8+e}, v{B+8+e}")
            for e in range(4):
                a(f"v_mul_f32 v{B+e}, v{B+e}, v{B+8+e}")
            a(f"v_cvt_pk_bf16_f32 v{B+4}, v{B}, v{B+1}\nv_cvt_pk_bf16_f32 v{B+5}, v{B+2}, v{B+3}")
            if INB:
                a(f"v_mov_b32_dpp v{B+6}, v{B+4} quad_perm:[1,0,3,2] row_mask:0xf bank_mask:0xf")
                a(f"v_mov_b32_dpp v{B+7}, v{B+5} quad_perm:[1,0,3,2] row_mask:0xf bank_mask:0xf")
                a("s_mov_b32 exec_lo, 0x55555555\ns_mov_b32 exec_hi, 0x55555555")
                a(f"buffer_store_dwordx4 v[{B+4}:{B+7}], v11, {SRD_WS}, s{80+i} offen sc1", tag="Ust")
                a("s_mov_b64 exec, -1")
            else:
                a(f"buffer_store_dwordx2 v[{B+4}:{B+5}], v11, {SRD_WS}, s{80+i} offen sc1", tag="Ust")
        while nw2 < UDW:
            w2_text.append(w2(nw2)); nw2 += 1
        if INB:
            a("s_barrier")
        else:
            a.wait_tag("Ust")
            g.publish(PH_U)
    a.label(skip, reset=False)
    pre = ([warmup_text(SRD_W2P, "v60")] if not NOW2 else []) + [x2_touch_text()] if g.layer == 0 else []
    g.tails.append((other, skip, pre + w2_text))
    if "noweave2" in OPT:
        for i in range(20, 36):
            w2_dma(g, i >> 2, i & 3)
        a.wait_tag("D2_0")
        w2_tr(g, 0, 5)
        a("s_waitcnt lgkmcnt(0)")
        for i in range(36, 44):
            w2_dma(g, i >> 2, i & 3)
    else:
        a.wait_tag("D2_0")
        d1 = [a.capture(lambda i=i: w2_dma(g, i >> 2, i & 3)) for i in range(UDW, 36)]
        setup = a.capture(lambda: mix2_setup(g))
        half = len(setup) // 2
        while setup[half][0] != "i" or setup[half][1].startswith(("s_addc", "s_subb", "s_cselect")):
            half += 1
        a.weave(d1, a.capture(lambda: w2_tr(g, 0, 5)) + setup[:half])
        a("s_waitcnt lgkmcnt(0)")
        d2 = [a.capture(lambda i=i: w2_dma(g, i >> 2, i & 3)) for i in range(36, 44)]
        a.weave(d2, setup[half:])


def mix2_setup(g):
    a = g.a
    g.srd(32, P_B2, 4096)
    a(f"v_lshrrev_b32 v10, 3, v0\ns_lshl_b32 s72, {sR}, 7\nv_lshl_add_u32 v11, v10, 1, s72")
    a(f"buffer_load_ushort v12, v11, {SRD_T}, 0 offen\nbuffer_load_ushort v13, v11, {SRD_T}, 0 offen offset:64")
    a(f"s_mul_i32 s72, {sCQ}, {UC}\ns_lshl_b32 s73, {sL}, 21\ns_add_u32 s72, s72, s73\ns_add_u32 s72, s72, {WS_U}")
    g.srd(24, P_WS, UC, "s72")
    a("v_and_b32 v3, 15, v1\nv_lshrrev_b32 v4, 4, v1\nv_and_b32 v5, 7, v1")
    a(f"s_lshl_b32 s72, {sWV}, 14")
    for dt in range(4):
        a(f"v_add_u32 v6, {4*dt}, v4\nv_xor_b32 v6, v6, v5\nv_lshlrev_b32 v6, 4, v6\nv_lshl_add_u32 v6, v3, 8, v6\nv_add_u32 v{14+dt}, s72, v6")
    a("v_and_b32 v3, 7, v0\nv_and_b32 v4, 7, v10\nv_lshlrev_b32 v5, 1, v3")
    for e in range(2):
        a(f"v_add_u32 v6, {e}, v5\nv_xor_b32 v6, v6, v4\nv_lshlrev_b32 v6, 4, v6\nv_lshl_add_u32 v{18+e}, v10, 8, v6")
    a(f"v_mul_u32_u24 v20, 144, v10\nv_lshl_add_u32 v20, v3, 4, v20\nv_add_u32 v20, {L_R}, v20")
    a(f"v_lshlrev_b32 v21, 10, v10\nv_lshl_add_u32 v21, v3, 4, v21")
    if not INB:
        u_producers(g, "v9", 0)
        g.vflag("v9", PH_U)


def mix2(g):
    a = g.a
    a.c("======== token mixing 2: x += (u W2 + b2)^T")
    if g.layer == 0 and "code2" in OPT and g.stop_after is None:
        g.code_warmup2()
    if "noweave2" in OPT:
        mix2_setup(g)
    if INB:
        a(f"s_mul_i32 s85, {sWV}, {11*4096}\nv_lshlrev_b32 v9, 8, v1\nv_add_u32 v9, 240, v9")
        a(f"s_add_u32 s43, s85, 16384\ns_add_u32 s48, s85, 32768\ns_mov_b32 {sREDO}, 0")
        a("v_cmp_gt_u32 vcc, 48, v1\nv_mov_b32 v8, 0x7ff00000\nv_cndmask_b32 v8, v8, v9, vcc")
        redo = g.lab("m2r")
        a.label(redo, reset=False)
        sentinel(g, [("v9", "s85"), ("v9", "s43"), ("v8", "s48")], SRD_U)
        a(f"s_mov_b64 {sACC}, 0")
    else:
        g.poll("v9", "0xff")
    g.stamp(17)
    UD = next((int(o[2:]) for o in OPT if o.startswith("ud")), 14)
    UB, ACC = 64, 192
    a(f"s_mul_i32 s85, {sWV}, {11*4096}")

    def uload(i):
        st, dt = i >> 2, i & 3
        if dt == 0:
            a(f"s_add_u32 s84, s85, {st*4096}")
        a(f"buffer_load_dwordx4 {vr(UB + 4*i)}, v2, {SRD_U}, s84 offen offset:{dt*1024} sc1")
    a.wait_tag("D2_5", "D2_9", emit=False)
    a.weave([a.capture(lambda i=i: uload(i)) for i in range(UD)], a.capture(lambda: (w2_tr(g, 5, 9), w2_tr(g, 9, 11))))
    for st in range(11):
        for dt in range(4):
            for k in range(4):
                acc = ACC + (dt*4 + k) * 4
                c = "0" if st == 0 else ar(acc)
                a(f"v_mfma_f32_16x16x32_bf16 {ar(acc)}, {vr(UB + (st*4+dt)*4)}, {ar((st*4+k)*4)}, {c}")
                if INB and k == 0:
                    a(f"v_cmp_eq_u32 vcc, -1, v{UB + (st*4+dt)*4}\ns_or_b64 {sACC}, {sACC}, vcc")
                if k == 1 and st*4 + dt + UD < 44:
                    uload(st*4 + dt + UD)
    if INB:
        redo_end(g, redo)
    g.stamp(18)
    for dt in range(4):
        for k in range(4):
            a(f"ds_write_b128 v{14+dt}, {ar(ACC + (dt*4+k)*4)} offset:{L_X + k*4096}")
    a("s_waitcnt lgkmcnt(0)\ns_barrier")
    a(f"s_lshl_b32 s72, {sR}, 16\ns_lshl_b32 s73, {sCQ}, 7\ns_add_u32 s72, s72, s73")
    for half in range(2):
        B = 64 + half * 48
        for k in range(4):
            for e in range(2):
                a(f"ds_read_b128 {vr(B + k*8 + e*4)}, v{18+e} offset:{L_X + k*16384 + half*8192}")
        a(f"ds_read_b128 {vr(B+32)}, v20 offset:{half*4608}")
    def epilogue(first):
        ring = []
        if first:
            g.q_addr_w(46)
            g.w_dma_setup("s80", "s81", "s82")
            ring = [(s_, n) for s_ in range(5) for n in range(4)]

        def ringdma(k=1):
            for _ in range(k):
                if ring:
                    s_, n = ring.pop(0)
                    g.w_dma(s_, only=n, sg="s80", sl="s81", st="s82", va="v46")
        for half in range(2):
            B = 64 + half * 48
            a(f"v_lshlrev_b32 v22, 16, v{12+half}")
            for i in range(8):
                a(f"v_add_f32 v{B+i}, v{B+i}, v{B+8+i}\nv_add_f32 v{B+16+i}, v{B+16+i}, v{B+24+i}")
                if i % 2 == 1:
                    ringdma()
            for i in range(8):
                a(f"v_add_f32 v{B+i}, v{B+i}, v{B+16+i}")
            ringdma()
            for i in range(8):
                a(f"v_add_f32 v{B+i}, v{B+i}, v22")
            ringdma()
            for k in range(4):
                a(f"v_lshlrev_b32 v{B+8+2*k}, 16, v{B+32+k}\nv_and_b32 v{B+9+2*k}, 0xffff0000, v{B+32+k}")
            ringdma()
            for i in range(8):
                a(f"v_add_f32 v{B+i}, v{B+i}, v{B+8+i}")
            ringdma()
            for k in range(4):
                a(f"v_cvt_pk_bf16_f32 v{B+36+k}, v{B+2*k}, v{B+2*k+1}")
            if first:
                a(f"ds_write_b128 v20, {vr(B+36)} offset:{half*4608}")
                g.dual(lambda m, B=B: a(f"buffer_store_dwordx4 {vr(B+36)}, v21, {SRD_DST}, s72 offen {m}", tag="Xst"))
            else:
                om = "" if "outplain" in OPT else "sc1"
                a(f"buffer_store_dwordx4 {vr(B+36)}, v21, {SRD_DST}, s72 offen {om}")
            if half == 0:
                a("s_add_u32 s72, s72, 32768")
            if first:
                a(f"v_add_f32 v{B+40}, v{B}, v{B+1}\nv_mul_f32 v{B+41}, v{B}, v{B}\nv_fmac_f32 v{B+41}, v{B+1}, v{B+1}")
                for i in range(2, 8):
                    a(f"v_add_f32 v{B+40}, v{B+40}, v{B+i}\nv_fmac_f32 v{B+41}, v{B+i}, v{B+i}")
                ringdma(2)
        if first:
            ringdma(20)
            a("v_mov_b32 v12, v46")
            g.row_stats_store([104, 152], 1, local=True)
    epilogue(g.layer == 0)


def drain(g, tag, n, sreg, val):
    a = g.a
    lw = g.lab("dr")
    a(f"s_cmp_eq_u32 {sreg}, {val}\ns_cbranch_scc1 {lw}")
    a.raw("  s_waitcnt vmcnt(0)")
    a.label(lw, reset=False)
    a.raw(f"  s_waitcnt vmcnt({n})")
    a.wait_tag(tag, emit=False)


def o_drain_publish(g):
    a = g.a
    a.wait_tag("Ost")
    g.publish(PH_O, local=True, also=PH_P if g.layer == 0 else None)


def rest(g):
    a = g.a
    attn_setup(g)
    g.stamp(5)
    attn(g)
    a("s_barrier")
    o_drain_publish(g)
    g.stamp(9)
    if g.stop("a"):
        return True
    o_flags(g)
    oproj(g)
    early_w1(g, 28, 40)
    if not INB:
        drain(g, "Hst", 12, sM1, 1)
        g.publish(PH_H)
    g.stamp(13)
    if g.stop("o"):
        return True
    mix1(g)
    g.stamp(16)
    if g.stop("m1"):
        return True
    mix2(g)
    g.stamp(19)
    if g.stop("m2"):
        return True
    if g.layer == 1:
        a("s_endpgm")
        a.assume_clean()
        return True
    g.srd(4, P_WS, 2 << 20, WS_X2)
    g.srd(20, P_OUT, 2 << 20)
    a(f"s_mov_b32 {sL}, 1")
    a("s_waitcnt lgkmcnt(0)")
    return False


def finish(g):
    a = g.a
    a("s_branch L_end")
    a.assume_clean()
    for lab, back, fn in g.late:
        a.label(lab, reset=False)
        fn()
        a(f"s_branch {back}")
        a.assume_clean()
    for stub, back, always in g.stubs:
        a.label(stub, reset=False)
        a("s_nop 7")
        for x in always:
            a(x)
        a(f"s_nop 11\ns_branch {back}")
        a.assume_clean()
    for lab, back, texts in g.tails:
        a.label(lab, reset=False)
        for x in texts:
            for line in x.split("\n"):
                if line.startswith("@"):
                    a.label(line[1:], reset=False)
                else:
                    a(line)
        a(f"s_branch {back}")
        a.assume_clean()
```

```python
import math
from gen import *

NEG = f32(-1e30)
import os
OPT = set(os.environ.get("KOPT", "").split(","))
UDW = next((int(o[3:]) for o in OPT if o.startswith("w2e")), 20)
NOW2 = "now2wu" in OPT or any(o.startswith("w2p2") for o in OPT)
ROT = "rot" in OPT
INB = "inb" in OPT
sHB, sUO, sACC, sREDO = "s36", 37, "s[40:41]", "s42"


def ar(b, n=4):
    return f"a[{b}:{b+n-1}]"


def vr(b, n=4):
    return f"v[{b}:{b+n-1}]"


QA, QB = 224, 228
SBUF = (64, 80, 96, 112)
NEGM = {"A": 128, "B": 144}
OACC = {"A": 160, "B": 176}
PBUF = {"A": 192, "B": 200}
CDIAG, CFAR, ANDD, ANDF = 208, 232, 32, 40
AK0, AV0 = 0, 72
L_KV = L_RING


def kfrag(b):
    return AK0 + b * 4


def vfrag(b, half):
    return AV0 + ((b & 1) * 2 + half) * 4


def attn_setup(g):
    a = g.a
    a.c("======== attention constants")
    a("v_and_b32 v3, 31, v1\nv_lshrrev_b32 v4, 5, v1\nv_lshlrev_b32 v4, 2, v4\nv_sub_u32 v3, v3, v4")
    a(f"v_mov_b32 v48, 0\nv_mov_b32 v49, {NEG}\nv_mov_b32 v50, 0xffff\nv_mov_b32 v51, 0xffff0000")
    for i in range(16):
        ci = (i & 3) + 8 * (i >> 2)
        sp = f"s[{72 + 2*(i % 4)}:{73 + 2*(i % 4)}]"
        a(f"v_cmp_le_i32 {sp}, {ci}, v3")
        a(f"v_mov_b32 v{OACC['A']+i}, 0\nv_mov_b32 v{OACC['B']+i}, 0")
        a(f"v_cndmask_b32 v{CDIAG+i}, v49, v48, {sp}\nv_cndmask_b32 v{CFAR+i}, v48, v49, {sp}")
        a(f"v_cndmask_b32 v{52 + (i & 1)}, v48, v{50 + (i & 1)}, {sp}")
        if i & 1:
            a(f"v_or_b32 v{ANDD + i//2}, v52, v53\nv_not_b32 v{ANDF + i//2}, v{ANDD + i//2}")
    for i in range(8):
        a(f"v_mov_b32 v{PBUF['A']+i}, 0\nv_mov_b32 v{PBUF['B']+i}, 0")
    for k in range(AV0, AV0 + 16):
        a(f"v_accvgpr_write_b32 a{k}, v48")
    a("v_mov_b32 v54, 0x3f803f80\ns_mov_b32 exec_lo, 0x00110000\ns_mov_b32 exec_hi, 0x00110000")
    for k in range(AV0, AV0 + 16):
        a(f"v_accvgpr_write_b32 a{k}, v54")
    a("s_mov_b64 exec, -1")


def warmup_text(srd, dst):
    return (f"s_lshl_b32 s72, s2, 2\ns_add_u32 s72, s72, {sWV}\ns_mul_i32 s73, s72, {43*128}\nv_lshlrev_b32 v7, 7, v1\n"
            f"s_mov_b32 exec_lo, -1\ns_mov_b32 exec_hi, 0x7ff\n"
            f"buffer_load_dword {dst}, v7, {srd}, s73 offen\ns_mov_b64 exec, -1")


def warmup(g, srd, dst):
    g.a(warmup_text(srd, dst))


def team_check(g):
    a = g.a
    top, ok = g.lab("tc"), g.lab("tco")
    a(f"s_lshl_b32 s72, {sR}, 7\ns_add_u32 s72, s72, {WS_XC}\nv_lshlrev_b32 v3, 4, v1\ns_mov_b32 {sCNT}, 0\ns_mov_b64 exec, 0xff")
    a.label(top, reset=False)
    a(f"buffer_load_dwordx4 v[24:27], v3, {SRD_WS}, s72 offen sc1\ns_waitcnt vmcnt(0)")
    a(f"v_cmp_ne_u64 vcc, {sNP}, v[26:27]\ns_cbranch_vccz {ok}")
    a(f"s_add_u32 {sCNT}, {sCNT}, 1\ns_cmp_lt_u32 {sCNT}, {POLL_LIMIT}\ns_cbranch_scc1 {top}\ns_branch L_fail")
    a.label(ok, reset=False)
    a(f"v_cmp_ne_u32 vcc, s1, v24\ns_cmp_eq_u64 vcc, 0\ns_cselect_b32 {sFAST}, 1, 0\ns_mov_b64 exec, -1")


def x2_touch_text():
    return ("v_lshrrev_b32 v6, 3, v0\nv_and_b32 v3, 7, v0\nv_lshlrev_b32 v6, 10, v6\nv_lshl_add_u32 v6, v3, 4, v6\n"
            f"s_lshl_b32 s72, {sR}, 16\ns_lshl_b32 s73, {sCQ}, 7\ns_add_u32 s72, s72, s73\n"
            f"s_add_u32 s73, s72, 32768\n"
            f"buffer_load_dword v23, v6, {SRD_DST}, s72 offen sc1\nbuffer_load_dword v24, v6, {SRD_DST}, s73 offen sc1\n"
            f"s_add_u32 s72, {sR}, 32\ns_lshl_b32 s72, s72, 3\ns_add_u32 s72, s72, {sCQ}\ns_lshl_b32 s72, s72, 10\ns_add_u32 s72, s72, {WS_ST2}\n"
            f"buffer_load_dword v25, v2, {SRD_WS}, s72 offen sc1")


def u_offsets(g, dst):
    a = g.a
    a(f"s_mul_i32 s76, {sWV}, 3\ns_mul_i32 s77, {sC1}, {UC}\ns_lshl_b32 s73, {sL}, 21\ns_add_u32 s77, s77, s73\ns_add_u32 s77, s77, {WS_U}")
    for i in range(3):
        a(f"s_add_u32 s72, s76, {i}\ns_lshr_b32 s73, s72, 1\ns_and_b32 s72, s72, 1")
        a(f"s_mul_i32 s74, {sJ1}, 6\ns_add_u32 s74, s74, s73\ns_lshr_b32 s75, s74, 2\ns_and_b32 s79, s74, 3")
        a(f"s_lshl_b32 s75, s75, 12\ns_lshl_b32 s79, s79, 8\ns_add_u32 s75, s75, s79\ns_lshl_b32 s72, s72, 11\ns_add_u32 s75, s75, s72")
        a(f"s_add_u32 s75, s75, s77\ns_cmp_ge_u32 s74, 172\ns_cselect_b32 s79, 0x70000000, 0\ns_or_b32 s75, s75, s79")
        a(f"s_cmp_eq_u32 {sM1}, 0\ns_cselect_b32 s{dst+i}, 0x70000000, s75")


def inband_addresses(g):
    a = g.a
    a(f"s_lshl_b32 s72, {sCQ}, 6\ns_lshl_b32 s73, {sR}, 1\ns_add_u32 s72, s72, s73\ns_add_u32 s72, s72, {sTB}\ns_lshl_b32 s72, s72, 2")
    a(f"s_lshl_b32 s73, {sP}, 1\ns_add_u32 s72, s72, s73\ns_lshl_b32 s72, s72, 10\ns_lshl_b32 s73, {sL}, 21\ns_add_u32 s72, s72, s73\ns_add_u32 {sHB}, s72, {WS_H}")
    a("s_mov_b64 s[44:45], s[74:75]")
    u_offsets(g, sUO)
    a("s_mov_b64 s[74:75], s[44:45]")
    a("v_lshrrev_b32 v25, 5, v1\nv_lshlrev_b32 v25, 10, v25\nv_bfe_u32 v7, v1, 1, 4\nv_lshl_add_u32 v25, v7, 4, v25")
    a("v_mov_b32 v28, -1\nv_mov_b32 v29, -1\nv_mov_b32 v30, -1\nv_mov_b32 v31, -1")


def own_tile_dma(g):
    a = g.a
    a(f"s_lshl_b32 s92, {sCQ}, 1\ns_add_u32 s92, s92, {sP}\ns_lshl_b32 s92, s92, 6\ns_lshl_b32 s93, {sR}, 1\ns_add_u32 s92, s92, s93")
    a(f"s_add_u32 s92, s92, {sTB}\ns_lshl_b32 s92, s92, 12\ns_add_u32 s92, s92, {WS_KV + g.layer * (4 << 20)}")
    a(f"s_mul_i32 s93, {sP}, 40960\ns_lshl_b32 s94, {sTB}, 12\ns_add_u32 s93, s93, s94\ns_add_u32 s93, s93, {L_KV + 8*4096}")
    for q4 in range(4):
        a(f"s_add_u32 m0, s93, {q4*1024}\ns_add_u32 s94, s92, {q4*1024}")
        a(f"buffer_load_dwordx4 v2, {SRD_WS}, s94 offen sc1 lds", tag="Kd")


def attn(g):
    a = g.a
    a.c("======== attention")
    a(f"s_sub_u32 s72, {sR}, 4\nv_add_u32 v8, s72, v1\nv_cmp_le_i32 s[74:75], 0, v8")
    g.wg_of("v9", "v8", sCQ)
    g.vflag("v9", PH_KV)
    a("s_and_b64 s[74:75], s[74:75], 0xf")
    a(f"s_lshl_b32 s76, {sR}, 1\ns_add_u32 s76, s76, {sTB}\ns_sub_u32 s77, 8, s76\ns_max_i32 s77, s77, 0")
    a(f"s_lshl_b32 s78, {sCQ}, 1\ns_add_u32 s78, s78, {sP}\ns_lshl_b32 s78, s78, 18\ns_lshl_b32 s79, {sL}, 22")
    a(f"s_add_u32 s78, s78, s79\ns_add_u32 s78, s78, {WS_KV}")
    a(f"s_lshl_b32 s79, {sTB}, 2\ns_lshl_b32 s80, {sR}, 1\ns_add_u32 s80, s80, s79\ns_sub_u32 s80, s80, 8")
    for i in range(4):
        a(f"s_add_i32 s{81+i}, s80, {i}\ns_max_i32 s{81+i}, s{81+i}, 0\ns_lshl_b32 s{81+i}, s{81+i}, 12\ns_add_u32 s{81+i}, s{81+i}, s78")
    a(f"s_mul_i32 s86, {sP}, 40960\ns_lshl_b32 s87, {sTB}, 14\ns_add_u32 s87, s87, s86\ns_add_u32 s87, s87, {L_KV}")
    if "ownlate" in OPT:
        own_tile_dma(g)
    a(f"s_lshl_b32 s88, {sTB}, 12\ns_add_u32 s88, s88, s86\ns_add_u32 s88, s88, {L_KV}\nv_add_u32 v10, s88, v2")
    a("v_and_b32 v8, 15, v1\nv_lshlrev_b32 v8, 4, v8\nv_lshrrev_b32 v7, 5, v1\nv_lshl_add_u32 v8, v7, 8, v8\nv_add_u32 v11, s88, v8")
    a("s_mov_b32 s90, 0xffff\ns_mov_b32 s91, 0xffff")
    a("v_bfe_u32 v20, v1, 4, 1\nv_lshlrev_b32 v20, 14, v20\nv_and_b32 v7, 15, v1\nv_lshl_add_u32 v20, v7, 4, v20")
    a("v_lshrrev_b32 v7, 5, v1\nv_lshl_add_u32 v20, v7, 8, v20")
    a(f"s_lshl_b32 s72, {sR}, 2\ns_lshl_b32 s73, {sTB}, 1\ns_add_u32 s72, s72, s73\ns_lshl_b32 s72, s72, 4")
    a(f"s_lshl_b32 s73, {sCQ}, 1\ns_add_u32 s72, s72, s73\ns_add_u32 s72, s72, {sP}\ns_lshl_b32 s72, s72, 10")
    a(f"s_lshl_b32 s73, {sL}, 21\ns_add_u32 s72, s72, s73\ns_add_u32 s89, s72, {WS_OF}")
    if INB:
        inband_addresses(g)
    a("s_mov_b64 s[76:77], s[74:75]")
    l0_only(g, "l0p", lambda: (team_check(g), p1_setup(g)))
    wo = g.wo_dma()
    wo_early = g.layer == 1 and "wokv" in OPT
    if wo_early:
        for n in range(16):
            a(wo(n))
    g.poll("v9", "s[76:77]")
    a(f"s_lshl_b32 s76, {sR}, 1\ns_add_u32 s76, s76, {sTB}\ns_sub_u32 s77, 8, s76\ns_max_i32 s77, s77, 0")
    g.stamp(6)
    def kvdma(i, h, part):
        return (f"s_add_u32 m0, s87, {i*4096 + h*2048 + part}\ns_add_u32 s72, s{81+i}, {h*2048 + part}\n"
                f"buffer_load_dwordx4 v2, {SRD_WS}, s72 offen sc1 lds")
    for i in range(4):
        for h in range(2):
            a(kvdma(i, h, 0), tag="Kd")
    vd = [kvdma(i, h, 1024) for i in range(4) for h in range(2)]
    PB = next((int(o[2:]) for o in OPT if o.startswith("pb")), 4)
    early = "plate" not in OPT and (g.layer == 0 or "vp1" not in OPT)
    if early:
        for x in vd:
            a(x, tag="Vd")
        if g.layer == 0 and PB is None:
            p1_loads(g)
    heads = ("A", "B")
    q = {"A": QA, "B": QB}
    mx = {"A": (48, 49), "B": (50, 51)}

    def kread(b):
        t, h = b >> 1, b & 1
        return f"ds_read_b128 {ar(kfrag(b))}, v10 offset:{t*4096 + h*2048}"

    def vread(b, half):
        t, h = b >> 1, b & 1
        return f"ds_read_b128 {ar(vfrag(b, half))}, v11 offset:{t*4096 + h*2048 + 1024 + half*512}"

    def qk(b, c):
        return f"v_mfma_f32_32x32x16_bf16 {vr(SBUF[b & 3],16)}, {ar(kfrag(b))}, {vr(q[heads[b & 1]])}, {c}"

    def cmask(t):
        return vr(CFAR, 16) if t == 0 else vr(CDIAG, 16) if t == 8 else "0"

    for h in heads:
        a(f"v_mov_b32 v{mx[h][0]}, {NEG}\nv_mov_b32 v{mx[h][1]}, {NEG}")
    a.wait_tag("Kd")
    a("s_barrier")
    def passes(skips, layer=g.layer):
        keep, g.layer = g.layer, layer
        a.c("pass 1: true row maximum over the masked window")
        for b in range(4):
            a(kread(b))
        a(qk(0, cmask(0)))
        a(kread(4))
        a(qk(1, cmask(0)))
        for b in range(18):
            t, s_, h = b >> 1, SBUF[b & 3], heads[b & 1]
            if g.layer == 0 and ((b == 8 and not early) or (early and b == PB)):
                p1_loads(g)
            if skips and t < 8 and b % 2 == 0:
                stub, back = g.lab("p1s"), g.lab("p1b")
                always = [x for bb in (b, b + 1) for x in ([kread(bb + 5)] if bb + 5 < 18 else []) + ([qk(bb + 2, cmask((bb + 2) >> 1))] if bb + 2 < 18 else [])
                          + ([vd[bb]] if bb < 8 and not early else []) + ([wo(bb - 2)] if bb >= 2 and g.layer == 1 and not wo_early else [])]
                a(f"s_cmp_gt_u32 s77, {t}\ns_cbranch_scc1 {stub}")
            if b + 5 < 18:
                a(kread(b + 5))
            if b + 2 < 18:
                a(qk(b + 2, cmask((b + 2) >> 1)))
            if b < 8 and not early:
                a(vd[b], tag="Vd")
            for i in range(8):
                m = mx[h][i & 1]
                a(f"v_max3_f32 v{m}, v{m}, v{s_+2*i}, v{s_+2*i+1}")
                if i == 3 and b >= 2 and g.layer == 1 and not wo_early:
                    a(wo(b - 2))
            if skips and t < 8 and b % 2 == 1:
                a.label(back, reset=False)
                g.stubs.append((stub, back, ["s_waitcnt lgkmcnt(0)"] + [y for x in always for y in (x, "s_waitcnt lgkmcnt(0)")]))
        for h in heads:
            m0, m1 = mx[h]
            a(f"v_max_f32 v{m0}, v{m0}, v{m1}\nv_mov_b32 v{m1}, v{m0}")
        for h in heads:
            m0, m1 = mx[h]
            a(f"v_permlane32_swap_b32 v{m0}, v{m1}")
        for h in heads:
            m0, m1 = mx[h]
            a(f"v_max_f32 v{m0}, v{m0}, v{m1}\nv_xor_b32 v{m0}, 0x80000000, v{m0}")
        for i in range(16):
            a(f"v_mov_b32 v{NEGM['A']+i}, v{mx['A'][0]}")
        a(qk(0, vr(NEGM["A"], 16)))
        for i in range(16):
            a(f"v_mov_b32 v{NEGM['B']+i}, v{mx['B'][0]}")
        a.wait_tag("Vd")
        a("s_barrier")
        a(f"buffer_load_dword v21, v20, {SRD_WS}, s89 offen sc1\nbuffer_load_dword v23, v20, {SRD_WS}, s89 offen offset:512 sc1")
        a(f"s_lshl_b32 s72, {sL}, 5\ns_add_u32 s72, s72, {sR}\ns_lshl_b32 s72, s72, 3\ns_add_u32 s72, s72, {sCQ}\ns_lshl_b32 s72, s72, 10")
        a(f"s_lshl_b32 s73, {sWV}, 8\ns_add_u32 s72, s72, s73\ns_add_u32 s72, s72, {WS_ST}")
        a(f"s_mov_b64 exec, 0xffff\nbuffer_load_dword v22, v2, {SRD_WS}, s72 offen sc1\ns_mov_b64 exec, -1")
        g.stamp(7)
        a.c("pass 2: P = exp2(S - m), O += V^T P; block b exponentiates S_b, starts S_{b+1} and finishes block b-1")

        def s2(b):
            return SBUF[b & 1]

        def qk2(b):
            h = heads[b & 1]
            return f"v_mfma_f32_32x32x16_bf16 {vr(s2(b),16)}, {ar(kfrag(b))}, {vr(q[h])}, {vr(NEGM[h],16)}"

        def pv(b, half):
            h = heads[b & 1]
            o, p = OACC[h], PBUF[h]
            return f"v_mfma_f32_32x32x16_bf16 {vr(o,16)}, {ar(vfrag(b, half))}, {vr(p+4*half)}, {vr(o,16)}"

        wd_cur = []
        for b in range(18):
            t, h = b >> 1, heads[b & 1]
            nxt = [qk2(b + 1)] if b + 1 < 18 else []
            prv = [pv(b - 1, 0), pv(b - 1, 1)] if b >= 1 else []
            vl = ["s_mov_b64 exec, s[90:91]\n" + vread(b, 0) + "\n" + vread(b, 1) + "\ns_mov_b64 exec, -1"]
            TB0 = next((int(o[2:]) for o in OPT if o.startswith("pt")), 10 if early else 12)
            if g.layer == 0 and b == TB0:
                p1_finish(g)
            W2B = next((int(o[4:]) for o in OPT if o.startswith("w2p2")), None)
            if g.layer == 0 and b == W2B:
                a(warmup_text(SRD_W2P, "v24"))
            per = 3 if TB0 >= 12 else 2
            wd = [wo(i) for i in range(per * (b - TB0), min(per * (b - TB0) + per, 16))] if g.layer == 0 and b >= TB0 else []
            if INB and b == 2:
                for e in range(2):
                    a(f"buffer_store_dwordx4 v[28:31], v2, {SRD_WS}, {sHB} offen offset:{e*1024} sc1")
            if INB and b == 4:
                a("s_mov_b32 exec_lo, 0x55555555\ns_mov_b32 exec_hi, 0x55555555")
                for i in range(3):
                    a(f"buffer_store_dwordx4 v[28:31], v25, {SRD_WS}, s{sUO+i} offen sc1")
                a("s_mov_b64 exec, -1")
            if skips and t < 8 and b % 2 == 0:
                stub, back = g.lab("sk"), g.lab("bk")
                a(f"s_cmp_gt_u32 s77, {t}\ns_cbranch_scc1 {stub}")
            s_, p = s2(b), PBUF[h]
            extra = {1: nxt[:1], 2: wd[:1], 4: prv[:1], 7: wd[1:2], 9: prv[1:2], 11: vl, 13: wd[2:3]}
            wd_prev, wd_cur = (wd_cur if b else []), wd
            for i in range(16):
                a(f"v_exp_f32 v{s_+i}, v{s_+i}")
                if i >= 2 and i % 2 == 0:
                    k = i // 2 - 1
                    a(f"v_cvt_pk_bf16_f32 v{p+k}, v{s_+2*k}, v{s_+2*k+1}")
                for x in extra.get(i, []):
                    a(x)
            a(f"s_nop 0\nv_cvt_pk_bf16_f32 v{p+7}, v{s_+14}, v{s_+15}")
            if t in (0, 8):
                msk = ANDF if t == 0 else ANDD
                for k in range(8):
                    a(f"v_and_b32 v{p+k}, v{msk+k}, v{p+k}")
            if skips and t < 8 and b % 2 == 1:
                a.label(back, reset=False)
                g.stubs.append((stub, back, nxt + wd_prev + wd_cur))
        a(pv(17, 0)); a(pv(17, 1))
        g.layer = keep
    if "fastattn" not in OPT:
        passes(True)
    else:
        gen_, join = g.lab("ag"), g.lab("aj")
        a(f"s_cmp_lt_u32 {sR}, 4\ns_cbranch_scc1 {gen_}")
        a.snap(gen_)
        passes(False)
        a.label(join, reset=False)
        g.late.append((gen_, join, lambda: (a.restore(gen_), passes(True))))
    g.stamp(8)
    for hi, h in enumerate(heads):
        o = OACC[h]
        a(f"v_rcp_f32 v52, v{o+8}")
        for i in range(8):
            a(f"v_mul_f32 v{o+i}, v52, v{o+i}")
        for k in range(4):
            a(f"v_cvt_pk_bf16_f32 v{o+k}, v{o+2*k}, v{o+2*k+1}")

    def ost(m):
        for hi, h in enumerate(heads):
            a(f"buffer_store_dwordx4 {vr(OACC[h])}, v20, {SRD_WS}, s89 offen offset:{hi*512} {m}", tag="Ost")
    g.dual(ost)


L_STG = L_RING + 10240
L_STG2 = L_RING
V_W1D, V_W1R, V_W2D, V_W2R = 52, 56, 40, 42


PA1 = 96
V_P1 = 12


def p1_setup(g):
    a = g.a
    a("s_lshr_b32 s72, s2, 2\ns_and_b32 s73, s2, 3")
    a("s_mul_i32 s74, s73, 7\ns_min_u32 s75, s73, 1\ns_add_u32 s74, s74, s75")
    a("s_cmp_eq_u32 s73, 0\ns_cselect_b32 s75, 8, 7")
    a(f"s_mul_i32 s101, s72, {32*2752}\ns_mul_i32 s73, s74, 96\ns_add_u32 s101, s101, s73\ns_mul_i32 s75, s75, 6")
    a("s_mov_b32 s72, 1311\ns_mov_b32 s73, 2752")
    for n in range(7):
        a(f"s_lshl_b32 s74, {sWV}, 6\ns_add_u32 s74, s74, {256*n}\nv_add_u32 v3, s74, v1")
        a("v_mul_lo_u32 v4, v3, s72\nv_lshrrev_b32 v4, 16, v4\nv_mul_u32_u24 v5, 50, v4\nv_sub_u32 v5, v3, v5")
        a("v_mul_lo_u32 v6, v4, s73\nv_lshl_add_u32 v6, v5, 4, v6")
        a("v_cmp_gt_u32 vcc, s75, v5\nv_cmp_gt_u32 s[78:79], 32, v4\ns_and_b64 vcc, vcc, s[78:79]")
        a(f"v_mov_b32 v5, 0x7ff00000\nv_cndmask_b32 v{V_P1+n}, v5, v6, vcc")


def p1_loads(g):
    a = g.a
    for n in range(7):
        a(f"buffer_load_dwordx4 {ar(PA1+4*n)}, v{V_P1+n}, {SRD_W1}, s101 offen")


def p1_finish(g):
    a = g.a
    L1 = L_X
    a("s_lshr_b32 s72, s2, 2\ns_and_b32 s73, s2, 3")
    a("s_mul_i32 s74, s73, 7\ns_min_u32 s75, s73, 1\ns_add_u32 s74, s74, s75")
    a("s_cmp_eq_u32 s73, 0\ns_cselect_b32 s75, 8, 7")
    a(f"s_lshl_b32 s80, {sWV}, 10\ns_add_u32 s80, s80, {L1}\nv_add_u32 v120, s80, v2")
    for n in range(7):
        a(f"ds_write_b128 v120, {ar(PA1+4*n)} offset:{n*4096}")
    a("v_lshrrev_b32 v121, 4, v1\nv_lshlrev_b32 v121, 3, v121\nv_bfe_u32 v122, v1, 2, 2\nv_add_u32 v121, v121, v122\nv_and_b32 v122, 3, v1")
    a(f"v_mul_u32_u24 v123, 800, v121\nv_lshl_add_u32 v123, v122, 3, v123\ns_lshl_b32 s80, {sWV}, 5\ns_add_u32 s80, s80, {L1}\nv_add_u32 v123, s80, v123")
    a("s_waitcnt lgkmcnt(0)\ns_barrier")
    for n in range(6):
        for rd in range(2):
            a(f"ds_read_b64_tr_b16 v[{96+4*n+2*rd}:{97+4*n+2*rd}], v123 offset:{128*n + rd*3200}")
    for n in range(6):
        a(f"s_add_u32 s80, {sWV}, {4*n}\ns_mul_i32 s81, s80, 43\ns_lshr_b32 s81, s81, 7\ns_mul_i32 s82, s81, 3\ns_sub_u32 s82, s80, s82")
        a("s_cmp_lt_u32 s81, s75\ns_cselect_b32 s85, 0, 0x70000000")
        a("s_add_u32 s81, s81, s74\ns_lshl_b32 s81, s81, 6\ns_add_u32 s81, s81, s72\ns_mul_i32 s81, s81, 3\ns_add_u32 s81, s81, s82")
        a(f"s_lshl_b32 s81, s81, 10\ns_add_u32 s81, s81, {WS_W1P}\ns_or_b32 s81, s81, s85")
        a(f"buffer_store_dwordx4 {vr(96+4*n)}, v2, {SRD_WS}, s81 offen sc1")
    a("s_waitcnt lgkmcnt(0)\ns_barrier")


def early_w1(g, i0, i1, check=False):
    a = g.a
    skip = g.lab("e1")
    a(f"s_cmp_eq_u32 {sM1}, 0\ns_cbranch_scc1 {skip}")
    with a.cond("m1"):
        if check:
            l0_only(g, "l0c", lambda: (p1_check(g), w1_loads(g, 0, i0)))
        w1_loads(g, i0, i1)
    a.label(skip, reset=False)


def l0_only(g, name, fn):
    if g.layer == 0:
        fn()


def p1_check(g):
    a = g.a
    a(f"s_cmp_ge_u32 {sJ1}, 8\ns_cselect_b32 s72, 1, 0\ns_cmp_ge_u32 {sJ1}, 15\ns_addc_u32 s72, s72, 0")
    a(f"s_cmp_ge_u32 {sJ1}, 22\ns_addc_u32 s72, s72, 0")
    a(f"s_lshl_b32 s73, {sWV}, 4\nv_add_u32 v9, s73, v1\nv_lshl_add_u32 v9, v9, 2, s72")
    a(f"v_lshlrev_b32 v9, 7, v9\nv_add_u32 v9, {WS_FLAG + PH_P*2*256*128}, v9")
    g.poll("v9", "0xffff")


def w1_step_addr(g, dst, base, st):
    a = g.a
    if ROT:
        a(f"s_lshr_b32 {dst}, s2, 5\ns_lshl_b32 {dst}, {dst}, 1\ns_add_u32 {dst}, {dst}, {st}\ns_and_b32 {dst}, {dst}, 15\ns_mul_i32 {dst}, {dst}, 3072\ns_add_u32 {dst}, {dst}, {base}")
    else:
        a(f"s_add_u32 {dst}, {base}, {st*3072}")


def w1_loads(g, i0, i1):
    a = g.a
    a(f"s_lshl_b32 s72, {sJ1}, 6\ns_lshl_b32 s73, {sWV}, 4\ns_add_u32 s72, s72, s73\ns_mul_i32 s72, s72, 3072\ns_add_u32 s72, s72, {WS_W1P}")
    for i in range(i0, i1):
        st, ft = divmod(i, 3)
        if ft == 0 or i == i0:
            w1_step_addr(g, "s73", "s72", st)
        a(f"buffer_load_dwordx4 {ar(4*i)}, v2, {SRD_WS}, s73 offen offset:{ft*1024} sc1")


def m1_only(g, fn):
    a = g.a
    skip = g.lab("m1s")
    a(f"s_cmp_eq_u32 {sM1}, 0\ns_cbranch_scc1 {skip}")
    with a.cond("m1"):
        fn()
    a.label(skip, reset=False)


def w2_setup(g):
    a = g.a
    a("v_lshrrev_b32 v3, 3, v1\nv_lshlrev_b32 v3, 12, v3\nv_bfe_u32 v4, v1, 1, 2\nv_bfe_u32 v5, v1, 4, 1\nv_and_b32 v6, 1, v1")
    for e in range(2):
        a(f"v_or_b32 v7, {2*e}, v5\nv_xor_b32 v7, v4, v7\nv_lshl_add_u32 v7, v7, 1, v6\nv_lshl_add_u32 v{V_W2D+e}, v7, 4, v3")
    a("v_lshrrev_b32 v3, 4, v1\nv_lshlrev_b32 v4, 3, v3\nv_bfe_u32 v5, v1, 2, 2\nv_add_u32 v4, v4, v5\nv_lshlrev_b32 v4, 7, v4")
    a("v_and_b32 v5, 3, v1\nv_lshl_add_u32 v4, v5, 3, v4\nv_and_b32 v3, 1, v3\nv_lshlrev_b32 v3, 1, v3\nv_bfe_u32 v5, v1, 3, 1\nv_or_b32 v3, v3, v5")
    for k in range(4):
        a(f"v_xor_b32 v5, {k}, v3\nv_lshl_add_u32 v{V_W2R+k}, v5, 5, v4")
    a(f"s_mul_i32 s89, {sWV}, {11*32*4096}\ns_lshl_b32 s88, {sR}, 7\ns_add_u32 s89, s89, s88")


def w2_lds(st):
    if st < 5:
        return ("s86", st * 4096)
    if st < 9:
        return ("s87", (st - 5) * 4096)
    return ("s86", (st - 9) * 4096)


def w2_bases(g):
    g.a(f"s_mul_i32 s86, {sWV}, 20480\ns_add_u32 s86, s86, {L_STG2}\ns_lshl_b32 s87, {sWV}, 14\ns_add_u32 s87, s87, {L_X}")


def w2_dma_text(st, m):
    base, off = w2_lds(st)
    return (f"s_add_u32 m0, {base}, {off + m*1024}\ns_add_u32 s88, s89, {(st*32 + 8*m)*4096}",
            f"buffer_load_dwordx4 v{V_W2D + (m & 1)}, {SRD_W2P}, s88 offen lds")


def w2_dma(g, st, m, uncond=False):
    pre, ld = w2_dma_text(st, m)
    g.a(pre)
    (g.a.uncond if uncond else g.a)(ld, tag=f"D2_{0 if st < 5 else 5 if st < 9 else 9}")
    return pre + "\n" + ld


def w2_tr(g, s0, s1):
    a = g.a
    base, _ = w2_lds(s0)
    for k in range(4):
        a(f"v_add_u32 v{32+k}, {base}, v{V_W2R+k}")
    for st in range(s0, s1):
        _, off = w2_lds(st)
        for k in range(4):
            for rd in range(2):
                b = (st*4 + k) * 4 + 2*rd
                a(f"ds_read_b64_tr_b16 a[{b}:{b+1}], v{32+k} offset:{off + rd*512}")


def u_producers(g, dst, lane0):
    a = g.a
    a(f"s_mul_i32 s72, {sWV}, 352\ns_mul_hi_u32 s72, s72, {(1 << 32)//48 + 1}\ns_sub_u32 s72, s72, {lane0}\nv_add_u32 v8, s72, v1\nv_max_i32 v8, 0, v8\nv_min_u32 v8, 28, v8")
    a("v_cmp_le_u32 vcc, 8, v8\nv_cndmask_b32 v6, 0, 1, vcc\nv_cmp_le_u32 vcc, 15, v8\nv_addc_co_u32 v6, vcc, 0, v6, vcc")
    a("v_cmp_le_u32 vcc, 22, v8\nv_addc_co_u32 v6, vcc, 0, v6, vcc")
    a("v_mul_u32_u24 v7, 7, v6\nv_min_u32 v9, 1, v6\nv_add_u32 v7, v7, v9\nv_sub_u32 v7, v8, v7")
    a(f"s_and_b32 s72, {sCQ}, 3\ns_lshr_b32 s73, {sCQ}, 2\nv_lshl_add_u32 v7, v7, 2, s72\nv_lshlrev_b32 v7, 3, v7")
    a(f"v_lshl_add_u32 {dst}, v6, 1, v7\nv_add_u32 {dst}, s73, {dst}")


def sentinel(g, loads, srd):
    a = g.a
    top, ok = g.lab("sn"), g.lab("sno")
    a(f"s_mov_b32 {sCNT}, 0")
    a.label(top, reset=False)
    with a.cond(top):
        for k, (addr, soff) in enumerate(loads):
            a(f"buffer_load_dword v{4+k}, {addr}, {srd}, {soff} offen sc1")
        a("s_waitcnt vmcnt(0)")
        a("v_cmp_eq_u32 vcc, -1, v4")
        for k in range(1, len(loads)):
            a(f"v_cmp_eq_u32 s[72:73], -1, v{4+k}\ns_or_b64 vcc, vcc, s[72:73]")
        a(f"s_cbranch_vccz {ok}")
        a(f"s_add_u32 {sCNT}, {sCNT}, 1\ns_cmp_lt_u32 {sCNT}, {POLL_LIMIT}\ns_cbranch_scc1 {top}")
    a.label(ok, reset=False)


def redo_end(g, redo):
    a = g.a
    done = g.lab("rd")
    a(f"s_cmp_eq_u64 {sACC}, 0\ns_cbranch_scc1 {done}")
    if g.diag:
        g.srd(32, P_DBG, 256)
        a(f"v_mov_b32 v4, 1\nv_mov_b32 v5, 4\ns_mov_b64 exec, 1\nbuffer_atomic_add v4, v5, {SRD_T}, 0 offen\ns_mov_b64 exec, -1")
    a(f"s_add_u32 {sREDO}, {sREDO}, 1\ns_cmp_lt_u32 {sREDO}, 64\ns_cbranch_scc1 {redo}")
    a.label(done, reset=False)


def o_flags(g):
    a = g.a
    a(f"v_mov_b32 v8, {sR}\nv_and_b32 v9, 3, v8\nv_lshlrev_b32 v9, 3, v9\nv_add_u32 v9, v1, v9\nv_lshlrev_b32 v9, 3, v9")
    a("v_lshrrev_b32 v7, 2, v8\nv_add_u32 v9, v9, v7")
    g.vflag("v9", PH_O)
    a("s_mov_b32 s76, 0xff\ns_mov_b32 s77, 0")
    if g.layer == 0:
        a(f"s_cmp_ge_u32 {sJ1}, 8\ns_cselect_b32 s72, 1, 0\ns_cmp_ge_u32 {sJ1}, 15\ns_addc_u32 s72, s72, 0")
        a(f"s_cmp_ge_u32 {sJ1}, 22\ns_addc_u32 s72, s72, 0")
        a(f"s_lshl_b32 s73, {sWV}, 4\ns_sub_u32 s73, s73, 8\nv_add_u32 v8, s73, v1\nv_lshl_add_u32 v8, v8, 2, s72\nv_and_b32 v8, 255, v8")
        a(f"v_lshlrev_b32 v8, 7, v8\nv_add_u32 v8, {WS_FLAG + PH_P*2*256*128}, v8")
        a("v_cmp_le_u32 vcc, 8, v1\nv_cndmask_b32 v9, v9, v8, vcc")
        a(f"s_cmp_eq_u32 {sM1}, 0\ns_cselect_b32 s76, s76, 0xffffff")


def oproj(g):
    a = g.a
    a.c("======== output projection, residual, double LayerNorm")
    OFR, WPRE, WFR, ACC = 64, 128, 14, 46
    a("v_lshrrev_b32 v3, 5, v1\nv_lshlrev_b32 v3, 4, v3\nv_bfe_u32 v4, v1, 4, 1\nv_lshl_add_u32 v3, v4, 2, v3")
    a("v_bfe_u32 v5, v1, 2, 2\nv_add_u32 v3, v3, v5\nv_bfe_u32 v5, v3, 1, 2\nv_and_b32 v6, 3, v1\nv_lshlrev_b32 v6, 3, v6")
    a("v_lshl_add_u32 v6, v3, 7, v6")
    for nt in range(4):
        a(f"v_xor_b32 v7, {nt}, v5\nv_lshl_add_u32 v{10+nt}, v7, 5, v6")

    def wreg(ks, nt):
        return WPRE + ks * 16 + nt * 4 if ks < 8 else WFR + (ks & 1) * 16 + nt * 4

    def wread(ks, nt):
        b = wreg(ks, nt)
        for rd in range(2):
            a(f"ds_read_b64_tr_b16 v[{b+2*rd}:{b+2*rd+1}], v{10+nt} offset:{L_X + ks*4096 + rd*1024}")
    for ks in range(8):
        for nt in range(4):
            wread(ks, nt)
    g.poll("v9", "s[76:77]")
    a("s_waitcnt vmcnt(0) lgkmcnt(0)")
    g.stamp(10)
    a(f"s_lshl_b32 s72, {sR}, 2\ns_add_u32 s72, s72, {sWV}\ns_lshl_b32 s72, s72, 14\ns_lshl_b32 s73, {sL}, 21")
    a(f"s_add_u32 s72, s72, s73\ns_add_u32 s74, s72, {WS_OF}")

    def oload(ks):
        if ks & 3 == 0 or ks == OD:
            a(f"s_add_u32 s73, s74, {(ks >> 2)*4096}")
        a(f"buffer_load_dwordx4 {vr(OFR+4*ks)}, v2, {SRD_WS}, s73 offen offset:{(ks & 3)*1024} sc1")
    OD = 11
    for ks in range(OD):
        oload(ks)
    g.stamp(25)

    def main(w1):
        if w1:
            a(f"s_lshl_b32 s76, {sJ1}, 6\ns_lshl_b32 s77, {sWV}, 4\ns_add_u32 s76, s76, s77\ns_mul_i32 s76, s76, 3072\ns_add_u32 s76, s76, {WS_W1P}")
        for ks in range(16):
            if ks + OD < 16:
                oload(ks + OD)
            for nt in range(4):
                c = "0" if ks == 0 else vr(ACC + 4*nt)
                a(f"v_mfma_f32_16x16x32_bf16 {vr(ACC+4*nt)}, {vr(wreg(ks, nt))}, {vr(OFR+4*ks)}, {c}")
                if 6 <= ks <= 13:
                    wread(ks + 2, nt)
                if w1 and nt == 1 and ks >= 4:
                    for i in ((ks - 4) * 2, (ks - 4) * 2 + 1) if ks < 12 else ():
                        st, ft = divmod(i, 3)
                        w1_step_addr(g, "s77", "s76", st)
                        a(f"buffer_load_dwordx4 {ar(4*i)}, v2, {SRD_WS}, s77 offen offset:{ft*1024} sc1")
            if ks == 0:
                g.stamp(28)
            if ks == 7:
                g.stamp(29)
    la, lb = g.lab("oa"), g.lab("ob")
    a(f"s_cmp_eq_u32 {sM1}, 0\ns_cbranch_scc1 {la}")
    a.snap(la)
    main(True)
    a.label(lb, reset=False)
    g.late.append((la, lb, lambda: (a.restore(la), main(False))))
    g.stamp(11)
    a(f"v_and_b32 v3, 15, v1\ns_lshl_b32 s72, {sWV}, 4\nv_add_u32 v14, s72, v3\nv_lshrrev_b32 v4, 4, v1")
    a(f"v_mul_u32_u24 v5, 144, v14\nv_lshl_add_u32 v5, v4, 3, v5\nv_add_u32 v15, {L_R}, v5")
    for nt in range(4):
        a(f"ds_read_b64 v[{176+2*nt}:{177+2*nt}], v15 offset:{32*nt}")
    X1 = 192
    for nt in range(4):
        for k in range(2):
            a(f"v_lshlrev_b32 v{X1+4*nt+2*k}, 16, v{176+2*nt+k}\nv_and_b32 v{X1+4*nt+2*k+1}, 0xffff0000, v{176+2*nt+k}")
    for i in range(16):
        a(f"v_add_f32 v{X1+i}, v{X1+i}, v{ACC+i}")
    for k in range(8):
        a(f"v_cvt_pk_bf16_f32 v{176+k}, v{X1+2*k}, v{X1+2*k+1}")
    for nt in range(4):
        a(f"ds_write_b64 v15, v[{176+2*nt}:{177+2*nt}] offset:{32*nt}")
    a(f"v_add_f32 v16, v{X1}, v{X1+1}\nv_mul_f32 v17, v{X1}, v{X1}\nv_fmac_f32 v17, v{X1+1}, v{X1+1}")
    for i in range(2, 16):
        a(f"v_add_f32 v16, v16, v{X1+i}\nv_fmac_f32 v17, v{X1+i}, v{X1+i}")

    def fold_groups(r0, r1):
        for sw in ("16", "32"):
            a(f"v_mov_b32 v20, v{r0}\nv_mov_b32 v21, v{r1}")
            a(f"v_permlane{sw}_swap_b32 v{r0}, v20\nv_permlane{sw}_swap_b32 v{r1}, v21")
            a(f"v_add_f32 v{r0}, v{r0}, v20\nv_add_f32 v{r1}, v{r1}, v21")
    fold_groups(16, 17)
    a(f"v_mov_b32 v18, {sN}\nv_mov_b32 v19, {sNN}")
    a(f"s_lshl_b32 s72, {sL}, 5\ns_add_u32 s72, s72, {sR}\ns_lshl_b32 s72, s72, 13\ns_add_u32 s72, s72, {WS_ST}")
    a(f"s_lshl_b32 s73, {sCQ}, 10\ns_add_u32 s73, s73, s72\nv_lshlrev_b32 v22, 4, v14")
    a("s_mov_b64 exec, 0xffff")
    g.dual(lambda m: a(f"buffer_store_dwordx4 v[16:19], v22, {SRD_WS}, s73 offen {m}"))
    a("s_mov_b64 exec, -1")
    g.stamp(26)
    if INB:
        a(f"s_lshl_b32 s73, {sWV}, 3\nv_add_u32 v34, s73, v1")
        g.wg_of("v35", "v34", sC1)
        u_producers(g, "v36", 8)
        a("v_cmp_le_u32 vcc, 8, v1\nv_cndmask_b32 v35, v35, v36, vcc\nv_and_b32 v35, 255, v35")
        g.vflag("v35", PH_PD)
        a(f"s_lshl_b32 s44, {sM1}, 8\ns_sub_u32 s44, s44, {sM1}\ns_or_b32 s44, s44, 0xff00\ns_mov_b32 s45, 0")
        a(f"s_mov_b64 exec, s[44:45]\nbuffer_load_dwordx2 v[32:33], v35, {SRD_WS}, 0 offen sc1\ns_mov_b64 exec, -1")
    if "w1st" in OPT:
        early_w1(g, 16, 28)
    a("v_lshrrev_b32 v4, 4, v1")
    g.stamp(27)
    a(f"s_lshl_b32 s72, {sL}, 5\ns_add_u32 s72, s72, {sR}\ns_lshl_b32 s72, s72, 13\ns_add_u32 s72, s72, {WS_ST}")
    a("v_lshl_add_u32 v23, v4, 11, v22\ns_mov_b32 s100, 0")
    top, ok = g.lab("stp"), g.lab("sto")
    a.label(top, reset=False)
    a(f"buffer_load_dwordx4 v[24:27], v23, {SRD_WS}, s72 offen sc1")
    a(f"buffer_load_dwordx4 v[28:31], v23, {SRD_WS}, s72 offen offset:1024 sc1")
    a("s_waitcnt vmcnt(0)")
    a(f"v_cmp_ne_u64 vcc, {sNP}, v[26:27]\nv_cmp_ne_u64 s[74:75], {sNP}, v[30:31]\ns_or_b64 vcc, vcc, s[74:75]")
    a(f"s_cbranch_vccz {ok}")
    a(f"s_add_u32 s100, s100, 1\ns_cmp_lt_u32 s100, {POLL_LIMIT}\ns_cbranch_scc1 {top}\ns_branch L_fail")
    a.label(ok, reset=False)
    if INB:
        pd = g.lab("pd")
        a(f"s_mov_b64 exec, s[44:45]\nv_cmp_ne_u64 vcc, {sNP}, v[32:33]\ns_mov_b64 exec, -1\ns_cbranch_vccz {pd}")
        with a.cond(pd):
            a("v_mov_b32 v36, v4\nv_mov_b32 v37, v5")
            g.poll("v35", "s[44:45]")
            a("v_mov_b32 v4, v36\nv_mov_b32 v5, v37")
        a.label(pd, reset=False)
    g.stamp(12)
    HT = L_RING

    def normalise():
        a("v_add_f32 v16, v24, v28\nv_add_f32 v17, v25, v29")
        fold_groups(16, 17)
        a(f"v_mul_f32 v16, {f32(1/512)}, v16\nv_mul_f32 v17, {f32(1/512)}, v17\nv_fma_f32 v17, -v16, v16, v17\nv_max_f32 v17, 0, v17")
        a(f"v_add_f32 v18, {f32(1e-5)}, v17\nv_rsq_f32 v18, v18")
        a(f"v_mul_f32 v19, v18, v18\nv_mul_f32 v19, v19, v17\nv_add_f32 v19, {f32(1e-5)}, v19\nv_rsq_f32 v19, v19\nv_mul_f32 v18, v18, v19")
        for i in range(16):
            a(f"v_sub_f32 v{X1+i}, v{X1+i}, v16")
        for i in range(16):
            a(f"v_mul_f32 v{X1+i}, v18, v{X1+i}")
        for k in range(8):
            a(f"v_cvt_pk_bf16_f32 v{176+k}, v{X1+2*k}, v{X1+2*k+1}")
        a(f"v_mul_u32_u24 v5, 160, v14\nv_lshl_add_u32 v5, v4, 3, v5\nv_add_u32 v5, {HT}, v5")
        for nt in range(4):
            a(f"ds_write_b64 v5, v[{176+2*nt}:{177+2*nt}] offset:{32*nt}")
        a("v_lshrrev_b32 v3, 4, v1\nv_lshlrev_b32 v3, 3, v3\nv_bfe_u32 v6, v1, 2, 2\nv_add_u32 v3, v3, v6")
        a(f"s_lshl_b32 s72, {sTB}, 5\nv_add_u32 v3, s72, v3\nv_mul_u32_u24 v3, 160, v3\nv_and_b32 v6, 3, v1\nv_lshl_add_u32 v3, v6, 3, v3")
        a(f"s_lshl_b32 s72, {sP}, 6\ns_add_u32 s72, s72, {HT}\nv_add_u32 v3, s72, v3")

    if "w1st" in OPT:
        normalise()
    else:
        a(f"s_lshl_b32 s90, {sJ1}, 6\ns_lshl_b32 s91, {sWV}, 4\ns_add_u32 s90, s90, s91\ns_mul_i32 s90, s90, 3072\ns_add_u32 s90, s90, {WS_W1P}")
        a(f"s_cmp_eq_u32 {sM1}, 0\ns_cselect_b32 s90, 0x70000000, s90")

        def w1_n(i):
            st, ft = divmod(i, 3)
            if ft == 0 or i == 16:
                a(f"s_add_u32 s91, s90, {st*3072}")
            a(f"buffer_load_dwordx4 {ar(4*i)}, v2, {SRD_WS}, s91 offen offset:{ft*1024} sc1")
        a.weave([a.capture(lambda i=i: w1_n(i)) for i in range(16, 28)], a.capture(normalise))
    a("s_waitcnt lgkmcnt(0)\ns_barrier")
    for e in range(2):
        for rd in range(2):
            a(f"ds_read_b64_tr_b16 v[{184+4*e+2*rd}:{185+4*e+2*rd}], v3 offset:{32*e + rd*640}")
    if INB:
        a(f"s_mov_b32 s72, {sHB}")
    else:
        a(f"s_lshl_b32 s72, {sCQ}, 6\ns_lshl_b32 s73, {sR}, 1\ns_add_u32 s72, s72, s73\ns_add_u32 s72, s72, {sTB}\ns_lshl_b32 s72, s72, 2")
        a(f"s_lshl_b32 s73, {sP}, 1\ns_add_u32 s72, s72, s73\ns_lshl_b32 s72, s72, 10\ns_lshl_b32 s73, {sL}, 21\ns_add_u32 s72, s72, s73\ns_add_u32 s72, s72, {WS_H}")
    for e in range(2):
        a(f"buffer_store_dwordx4 {vr(184+4*e)}, v2, {SRD_WS}, s72 offen offset:{e*1024} sc1", tag="Hst")


def mix1(g):
    a = g.a
    a.c("======== token mixing 1: u = gelu(h^T W1 + b1)")
    skip, other = g.lab("m1"), g.lab("m1o")
    w2_setup(g)
    w2_bases(g)
    a(f"s_cmp_eq_u32 {sM1}, 0\ns_cbranch_scc1 {other}")
    w2_text = []

    def w2(i):
        return w2_dma(g, i >> 2, i & 3, uncond=True)
    with a.cond("m1"):
        def m1_setup():
            g.srd(32, P_B1, 2752)
            a(f"s_mul_i32 s72, {sJ1}, 96\nv_and_b32 v3, 1, v1\nv_lshlrev_b32 v3, 3, v3\ns_mul_i32 s73, {sWV}, 3")
            for i in range(3):
                a(f"s_add_u32 s74, s73, {i}\ns_lshr_b32 s74, s74, 1\ns_lshl_b32 s74, s74, 4\ns_add_u32 s74, s74, s72")
                a(f"buffer_load_dwordx2 v[{14+2*i}:{15+2*i}], v3, {SRD_T}, s74 offen")
            if not INB:
                a(f"s_lshl_b32 s73, {sWV}, 3\nv_add_u32 v8, s73, v1")
                g.wg_of("v9", "v8", sC1)
                g.vflag("v9", PH_H)
            c0 = -2 * math.log2(math.e) * math.sqrt(2 / math.pi)
            c1 = c0 * 0.044715
            a(f"v_and_b32 v3, 15, v1\nv_mul_u32_u24 v3, 208, v3\nv_lshrrev_b32 v4, 4, v1\nv_lshl_add_u32 v3, v4, 4, v3")
            a(f"s_mul_i32 s72, {sWV}, 13312\nv_add_u32 v13, s72, v3")
            a("v_lshrrev_b32 v3, 1, v1\nv_mul_u32_u24 v10, 208, v3\nv_and_b32 v4, 1, v1\nv_lshl_add_u32 v10, v4, 4, v10")
            a("v_lshrrev_b32 v5, 5, v1\nv_lshlrev_b32 v11, 10, v5\nv_and_b32 v3, 15, v3\nv_lshl_add_u32 v11, v3, 4, v11")
            if not INB:
                a("v_lshl_add_u32 v11, v4, 3, v11")
            a(f"s_mul_i32 s76, {sWV}, 3\ns_mov_b32 s84, {f32(c1)}\ns_mov_b32 s85, {f32(c0)}")
            for i in range(3):
                a(f"s_add_u32 s72, s76, {i}\ns_lshr_b32 s73, s72, 1\ns_and_b32 s72, s72, 1")
                a(f"s_mul_i32 s74, s72, {32*208}\ns_lshl_b32 s75, s73, 5\ns_add_u32 s74, s74, s75\nv_add_u32 v{20+i}, s74, v10")
            if INB:
                for i in range(3):
                    a(f"s_mov_b32 s{80+i}, s{sUO+i}")
            else:
                u_offsets(g, 80)

        def w1_one(i):
            st, ft = divmod(i, 3)
            if ft == 0 or i == 40:
                a(f"s_add_u32 s91, s90, {st*3072}")
            a(f"buffer_load_dwordx4 {ar(4*i)}, v2, {SRD_WS}, s91 offen offset:{ft*1024} sc1")
        a(f"s_lshl_b32 s90, {sJ1}, 6\ns_lshl_b32 s91, {sWV}, 4\ns_add_u32 s90, s90, s91\ns_mul_i32 s90, s90, 3072\ns_add_u32 s90, s90, {WS_W1P}")
        a.weave([a.capture(lambda i=i: w1_one(i)) for i in range(40, 48)], a.capture(m1_setup))
        HD = next((int(o[2:]) for o in OPT if o.startswith("hd")), 15)
        HB, NS, ACC = 64, HD + 9, 192
        a(f"s_lshl_b32 s72, {sC1}, 6\ns_lshl_b32 s73, {sWV}, 4\ns_add_u32 s72, s72, s73\ns_lshl_b32 s72, s72, 12")
        a(f"s_lshl_b32 s73, {sL}, 21\ns_add_u32 s72, s72, s73\ns_add_u32 s43, s72, {WS_H}")
        if INB:
            a(f"v_lshlrev_b32 v9, 10, v1\nv_add_u32 v9, 1008, v9\ns_mov_b32 {sREDO}, 0")
            redo = g.lab("m1r")
            a.label(redo, reset=False)
            sentinel(g, [("v9", "s43")], SRD_WS)
            a(f"s_mov_b64 {sACC}, 0")
        else:
            g.poll("v9", "0xff")
        g.stamp(14)
        a("s_mov_b32 s72, s43")
        nload = [0]

        def hload():
            n = nload[0]
            if ROT:
                if n & 3 == 0:
                    a(f"s_lshr_b32 s72, s2, 5\ns_lshl_b32 s72, s72, 1\ns_add_u32 s72, s72, {n >> 2}\ns_and_b32 s72, s72, 15\ns_lshl_b32 s72, s72, 12\ns_add_u32 s72, s72, s43")
                a(f"buffer_load_dwordx4 {vr(HB + 4*(n % NS))}, v2, {SRD_WS}, s72 offen offset:{(n & 3)*1024} sc1")
            else:
                a(f"buffer_load_dwordx4 {vr(HB + 4*(n % NS))}, v2, {SRD_WS}, s72 offen offset:{(n & 3)*1024} sc1")
                if n & 3 == 3:
                    a("s_add_u32 s72, s72, 4096")
            nload[0] += 1
        for _ in range(HD):
            hload()
        for st in range(16):
            for dt in range(4):
                hb = HB + 4 * ((st*4 + dt) % NS)
                for ft in range(3):
                    acc = ACC + (ft*4 + dt) * 4
                    c = "0" if st == 0 else ar(acc)
                    a(f"v_mfma_f32_16x16x32_bf16 {ar(acc)}, {ar((st*3+ft)*4)}, {vr(hb)}, {c}")
                    if INB and ft == 0:
                        a(f"v_cmp_eq_u32 vcc, -1, v{hb}\ns_or_b64 {sACC}, {sACC}, vcc")
                if nload[0] < 64:
                    hload()
                if st == 0 and dt == 0:
                    g.stamp(30)
                if st == 7 and dt == 3:
                    g.stamp(31)
        if INB:
            redo_end(g, redo)
        l0_only(g, "l0t", lambda: (warmup(g, SRD_W2P, "v60") if not NOW2 else None, a(x2_touch_text())))
        g.stamp(15)
        nw2 = 0
        for dt in range(4):
            for ft in range(3):
                a(f"ds_write_b128 v13, {ar(ACC + (ft*4+dt)*4)} offset:{L_X + dt*16*208 + ft*64}")
        a("s_waitcnt lgkmcnt(0)\ns_barrier")
        for i in range(3):
            for k in range(4):
                a(f"ds_read_b128 {vr(64 + 16*i + 4*k)}, v{20+i} offset:{L_X + k*13312}")
        if g.layer == 0:
            sk3 = g.lab("ep")
            a(f"s_or_b32 s72, s2, {sWV}\ns_cmp_eq_u32 s72, 0\ns_cbranch_scc0 {sk3}")
            with a.cond(sk3):
                a(f"v_mov_b32 v4, {sN}\nv_mov_b32 v5, {WS_EPOCH}\ns_mov_b64 exec, 1")
                a(f"buffer_store_dword v4, v5, {SRD_WS}, 0 offen sc1")
                a("s_mov_b64 exec, -1")
            a.label(sk3, reset=False)
        if UDW == 20:
            pass
        else:
            a("s_waitcnt lgkmcnt(0)\ns_barrier")
        for i in range(3):
            B = 64 + 16 * i
            bb = 14 + 2 * i

            def w2x(k=1):
                nonlocal nw2
                for _ in range(k):
                    if nw2 < 18:
                        w2_text.append(w2(nw2)); nw2 += 1
            for e in range(4):
                a(f"v_add_f32 v{B+e}, v{B+e}, v{B+4+e}\nv_add_f32 v{B+8+e}, v{B+8+e}, v{B+12+e}")
            w2x()
            a(f"v_lshlrev_b32 v{B+4}, 16, v{bb}\nv_and_b32 v{B+5}, 0xffff0000, v{bb}\nv_lshlrev_b32 v{B+6}, 16, v{bb+1}\nv_and_b32 v{B+7}, 0xffff0000, v{bb+1}")
            for e in range(4):
                a(f"v_add_f32 v{B+e}, v{B+e}, v{B+8+e}")
            w2x()
            for e in range(4):
                a(f"v_add_f32 v{B+e}, v{B+e}, v{B+4+e}")
            for e in range(4):
                a(f"v_mul_f32 v{B+4+e}, v{B+e}, v{B+e}\nv_mov_b32 v{B+8+e}, s85")
            w2x()
            for e in range(4):
                a(f"v_fmac_f32 v{B+8+e}, s84, v{B+4+e}")
            for e in range(4):
                a(f"v_mul_f32 v{B+8+e}, v{B+8+e}, v{B+e}")
            for e in range(4):
                a(f"v_exp_f32 v{B+8+e}, v{B+8+e}")
            w2x()
            for e in range(4):
                a(f"v_add_f32 v{B+8+e}, 1.0, v{B+8+e}")
            for e in range(4):
                a(f"v_rcp_f32 v{B+8+e}, v{B+8+e}")
            for e in range(4):
                a(f"v_mul_f32 v{B+e}, v{B+e}, v{B+8+e}")
            a(f"v_cvt_pk_bf16_f32 v{B+4}, v{B}, v{B+1}\nv_cvt_pk_bf16_f32 v{B+5}, v{B+2}, v{B+3}")
            if INB:
                a(f"v_mov_b32_dpp v{B+6}, v{B+4} quad_perm:[1,0,3,2] row_mask:0xf bank_mask:0xf")
                a(f"v_mov_b32_dpp v{B+7}, v{B+5} quad_perm:[1,0,3,2] row_mask:0xf bank_mask:0xf")
                a("s_mov_b32 exec_lo, 0x55555555\ns_mov_b32 exec_hi, 0x55555555")
                a(f"buffer_store_dwordx4 v[{B+4}:{B+7}], v11, {SRD_WS}, s{80+i} offen sc1", tag="Ust")
                a("s_mov_b64 exec, -1")
            else:
                a(f"buffer_store_dwordx2 v[{B+4}:{B+5}], v11, {SRD_WS}, s{80+i} offen sc1", tag="Ust")
        while nw2 < UDW:
            w2_text.append(w2(nw2)); nw2 += 1
        if INB:
            a("s_barrier")
        else:
            a.wait_tag("Ust")
            g.publish(PH_U)
    a.label(skip, reset=False)
    pre = ([warmup_text(SRD_W2P, "v60")] if not NOW2 else []) + [x2_touch_text()] if g.layer == 0 else []
    g.tails.append((other, skip, pre + w2_text))
    if "noweave2" in OPT:
        for i in range(20, 36):
            w2_dma(g, i >> 2, i & 3)
        a.wait_tag("D2_0")
        w2_tr(g, 0, 5)
        a("s_waitcnt lgkmcnt(0)")
        for i in range(36, 44):
            w2_dma(g, i >> 2, i & 3)
    else:
        a.wait_tag("D2_0")
        d1 = [a.capture(lambda i=i: w2_dma(g, i >> 2, i & 3)) for i in range(UDW, 36)]
        setup = a.capture(lambda: mix2_setup(g))
        half = len(setup) // 2
        while setup[half][0] != "i" or setup[half][1].startswith(("s_addc", "s_subb", "s_cselect")):
            half += 1
        a.weave(d1, a.capture(lambda: w2_tr(g, 0, 5)) + setup[:half])
        a("s_waitcnt lgkmcnt(0)")
        d2 = [a.capture(lambda i=i: w2_dma(g, i >> 2, i & 3)) for i in range(36, 44)]
        if "noprobe" in OPT or INB:
            a.weave(d2, setup[half:])
        else:
            a.items += setup[half:]
            a(f"s_mov_b64 exec, 0xff\nbuffer_load_dwordx2 v[26:27], v9, {SRD_WS}, 0 offen sc1\ns_mov_b64 exec, -1")
            for grp in d2:
                a.items += grp


def mix2_setup(g):
    a = g.a
    g.srd(32, P_B2, 4096)
    a(f"v_lshrrev_b32 v10, 3, v0\ns_lshl_b32 s72, {sR}, 7\nv_lshl_add_u32 v11, v10, 1, s72")
    a(f"buffer_load_ushort v12, v11, {SRD_T}, 0 offen\nbuffer_load_ushort v13, v11, {SRD_T}, 0 offen offset:64")
    a(f"s_mul_i32 s72, {sCQ}, {UC}\ns_lshl_b32 s73, {sL}, 21\ns_add_u32 s72, s72, s73\ns_add_u32 s72, s72, {WS_U}")
    g.srd(24, P_WS, UC, "s72")
    a("v_and_b32 v3, 15, v1\nv_lshrrev_b32 v4, 4, v1\nv_and_b32 v5, 7, v1")
    a(f"s_lshl_b32 s72, {sWV}, 14")
    for dt in range(4):
        a(f"v_add_u32 v6, {4*dt}, v4\nv_xor_b32 v6, v6, v5\nv_lshlrev_b32 v6, 4, v6\nv_lshl_add_u32 v6, v3, 8, v6\nv_add_u32 v{14+dt}, s72, v6")
    a("v_and_b32 v3, 7, v0\nv_and_b32 v4, 7, v10\nv_lshlrev_b32 v5, 1, v3")
    for e in range(2):
        a(f"v_add_u32 v6, {e}, v5\nv_xor_b32 v6, v6, v4\nv_lshlrev_b32 v6, 4, v6\nv_lshl_add_u32 v{18+e}, v10, 8, v6")
    a(f"v_mul_u32_u24 v20, 144, v10\nv_lshl_add_u32 v20, v3, 4, v20\nv_add_u32 v20, {L_R}, v20")
    a(f"v_lshlrev_b32 v21, 10, v10\nv_lshl_add_u32 v21, v3, 4, v21")
    if not INB:
        u_producers(g, "v9", 0)
        g.vflag("v9", PH_U)


def mix2(g):
    a = g.a
    a.c("======== token mixing 2: x += (u W2 + b2)^T")
    if g.layer == 0 and "code2" in OPT and g.stop_after is None:
        g.code_warmup2()
    if "noweave2" in OPT:
        mix2_setup(g)
    if INB:
        a(f"s_mul_i32 s85, {sWV}, {11*4096}\nv_lshlrev_b32 v9, 8, v1\nv_add_u32 v9, 240, v9")
        a(f"s_add_u32 s43, s85, 16384\ns_add_u32 s48, s85, 32768\ns_mov_b32 {sREDO}, 0")
        a("v_cmp_gt_u32 vcc, 48, v1\nv_mov_b32 v8, 0x7ff00000\nv_cndmask_b32 v8, v8, v9, vcc")
        redo = g.lab("m2r")
        a.label(redo, reset=False)
        sentinel(g, [("v9", "s85"), ("v9", "s43"), ("v8", "s48")], SRD_U)
        a(f"s_mov_b64 {sACC}, 0")
    elif "noprobe" in OPT:
        g.poll("v9", "0xff")
    else:
        ok = g.lab("upr")
        a(f"s_mov_b64 exec, 0xff\nv_cmp_ne_u64 vcc, {sNP}, v[26:27]\ns_mov_b64 exec, -1\ns_cbranch_vccz {ok}")
        with a.cond(ok):
            g.poll("v9", "0xff")
        a.label(ok, reset=False)
    g.stamp(17)
    UD = next((int(o[2:]) for o in OPT if o.startswith("ud")), 14)
    UB, ACC = 64, 192
    a(f"s_mul_i32 s85, {sWV}, {11*4096}")

    def uload(i):
        st, dt = i >> 2, i & 3
        if dt == 0:
            a(f"s_add_u32 s84, s85, {st*4096}")
        a(f"buffer_load_dwordx4 {vr(UB + 4*i)}, v2, {SRD_U}, s84 offen offset:{dt*1024} sc1")
    if "noprobe" in OPT or INB:
        a.wait_tag("D2_5", "D2_9", emit=False)
        a.weave([a.capture(lambda i=i: uload(i)) for i in range(UD)], a.capture(lambda: (w2_tr(g, 5, 9), w2_tr(g, 9, 11))))
    else:
        a.wait_tag("D2_5", emit=False)
        a.weave([a.capture(lambda i=i: uload(i)) for i in range(UD - 4)], a.capture(lambda: w2_tr(g, 5, 9)))
        a.wait_tag("D2_9")
        a.weave([a.capture(lambda i=i: uload(i)) for i in range(UD - 4, UD)], a.capture(lambda: w2_tr(g, 9, 11)))
    for st in range(11):
        for dt in range(4):
            for k in range(4):
                acc = ACC + (dt*4 + k) * 4
                c = "0" if st == 0 else ar(acc)
                a(f"v_mfma_f32_16x16x32_bf16 {ar(acc)}, {vr(UB + (st*4+dt)*4)}, {ar((st*4+k)*4)}, {c}")
                if INB and k == 0:
                    a(f"v_cmp_eq_u32 vcc, -1, v{UB + (st*4+dt)*4}\ns_or_b64 {sACC}, {sACC}, vcc")
                if k == 1 and st*4 + dt + UD < 44:
                    uload(st*4 + dt + UD)
    if INB:
        redo_end(g, redo)
    g.stamp(18)
    for dt in range(4):
        for k in range(4):
            a(f"ds_write_b128 v{14+dt}, {ar(ACC + (dt*4+k)*4)} offset:{L_X + k*4096}")
    a("s_waitcnt lgkmcnt(0)\ns_barrier")
    a(f"s_lshl_b32 s72, {sR}, 16\ns_lshl_b32 s73, {sCQ}, 7\ns_add_u32 s72, s72, s73")
    for half in range(2):
        B = 64 + half * 48
        for k in range(4):
            for e in range(2):
                a(f"ds_read_b128 {vr(B + k*8 + e*4)}, v{18+e} offset:{L_X + k*16384 + half*8192}")
        a(f"ds_read_b128 {vr(B+32)}, v20 offset:{half*4608}")
    def epilogue(first):
        ring = []
        if first:
            g.q_addr_w(46)
            g.w_dma_setup("s80", "s81", "s82")
            ring = [(s_, n) for s_ in range(5) for n in range(4)]

        def ringdma(k=1):
            for _ in range(k):
                if ring:
                    s_, n = ring.pop(0)
                    g.w_dma(s_, only=n, sg="s80", sl="s81", st="s82", va="v46")
        for half in range(2):
            B = 64 + half * 48
            a(f"v_lshlrev_b32 v22, 16, v{12+half}")
            for i in range(8):
                a(f"v_add_f32 v{B+i}, v{B+i}, v{B+8+i}\nv_add_f32 v{B+16+i}, v{B+16+i}, v{B+24+i}")
                if i % 2 == 1:
                    ringdma()
            for i in range(8):
                a(f"v_add_f32 v{B+i}, v{B+i}, v{B+16+i}")
            ringdma()
            for i in range(8):
                a(f"v_add_f32 v{B+i}, v{B+i}, v22")
            ringdma()
            for k in range(4):
                a(f"v_lshlrev_b32 v{B+8+2*k}, 16, v{B+32+k}\nv_and_b32 v{B+9+2*k}, 0xffff0000, v{B+32+k}")
            ringdma()
            for i in range(8):
                a(f"v_add_f32 v{B+i}, v{B+i}, v{B+8+i}")
            ringdma()
            for k in range(4):
                a(f"v_cvt_pk_bf16_f32 v{B+36+k}, v{B+2*k}, v{B+2*k+1}")
            if first:
                a(f"ds_write_b128 v20, {vr(B+36)} offset:{half*4608}")
                g.dual(lambda m, B=B: a(f"buffer_store_dwordx4 {vr(B+36)}, v21, {SRD_DST}, s72 offen {m}", tag="Xst"))
            else:
                om = "" if "outplain" in OPT else "sc1"
                a(f"buffer_store_dwordx4 {vr(B+36)}, v21, {SRD_DST}, s72 offen {om}")
            if half == 0:
                a("s_add_u32 s72, s72, 32768")
            if first:
                a(f"v_add_f32 v{B+40}, v{B}, v{B+1}\nv_mul_f32 v{B+41}, v{B}, v{B}\nv_fmac_f32 v{B+41}, v{B+1}, v{B+1}")
                for i in range(2, 8):
                    a(f"v_add_f32 v{B+40}, v{B+40}, v{B+i}\nv_fmac_f32 v{B+41}, v{B+i}, v{B+i}")
                ringdma(2)
        if first:
            ringdma(20)
            a("v_mov_b32 v12, v46")
            g.row_stats_store([104, 152], 1, local=True)
    epilogue(g.layer == 0)


def drain(g, tag, n, sreg, val):
    a = g.a
    lw = g.lab("dr")
    a(f"s_cmp_eq_u32 {sreg}, {val}\ns_cbranch_scc1 {lw}")
    a.raw("  s_waitcnt vmcnt(0)")
    a.label(lw, reset=False)
    a.raw(f"  s_waitcnt vmcnt({n})")
    a.wait_tag(tag, emit=False)


def o_drain_publish(g):
    a = g.a
    a.wait_tag("Ost")
    g.publish(PH_O, local=True, also=PH_P if g.layer == 0 else None)


def rest(g):
    a = g.a
    attn_setup(g)
    g.stamp(5)
    attn(g)
    a("s_barrier")
    o_drain_publish(g)
    g.stamp(9)
    if g.stop("a"):
        return True
    o_flags(g)
    oproj(g)
    early_w1(g, 28, 40)
    if not INB:
        drain(g, "Hst", 12, sM1, 1)
        g.publish(PH_H)
    g.stamp(13)
    if g.stop("o"):
        return True
    mix1(g)
    g.stamp(16)
    if g.stop("m1"):
        return True
    mix2(g)
    g.stamp(19)
    if g.stop("m2"):
        return True
    if g.layer == 1:
        a("s_endpgm")
        a.assume_clean()
        return True
    g.srd(4, P_WS, 2 << 20, WS_X2)
    g.srd(20, P_OUT, 2 << 20)
    a(f"s_mov_b32 {sL}, 1")
    a("s_waitcnt lgkmcnt(0)")
    return False


def finish(g):
    a = g.a
    a("s_branch L_end")
    a.assume_clean()
    for lab, back, fn in g.late:
        a.label(lab, reset=False)
        fn()
        a(f"s_branch {back}")
        a.assume_clean()
    for stub, back, always in g.stubs:
        a.label(stub, reset=False)
        a("s_nop 7")
        for x in always:
            a(x)
        a(f"s_nop 11\ns_branch {back}")
        a.assume_clean()
    for lab, back, texts in g.tails:
        a.label(lab, reset=False)
        for x in texts:
            for line in x.split("\n"):
                if line.startswith("@"):
                    a.label(line[1:], reset=False)
                else:
                    a(line)
        a(f"s_branch {back}")
        a.assume_clean()
```

```python
import math
from gen import *

NEG = f32(-1e30)
import os
OPT = set(os.environ.get("KOPT", "").split(","))
UDW = next((int(o[3:]) for o in OPT if o.startswith("w2e")), 20)
NOW2 = "now2wu" in OPT or any(o.startswith("w2p2") for o in OPT)
ROT = "rot" in OPT
INB = "inb" in OPT
sHB, sUO, sACC, sREDO = "s36", 37, "s[40:41]", "s42"


def ar(b, n=4):
    return f"a[{b}:{b+n-1}]"


def vr(b, n=4):
    return f"v[{b}:{b+n-1}]"


QA, QB = 224, 228
SBUF = (64, 80, 96, 112)
NEGM = {"A": 128, "B": 144}
OACC = {"A": 160, "B": 176}
PBUF = {"A": 192, "B": 200}
CDIAG, CFAR, ANDD, ANDF = 208, 232, 32, 40
AK0, AV0 = 0, 72
L_KV = L_RING


def kfrag(b):
    return AK0 + b * 4


def vfrag(b, half):
    return AV0 + ((b & 1) * 2 + half) * 4


def attn_setup(g):
    a = g.a
    a.c("======== attention constants")
    a("v_and_b32 v3, 31, v1\nv_lshrrev_b32 v4, 5, v1\nv_lshlrev_b32 v4, 2, v4\nv_sub_u32 v3, v3, v4")
    a(f"v_mov_b32 v48, 0\nv_mov_b32 v49, {NEG}\nv_mov_b32 v50, 0xffff\nv_mov_b32 v51, 0xffff0000")
    for i in range(16):
        ci = (i & 3) + 8 * (i >> 2)
        sp = f"s[{72 + 2*(i % 4)}:{73 + 2*(i % 4)}]"
        a(f"v_cmp_le_i32 {sp}, {ci}, v3")
        a(f"v_mov_b32 v{OACC['A']+i}, 0\nv_mov_b32 v{OACC['B']+i}, 0")
        a(f"v_cndmask_b32 v{CDIAG+i}, v49, v48, {sp}\nv_cndmask_b32 v{CFAR+i}, v48, v49, {sp}")
        a(f"v_cndmask_b32 v{52 + (i & 1)}, v48, v{50 + (i & 1)}, {sp}")
        if i & 1:
            a(f"v_or_b32 v{ANDD + i//2}, v52, v53\nv_not_b32 v{ANDF + i//2}, v{ANDD + i//2}")
    for i in range(8):
        a(f"v_mov_b32 v{PBUF['A']+i}, 0\nv_mov_b32 v{PBUF['B']+i}, 0")
    for k in range(AV0, AV0 + 16):
        a(f"v_accvgpr_write_b32 a{k}, v48")
    a("v_mov_b32 v54, 0x3f803f80\ns_mov_b32 exec_lo, 0x00110000\ns_mov_b32 exec_hi, 0x00110000")
    for k in range(AV0, AV0 + 16):
        a(f"v_accvgpr_write_b32 a{k}, v54")
    a("s_mov_b64 exec, -1")


def warmup_text(srd, dst):
    return (f"s_lshl_b32 s72, s2, 2\ns_add_u32 s72, s72, {sWV}\ns_mul_i32 s73, s72, {43*128}\nv_lshlrev_b32 v7, 7, v1\n"
            f"s_mov_b32 exec_lo, -1\ns_mov_b32 exec_hi, 0x7ff\n"
            f"buffer_load_dword {dst}, v7, {srd}, s73 offen\ns_mov_b64 exec, -1")


def warmup(g, srd, dst):
    g.a(warmup_text(srd, dst))


def team_check(g):
    a = g.a
    top, ok = g.lab("tc"), g.lab("tco")
    a(f"s_lshl_b32 s72, {sR}, 7\ns_add_u32 s72, s72, {WS_XC}\nv_lshlrev_b32 v3, 4, v1\ns_mov_b32 {sCNT}, 0\ns_mov_b64 exec, 0xff")
    a.label(top, reset=False)
    a(f"buffer_load_dwordx4 v[24:27], v3, {SRD_WS}, s72 offen sc1\ns_waitcnt vmcnt(0)")
    a(f"v_cmp_ne_u64 vcc, {sNP}, v[26:27]\ns_cbranch_vccz {ok}")
    a(f"s_add_u32 {sCNT}, {sCNT}, 1\ns_cmp_lt_u32 {sCNT}, {POLL_LIMIT}\ns_cbranch_scc1 {top}\ns_branch L_fail")
    a.label(ok, reset=False)
    a(f"v_cmp_ne_u32 vcc, s1, v24\ns_cmp_eq_u64 vcc, 0\ns_cselect_b32 {sFAST}, 1, 0\ns_mov_b64 exec, -1")


def x2_touch_text():
    return ("v_lshrrev_b32 v6, 3, v0\nv_and_b32 v3, 7, v0\nv_lshlrev_b32 v6, 10, v6\nv_lshl_add_u32 v6, v3, 4, v6\n"
            f"s_lshl_b32 s72, {sR}, 16\ns_lshl_b32 s73, {sCQ}, 7\ns_add_u32 s72, s72, s73\n"
            f"s_add_u32 s73, s72, 32768\n"
            f"buffer_load_dword v23, v6, {SRD_DST}, s72 offen sc1\nbuffer_load_dword v24, v6, {SRD_DST}, s73 offen sc1\n"
            f"s_add_u32 s72, {sR}, 32\ns_lshl_b32 s72, s72, 3\ns_add_u32 s72, s72, {sCQ}\ns_lshl_b32 s72, s72, 10\ns_add_u32 s72, s72, {WS_ST2}\n"
            f"buffer_load_dword v25, v2, {SRD_WS}, s72 offen sc1")


def u_offsets(g, dst):
    a = g.a
    a(f"s_mul_i32 s76, {sWV}, 3\ns_mul_i32 s77, {sC1}, {UC}\ns_lshl_b32 s73, {sL}, 21\ns_add_u32 s77, s77, s73\ns_add_u32 s77, s77, {WS_U}")
    for i in range(3):
        a(f"s_add_u32 s72, s76, {i}\ns_lshr_b32 s73, s72, 1\ns_and_b32 s72, s72, 1")
        a(f"s_mul_i32 s74, {sJ1}, 6\ns_add_u32 s74, s74, s73\ns_lshr_b32 s75, s74, 2\ns_and_b32 s79, s74, 3")
        a(f"s_lshl_b32 s75, s75, 12\ns_lshl_b32 s79, s79, 8\ns_add_u32 s75, s75, s79\ns_lshl_b32 s72, s72, 11\ns_add_u32 s75, s75, s72")
        a(f"s_add_u32 s75, s75, s77\ns_cmp_ge_u32 s74, 172\ns_cselect_b32 s79, 0x70000000, 0\ns_or_b32 s75, s75, s79")
        a(f"s_cmp_eq_u32 {sM1}, 0\ns_cselect_b32 s{dst+i}, 0x70000000, s75")


def inband_addresses(g):
    a = g.a
    a(f"s_lshl_b32 s72, {sCQ}, 6\ns_lshl_b32 s73, {sR}, 1\ns_add_u32 s72, s72, s73\ns_add_u32 s72, s72, {sTB}\ns_lshl_b32 s72, s72, 2")
    a(f"s_lshl_b32 s73, {sP}, 1\ns_add_u32 s72, s72, s73\ns_lshl_b32 s72, s72, 10\ns_lshl_b32 s73, {sL}, 21\ns_add_u32 s72, s72, s73\ns_add_u32 {sHB}, s72, {WS_H}")
    a("s_mov_b64 s[44:45], s[74:75]")
    u_offsets(g, sUO)
    a("s_mov_b64 s[74:75], s[44:45]")
    a("v_lshrrev_b32 v25, 5, v1\nv_lshlrev_b32 v25, 10, v25\nv_bfe_u32 v7, v1, 1, 4\nv_lshl_add_u32 v25, v7, 4, v25")
    a("v_mov_b32 v28, -1\nv_mov_b32 v29, -1\nv_mov_b32 v30, -1\nv_mov_b32 v31, -1")


def own_tile_dma(g):
    a = g.a
    a(f"s_lshl_b32 s92, {sCQ}, 1\ns_add_u32 s92, s92, {sP}\ns_lshl_b32 s92, s92, 6\ns_lshl_b32 s93, {sR}, 1\ns_add_u32 s92, s92, s93")
    a(f"s_add_u32 s92, s92, {sTB}\ns_lshl_b32 s92, s92, 12\ns_add_u32 s92, s92, {WS_KV + g.layer * (4 << 20)}")
    a(f"s_mul_i32 s93, {sP}, 40960\ns_lshl_b32 s94, {sTB}, 12\ns_add_u32 s93, s93, s94\ns_add_u32 s93, s93, {L_KV + 8*4096}")
    for q4 in range(4):
        a(f"s_add_u32 m0, s93, {q4*1024}\ns_add_u32 s94, s92, {q4*1024}")
        a(f"buffer_load_dwordx4 v2, {SRD_WS}, s94 offen sc1 lds", tag="Kd")


def attn(g):
    a = g.a
    a.c("======== attention")
    a(f"s_sub_u32 s72, {sR}, 4\nv_add_u32 v8, s72, v1\nv_cmp_le_i32 s[74:75], 0, v8")
    g.wg_of("v9", "v8", sCQ)
    g.vflag("v9", PH_KV)
    a("s_and_b64 s[74:75], s[74:75], 0xf")
    a(f"s_lshl_b32 s76, {sR}, 1\ns_add_u32 s76, s76, {sTB}\ns_sub_u32 s77, 8, s76\ns_max_i32 s77, s77, 0")
    a(f"s_lshl_b32 s78, {sCQ}, 1\ns_add_u32 s78, s78, {sP}\ns_lshl_b32 s78, s78, 18\ns_lshl_b32 s79, {sL}, 22")
    a(f"s_add_u32 s78, s78, s79\ns_add_u32 s78, s78, {WS_KV}")
    a(f"s_lshl_b32 s79, {sTB}, 2\ns_lshl_b32 s80, {sR}, 1\ns_add_u32 s80, s80, s79\ns_sub_u32 s80, s80, 8")
    for i in range(4):
        a(f"s_add_i32 s{81+i}, s80, {i}\ns_max_i32 s{81+i}, s{81+i}, 0\ns_lshl_b32 s{81+i}, s{81+i}, 12\ns_add_u32 s{81+i}, s{81+i}, s78")
    a(f"s_mul_i32 s86, {sP}, 40960\ns_lshl_b32 s87, {sTB}, 14\ns_add_u32 s87, s87, s86\ns_add_u32 s87, s87, {L_KV}")
    if "ownlate" in OPT:
        own_tile_dma(g)
    a(f"s_lshl_b32 s88, {sTB}, 12\ns_add_u32 s88, s88, s86\ns_add_u32 s88, s88, {L_KV}\nv_add_u32 v10, s88, v2")
    a("v_and_b32 v8, 15, v1\nv_lshlrev_b32 v8, 4, v8\nv_lshrrev_b32 v7, 5, v1\nv_lshl_add_u32 v8, v7, 8, v8\nv_add_u32 v11, s88, v8")
    a("s_mov_b32 s90, 0xffff\ns_mov_b32 s91, 0xffff")
    a("v_bfe_u32 v20, v1, 4, 1\nv_lshlrev_b32 v20, 14, v20\nv_and_b32 v7, 15, v1\nv_lshl_add_u32 v20, v7, 4, v20")
    a("v_lshrrev_b32 v7, 5, v1\nv_lshl_add_u32 v20, v7, 8, v20")
    a(f"s_lshl_b32 s72, {sR}, 2\ns_lshl_b32 s73, {sTB}, 1\ns_add_u32 s72, s72, s73\ns_lshl_b32 s72, s72, 4")
    a(f"s_lshl_b32 s73, {sCQ}, 1\ns_add_u32 s72, s72, s73\ns_add_u32 s72, s72, {sP}\ns_lshl_b32 s72, s72, 10")
    a(f"s_lshl_b32 s73, {sL}, 21\ns_add_u32 s72, s72, s73\ns_add_u32 s89, s72, {WS_OF}")
    if INB:
        inband_addresses(g)
    a("s_mov_b64 s[76:77], s[74:75]")
    l0_only(g, "l0p", lambda: (team_check(g), p1_setup(g)))
    wo = g.wo_dma()
    wo_early = g.layer == 1 and "wokv" in OPT
    if wo_early:
        for n in range(16):
            a(wo(n))
    g.poll("v9", "s[76:77]")
    a(f"s_lshl_b32 s76, {sR}, 1\ns_add_u32 s76, s76, {sTB}\ns_sub_u32 s77, 8, s76\ns_max_i32 s77, s77, 0")
    g.stamp(6)
    def kvdma(i, h, part):
        return (f"s_add_u32 m0, s87, {i*4096 + h*2048 + part}\ns_add_u32 s72, s{81+i}, {h*2048 + part}\n"
                f"buffer_load_dwordx4 v2, {SRD_WS}, s72 offen sc1 lds")
    for i in range(4):
        for h in range(2):
            a(kvdma(i, h, 0), tag="Kd")
    vd = [kvdma(i, h, 1024) for i in range(4) for h in range(2)]
    PB = next((int(o[2:]) for o in OPT if o.startswith("pb")), 4)
    early = "plate" not in OPT and (g.layer == 0 or "vp1" not in OPT)
    if early:
        for x in vd:
            a(x, tag="Vd")
        if g.layer == 0 and PB is None:
            p1_loads(g)
    heads = ("A", "B")
    q = {"A": QA, "B": QB}
    mx = {"A": (48, 49), "B": (50, 51)}

    def kread(b):
        t, h = b >> 1, b & 1
        return f"ds_read_b128 {ar(kfrag(b))}, v10 offset:{t*4096 + h*2048}"

    def vread(b, half):
        t, h = b >> 1, b & 1
        return f"ds_read_b128 {ar(vfrag(b, half))}, v11 offset:{t*4096 + h*2048 + 1024 + half*512}"

    def qk(b, c):
        return f"v_mfma_f32_32x32x16_bf16 {vr(SBUF[b & 3],16)}, {ar(kfrag(b))}, {vr(q[heads[b & 1]])}, {c}"

    def cmask(t):
        return vr(CFAR, 16) if t == 0 else vr(CDIAG, 16) if t == 8 else "0"

    for h in heads:
        a(f"v_mov_b32 v{mx[h][0]}, {NEG}\nv_mov_b32 v{mx[h][1]}, {NEG}")
    a.wait_tag("Kd")
    a("s_barrier")
    def passes(skips, layer=g.layer):
        keep, g.layer = g.layer, layer
        a.c("pass 1: true row maximum over the masked window")
        for b in range(4):
            a(kread(b))
        a(qk(0, cmask(0)))
        a(kread(4))
        a(qk(1, cmask(0)))
        for b in range(18):
            t, s_, h = b >> 1, SBUF[b & 3], heads[b & 1]
            if g.layer == 0 and ((b == 8 and not early) or (early and b == PB)):
                p1_loads(g)
            if skips and t < 8 and b % 2 == 0:
                stub, back = g.lab("p1s"), g.lab("p1b")
                always = [x for bb in (b, b + 1) for x in ([kread(bb + 5)] if bb + 5 < 18 else []) + ([qk(bb + 2, cmask((bb + 2) >> 1))] if bb + 2 < 18 else [])
                          + ([vd[bb]] if bb < 8 and not early else []) + ([wo(bb - 2)] if bb >= 2 and g.layer == 1 and not wo_early else [])]
                a(f"s_cmp_gt_u32 s77, {t}\ns_cbranch_scc1 {stub}")
            if b + 5 < 18:
                a(kread(b + 5))
            if b + 2 < 18:
                a(qk(b + 2, cmask((b + 2) >> 1)))
            if b < 8 and not early:
                a(vd[b], tag="Vd")
            for i in range(8):
                m = mx[h][i & 1]
                a(f"v_max3_f32 v{m}, v{m}, v{s_+2*i}, v{s_+2*i+1}")
                if i == 3 and b >= 2 and g.layer == 1 and not wo_early:
                    a(wo(b - 2))
            if skips and t < 8 and b % 2 == 1:
                a.label(back, reset=False)
                g.stubs.append((stub, back, ["s_waitcnt lgkmcnt(0)"] + [y for x in always for y in (x, "s_waitcnt lgkmcnt(0)")]))
        for h in heads:
            m0, m1 = mx[h]
            a(f"v_max_f32 v{m0}, v{m0}, v{m1}\nv_mov_b32 v{m1}, v{m0}")
        for h in heads:
            m0, m1 = mx[h]
            a(f"v_permlane32_swap_b32 v{m0}, v{m1}")
        for h in heads:
            m0, m1 = mx[h]
            a(f"v_max_f32 v{m0}, v{m0}, v{m1}\nv_xor_b32 v{m0}, 0x80000000, v{m0}")
        for i in range(16):
            a(f"v_mov_b32 v{NEGM['A']+i}, v{mx['A'][0]}")
        a(qk(0, vr(NEGM["A"], 16)))
        for i in range(16):
            a(f"v_mov_b32 v{NEGM['B']+i}, v{mx['B'][0]}")
        a.wait_tag("Vd")
        a("s_barrier")
        a(f"buffer_load_dword v21, v20, {SRD_WS}, s89 offen sc1\nbuffer_load_dword v23, v20, {SRD_WS}, s89 offen offset:512 sc1")
        a(f"s_lshl_b32 s72, {sL}, 5\ns_add_u32 s72, s72, {sR}\ns_lshl_b32 s72, s72, 3\ns_add_u32 s72, s72, {sCQ}\ns_lshl_b32 s72, s72, 10")
        a(f"s_lshl_b32 s73, {sWV}, 8\ns_add_u32 s72, s72, s73\ns_add_u32 s72, s72, {WS_ST}")
        a(f"s_mov_b64 exec, 0xffff\nbuffer_load_dword v22, v2, {SRD_WS}, s72 offen sc1\ns_mov_b64 exec, -1")
        g.stamp(7)
        a.c("pass 2: P = exp2(S - m), O += V^T P; block b exponentiates S_b, starts S_{b+1} and finishes block b-1")

        def s2(b):
            return SBUF[b & 1]

        def qk2(b):
            h = heads[b & 1]
            return f"v_mfma_f32_32x32x16_bf16 {vr(s2(b),16)}, {ar(kfrag(b))}, {vr(q[h])}, {vr(NEGM[h],16)}"

        def pv(b, half):
            h = heads[b & 1]
            o, p = OACC[h], PBUF[h]
            return f"v_mfma_f32_32x32x16_bf16 {vr(o,16)}, {ar(vfrag(b, half))}, {vr(p+4*half)}, {vr(o,16)}"

        wd_cur = []
        for b in range(18):
            t, h = b >> 1, heads[b & 1]
            nxt = [qk2(b + 1)] if b + 1 < 18 else []
            prv = [pv(b - 1, 0), pv(b - 1, 1)] if b >= 1 else []
            vl = ["s_mov_b64 exec, s[90:91]\n" + vread(b, 0) + "\n" + vread(b, 1) + "\ns_mov_b64 exec, -1"]
            TB0 = next((int(o[2:]) for o in OPT if o.startswith("pt")), 10 if early else 12)
            if g.layer == 0 and b == TB0:
                p1_finish(g)
            W2B = next((int(o[4:]) for o in OPT if o.startswith("w2p2")), None)
            if g.layer == 0 and b == W2B:
                a(warmup_text(SRD_W2P, "v24"))
            per = 3 if TB0 >= 12 else 2
            wd = [wo(i) for i in range(per * (b - TB0), min(per * (b - TB0) + per, 16))] if g.layer == 0 and b >= TB0 else []
            if INB and b == 2:
                for e in range(2):
                    a(f"buffer_store_dwordx4 v[28:31], v2, {SRD_WS}, {sHB} offen offset:{e*1024} sc1")
            if INB and b == 4:
                a("s_mov_b32 exec_lo, 0x55555555\ns_mov_b32 exec_hi, 0x55555555")
                for i in range(3):
                    a(f"buffer_store_dwordx4 v[28:31], v25, {SRD_WS}, s{sUO+i} offen sc1")
                a("s_mov_b64 exec, -1")
            if skips and t < 8 and b % 2 == 0:
                stub, back = g.lab("sk"), g.lab("bk")
                a(f"s_cmp_gt_u32 s77, {t}\ns_cbranch_scc1 {stub}")
            s_, p = s2(b), PBUF[h]
            extra = {1: nxt[:1], 2: wd[:1], 4: prv[:1], 7: wd[1:2], 9: prv[1:2], 11: vl, 13: wd[2:3]}
            wd_prev, wd_cur = (wd_cur if b else []), wd
            for i in range(16):
                a(f"v_exp_f32 v{s_+i}, v{s_+i}")
                if i >= 2 and i % 2 == 0:
                    k = i // 2 - 1
                    a(f"v_cvt_pk_bf16_f32 v{p+k}, v{s_+2*k}, v{s_+2*k+1}")
                for x in extra.get(i, []):
                    a(x)
            a(f"s_nop 0\nv_cvt_pk_bf16_f32 v{p+7}, v{s_+14}, v{s_+15}")
            if t in (0, 8):
                msk = ANDF if t == 0 else ANDD
                for k in range(8):
                    a(f"v_and_b32 v{p+k}, v{msk+k}, v{p+k}")
            if skips and t < 8 and b % 2 == 1:
                a.label(back, reset=False)
                g.stubs.append((stub, back, nxt + wd_prev + wd_cur))
        a(pv(17, 0)); a(pv(17, 1))
        g.layer = keep
    if "fastattn" not in OPT:
        passes(True)
    else:
        gen_, join = g.lab("ag"), g.lab("aj")
        a(f"s_cmp_lt_u32 {sR}, 4\ns_cbranch_scc1 {gen_}")
        a.snap(gen_)
        passes(False)
        a.label(join, reset=False)
        g.late.append((gen_, join, lambda: (a.restore(gen_), passes(True))))
    g.stamp(8)
    for hi, h in enumerate(heads):
        o = OACC[h]
        a(f"v_rcp_f32 v52, v{o+8}")
        for i in range(8):
            a(f"v_mul_f32 v{o+i}, v52, v{o+i}")
        for k in range(4):
            a(f"v_cvt_pk_bf16_f32 v{o+k}, v{o+2*k}, v{o+2*k+1}")

    def ost(m):
        for hi, h in enumerate(heads):
            a(f"buffer_store_dwordx4 {vr(OACC[h])}, v20, {SRD_WS}, s89 offen offset:{hi*512} {m}", tag="Ost")
    g.dual(ost)


L_STG = L_RING + 10240
L_STG2 = L_RING
V_W1D, V_W1R, V_W2D, V_W2R = 52, 56, 40, 42


PA1 = 96
V_P1 = 12


def p1_setup(g):
    a = g.a
    a("s_lshr_b32 s72, s2, 2\ns_and_b32 s73, s2, 3")
    a("s_mul_i32 s74, s73, 7\ns_min_u32 s75, s73, 1\ns_add_u32 s74, s74, s75")
    a("s_cmp_eq_u32 s73, 0\ns_cselect_b32 s75, 8, 7")
    a(f"s_mul_i32 s101, s72, {32*2752}\ns_mul_i32 s73, s74, 96\ns_add_u32 s101, s101, s73\ns_mul_i32 s75, s75, 6")
    a("s_mov_b32 s72, 1311\ns_mov_b32 s73, 2752")
    for n in range(7):
        a(f"s_lshl_b32 s74, {sWV}, 6\ns_add_u32 s74, s74, {256*n}\nv_add_u32 v3, s74, v1")
        a("v_mul_lo_u32 v4, v3, s72\nv_lshrrev_b32 v4, 16, v4\nv_mul_u32_u24 v5, 50, v4\nv_sub_u32 v5, v3, v5")
        a("v_mul_lo_u32 v6, v4, s73\nv_lshl_add_u32 v6, v5, 4, v6")
        a("v_cmp_gt_u32 vcc, s75, v5\nv_cmp_gt_u32 s[78:79], 32, v4\ns_and_b64 vcc, vcc, s[78:79]")
        a(f"v_mov_b32 v5, 0x7ff00000\nv_cndmask_b32 v{V_P1+n}, v5, v6, vcc")


def p1_loads(g):
    a = g.a
    for n in range(7):
        a(f"buffer_load_dwordx4 {ar(PA1+4*n)}, v{V_P1+n}, {SRD_W1}, s101 offen")


def p1_finish(g):
    a = g.a
    L1 = L_X
    a("s_lshr_b32 s72, s2, 2\ns_and_b32 s73, s2, 3")
    a("s_mul_i32 s74, s73, 7\ns_min_u32 s75, s73, 1\ns_add_u32 s74, s74, s75")
    a("s_cmp_eq_u32 s73, 0\ns_cselect_b32 s75, 8, 7")
    a(f"s_lshl_b32 s80, {sWV}, 10\ns_add_u32 s80, s80, {L1}\nv_add_u32 v120, s80, v2")
    for n in range(7):
        a(f"ds_write_b128 v120, {ar(PA1+4*n)} offset:{n*4096}")
    a("v_lshrrev_b32 v121, 4, v1\nv_lshlrev_b32 v121, 3, v121\nv_bfe_u32 v122, v1, 2, 2\nv_add_u32 v121, v121, v122\nv_and_b32 v122, 3, v1")
    a(f"v_mul_u32_u24 v123, 800, v121\nv_lshl_add_u32 v123, v122, 3, v123\ns_lshl_b32 s80, {sWV}, 5\ns_add_u32 s80, s80, {L1}\nv_add_u32 v123, s80, v123")
    a("s_waitcnt lgkmcnt(0)\ns_barrier")
    for n in range(6):
        for rd in range(2):
            a(f"ds_read_b64_tr_b16 v[{96+4*n+2*rd}:{97+4*n+2*rd}], v123 offset:{128*n + rd*3200}")
    for n in range(6):
        a(f"s_add_u32 s80, {sWV}, {4*n}\ns_mul_i32 s81, s80, 43\ns_lshr_b32 s81, s81, 7\ns_mul_i32 s82, s81, 3\ns_sub_u32 s82, s80, s82")
        a("s_cmp_lt_u32 s81, s75\ns_cselect_b32 s85, 0, 0x70000000")
        a("s_add_u32 s81, s81, s74\ns_lshl_b32 s81, s81, 6\ns_add_u32 s81, s81, s72\ns_mul_i32 s81, s81, 3\ns_add_u32 s81, s81, s82")
        a(f"s_lshl_b32 s81, s81, 10\ns_add_u32 s81, s81, {WS_W1P}\ns_or_b32 s81, s81, s85")
        a(f"buffer_store_dwordx4 {vr(96+4*n)}, v2, {SRD_WS}, s81 offen sc1")
    a("s_waitcnt lgkmcnt(0)\ns_barrier")


def early_w1(g, i0, i1, check=False):
    a = g.a
    skip = g.lab("e1")
    a(f"s_cmp_eq_u32 {sM1}, 0\ns_cbranch_scc1 {skip}")
    with a.cond("m1"):
        if check:
            l0_only(g, "l0c", lambda: (p1_check(g), w1_loads(g, 0, i0)))
        w1_loads(g, i0, i1)
    a.label(skip, reset=False)


def l0_only(g, name, fn):
    if g.layer == 0:
        fn()


def p1_check(g):
    a = g.a
    a(f"s_cmp_ge_u32 {sJ1}, 8\ns_cselect_b32 s72, 1, 0\ns_cmp_ge_u32 {sJ1}, 15\ns_addc_u32 s72, s72, 0")
    a(f"s_cmp_ge_u32 {sJ1}, 22\ns_addc_u32 s72, s72, 0")
    a(f"s_lshl_b32 s73, {sWV}, 4\nv_add_u32 v9, s73, v1\nv_lshl_add_u32 v9, v9, 2, s72")
    a(f"v_lshlrev_b32 v9, 7, v9\nv_add_u32 v9, {WS_FLAG + PH_P*2*256*128}, v9")
    g.poll("v9", "0xffff")


def w1_step_addr(g, dst, base, st):
    a = g.a
    if ROT:
        a(f"s_lshr_b32 {dst}, s2, 5\ns_lshl_b32 {dst}, {dst}, 1\ns_add_u32 {dst}, {dst}, {st}\ns_and_b32 {dst}, {dst}, 15\ns_mul_i32 {dst}, {dst}, 3072\ns_add_u32 {dst}, {dst}, {base}")
    else:
        a(f"s_add_u32 {dst}, {base}, {st*3072}")


def w1_loads(g, i0, i1):
    a = g.a
    a(f"s_lshl_b32 s72, {sJ1}, 6\ns_lshl_b32 s73, {sWV}, 4\ns_add_u32 s72, s72, s73\ns_mul_i32 s72, s72, 3072\ns_add_u32 s72, s72, {WS_W1P}")
    for i in range(i0, i1):
        st, ft = divmod(i, 3)
        if ft == 0 or i == i0:
            w1_step_addr(g, "s73", "s72", st)
        a(f"buffer_load_dwordx4 {ar(4*i)}, v2, {SRD_WS}, s73 offen offset:{ft*1024} sc1")


def m1_only(g, fn):
    a = g.a
    skip = g.lab("m1s")
    a(f"s_cmp_eq_u32 {sM1}, 0\ns_cbranch_scc1 {skip}")
    with a.cond("m1"):
        fn()
    a.label(skip, reset=False)


def w2_setup(g):
    a = g.a
    a("v_lshrrev_b32 v3, 3, v1\nv_lshlrev_b32 v3, 12, v3\nv_bfe_u32 v4, v1, 1, 2\nv_bfe_u32 v5, v1, 4, 1\nv_and_b32 v6, 1, v1")
    for e in range(2):
        a(f"v_or_b32 v7, {2*e}, v5\nv_xor_b32 v7, v4, v7\nv_lshl_add_u32 v7, v7, 1, v6\nv_lshl_add_u32 v{V_W2D+e}, v7, 4, v3")
    a("v_lshrrev_b32 v3, 4, v1\nv_lshlrev_b32 v4, 3, v3\nv_bfe_u32 v5, v1, 2, 2\nv_add_u32 v4, v4, v5\nv_lshlrev_b32 v4, 7, v4")
    a("v_and_b32 v5, 3, v1\nv_lshl_add_u32 v4, v5, 3, v4\nv_and_b32 v3, 1, v3\nv_lshlrev_b32 v3, 1, v3\nv_bfe_u32 v5, v1, 3, 1\nv_or_b32 v3, v3, v5")
    for k in range(4):
        a(f"v_xor_b32 v5, {k}, v3\nv_lshl_add_u32 v{V_W2R+k}, v5, 5, v4")
    a(f"s_mul_i32 s89, {sWV}, {11*32*4096}\ns_lshl_b32 s88, {sR}, 7\ns_add_u32 s89, s89, s88")


def w2_lds(st):
    if st < 5:
        return ("s86", st * 4096)
    if st < 9:
        return ("s87", (st - 5) * 4096)
    return ("s86", (st - 9) * 4096)


def w2_bases(g):
    g.a(f"s_mul_i32 s86, {sWV}, 20480\ns_add_u32 s86, s86, {L_STG2}\ns_lshl_b32 s87, {sWV}, 14\ns_add_u32 s87, s87, {L_X}")


def w2_dma_text(st, m):
    base, off = w2_lds(st)
    return (f"s_add_u32 m0, {base}, {off + m*1024}\ns_add_u32 s88, s89, {(st*32 + 8*m)*4096}",
            f"buffer_load_dwordx4 v{V_W2D + (m & 1)}, {SRD_W2P}, s88 offen lds")


def w2_dma(g, st, m, uncond=False):
    pre, ld = w2_dma_text(st, m)
    g.a(pre)
    (g.a.uncond if uncond else g.a)(ld, tag=f"D2_{0 if st < 5 else 5 if st < 9 else 9}")
    return pre + "\n" + ld


def w2_tr(g, s0, s1):
    a = g.a
    base, _ = w2_lds(s0)
    for k in range(4):
        a(f"v_add_u32 v{32+k}, {base}, v{V_W2R+k}")
    for st in range(s0, s1):
        _, off = w2_lds(st)
        for k in range(4):
            for rd in range(2):
                b = (st*4 + k) * 4 + 2*rd
                a(f"ds_read_b64_tr_b16 a[{b}:{b+1}], v{32+k} offset:{off + rd*512}")


def u_producers(g, dst, lane0):
    a = g.a
    a(f"s_mul_i32 s72, {sWV}, 352\ns_mul_hi_u32 s72, s72, {(1 << 32)//48 + 1}\ns_sub_u32 s72, s72, {lane0}\nv_add_u32 v8, s72, v1\nv_max_i32 v8, 0, v8\nv_min_u32 v8, 28, v8")
    a("v_cmp_le_u32 vcc, 8, v8\nv_cndmask_b32 v6, 0, 1, vcc\nv_cmp_le_u32 vcc, 15, v8\nv_addc_co_u32 v6, vcc, 0, v6, vcc")
    a("v_cmp_le_u32 vcc, 22, v8\nv_addc_co_u32 v6, vcc, 0, v6, vcc")
    a("v_mul_u32_u24 v7, 7, v6\nv_min_u32 v9, 1, v6\nv_add_u32 v7, v7, v9\nv_sub_u32 v7, v8, v7")
    a(f"s_and_b32 s72, {sCQ}, 3\ns_lshr_b32 s73, {sCQ}, 2\nv_lshl_add_u32 v7, v7, 2, s72\nv_lshlrev_b32 v7, 3, v7")
    a(f"v_lshl_add_u32 {dst}, v6, 1, v7\nv_add_u32 {dst}, s73, {dst}")


def sentinel(g, loads, srd):
    a = g.a
    top, ok = g.lab("sn"), g.lab("sno")
    a(f"s_mov_b32 {sCNT}, 0")
    a.label(top, reset=False)
    with a.cond(top):
        for k, (addr, soff) in enumerate(loads):
            a(f"buffer_load_dword v{4+k}, {addr}, {srd}, {soff} offen sc1")
        a("s_waitcnt vmcnt(0)")
        a("v_cmp_eq_u32 vcc, -1, v4")
        for k in range(1, len(loads)):
            a(f"v_cmp_eq_u32 s[72:73], -1, v{4+k}\ns_or_b64 vcc, vcc, s[72:73]")
        a(f"s_cbranch_vccz {ok}")
        a(f"s_add_u32 {sCNT}, {sCNT}, 1\ns_cmp_lt_u32 {sCNT}, {POLL_LIMIT}\ns_cbranch_scc1 {top}")
    a.label(ok, reset=False)


def redo_end(g, redo):
    a = g.a
    done = g.lab("rd")
    a(f"s_cmp_eq_u64 {sACC}, 0\ns_cbranch_scc1 {done}")
    if g.diag:
        g.srd(32, P_DBG, 256)
        a(f"v_mov_b32 v4, 1\nv_mov_b32 v5, 4\ns_mov_b64 exec, 1\nbuffer_atomic_add v4, v5, {SRD_T}, 0 offen\ns_mov_b64 exec, -1")
    a(f"s_add_u32 {sREDO}, {sREDO}, 1\ns_cmp_lt_u32 {sREDO}, 64\ns_cbranch_scc1 {redo}")
    a.label(done, reset=False)


def o_flags(g):
    a = g.a
    a(f"v_mov_b32 v8, {sR}\nv_and_b32 v9, 3, v8\nv_lshlrev_b32 v9, 3, v9\nv_add_u32 v9, v1, v9\nv_lshlrev_b32 v9, 3, v9")
    a("v_lshrrev_b32 v7, 2, v8\nv_add_u32 v9, v9, v7")
    g.vflag("v9", PH_O)
    a("s_mov_b32 s76, 0xff\ns_mov_b32 s77, 0")
    if g.layer == 0:
        a(f"s_cmp_ge_u32 {sJ1}, 8\ns_cselect_b32 s72, 1, 0\ns_cmp_ge_u32 {sJ1}, 15\ns_addc_u32 s72, s72, 0")
        a(f"s_cmp_ge_u32 {sJ1}, 22\ns_addc_u32 s72, s72, 0")
        a(f"s_lshl_b32 s73, {sWV}, 4\ns_sub_u32 s73, s73, 8\nv_add_u32 v8, s73, v1\nv_lshl_add_u32 v8, v8, 2, s72\nv_and_b32 v8, 255, v8")
        a(f"v_lshlrev_b32 v8, 7, v8\nv_add_u32 v8, {WS_FLAG + PH_P*2*256*128}, v8")
        a("v_cmp_le_u32 vcc, 8, v1\nv_cndmask_b32 v9, v9, v8, vcc")
        a(f"s_cmp_eq_u32 {sM1}, 0\ns_cselect_b32 s76, s76, 0xffffff")


def oproj(g):
    a = g.a
    a.c("======== output projection, residual, double LayerNorm")
    OFR, WPRE, WFR, ACC = 64, 128, 14, 46
    a("v_lshrrev_b32 v3, 5, v1\nv_lshlrev_b32 v3, 4, v3\nv_bfe_u32 v4, v1, 4, 1\nv_lshl_add_u32 v3, v4, 2, v3")
    a("v_bfe_u32 v5, v1, 2, 2\nv_add_u32 v3, v3, v5\nv_bfe_u32 v5, v3, 1, 2\nv_and_b32 v6, 3, v1\nv_lshlrev_b32 v6, 3, v6")
    a("v_lshl_add_u32 v6, v3, 7, v6")
    for nt in range(4):
        a(f"v_xor_b32 v7, {nt}, v5\nv_lshl_add_u32 v{10+nt}, v7, 5, v6")

    def wreg(ks, nt):
        return WPRE + ks * 16 + nt * 4 if ks < 8 else WFR + (ks & 1) * 16 + nt * 4

    def wread(ks, nt):
        b = wreg(ks, nt)
        for rd in range(2):
            a(f"ds_read_b64_tr_b16 v[{b+2*rd}:{b+2*rd+1}], v{10+nt} offset:{L_X + ks*4096 + rd*1024}")
    for ks in range(8):
        for nt in range(4):
            wread(ks, nt)
    g.poll("v9", "s[76:77]")
    a("s_waitcnt vmcnt(0) lgkmcnt(0)")
    g.stamp(10)
    a(f"s_lshl_b32 s72, {sR}, 2\ns_add_u32 s72, s72, {sWV}\ns_lshl_b32 s72, s72, 14\ns_lshl_b32 s73, {sL}, 21")
    a(f"s_add_u32 s72, s72, s73\ns_add_u32 s74, s72, {WS_OF}")

    def oload(ks):
        if ks & 3 == 0 or ks == OD:
            a(f"s_add_u32 s73, s74, {(ks >> 2)*4096}")
        a(f"buffer_load_dwordx4 {vr(OFR+4*ks)}, v2, {SRD_WS}, s73 offen offset:{(ks & 3)*1024} sc1")
    OD = 11
    for ks in range(OD):
        oload(ks)
    g.stamp(25)

    def main(w1):
        if w1:
            a(f"s_lshl_b32 s76, {sJ1}, 6\ns_lshl_b32 s77, {sWV}, 4\ns_add_u32 s76, s76, s77\ns_mul_i32 s76, s76, 3072\ns_add_u32 s76, s76, {WS_W1P}")
        for ks in range(16):
            if ks + OD < 16:
                oload(ks + OD)
            for nt in range(4):
                c = "0" if ks == 0 else vr(ACC + 4*nt)
                a(f"v_mfma_f32_16x16x32_bf16 {vr(ACC+4*nt)}, {vr(wreg(ks, nt))}, {vr(OFR+4*ks)}, {c}")
                if 6 <= ks <= 13:
                    wread(ks + 2, nt)
                if w1 and nt == 1 and ks >= 4:
                    for i in ((ks - 4) * 2, (ks - 4) * 2 + 1) if ks < 12 else ():
                        st, ft = divmod(i, 3)
                        w1_step_addr(g, "s77", "s76", st)
                        a(f"buffer_load_dwordx4 {ar(4*i)}, v2, {SRD_WS}, s77 offen offset:{ft*1024} sc1")
            if ks == 0:
                g.stamp(28)
            if ks == 7:
                g.stamp(29)
    la, lb = g.lab("oa"), g.lab("ob")
    a(f"s_cmp_eq_u32 {sM1}, 0\ns_cbranch_scc1 {la}")
    a.snap(la)
    main(True)
    a.label(lb, reset=False)
    g.late.append((la, lb, lambda: (a.restore(la), main(False))))
    g.stamp(11)
    a(f"v_and_b32 v3, 15, v1\ns_lshl_b32 s72, {sWV}, 4\nv_add_u32 v14, s72, v3\nv_lshrrev_b32 v4, 4, v1")
    a(f"v_mul_u32_u24 v5, 144, v14\nv_lshl_add_u32 v5, v4, 3, v5\nv_add_u32 v15, {L_R}, v5")
    for nt in range(4):
        a(f"ds_read_b64 v[{176+2*nt}:{177+2*nt}], v15 offset:{32*nt}")
    X1 = 192
    for nt in range(4):
        for k in range(2):
            a(f"v_lshlrev_b32 v{X1+4*nt+2*k}, 16, v{176+2*nt+k}\nv_and_b32 v{X1+4*nt+2*k+1}, 0xffff0000, v{176+2*nt+k}")
    for i in range(16):
        a(f"v_add_f32 v{X1+i}, v{X1+i}, v{ACC+i}")
    for k in range(8):
        a(f"v_cvt_pk_bf16_f32 v{176+k}, v{X1+2*k}, v{X1+2*k+1}")
    for nt in range(4):
        a(f"ds_write_b64 v15, v[{176+2*nt}:{177+2*nt}] offset:{32*nt}")
    a(f"v_add_f32 v16, v{X1}, v{X1+1}\nv_mul_f32 v17, v{X1}, v{X1}\nv_fmac_f32 v17, v{X1+1}, v{X1+1}")
    for i in range(2, 16):
        a(f"v_add_f32 v16, v16, v{X1+i}\nv_fmac_f32 v17, v{X1+i}, v{X1+i}")

    def fold_groups(r0, r1):
        for sw in ("16", "32"):
            a(f"v_mov_b32 v20, v{r0}\nv_mov_b32 v21, v{r1}")
            a(f"v_permlane{sw}_swap_b32 v{r0}, v20\nv_permlane{sw}_swap_b32 v{r1}, v21")
            a(f"v_add_f32 v{r0}, v{r0}, v20\nv_add_f32 v{r1}, v{r1}, v21")
    fold_groups(16, 17)
    a(f"v_mov_b32 v18, {sN}\nv_mov_b32 v19, {sNN}")
    a(f"s_lshl_b32 s72, {sL}, 5\ns_add_u32 s72, s72, {sR}\ns_lshl_b32 s72, s72, 13\ns_add_u32 s72, s72, {WS_ST}")
    a(f"s_lshl_b32 s73, {sCQ}, 10\ns_add_u32 s73, s73, s72\nv_lshlrev_b32 v22, 4, v14")
    a("s_mov_b64 exec, 0xffff")
    g.dual(lambda m: a(f"buffer_store_dwordx4 v[16:19], v22, {SRD_WS}, s73 offen {m}"))
    a("s_mov_b64 exec, -1")
    g.stamp(26)
    if INB:
        a(f"s_lshl_b32 s73, {sWV}, 3\nv_add_u32 v34, s73, v1")
        g.wg_of("v35", "v34", sC1)
        u_producers(g, "v36", 8)
        a("v_cmp_le_u32 vcc, 8, v1\nv_cndmask_b32 v35, v35, v36, vcc\nv_and_b32 v35, 255, v35")
        g.vflag("v35", PH_PD)
        a(f"s_lshl_b32 s44, {sM1}, 8\ns_sub_u32 s44, s44, {sM1}\ns_or_b32 s44, s44, 0xff00\ns_mov_b32 s45, 0")
        a(f"s_mov_b64 exec, s[44:45]\nbuffer_load_dwordx2 v[32:33], v35, {SRD_WS}, 0 offen sc1\ns_mov_b64 exec, -1")
    if "w1st" in OPT:
        early_w1(g, 16, 28)
    a("v_lshrrev_b32 v4, 4, v1")
    g.stamp(27)
    a(f"s_lshl_b32 s72, {sL}, 5\ns_add_u32 s72, s72, {sR}\ns_lshl_b32 s72, s72, 13\ns_add_u32 s72, s72, {WS_ST}")
    a("v_lshl_add_u32 v23, v4, 11, v22\ns_mov_b32 s100, 0")
    top, ok = g.lab("stp"), g.lab("sto")
    a.label(top, reset=False)
    a(f"buffer_load_dwordx4 v[24:27], v23, {SRD_WS}, s72 offen sc1")
    a(f"buffer_load_dwordx4 v[28:31], v23, {SRD_WS}, s72 offen offset:1024 sc1")
    a("s_waitcnt vmcnt(0)")
    a(f"v_cmp_ne_u64 vcc, {sNP}, v[26:27]\nv_cmp_ne_u64 s[74:75], {sNP}, v[30:31]\ns_or_b64 vcc, vcc, s[74:75]")
    a(f"s_cbranch_vccz {ok}")
    a(f"s_add_u32 s100, s100, 1\ns_cmp_lt_u32 s100, {POLL_LIMIT}\ns_cbranch_scc1 {top}\ns_branch L_fail")
    a.label(ok, reset=False)
    if INB:
        pd = g.lab("pd")
        a(f"s_mov_b64 exec, s[44:45]\nv_cmp_ne_u64 vcc, {sNP}, v[32:33]\ns_mov_b64 exec, -1\ns_cbranch_vccz {pd}")
        with a.cond(pd):
            a("v_mov_b32 v36, v4\nv_mov_b32 v37, v5")
            g.poll("v35", "s[44:45]")
            a("v_mov_b32 v4, v36\nv_mov_b32 v5, v37")
        a.label(pd, reset=False)
    g.stamp(12)
    HT = L_RING

    def normalise():
        a("v_add_f32 v16, v24, v28\nv_add_f32 v17, v25, v29")
        fold_groups(16, 17)
        a(f"v_mul_f32 v16, {f32(1/512)}, v16\nv_mul_f32 v17, {f32(1/512)}, v17\nv_fma_f32 v17, -v16, v16, v17\nv_max_f32 v17, 0, v17")
        a(f"v_add_f32 v18, {f32(1e-5)}, v17\nv_rsq_f32 v18, v18")
        a(f"v_mul_f32 v19, v18, v18\nv_mul_f32 v19, v19, v17\nv_add_f32 v19, {f32(1e-5)}, v19\nv_rsq_f32 v19, v19\nv_mul_f32 v18, v18, v19")
        for i in range(16):
            a(f"v_sub_f32 v{X1+i}, v{X1+i}, v16")
        for i in range(16):
            a(f"v_mul_f32 v{X1+i}, v18, v{X1+i}")
        for k in range(8):
            a(f"v_cvt_pk_bf16_f32 v{176+k}, v{X1+2*k}, v{X1+2*k+1}")
        a(f"v_mul_u32_u24 v5, 160, v14\nv_lshl_add_u32 v5, v4, 3, v5\nv_add_u32 v5, {HT}, v5")
        for nt in range(4):
            a(f"ds_write_b64 v5, v[{176+2*nt}:{177+2*nt}] offset:{32*nt}")
        a("v_lshrrev_b32 v3, 4, v1\nv_lshlrev_b32 v3, 3, v3\nv_bfe_u32 v6, v1, 2, 2\nv_add_u32 v3, v3, v6")
        a(f"s_lshl_b32 s72, {sTB}, 5\nv_add_u32 v3, s72, v3\nv_mul_u32_u24 v3, 160, v3\nv_and_b32 v6, 3, v1\nv_lshl_add_u32 v3, v6, 3, v3")
        a(f"s_lshl_b32 s72, {sP}, 6\ns_add_u32 s72, s72, {HT}\nv_add_u32 v3, s72, v3")

    if "w1st" in OPT:
        normalise()
    else:
        a(f"s_lshl_b32 s90, {sJ1}, 6\ns_lshl_b32 s91, {sWV}, 4\ns_add_u32 s90, s90, s91\ns_mul_i32 s90, s90, 3072\ns_add_u32 s90, s90, {WS_W1P}")
        a(f"s_cmp_eq_u32 {sM1}, 0\ns_cselect_b32 s90, 0x70000000, s90")

        def w1_n(i):
            st, ft = divmod(i, 3)
            if ft == 0 or i == 16:
                a(f"s_add_u32 s91, s90, {st*3072}")
            a(f"buffer_load_dwordx4 {ar(4*i)}, v2, {SRD_WS}, s91 offen offset:{ft*1024} sc1")
        a.weave([a.capture(lambda i=i: w1_n(i)) for i in range(16, 28)], a.capture(normalise))
    a("s_waitcnt lgkmcnt(0)\ns_barrier")
    for e in range(2):
        for rd in range(2):
            a(f"ds_read_b64_tr_b16 v[{184+4*e+2*rd}:{185+4*e+2*rd}], v3 offset:{32*e + rd*640}")
    if INB:
        a(f"s_mov_b32 s72, {sHB}")
    else:
        a(f"s_lshl_b32 s72, {sCQ}, 6\ns_lshl_b32 s73, {sR}, 1\ns_add_u32 s72, s72, s73\ns_add_u32 s72, s72, {sTB}\ns_lshl_b32 s72, s72, 2")
        a(f"s_lshl_b32 s73, {sP}, 1\ns_add_u32 s72, s72, s73\ns_lshl_b32 s72, s72, 10\ns_lshl_b32 s73, {sL}, 21\ns_add_u32 s72, s72, s73\ns_add_u32 s72, s72, {WS_H}")
    for e in range(2):
        a(f"buffer_store_dwordx4 {vr(184+4*e)}, v2, {SRD_WS}, s72 offen offset:{e*1024} sc1", tag="Hst")


def mix1(g):
    a = g.a
    a.c("======== token mixing 1: u = gelu(h^T W1 + b1)")
    skip, other = g.lab("m1"), g.lab("m1o")
    w2_setup(g)
    w2_bases(g)
    a(f"s_cmp_eq_u32 {sM1}, 0\ns_cbranch_scc1 {other}")
    w2_text = []

    def w2(i):
        return w2_dma(g, i >> 2, i & 3, uncond=True)
    with a.cond("m1"):
        def m1_setup():
            g.srd(32, P_B1, 2752)
            a(f"s_mul_i32 s72, {sJ1}, 96\nv_and_b32 v3, 1, v1\nv_lshlrev_b32 v3, 3, v3\ns_mul_i32 s73, {sWV}, 3")
            for i in range(3):
                a(f"s_add_u32 s74, s73, {i}\ns_lshr_b32 s74, s74, 1\ns_lshl_b32 s74, s74, 4\ns_add_u32 s74, s74, s72")
                a(f"buffer_load_dwordx2 v[{14+2*i}:{15+2*i}], v3, {SRD_T}, s74 offen")
            if not INB:
                a(f"s_lshl_b32 s73, {sWV}, 3\nv_add_u32 v8, s73, v1")
                g.wg_of("v9", "v8", sC1)
                g.vflag("v9", PH_H)
            c0 = -2 * math.log2(math.e) * math.sqrt(2 / math.pi)
            c1 = c0 * 0.044715
            a(f"v_and_b32 v3, 15, v1\nv_mul_u32_u24 v3, 208, v3\nv_lshrrev_b32 v4, 4, v1\nv_lshl_add_u32 v3, v4, 4, v3")
            a(f"s_mul_i32 s72, {sWV}, 13312\nv_add_u32 v13, s72, v3")
            a("v_lshrrev_b32 v3, 1, v1\nv_mul_u32_u24 v10, 208, v3\nv_and_b32 v4, 1, v1\nv_lshl_add_u32 v10, v4, 4, v10")
            a("v_lshrrev_b32 v5, 5, v1\nv_lshlrev_b32 v11, 10, v5\nv_and_b32 v3, 15, v3\nv_lshl_add_u32 v11, v3, 4, v11")
            if not INB:
                a("v_lshl_add_u32 v11, v4, 3, v11")
            a(f"s_mul_i32 s76, {sWV}, 3\ns_mov_b32 s84, {f32(c1)}\ns_mov_b32 s85, {f32(c0)}")
            for i in range(3):
                a(f"s_add_u32 s72, s76, {i}\ns_lshr_b32 s73, s72, 1\ns_and_b32 s72, s72, 1")
                a(f"s_mul_i32 s74, s72, {32*208}\ns_lshl_b32 s75, s73, 5\ns_add_u32 s74, s74, s75\nv_add_u32 v{20+i}, s74, v10")
            if INB:
                for i in range(3):
                    a(f"s_mov_b32 s{80+i}, s{sUO+i}")
            else:
                u_offsets(g, 80)

        def w1_one(i):
            st, ft = divmod(i, 3)
            if ft == 0 or i == 40:
                a(f"s_add_u32 s91, s90, {st*3072}")
            a(f"buffer_load_dwordx4 {ar(4*i)}, v2, {SRD_WS}, s91 offen offset:{ft*1024} sc1")
        a(f"s_lshl_b32 s90, {sJ1}, 6\ns_lshl_b32 s91, {sWV}, 4\ns_add_u32 s90, s90, s91\ns_mul_i32 s90, s90, 3072\ns_add_u32 s90, s90, {WS_W1P}")
        a.weave([a.capture(lambda i=i: w1_one(i)) for i in range(40, 48)], a.capture(m1_setup))
        HD = next((int(o[2:]) for o in OPT if o.startswith("hd")), 15)
        HB, NS, ACC = 64, HD + 9, 192
        a(f"s_lshl_b32 s72, {sC1}, 6\ns_lshl_b32 s73, {sWV}, 4\ns_add_u32 s72, s72, s73\ns_lshl_b32 s72, s72, 12")
        a(f"s_lshl_b32 s73, {sL}, 21\ns_add_u32 s72, s72, s73\ns_add_u32 s43, s72, {WS_H}")
        if INB:
            a(f"v_lshlrev_b32 v9, 10, v1\nv_add_u32 v9, 1008, v9\ns_mov_b32 {sREDO}, 0")
            redo = g.lab("m1r")
            a.label(redo, reset=False)
            sentinel(g, [("v9", "s43")], SRD_WS)
            a(f"s_mov_b64 {sACC}, 0")
        else:
            g.poll("v9", "0xff")
        g.stamp(14)
        a("s_mov_b32 s72, s43")
        nload = [0]

        def hload():
            n = nload[0]
            if ROT:
                if n & 3 == 0:
                    a(f"s_lshr_b32 s72, s2, 5\ns_lshl_b32 s72, s72, 1\ns_add_u32 s72, s72, {n >> 2}\ns_and_b32 s72, s72, 15\ns_lshl_b32 s72, s72, 12\ns_add_u32 s72, s72, s43")
                a(f"buffer_load_dwordx4 {vr(HB + 4*(n % NS))}, v2, {SRD_WS}, s72 offen offset:{(n & 3)*1024} sc1")
            else:
                a(f"buffer_load_dwordx4 {vr(HB + 4*(n % NS))}, v2, {SRD_WS}, s72 offen offset:{(n & 3)*1024} sc1")
                if n & 3 == 3:
                    a("s_add_u32 s72, s72, 4096")
            nload[0] += 1
        for _ in range(HD):
            hload()
        for st in range(16):
            for dt in range(4):
                hb = HB + 4 * ((st*4 + dt) % NS)
                for ft in range(3):
                    acc = ACC + (ft*4 + dt) * 4
                    c = "0" if st == 0 else ar(acc)
                    a(f"v_mfma_f32_16x16x32_bf16 {ar(acc)}, {ar((st*3+ft)*4)}, {vr(hb)}, {c}")
                    if INB and ft == 0:
                        a(f"v_cmp_eq_u32 vcc, -1, v{hb}\ns_or_b64 {sACC}, {sACC}, vcc")
                if nload[0] < 64:
                    hload()
                if "noew" not in OPT and not INB and st == 15 and dt >= 1:
                    for ft in range(3):
                        a(f"ds_write_b128 v13, {ar(ACC + (ft*4+dt-1)*4)} offset:{L_X + (dt-1)*16*208 + ft*64}")
                if st == 0 and dt == 0:
                    g.stamp(30)
                if st == 7 and dt == 3:
                    g.stamp(31)
        if INB:
            redo_end(g, redo)
        l0_only(g, "l0t", lambda: (warmup(g, SRD_W2P, "v60") if not NOW2 else None, a(x2_touch_text())))
        g.stamp(15)
        nw2 = 0
        for dt in range(4):
            if "noew" not in OPT and not INB and dt < 3:
                continue
            for ft in range(3):
                a(f"ds_write_b128 v13, {ar(ACC + (ft*4+dt)*4)} offset:{L_X + dt*16*208 + ft*64}")
        a("s_waitcnt lgkmcnt(0)\ns_barrier")
        for i in range(3):
            for k in range(4):
                a(f"ds_read_b128 {vr(64 + 16*i + 4*k)}, v{20+i} offset:{L_X + k*13312}")
        if g.layer == 0:
            sk3 = g.lab("ep")
            a(f"s_or_b32 s72, s2, {sWV}\ns_cmp_eq_u32 s72, 0\ns_cbranch_scc0 {sk3}")
            with a.cond(sk3):
                a(f"v_mov_b32 v4, {sN}\nv_mov_b32 v5, {WS_EPOCH}\ns_mov_b64 exec, 1")
                a(f"buffer_store_dword v4, v5, {SRD_WS}, 0 offen sc1")
                a("s_mov_b64 exec, -1")
            a.label(sk3, reset=False)
        if UDW == 20:
            pass
        else:
            a("s_waitcnt lgkmcnt(0)\ns_barrier")
        for i in range(3):
            B = 64 + 16 * i
            bb = 14 + 2 * i

            def w2x(k=1):
                nonlocal nw2
                for _ in range(k):
                    if nw2 < 18:
                        w2_text.append(w2(nw2)); nw2 += 1
            for e in range(4):
                a(f"v_add_f32 v{B+e}, v{B+e}, v{B+4+e}\nv_add_f32 v{B+8+e}, v{B+8+e}, v{B+12+e}")
            w2x()
            a(f"v_lshlrev_b32 v{B+4}, 16, v{bb}\nv_and_b32 v{B+5}, 0xffff0000, v{bb}\nv_lshlrev_b32 v{B+6}, 16, v{bb+1}\nv_and_b32 v{B+7}, 0xffff0000, v{bb+1}")
            for e in range(4):
                a(f"v_add_f32 v{B+e}, v{B+e}, v{B+8+e}")
            w2x()
            for e in range(4):
                a(f"v_add_f32 v{B+e}, v{B+e}, v{B+4+e}")
            for e in range(4):
                a(f"v_mul_f32 v{B+4+e}, v{B+e}, v{B+e}\nv_mov_b32 v{B+8+e}, s85")
            w2x()
            for e in range(4):
                a(f"v_fmac_f32 v{B+8+e}, s84, v{B+4+e}")
            for e in range(4):
                a(f"v_mul_f32 v{B+8+e}, v{B+8+e}, v{B+e}")
            for e in range(4):
                a(f"v_exp_f32 v{B+8+e}, v{B+8+e}")
            w2x()
            for e in range(4):
                a(f"v_add_f32 v{B+8+e}, 1.0, v{B+8+e}")
            for e in range(4):
                a(f"v_rcp_f32 v{B+8+e}, v{B+8+e}")
            for e in range(4):
                a(f"v_mul_f32 v{B+e}, v{B+e}, v{B+8+e}")
            a(f"v_cvt_pk_bf16_f32 v{B+4}, v{B}, v{B+1}\nv_cvt_pk_bf16_f32 v{B+5}, v{B+2}, v{B+3}")
            if INB:
                a(f"v_mov_b32_dpp v{B+6}, v{B+4} quad_perm:[1,0,3,2] row_mask:0xf bank_mask:0xf")
                a(f"v_mov_b32_dpp v{B+7}, v{B+5} quad_perm:[1,0,3,2] row_mask:0xf bank_mask:0xf")
                a("s_mov_b32 exec_lo, 0x55555555\ns_mov_b32 exec_hi, 0x55555555")
                a(f"buffer_store_dwordx4 v[{B+4}:{B+7}], v11, {SRD_WS}, s{80+i} offen sc1", tag="Ust")
                a("s_mov_b64 exec, -1")
            else:
                a(f"buffer_store_dwordx2 v[{B+4}:{B+5}], v11, {SRD_WS}, s{80+i} offen sc1", tag="Ust")
        while nw2 < UDW:
            w2_text.append(w2(nw2)); nw2 += 1
        if INB:
            a("s_barrier")
        else:
            a.wait_tag("Ust")
            g.publish(PH_U)
    a.label(skip, reset=False)
    pre = ([warmup_text(SRD_W2P, "v60")] if not NOW2 else []) + [x2_touch_text()] if g.layer == 0 else []
    g.tails.append((other, skip, pre + w2_text))
    if "noweave2" in OPT:
        for i in range(20, 36):
            w2_dma(g, i >> 2, i & 3)
        a.wait_tag("D2_0")
        w2_tr(g, 0, 5)
        a("s_waitcnt lgkmcnt(0)")
        for i in range(36, 44):
            w2_dma(g, i >> 2, i & 3)
    else:
        a.wait_tag("D2_0")
        d1 = [a.capture(lambda i=i: w2_dma(g, i >> 2, i & 3)) for i in range(UDW, 36)]
        setup = a.capture(lambda: mix2_setup(g))
        half = len(setup) // 2
        while setup[half][0] != "i" or setup[half][1].startswith(("s_addc", "s_subb", "s_cselect")):
            half += 1
        a.weave(d1, a.capture(lambda: w2_tr(g, 0, 5)) + setup[:half])
        a("s_waitcnt lgkmcnt(0)")
        d2 = [a.capture(lambda i=i: w2_dma(g, i >> 2, i & 3)) for i in range(36, 44)]
        if "noprobe" in OPT or INB:
            a.weave(d2, setup[half:])
        else:
            a.items += setup[half:]
            a(f"s_mov_b64 exec, 0xff\nbuffer_load_dwordx2 v[26:27], v9, {SRD_WS}, 0 offen sc1\ns_mov_b64 exec, -1")
            for grp in d2:
                a.items += grp


def mix2_setup(g):
    a = g.a
    g.srd(32, P_B2, 4096)
    a(f"v_lshrrev_b32 v10, 3, v0\ns_lshl_b32 s72, {sR}, 7\nv_lshl_add_u32 v11, v10, 1, s72")
    a(f"buffer_load_ushort v12, v11, {SRD_T}, 0 offen\nbuffer_load_ushort v13, v11, {SRD_T}, 0 offen offset:64")
    a(f"s_mul_i32 s72, {sCQ}, {UC}\ns_lshl_b32 s73, {sL}, 21\ns_add_u32 s72, s72, s73\ns_add_u32 s72, s72, {WS_U}")
    g.srd(24, P_WS, UC, "s72")
    a("v_and_b32 v3, 15, v1\nv_lshrrev_b32 v4, 4, v1\nv_and_b32 v5, 7, v1")
    a(f"s_lshl_b32 s72, {sWV}, 14")
    for dt in range(4):
        a(f"v_add_u32 v6, {4*dt}, v4\nv_xor_b32 v6, v6, v5\nv_lshlrev_b32 v6, 4, v6\nv_lshl_add_u32 v6, v3, 8, v6\nv_add_u32 v{14+dt}, s72, v6")
    a("v_and_b32 v3, 7, v0\nv_and_b32 v4, 7, v10\nv_lshlrev_b32 v5, 1, v3")
    for e in range(2):
        a(f"v_add_u32 v6, {e}, v5\nv_xor_b32 v6, v6, v4\nv_lshlrev_b32 v6, 4, v6\nv_lshl_add_u32 v{18+e}, v10, 8, v6")
    a(f"v_mul_u32_u24 v20, 144, v10\nv_lshl_add_u32 v20, v3, 4, v20\nv_add_u32 v20, {L_R}, v20")
    a(f"v_lshlrev_b32 v21, 10, v10\nv_lshl_add_u32 v21, v3, 4, v21")
    if not INB:
        u_producers(g, "v9", 0)
        g.vflag("v9", PH_U)


def mix2(g):
    a = g.a
    a.c("======== token mixing 2: x += (u W2 + b2)^T")
    if g.layer == 0 and "code2" in OPT and g.stop_after is None:
        g.code_warmup2()
    if "noweave2" in OPT:
        mix2_setup(g)
    if INB:
        a(f"s_mul_i32 s85, {sWV}, {11*4096}\nv_lshlrev_b32 v9, 8, v1\nv_add_u32 v9, 240, v9")
        a(f"s_add_u32 s43, s85, 16384\ns_add_u32 s48, s85, 32768\ns_mov_b32 {sREDO}, 0")
        a("v_cmp_gt_u32 vcc, 48, v1\nv_mov_b32 v8, 0x7ff00000\nv_cndmask_b32 v8, v8, v9, vcc")
        redo = g.lab("m2r")
        a.label(redo, reset=False)
        sentinel(g, [("v9", "s85"), ("v9", "s43"), ("v8", "s48")], SRD_U)
        a(f"s_mov_b64 {sACC}, 0")
    elif "noprobe" in OPT:
        g.poll("v9", "0xff")
    else:
        ok = g.lab("upr")
        a(f"s_mov_b64 exec, 0xff\nv_cmp_ne_u64 vcc, {sNP}, v[26:27]\ns_mov_b64 exec, -1\ns_cbranch_vccz {ok}")
        with a.cond(ok):
            g.poll("v9", "0xff")
        a.label(ok, reset=False)
    g.stamp(17)
    UD = next((int(o[2:]) for o in OPT if o.startswith("ud")), 14)
    UB, ACC = 64, 192
    a(f"s_mul_i32 s85, {sWV}, {11*4096}")

    def uload(i):
        st, dt = i >> 2, i & 3
        if dt == 0:
            a(f"s_add_u32 s84, s85, {st*4096}")
        a(f"buffer_load_dwordx4 {vr(UB + 4*i)}, v2, {SRD_U}, s84 offen offset:{dt*1024} sc1")
    if "noprobe" in OPT or INB:
        a.wait_tag("D2_5", "D2_9", emit=False)
        a.weave([a.capture(lambda i=i: uload(i)) for i in range(UD)], a.capture(lambda: (w2_tr(g, 5, 9), w2_tr(g, 9, 11))))
    else:
        a.wait_tag("D2_5", emit=False)
        a.weave([a.capture(lambda i=i: uload(i)) for i in range(UD - 4)], a.capture(lambda: w2_tr(g, 5, 9)))
        a.wait_tag("D2_9")
        a.weave([a.capture(lambda i=i: uload(i)) for i in range(UD - 4, UD)], a.capture(lambda: w2_tr(g, 9, 11)))
    for st in range(11):
        for dt in range(4):
            for k in range(4):
                acc = ACC + (dt*4 + k) * 4
                c = "0" if st == 0 else ar(acc)
                a(f"v_mfma_f32_16x16x32_bf16 {ar(acc)}, {vr(UB + (st*4+dt)*4)}, {ar((st*4+k)*4)}, {c}")
                if INB and k == 0:
                    a(f"v_cmp_eq_u32 vcc, -1, v{UB + (st*4+dt)*4}\ns_or_b64 {sACC}, {sACC}, vcc")
                if k == 1 and st*4 + dt + UD < 44:
                    uload(st*4 + dt + UD)
            if "noew" not in OPT and not INB and st == 10 and dt >= 1:
                for k in range(4):
                    a(f"ds_write_b128 v{14+dt-1}, {ar(ACC + ((dt-1)*4+k)*4)} offset:{L_X + k*4096}")
    if INB:
        redo_end(g, redo)
    g.stamp(18)
    for dt in range(4):
        if "noew" not in OPT and not INB and dt < 3:
            continue
        for k in range(4):
            a(f"ds_write_b128 v{14+dt}, {ar(ACC + (dt*4+k)*4)} offset:{L_X + k*4096}")
    a("s_waitcnt lgkmcnt(0)\ns_barrier")
    a(f"s_lshl_b32 s72, {sR}, 16\ns_lshl_b32 s73, {sCQ}, 7\ns_add_u32 s72, s72, s73")
    for half in range(2):
        B = 64 + half * 48
        for k in range(4):
            for e in range(2):
                a(f"ds_read_b128 {vr(B + k*8 + e*4)}, v{18+e} offset:{L_X + k*16384 + half*8192}")
        a(f"ds_read_b128 {vr(B+32)}, v20 offset:{half*4608}")
    def epilogue(first):
        ring = []
        if first:
            g.q_addr_w(46)
            g.w_dma_setup("s80", "s81", "s82")
            ring = [(s_, n) for s_ in range(5) for n in range(4)]

        def ringdma(k=1):
            for _ in range(k):
                if ring:
                    s_, n = ring.pop(0)
                    g.w_dma(s_, only=n, sg="s80", sl="s81", st="s82", va="v46")
        for half in range(2):
            B = 64 + half * 48
            a(f"v_lshlrev_b32 v22, 16, v{12+half}")
            for i in range(8):
                a(f"v_add_f32 v{B+i}, v{B+i}, v{B+8+i}\nv_add_f32 v{B+16+i}, v{B+16+i}, v{B+24+i}")
                if i % 2 == 1:
                    ringdma()
            for i in range(8):
                a(f"v_add_f32 v{B+i}, v{B+i}, v{B+16+i}")
            ringdma()
            for i in range(8):
                a(f"v_add_f32 v{B+i}, v{B+i}, v22")
            ringdma()
            for k in range(4):
                a(f"v_lshlrev_b32 v{B+8+2*k}, 16, v{B+32+k}\nv_and_b32 v{B+9+2*k}, 0xffff0000, v{B+32+k}")
            ringdma()
            for i in range(8):
                a(f"v_add_f32 v{B+i}, v{B+i}, v{B+8+i}")
            ringdma()
            for k in range(4):
                a(f"v_cvt_pk_bf16_f32 v{B+36+k}, v{B+2*k}, v{B+2*k+1}")
            if first:
                a(f"ds_write_b128 v20, {vr(B+36)} offset:{half*4608}")
                g.dual(lambda m, B=B: a(f"buffer_store_dwordx4 {vr(B+36)}, v21, {SRD_DST}, s72 offen {m}", tag="Xst"))
            else:
                om = "" if "outplain" in OPT else "sc1"
                a(f"buffer_store_dwordx4 {vr(B+36)}, v21, {SRD_DST}, s72 offen {om}")
            if half == 0:
                a("s_add_u32 s72, s72, 32768")
            if first:
                a(f"v_add_f32 v{B+40}, v{B}, v{B+1}\nv_mul_f32 v{B+41}, v{B}, v{B}\nv_fmac_f32 v{B+41}, v{B+1}, v{B+1}")
                for i in range(2, 8):
                    a(f"v_add_f32 v{B+40}, v{B+40}, v{B+i}\nv_fmac_f32 v{B+41}, v{B+i}, v{B+i}")
                ringdma(2)
        if first:
            ringdma(20)
            a("v_mov_b32 v12, v46")
            g.row_stats_store([104, 152], 1, local=True)
    epilogue(g.layer == 0)


def drain(g, tag, n, sreg, val):
    a = g.a
    lw = g.lab("dr")
    a(f"s_cmp_eq_u32 {sreg}, {val}\ns_cbranch_scc1 {lw}")
    a.raw("  s_waitcnt vmcnt(0)")
    a.label(lw, reset=False)
    a.raw(f"  s_waitcnt vmcnt({n})")
    a.wait_tag(tag, emit=False)


def o_drain_publish(g):
    a = g.a
    a.wait_tag("Ost")
    g.publish(PH_O, local=True, also=PH_P if g.layer == 0 else None)


def rest(g):
    a = g.a
    attn_setup(g)
    g.stamp(5)
    attn(g)
    a("s_barrier")
    o_drain_publish(g)
    g.stamp(9)
    if g.stop("a"):
        return True
    o_flags(g)
    oproj(g)
    early_w1(g, 28, 40)
    if not INB:
        drain(g, "Hst", 12, sM1, 1)
        g.publish(PH_H)
    g.stamp(13)
    if g.stop("o"):
        return True
    mix1(g)
    g.stamp(16)
    if g.stop("m1"):
        return True
    mix2(g)
    g.stamp(19)
    if g.stop("m2"):
        return True
    if g.layer == 1:
        a("s_endpgm")
        a.assume_clean()
        return True
    g.srd(4, P_WS, 2 << 20, WS_X2)
    g.srd(20, P_OUT, 2 << 20)
    a(f"s_mov_b32 {sL}, 1")
    a("s_waitcnt lgkmcnt(0)")
    return False


def finish(g):
    a = g.a
    a("s_branch L_end")
    a.assume_clean()
    for lab, back, fn in g.late:
        a.label(lab, reset=False)
        fn()
        a(f"s_branch {back}")
        a.assume_clean()
    for stub, back, always in g.stubs:
        a.label(stub, reset=False)
        a("s_nop 7")
        for x in always:
            a(x)
        a(f"s_nop 11\ns_branch {back}")
        a.assume_clean()
    for lab, back, texts in g.tails:
        a.label(lab, reset=False)
        for x in texts:
            for line in x.split("\n"):
                if line.startswith("@"):
                    a.label(line[1:], reset=False)
                else:
                    a(line)
        a(f"s_branch {back}")
        a.assume_clean()
```
